```python
import torch

def _softmax(x, axis=-1):
    return torch.softmax(x, dim=axis)

def _gelu(x):
    return torch.nn.functional.gelu(x, approximate='tanh')

def _silu(x):
    return torch.nn.functional.silu(x)

def _sigmoid(x):
    return torch.sigmoid(x)

def _layernorm(x, axis=-1, eps=1e-05):
    m = x.mean(dim=axis, keepdim=True)
    v = x.var(dim=axis, keepdim=True, unbiased=False)
    return (x - m) / torch.sqrt(v + eps)

def _scatter_add(tgt, idx, src, axis=0):
    return tgt.clone().index_add_(axis, idx, src)

def _segment_sum(src, seg, n):
    out = torch.zeros((n,) + src.shape[1:], dtype=src.dtype)
    return out.index_add_(0, seg, src)

def _pad(x, pw):
    flat = tuple((v for pair in reversed(pw) for v in pair))
    return torch.nn.functional.pad(x, flat)
kernel_name = 'gated_mix__linear_attn_block__mixer_gmlp__prompt'

def setup_inputs():

    _w = lambda a: (lambda t: t.to(torch.bfloat16) if t.is_floating_point() else t)(torch.as_tensor(a))

    def _A_setup():
        B, S, D = (1, 2048, 512)
        return {'x': _w((lambda *s: torch.randn(*s, dtype=torch.bfloat16) * 0.05)(B, S, D)), 'wqkv': _w((lambda *s: torch.randn(*s, dtype=torch.bfloat16) * 1.6)(D, 3 * D)), 'wo': _w((lambda *s: torch.randn(*s, dtype=torch.bfloat16) * 0.2)(D, D))}
    _A_in = _A_setup()

    def _B_setup():
        B, S, D, F = (1, 2048, 512, 1376)
        Fh = F // 2
        return {'x': _w((lambda *s: torch.randn(*s, dtype=torch.bfloat16) * 0.05)(B, S, D)), 'w_in': _w((lambda *s: torch.randn(*s, dtype=torch.bfloat16) * 0.4)(D, 2 * Fh)), 'w_sp': _w(0.01 * (lambda *s: torch.randn(*s, dtype=torch.bfloat16) * 0.4)(S, S)), 'b_sp': _w(1.0 + 0.01 * (lambda *s: torch.randn(*s, dtype=torch.bfloat16) * 0.05)(S)), 'w_out': _w((lambda *s: torch.randn(*s, dtype=torch.bfloat16) * 0.05)(Fh, D))}
    _B_in = _B_setup()
    return {'A_x': _A_in['x'], 'A_wqkv': _A_in['wqkv'], 'A_wo': _A_in['wo'], 'B_x': _B_in['x'], 'B_w_in': _B_in['w_in'], 'B_w_sp': _B_in['w_sp'], 'B_b_sp': _B_in['b_sp'], 'B_w_out': _B_in['w_out'], 'gate_w': _w((lambda *s: torch.randn(*s, dtype=torch.bfloat16) * 0.05)(512) * 16.0)}

def reference(A_x, A_wqkv, A_wo, B_x, B_w_in, B_w_sp, B_b_sp, B_w_out, gate_w):

    def _A_ref(x, wqkv, wo):
        B, S, D = x.shape
        H = 32
        Dh = D // H
        qkv = (lambda x, *d: x.permute(*d))((x @ wqkv).reshape(B, S, 3, H, Dh), 2, 0, 3, 1, 4)
        q, k, v = (qkv[0], qkv[1], qkv[2])
        phi = lambda t: torch.where(t > 0, t + 1, torch.exp(t)) + 1e-06
        pq, pk = (phi(q), phi(k))
        kv = torch.einsum('bhsd,bhse->bhde', pk, v)
        z = torch.einsum('bhsd->bhd', pk)
        num = torch.einsum('bhqd,bhde->bhqe', pq, kv)
        den = torch.einsum('bhqd,bhd->bhq', pq, z)[..., None] + 1e-06
        o = num / den
        return (lambda x, *d: x.permute(*d))(o, 0, 2, 1, 3).reshape(B, S, D) @ wo

    def _B_ref(x, w_in, w_sp, b_sp, w_out):
        B, S, D = x.shape
        F = w_in.shape[-1]
        Fh = F // 2
        z = _gelu(torch.einsum('bsd,df->bsf', x, w_in))
        z1 = z[..., :Fh].clone()
        z2 = _layernorm(z[..., Fh:], axis=-1)
        g = torch.einsum('ts,bsf->btf', w_sp, z2) + b_sp[None, :, None]
        return torch.einsum('bsf,fd->bsd', z1 * g, w_out)
    x = A_x
    g = _sigmoid((x * gate_w).sum(-1, keepdims=True))
    a = _A_ref(x, A_wqkv, A_wo)
    b = _B_ref(x, B_w_in, B_w_sp, B_b_sp, B_w_out)
    return g * a + (1 - g) * b
```

```python
import re

REG_RE = re.compile(r'^(v|a|s)(\d+)$|^(v|a|s)\[(\d+):(\d+)\]$')


def parse_reg(tok):
    tok = tok.strip()
    neg = tok.lstrip('-')
    if neg.startswith('abs(') and neg.endswith(')'):
        neg = neg[4:-1]
    if neg.startswith('|') and neg.endswith('|'):
        neg = neg[1:-1]
    m = REG_RE.match(neg)
    if m:
        if m.group(1):
            return [(m.group(1), int(m.group(2)))]
        return [(m.group(3), i) for i in range(int(m.group(4)), int(m.group(5)) + 1)]
    if neg == 'vcc':
        return [('s', 106), ('s', 107)]
    if neg == 'exec':
        return [('s', 126), ('s', 127)]
    if neg == 'm0':
        return [('s', 124)]
    return []


TRANS = ('v_exp_f32', 'v_log_f32', 'v_rcp_f32', 'v_rsq_f32', 'v_sqrt_f32', 'v_sin_f32', 'v_cos_f32')
VCC = [('s', 106), ('s', 107)]
EXEC = [('s', 126), ('s', 127)]
M0 = [('s', 124)]
SCC = [('c', 0)]


class I:
    __slots__ = ('text', 'op', 'ops', 'mods', 'rd', 'wr', 'kind', 'tag', 'waits', 'nops', 'label', 'meta')

    def __init__(self, text, tag=None, meta=None):
        self.text = text
        self.tag = tag
        self.meta = meta or {}
        self.waits = None
        self.nops = 0
        self.label = None
        t = text.split(';')[0].strip()
        if t.endswith(':'):
            self.kind = 'label'
            self.label = t[:-1]
            self.op = ''
            self.rd = []
            self.wr = []
            return
        if t.startswith('.') or t == '':
            self.kind = 'dir'
            self.op = ''
            self.rd = []
            self.wr = []
            return
        parts = t.split(None, 1)
        self.op = parts[0]
        rest = parts[1] if len(parts) > 1 else ''
        ops = []
        depth = 0
        cur = ''
        for ch in rest:
            if ch in '[(':
                depth += 1
            if ch in '])':
                depth -= 1
            if ch == ',' and depth == 0:
                ops.append(cur.strip())
                cur = ''
            else:
                cur += ch
        if cur.strip():
            ops.append(cur.strip())
        mods = []
        if ops:
            last = ops[-1].split()
            ops[-1] = last[0]
            mods = last[1:]
        self.ops = ops
        self.mods = mods
        self.classify()

    def classify(self):
        op = self.op
        base = re.sub(r'_e(32|64)$', '', op)
        ops = self.ops
        R = lambda i: parse_reg(ops[i]) if i < len(ops) else []
        rd, wr = [], []
        allr = lambda a, b=None: [r for i in range(a, len(ops) if b is None else b) for r in R(i)]
        if op.startswith('v_mfma'):
            self.kind = 'mfma'
            wr = R(0)
            rd = allr(1)
            self.meta['srcc'] = R(3)
            self.meta['srcab'] = R(1) + R(2)
        elif op.startswith('v_'):
            self.kind = 'trans' if base in TRANS else 'valu'
            if base.startswith('v_cmp'):
                wr = R(0)
                rd = allr(1)
            elif base in ('v_readfirstlane_b32', 'v_readlane_b32'):
                wr = R(0)
                rd = allr(1)
                self.meta['readlane'] = True
            elif base in ('v_permlane32_swap_b32', 'v_permlane16_swap_b32'):
                wr = R(0) + R(1)
                rd = R(0) + R(1)
                self.meta['permlane'] = True
            elif base in ('v_fmac_f32', 'v_mac_f32', 'v_dot2c_f32_bf16'):
                wr = R(0)
                rd = allr(0)
            elif base in ('v_add_co_u32', 'v_sub_co_u32', 'v_addc_co_u32', 'v_subb_co_u32'):
                wr = R(0) + R(1)
                rd = allr(2)
            elif base == 'v_writelane_b32':
                wr = R(0)
                rd = allr(0)
            else:
                wr = R(0)
                rd = allr(1)
                if base == 'v_cndmask_b32' and len(ops) == 3:
                    rd += VCC
            rd += EXEC
        elif op.startswith('ds_'):
            self.kind = 'ds'
            if op.startswith('ds_read') or op.startswith('ds_bpermute') or op.startswith('ds_permute') or op.startswith('ds_swizzle'):
                wr = R(0)
                rd = allr(1)
                self.meta['load'] = True
            else:
                rd = allr(0)
                self.meta['store'] = True
            rd += EXEC
        elif op.startswith('buffer_') or op.startswith('global_'):
            self.kind = 'vmem'
            is_lds = 'lds' in self.mods or '_lds_' in op
            if is_lds:
                rd = allr(0) + M0
                self.meta['dma'] = True
            elif '_load' in op:
                wr = R(0)
                rd = allr(1)
                self.meta['load'] = True
            elif '_atomic' in op and ('sc0' in self.mods):
                wr = R(0)
                rd = allr(0)
                self.meta['load'] = True
            else:
                rd = allr(0)
                self.meta['store'] = True
                if op.startswith('buffer_store'):
                    self.meta['sdata'] = R(0)
                elif op.startswith('global_store'):
                    self.meta['sdata'] = R(1)
                else:
                    self.meta['sdata'] = []
                self.meta['wide'] = ('x4' in op or 'x3' in op)
            rd += EXEC
        elif op.startswith('s_load') or op.startswith('s_buffer_load') or op in ('s_memtime', 's_memrealtime'):
            self.kind = 'smem'
            wr = R(0)
            rd = allr(1)
        elif op == 's_waitcnt':
            self.kind = 'wait'
            vm = lg = None
            m = re.search(r'vmcnt\((\d+)\)', self.text)
            if m:
                vm = int(m.group(1))
            m = re.search(r'lgkmcnt\((\d+)\)', self.text)
            if m:
                lg = int(m.group(1))
            self.meta['vm'] = vm
            self.meta['lg'] = lg
        elif op == 's_nop':
            self.kind = 'nop'
            self.meta['n'] = int(ops[0], 0) + 1
        elif op in ('s_barrier', 's_endpgm', 's_sleep', 's_setprio'):
            self.kind = 'sctl'
        elif op.startswith('s_cbranch') or op in ('s_branch', 's_setpc_b64', 's_call_b64', 's_swappc_b64'):
            self.kind = 'branch'
            if op == 's_call_b64':
                wr = R(0)
            elif op == 's_setpc_b64':
                rd = R(0)
            elif op == 's_swappc_b64':
                wr = R(0)
                rd = R(1)
            elif 'scc' in op:
                rd = SCC
            elif 'vcc' in op:
                rd = VCC
            elif 'exec' in op:
                rd = EXEC
        elif op.startswith('s_cmp') or op.startswith('s_bitcmp'):
            self.kind = 'salu'
            rd = allr(0)
            wr = SCC
        elif op.startswith('s_'):
            self.kind = 'salu'
            wr = R(0)
            rd = allr(1)
            if op in ('s_addk_i32', 's_mulk_i32'):
                rd += R(0)
            if op.startswith('s_cselect') or op.startswith('s_addc') or op.startswith('s_subb'):
                rd += SCC
            if op.startswith('s_cmov'):
                rd += SCC + R(0)
            if op.endswith('saveexec_b64'):
                wr = wr + EXEC
                rd = rd + EXEC
            if not (op.startswith('s_mov') or op.startswith('s_cmov') or op.startswith('s_cselect') or op.startswith('s_getpc') or op.startswith('s_mul_i32') or op.startswith('s_movk')):
                wr = wr + SCC
        else:
            raise ValueError('unknown op ' + self.text)
        self.rd = rd
        self.wr = wr


class Block:
    def __init__(self, name):
        self.name = name
        self.ins = []

    def __call__(self, text, tag=None, **meta):
        for line in text.split('\n'):
            if line.strip() == '':
                continue
            i = I(line.strip(), tag=tag, meta=dict(meta))
            self.ins.append(i)
        return self.ins[-1]

    def label(self, name):
        self.ins.append(I(name + ':'))

    def wait_vm(self, tag):
        i = I('s_nop 0')
        i.kind = 'pseudo'
        i.text = ''
        i.meta = {'wait_tag': tag}
        i.rd = []
        i.wr = []
        self.ins.append(i)

    def wait_lds(self):
        self('s_waitcnt lgkmcnt(0)')

    def raw(self, text):
        i = I('.dir')
        i.text = text
        i.kind = 'raw'
        self.ins.append(i)


def analyse_waits(path):
    vmq = []
    lgq = []

    def need(ins, vm=None, lg=None):
        cur = ins.waits or (None, None)
        a = cur[0] if vm is None else (vm if cur[0] is None else min(cur[0], vm))
        b = cur[1] if lg is None else (lg if cur[1] is None else min(cur[1], lg))
        ins.waits = (a, b)

    def apply(vm, lg):
        nonlocal vmq, lgq
        if vm is not None and len(vmq) > vm:
            vmq = vmq[len(vmq) - vm:] if vm > 0 else []
        if lg is not None and len(lgq) > lg:
            lgq = lgq[len(lgq) - lg:] if lg > 0 else []

    for ins in path:
        if ins.kind in ('label', 'dir', 'raw'):
            continue
        if ins.kind == 'pseudo':
            tag = ins.meta['wait_tag']
            tags = tag if isinstance(tag, (list, tuple)) else [tag]
            last = -1
            for k, e in enumerate(vmq):
                if e['tag'] in tags:
                    last = k
            if last >= 0:
                n = min(len(vmq) - 1 - last, 63)
                need(ins, vm=n)
            if ins.waits:
                apply(*ins.waits)
            continue
        touched = set(ins.rd) | set(ins.wr)
        vm = lg = None
        last = -1
        for k, e in enumerate(vmq):
            if e['dst'] & touched:
                last = k
        if last >= 0:
            vm = min(len(vmq) - 1 - last, 63)
        last = -1
        for k, e in enumerate(lgq):
            if e['dst'] & touched:
                last = k
        if last >= 0:
            if any(e['smem'] for e in lgq):
                lg = 0
            else:
                lg = min(len(lgq) - 1 - last, 15)
        if vm is not None or lg is not None:
            need(ins, vm, lg)
        if ins.waits:
            apply(*ins.waits)
        if ins.kind == 'wait':
            apply(ins.meta['vm'], ins.meta['lg'])
        elif ins.kind == 'vmem':
            vmq.append({'dst': set(ins.wr), 'tag': ins.tag})
        elif ins.kind == 'ds':
            lgq.append({'dst': set(ins.wr), 'smem': False})
        elif ins.kind == 'smem':
            lgq.append({'dst': set(ins.wr), 'smem': True})


def isv(r):
    return r[0] in 'va'


def analyse_hazards(path):
    hist = []

    def dist_iter():
        d = 0
        for prev, w in reversed(hist):
            yield prev, d
            d += w
            if d > 24:
                break

    for ins in path:
        if ins.kind in ('label', 'dir', 'raw'):
            continue
        if ins.kind == 'pseudo':
            if ins.waits and (ins.waits[0] is not None or ins.waits[1] is not None):
                hist.append((None, 1))
            continue
        pre = 1 if (ins.waits and (ins.waits[0] is not None or ins.waits[1] is not None)) else 0
        rd, wr = set(ins.rd), set(ins.wr)
        rdv = {r for r in rd if isv(r)}
        wrv = {r for r in wr if isv(r)}
        rds = {r for r in rd if r[0] == 's'}
        req = 0
        is_valu = ins.kind in ('valu', 'trans')
        for prev, d in dist_iter():
            if prev is None:
                continue
            d = d + pre + ins.nops * 0
            pw = set(prev.wr)
            pwv = {r for r in pw if isv(r)}
            pws = {r for r in pw if r[0] == 's'}
            n = 0
            if prev.kind in ('valu', 'trans'):
                if ins.kind == 'mfma' and (pwv & rdv):
                    n = max(n, 2)
                if prev.kind == 'trans' and is_valu and ins.kind != 'trans' and (pwv & rdv):
                    n = max(n, 1)
                if prev.kind == 'trans' and ins.kind == 'trans' and (pwv & rdv):
                    n = max(n, 1)
                if ins.meta.get('permlane') and (pwv & (rdv | wrv)):
                    n = max(n, 2)
                if ins.meta.get('readlane') and (pwv & rdv):
                    n = max(n, 1)
                if is_valu and (pws & rds - set(EXEC)):
                    n = max(n, 2)
                if ins.kind == 'vmem' and (pws & rds):
                    n = max(n, 5)
                if ins.kind in ('salu', 'branch') and (pws & rds):
                    n = max(n, 1)
            if prev.kind == 'mfma':
                if ins.kind == 'mfma':
                    srcc = set(ins.meta['srcc'])
                    ab = set(ins.meta['srcab'])
                    if pwv & ab:
                        n = max(n, 12)
                    if pwv & srcc:
                        if not (srcc == pwv):
                            n = max(n, 10)
                    elif pwv & wrv and not (wrv == pwv):
                        n = max(n, 10)
                else:
                    if pwv & (rdv | wrv):
                        n = max(n, 12)
                    if is_valu and (set(prev.meta['srcc']) & wrv):
                        n = max(n, 7)
            if prev.kind == 'salu' and ins.kind == 'vmem' and ins.meta.get('dma') and (set(M0) & pw):
                n = max(n, 1)
            if prev.kind == 'vmem' and prev.meta.get('store') and prev.meta.get('wide') and (set(prev.meta['sdata']) & wrv):
                n = max(n, 2 if is_valu else 1)
            if n > d:
                req = max(req, n - d)
        ins.nops = max(ins.nops, req)
        if ins.nops:
            hist.append((None, ins.nops))
        if pre:
            hist.append((None, 1))
        w = ins.meta['n'] if ins.kind == 'nop' else 1
        hist.append((ins, w))
        if len(hist) > 64:
            hist = hist[-64:]


def render(block):
    out = []
    for ins in block.ins:
        if ins.kind == 'raw':
            out.append(ins.text)
            continue
        if ins.kind == 'label':
            out.append(ins.text)
            continue
        w = ins.waits
        pre = []
        n = ins.nops
        while n > 0:
            k = min(n, 16)
            pre.append(f'    s_nop {k - 1}')
            n -= k
        if w and (w[0] is not None or w[1] is not None):
            s = '    s_waitcnt'
            if w[0] is not None:
                s += f' vmcnt({w[0]})'
            if w[1] is not None:
                s += f' lgkmcnt({w[1]})'
            pre.append(s)
        out += pre
        if ins.kind != 'pseudo':
            out.append('    ' + ins.text)
    return '\n'.join(out)


def finalize(blocks, paths, iters=3):
    lin = [[i for b in p for i in b.ins] for p in paths]
    for _ in range(iters):
        for l in lin:
            analyse_waits(l)
    for _ in range(iters):
        for l in lin:
            analyse_hazards(l)
```

```python
from asmlib import *
import gen as G
from gen import (v, a, s, f2u, LOG2E, OOB, stamp, srd, tr_addr,
                 WS_FZ2, WS_FP1, WS_FY, WS_FKV, WS_GATE, WS_KVF, WS_KVP, WS_Z2N, WS_Z1F, WS_PQ, WS_Y, WS_SIZE, WS_EPOCH,
                 SRD_X, SRD_W, SRD_WS, SRD_T, S_W, S_WG, S_I, S_J, S_N, S_T0, S_T1, S_T2, S_T3, S_T4, S_T5, S_T6, S_T7,
                 P_BSP, P_WO, P_WOUT, P_OUT, V_LANE, V_L16, V_L8, V_T0, V_POLL)

S_FB0, S_NBLK = 70, 71
S_BO = 72
S_PART = 73
S_U = 74
S_YO, S_ZO = 75, 76
S_WOB = 77
S_KVO = 78
S_FBN = 87
SRD_KV = 44

V_PA = 8
V_PR = 14
V_XW = 16
V_XR = 20
V_BSP = 21
V_G0 = 22
V_NG = 26
V_BNG = 27
V_KS = 232
V_KL = 32
ACC = [64, 96]
RING = 128
V_X = 192
V_Z1 = 224
V_YO = 228
V_WO = 240
D = 16
PRIV = 40960
XOFF = 22528


def lane_flag_addr(b, dst, code):
    for l in code:
        b(l)


def emit_phase23(g):
    b = g.blk('P2')
    t0, t1, t2 = V_T0, V_T0 + 1, V_T0 + 2
    b(f's_mul_i32 {s(S_FB0)}, {s(S_J)}, 3')
    b(f's_min_u32 {s(S_FB0)}, {s(S_FB0)}, 20')
    b(f's_cmp_lt_u32 {s(S_J)}, 6')
    b(f's_cselect_b32 {s(S_NBLK)}, 3, 2')
    b(f's_mov_b32 {s(S_FBN)}, {s(S_FB0)}')
    b(f's_add_u32 {s(S_FBN + 1)}, {s(S_FB0)}, 1')
    b(f's_add_u32 {s(S_FBN + 2)}, {s(S_FB0)}, {s(S_NBLK)}')
    b(f's_sub_u32 {s(S_FBN + 2)}, {s(S_FBN + 2)}, 1')
    b(f's_lshr_b32 {s(S_T0)}, {s(S_FB0)}, 1')
    b(f's_lshr_b32 {s(S_T1)}, {s(S_FBN + 2)}, 1')
    b(f's_sub_u32 {s(S_T1)}, {s(S_T1)}, {s(S_T0)}')
    b(f'v_bfe_u32 {v(t0)}, {v(V_LANE)}, 3, 2')
    b(f'v_bfe_u32 {v(t1)}, {v(V_LANE)}, 2, 1')
    b(f'v_mul_u32_u24 {v(t1)}, {s(S_T1)}, {v(t1)}')
    b(f'v_lshl_add_u32 {v(t0)}, {v(t0)}, 4, {v(t1)}')
    b(f's_lshl_b32 {s(S_T2)}, {s(S_W)}, 6')
    b(f's_add_u32 {s(S_T2)}, {s(S_T2)}, {s(S_T0)}')
    b(f'v_add_u32 {v(t0)}, {s(S_T2)}, {v(t0)}')
    b(f'v_and_b32 {v(t1)}, 3, {v(V_LANE)}')
    b(f'v_lshl_add_u32 {v(t0)}, {v(t0)}, 2, {v(t1)}')
    b(f'v_lshlrev_b32 {v(V_PA)}, 6, {v(t0)}')
    b(f's_mov_b32 {s(S_T7)}, {WS_FZ2}')
    g.poll(b, V_PA, s(S_T7), V_PR)
    stamp(b, 5)
    b(f's_lshl_b32 {s(S_BO)}, {s(S_FBN)}, 17')
    b(f's_lshl_b32 {s(S_T0)}, {s(S_W)}, 15')
    b(f's_add_u32 {s(S_T5)}, {s(S_T0)}, {WS_Z2N}')
    b(f's_add_u32 {s(S_BO)}, {s(S_BO)}, {s(S_T5)}')

    def bload(gi):
        nb, n = gi >> 5, gi & 31
        if n == 0 and nb > 0:
            b(f's_lshl_b32 {s(S_BO)}, {s(S_FBN + nb)}, 17')
            b(f's_add_u32 {s(S_BO)}, {s(S_BO)}, {s(S_T5)}')
        elif n % 4 == 0 and n > 0:
            b(f's_add_u32 {s(S_BO)}, {s(S_BO)}, 4096')
        b(f'buffer_load_dwordx4 {v(RING + 4 * (gi % D), 4)}, {v(V_L16)}, {s(SRD_WS, 4)}, {s(S_BO)} offen offset:{1024 * (n & 3)} sc1')

    for gi in range(D):
        bload(gi)
    b(f's_lshr_b32 {s(S_T0)}, {s(S_I)}, 1')
    b(f's_lshl_b32 {s(S_T0)}, {s(S_T0)}, 12')
    b(f'v_lshlrev_b32 {v(t0)}, 6, {v(V_LANE)}')
    b(f'v_add_u32 {v(V_PA + 1)}, {s(S_T0)}, {v(t0)}')
    b(f's_and_b32 {s(S_U)}, {s(S_WG)}, 63')
    b(f's_lshr_b32 {s(S_T0)}, {s(S_U)}, 3')
    b(f'v_lshrrev_b32 {v(t0)}, 2, {v(V_LANE)}')
    b(f'v_lshlrev_b32 {v(t0)}, 4, {v(t0)}')
    b(f'v_add_u32 {v(t0)}, {s(S_T0)}, {v(t0)}')
    b(f'v_and_b32 {v(t1)}, 3, {v(V_LANE)}')
    b(f'v_lshl_add_u32 {v(t0)}, {v(t0)}, 2, {v(t1)}')
    b(f'v_lshlrev_b32 {v(V_PA + 2)}, 6, {v(t0)}')
    b(f's_cmp_lt_u32 {s(S_WG)}, 64')
    b(f's_cselect_b32 {s(S_PART)}, {hex(WS_SIZE)}, 0')
    b(f's_cmp_eq_u32 {s(S_W)}, 0')
    b(f's_cselect_b32 {s(S_PART)}, {s(S_PART)}, 0')
    b(f's_mov_b32 {s(SRD_KV)}, {s(SRD_WS)}')
    b(f's_mov_b32 {s(SRD_KV + 1)}, {s(SRD_WS + 1)}')
    b(f's_mov_b32 {s(SRD_KV + 2)}, {s(S_PART)}')
    b(f's_mov_b32 {s(SRD_KV + 3)}, 0x20000')
    b(f's_lshl_b32 {s(S_KVO)}, {s(S_U)}, 14')
    b(f's_add_u32 {s(S_KVO)}, {s(S_KVO)}, {WS_KVP}')
    b(f's_lshl_b32 {s(S_T0)}, {s(S_W)}, 11')
    b(f'v_add_u32 {v(t0)}, {s(S_T0)}, {v(V_L16)}')
    for d in range(4):
        b(f'v_add_u32 {v(V_XW + d)}, {PRIV * d + XOFF}, {v(t0)}')
    b(f's_mul_i32 {s(S_T0)}, {s(S_W)}, {PRIV}')
    b(f's_add_u32 {s(S_T0)}, {s(S_T0)}, {XOFF}')
    b(f'v_add_u32 {v(V_XR)}, {s(S_T0)}, {v(V_L16)}')
    srd(b, SRD_T, P_BSP, 4096)
    b(f's_and_b32 {s(S_T0)}, {s(S_W)}, 1')
    b(f's_lshl_b32 {s(S_T0)}, {s(S_T0)}, 6')
    b(f's_lshl_b32 {s(S_T1)}, {s(S_I)}, 7')
    b(f's_add_u32 {s(S_T0)}, {s(S_T0)}, {s(S_T1)}')
    b(f'v_and_b32 {v(t0)}, 31, {v(V_LANE)}')
    b(f'v_lshlrev_b32 {v(t1)}, 1, {v(t0)}')
    b(f'buffer_load_ushort {v(V_BSP)}, {v(t1)}, {s(SRD_T, 4)}, {s(S_T0)} offen')
    b(f'v_lshlrev_b32 {v(V_PA + 5)}, 2, {v(t0)}')
    b(f's_and_b32 {s(S_T0)}, {s(S_W)}, 1')
    b(f's_lshl1_add_u32 {s(S_T0)}, {s(S_I)}, {s(S_T0)}')
    b(f's_mul_i32 {s(S_T0)}, {s(S_T0)}, 45056')
    b(f's_lshr_b32 {s(S_T1)}, {s(S_W)}, 1')
    b(f's_lshl_b32 {s(S_T1)}, {s(S_T1)}, 10')
    b(f's_add_u32 {s(S_T0)}, {s(S_T0)}, {s(S_T1)}')
    b(f's_add_u32 {s(S_ZO)}, {s(S_T0)}, {WS_Z1F}')
    b(f's_add_u32 {s(S_YO)}, {s(S_T0)}, {WS_Y}')

    def xwrite(nb):
        acc = ACC[nb & 1]
        for d in range(4):
            r = acc + 16 * (d & 1) + 8 * (d >> 1)
            for q in range(2):
                b(f'ds_write_b128 {v(V_XW + d)}, {v(r + 4 * q, 4)} offset:{8192 * (nb & 1) + 1024 * q}')

    def xread(nb):
        for src in range(4):
            for q in range(2):
                b(f'ds_read_b128 {v(V_X + 8 * src + 4 * q, 4)}, {v(V_XR)} offset:{8192 * (nb & 1) + 2048 * src + 1024 * q}')

    def z1load(nb):
        b(f's_lshl_b32 {s(S_T0)}, {s(S_FBN + nb)}, 11')
        b(f's_add_u32 {s(S_T0)}, {s(S_T0)}, {s(S_ZO)}')
        b(f'buffer_load_dwordx4 {v(V_Z1, 4)}, {v(V_L16)}, {s(SRD_WS, 4)}, {s(S_T0)} offen sc1')

    def yepi(nb):
        o = []
        for k in range(8):
            o.append(f'v_add_f32 {v(V_X + k)}, {v(V_X + k)}, {v(V_X + 8 + k)}')
        for k in range(8):
            o.append(f'v_add_f32 {v(V_X + 16 + k)}, {v(V_X + 16 + k)}, {v(V_X + 24 + k)}')
        for k in range(8):
            o.append(f'v_add_f32 {v(V_X + k)}, {v(V_X + k)}, {v(V_X + 16 + k)}')
        for k in range(8):
            o.append(f'v_fma_f32 {v(V_X + k)}, {v(V_X + k)}, {v(V_NG)}, {v(V_BNG)}')
        for k in range(4):
            o.append(f'v_lshlrev_b32 {v(V_X + 8 + 2 * k)}, 16, {v(V_Z1 + k)}')
            o.append(f'v_and_b32 {v(V_X + 9 + 2 * k)}, 0xffff0000, {v(V_Z1 + k)}')
        for k in range(8):
            o.append(f'v_mul_f32 {v(V_X + k)}, {v(V_X + k)}, {v(V_X + 8 + k)}')
        for k in range(4):
            o.append(f'v_cvt_pk_bf16_f32 {v(V_YO + k)}, {v(V_X + 2 * k)}, {v(V_X + 2 * k + 1)}')
        o.append([f's_mov_b32 {s(SRD_T)}, {s(SRD_WS)}',
                  f's_mov_b32 {s(SRD_T + 1)}, {s(SRD_WS + 1)}',
                  f's_cmp_gt_u32 {s(S_NBLK)}, {nb}',
                  f's_cselect_b32 {s(SRD_T + 2)}, {hex(WS_SIZE)}, 0',
                  f's_mov_b32 {s(SRD_T + 3)}, 0x20000',
                  f's_lshl_b32 {s(S_T0)}, {s(S_FBN + nb)}, 11',
                  f's_add_u32 {s(S_T0)}, {s(S_T0)}, {s(S_YO)}',
                  ('y', f'buffer_store_dwordx4 {v(V_YO, 4)}, {v(V_L16)}, {s(SRD_T, 4)}, {s(S_T0)} offen sc1')])
        return o

    def kvload(r0):
        b(f's_add_u32 {s(S_T0)}, {s(S_KVO)}, {1024 * r0}')
        for r in range(8):
            if r == 4:
                b(f's_add_u32 {s(S_T0)}, {s(S_T0)}, 4096')
            b(f'buffer_load_dwordx4 {v(V_KL + 4 * r, 4)}, {v(V_L16)}, {s(SRD_KV, 4)}, {s(S_T0)} offen offset:{1024 * (r & 3)} sc1')

    def kvsum(first):
        o = []
        for r in range(0, 8, 2):
            for k in range(4):
                o.append(f'v_add_f32 {v(V_KL + 4 * r + k)}, {v(V_KL + 4 * r + k)}, {v(V_KL + 4 * r + 4 + k)}')
        for k in range(4):
            o.append(f'v_add_f32 {v(V_KL + k)}, {v(V_KL + k)}, {v(V_KL + 8 + k)}')
            o.append(f'v_add_f32 {v(V_KL + 16 + k)}, {v(V_KL + 16 + k)}, {v(V_KL + 24 + k)}')
        for k in range(4):
            if first:
                o.append(f'v_add_f32 {v(V_KS + k)}, {v(V_KL + k)}, {v(V_KL + 16 + k)}')
            else:
                o.append(f'v_add_f32 {v(V_KL + k)}, {v(V_KL + k)}, {v(V_KL + 16 + k)}')
                o.append(f'v_add_f32 {v(V_KS + k)}, {v(V_KS + k)}, {v(V_KL + k)}')
        return o

    def wdma_setup():
        b(f'v_bfe_u32 {v(t0)}, {v(V_LANE)}, 2, 1')
        b(f'v_bfe_u32 {v(t1)}, {v(V_LANE)}, 4, 1')
        b(f'v_xor_b32 {v(t0)}, {v(t0)}, {v(t1)}')
        b(f'v_and_b32 {v(t1)}, 3, {v(V_LANE)}')
        b(f'v_lshlrev_b32 {v(t1)}, 4, {v(t1)}')
        b(f'v_lshl_add_u32 {v(t0)}, {v(t0)}, 6, {v(t1)}')
        b(f'v_lshrrev_b32 {v(t1)}, 3, {v(V_LANE)}')
        b(f'v_lshl_add_u32 {v(t0)}, {v(t1)}, 10, {v(t0)}')
        b(f's_lshl_b32 {s(S_T0)}, {s(S_J)}, 7')
        b(f'v_add_u32 {v(V_WO)}, {s(S_T0)}, {v(t0)}')
        for k in range(1, 4):
            b(f'v_add_u32 {v(V_WO + k)}, {7168 * k}, {v(V_WO)}')
        b(f'v_mov_b32 {v(V_WO + 4)}, {v(V_WO)}')
        b(f's_cmp_eq_u32 {s(S_W)}, 0')
        b(f's_cselect_b32 {s(S_T0)}, {hex(OOB)}, 0')
        b(f'v_add_u32 {v(V_WO + 4)}, {s(S_T0)}, {v(V_WO)}')
        b(f's_mul_i32 {s(S_WOB)}, {s(S_W)}, {176 * 1024}')
        b(f's_sub_u32 {s(S_WOB)}, {s(S_WOB)}, 16384')

    def wout_dma(i):
        b(f's_mul_i32 {s(S_T0)}, {s(S_W)}, {PRIV}')
        b(f's_add_u32 m0, {s(S_T0)}, {1024 * i}')
        b(f's_add_u32 {s(S_T1)}, {s(S_WOB)}, {8192 * i}')
        b(f's_max_i32 {s(S_T1)}, {s(S_T1)}, 0')
        vo = V_WO + 4 if i < 2 else V_WO
        b(f'buffer_load_dwordx4 {v(vo)}, {s(SRD_X, 4)}, {s(S_T1)} offen lds', tag='wout')

    fill = []

    def emit1(x):
        if isinstance(x, list):
            for y in x:
                emit1(y)
        elif isinstance(x, tuple):
            b(x[1], tag=x[0])
        else:
            b(x)

    def drain(n):
        k = 0
        while fill and k < n:
            x = fill.pop(0)
            emit1(x)
            k += len(x) if isinstance(x, list) else 1

    for gi in range(96):
        nb, n = gi >> 5, gi & 31
        acc = ACC[nb & 1]
        for tb in range(2):
            c = '0' if n == 0 else v(acc + 16 * tb, 16)
            b(f'v_mfma_f32_32x32x16_bf16 {v(acc + 16 * tb, 16)}, {v(RING + 4 * (gi % D), 4)}, {a(8 * n + 4 * tb, 4)}, {c}')
        if gi + D < 96:
            bload(gi + D)
        if gi == 8:
            b(f's_mov_b32 {s(S_T7)}, {WS_FP1}')
            b(f'buffer_load_dword {v(V_PR)}, {v(V_PA + 1)}, {s(SRD_WS, 4)}, {s(S_T7)} offen sc1')
            b(f'buffer_load_dword {v(V_PR + 1)}, {v(V_PA + 2)}, {s(SRD_WS, 4)}, {s(S_T7)} offen sc1')
        if gi == 26:
            b(f's_mov_b32 {s(S_T7)}, {WS_FP1}')
            g.poll(b, V_PA + 1, s(S_T7), V_PR, first_issued=True)
            g.poll(b, V_PA + 2, s(S_T7), V_PR + 1, first_issued=True)
            b(f's_lshl_b32 {s(S_T0)}, {s(S_I)}, 8')
            b(f's_add_u32 {s(S_T0)}, {s(S_T0)}, {WS_GATE}')
            b(f'buffer_load_dword {v(V_G0)}, {v(V_PA + 5)}, {s(SRD_WS, 4)}, {s(S_T0)} offen sc1')
            b(f'buffer_load_dword {v(V_G0 + 1)}, {v(V_PA + 5)}, {s(SRD_WS, 4)}, {s(S_T0)} offen offset:128 sc1')
            z1load(0)
            kvload(0)
        if n == 2 and nb > 0:
            xwrite(nb - 1)
        if n == 8 and nb > 0:
            b.wait_lds()
            b('s_barrier')
            xread(nb - 1)
            if nb == 1:
                fill.append([f's_and_b32 {s(S_T0)}, {s(S_W)}, 1',
                             f's_cmp_eq_u32 {s(S_T0)}, 0',
                             f's_cselect_b64 vcc, -1, 0',
                             f'v_cndmask_b32 {v(V_NG)}, {v(V_G0 + 1)}, {v(V_G0)}, vcc'])
                fill.append(f'v_sub_f32 {v(V_NG)}, 1.0, {v(V_NG)}')
                fill.append(f'v_lshlrev_b32 {v(V_BSP)}, 16, {v(V_BSP)}')
                fill.append(f'v_mul_f32 {v(V_BNG)}, {v(V_BSP)}, {v(V_NG)}')
            fill.extend(yepi(nb - 1))
        if n == 28 and nb > 0:
            drain(len(fill))
            z1load(nb)
        if gi == 50:
            drain(len(fill))
            fill.extend(kvsum(True))
        if gi == 56:
            drain(len(fill))
            kvload(8)
        if gi == 76 + 8:
            pass
        if gi == 62:
            wdma_setup()
            srd(b, SRD_X, P_WOUT, 688 * 1024)
        if gi == 88:
            drain(len(fill))
            fill.extend(kvsum(False))
            fill.append(f'v_cvt_pk_bf16_f32 {v(V_KS)}, {v(V_KS)}, {v(V_KS + 1)}')
            fill.append(f'v_cvt_pk_bf16_f32 {v(V_KS + 1)}, {v(V_KS + 2)}, {v(V_KS + 3)}')
            fill.append([f's_lshl_b32 {s(S_T0)}, {s(S_U)}, 9',
                         f's_add_u32 {s(S_T0)}, {s(S_T0)}, {WS_KVF}',
                         ('kvf', f'buffer_store_dwordx2 {v(V_KS, 2)}, {v(V_L8)}, {s(SRD_KV, 4)}, {s(S_T0)} offen sc1')])
        if 80 <= gi < 91:
            i0 = 2 * (gi - 80)
            wout_dma(i0)
            wout_dma(i0 + 1)
        drain(8)
    drain(len(fill))
    stamp(b, 6)
    xwrite(2)
    b.wait_lds()
    b('s_barrier')
    xread(2)
    for x in yepi(2):
        emit1(x)
    stamp(b, 7)
    ACC3 = 64
    PQR = 128
    KVR = 192
    T = [224, 240]
    srd(b, SRD_X, P_WO, 512 * 1024)
    b(f's_mul_i32 {s(S_T2)}, {s(S_W)}, {PRIV}')
    for gq in range(4):
        b(f's_add_u32 m0, {s(S_T2)}, {XOFF + 4096 * gq}')
        b(f's_lshl_b32 {s(S_T1)}, {s(S_W)}, 17')
        b(f's_add_u32 {s(S_T1)}, {s(S_T1)}, {32768 * gq}')
        for k in range(4):
            b(f'buffer_load_dwordx4 {v(V_WO + k)}, {s(SRD_X, 4)}, {s(S_T1)} offen offset:{1024 * k} lds', tag='wo')
    for tb in range(2):
        b(f's_lshl1_add_u32 {s(S_T0)}, {s(S_I)}, {tb}')
        b(f's_lshl_b32 {s(S_T0)}, {s(S_T0)}, 15')
        b(f's_lshl_b32 {s(S_T1)}, {s(S_W)}, 13')
        b(f's_add_u32 {s(S_T0)}, {s(S_T0)}, {s(S_T1)}')
        b(f's_add_u32 {s(S_T0)}, {s(S_T0)}, {WS_PQ}')
        for hd in range(8):
            if hd == 4:
                b(f's_add_u32 {s(S_T0)}, {s(S_T0)}, 4096')
            b(f'buffer_load_dwordx4 {v(PQR + 4 * (2 * hd + tb), 4)}, {v(V_L16)}, {s(SRD_WS, 4)}, {s(S_T0)} offen offset:{1024 * (hd & 3)} sc1')
    b.wait_vm('kvf')
    b(f's_lshl_b32 {s(S_T0)}, {s(S_U)}, 6')
    b(f's_add_u32 {s(S_T0)}, {s(S_T0)}, {WS_FKV}')
    b(f'v_mov_b32 {v(V_POLL)}, {s(S_N)}')
    b(f'buffer_store_dword {v(V_POLL)}, off, {s(SRD_KV, 4)}, {s(S_T0)} sc1', tag='flag')
    b.wait_vm('y')
    b(f's_lshl3_add_u32 {s(S_T0)}, {s(S_I)}, {s(S_J)}')
    b(f's_lshl2_add_u32 {s(S_T0)}, {s(S_T0)}, {s(S_W)}')
    b(f's_lshl_b32 {s(S_T0)}, {s(S_T0)}, 6')
    b(f's_add_u32 {s(S_T0)}, {s(S_T0)}, {WS_FY}')
    b(f'buffer_store_dword {v(V_POLL)}, off, {s(SRD_WS, 4)}, {s(S_T0)} sc1', tag='flag')
    stamp(b, 8)
    b(f's_or_b32 {s(S_T0)}, {s(S_WG)}, {s(S_W)}')
    b(f's_cmp_eq_u32 {s(S_T0)}, 0')
    b(f's_cselect_b32 {s(SRD_KV + 2)}, {hex(WS_SIZE)}, 0')
    b(f'v_lshlrev_b32 {v(t0)}, 6, {v(V_LANE)}')
    for k in range(16):
        b(f's_mov_b32 {s(S_T0)}, {WS_FP1 + 4096 * k}')
        b(f'buffer_load_dword {v(V_KL + k)}, {v(t0)}, {s(SRD_KV, 4)}, {s(S_T0)} offen sc1')
    b(f'v_and_b32 {v(t0)}, 15, {v(V_LANE)}')
    b(f's_lshl_b32 {s(S_T0)}, {s(S_W)}, 4')
    b(f'v_add_u32 {v(t0)}, {s(S_T0)}, {v(t0)}')
    b(f'v_lshlrev_b32 {v(V_PA + 3)}, 6, {v(t0)}')
    b(f's_mov_b32 {s(S_T7)}, {WS_FKV}')
    g.poll(b, V_PA + 3, s(S_T7), V_PR)
    b(f's_lshl_b32 {s(S_T0)}, {s(S_W)}, 13')
    b(f's_add_u32 {s(S_T0)}, {s(S_T0)}, {WS_KVF}')
    for hd in range(8):
        if hd == 4:
            b(f's_add_u32 {s(S_T0)}, {s(S_T0)}, 4096')
        for pc in range(2):
            b(f'buffer_load_dwordx2 {v(KVR + 4 * hd + 2 * pc, 2)}, {v(V_L8)}, {s(SRD_WS, 4)}, {s(S_T0)} offen offset:{1024 * (hd & 3) + 512 * pc} sc1')
    V_TW = 26
    tr_addr(b, V_TW, True)
    b(f's_mul_i32 {s(S_T0)}, {s(S_W)}, {PRIV}')
    b(f'v_add_u32 {v(V_TW)}, {s(S_T0)}, {v(V_TW)}')
    b(f'v_xor_b32 {v(V_TW + 1)}, 64, {v(V_TW)}')
    WFR = 48
    OF = [[8, 12], [16, 4]]
    b.wait_vm('wo')
    eps = hex(f2u(1e-6))

    def num(hd):
        for tb in range(2):
            b(f'v_mfma_f32_32x32x16_bf16 {v(T[tb], 16)}, {v(KVR + 4 * hd, 4)}, {v(PQR + 4 * (2 * hd + tb), 4)}, 0')

    def wread(hd):
        st = hd & 1
        for db in range(2):
            for t in range(2):
                b(f'ds_read_b64_tr_b16 {v(WFR + 8 * st + 4 * db + 2 * t, 2)}, {v(V_TW + db)} offset:{XOFF + 2048 * hd + 1024 * t}')

    def post(hd, tb):
        n0, dn = (T[tb], T[tb] + 8) if hd % 2 == 0 else (T[tb] + 8, T[tb])
        b(f'v_add_f32 {v(dn)}, {eps}, {v(dn)}')
        b(f'v_rcp_f32 {v(dn)}, {v(dn)}')
        b(f'v_mul_f32 {v(dn)}, {v(dn)}, {v(V_G0 + tb)}')
        for k in range(8):
            b(f'v_mul_f32 {v(n0 + k)}, {v(n0 + k)}, {v(dn)}')
        of = OF[hd & 1][tb]
        for k in range(4):
            b(f'v_cvt_pk_bf16_f32 {v(of + k)}, {v(n0 + 2 * k)}, {v(n0 + 2 * k + 1)}')

    def outm(hd):
        st = hd & 1
        for tb in range(2):
            for db in range(2):
                acc = ACC3 + 16 * (2 * tb + db)
                c = '0' if hd == 0 else v(acc, 16)
                b(f'v_mfma_f32_32x32x16_bf16 {v(acc, 16)}, {v(WFR + 8 * st + 4 * db, 4)}, {v(OF[st][tb], 4)}, {c}')

    for hd in range(8):
        num(hd)
        wread(hd)
        if hd > 0:
            outm(hd - 1)
        post(hd, 0)
        post(hd, 1)
    outm(7)
    stamp(b, 9)
    b(f'v_and_b32 {v(t0)}, 31, {v(V_LANE)}')
    b(f's_lshl_b32 {s(S_T0)}, {s(S_I)}, 5')
    b(f'v_add_u32 {v(t0)}, {s(S_T0)}, {v(t0)}')
    b(f'v_lshlrev_b32 {v(V_PA)}, 6, {v(t0)}')
    b(f's_mov_b32 {s(S_T7)}, {WS_FY}')
    g.poll(b, V_PA, s(S_T7), V_PR)
    stamp(b, 10)
    for n in range(11):
        for tb in range(2):
            if n % 4 == 0:
                b(f's_lshl1_add_u32 {s(S_T0 + tb)}, {s(S_I)}, {tb}')
                b(f's_mul_i32 {s(S_T0 + tb)}, {s(S_T0 + tb)}, 45056')
                b(f's_mul_i32 {s(S_T2)}, {s(S_W)}, {11 * 1024}')
                b(f's_add_u32 {s(S_T0 + tb)}, {s(S_T0 + tb)}, {s(S_T2)}')
                b(f's_add_u32 {s(S_T0 + tb)}, {s(S_T0 + tb)}, {WS_Y + 1024 * n}')
            b(f'buffer_load_dwordx4 {a(8 * n + 4 * tb, 4)}, {v(V_L16)}, {s(SRD_WS, 4)}, {s(S_T0 + tb)} offen offset:{1024 * (n & 3)} sc1')
    b.wait_vm('wout')

    def woutread(n):
        st = n & 1
        for db in range(2):
            for t in range(2):
                b(f'ds_read_b64_tr_b16 {v(WFR + 8 * st + 4 * db + 2 * t, 2)}, {v(V_TW + db)} offset:{2048 * n + 1024 * t}')
    woutread(0)
    for n in range(11):
        if n + 1 < 11:
            woutread(n + 1)
        st = n & 1
        for tb in range(2):
            for db in range(2):
                acc = ACC3 + 16 * (2 * tb + db)
                b(f'v_mfma_f32_32x32x16_bf16 {v(acc, 16)}, {v(WFR + 8 * st + 4 * db, 4)}, {a(8 * n + 4 * tb, 4)}, {v(acc, 16)}')
    stamp(b, 11)
    b.wait_lds()
    b('s_barrier')
    b(f's_lshl_b32 {s(S_T0)}, {s(S_W)}, 14')
    b(f'v_add_u32 {v(t0)}, {s(S_T0)}, {v(V_L16)}')
    for blk in range(4):
        for j in range(4):
            b(f'ds_write_b128 {v(t0)}, {v(ACC3 + 16 * blk + 4 * j, 4)} offset:{4096 * blk + 1024 * j}')
    b.wait_lds()
    b('s_barrier')
    b(f's_lshl_b32 {s(S_T0)}, {s(S_W)}, 12')
    b(f'v_add_u32 {v(t0)}, {s(S_T0)}, {v(V_L16)}')
    RB_ = 128
    for src in range(4):
        for j in range(4):
            b(f'ds_read_b128 {v(RB_ + 16 * src + 4 * j, 4)}, {v(t0)} offset:{16384 * src + 1024 * j}')
    for k in range(16):
        b(f'v_add_f32 {v(RB_ + k)}, {v(RB_ + k)}, {v(RB_ + 16 + k)}')
        b(f'v_add_f32 {v(RB_ + 32 + k)}, {v(RB_ + 32 + k)}, {v(RB_ + 48 + k)}')
    for k in range(16):
        b(f'v_add_f32 {v(RB_ + k)}, {v(RB_ + k)}, {v(RB_ + 32 + k)}')
    O = 192
    for k in range(8):
        b(f'v_cvt_pk_bf16_f32 {v(O + k)}, {v(RB_ + 2 * k)}, {v(RB_ + 2 * k + 1)}')
    for jj in range(2):
        b(f'v_permlane32_swap_b32 {v(O + 4 * jj)}, {v(O + 4 * jj + 2)}')
        b(f'v_permlane32_swap_b32 {v(O + 4 * jj + 1)}, {v(O + 4 * jj + 3)}')
    srd(b, SRD_T, P_OUT, 2048 * 1024)
    b(f'v_and_b32 {v(t0)}, 31, {v(V_LANE)}')
    b(f'v_lshlrev_b32 {v(t0)}, 10, {v(t0)}')
    b(f'v_lshrrev_b32 {v(t1)}, 5, {v(V_LANE)}')
    b(f'v_lshl_add_u32 {v(t0)}, {v(t1)}, 4, {v(t0)}')
    b(f's_lshl_b32 {s(S_T0)}, {s(S_I)}, 16')
    b(f's_lshr_b32 {s(S_T1)}, {s(S_W)}, 1')
    b(f's_lshl_b32 {s(S_T1)}, {s(S_T1)}, 15')
    b(f's_add_u32 {s(S_T0)}, {s(S_T0)}, {s(S_T1)}')
    b(f's_lshl_b32 {s(S_T1)}, {s(S_J)}, 7')
    b(f's_add_u32 {s(S_T0)}, {s(S_T0)}, {s(S_T1)}')
    b(f's_and_b32 {s(S_T1)}, {s(S_W)}, 1')
    b(f's_lshl_b32 {s(S_T1)}, {s(S_T1)}, 6')
    b(f's_add_u32 {s(S_T0)}, {s(S_T0)}, {s(S_T1)}')
    for jj in range(2):
        b(f'buffer_store_dwordx4 {v(O + 4 * jj, 4)}, {v(t0)}, {s(SRD_T, 4)}, {s(S_T0)} offen offset:{32 * jj}')
    stamp(b, 12)
    b(f's_or_b32 {s(S_T0)}, {s(S_WG)}, {s(S_W)}')
    b(f's_cmp_lg_u32 {s(S_T0)}, 0')
    b('s_cbranch_scc1 L_END')
    for k in range(1, 16):
        b(f'v_xor_b32 {v(V_KL + k)}, {s(S_N)}, {v(V_KL + k)}')
    b(f'v_xor_b32 {v(V_KL)}, {s(S_N)}, {v(V_KL)}')
    for k in range(1, 16, 2):
        hi = V_KL + k + 1 if k + 1 < 16 else V_KL + k
        b(f'v_or3_b32 {v(V_KL)}, {v(V_KL)}, {v(V_KL + k)}, {v(hi)}')
    b(f'v_cmp_ne_u32 vcc, 0, {v(V_KL)}')
    slow, cont = g.lab('ES'), g.lab('EC')
    b(f's_cbranch_vccnz {slow}')
    b.label(cont)
    b(f'v_mov_b32 {v(V_POLL)}, {s(S_N)}')
    b(f'buffer_store_dword {v(V_POLL)}, off, {s(SRD_WS, 4)}, 0 sc1')
    txt = [f'{slow}:', f'    v_lshlrev_b32 {v(t0)}, 6, {v(V_LANE)}', f'    s_mov_b32 {s(S_T0)}, {WS_FP1}',
           f'    s_mov_b32 {s(G.S_CNT)}, {G.SPIN_MAX}',
           f'{slow}_l:',
           f'    buffer_load_dword {v(V_PR)}, {v(t0)}, {s(SRD_WS, 4)}, {s(S_T0)} offen sc1',
           '    s_waitcnt vmcnt(0)',
           f'    v_cmp_ne_u32 vcc, {s(S_N)}, {v(V_PR)}',
           f'    s_cbranch_vccz {slow}_n',
           f'    s_sub_u32 {s(G.S_CNT)}, {s(G.S_CNT)}, 1',
           f'    s_cmp_lg_u32 {s(G.S_CNT)}, 0',
           f'    s_cbranch_scc1 {slow}_l',
           f'    s_branch {cont}',
           f'{slow}_n:',
           f'    s_add_u32 {s(S_T0)}, {s(S_T0)}, 4096',
           f'    s_cmp_lt_u32 {s(S_T0)}, {WS_FP1 + 65536}',
           f'    s_cbranch_scc1 {slow}_l',
           f'    s_branch {cont}']
    g.slow.append('\n'.join(txt))
    return [b]
```

```python
import sys
from asmlib import *

KNAME = 'gated_mix__linear_attn_block__mixer_gmlp__prompt_kernel'
OPT = dict(stop_after=None, stamps=False)


def v(a, n=1):
    return f'v{a}' if n == 1 else f'v[{a}:{a + n - 1}]'


def a(x, n=1):
    return f'a{x}' if n == 1 else f'a[{x}:{x + n - 1}]'


def s(x, n=1):
    return f's{x}' if n == 1 else f's[{x}:{x + n - 1}]'


WS_EPOCH = 0
WS_FZ2 = 0x10000
WS_FP1 = 0x20000
WS_FY = 0x30000
WS_FKV = 0x40000
WS_GATE = 0x50000
WS_KVF = 0x60000
WS_STATS = 0x80000
WS_KVP = 0x100000
WS_Z2N = 0x200000
WS_Z1F = 0x500000
WS_PQ = 0x800000
WS_Y = 0xB00000
WS_DBG = 0x1000000
WS_SIZE = 0x10000000
NONCE_K = 0x9E3779B1
OOB = 0x40000000
SPIN_MAX = 20000

R0 = 0
R1 = 65536
R2 = 98304
LDS_BYTES = 163840

S_WG = 2
P_X, P_WQKV, P_WO, P_BX, P_WIN, P_WSP, P_BSP, P_WOUT = 16, 18, 20, 22, 24, 26, 28, 30
P_GW, P_OUT, P_DBG, P_WS = 32, 34, 36, 38
SRD_X = 40
SRD_W = 44
SRD_WS = 48
SRD_T = 52
S_W = 56
S_RB, S_CG, S_I, S_J = 57, 58, 59, 60
S_N = 61
S_RET = 62
S_T0, S_T1, S_T2, S_T3, S_T4, S_T5 = 64, 65, 66, 67, 68, 69
S_XL, S_XS, S_WL, S_WSO = 70, 71, 72, 73
S_RS, S_COL, S_MASK = 74, 75, 76
S_O0, S_O1 = 77, 78
S_TB = 79
S_APF = 80
S_AS = 81
S_LOG2E, S_EPS, S_GA, S_GB = 82, 83, 84, 85
S_CNT = 86
S_D2RS, S_D2COL, S_D2MASK, S_D2SEL = 87, 88, 89, 90
S_D3RS, S_D3COL, S_D3MASK, S_D3SEL = 91, 92, 93, 94
S_SLAB = 95
S_T6, S_T7 = 96, 97
S_VCC2 = 98

V_LANE = 0
V_T0 = 1
V_XD = 8
V_WD = 12
V_XRO = 14
V_XRT = 18
V_WR = 22
V_L16 = 24
V_L8 = 25
V_GA = 26
V_NON = 27
V_ST = 28
V_POLL = 30
V_AR = 32
V_E = 36
V_ACC0 = 64
V_ACC1 = 96
V_WF = 128
V_TMP = 144
V_PK = 176
V_PV = 192
V_STAT = 208
V_KV = 208


def gelu_group(b, xs, tmp):
    n = len(xs)
    for k in range(n):
        b(f'v_mul_f32 {v(tmp + k)}, {v(xs[k])}, {v(xs[k])}')
    for k in range(n):
        b(f'v_fmamk_f32 {v(tmp + k)}, {v(tmp + k)}, {hex(GELU_B)}, {v(V_GA)}')
    for k in range(n):
        b(f'v_mul_f32 {v(tmp + k)}, {v(tmp + k)}, {v(xs[k])}')
    for k in range(n):
        b(f'v_exp_f32 {v(tmp + k)}, {v(tmp + k)}')
    for k in range(n):
        b(f'v_add_f32 {v(tmp + k)}, 1.0, {v(tmp + k)}')
    for k in range(n):
        b(f'v_rcp_f32 {v(tmp + k)}, {v(tmp + k)}')
    for k in range(n):
        b(f'v_mul_f32 {v(xs[k])}, {v(xs[k])}, {v(tmp + k)}')


def phi_group(b, xs, tmp):
    n = len(xs)
    for k in range(n):
        b(f'v_mul_f32 {v(tmp + k)}, {s(S_LOG2E)}, {v(xs[k])}')
    for k in range(n):
        b(f'v_exp_f32_e64 {v(tmp + k)}, {v(tmp + k)} clamp')
    for k in range(n):
        b(f'v_max_f32 {v(xs[k])}, {s(S_EPS)}, {v(xs[k])}')
    for k in range(n):
        b(f'v_add_f32 {v(xs[k])}, {v(xs[k])}, {v(tmp + k)}')


import struct, math


def f2u(x):
    return struct.unpack('<I', struct.pack('<f', x))[0]


LOG2E = 1.4426950408889634
GELU_A_F = -2.0 * LOG2E * math.sqrt(2.0 / math.pi)
GELU_A = f2u(GELU_A_F)
GELU_B = f2u(GELU_A_F * 0.044715)


def srd(b, base, ptr, nrec):
    b(f's_mov_b32 {s(base)}, {s(ptr)}')
    b(f's_mov_b32 {s(base + 1)}, {s(ptr + 1)}')
    b(f's_mov_b32 {s(base + 2)}, {hex(nrec)}')
    b(f's_mov_b32 {s(base + 3)}, 0x20000')


def dma4_voffsets(b, dst, RS):
    t0, t1, t2 = V_T0, V_T0 + 1, V_T0 + 2
    b(f'v_lshrrev_b32 {v(t0)}, 3, {v(V_LANE)}')
    b(f'v_and_b32 {v(t1)}, 7, {v(V_LANE)}')
    b(f'v_lshrrev_b32 {v(t2)}, 4, {v(V_LANE)}')
    b(f'v_xor_b32 {v(t1)}, {v(t1)}, {v(t2)}')
    b(f'v_lshlrev_b32 {v(t1)}, 4, {v(t1)}')
    b(f'v_mul_u32_u24 {v(t0)}, {RS}, {v(t0)}')
    b(f'v_add_u32 {v(dst)}, {v(t0)}, {v(t1)}')
    b(f'v_xor_b32 {v(t1)}, 64, {v(t1)}')
    b(f'v_add_u32 {v(t0)}, {v(t0)}, {v(t1)}')
    b(f'v_add_u32 {v(dst + 1)}, {8 * RS - 1024}, {v(t0)}')
    b(f'v_add_u32 {v(dst + 2)}, {16 * RS - 2048}, {v(dst)}')
    b(f'v_add_u32 {v(dst + 3)}, {24 * RS - 3072}, {v(t0)}')


def frag_read_addrs(b, dst):
    t0, t1, t2 = V_T0, V_T0 + 1, V_T0 + 2
    b(f'v_and_b32 {v(t0)}, 31, {v(V_LANE)}')
    b(f'v_lshrrev_b32 {v(t1)}, 5, {v(V_LANE)}')
    b(f'v_bfe_u32 {v(t2)}, {v(V_LANE)}, 1, 3')
    b(f'v_xor_b32 {v(t1)}, {v(t1)}, {v(t2)}')
    b(f'v_lshlrev_b32 {v(t1)}, 4, {v(t1)}')
    b(f'v_lshl_add_u32 {v(dst)}, {v(t0)}, 7, {v(t1)}')
    for kk in range(1, 4):
        b(f'v_xor_b32 {v(dst + kk)}, {32 * kk}, {v(dst)}')


def tr_addr(b, dst, pi):
    t0, t1, t2 = V_T0, V_T0 + 1, V_T0 + 2
    b(f'v_bfe_u32 {v(t0)}, {v(V_LANE)}, 2, 2')
    b(f'v_lshrrev_b32 {v(t1)}, 5, {v(V_LANE)}')
    b(f'v_lshl_add_u32 {v(t1)}, {v(t1)}, {2 if pi else 3}, {v(t0)}')
    b(f'v_lshlrev_b32 {v(t1)}, 7, {v(t1)}')
    b(f'v_lshrrev_b32 {v(t0)}, 1, {v(t0)}')
    b(f'v_lshl_add_u32 {v(t1)}, {v(t0)}, 6, {v(t1)}')
    b(f'v_bfe_u32 {v(t0)}, {v(V_LANE)}, 4, 1')
    b(f'v_lshl_add_u32 {v(t1)}, {v(t0)}, 5, {v(t1)}')
    b(f'v_and_b32 {v(t0)}, 3, {v(V_LANE)}')
    b(f'v_lshl_add_u32 {v(dst)}, {v(t0)}, 3, {v(t1)}')


def wd_voffsets(b):
    t0, t1, t2 = V_T0, V_T0 + 1, V_T0 + 2
    b(f'v_bfe_u32 {v(t0)}, {v(V_LANE)}, 2, 1')
    b(f'v_bfe_u32 {v(t1)}, {v(V_LANE)}, 4, 1')
    b(f'v_xor_b32 {v(t0)}, {v(t0)}, {v(t1)}')
    b(f'v_and_b32 {v(t1)}, 3, {v(V_LANE)}')
    b(f'v_lshlrev_b32 {v(t1)}, 4, {v(t1)}')
    b(f'v_lshl_add_u32 {v(t0)}, {v(t0)}, 6, {v(t1)}')
    b(f'v_lshrrev_b32 {v(t1)}, 3, {v(V_LANE)}')
    b(f'v_mul_lo_u32 {v(t1)}, {v(t1)}, {s(S_RS)}')
    b(f'v_add_u32 {v(t1)}, {v(t1)}, {v(t0)}')
    b(f'v_add_u32 {v(V_WD)}, {s(S_COL)}, {v(t1)}')
    b(f's_lshl_b32 {s(S_T0)}, {s(S_RS)}, 3')
    b(f's_sub_u32 {s(S_T0)}, {s(S_T0)}, 1024')
    b(f'v_add_u32 {v(V_WD + 1)}, {s(S_T0)}, {v(V_WD)}')
    b(f'v_mov_b32 {v(t2)}, {hex(OOB)}')
    b(f'v_cmp_gt_u32 vcc, {s(S_MASK)}, {v(t0)}')
    b(f'v_cndmask_b32 {v(V_WD)}, {v(V_WD)}, {v(t2)}, vcc')
    b(f'v_cndmask_b32 {v(V_WD + 1)}, {v(V_WD + 1)}, {v(t2)}, vcc')


def set_w_srd(b, sel):
    b(f's_cmp_eq_u32 {s(sel)}, 0')
    b(f's_cselect_b32 {s(SRD_W)}, {s(P_WQKV)}, {s(P_WIN)}')
    b(f's_cselect_b32 {s(SRD_W + 1)}, {s(P_WQKV + 1)}, {s(P_WIN + 1)}')
    b(f's_mov_b32 {s(SRD_W + 2)}, {hex(512 * 2752)}')
    b(f's_cmov_b32 {s(SRD_W + 2)}, {hex(512 * 3072)}')
    b(f's_mov_b32 {s(SRD_W + 3)}, 0x20000')


def w_piece_dma(b, lds_base, tag):
    b(f's_mov_b32 m0, {s(S_WL)}')
    b(f'buffer_load_dwordx4 {v(V_WD)}, {s(SRD_W, 4)}, {s(S_WSO)} offen lds', tag=tag)
    b(f'buffer_load_dwordx4 {v(V_WD + 1)}, {s(SRD_W, 4)}, {s(S_WSO)} offen offset:1024 lds', tag=tag)
    b(f's_add_u32 {s(S_WL)}, {s(S_WL)}, 8192')
    b(f's_lshl_b32 {s(S_T0)}, {s(S_RS)}, 6')
    b(f's_add_u32 {s(S_WSO)}, {s(S_WSO)}, {s(S_T0)}')


def w_start(b, lds_base):
    b(f's_lshl_b32 {s(S_WL)}, {s(S_W)}, 11')
    if lds_base:
        b(f's_add_u32 {s(S_WL)}, {s(S_WL)}, {lds_base}')
    b(f's_lshl_b32 {s(S_T0)}, {s(S_RS)}, 4')
    b(f's_mul_i32 {s(S_WSO)}, {s(S_T0)}, {s(S_W)}')


def x_chunk_dma(b, tag):
    b(f's_mov_b32 m0, {s(S_XL)}')
    for i in range(4):
        b(f'buffer_load_dwordx4 {v(V_XD + i)}, {s(SRD_X, 4)}, {s(S_XS)} offen offset:{1024 * i} lds', tag=tag)
    b(f's_add_u32 {s(S_XS)}, {s(S_XS)}, 128')


def a_chunk_dma(b, c, tag):
    slot = a_slot(c)
    for g in range(2):
        b(f's_lshl_b32 {s(S_T0)}, {s(S_W)}, {13 if c % 3 == 0 else 14}')
        b(f's_add_u32 m0, {s(S_T0)}, {slot + 4096 * g}')
        b(f's_add_u32 {s(S_T1)}, {s(S_AS)}, {128 * c + 32 * 4096 * g}')
        for i in range(4):
            b(f'buffer_load_dwordx4 {v(V_XD + i)}, {s(SRD_X, 4)}, {s(S_T1)} offen offset:{1024 * i} lds', tag=tag)


def a_slot(c):
    return [R1, R2, R2 + 8192][c % 3]


def a_chunk_read(b, c):
    k = c % 3
    b(f's_lshl_b32 {s(S_T0)}, {s(S_W)}, {13 if k == 0 else 14}')
    b(f's_add_u32 {s(S_T0)}, {s(S_T0)}, {a_slot(c)}')
    for kk in range(4):
        b(f'v_add_u32 {v(V_T0 + kk)}, {s(S_T0)}, {v(V_AR + kk)}')
    for kk in range(4):
        for bb in range(2):
            r = 8 * (4 * c + kk) + 4 * bb
            b(f'ds_read_b128 {a(r, 4)}, {v(V_T0 + kk)} offset:{4096 * bb}')


def stamp(b, idx):
    if not OPT['stamps']:
        return
    b(f's_memrealtime {s(S_VCC2, 2)}')
    b('s_waitcnt lgkmcnt(0)')
    b(f's_lshl_b32 {s(S_T6)}, {s(S_WG)}, 2')
    b(f's_add_u32 {s(S_T6)}, {s(S_T6)}, {s(S_W)}')
    b(f's_lshl_b32 {s(S_T6)}, {s(S_T6)}, 7')
    b(f's_add_u32 {s(S_T6)}, {s(S_T6)}, {WS_DBG + 4 * idx}')
    b(f'v_mov_b32 {v(V_POLL + 1)}, {s(S_VCC2)}')
    b(f'buffer_store_dword {v(V_POLL + 1)}, off, {s(SRD_WS, 4)}, {s(S_T6)}')


class Gen:
    def __init__(self):
        self.blocks = []
        self.slow = []
        self.nlab = 0

    def blk(self, name):
        b = Block(name)
        self.blocks.append(b)
        return b

    def lab(self, p='L'):
        self.nlab += 1
        return f'{p}_{self.nlab}'

    def poll(self, b, vaddr, soff, vtmp, first_issued=False, code=1):
        cont = self.lab('PC')
        slow = self.lab('PS')
        if not first_issued:
            b(f'buffer_load_dword {v(vtmp)}, {v(vaddr)}, {s(SRD_WS, 4)}, {soff} offen sc1')
        b(f'v_cmp_ne_u32 vcc, {s(S_N)}, {v(vtmp)}')
        b(f's_cbranch_vccnz {slow}')
        b.label(cont)
        fail = self.lab('PF')
        self.slow.append(f'''{slow}:
    s_mov_b32 {s(S_CNT)}, {SPIN_MAX}
{slow}_l:
    s_sleep 1
    buffer_load_dword {v(vtmp)}, {v(vaddr)}, {s(SRD_WS, 4)}, {soff} offen sc1
    s_waitcnt vmcnt(0)
    v_cmp_ne_u32 vcc, {s(S_N)}, {v(vtmp)}
    s_cbranch_vccz {cont}
    s_sub_u32 {s(S_CNT)}, {s(S_CNT)}, 1
    s_cmp_lg_u32 {s(S_CNT)}, 0
    s_cbranch_scc1 {slow}_l
    s_branch {cont}''')

    def prologue(self):
        b = self.blk('PRO')
        b(f's_cmp_ge_u32 {s(S_WG)}, 256')
        b('s_cbranch_scc1 L_END')
        b('s_load_dwordx16 s[16:31], s[0:1], 0x0')
        b('s_load_dwordx8 s[32:39], s[0:1], 0x40')
        b(f'v_lshrrev_b32 {v(V_T0)}, 6, {v(0)}')
        b(f'v_and_b32 {v(V_LANE)}, 63, {v(0)}')
        b(f's_and_b32 {s(S_T0)}, {s(S_WG)}, 7')
        b(f'v_readfirstlane_b32 {s(S_W)}, {v(V_T0)}')
        b(f's_lshr_b32 {s(S_T1)}, {s(S_WG)}, 3')
        b(f's_lshr_b32 {s(S_T2)}, {s(S_T1)}, 2')
        b(f's_and_b32 {s(S_T1)}, {s(S_T1)}, 3')
        b(f's_and_b32 {s(S_T3)}, {s(S_T0)}, 1')
        b(f's_lshr_b32 {s(S_T0)}, {s(S_T0)}, 1')
        b(f's_lshl3_add_u32 {s(S_RB)}, {s(S_T3)}, {s(S_T2)}')
        b(f's_lshl2_add_u32 {s(S_CG)}, {s(S_T0)}, {s(S_T1)}')
        b(f's_lshl3_add_u32 {s(S_I)}, {s(S_T0)}, {s(S_T2)}')
        b(f's_lshl2_add_u32 {s(S_J)}, {s(S_T3)}, {s(S_T1)}')
        dma4_voffsets(b, V_XD, 1024)
        b(f's_lshl_b32 {s(S_T0)}, {s(S_CG)}, 7')
        b(f's_add_u32 {s(S_T1)}, {s(S_T0)}, 1344')
        b(f's_sub_u32 {s(S_T2)}, {s(S_T0)}, 1024')
        b(f's_cmp_le_u32 {s(S_CG)}, 10')
        b(f's_cselect_b32 {s(S_COL)}, {s(S_T1)}, {s(S_T2)}')
        b(f's_mov_b32 {s(S_RS)}, 3072')
        b(f's_cmov_b32 {s(S_RS)}, 2752')
        b(f's_cselect_b32 {s(S_T3)}, 1, 0')
        b(f's_cmp_eq_u32 {s(S_CG)}, 0')
        b(f's_cselect_b32 {s(S_MASK)}, 32, 0')
        wd_voffsets(b)
        w_start(b, R0)
        b(f's_lshl_b32 {s(S_XL)}, {s(S_W)}, 12')
        b(f's_add_u32 {s(S_XL)}, {s(S_XL)}, {R1}')
        b(f's_lshl2_add_u32 {s(S_TB)}, {s(S_RB)}, {s(S_W)}')
        b(f's_lshl_b32 {s(S_XS)}, {s(S_TB)}, 15')
        b('s_waitcnt lgkmcnt(0)')
        srd(b, SRD_X, P_X, 2048 * 1024)
        srd(b, SRD_WS, P_WS, WS_SIZE)
        set_w_srd(b, S_T3)
        b(f'buffer_load_dword {v(V_E)}, off, {s(SRD_WS, 4)}, 0 sc1', tag='epoch')
        for c in range(6):
            x_chunk_dma(b, f'x{c}')
            b(f's_add_u32 {s(S_XL)}, {s(S_XL)}, 16384')
            w_piece_dma(b, R0, f'x{c}')
        w_piece_dma(b, R0, 'x6')
        w_piece_dma(b, R0, 'x7')
        stamp(b, 0)
        b(f's_mov_b32 {s(S_LOG2E)}, {hex(f2u(LOG2E))}')
        b(f's_mov_b32 {s(S_EPS)}, {hex(f2u(1e-6))}')
        b(f'v_mov_b32 {v(V_GA)}, {hex(GELU_A)}')
        b(f'v_lshlrev_b32 {v(V_L16)}, 4, {v(V_LANE)}')
        b(f'v_lshlrev_b32 {v(V_L8)}, 3, {v(V_LANE)}')
        frag_read_addrs(b, V_AR)
        b(f's_lshl_b32 {s(S_T0)}, {s(S_W)}, 12')
        b(f's_add_u32 {s(S_T1)}, {s(S_T0)}, {R1}')
        b(f's_xor_b32 {s(S_T2)}, {s(S_T1)}, 4096')
        for kk in range(4):
            b(f'v_add_u32 {v(V_XRO + kk)}, {s(S_T1)}, {v(V_AR + kk)}')
            b(f'v_add_u32 {v(V_XRT + kk)}, {s(S_T2)}, {v(V_AR + kk)}')
        tr_addr(b, V_WR, False)
        b(f'v_xor_b32 {v(V_WR + 1)}, 64, {v(V_WR)}')
        b(f's_lshl_b32 {s(S_T0)}, {s(S_CG)}, 7')
        b(f's_add_u32 {s(S_D2COL)}, {s(S_T0)}, 1024')
        b(f's_add_u32 {s(S_D3COL)}, {s(S_T0)}, 2048')
        b(f's_mov_b32 {s(S_D2SEL)}, 0')
        b(f's_mov_b32 {s(S_D3SEL)}, 0')
        b(f's_mov_b32 {s(S_D2MASK)}, 0')
        b(f's_mov_b32 {s(S_D3MASK)}, 0')
        b(f's_mov_b32 {s(S_SLAB)}, {s(S_CG)}')
        b(f's_cmp_lt_u32 {s(S_CG)}, 8')
        b('s_cbranch_scc1 L_desc_done')
        b(f's_cmp_lt_u32 {s(S_CG)}, 11')
        b('s_cbranch_scc0 L_desc_cd')
        b(f's_sub_u32 {s(S_D2COL)}, {s(S_T0)}, 1024')
        b(f's_sub_u32 {s(S_D3COL)}, {s(S_T0)}, 1056')
        b(f's_mov_b32 {s(S_D3SEL)}, 1')
        b(f's_cmp_eq_u32 {s(S_CG)}, 8')
        b(f's_cselect_b32 {s(S_D3MASK)}, 32, 0')
        b('s_branch L_desc_done')
        b.label('L_desc_cd')
        b(f's_lshl_b32 {s(S_T1)}, {s(S_T0)}, 1')
        b(f's_sub_u32 {s(S_T1)}, {s(S_T1)}, 2464')
        b(f's_sub_u32 {s(S_T2)}, {s(S_T0)}, 672')
        b(f's_cmp_lt_u32 {s(S_CG)}, 14')
        b(f's_cselect_b32 {s(S_D2COL)}, {s(S_T1)}, {s(S_T2)}')
        b(f's_add_u32 {s(S_D3COL)}, {s(S_D2COL)}, 128')
        b(f's_mov_b32 {s(S_D2SEL)}, 1')
        b(f's_mov_b32 {s(S_D3SEL)}, 1')
        b.label('L_desc_done')
        self.switch_slab(b, S_D2SEL, S_D2COL, S_D2MASK, R2)
        b(f'v_add_u32 {v(V_NON)}, {hex(NONCE_K)}, {v(V_E)}')
        b(f'v_readfirstlane_b32 {s(S_N)}, {v(V_NON)}')
        return b

    def switch_slab(self, b, sel, col, mask, lds_base):
        b(f's_cmp_eq_u32 {s(sel)}, 0')
        b(f's_mov_b32 {s(S_RS)}, 2752')
        b(f's_cmov_b32 {s(S_RS)}, 3072')
        b(f's_mov_b32 {s(S_COL)}, {s(col)}')
        b(f's_mov_b32 {s(S_MASK)}, {s(mask)}')
        set_w_srd(b, sel)
        wd_voffsets(b)
        w_start(b, lds_base)

    def loop1(self):
        b = self.blk('L1')
        for r in range(32):
            b(f'v_mov_b32 {v(V_ACC0 + r)}, 0')
        for c in range(8):
            b.wait_vm(f'x{c}')
            b.wait_lds()
            b('s_barrier')
            if c == 1 or c == 2:
                b(f's_lshl_b32 {s(S_XL)}, {s(S_W)}, 12')
                b(f's_add_u32 {s(S_XL)}, {s(S_XL)}, {R1 + 16384 * (c - 1)}')
                x_chunk_dma(b, f'x{5 + c}')
            elif 3 <= c <= 6:
                w_piece_dma(b, R2, 'w2')
                w_piece_dma(b, R2, 'w2')
            if c == 6:
                pass
            for kk in range(4):
                K = 4 * c + kk
                b(f'ds_read_b128 {a(8 * K, 4)}, {v(V_XRO + kk)}')
                wf = V_WF + 8 * (kk & 1)
                for ch in range(2):
                    for t in range(2):
                        b(f'ds_read_b64_tr_b16 {v(wf + 4 * ch + 2 * t, 2)}, {v(V_WR + ch)} offset:{2048 * K + 512 * t}')
                if kk >= 1:
                    self.mfma_pair_R(b, K - 1)
            for kk in range(4):
                K = 4 * c + kk
                b(f'ds_read_b128 {a(8 * K + 4, 4)}, {v(V_XRT + kk)}')
            self.mfma_pair_R(b, 4 * c + 3)
            if c < 7:
                d = 16384 if (c + 1) % 6 != 0 else -16384 * 5
                for kk in range(4):
                    if d > 0:
                        b(f'v_add_u32 {v(V_XRO + kk)}, {d}, {v(V_XRO + kk)}')
                        b(f'v_add_u32 {v(V_XRT + kk)}, {d}, {v(V_XRT + kk)}')
                    else:
                        b(f'v_subrev_u32 {v(V_XRO + kk)}, {-d}, {v(V_XRO + kk)}')
                        b(f'v_subrev_u32 {v(V_XRT + kk)}, {-d}, {v(V_XRT + kk)}')
        b.wait_lds()
        b('s_barrier')
        stamp(b, 1)
        b(f's_cmp_ge_u32 {s(S_CG)}, 14')
        b('s_cbranch_scc1 L_l1_roleD')
        return b

    def mfma_pair_R(self, b, K):
        wf = V_WF + 8 * (K & 1)
        for ch in range(2):
            acc = V_ACC0 + 16 * ch
            b(f'v_mfma_f32_32x32x16_bf16 {v(acc, 16)}, {v(wf + 4 * ch, 4)}, {a(8 * K, 4)}, {v(acc, 16)}')

    def loop1_tail(self):
        b = self.blk('L1T')
        self.switch_slab(b, S_D3SEL, S_D3COL, S_D3MASK, R0)
        for p in range(8):
            w_piece_dma(b, R0, 'w3')
        b('s_branch L_l1_join')
        d = self.blk('L1TD')
        d.label('L_l1_roleD')
        srd(d, SRD_T, P_GW, 1024)
        d(f's_lshl_b32 m0, {s(S_W)}, 10')
        d(f'buffer_load_dwordx4 {v(V_L16)}, {s(SRD_T, 4)}, 0 offen lds', tag='w3')
        j = self.blk('L1J')
        j.label('L_l1_join')
        srd(j, SRD_X, P_WSP, 2048 * 4096)
        dma4_voffsets(j, V_XD, 4096)
        j(f's_lshl_b32 {s(S_AS)}, {s(S_I)}, 18')
        j(f's_lshl_b32 {s(S_T0)}, {s(S_W)}, 10')
        j(f's_add_u32 {s(S_AS)}, {s(S_AS)}, {s(S_T0)}')
        a_chunk_dma(j, 0, 'a0')
        return b, d, j

    def loopN(self, name, orient):
        b = self.blk(name)
        b.label(name)
        for r in range(32):
            b(f'v_mov_b32 {v(V_ACC1 + r)}, 0')
        D = 3

        def rd(K):
            wf = V_WF + 4 * (K & 3)
            for t in range(2):
                b(f'ds_read_b64_tr_b16 {v(wf + 2 * t, 2)}, {v(V_WR)} offset:{2048 * K + 512 * t}')
        for K in range(D):
            rd(K)
        for K in range(32):
            if K + D < 32:
                rd(K + D)
            wf = V_WF + 4 * (K & 3)
            for sl in range(2):
                acc = V_ACC1 + 16 * sl
                x = a(8 * K + 4 * sl, 4)
                if orient == 'T':
                    b(f'v_mfma_f32_32x32x16_bf16 {v(acc, 16)}, {v(wf, 4)}, {x}, {v(acc, 16)}')
                else:
                    b(f'v_mfma_f32_32x32x16_bf16 {v(acc, 16)}, {x}, {v(wf, 4)}, {v(acc, 16)}')
            if K in (4, 8, 12):
                self.apf_insert(b, K // 4 - 1)
        b('s_nop 7')
        b('s_nop 3')
        b(f's_setpc_b64 {s(S_RET, 2)}')
        return b

    def apf_insert(self, b, c):
        skip = self.lab('APF')
        b(f's_cmp_eq_u32 {s(S_APF)}, 0')
        b(f's_cbranch_scc1 {skip}')
        n0 = len(b.ins)
        b.wait_vm(f'a{c}')
        a_chunk_read(b, c)
        b.wait_lds()
        a_chunk_dma(b, c + 3, f'a{c + 3}')
        for i in b.ins[n0:]:
            i.meta['apf'] = True
        b.label(skip)

    def z2_epilogue(self):
        b = self.blk('Z2E')
        b('s_nop 7')
        for g in range(4):
            gelu_group(b, [V_ACC0 + 8 * g + k for k in range(8)], V_TMP)
        s1, s2 = V_ST, V_ST + 1
        t = V_TMP
        b(f'v_add_f32 {v(s1)}, {v(V_ACC0)}, {v(V_ACC0 + 1)}')
        b(f'v_mul_f32 {v(s2)}, {v(V_ACC0)}, {v(V_ACC0)}')
        b(f'v_add_f32 {v(t)}, {v(V_ACC0 + 2)}, {v(V_ACC0 + 3)}')
        b(f'v_mul_f32 {v(t + 1)}, {v(V_ACC0 + 1)}, {v(V_ACC0 + 1)}')
        for k in range(4, 32, 2):
            b(f'v_add_f32 {v(s1)}, {v(s1)}, {v(V_ACC0 + k)}')
            b(f'v_add_f32 {v(t)}, {v(t)}, {v(V_ACC0 + k + 1)}')
        for k in range(2, 32, 2):
            b(f'v_fmac_f32 {v(s2)}, {v(V_ACC0 + k)}, {v(V_ACC0 + k)}')
            b(f'v_fmac_f32 {v(t + 1)}, {v(V_ACC0 + k + 1)}, {v(V_ACC0 + k + 1)}')
        b(f'v_add_f32 {v(s1)}, {v(s1)}, {v(t)}')
        b(f'v_add_f32 {v(s2)}, {v(s2)}, {v(t + 1)}')
        b(f'v_permlane32_swap_b32 {v(s1)}, {v(s2)}')
        b(f'v_add_f32 {v(s1)}, {v(s1)}, {v(s2)}')
        b(f'v_mov_b32 {v(s2)}, {s(S_N)}')
        b(f's_mul_i32 {s(S_T0)}, {s(S_TB)}, 5632')
        b(f's_lshl_b32 {s(S_T1)}, {s(S_CG)}, 9')
        b(f's_add_u32 {s(S_T0)}, {s(S_T0)}, {s(S_T1)}')
        b(f's_add_u32 {s(S_T0)}, {s(S_T0)}, {WS_STATS}')
        b(f'buffer_store_dwordx2 {v(s1, 2)}, {v(V_L8)}, {s(SRD_WS, 4)}, {s(S_T0)} offen sc1', tag='st')
        stamp(b, 2)
        return b

    def stats_issue(self, b):
        b(f's_mul_i32 {s(S_T5)}, {s(S_TB)}, 5632')
        b(f's_add_u32 {s(S_T5)}, {s(S_T5)}, {WS_STATS}')
        for js in range(11):
            if js == 8:
                b(f's_add_u32 {s(S_T5)}, {s(S_T5)}, 4096')
            off = 512 * js if js < 8 else 512 * js - 4096
            b(f'buffer_load_dwordx2 {v(V_STAT + 2 * js, 2)}, {v(V_L8)}, {s(SRD_WS, 4)}, {s(S_T5)} offen offset:{off} sc1')

    def stats_check_code(self, b):
        t = V_TMP
        b(f'v_min3_u32 {v(t)}, {v(V_STAT + 1)}, {v(V_STAT + 3)}, {v(V_STAT + 5)}')
        b(f'v_max3_u32 {v(t + 1)}, {v(V_STAT + 1)}, {v(V_STAT + 3)}, {v(V_STAT + 5)}')
        for js in range(3, 11, 2):
            b(f'v_min3_u32 {v(t)}, {v(t)}, {v(V_STAT + 2 * js + 1)}, {v(V_STAT + 2 * js + 3)}')
            b(f'v_max3_u32 {v(t + 1)}, {v(t + 1)}, {v(V_STAT + 2 * js + 1)}, {v(V_STAT + 2 * js + 3)}')
        b(f'v_xor_b32 {v(t)}, {s(S_N)}, {v(t)}')
        b(f'v_xor_b32 {v(t + 1)}, {s(S_N)}, {v(t + 1)}')
        b(f'v_or_b32 {v(t)}, {v(t)}, {v(t + 1)}')
        b(f'v_cmp_ne_u32 vcc, 0, {v(t)}')

    def z2_norm(self):
        b = self.blk('Z2N')
        cont, slow = self.lab('ZC'), self.lab('ZS')
        self.stats_check_code(b)
        b(f's_cbranch_vccnz {slow}')
        b.label(cont)
        sb = Block('tmp')
        sb(f's_sleep 1')
        sb(f's_sub_u32 {s(S_T5)}, {s(S_T5)}, 4096')
        for js in range(11):
            if js == 8:
                sb(f's_add_u32 {s(S_T5)}, {s(S_T5)}, 4096')
            off = 512 * js if js < 8 else 512 * js - 4096
            sb(f'buffer_load_dwordx2 {v(V_STAT + 2 * js, 2)}, {v(V_L8)}, {s(SRD_WS, 4)}, {s(S_T5)} offen offset:{off} sc1')
        sb('s_waitcnt vmcnt(0)')
        self.stats_check_code(sb)
        txt = '\n'.join('    ' + i.text for i in sb.ins)
        self.slow.append(f'''{slow}:
    s_mov_b32 {s(S_CNT)}, {SPIN_MAX}
{slow}_l:
{txt}
    s_cbranch_vccz {cont}
    s_sub_u32 {s(S_CNT)}, {s(S_CNT)}, 1
    s_cmp_lg_u32 {s(S_CNT)}, 0
    s_cbranch_scc1 {slow}_l
    s_branch {cont}''')
        t = V_TMP
        b(f'v_add_f32 {v(t)}, {v(V_STAT)}, {v(V_STAT + 2)}')
        b(f'v_add_f32 {v(t + 1)}, {v(V_STAT + 4)}, {v(V_STAT + 6)}')
        for js in range(4, 11, 2):
            b(f'v_add_f32 {v(t)}, {v(t)}, {v(V_STAT + 2 * js)}')
            if js + 1 < 11:
                b(f'v_add_f32 {v(t + 1)}, {v(t + 1)}, {v(V_STAT + 2 * js + 2)}')
        b(f'v_add_f32 {v(t)}, {v(t)}, {v(t + 1)}')
        b(f'v_mov_b32 {v(t + 1)}, {v(t)}')
        b(f'v_permlane32_swap_b32 {v(t)}, {v(t + 1)}')
        b(f'v_mul_f32 {v(t)}, {hex(f2u(1.0 / 688))}, {v(t)}')
        b(f'v_mul_f32 {v(t + 1)}, {hex(f2u(1.0 / 688))}, {v(t + 1)}')
        b(f'v_fma_f32 {v(t + 1)}, -{v(t)}, {v(t)}, {v(t + 1)}')
        b(f'v_max_f32 {v(t + 1)}, 0, {v(t + 1)}')
        b(f'v_add_f32 {v(t + 1)}, {hex(f2u(1e-5))}, {v(t + 1)}')
        b(f'v_rsq_f32 {v(t + 1)}, {v(t + 1)}')
        b(f'v_mul_f32 {v(t)}, {v(t)}, {v(t + 1)}')
        b(f'v_sub_f32 {v(t)}, 0, {v(t)}')
        for k in range(32):
            b(f'v_fma_f32 {v(V_ACC0 + k)}, {v(V_ACC0 + k)}, {v(t + 1)}, {v(t)}')
        pk = V_PV
        for k in range(16):
            b(f'v_cvt_pk_bf16_f32 {v(pk + k)}, {v(V_ACC0 + 2 * k)}, {v(V_ACC0 + 2 * k + 1)}')
        b(f's_lshl_b32 {s(S_T0)}, {s(S_W)}, 14')
        b(f's_add_u32 {s(S_T0)}, {s(S_T0)}, {R2 + 8192}')
        w0 = t + 2
        b(f'v_and_b32 {v(w0)}, 31, {v(V_LANE)}')
        b(f'v_lshrrev_b32 {v(w0 + 1)}, 5, {v(V_LANE)}')
        b(f'v_and_b32 {v(w0 + 2)}, 15, {v(V_LANE)}')
        b(f'v_xor_b32 {v(w0 + 1)}, {v(w0 + 1)}, {v(w0 + 2)}')
        b(f'v_lshlrev_b32 {v(w0 + 1)}, 3, {v(w0 + 1)}')
        b(f'v_lshl_add_u32 {v(w0)}, {v(w0)}, 7, {v(w0 + 1)}')
        b(f'v_add_u32 {v(w0)}, {s(S_T0)}, {v(w0)}')
        for bb in range(2):
            for j in range(4):
                K = 8 * bb + 2 * j
                if K:
                    b(f'v_xor_b32 {v(w0 + 1)}, {8 * K}, {v(w0)}')
                    ad = w0 + 1
                else:
                    ad = w0
                b(f'ds_write_b64 {v(ad)}, {v(pk + 8 * bb + 2 * j, 2)}')
        r0 = t + 6
        b(f'v_bfe_u32 {v(r0)}, {v(V_LANE)}, 2, 2')
        b(f'v_lshrrev_b32 {v(r0 + 1)}, 5, {v(V_LANE)}')
        b(f'v_lshl_add_u32 {v(r0)}, {v(r0 + 1)}, 3, {v(r0)}')
        b(f'v_bfe_u32 {v(r0 + 1)}, {v(V_LANE)}, 4, 1')
        b(f'v_and_b32 {v(r0 + 2)}, 3, {v(V_LANE)}')
        b(f'v_lshl_add_u32 {v(r0 + 1)}, {v(r0 + 1)}, 2, {v(r0 + 2)}')
        b(f'v_xor_b32 {v(r0 + 1)}, {v(r0 + 1)}, {v(r0)}')
        b(f'v_lshlrev_b32 {v(r0 + 1)}, 3, {v(r0 + 1)}')
        b(f'v_lshl_add_u32 {v(r0)}, {v(r0)}, 7, {v(r0 + 1)}')
        b(f'v_add_u32 {v(r0)}, {s(S_T0)}, {v(r0)}')
        ra = r0 + 1
        for bb in range(2):
            for tt in range(2):
                b(f'v_xor_b32 {v(ra + 2 * bb + tt)}, {8 * ((8 * bb) ^ (4 * tt))}, {v(r0)}')
        b.wait_lds()
        fr = V_TMP + 16
        for bb in range(2):
            for kq in range(2):
                for tt in range(2):
                    b(f'ds_read_b64_tr_b16 {v(fr + 8 * bb + 4 * kq + 2 * tt, 2)}, {v(ra + 2 * bb + tt)} offset:{512 * tt + 2048 * kq}')
        b(f's_lshl_b32 {s(S_T0)}, {s(S_CG)}, 18')
        b(f's_lshl_b32 {s(S_T1)}, {s(S_TB)}, 11')
        b(f's_add_u32 {s(S_T0)}, {s(S_T0)}, {s(S_T1)}')
        b(f's_add_u32 {s(S_T0)}, {s(S_T0)}, {WS_Z2N}')
        b(f's_add_u32 {s(S_T1)}, {s(S_T0)}, {128 * 1024}')
        for bb in range(2):
            for kq in range(2):
                so = S_T0 if bb == 0 else S_T1
                b(f'buffer_store_dwordx4 {v(fr + 8 * bb + 4 * kq, 4)}, {v(V_L16)}, {s(SRD_WS, 4)}, {s(so)} offen offset:{1024 * kq} sc1', tag='z2n')
        stamp(b, 3)
        return b

    def flag_store(self, b, base, idx_sgpr_code, tagwait):
        b.wait_vm(tagwait)
        for l in idx_sgpr_code:
            b(l)
        b(f's_lshl_b32 {s(S_T0)}, {s(S_T0)}, 6')
        b(f's_add_u32 {s(S_T0)}, {s(S_T0)}, {base}')
        b(f'v_mov_b32 {v(V_POLL)}, {s(S_N)}')
        b(f'buffer_store_dword {v(V_POLL)}, off, {s(SRD_WS, 4)}, {s(S_T0)} sc1', tag='flag')

    def p1_idx(self):
        return [f's_lshl4_add_u32 {s(S_T0)}, {s(S_RB)}, {s(S_CG)}', f's_lshl2_add_u32 {s(S_T0)}, {s(S_T0)}, {s(S_W)}']

    def t_epilogue(self, name, kind):
        b = self.blk(name)
        b.label(name)
        out = V_PV
        for g in range(4):
            xs = [V_ACC1 + 8 * g + k for k in range(8)]
            if kind == 'gelu':
                gelu_group(b, xs, V_TMP)
            else:
                phi_group(b, xs, V_TMP)
            for k in range(4):
                b(f'v_cvt_pk_bf16_f32 {v(out + 4 * g + k)}, {v(xs[2 * k])}, {v(xs[2 * k + 1])}')
            so = S_O0 if g < 2 else S_O1
            b(f'buffer_store_dwordx4 {v(out + 4 * g, 4)}, {v(V_L16)}, {s(SRD_WS, 4)}, {s(so)} offen offset:{1024 * (g & 1)} sc1', tag='p1')
        b(f's_setpc_b64 {s(S_RET, 2)}')
        return b

    def set_out_addr(self, b, kind, slab_code, arrangement):
        for l in slab_code:
            b(l)
        base, stride = (WS_PQ, 32768) if kind == 'q' else (WS_Z1F, 45056)
        b(f's_lshl_b32 {s(S_T4)}, {s(S_T4)}, 12')
        b(f's_add_u32 {s(S_T4)}, {s(S_T4)}, {base}')
        b(f's_mul_i32 {s(S_O0)}, {s(S_TB)}, {stride}')
        b(f's_add_u32 {s(S_O0)}, {s(S_O0)}, {s(S_T4)}')
        if arrangement == 'R':
            b(f's_add_u32 {s(S_O1)}, {s(S_O0)}, 2048')
        else:
            b(f's_and_b32 {s(S_T3)}, {s(S_W)}, 1')
            b(f's_lshl_b32 {s(S_T3)}, {s(S_T3)}, 11')
            b(f's_add_u32 {s(S_O0)}, {s(S_O0)}, {s(S_T3)}')
            b(f's_xor_b32 {s(S_T2)}, {s(S_TB)}, 1')
            b(f's_mul_i32 {s(S_O1)}, {s(S_T2)}, {stride}')
            b(f's_add_u32 {s(S_O1)}, {s(S_O1)}, {s(S_T4)}')
            b(f's_add_u32 {s(S_O1)}, {s(S_O1)}, {s(S_T3)}')

    def set_wr(self, b, region):
        tr_addr(b, V_WR, False)
        b(f's_and_b32 {s(S_T0)}, {s(S_W)}, 1')
        b(f's_lshl_b32 {s(S_T0)}, {s(S_T0)}, 6')
        b(f'v_xor_b32 {v(V_WR)}, {s(S_T0)}, {v(V_WR)}')
        if region:
            b(f'v_add_u32 {v(V_WR)}, {region}, {v(V_WR)}')

    def pre_slab(self, b, region, tag, apf):
        b.wait_vm(tag)
        b('s_barrier')
        self.set_wr(b, region)
        b(f's_mov_b32 {s(S_APF)}, {apf}')

    def after_slab2(self, b):
        b('s_barrier')
        a_chunk_dma(b, 1, 'a1')

    def a_tail1(self, b):
        for c in (3, 4, 5):
            b.wait_vm(f'a{c}')
            a_chunk_read(b, c)
            if c + 3 < 8:
                b.wait_lds()
                a_chunk_dma(b, c + 3, f'a{c + 3}')

    def a_tail2(self, b):
        for c in (6, 7):
            b.wait_vm(f'a{c}')
            a_chunk_read(b, c)
        b.wait_lds()

    def k_epilogue(self, b):
        for g in range(4):
            xs = [V_ACC1 + 8 * g + k for k in range(8)]
            phi_group(b, xs, V_TMP)
            for k in range(4):
                b(f'v_cvt_pk_bf16_f32 {v(V_PK + 4 * g + k)}, {v(xs[2 * k])}, {v(xs[2 * k + 1])}')

    def v_epilogue(self, b):
        for k in range(16):
            b(f'v_cvt_pk_bf16_f32 {v(V_PV + k)}, {v(V_ACC1 + 2 * k)}, {v(V_ACC1 + 2 * k + 1)}')
        ones = V_TMP
        for k in range(4):
            b(f'v_mov_b32 {v(ones + k)}, 0x3f803f80')
        kv, zz = V_KV, V_KV + 16
        for g in range(4):
            c0 = '0' if g == 0 else v(kv, 16)
            c1 = '0' if g == 0 else v(zz, 16)
            b(f'v_mfma_f32_32x32x16_bf16 {v(kv, 16)}, {v(V_PK + 4 * g, 4)}, {v(V_PV + 4 * g, 4)}, {c0}')
            b(f'v_mfma_f32_32x32x16_bf16 {v(zz, 16)}, {v(V_PK + 4 * g, 4)}, {v(ones, 4)}, {c1}')
        b(f'v_and_b32 {v(V_T0)}, 31, {v(V_LANE)}')
        b(f'v_cmp_gt_u32 vcc, 16, {v(V_T0)}')
        for k in range(8):
            b(f'v_cndmask_b32 {v(kv + k)}, {v(zz + k)}, {v(kv + k)}, vcc')
        for k in range(8, 16):
            b(f'v_cndmask_b32 {v(kv + k)}, {v(kv + k)}, {v(zz + k)}, vcc')
        b('s_barrier')
        b(f's_and_b32 {s(S_T0)}, {s(S_W)}, 1')
        b(f's_lshl_b32 {s(S_T0)}, {s(S_T0)}, 12')
        b(f'v_add_u32 {v(V_T0)}, {s(S_T0)}, {v(V_L16)}')
        skip = self.lab('KV')
        b(f's_cmp_lt_u32 {s(S_W)}, 2')
        b(f's_cbranch_scc1 {skip}')
        for q in range(4):
            b(f'ds_write_b128 {v(V_T0)}, {v(kv + 4 * q, 4)} offset:{1024 * q}')
        b.label(skip)
        b.wait_lds()
        b('s_barrier')
        for q in range(4):
            b(f'ds_read_b128 {v(zz + 4 * q, 4)}, {v(V_T0)} offset:{1024 * q}')
        for k in range(16):
            b(f'v_add_f32 {v(kv + k)}, {v(kv + k)}, {v(zz + k)}')
        b(f's_mov_b32 {s(SRD_T)}, {s(SRD_WS)}')
        b(f's_mov_b32 {s(SRD_T + 1)}, {s(SRD_WS + 1)}')
        b(f's_cmp_lt_u32 {s(S_W)}, 2')
        b(f's_cselect_b32 {s(SRD_T + 2)}, {hex(WS_SIZE)}, 0')
        b(f's_mov_b32 {s(SRD_T + 3)}, 0x20000')
        b(f's_and_b32 {s(S_T0)}, {s(S_W)}, 1')
        b(f's_lshl_b32 {s(S_T0)}, {s(S_T0)}, 1')
        b(f's_lshl2_add_u32 {s(S_T0)}, {s(S_CG)}, {s(S_T0)}')
        b(f's_lshl_b32 {s(S_T0)}, {s(S_T0)}, 15')
        b(f's_lshl_b32 {s(S_T1)}, {s(S_RB)}, 10')
        b(f's_add_u32 {s(S_T0)}, {s(S_T0)}, {s(S_T1)}')
        b(f's_add_u32 {s(S_T0)}, {s(S_T0)}, {WS_KVP}')
        for q in range(4):
            if q:
                b(f's_add_u32 {s(S_T0)}, {s(S_T0)}, 16384')
            b(f'buffer_store_dwordx4 {v(kv + 4 * q, 4)}, {v(V_L16)}, {s(SRD_T, 4)}, {s(S_T0)} offen sc1', tag='p1')

    def g_pass(self, b):
        b.wait_vm('w3')
        b(f'v_lshrrev_b32 {v(V_T0 + 4)}, 5, {v(V_LANE)}')
        b(f'v_lshlrev_b32 {v(V_T0 + 4)}, 4, {v(V_T0 + 4)}')
        b(f's_lshl_b32 {s(S_T0)}, {s(S_W)}, 10')
        b(f'v_add_u32 {v(V_T0 + 4)}, {s(S_T0)}, {v(V_T0 + 4)}')
        acc = V_ACC1
        for K in range(32):
            wf = V_WF + 4 * (K & 3)
            if K == 0:
                for k2 in range(3):
                    b(f'ds_read_b128 {v(V_WF + 4 * k2, 4)}, {v(V_T0 + 4)} offset:{32 * k2}')
            if K + 3 < 32:
                b(f'ds_read_b128 {v(V_WF + 4 * ((K + 3) & 3), 4)}, {v(V_T0 + 4)} offset:{32 * (K + 3)}')
            b(f'v_mfma_f32_32x32x16_bf16 {v(acc, 16)}, {v(wf, 4)}, {a(8 * K, 4)}, {"0" if K == 0 else v(acc, 16)}')
            if K in (4, 8, 12):
                c = K // 4 - 1
                b.wait_vm(f'a{c}')
                self.a_read_keep(b, c)
                b.wait_lds()
                a_chunk_dma(b, c + 3, f'a{c + 3}')
        t = V_TMP
        b(f'v_mul_f32 {v(t)}, {hex(f2u(-LOG2E))}, {v(acc)}')
        b(f'v_exp_f32 {v(t)}, {v(t)}')
        b(f'v_add_f32 {v(t)}, 1.0, {v(t)}')
        b(f'v_rcp_f32 {v(t)}, {v(t)}')
        b(f'v_and_b32 {v(t + 1)}, 31, {v(V_LANE)}')
        b(f'v_lshlrev_b32 {v(t + 1)}, 2, {v(t + 1)}')
        b(f's_lshl_b32 {s(S_T0)}, {s(S_TB)}, 7')
        b(f's_add_u32 {s(S_T0)}, {s(S_T0)}, {WS_GATE}')
        b(f'buffer_store_dword {v(t)}, {v(t + 1)}, {s(SRD_WS, 4)}, {s(S_T0)} offen sc1', tag='p1')

    def a_read_keep(self, b, c):
        a_chunk_read(b, c)

    def roles(self, sub):
        call = lambda b, name: b(f's_call_b64 {s(S_RET, 2)}, {name}')
        paths = {}
        d = self.blk('DISP')
        d(f's_cmp_lt_u32 {s(S_CG)}, 8')
        d('s_cbranch_scc1 L_roleA')
        d(f's_cmp_lt_u32 {s(S_CG)}, 11')
        d('s_cbranch_scc1 L_roleB')
        d(f's_cmp_lt_u32 {s(S_CG)}, 14')
        d('s_cbranch_scc1 L_roleC')
        d('s_branch L_roleD')
        return d

    def build(self):
        P = self.prologue()
        L1 = self.loop1()
        T3, TD, TJ = self.loop1_tail()
        DISP = self.roles(None)
        call = lambda b, name: b(f's_call_b64 {s(S_RET, 2)}, {name}')

        A0 = self.blk('A0'); A0.label('L_roleA')
        Z2E = self.z2_epilogue_inline(A0)
        self.pre_slab(A0, R2, 'w2', 0)
        call(A0, 'LN')
        A1 = self.blk('A1')
        self.after_slab2(A1)
        self.stats_issue(A1)
        self.k_epilogue(A1)
        A1('s_branch L_z2n_A')
        B0 = self.blk('B0'); B0.label('L_roleB')
        self.z2_epilogue_inline(B0)
        self.pre_slab(B0, R2, 'w2', 0)
        call(B0, 'LT')
        B1 = self.blk('B1')
        self.after_slab2(B1)
        self.stats_issue(B1)
        self.set_out_addr(B1, 'q', [f's_sub_u32 {s(S_T4)}, {s(S_CG)}, 8'], 'N')
        call(B1, 'QE')
        B1b = self.blk('B1b')
        B1b('s_branch L_z2n_B')
        ZN = self.z2_norm()
        ZN.ins.insert(0, I('Z2NSUB:'))
        a_chunk_dma(ZN, 2, 'a2')
        ZN(f's_setpc_b64 {s(S_RET, 2)}')
        A2 = self.blk('A2'); A2.label('L_z2n_A')
        call(A2, 'Z2NSUB')
        A3 = self.blk('A3')
        self.flag_store(A3, WS_FZ2, self.p1_idx(), 'z2n')
        self.pre_slab(A3, R0, 'w3', 1)
        call(A3, 'LN')
        A4 = self.blk('A4')
        self.a_tail1(A4)
        self.v_epilogue(A4)
        A4('s_branch L_p1_done')
        B2 = self.blk('B2'); B2.label('L_z2n_B')
        call(B2, 'Z2NSUB')
        B3 = self.blk('B3')
        self.flag_store(B3, WS_FZ2, self.p1_idx(), 'z2n')
        self.pre_slab(B3, R0, 'w3', 1)
        call(B3, 'LT')
        B4 = self.blk('B4')
        self.a_tail1(B4)
        self.set_out_addr(B4, 'z1', [f's_sub_u32 {s(S_T4)}, {s(S_CG)}, 8'], 'N')
        call(B4, 'Z1E')
        B5 = self.blk('B5')
        B5('s_branch L_p1_done')
        C0 = self.blk('C0'); C0.label('L_roleC')
        self.copy_acc(C0)
        self.set_out_addr(C0, 'q', [f's_sub_u32 {s(S_T4)}, {s(S_CG)}, 8'], 'R')
        call(C0, 'QE')
        C1 = self.blk('C1')
        self.pre_slab(C1, R2, 'w2', 0)
        call(C1, 'LT')
        C2 = self.blk('C2')
        self.after_slab2(C2)
        a_chunk_dma(C2, 2, 'a2')
        self.set_out_addr(C2, 'z1', [f's_lshl_b32 {s(S_T4)}, {s(S_CG)}, 1', f's_sub_u32 {s(S_T4)}, {s(S_T4)}, 19'], 'N')
        call(C2, 'Z1E')
        C3 = self.blk('C3')
        self.pre_slab(C3, R0, 'w3', 1)
        call(C3, 'LT')
        C4 = self.blk('C4')
        self.a_tail1(C4)
        self.set_out_addr(C4, 'z1', [f's_lshl_b32 {s(S_T4)}, {s(S_CG)}, 1', f's_sub_u32 {s(S_T4)}, {s(S_T4)}, 18'], 'N')
        call(C4, 'Z1E')
        C5 = self.blk('C5')
        C5('s_branch L_p1_done')
        D0 = self.blk('D0'); D0.label('L_roleD')
        self.copy_acc(D0)
        self.set_out_addr(D0, 'q', [f's_sub_u32 {s(S_T4)}, {s(S_CG)}, 8'], 'R')
        call(D0, 'QE')
        D1 = self.blk('D1')
        self.pre_slab(D1, R2, 'w2', 0)
        call(D1, 'LT')
        D2 = self.blk('D2')
        self.after_slab2(D2)
        a_chunk_dma(D2, 2, 'a2')
        self.set_out_addr(D2, 'z1', [f's_sub_u32 {s(S_T4)}, {s(S_CG)}, 5'], 'N')
        call(D2, 'Z1E')
        D3 = self.blk('D3')
        self.g_pass(D3)
        self.a_tail1(D3)
        D3('s_branch L_p1_done')
        LT = self.loopN('LT', 'T')
        LN = self.loopN('LN', 'N')
        QE = self.t_epilogue('QE', 'phi')
        Z1E = self.t_epilogue('Z1E', 'gelu')
        E1 = self.blk('E1'); E1.label('L_p1_done')
        self.a_tail2(E1)
        self.flag_store(E1, WS_FP1, self.p1_idx(), 'p1')
        stamp(E1, 4)
        rest = self.phase23()
        END = self.blk('END')
        END.label('L_END')
        END('s_endpgm')
        def noapf(blk):
            nb = Block(blk.name + '_noapf')
            nb.ins = [i for i in blk.ins if not i.meta.get('apf')]
            return nb
        LT0, LN0 = noapf(LT), noapf(LN)
        paths = [
            [P, L1, T3, TJ, DISP, A0, LN0, A1, A2, ZN, A3, LN, A4, E1] + rest + [END],
            [P, L1, T3, TJ, DISP, B0, LT0, B1, QE, B1b, B2, ZN, B3, LT, B4, Z1E, B5, E1] + rest + [END],
            [P, L1, T3, TJ, DISP, C0, QE, C1, LT0, C2, Z1E, C3, LT, C4, Z1E, C5, E1] + rest + [END],
            [P, L1, TD, TJ, DISP, D0, QE, D1, LT0, D2, Z1E, D3, E1] + rest + [END],
        ]
        finalize(self.blocks, paths)
        return paths

    def z2_epilogue_inline(self, b):
        z = self.z2_epilogue()
        self.blocks.remove(z)
        b.ins += z.ins

    def copy_acc(self, b):
        b('s_nop 7')
        for r in range(32):
            b(f'v_mov_b32 {v(V_ACC1 + r)}, {v(V_ACC0 + r)}')

    def phase23(self):
        from phase23 import emit_phase23
        return emit_phase23(self)

    def text(self):
        out = []
        for b in self.blocks:
            out.append(f'; ---- {b.name}')
            out.append(render(b))
            if b.name == 'END':
                pass
        return '\n'.join(out) + '\n' + '\n'.join(self.slow) + '\n'


HEADER = '''; Fused gated-mix kernel: linear attention + gMLP, single persistent launch (256 workgroups x 256 threads)
; @launch grid=(256,1,1) block=(256,1,1) lds=163840
.amdgcn_target "amdgcn-amd-amdhsa--gfx950"
.text
.globl {k}
.p2align 8
.type {k},@function
{k}:
'''
FOOTER = '''
    s_endpgm
.section .rodata,"a"
.p2align 6
.amdhsa_kernel {k}
  .amdhsa_next_free_vgpr 512
  .amdhsa_next_free_sgpr 102
  .amdhsa_accum_offset 256
  .amdhsa_group_segment_fixed_size 0
  .amdhsa_kernarg_size 96
  .amdhsa_user_sgpr_count 2
  .amdhsa_user_sgpr_kernarg_segment_ptr 1
  .amdhsa_system_sgpr_workgroup_id_x 1
  .amdhsa_float_denorm_mode_32 3
.end_amdhsa_kernel
'''


def generate(**opt):
    OPT.update(opt)
    g = Gen()
    g.build()
    return HEADER.format(k=KNAME) + g.text() + FOOTER.format(k=KNAME)


if __name__ == '__main__':
    opt = {}
    for arg in sys.argv[2:]:
        k, val = arg.split('=')
        opt[k] = int(val) if val.lstrip('-').isdigit() else val
    txt = generate(**opt)
    open(sys.argv[1], 'w').write(txt)
```

```python
import re

REG_RE = re.compile(r'^(v|a|s)(\d+)$|^(v|a|s)\[(\d+):(\d+)\]$')


def parse_reg(tok):
    tok = tok.strip()
    neg = tok.lstrip('-')
    if neg.startswith('abs(') and neg.endswith(')'):
        neg = neg[4:-1]
    if neg.startswith('|') and neg.endswith('|'):
        neg = neg[1:-1]
    m = REG_RE.match(neg)
    if m:
        if m.group(1):
            return [(m.group(1), int(m.group(2)))]
        return [(m.group(3), i) for i in range(int(m.group(4)), int(m.group(5)) + 1)]
    if neg == 'vcc':
        return [('s', 106), ('s', 107)]
    if neg == 'exec':
        return [('s', 126), ('s', 127)]
    if neg == 'm0':
        return [('s', 124)]
    return []


TRANS = ('v_exp_f32', 'v_log_f32', 'v_rcp_f32', 'v_rsq_f32', 'v_sqrt_f32', 'v_sin_f32', 'v_cos_f32')
VCC = [('s', 106), ('s', 107)]
EXEC = [('s', 126), ('s', 127)]
M0 = [('s', 124)]
SCC = [('c', 0)]


class I:
    __slots__ = ('text', 'op', 'ops', 'mods', 'rd', 'wr', 'kind', 'tag', 'waits', 'nops', 'label', 'meta')

    def __init__(self, text, tag=None, meta=None):
        self.text = text
        self.tag = tag
        self.meta = meta or {}
        self.waits = None
        self.nops = 0
        self.label = None
        t = text.split(';')[0].strip()
        if t.endswith(':'):
            self.kind = 'label'
            self.label = t[:-1]
            self.op = ''
            self.rd = []
            self.wr = []
            return
        if t.startswith('.') or t == '':
            self.kind = 'dir'
            self.op = ''
            self.rd = []
            self.wr = []
            return
        parts = t.split(None, 1)
        self.op = parts[0]
        rest = parts[1] if len(parts) > 1 else ''
        ops = []
        depth = 0
        cur = ''
        for ch in rest:
            if ch in '[(':
                depth += 1
            if ch in '])':
                depth -= 1
            if ch == ',' and depth == 0:
                ops.append(cur.strip())
                cur = ''
            else:
                cur += ch
        if cur.strip():
            ops.append(cur.strip())
        mods = []
        if ops:
            last = ops[-1].split()
            ops[-1] = last[0]
            mods = last[1:]
        self.ops = ops
        self.mods = mods
        self.classify()
        if self.meta.get('nodst'):
            self.wr = []

    def classify(self):
        op = self.op
        base = re.sub(r'_e(32|64)$', '', op)
        ops = self.ops
        R = lambda i: parse_reg(ops[i]) if i < len(ops) else []
        rd, wr = [], []
        allr = lambda a, b=None: [r for i in range(a, len(ops) if b is None else b) for r in R(i)]
        if op.startswith('v_mfma'):
            self.kind = 'mfma'
            wr = R(0)
            rd = allr(1)
            self.meta['srcc'] = R(3)
            self.meta['srcab'] = R(1) + R(2)
        elif op.startswith('v_'):
            self.kind = 'trans' if base in TRANS else 'valu'
            if base.startswith('v_cmp'):
                wr = R(0)
                rd = allr(1)
            elif base in ('v_readfirstlane_b32', 'v_readlane_b32'):
                wr = R(0)
                rd = allr(1)
                self.meta['readlane'] = True
            elif base in ('v_permlane32_swap_b32', 'v_permlane16_swap_b32'):
                wr = R(0) + R(1)
                rd = R(0) + R(1)
                self.meta['permlane'] = True
            elif base in ('v_fmac_f32', 'v_mac_f32', 'v_dot2c_f32_bf16'):
                wr = R(0)
                rd = allr(0)
            elif base in ('v_add_co_u32', 'v_sub_co_u32', 'v_addc_co_u32', 'v_subb_co_u32'):
                wr = R(0) + R(1)
                rd = allr(2)
            elif base == 'v_writelane_b32':
                wr = R(0)
                rd = allr(0)
            else:
                wr = R(0)
                rd = allr(1)
                if base == 'v_cndmask_b32' and len(ops) == 3:
                    rd += VCC
            rd += EXEC
        elif op.startswith('ds_'):
            self.kind = 'ds'
            if op.startswith('ds_read') or op.startswith('ds_bpermute') or op.startswith('ds_permute') or op.startswith('ds_swizzle'):
                wr = R(0)
                rd = allr(1)
                self.meta['load'] = True
            else:
                rd = allr(0)
                self.meta['store'] = True
            rd += EXEC
        elif op.startswith('buffer_') or op.startswith('global_'):
            self.kind = 'vmem'
            is_lds = 'lds' in self.mods or '_lds_' in op
            if is_lds:
                rd = allr(0) + M0
                self.meta['dma'] = True
            elif '_load' in op:
                wr = R(0)
                rd = allr(1)
                self.meta['load'] = True
            elif '_atomic' in op and ('sc0' in self.mods):
                wr = R(0)
                rd = allr(0)
                self.meta['load'] = True
            else:
                rd = allr(0)
                self.meta['store'] = True
                if op.startswith('buffer_store'):
                    self.meta['sdata'] = R(0)
                elif op.startswith('global_store'):
                    self.meta['sdata'] = R(1)
                else:
                    self.meta['sdata'] = []
                self.meta['wide'] = ('x4' in op or 'x3' in op)
            rd += EXEC
        elif op.startswith('s_load') or op.startswith('s_buffer_load') or op in ('s_memtime', 's_memrealtime'):
            self.kind = 'smem'
            wr = R(0)
            rd = allr(1)
        elif op == 's_waitcnt':
            self.kind = 'wait'
            vm = lg = None
            m = re.search(r'vmcnt\((\d+)\)', self.text)
            if m:
                vm = int(m.group(1))
            m = re.search(r'lgkmcnt\((\d+)\)', self.text)
            if m:
                lg = int(m.group(1))
            self.meta['vm'] = vm
            self.meta['lg'] = lg
        elif op == 's_nop':
            self.kind = 'nop'
            self.meta['n'] = int(ops[0], 0) + 1
        elif op in ('s_barrier', 's_endpgm', 's_sleep', 's_setprio'):
            self.kind = 'sctl'
        elif op.startswith('s_cbranch') or op in ('s_branch', 's_setpc_b64', 's_call_b64', 's_swappc_b64'):
            self.kind = 'branch'
            if op == 's_call_b64':
                wr = R(0)
            elif op == 's_setpc_b64':
                rd = R(0)
            elif op == 's_swappc_b64':
                wr = R(0)
                rd = R(1)
            elif 'scc' in op:
                rd = SCC
            elif 'vcc' in op:
                rd = VCC
            elif 'exec' in op:
                rd = EXEC
        elif op.startswith('s_cmp') or op.startswith('s_bitcmp'):
            self.kind = 'salu'
            rd = allr(0)
            wr = SCC
        elif op.startswith('s_'):
            self.kind = 'salu'
            wr = R(0)
            rd = allr(1)
            if op in ('s_addk_i32', 's_mulk_i32'):
                rd += R(0)
            if op.startswith('s_cselect') or op.startswith('s_addc') or op.startswith('s_subb'):
                rd += SCC
            if op.startswith('s_cmov'):
                rd += SCC + R(0)
            if op.endswith('saveexec_b64'):
                wr = wr + EXEC
                rd = rd + EXEC
            if not (op.startswith('s_mov') or op.startswith('s_cmov') or op.startswith('s_cselect') or op.startswith('s_getpc') or op.startswith('s_mul_i32') or op.startswith('s_movk')):
                wr = wr + SCC
        else:
            raise ValueError('unknown op ' + self.text)
        self.rd = rd
        self.wr = wr


class Block:
    def __init__(self, name):
        self.name = name
        self.ins = []

    def __call__(self, text, tag=None, **meta):
        for line in text.split('\n'):
            if line.strip() == '':
                continue
            i = I(line.strip(), tag=tag, meta=dict(meta))
            self.ins.append(i)
        return self.ins[-1]

    def label(self, name):
        self.ins.append(I(name + ':'))

    def wait_vm(self, tag):
        i = I('s_nop 0')
        i.kind = 'pseudo'
        i.text = ''
        i.meta = {'wait_tag': tag}
        i.rd = []
        i.wr = []
        self.ins.append(i)

    def wait_lds(self):
        self('s_waitcnt lgkmcnt(0)')

    def raw(self, text):
        i = I('.dir')
        i.text = text
        i.kind = 'raw'
        self.ins.append(i)


def analyse_waits(path):
    vmq = []
    lgq = []

    def need(ins, vm=None, lg=None):
        cur = ins.waits or (None, None)
        a = cur[0] if vm is None else (vm if cur[0] is None else min(cur[0], vm))
        b = cur[1] if lg is None else (lg if cur[1] is None else min(cur[1], lg))
        ins.waits = (a, b)

    def apply(vm, lg):
        nonlocal vmq, lgq
        if vm is not None and len(vmq) > vm:
            vmq = vmq[len(vmq) - vm:] if vm > 0 else []
        if lg is not None and len(lgq) > lg:
            lgq = lgq[len(lgq) - lg:] if lg > 0 else []

    for ins in path:
        if ins.kind in ('label', 'dir', 'raw'):
            continue
        if ins.kind == 'pseudo':
            tag = ins.meta['wait_tag']
            tags = tag if isinstance(tag, (list, tuple)) else [tag]
            last = -1
            for k, e in enumerate(vmq):
                if e['tag'] in tags:
                    last = k
            if last >= 0:
                n = min(len(vmq) - 1 - last, 63)
                need(ins, vm=n)
            if ins.waits:
                apply(*ins.waits)
            continue
        touched = set(ins.rd) | set(ins.wr)
        vm = lg = None
        last = -1
        for k, e in enumerate(vmq):
            if e['dst'] & touched:
                last = k
        if last >= 0:
            vm = min(len(vmq) - 1 - last, 63)
        last = -1
        for k, e in enumerate(lgq):
            if e['dst'] & touched:
                last = k
        if last >= 0:
            if any(e['smem'] for e in lgq):
                lg = 0
            else:
                lg = min(len(lgq) - 1 - last, 15)
        if vm is not None or lg is not None:
            need(ins, vm, lg)
        if ins.waits:
            apply(*ins.waits)
        if ins.kind == 'wait':
            apply(ins.meta['vm'], ins.meta['lg'])
        elif ins.kind == 'vmem':
            if not ins.meta.get('nocount'):
                vmq.append({'dst': set(ins.wr), 'tag': ins.tag})
        elif ins.kind == 'ds':
            lgq.append({'dst': set(ins.wr), 'smem': False})
        elif ins.kind == 'smem':
            lgq.append({'dst': set(ins.wr), 'smem': True})


def isv(r):
    return r[0] in 'va'


def analyse_hazards(path):
    hist = []

    def dist_iter():
        d = 0
        for prev, w in reversed(hist):
            yield prev, d
            d += w
            if d > 24:
                break

    for ins in path:
        if ins.kind in ('label', 'dir', 'raw'):
            continue
        if ins.kind == 'pseudo':
            if ins.waits and (ins.waits[0] is not None or ins.waits[1] is not None):
                hist.append((None, 1))
            continue
        pre = 1 if (ins.waits and (ins.waits[0] is not None or ins.waits[1] is not None)) else 0
        rd, wr = set(ins.rd), set(ins.wr)
        rdv = {r for r in rd if isv(r)}
        wrv = {r for r in wr if isv(r)}
        rds = {r for r in rd if r[0] == 's'}
        req = 0
        is_valu = ins.kind in ('valu', 'trans')
        for prev, d in dist_iter():
            if prev is None:
                continue
            d = d + pre + ins.nops * 0
            pw = set(prev.wr)
            pwv = {r for r in pw if isv(r)}
            pws = {r for r in pw if r[0] == 's'}
            n = 0
            if prev.kind in ('valu', 'trans'):
                if ins.kind == 'mfma' and (pwv & rdv):
                    n = max(n, 2)
                if prev.kind == 'trans' and is_valu and ins.kind != 'trans' and (pwv & rdv):
                    n = max(n, 1)
                if prev.kind == 'trans' and ins.kind == 'trans' and (pwv & rdv):
                    n = max(n, 1)
                if ins.meta.get('permlane') and (pwv & (rdv | wrv)):
                    n = max(n, 2)
                if ins.meta.get('readlane') and (pwv & rdv):
                    n = max(n, 1)
                if is_valu and (pws & rds - set(EXEC)):
                    n = max(n, 2)
                if ins.kind == 'vmem' and (pws & rds):
                    n = max(n, 5)
                if ins.kind in ('salu', 'branch') and (pws & rds):
                    n = max(n, 1)
            if prev.kind == 'mfma':
                if ins.kind == 'mfma':
                    srcc = set(ins.meta['srcc'])
                    ab = set(ins.meta['srcab'])
                    if pwv & ab:
                        n = max(n, 12)
                    if pwv & srcc:
                        if not (srcc == pwv):
                            n = max(n, 10)
                    elif pwv & wrv and not (wrv == pwv):
                        n = max(n, 10)
                else:
                    if pwv & (rdv | wrv):
                        n = max(n, 12)
                    if is_valu and (set(prev.meta['srcc']) & wrv):
                        n = max(n, 7)
            if prev.kind == 'salu' and ins.kind == 'vmem' and ins.meta.get('dma') and (set(M0) & pw):
                n = max(n, 1)
            if prev.kind == 'vmem' and prev.meta.get('store') and prev.meta.get('wide') and (set(prev.meta['sdata']) & wrv):
                n = max(n, 2 if is_valu else 1)
            if n > d:
                req = max(req, n - d)
        ins.nops = max(ins.nops, req)
        if ins.nops:
            hist.append((None, ins.nops))
        if pre:
            hist.append((None, 1))
        w = ins.meta['n'] if ins.kind == 'nop' else 1
        hist.append((ins, w))
        if len(hist) > 64:
            hist = hist[-64:]


def render(block):
    out = []
    for ins in block.ins:
        if ins.kind == 'raw':
            out.append(ins.text)
            continue
        if ins.kind == 'label':
            out.append(ins.text)
            continue
        w = ins.waits
        pre = []
        n = ins.nops
        while n > 0:
            k = min(n, 16)
            pre.append(f'    s_nop {k - 1}')
            n -= k
        if w and (w[0] is not None or w[1] is not None):
            s = '    s_waitcnt'
            if w[0] is not None:
                s += f' vmcnt({w[0]})'
            if w[1] is not None:
                s += f' lgkmcnt({w[1]})'
            pre.append(s)
        out += pre
        if ins.kind != 'pseudo':
            out.append('    ' + ins.text)
    return '\n'.join(out)


def finalize(blocks, paths, iters=3):
    lin = [[i for b in p for i in b.ins] for p in paths]
    for _ in range(iters):
        for l in lin:
            analyse_waits(l)
    for _ in range(iters):
        for l in lin:
            analyse_hazards(l)
```

```python
from asmlib import *
import gen as G
from gen import (v, a, s, f2u, LOG2E, OOB, stamp, srd, tr_addr, St,
                 WS_FZ2, WS_FP1, WS_FY, WS_FKV, WS_GATE, WS_KVF, WS_KVP, WS_Z2N, WS_Z1F, WS_PQ, WS_Y, WS_SIZE, WS_EPOCH,
                 SRD_X, SRD_W, SRD_WS, SRD_T, SRD_U, S_W, S_WG, S_I, S_J, S_N, S_T0, S_T1, S_T2, S_T3, S_T4, S_T5, S_T6, S_T7,
                 S_ROT, S_RB, S_CG, S_Q0, S_Q1,
                 P_BSP, P_WO, P_WOUT, P_OUT, V_LANE, V_L16, V_L8, V_T0, V_POLL)

S_FB0, S_NBLK = 70, 71
S_BO = 72
S_PART = 73
S_U = 74
S_YO, S_ZO = 75, 76
S_WOB = 77
S_KVO = 78
S_BB = 80
S_FBN = 88
SRD_KV = 44

V_PA = 8
V_PR = 14
V_XW = 16
V_XR = 20
V_BS = 21
V_G0 = 22
V_NG = 26
V_BNG = 27
V_KL = 32
ACC = [64, 96]
RING = 128
D = 12
V_GS = 176
V_X = 192
V_Z1 = 224
V_KS = 236
V_WO = 240
PRIV = 40960
XOFF = 22528


def s1_issue(g, b):
    t0, t1 = V_T0, V_T0 + 1
    with b.atomic():
        b(f's_mul_i32 {s(S_FB0)}, {s(S_J)}, 3')
        b(f's_min_u32 {s(S_FB0)}, {s(S_FB0)}, 20')
        b(f's_cmp_lt_u32 {s(S_J)}, 6')
        b(f's_cselect_b32 {s(S_NBLK)}, 3, 2')
        b(f's_mov_b32 {s(S_FBN)}, {s(S_FB0)}')
        b(f's_add_u32 {s(S_FBN + 1)}, {s(S_FB0)}, 1')
        b(f's_add_u32 {s(S_FBN + 2)}, {s(S_FB0)}, {s(S_NBLK)}')
        b(f's_sub_u32 {s(S_FBN + 2)}, {s(S_FBN + 2)}, 1')
        b(f's_lshr_b32 {s(S_T0)}, {s(S_FB0)}, 1')
        b(f's_lshr_b32 {s(S_T1)}, {s(S_FBN + 2)}, 1')
        b(f's_sub_u32 {s(S_T1)}, {s(S_T1)}, {s(S_T0)}')
        b(f'v_bfe_u32 {v(t0)}, {v(V_LANE)}, 3, 2')
        b(f'v_bfe_u32 {v(t1)}, {v(V_LANE)}, 2, 1')
        b(f'v_mul_u32_u24 {v(t1)}, {s(S_T1)}, {v(t1)}')
        b(f'v_lshl_add_u32 {v(t0)}, {v(t0)}, 4, {v(t1)}')
        b(f's_lshl_b32 {s(S_T2)}, {s(S_W)}, 6')
        b(f's_add_u32 {s(S_T2)}, {s(S_T2)}, {s(S_T0)}')
        b(f'v_add_u32 {v(t0)}, {s(S_T2)}, {v(t0)}')
        b(f'v_and_b32 {v(t1)}, 3, {v(V_LANE)}')
        b(f'v_lshl_add_u32 {v(t0)}, {v(t0)}, 2, {v(t1)}')
        b(f'v_lshlrev_b32 {v(V_PA)}, 6, {v(t0)}')
        b(f's_mov_b32 {s(S_T7)}, {WS_FZ2}')
        b(f'buffer_load_dword {v(V_PR)}, {v(V_PA)}, {s(SRD_WS, 4)}, {s(S_T7)} offen sc1')


def emit_phase23(g):
    b = St(g, 'P2')
    t0, t1, t2 = V_T0, V_T0 + 1, V_T0 + 2
    b(f's_mov_b32 {s(S_T7)}, {WS_FZ2}')
    g.poll(b, V_PA, s(S_T7), V_PR, first_issued=True)
    stamp(b, 5)
    b(f's_lshl_b32 {s(S_T0)}, {s(S_W)}, 15')
    b(f's_add_u32 {s(S_BB)}, {s(S_T0)}, {WS_Z2N}')

    def bload(gi):
        nb, n = gi >> 5, gi & 31
        if n % 4 == 0:
            b(f's_add_u32 {s(S_BO)}, {s(S_ROT)}, {n // 4}')
            b(f's_and_b32 {s(S_BO)}, {s(S_BO)}, 7')
            b(f's_lshl_b32 {s(S_BO)}, {s(S_BO)}, 12')
            b(f's_add_u32 {s(S_BO)}, {s(S_BO)}, {s(S_BB)}')
            b(f's_lshl_b32 {s(S_T4)}, {s(S_FBN + nb)}, 17')
            b(f's_add_u32 {s(S_BO)}, {s(S_BO)}, {s(S_T4)}')
        b(f'buffer_load_dwordx4 {v(RING + 4 * (gi % D), 4)}, {v(V_L16)}, {s(SRD_WS, 4)}, {s(S_BO)} offen offset:{1024 * (n & 3)} sc1')

    for gi in range(D):
        bload(gi)
    b(f'v_lshlrev_b32 {v(V_BS)}, 16, {v(G.V_BSP)}')
    b(f's_lshr_b32 {s(S_T0)}, {s(S_I)}, 1')
    b(f's_lshl_b32 {s(S_T0)}, {s(S_T0)}, 12')
    b(f'v_lshlrev_b32 {v(t0)}, 6, {v(V_LANE)}')
    b(f'v_add_u32 {v(V_PA + 1)}, {s(S_T0)}, {v(t0)}')
    b(f's_lshl_b32 {s(S_U)}, {s(S_I)}, 1')
    b(f's_and_b32 {s(S_T0)}, {s(S_J)}, 1')
    b(f's_add_u32 {s(S_U)}, {s(S_U)}, {s(S_T0)}')
    b(f's_lshr_b32 {s(S_T0)}, {s(S_U)}, 3')
    b(f'v_lshrrev_b32 {v(t0)}, 2, {v(V_LANE)}')
    b(f'v_lshlrev_b32 {v(t0)}, 4, {v(t0)}')
    b(f'v_add_u32 {v(t0)}, {s(S_T0)}, {v(t0)}')
    b(f'v_and_b32 {v(t1)}, 3, {v(V_LANE)}')
    b(f'v_lshl_add_u32 {v(t0)}, {v(t0)}, 2, {v(t1)}')
    b(f'v_lshlrev_b32 {v(V_PA + 2)}, 6, {v(t0)}')
    b(f's_cmp_ge_u32 {s(S_J)}, 6')
    b(f's_cselect_b32 {s(S_PART)}, {hex(WS_SIZE)}, 0')
    b(f's_cmp_eq_u32 {s(S_W)}, 0')
    b(f's_cselect_b32 {s(S_PART)}, {s(S_PART)}, 0')
    b(f's_mov_b32 {s(SRD_KV)}, {s(SRD_WS)}')
    b(f's_mov_b32 {s(SRD_KV + 1)}, {s(SRD_WS + 1)}')
    b(f's_mov_b32 {s(SRD_KV + 2)}, {s(S_PART)}')
    b(f's_mov_b32 {s(SRD_KV + 3)}, 0x20000')
    b(f's_lshl_b32 {s(S_KVO)}, {s(S_U)}, 14')
    b(f's_add_u32 {s(S_KVO)}, {s(S_KVO)}, {WS_KVP}')
    b(f's_lshl_b32 {s(S_T0)}, {s(S_W)}, 11')
    b(f'v_add_u32 {v(t0)}, {s(S_T0)}, {v(V_L16)}')
    for d in range(4):
        b(f'v_add_u32 {v(V_XW + d)}, {PRIV * d + XOFF}, {v(t0)}')
    b(f's_mul_i32 {s(S_T0)}, {s(S_W)}, {PRIV}')
    b(f's_add_u32 {s(S_T0)}, {s(S_T0)}, {XOFF}')
    b(f'v_add_u32 {v(V_XR)}, {s(S_T0)}, {v(V_L16)}')
    b(f'v_and_b32 {v(t0)}, 31, {v(V_LANE)}')
    b(f'v_lshlrev_b32 {v(V_PA + 5)}, 2, {v(t0)}')
    b(f's_and_b32 {s(S_T0)}, {s(S_W)}, 1')
    b(f's_lshl1_add_u32 {s(S_T0)}, {s(S_I)}, {s(S_T0)}')
    b(f's_mul_i32 {s(S_T0)}, {s(S_T0)}, 45056')
    b(f's_lshr_b32 {s(S_T1)}, {s(S_W)}, 1')
    b(f's_lshl_b32 {s(S_T1)}, {s(S_T1)}, 10')
    b(f's_add_u32 {s(S_T0)}, {s(S_T0)}, {s(S_T1)}')
    b(f's_add_u32 {s(S_ZO)}, {s(S_T0)}, {WS_Z1F}')
    b(f's_add_u32 {s(S_YO)}, {s(S_T0)}, {WS_Y}')

    def xwrite(nb):
        acc = ACC[nb & 1]
        for d in range(4):
            r = acc + 16 * (d & 1) + 8 * (d >> 1)
            for q in range(2):
                b(f'ds_write_b128 {v(V_XW + d)}, {v(r + 4 * q, 4)} offset:{8192 * (nb & 1) + 1024 * q}')

    def xread(nb):
        for src in range(4):
            for q in range(2):
                b(f'ds_read_b128 {v(V_X + 8 * src + 4 * q, 4)}, {v(V_XR)} offset:{8192 * (nb & 1) + 2048 * src + 1024 * q}')

    def xsum(dst):
        o = []
        for k in range(8):
            o.append(f'v_add_f32 {v(V_X + k)}, {v(V_X + k)}, {v(V_X + 8 + k)}')
        for k in range(8):
            o.append(f'v_add_f32 {v(V_X + 16 + k)}, {v(V_X + 16 + k)}, {v(V_X + 24 + k)}')
        for k in range(8):
            o.append(f'v_add_f32 {v(dst + k)}, {v(V_X + k)}, {v(V_X + 16 + k)}')
        return o

    def ymath(nb, gs):
        o = []
        z = V_Z1 + 4 * nb
        tmp = RING
        for k in range(8):
            o.append(f'v_fma_f32 {v(gs + k)}, {v(gs + k)}, {v(V_NG)}, {v(V_BNG)}')
        for k in range(4):
            o.append(f'v_lshlrev_b32 {v(tmp + 2 * k)}, 16, {v(z + k)}')
            o.append(f'v_and_b32 {v(tmp + 2 * k + 1)}, 0xffff0000, {v(z + k)}')
        for k in range(8):
            o.append(f'v_mul_f32 {v(gs + k)}, {v(gs + k)}, {v(tmp + k)}')
        for k in range(4):
            o.append(f'v_cvt_pk_bf16_f32 {v(z + k)}, {v(gs + 2 * k)}, {v(gs + 2 * k + 1)}')
        return o

    def ystore(nb):
        b(f's_mov_b32 {s(SRD_T)}, {s(SRD_WS)}')
        b(f's_mov_b32 {s(SRD_T + 1)}, {s(SRD_WS + 1)}')
        b(f's_cmp_gt_u32 {s(S_NBLK)}, {nb}')
        b(f's_cselect_b32 {s(SRD_T + 2)}, {hex(WS_SIZE)}, 0')
        b(f's_mov_b32 {s(SRD_T + 3)}, 0x20000')
        b(f's_lshl_b32 {s(S_T0)}, {s(S_FBN + nb)}, 11')
        b(f's_add_u32 {s(S_T0)}, {s(S_T0)}, {s(S_YO)}')
        b(f'buffer_store_dwordx4 {v(V_Z1 + 4 * nb, 4)}, {v(V_L16)}, {s(SRD_T, 4)}, {s(S_T0)} offen sc1', tag='y')

    def kvload(r0):
        b(f's_add_u32 {s(S_T0)}, {s(S_KVO)}, {1024 * r0}')
        for r in range(8):
            if r == 4:
                b(f's_add_u32 {s(S_T0)}, {s(S_T0)}, 4096')
            b(f'buffer_load_dwordx4 {v(V_KL + 4 * r, 4)}, {v(V_L16)}, {s(SRD_KV, 4)}, {s(S_T0)} offen offset:{1024 * (r & 3)} sc1')

    def kvsum(first):
        o = []
        for r in range(0, 8, 2):
            for k in range(4):
                o.append(f'v_add_f32 {v(V_KL + 4 * r + k)}, {v(V_KL + 4 * r + k)}, {v(V_KL + 4 * r + 4 + k)}')
        for k in range(4):
            o.append(f'v_add_f32 {v(V_KL + k)}, {v(V_KL + k)}, {v(V_KL + 8 + k)}')
            o.append(f'v_add_f32 {v(V_KL + 16 + k)}, {v(V_KL + 16 + k)}, {v(V_KL + 24 + k)}')
        for k in range(4):
            if first:
                o.append(f'v_add_f32 {v(V_KS + k)}, {v(V_KL + k)}, {v(V_KL + 16 + k)}')
            else:
                o.append(f'v_add_f32 {v(V_KL + k)}, {v(V_KL + k)}, {v(V_KL + 16 + k)}')
                o.append(f'v_add_f32 {v(V_KS + k)}, {v(V_KS + k)}, {v(V_KL + k)}')
        return o

    def wdma_setup():
        b(f'v_bfe_u32 {v(t0)}, {v(V_LANE)}, 2, 1')
        b(f'v_bfe_u32 {v(t1)}, {v(V_LANE)}, 4, 1')
        b(f'v_xor_b32 {v(t0)}, {v(t0)}, {v(t1)}')
        b(f'v_and_b32 {v(t1)}, 3, {v(V_LANE)}')
        b(f'v_lshlrev_b32 {v(t1)}, 4, {v(t1)}')
        b(f'v_lshl_add_u32 {v(t0)}, {v(t0)}, 6, {v(t1)}')
        b(f'v_lshrrev_b32 {v(t1)}, 3, {v(V_LANE)}')
        b(f'v_lshl_add_u32 {v(t0)}, {v(t1)}, 10, {v(t0)}')
        b(f's_lshl_b32 {s(S_T0)}, {s(S_J)}, 7')
        b(f'v_add_u32 {v(V_WO)}, {s(S_T0)}, {v(t0)}')
        for k in range(1, 4):
            b(f'v_add_u32 {v(V_WO + k)}, {7168 * k}, {v(V_WO)}')
        b(f's_cmp_eq_u32 {s(S_W)}, 0')
        b(f's_cselect_b32 {s(S_T0)}, {hex(OOB)}, 0')
        b(f'v_add_u32 {v(V_WO + 4)}, {s(S_T0)}, {v(V_WO)}')
        b(f's_mul_i32 {s(S_WOB)}, {s(S_W)}, {176 * 1024}')
        b(f's_sub_u32 {s(S_WOB)}, {s(S_WOB)}, 16384')

    def wout_dma(i):
        b(f's_mul_i32 {s(S_T0)}, {s(S_W)}, {PRIV}')
        b(f's_add_u32 m0, {s(S_T0)}, {1024 * i}')
        b(f's_add_u32 {s(S_T1)}, {s(S_WOB)}, {8192 * i}')
        b(f's_max_i32 {s(S_T1)}, {s(S_T1)}, 0')
        vo = V_WO + 4 if i < 2 else V_WO
        b(f'buffer_load_dwordx4 {v(vo)}, {s(SRD_X, 4)}, {s(S_T1)} offen lds', tag='wout')

    fill = []

    def emit1(x):
        if isinstance(x, list):
            for y in x:
                emit1(y)
        elif isinstance(x, tuple):
            b(x[1], tag=x[0])
        else:
            b(x)

    def drain(n):
        k = 0
        while fill and k < n:
            x = fill.pop(0)
            emit1(x)
            k += len(x) if isinstance(x, list) else 1

    GP = 56
    for gi in range(96):
        nb, n = gi >> 5, gi & 31
        acc = ACC[nb & 1]
        for tb in range(2):
            c = '0' if n == 0 else v(acc + 16 * tb, 16)
            b(f'v_mfma_f32_32x32x16_bf16 {v(acc + 16 * tb, 16)}, {v(RING + 4 * (gi % D), 4)}, {a(8 * n + 4 * tb, 4)}, {c}')
        if gi + D < 96:
            bload(gi + D)
        if gi == 14:
            g.flag_store(b, WS_FP1, 'p1')
        if gi == 44:
            b(f's_mov_b32 {s(S_T7)}, {WS_FP1}')
            b(f'buffer_load_dword {v(V_PR + 1)}, {v(V_PA + 2)}, {s(SRD_KV, 4)}, {s(S_T7)} offen sc1')
        if gi == 54:
            b(f's_mov_b32 {s(S_T7)}, {WS_FP1}')
            g.poll(b, V_PA + 2, s(S_T7), V_PR + 1, first_issued=True, skip_if_zero=S_PART)
            kvload(0)
        if gi == GP:
            b(f's_mov_b32 {s(S_T7)}, {WS_FP1}')
            b(f'buffer_load_dword {v(V_PR)}, {v(V_PA + 1)}, {s(SRD_WS, 4)}, {s(S_T7)} offen sc1')
        if n == 2 and nb > 0:
            xwrite(nb - 1)
        if n == 6 and nb > 0:
            b.wait_lds()
            b('s_barrier')
            xread(nb - 1)
            fill.extend(xsum(V_GS + 8 * (nb - 1)))
        if gi == 64:
            drain(len(fill))
            fill.extend(kvsum(True))
            wdma_setup()
            srd(b, SRD_X, P_WOUT, 688 * 1024)
        if gi == 68:
            drain(len(fill))
            kvload(8)
        if gi == 80:
            drain(len(fill))
            fill.extend(kvsum(False))
            fill.append(f'v_cvt_pk_bf16_f32 {v(V_KS)}, {v(V_KS)}, {v(V_KS + 1)}')
            fill.append(f'v_cvt_pk_bf16_f32 {v(V_KS + 1)}, {v(V_KS + 2)}, {v(V_KS + 3)}')
            fill.append([f's_lshl_b32 {s(S_T0)}, {s(S_U)}, 9',
                         f's_add_u32 {s(S_T0)}, {s(S_T0)}, {WS_KVF}',
                         ('kvf', f'buffer_store_dwordx2 {v(V_KS, 2)}, {v(V_L8)}, {s(SRD_KV, 4)}, {s(S_T0)} offen sc1')])
        if gi == 84:
            drain(len(fill))
            b(f's_mov_b32 {s(S_T7)}, {WS_FP1}')
            g.poll(b, V_PA + 1, s(S_T7), V_PR, first_issued=True)
            for z in range(3):
                b(f's_lshl_b32 {s(S_T0)}, {s(S_FBN + z)}, 11')
                b(f's_add_u32 {s(S_T0)}, {s(S_T0)}, {s(S_ZO)}')
                b(f'buffer_load_dwordx4 {v(V_Z1 + 4 * z, 4)}, {v(V_L16)}, {s(SRD_WS, 4)}, {s(S_T0)} offen sc1')
            b(f's_lshl_b32 {s(S_T0)}, {s(S_I)}, 8')
            b(f's_add_u32 {s(S_T0)}, {s(S_T0)}, {WS_GATE}')
            b(f'buffer_load_dword {v(V_G0)}, {v(V_PA + 5)}, {s(SRD_WS, 4)}, {s(S_T0)} offen sc1')
            b(f'buffer_load_dword {v(V_G0 + 1)}, {v(V_PA + 5)}, {s(SRD_WS, 4)}, {s(S_T0)} offen offset:128 sc1')
        if 85 <= gi < 96:
            i0 = 2 * (gi - 85)
            wout_dma(i0)
            wout_dma(i0 + 1)
        drain(8)
        if gi in (7, 23, 31, 47, 63, 79):
            stamp(b, 24 + (7, 23, 31, 47, 63, 79).index(gi))
    drain(len(fill))
    stamp(b, 6)
    xwrite(2)
    for x in [[f's_and_b32 {s(S_T0)}, {s(S_W)}, 1',
               f's_cmp_eq_u32 {s(S_T0)}, 0',
               f's_cselect_b64 vcc, -1, 0',
               f'v_cndmask_b32 {v(V_NG)}, {v(V_G0 + 1)}, {v(V_G0)}, vcc'],
              f'v_sub_f32 {v(V_NG)}, 1.0, {v(V_NG)}',
              f'v_mul_f32 {v(V_BNG)}, {v(V_BS)}, {v(V_NG)}']:
        emit1(x)
    b.wait_lds()
    b('s_barrier')
    xread(2)
    for x in ymath(0, V_GS):
        emit1(x)
    ystore(0)
    for x in ymath(1, V_GS + 8):
        emit1(x)
    ystore(1)
    for x in xsum(V_GS) + ymath(2, V_GS):
        emit1(x)
    ystore(2)
    stamp(b, 7)
    ACC3 = 64
    PQR = 128
    KVR = 192
    T = [224, 240]
    b.wait_vm('kvf')
    b(f's_lshl_b32 {s(S_T0)}, {s(S_U)}, 6')
    b(f's_add_u32 {s(S_T0)}, {s(S_T0)}, {WS_FKV}')
    b(f'v_mov_b32 {v(V_POLL)}, {s(S_N)}')
    b(f'buffer_store_dword {v(V_POLL)}, off, {s(SRD_KV, 4)}, {s(S_T0)} sc1', tag='flag')
    b(f'v_and_b32 {v(t0)}, 15, {v(V_LANE)}')
    b(f's_lshl_b32 {s(S_T0)}, {s(S_W)}, 4')
    b(f'v_add_u32 {v(t0)}, {s(S_T0)}, {v(t0)}')
    b(f'v_lshlrev_b32 {v(V_PA + 3)}, 6, {v(t0)}')
    srd(b, SRD_X, P_WO, 512 * 1024)
    b(f's_mul_i32 {s(S_T2)}, {s(S_W)}, {PRIV}')
    for gq in range(4):
        b(f's_add_u32 m0, {s(S_T2)}, {XOFF + 4096 * gq}')
        b(f's_lshl_b32 {s(S_T1)}, {s(S_W)}, 17')
        b(f's_add_u32 {s(S_T1)}, {s(S_T1)}, {32768 * gq}')
        for k in range(4):
            b(f'buffer_load_dwordx4 {v(V_WO + k)}, {s(SRD_X, 4)}, {s(S_T1)} offen offset:{1024 * k} lds', tag='wo')
    b.wait_vm('y')
    b(f's_lshl3_add_u32 {s(S_T0)}, {s(S_I)}, {s(S_J)}')
    b(f's_lshl2_add_u32 {s(S_T0)}, {s(S_T0)}, {s(S_W)}')
    b(f's_lshl_b32 {s(S_T0)}, {s(S_T0)}, 6')
    b(f's_add_u32 {s(S_T0)}, {s(S_T0)}, {WS_FY}')
    b(f'buffer_store_dword {v(V_POLL)}, off, {s(SRD_WS, 4)}, {s(S_T0)} sc1', tag='flag')
    stamp(b, 8)
    b(f's_mov_b32 {s(S_T7)}, {WS_FKV}')
    b(f'buffer_load_dword {v(V_PR)}, {v(V_PA + 3)}, {s(SRD_WS, 4)}, {s(S_T7)} offen sc1')
    for tb in range(2):
        b(f's_lshl1_add_u32 {s(S_T0)}, {s(S_I)}, {tb}')
        b(f's_lshl_b32 {s(S_T0)}, {s(S_T0)}, 15')
        b(f's_lshl_b32 {s(S_T1)}, {s(S_W)}, 13')
        b(f's_add_u32 {s(S_T0)}, {s(S_T0)}, {s(S_T1)}')
        b(f's_add_u32 {s(S_T0)}, {s(S_T0)}, {WS_PQ}')
        for hd in range(8):
            if hd == 4:
                b(f's_add_u32 {s(S_T0)}, {s(S_T0)}, 4096')
            b(f'buffer_load_dwordx4 {v(PQR + 4 * (2 * hd + tb), 4)}, {v(V_L16)}, {s(SRD_WS, 4)}, {s(S_T0)} offen offset:{1024 * (hd & 3)} sc1')
    stamp(b, 13)
    g.poll(b, V_PA + 3, s(S_T7), V_PR, first_issued=True)
    stamp(b, 14)
    b(f's_lshl_b32 {s(S_T0)}, {s(S_W)}, 13')
    b(f's_add_u32 {s(S_T0)}, {s(S_T0)}, {WS_KVF}')
    for hd in range(8):
        if hd == 4:
            b(f's_add_u32 {s(S_T0)}, {s(S_T0)}, 4096')
        for pc in range(2):
            b(f'buffer_load_dwordx2 {v(KVR + 4 * hd + 2 * pc, 2)}, {v(V_L8)}, {s(SRD_WS, 4)}, {s(S_T0)} offen offset:{1024 * (hd & 3) + 512 * pc} sc1')
    b(f's_or_b32 {s(S_T0)}, {s(S_WG)}, {s(S_W)}')
    b(f's_cmp_eq_u32 {s(S_T0)}, 0')
    b(f's_cselect_b32 {s(SRD_KV + 2)}, {hex(WS_SIZE)}, 0')
    b(f'v_lshlrev_b32 {v(t0)}, 6, {v(V_LANE)}')
    V_TW = 26
    tr_addr(b, V_TW, True)
    b(f's_mul_i32 {s(S_T0)}, {s(S_W)}, {PRIV}')
    b(f'v_add_u32 {v(V_TW)}, {s(S_T0)}, {v(V_TW)}')
    b(f'v_xor_b32 {v(V_TW + 1)}, 64, {v(V_TW)}')
    WFR = 48
    OF = [[8, 12], [16, 4]]
    b.wait_vm('wo')
    stamp(b, 15)
    eps = hex(f2u(1e-6))

    def num(hd):
        for tb in range(2):
            b(f'v_mfma_f32_32x32x16_bf16 {v(T[tb], 16)}, {v(KVR + 4 * hd, 4)}, {v(PQR + 4 * (2 * hd + tb), 4)}, 0')

    def wread(hd):
        st = hd & 1
        for db in range(2):
            for t in range(2):
                b(f'ds_read_b64_tr_b16 {v(WFR + 8 * st + 4 * db + 2 * t, 2)}, {v(V_TW + db)} offset:{XOFF + 2048 * hd + 1024 * t}')

    def post(hd, tb):
        n0, dn = (T[tb], T[tb] + 8) if hd % 2 == 0 else (T[tb] + 8, T[tb])
        b(f'v_add_f32 {v(dn)}, {eps}, {v(dn)}')
        b(f'v_rcp_f32 {v(dn)}, {v(dn)}')
        b(f'v_mul_f32 {v(dn)}, {v(dn)}, {v(V_G0 + tb)}')
        for k in range(8):
            b(f'v_mul_f32 {v(n0 + k)}, {v(n0 + k)}, {v(dn)}')
        of = OF[hd & 1][tb]
        for k in range(4):
            b(f'v_cvt_pk_bf16_f32 {v(of + k)}, {v(n0 + 2 * k)}, {v(n0 + 2 * k + 1)}')

    def outm(hd):
        st = hd & 1
        for tb in range(2):
            for db in range(2):
                acc = ACC3 + 16 * (2 * tb + db)
                c = '0' if hd == 0 else v(acc, 16)
                b(f'v_mfma_f32_32x32x16_bf16 {v(acc, 16)}, {v(WFR + 8 * st + 4 * db, 4)}, {v(OF[st][tb], 4)}, {c}')

    for hd in range(8):
        num(hd)
        wread(hd)
        if hd > 0:
            outm(hd - 1)
        post(hd, 0)
        post(hd, 1)
        if hd == 0:
            stamp(b, 19)
        if hd == 5:
            b(f'v_and_b32 {v(t1)}, 31, {v(V_LANE)}')
            b(f's_lshl_b32 {s(S_T0)}, {s(S_I)}, 5')
            b(f'v_add_u32 {v(t1)}, {s(S_T0)}, {v(t1)}')
            b(f'v_lshlrev_b32 {v(20)}, 6, {v(t1)}')
            b(f's_mov_b32 {s(S_T7)}, {WS_FY}')
            b(f'buffer_load_dword {v(21)}, {v(20)}, {s(SRD_WS, 4)}, {s(S_T7)} offen sc1')
    outm(7)
    stamp(b, 9)
    g.poll(b, 20, s(S_T7), 21, first_issued=True)
    stamp(b, 10)
    for n in range(11):
        for tb in range(2):
            if n % 4 == 0:
                b(f's_lshl1_add_u32 {s(S_T0 + tb)}, {s(S_I)}, {tb}')
                b(f's_mul_i32 {s(S_T0 + tb)}, {s(S_T0 + tb)}, 45056')
                b(f's_mul_i32 {s(S_T2)}, {s(S_W)}, {11 * 1024}')
                b(f's_add_u32 {s(S_T0 + tb)}, {s(S_T0 + tb)}, {s(S_T2)}')
                b(f's_add_u32 {s(S_T0 + tb)}, {s(S_T0 + tb)}, {WS_Y + 1024 * n}')
            b(f'buffer_load_dwordx4 {a(8 * n + 4 * tb, 4)}, {v(V_L16)}, {s(SRD_WS, 4)}, {s(S_T0 + tb)} offen offset:{1024 * (n & 3)} sc1')
    b(f'v_lshlrev_b32 {v(t0)}, 6, {v(V_LANE)}')
    for k in range(16):
        b(f's_mov_b32 {s(S_T3)}, {WS_FP1 + 4096 * k}')
        b(f'buffer_load_dword {v(G_EP + k)}, {v(t0)}, {s(SRD_KV, 4)}, {s(S_T3)} offen sc1')
    b.wait_vm('wout')

    def woutread(n):
        st = n & 1
        for db in range(2):
            for t in range(2):
                b(f'ds_read_b64_tr_b16 {v(WFR + 8 * st + 4 * db + 2 * t, 2)}, {v(V_TW + db)} offset:{2048 * n + 1024 * t}')
    woutread(0)
    for n in range(11):
        if n + 1 < 11:
            woutread(n + 1)
        st = n & 1
        for tb in range(2):
            for db in range(2):
                acc = ACC3 + 16 * (2 * tb + db)
                b(f'v_mfma_f32_32x32x16_bf16 {v(acc, 16)}, {v(WFR + 8 * st + 4 * db, 4)}, {a(8 * n + 4 * tb, 4)}, {v(acc, 16)}')
    stamp(b, 11)
    b.wait_lds()
    b('s_barrier')
    b(f's_lshl_b32 {s(S_T0)}, {s(S_W)}, 14')
    b(f'v_add_u32 {v(t0)}, {s(S_T0)}, {v(V_L16)}')
    for blk in range(4):
        for j in range(4):
            b(f'ds_write_b128 {v(t0)}, {v(ACC3 + 16 * blk + 4 * j, 4)} offset:{4096 * blk + 1024 * j}')
    srd(b, SRD_T, P_OUT, 2048 * 1024)
    b(f'v_and_b32 {v(t0 + 3)}, 31, {v(V_LANE)}')
    b(f'v_lshlrev_b32 {v(t0 + 3)}, 10, {v(t0 + 3)}')
    b(f'v_lshrrev_b32 {v(t1)}, 5, {v(V_LANE)}')
    b(f'v_lshl_add_u32 {v(t0 + 3)}, {v(t1)}, 4, {v(t0 + 3)}')
    b(f's_lshl_b32 {s(S_T0)}, {s(S_I)}, 16')
    b(f's_lshr_b32 {s(S_T1)}, {s(S_W)}, 1')
    b(f's_lshl_b32 {s(S_T1)}, {s(S_T1)}, 15')
    b(f's_add_u32 {s(S_T0)}, {s(S_T0)}, {s(S_T1)}')
    b(f's_lshl_b32 {s(S_T1)}, {s(S_J)}, 7')
    b(f's_add_u32 {s(S_T0)}, {s(S_T0)}, {s(S_T1)}')
    b(f's_and_b32 {s(S_T1)}, {s(S_W)}, 1')
    b(f's_lshl_b32 {s(S_T1)}, {s(S_T1)}, 6')
    b(f's_add_u32 {s(S_T4)}, {s(S_T0)}, {s(S_T1)}')
    b.wait_lds()
    b('s_barrier')
    b(f's_lshl_b32 {s(S_T0)}, {s(S_W)}, 12')
    b(f'v_add_u32 {v(t0)}, {s(S_T0)}, {v(V_L16)}')
    RB_ = 128
    for src in range(4):
        for j in range(4):
            b(f'ds_read_b128 {v(RB_ + 16 * src + 4 * j, 4)}, {v(t0)} offset:{16384 * src + 1024 * j}')
    for k in range(16):
        b(f'v_add_f32 {v(RB_ + k)}, {v(RB_ + k)}, {v(RB_ + 16 + k)}')
        b(f'v_add_f32 {v(RB_ + 32 + k)}, {v(RB_ + 32 + k)}, {v(RB_ + 48 + k)}')
    for k in range(16):
        b(f'v_add_f32 {v(RB_ + k)}, {v(RB_ + k)}, {v(RB_ + 32 + k)}')
    O = 192
    for k in range(8):
        b(f'v_cvt_pk_bf16_f32 {v(O + k)}, {v(RB_ + 2 * k)}, {v(RB_ + 2 * k + 1)}')
    for jj in range(2):
        b(f'v_permlane32_swap_b32 {v(O + 4 * jj)}, {v(O + 4 * jj + 2)}')
        b(f'v_permlane32_swap_b32 {v(O + 4 * jj + 1)}, {v(O + 4 * jj + 3)}')
    for jj in range(2):
        b(f'buffer_store_dwordx4 {v(O + 4 * jj, 4)}, {v(t0 + 3)}, {s(SRD_T, 4)}, {s(S_T4)} offen offset:{32 * jj}')
    stamp(b, 12)
    b(f's_or_b32 {s(S_T0)}, {s(S_WG)}, {s(S_W)}')
    b(f's_cmp_lg_u32 {s(S_T0)}, 0')
    b('s_cbranch_scc1 L_END')
    for k in range(1, 16):
        b(f'v_xor_b32 {v(G_EP + k)}, {s(S_N)}, {v(G_EP + k)}')
    b(f'v_xor_b32 {v(G_EP)}, {s(S_N)}, {v(G_EP)}')
    for k in range(1, 16, 2):
        hi = G_EP + k + 1 if k + 1 < 16 else G_EP + k
        b(f'v_or3_b32 {v(G_EP)}, {v(G_EP)}, {v(G_EP + k)}, {v(hi)}')
    b(f'v_cmp_ne_u32 vcc, 0, {v(G_EP)}')
    slow, cont = g.lab('ES'), g.lab('EC')
    b(f's_cbranch_vccnz {slow}')
    b.label(cont)
    b(f'v_mov_b32 {v(V_POLL)}, {s(S_N)}')
    b(f'buffer_store_dword {v(V_POLL)}, off, {s(SRD_WS, 4)}, 0 sc1')
    txt = [f'{slow}:', f'    v_lshlrev_b32 {v(t0)}, 6, {v(V_LANE)}', f'    s_mov_b32 {s(S_T0)}, {WS_FP1}',
           f'    s_mov_b32 {s(G.S_CNT)}, {G.SPIN_MAX}',
           f'{slow}_l:',
           f'    buffer_load_dword {v(V_PR)}, {v(t0)}, {s(SRD_WS, 4)}, {s(S_T0)} offen sc1',
           '    s_waitcnt vmcnt(0)',
           f'    v_cmp_ne_u32 vcc, {s(S_N)}, {v(V_PR)}',
           f'    s_cbranch_vccz {slow}_n',
           f'    s_sub_u32 {s(G.S_CNT)}, {s(G.S_CNT)}, 1',
           f'    s_cmp_lg_u32 {s(G.S_CNT)}, 0',
           f'    s_cbranch_scc1 {slow}_l',
           f'    s_branch {cont}',
           f'{slow}_n:',
           f'    s_add_u32 {s(S_T0)}, {s(S_T0)}, 4096',
           f'    s_cmp_lt_u32 {s(S_T0)}, {WS_FP1 + 65536}',
           f'    s_cbranch_scc1 {slow}_l',
           f'    s_branch {cont}']
    g.slow.append('\n'.join(txt))
    return [b.b]


G_EP = 32
```

```python
import sys, struct, math
from collections import deque
from asmlib import *

KNAME = 'gated_mix__linear_attn_block__mixer_gmlp__prompt_kernel'
OPT = dict(stamps=0, rot=1, touch=0)


def v(a, n=1):
    return f'v{a}' if n == 1 else f'v[{a}:{a + n - 1}]'


def a(x, n=1):
    return f'a{x}' if n == 1 else f'a[{x}:{x + n - 1}]'


def s(x, n=1):
    return f's{x}' if n == 1 else f's[{x}:{x + n - 1}]'


WS_EPOCH = 0
WS_FZ2 = 0x10000
WS_FP1 = 0x20000
WS_FY = 0x30000
WS_FKV = 0x40000
WS_GATE = 0x50000
WS_KVF = 0x60000
WS_STATS = 0x80000
WS_KVP = 0x100000
WS_Z2N = 0x200000
WS_Z1F = 0x500000
WS_PQ = 0x800000
WS_Y = 0xB00000
WS_DBG = 0x1000000
WS_SIZE = 0x10000000
NONCE_K = 0x9E3779B1
OOB = 0x40000000
SPIN_MAX = 20000

R0 = 0
R1 = 65536
R2 = 98304
LDS_BYTES = 163840

S_WG = 2
SRD_A = 4
SRD_U = 8
S_Q0, S_Q1 = 12, 13
S_AS = 14
S_ROT = 15
P_X, P_WQKV, P_WO, P_BX, P_WIN, P_WSP, P_BSP, P_WOUT = 16, 18, 20, 22, 24, 26, 28, 30
P_GW, P_OUT, P_DBG, P_WS = 32, 34, 36, 38
SRD_X = 40
SRD_W = 44
SRD_WS = 48
SRD_T = 52
S_W = 56
S_RB, S_CG, S_I, S_J = 57, 58, 59, 60
S_N = 61
S_T0, S_T1, S_T2, S_T3, S_T4, S_T5 = 64, 65, 66, 67, 68, 69
S_XL, S_XS, S_WL, S_WSO = 70, 71, 72, 73
S_RS, S_COL, S_MASK = 74, 75, 76
S_O0, S_O1 = 77, 78
S_TB = 79
S_RS64 = 80
S_LOG2E, S_EPS = 82, 83
S_CNT = 86
S_XG, S_XLW, S_WGB = 84, 85, 87
S_KC = 91
S_D2COL, S_D2MASK, S_D2SEL = 88, 89, 90
S_D3COL, S_D3MASK, S_D3SEL = 92, 93, 94
S_T6, S_T7 = 96, 97
S_VCC2 = 98

V_LANE = 0
V_T0 = 1
V_DUM = 7
V_XD = 8
V_WD = 12
V_XRO = 14
V_XRT = 18
V_WR = 22
V_L16 = 24
V_L8 = 25
V_GA = 26
V_NON = 27
V_ST = 28
V_POLL = 30
V_AR = 32
V_E = 36
V_AD = 40
V_TCH = 44
V_BSP = 45
V_TW1, V_TW2 = 46, 47
V_ACC0 = 64
V_ACC1 = 96
V_WF = 128
V_TMP = 144
V_PK = 176
V_PV = 192
V_STAT = 208
V_KV = 208


def f2u(x):
    return struct.unpack('<I', struct.pack('<f', x))[0]


LOG2E = 1.4426950408889634
GELU_A_F = -2.0 * LOG2E * math.sqrt(2.0 / math.pi)
GELU_A = f2u(GELU_A_F)
GELU_B = f2u(GELU_A_F * 0.044715)


class St:
    def __init__(self, g, name):
        self.g = g
        self.b = g.blk(name)
        self.q = deque()
        self.period = 0
        self.cnt = 0
        self.lock = 0

    def __call__(self, text, tag=None, **meta):
        r = self.b(text, tag=tag, **meta)
        if self.period and not self.lock and self.q:
            self.cnt += 1
            if self.cnt >= self.period:
                self.pop()
        return r

    def pop(self, n=1):
        for _ in range(n):
            if not self.q:
                return
            item = self.q.popleft()
            for x in item:
                if isinstance(x, tuple):
                    self.b(x[1], tag=x[0], **(x[2] if len(x) > 2 else {}))
                else:
                    self.b(x)
        self.cnt = 0

    def add(self, items):
        self.q.extend(items)

    def flush(self):
        self.pop(len(self.q))

    def ensure(self, tag):
        def has(item):
            return any(isinstance(x, tuple) and x[0] == tag for x in item)
        while any(has(i) for i in self.q):
            self.pop(1)

    def label(self, n):
        self.b.label(n)

    def wait_vm(self, t):
        self.b.wait_vm(t)

    def wait_lds(self):
        self.b.wait_lds()

    class _L:
        def __init__(self, st):
            self.st = st

        def __enter__(self):
            self.st.lock += 1

        def __exit__(self, *a):
            self.st.lock -= 1

    def atomic(self):
        return St._L(self)


def gelu_group(b, xs, tmp):
    n = len(xs)
    for k in range(n):
        b(f'v_mul_f32 {v(tmp + k)}, {v(xs[k])}, {v(xs[k])}')
    for k in range(n):
        b(f'v_fmamk_f32 {v(tmp + k)}, {v(tmp + k)}, {hex(GELU_B)}, {v(V_GA)}')
    for k in range(n):
        b(f'v_mul_f32 {v(tmp + k)}, {v(tmp + k)}, {v(xs[k])}')
    for k in range(n):
        b(f'v_exp_f32 {v(tmp + k)}, {v(tmp + k)}')
    for k in range(n):
        b(f'v_add_f32 {v(tmp + k)}, 1.0, {v(tmp + k)}')
    for k in range(n):
        b(f'v_rcp_f32 {v(tmp + k)}, {v(tmp + k)}')
    for k in range(n):
        b(f'v_mul_f32 {v(xs[k])}, {v(xs[k])}, {v(tmp + k)}')


def phi_group(b, xs, tmp):
    n = len(xs)
    for k in range(n):
        b(f'v_mul_f32 {v(tmp + k)}, {s(S_LOG2E)}, {v(xs[k])}')
    for k in range(n):
        b(f'v_exp_f32_e64 {v(tmp + k)}, {v(tmp + k)} clamp')
    for k in range(n):
        b(f'v_max_f32 {v(xs[k])}, {s(S_EPS)}, {v(xs[k])}')
    for k in range(n):
        b(f'v_add_f32 {v(xs[k])}, {v(xs[k])}, {v(tmp + k)}')


def srd(b, base, ptr, nrec):
    b(f's_mov_b32 {s(base)}, {s(ptr)}')
    b(f's_mov_b32 {s(base + 1)}, {s(ptr + 1)}')
    b(f's_mov_b32 {s(base + 2)}, {hex(nrec)}')
    b(f's_mov_b32 {s(base + 3)}, 0x20000')


def dma4_voffsets(b, dst, RS):
    t0, t1, t2 = V_T0, V_T0 + 1, V_T0 + 2
    b(f'v_lshrrev_b32 {v(t0)}, 3, {v(V_LANE)}')
    b(f'v_and_b32 {v(t1)}, 7, {v(V_LANE)}')
    b(f'v_lshrrev_b32 {v(t2)}, 4, {v(V_LANE)}')
    b(f'v_xor_b32 {v(t1)}, {v(t1)}, {v(t2)}')
    b(f'v_lshlrev_b32 {v(t1)}, 4, {v(t1)}')
    b(f'v_mul_u32_u24 {v(t0)}, {RS}, {v(t0)}')
    b(f'v_add_u32 {v(dst)}, {v(t0)}, {v(t1)}')
    b(f'v_xor_b32 {v(t1)}, 64, {v(t1)}')
    b(f'v_add_u32 {v(t0)}, {v(t0)}, {v(t1)}')
    b(f'v_add_u32 {v(dst + 1)}, {8 * RS - 1024}, {v(t0)}')
    b(f'v_add_u32 {v(dst + 2)}, {16 * RS - 2048}, {v(dst)}')
    b(f'v_add_u32 {v(dst + 3)}, {24 * RS - 3072}, {v(t0)}')


def frag_read_addrs(b, dst):
    t0, t1, t2 = V_T0, V_T0 + 1, V_T0 + 2
    b(f'v_and_b32 {v(t0)}, 31, {v(V_LANE)}')
    b(f'v_lshrrev_b32 {v(t1)}, 5, {v(V_LANE)}')
    b(f'v_bfe_u32 {v(t2)}, {v(V_LANE)}, 1, 3')
    b(f'v_xor_b32 {v(t1)}, {v(t1)}, {v(t2)}')
    b(f'v_lshlrev_b32 {v(t1)}, 4, {v(t1)}')
    b(f'v_lshl_add_u32 {v(dst)}, {v(t0)}, 7, {v(t1)}')
    for kk in range(1, 4):
        b(f'v_xor_b32 {v(dst + kk)}, {32 * kk}, {v(dst)}')


def tr_addr(b, dst, pi):
    t0, t1 = V_T0, V_T0 + 1
    b(f'v_bfe_u32 {v(t0)}, {v(V_LANE)}, 2, 2')
    b(f'v_lshrrev_b32 {v(t1)}, 5, {v(V_LANE)}')
    b(f'v_lshl_add_u32 {v(t1)}, {v(t1)}, {2 if pi else 3}, {v(t0)}')
    b(f'v_lshlrev_b32 {v(t1)}, 7, {v(t1)}')
    b(f'v_lshrrev_b32 {v(t0)}, 1, {v(t0)}')
    b(f'v_lshl_add_u32 {v(t1)}, {v(t0)}, 6, {v(t1)}')
    b(f'v_bfe_u32 {v(t0)}, {v(V_LANE)}, 4, 1')
    b(f'v_lshl_add_u32 {v(t1)}, {v(t0)}, 5, {v(t1)}')
    b(f'v_and_b32 {v(t0)}, 3, {v(V_LANE)}')
    b(f'v_lshl_add_u32 {v(dst)}, {v(t0)}, 3, {v(t1)}')


def wd_voffsets(b):
    t0, t1, t2 = V_T0, V_T0 + 1, V_T0 + 2
    b(f'v_bfe_u32 {v(t0)}, {v(V_LANE)}, 2, 1')
    b(f'v_bfe_u32 {v(t1)}, {v(V_LANE)}, 4, 1')
    b(f'v_xor_b32 {v(t0)}, {v(t0)}, {v(t1)}')
    b(f'v_and_b32 {v(t1)}, 3, {v(V_LANE)}')
    b(f'v_lshlrev_b32 {v(t1)}, 4, {v(t1)}')
    b(f'v_lshl_add_u32 {v(t0)}, {v(t0)}, 6, {v(t1)}')
    b(f'v_lshrrev_b32 {v(t1)}, 3, {v(V_LANE)}')
    b(f'v_mul_lo_u32 {v(t1)}, {v(t1)}, {s(S_RS)}')
    b(f'v_add_u32 {v(t1)}, {v(t1)}, {v(t0)}')
    b(f'v_add_u32 {v(V_WD)}, {s(S_COL)}, {v(t1)}')
    b(f's_lshl_b32 {s(S_T0)}, {s(S_RS)}, 3')
    b(f's_sub_u32 {s(S_T0)}, {s(S_T0)}, 1024')
    b(f'v_add_u32 {v(V_WD + 1)}, {s(S_T0)}, {v(V_WD)}')
    b(f'v_mov_b32 {v(t2)}, {hex(OOB)}')
    b(f'v_cmp_gt_u32 vcc, {s(S_MASK)}, {v(t0)}')
    b(f'v_cndmask_b32 {v(V_WD)}, {v(V_WD)}, {v(t2)}, vcc')
    b(f'v_cndmask_b32 {v(V_WD + 1)}, {v(V_WD + 1)}, {v(t2)}, vcc')
    b(f's_lshl_b32 {s(S_RS64)}, {s(S_RS)}, 6')
    b(f's_lshl_b32 {s(S_T0)}, {s(S_RS)}, 4')
    b(f's_mul_i32 {s(S_WSO)}, {s(S_T0)}, {s(S_W)}')


def set_w_srd(b, sel):
    b(f's_cmp_eq_u32 {s(sel)}, 0')
    b(f's_cselect_b32 {s(SRD_W)}, {s(P_WQKV)}, {s(P_WIN)}')
    b(f's_cselect_b32 {s(SRD_W + 1)}, {s(P_WQKV + 1)}, {s(P_WIN + 1)}')
    b(f's_mov_b32 {s(SRD_W + 2)}, {hex(512 * 2752)}')
    b(f's_cmov_b32 {s(SRD_W + 2)}, {hex(512 * 3072)}')
    b(f's_mov_b32 {s(SRD_W + 3)}, 0x20000')


def w_piece_items(p, region, tag):
    return [
        [f's_add_u32 {s(S_Q0)}, {s(S_ROT)}, {p}',
         f's_and_b32 {s(S_Q0)}, {s(S_Q0)}, 7',
         f's_mul_i32 {s(S_Q0)}, {s(S_Q0)}, {s(S_RS64)}',
         f's_add_u32 {s(S_Q0)}, {s(S_Q0)}, {s(S_WSO)}',
         f's_add_u32 m0, {s(S_WL)}, {region + 8192 * p}',
         (tag, f'buffer_load_dwordx4 {v(V_WD)}, {s(SRD_W, 4)}, {s(S_Q0)} offen lds')],
        [(tag, f'buffer_load_dwordx4 {v(V_WD + 1)}, {s(SRD_W, 4)}, {s(S_Q0)} offen offset:1024 lds')],
    ]


def x_chunk_items(c, tag):
    it = []
    for i in range(4):
        l = []
        if i == 0:
            l = [f's_add_u32 {s(S_Q0)}, {s(S_ROT)}, {c}',
                 f's_and_b32 {s(S_Q0)}, {s(S_Q0)}, 7',
                 f's_lshl_b32 {s(S_Q0)}, {s(S_Q0)}, 7',
                 f's_add_u32 {s(S_Q0)}, {s(S_Q0)}, {s(S_XS)}',
                 f's_add_u32 m0, {s(S_XL)}, {16384 * (c % 3)}']
        l.append((tag, f'buffer_load_dwordx4 {v(V_XD + i)}, {s(SRD_X, 4)}, {s(S_Q0)} offen offset:{1024 * i} lds'))
        it.append(l)
    return it


def l1_items(c):
    tag = f'x{c}'
    slot = R1 + 16384 * (c % 3)
    it = []
    for m in range(4):
        l = []
        if m == 0:
            l = [f's_add_u32 {s(S_KC)}, {s(S_ROT)}, {c}',
                 f's_and_b32 {s(S_KC)}, {s(S_KC)}, 7',
                 f's_lshl_b32 {s(S_Q0)}, {s(S_KC)}, 7',
                 f's_add_u32 {s(S_Q0)}, {s(S_Q0)}, {s(S_XG)}',
                 f's_add_u32 m0, {s(S_XLW)}, {slot}']
        else:
            l = [f's_add_u32 {s(S_Q0)}, {s(S_Q0)}, 7168']
        l.append((tag, f'buffer_load_dwordx4 {v(V_XD + (m & 1))}, {s(SRD_X, 4)}, {s(S_Q0)} offen offset:{1024 * m} lds'))
        it.append(l)
    it.append([f's_add_u32 {s(S_Q0)}, {s(S_Q0)}, {7168 + 4096}',
               f's_add_u32 m0, {s(S_XLW)}, {slot + 4096}',
               (tag, f'buffer_load_dwordx4 {v(V_XD)}, {s(SRD_X, 4)}, {s(S_Q0)} offen lds')])
    return it


def l1_item5(g, b, c):
    tag = f'x{c}'
    l0, l1 = g.lab('M5'), g.lab('M5')
    b.b(f's_cmp_eq_u32 {s(S_W)}, 0')
    b.b(f's_cbranch_scc0 {l0}')
    b.b(f's_add_u32 {s(S_Q0)}, {s(S_Q0)}, 7168')
    b.b(f'buffer_load_dwordx4 {v(V_XD + 1)}, {s(SRD_X, 4)}, {s(S_Q0)} offen offset:1024 lds', nocount=True)
    b.b(f's_branch {l1}')
    b.b.label(l0)
    b.b(f's_mul_i32 {s(S_Q1)}, {s(S_KC)}, {s(S_RS64)}')
    b.b(f's_sub_u32 {s(S_Q0)}, {s(S_WGB)}, 1')
    b.b(f's_lshl_b32 {s(S_T0)}, {s(S_Q0)}, 10')
    b.b(f's_add_u32 m0, {s(S_T0)}, {R0 + 8192 * c}')
    b.b(f's_lshl_b32 {s(S_T0)}, {s(S_RS)}, 3')
    b.b(f's_mul_i32 {s(S_Q0)}, {s(S_Q0)}, {s(S_T0)}')
    b.b(f's_add_u32 {s(S_Q0)}, {s(S_Q0)}, {s(S_Q1)}')
    b.b(f'buffer_load_dwordx4 {v(V_WD)}, {s(SRD_W, 4)}, {s(S_Q0)} offen lds', tag=tag)
    b.b.label(l1)


def l1_w_items(c):
    tag = f'x{c}'
    return [[f's_mul_i32 {s(S_Q1)}, {s(S_KC)}, {s(S_RS64)}',
             f's_lshl_b32 {s(S_Q0)}, {s(S_WGB)}, 10',
             f's_add_u32 m0, {s(S_Q0)}, {R0 + 8192 * c}',
             f's_lshl_b32 {s(S_Q0)}, {s(S_RS)}, 3',
             f's_mul_i32 {s(S_Q0)}, {s(S_Q0)}, {s(S_WGB)}',
             f's_add_u32 {s(S_Q0)}, {s(S_Q0)}, {s(S_Q1)}',
             (tag, f'buffer_load_dwordx4 {v(V_WD)}, {s(SRD_W, 4)}, {s(S_Q0)} offen lds')],
            [(tag, f'buffer_load_dwordx4 {v(V_WD + 1)}, {s(SRD_W, 4)}, {s(S_Q0)} offen offset:1024 lds')]]


def a_slot_base(c):
    k = c % 3
    return (14, R0) if k == 0 else ((14, R0 + 8192) if k == 1 else (13, R1))


def a_chunk_items(c):
    sh, base = a_slot_base(c)
    it = []
    for g in range(2):
        for i in range(4):
            l = []
            if i == 0:
                l = [f's_add_u32 {s(S_Q0)}, {s(S_ROT)}, {c}',
                     f's_and_b32 {s(S_Q0)}, {s(S_Q0)}, 7',
                     f's_lshl_b32 {s(S_Q0)}, {s(S_Q0)}, 7',
                     f's_add_u32 {s(S_Q0)}, {s(S_Q0)}, {s(S_AS)}']
                if g:
                    l.append(f's_add_u32 {s(S_Q0)}, {s(S_Q0)}, {32 * 4096}')
                l += [f's_lshl_b32 {s(S_Q1)}, {s(S_W)}, {sh}',
                      f's_add_u32 m0, {s(S_Q1)}, {base + 4096 * g}']
            l.append((f'a{c}', f'buffer_load_dwordx4 {v(V_AD + i)}, {s(SRD_A, 4)}, {s(S_Q0)} offen offset:{1024 * i} lds'))
            it.append(l)
    return it


def a_chunk_read(b, c):
    sh, base = a_slot_base(c)
    with b.atomic():
        b(f's_lshl_b32 {s(S_T0)}, {s(S_W)}, {sh}')
        b(f's_add_u32 {s(S_T0)}, {s(S_T0)}, {base}')
        for kk in range(4):
            b(f'v_add_u32 {v(V_T0 + kk)}, {s(S_T0)}, {v(V_AR + kk)}')
        for kk in range(4):
            for bb in range(2):
                r = 8 * (4 * c + kk) + 4 * bb
                b(f'ds_read_b128 {a(r, 4)}, {v(V_T0 + kk)} offset:{4096 * bb}')


def stamp(b, idx):
    if not OPT['stamps']:
        return
    lock = b.atomic() if hasattr(b, 'atomic') else None
    if lock:
        lock.__enter__()
    b(f's_memrealtime {s(S_VCC2, 2)}' if OPT['stamps'] == 1 else f's_memtime {s(S_VCC2, 2)}')
    b('s_waitcnt lgkmcnt(0)')
    b(f's_lshl_b32 {s(S_T6)}, {s(S_WG)}, 2')
    b(f's_add_u32 {s(S_T6)}, {s(S_T6)}, {s(S_W)}')
    b(f's_lshl_b32 {s(S_T6)}, {s(S_T6)}, 7')
    b(f's_add_u32 {s(S_T6)}, {s(S_T6)}, {WS_DBG + 4 * idx}')
    b(f'v_mov_b32 {v(V_POLL + 1)}, {s(S_VCC2)}')
    b(f'buffer_store_dword {v(V_POLL + 1)}, off, {s(SRD_WS, 4)}, {s(S_T6)}')
    if lock:
        lock.__exit__()


def s1_issue(g, b):
    from phase23 import s1_issue as f
    f(g, b)


class Gen:
    def __init__(self):
        self.blocks = []
        self.slow = []
        self.nlab = 0

    def blk(self, name):
        b = Block(name)
        self.blocks.append(b)
        return b

    def lab(self, p='L'):
        self.nlab += 1
        return f'{p}_{self.nlab}'

    def poll(self, b, vaddr, soff, vtmp, first_issued=False, skip_if_zero=None):
        cont = self.lab('PC')
        slow = self.lab('PS')
        lock = b.atomic() if hasattr(b, 'atomic') else None
        if lock:
            lock.__enter__()
        if not first_issued:
            b(f'buffer_load_dword {v(vtmp)}, {v(vaddr)}, {s(SRD_WS, 4)}, {soff} offen sc1')
        b(f'v_cmp_ne_u32 vcc, {s(S_N)}, {v(vtmp)}')
        if skip_if_zero is not None:
            b(f's_cmp_eq_u32 {s(skip_if_zero)}, 0')
            b(f's_cbranch_scc1 {cont}')
        b(f's_cbranch_vccnz {slow}')
        b.label(cont)
        if lock:
            lock.__exit__()
        self.slow.append(f'''{slow}:
    s_mov_b32 {s(S_CNT)}, {SPIN_MAX}
{slow}_l:
    s_sleep 1
    buffer_load_dword {v(vtmp)}, {v(vaddr)}, {s(SRD_WS, 4)}, {soff} offen sc1
    s_waitcnt vmcnt(0)
    v_cmp_ne_u32 vcc, {s(S_N)}, {v(vtmp)}
    s_cbranch_vccz {cont}
    s_sub_u32 {s(S_CNT)}, {s(S_CNT)}, 1
    s_cmp_lg_u32 {s(S_CNT)}, 0
    s_cbranch_scc1 {slow}_l
    s_branch {cont}''')

    def prologue(self):
        b = St(self, 'PRO')
        b(f's_cmp_ge_u32 {s(S_WG)}, 256')
        b('s_cbranch_scc1 L_END')
        b('s_load_dwordx16 s[16:31], s[0:1], 0x0')
        b('s_load_dwordx8 s[32:39], s[0:1], 0x40')
        b(f'v_lshrrev_b32 {v(V_T0)}, 6, {v(0)}')
        b(f'v_and_b32 {v(V_LANE)}, 63, {v(0)}')
        b(f's_and_b32 {s(S_T0)}, {s(S_WG)}, 7')
        b(f'v_readfirstlane_b32 {s(S_W)}, {v(V_T0)}')
        b(f's_lshr_b32 {s(S_T1)}, {s(S_WG)}, 3')
        b(f's_lshr_b32 {s(S_T2)}, {s(S_T1)}, 2')
        b(f's_and_b32 {s(S_T1)}, {s(S_T1)}, 3')
        b(f's_and_b32 {s(S_T3)}, {s(S_T0)}, 1')
        b(f's_lshr_b32 {s(S_T0)}, {s(S_T0)}, 1')
        b(f's_lshl3_add_u32 {s(S_RB)}, {s(S_T3)}, {s(S_T2)}')
        b(f's_lshl2_add_u32 {s(S_CG)}, {s(S_T0)}, {s(S_T1)}')
        b(f's_lshl3_add_u32 {s(S_I)}, {s(S_T0)}, {s(S_T2)}')
        b(f's_lshl2_add_u32 {s(S_J)}, {s(S_T3)}, {s(S_T1)}')
        b(f's_lshl1_add_u32 {s(S_ROT)}, {s(S_T1)}, {s(S_T2)}')
        b(f's_and_b32 {s(S_ROT)}, {s(S_ROT)}, 7')
        if not OPT['rot']:
            b(f's_mov_b32 {s(S_ROT)}, 0')
        b(f'v_lshrrev_b32 {v(V_T0)}, 3, {v(V_LANE)}')
        b(f'v_and_b32 {v(V_T0 + 1)}, 7, {v(V_LANE)}')
        b(f'v_lshrrev_b32 {v(V_T0 + 2)}, 4, {v(V_LANE)}')
        b(f'v_xor_b32 {v(V_T0 + 1)}, {v(V_T0 + 1)}, {v(V_T0 + 2)}')
        b(f'v_lshlrev_b32 {v(V_T0 + 1)}, 4, {v(V_T0 + 1)}')
        b(f's_cmp_eq_u32 {s(S_W)}, 2')
        b(f's_cselect_b32 {s(S_T0)}, 64, 0')
        b(f'v_xor_b32 {v(V_T0 + 1)}, {s(S_T0)}, {v(V_T0 + 1)}')
        b(f'v_lshl_add_u32 {v(V_XD)}, {v(V_T0)}, 10, {v(V_T0 + 1)}')
        b(f'v_xor_b32 {v(V_XD + 1)}, 64, {v(V_XD)}')
        b(f's_mul_i32 {s(S_XLW)}, {s(S_W)}, 6')
        b(f's_cmp_eq_u32 {s(S_W)}, 2')
        b(f's_cselect_b32 {s(S_XLW)}, 11, {s(S_XLW)}')
        b(f's_lshl_b32 {s(S_XG)}, {s(S_XLW)}, 13')
        b(f's_lshl_b32 {s(S_T0)}, {s(S_RB)}, 17')
        b(f's_add_u32 {s(S_XG)}, {s(S_XG)}, {s(S_T0)}')
        b(f's_lshl_b32 {s(S_XLW)}, {s(S_XLW)}, 10')
        b(f's_mul_i32 {s(S_WGB)}, {s(S_W)}, 3')
        b(f's_lshl_b32 {s(S_T0)}, {s(S_CG)}, 7')
        b(f's_add_u32 {s(S_T1)}, {s(S_T0)}, 1344')
        b(f's_sub_u32 {s(S_T2)}, {s(S_T0)}, 1024')
        b(f's_cmp_le_u32 {s(S_CG)}, 10')
        b(f's_cselect_b32 {s(S_COL)}, {s(S_T1)}, {s(S_T2)}')
        b(f's_mov_b32 {s(S_RS)}, 3072')
        b(f's_cmov_b32 {s(S_RS)}, 2752')
        b(f's_cselect_b32 {s(S_T3)}, 1, 0')
        b(f's_cmp_eq_u32 {s(S_CG)}, 0')
        b(f's_cselect_b32 {s(S_MASK)}, 32, 0')
        wd_voffsets(b)
        b(f's_lshl_b32 {s(S_WL)}, {s(S_W)}, 11')
        b(f's_lshl2_add_u32 {s(S_TB)}, {s(S_RB)}, {s(S_W)}')
        b('s_waitcnt lgkmcnt(0)')
        srd(b, SRD_X, P_X, 2048 * 1024)
        set_w_srd(b, S_T3)
        b(f's_cmp_eq_u32 {s(S_W)}, 3')
        b('s_cbranch_scc1 L_noload0')
        n0 = len(b.b.ins)
        for c in range(2):
            b.add(l1_items(c))
            b.flush()
            l1_item5(self, b, c)
            b.add(l1_w_items(c))
            b.flush()
        for i in b.b.ins[n0:]:
            i.meta['loader'] = True
        b.label('L_noload0')
        srd(b, SRD_WS, P_WS, WS_SIZE)
        b(f'buffer_load_dword {v(V_E)}, off, {s(SRD_WS, 4)}, 0 sc1', tag='epoch')
        stamp(b, 0)
        b(f's_mov_b32 {s(S_LOG2E)}, {hex(f2u(LOG2E))}')
        b(f's_mov_b32 {s(S_EPS)}, {hex(f2u(1e-6))}')
        b(f'v_mov_b32 {v(V_GA)}, {hex(GELU_A)}')
        b(f'v_lshlrev_b32 {v(V_L16)}, 4, {v(V_LANE)}')
        b(f'v_lshlrev_b32 {v(V_L8)}, 3, {v(V_LANE)}')
        frag_read_addrs(b, V_AR)
        b(f's_lshl_b32 {s(S_T0)}, {s(S_W)}, 12')
        b(f's_add_u32 {s(S_T1)}, {s(S_T0)}, {R1}')
        b(f's_xor_b32 {s(S_T2)}, {s(S_T1)}, 4096')
        for kk in range(4):
            b(f'v_add_u32 {v(V_XRO + kk)}, {s(S_T1)}, {v(V_AR + kk)}')
            b(f'v_add_u32 {v(V_XRT + kk)}, {s(S_T2)}, {v(V_AR + kk)}')
        tr_addr(b, V_WR, False)
        b(f'v_xor_b32 {v(V_WR + 1)}, 64, {v(V_WR)}')
        srd(b, SRD_A, P_WSP, 2048 * 4096)
        dma4_voffsets(b, V_AD, 4096)
        b(f'v_lshlrev_b32 {v(V_TCH)}, 7, {v(V_LANE)}')
        b(f's_lshl_b32 {s(S_AS)}, {s(S_I)}, 18')
        b(f's_lshl_b32 {s(S_T0)}, {s(S_W)}, 10')
        b(f's_add_u32 {s(S_AS)}, {s(S_AS)}, {s(S_T0)}')
        srd(b, SRD_T, P_BSP, 4096)
        b(f's_and_b32 {s(S_T0)}, {s(S_W)}, 1')
        b(f's_lshl_b32 {s(S_T0)}, {s(S_T0)}, 6')
        b(f's_lshl_b32 {s(S_T1)}, {s(S_I)}, 7')
        b(f's_add_u32 {s(S_T0)}, {s(S_T0)}, {s(S_T1)}')
        b(f'v_and_b32 {v(V_T0)}, 31, {v(V_LANE)}')
        b(f'v_lshlrev_b32 {v(V_T0)}, 1, {v(V_T0)}')
        b(f'buffer_load_ushort {v(V_BSP)}, {v(V_T0)}, {s(SRD_T, 4)}, {s(S_T0)} offen')
        b(f's_lshl_b32 {s(S_T0)}, {s(S_CG)}, 7')
        b(f's_add_u32 {s(S_D2COL)}, {s(S_T0)}, 1024')
        b(f's_add_u32 {s(S_D3COL)}, {s(S_T0)}, 2048')
        b(f's_mov_b32 {s(S_D2SEL)}, 0')
        b(f's_mov_b32 {s(S_D3SEL)}, 0')
        b(f's_mov_b32 {s(S_D2MASK)}, 0')
        b(f's_mov_b32 {s(S_D3MASK)}, 0')
        b(f's_cmp_lt_u32 {s(S_CG)}, 8')
        b('s_cbranch_scc1 L_desc_done')
        b(f's_cmp_lt_u32 {s(S_CG)}, 11')
        b('s_cbranch_scc0 L_desc_cd')
        b(f's_sub_u32 {s(S_D2COL)}, {s(S_T0)}, 1024')
        b(f's_sub_u32 {s(S_D3COL)}, {s(S_T0)}, 1056')
        b(f's_mov_b32 {s(S_D3SEL)}, 1')
        b(f's_cmp_eq_u32 {s(S_CG)}, 8')
        b(f's_cselect_b32 {s(S_D3MASK)}, 32, 0')
        b('s_branch L_desc_done')
        b.label('L_desc_cd')
        b(f's_lshl_b32 {s(S_T1)}, {s(S_T0)}, 1')
        b(f's_sub_u32 {s(S_T1)}, {s(S_T1)}, 2464')
        b(f's_sub_u32 {s(S_T2)}, {s(S_T0)}, 672')
        b(f's_cmp_lt_u32 {s(S_CG)}, 14')
        b(f's_cselect_b32 {s(S_D2COL)}, {s(S_T1)}, {s(S_T2)}')
        b(f's_add_u32 {s(S_D3COL)}, {s(S_D2COL)}, 128')
        b(f's_mov_b32 {s(S_D2SEL)}, 1')
        b(f's_mov_b32 {s(S_D3SEL)}, 1')
        b.label('L_desc_done')
        for r in range(32):
            b(f'v_mov_b32 {v(V_ACC0 + r)}, 0')
        b(f's_cmp_eq_u32 {s(S_W)}, 3')
        b('s_cbranch_scc1 L_L1P')
        return b.b

    def prefetch_items(self):
        def touch(srdreg, mul, off=0):
            return [f's_mul_i32 {s(S_Q0)}, {s(S_WG)}, {mul}',
                    ('t', f'buffer_load_dword {v(V_DUM)}, {v(V_TCH)}, {s(srdreg, 4)}, {s(S_Q0)} offen offset:{off}', dict(nodst=True))]
        it = []
        pre = lambda ptr, n: [f's_mov_b32 {s(SRD_U)}, {s(ptr)}', f's_mov_b32 {s(SRD_U + 1)}, {s(ptr + 1)}',
                              f's_mov_b32 {s(SRD_U + 2)}, {hex(n)}', f's_mov_b32 {s(SRD_U + 3)}, 0x20000']
        it.append(pre(P_WQKV, 512 * 3072) + touch(SRD_U, 6144))
        it.append(pre(P_WIN, 512 * 2752) + touch(SRD_U, 5504))
        for k in range(4):
            it.append([f's_mul_i32 {s(S_Q0)}, {s(S_WG)}, 32768', f's_add_u32 {s(S_Q0)}, {s(S_Q0)}, {8192 * k}',
                       ('t', f'buffer_load_dword {v(V_DUM)}, {v(V_TCH)}, {s(SRD_A, 4)}, {s(S_Q0)} offen', dict(nodst=True))])
        it.append(pre(P_WOUT, 688 * 1024) + touch(SRD_U, 2752))
        it.append(pre(P_WO, 512 * 1024) + touch(SRD_U, 2048))
        return it

    def slab1(self, loader):
        b = St(self, 'L1L' if loader else 'L1P')
        if not loader:
            b.label('L_L1P')
            pf = self.prefetch_items() if OPT.get('pf', 1) else []
        for c in range(8):
            if loader:
                b.wait_vm(f'x{c}')
            if c == 4:
                b(f'v_add_u32 {v(V_NON)}, {hex(NONCE_K)}, {v(V_E)}')
                b(f'v_readfirstlane_b32 {s(S_N)}, {v(V_NON)}')
            b.wait_lds()
            b('s_barrier')
            m5 = None
            if c <= 5:
                if loader:
                    b.add(l1_items(c + 2))
                    m5 = c + 2
                else:
                    b.add(pf[:2])
                    pf = pf[2:]
            else:
                if c == 6:
                    self.switch_slab(b, S_D2SEL, S_D2COL, S_D2MASK)
                for p in ((2, 3, 4) if c == 6 else (5, 6, 7)):
                    b.add(w_piece_items(p, R2, 'w2'))
            b.pop(1)
            b.period = OPT.get('l1p', 5) if loader else 8
            for kk in range(4):
                K = 4 * c + kk
                b(f'ds_read_b128 {a(8 * K, 4)}, {v(V_XRO + kk)}')
                wf = V_WF + 8 * (kk & 1)
                for ch in range(2):
                    for t in range(2):
                        b(f'ds_read_b64_tr_b16 {v(wf + 4 * ch + 2 * t, 2)}, {v(V_WR + ch)} offset:{2048 * K + 512 * t}')
                if kk >= 1:
                    self.mfma_pair_R(b, K - 1)
                if kk == 2 and m5 is not None:
                    b.flush()
                    l1_item5(self, b, m5)
                    b.add(l1_w_items(m5))
            for kk in range(4):
                K = 4 * c + kk
                b(f'ds_read_b128 {a(8 * K + 4, 4)}, {v(V_XRT + kk)}')
            self.mfma_pair_R(b, 4 * c + 3)
            b.flush()
            b.period = 0
            if c < 7:
                d = 16384 if (c + 1) % 3 != 0 else -32768
                for kk in range(4):
                    if d > 0:
                        b(f'v_add_u32 {v(V_XRO + kk)}, {d}, {v(V_XRO + kk)}')
                        b(f'v_add_u32 {v(V_XRT + kk)}, {d}, {v(V_XRT + kk)}')
                    else:
                        b(f'v_subrev_u32 {v(V_XRO + kk)}, {-d}, {v(V_XRO + kk)}')
                        b(f'v_subrev_u32 {v(V_XRT + kk)}, {-d}, {v(V_XRT + kk)}')
        b.wait_lds()
        b('s_barrier')
        stamp(b, 1)
        b(f's_cmp_lt_u32 {s(S_CG)}, 8')
        b('s_cbranch_scc1 L_roleA')
        b(f's_cmp_lt_u32 {s(S_CG)}, 11')
        b('s_cbranch_scc1 L_roleB')
        b(f's_cmp_lt_u32 {s(S_CG)}, 14')
        b('s_cbranch_scc1 L_roleC')
        b('s_branch L_roleD')
        return b.b

    def switch_slab(self, b, sel, col, mask):
        with b.atomic():
            b(f's_cmp_eq_u32 {s(sel)}, 0')
            b(f's_mov_b32 {s(S_RS)}, 2752')
            b(f's_cmov_b32 {s(S_RS)}, 3072')
            b(f's_mov_b32 {s(S_COL)}, {s(col)}')
            b(f's_mov_b32 {s(S_MASK)}, {s(mask)}')
            set_w_srd(b, sel)
            wd_voffsets(b)

    def mfma_pair_R(self, b, K):
        wf = V_WF + 8 * (K & 1)
        for ch in range(2):
            acc = V_ACC0 + 16 * ch
            b(f'v_mfma_f32_32x32x16_bf16 {v(acc, 16)}, {v(wf + 4 * ch, 4)}, {a(8 * K, 4)}, {v(acc, 16)}')

    def touch_items(self):
        it = []
        if not OPT['touch']:
            return it
        for k in range(2):
            it.append([f's_and_b32 {s(S_Q0)}, {s(S_J)}, 3',
                       f's_lshl_b32 {s(S_Q0)}, {s(S_Q0)}, 8',
                       f's_add_u32 {s(S_Q0)}, {s(S_Q0)}, {s(S_AS)}',
                       ('t', f'buffer_load_dword {v(V_DUM)}, {v(V_TCH)}, {s(SRD_A, 4)}, {s(S_Q0)} offen offset:{128 * k}', dict(nodst=True))])
        it.append([f's_lshr_b32 {s(S_Q0)}, {s(S_WG)}, 5',
                   f's_mul_i32 {s(S_Q1)}, {s(S_Q0)}, 86',
                   f's_mul_i32 {s(S_Q0)}, {s(S_W)}, 22',
                   f's_add_u32 {s(S_Q0)}, {s(S_Q0)}, {s(S_Q1)}',
                   f's_lshl_b32 {s(S_Q0)}, {s(S_Q0)}, 10',
                   f's_lshl_b32 {s(S_Q1)}, {s(S_J)}, 7',
                   f's_add_u32 {s(S_Q0)}, {s(S_Q0)}, {s(S_Q1)}',
                   ('t', f'buffer_load_dword {v(V_DUM)}, {v(V_TW1)}, {s(SRD_U, 4)}, {s(S_Q0)} offen', dict(nodst=True))])
        it.append([f's_lshr_b32 {s(S_Q0)}, {s(S_WG)}, 5',
                   f's_lshl_b32 {s(S_Q0)}, {s(S_Q0)}, 2',
                   f's_add_u32 {s(S_Q0)}, {s(S_Q0)}, {s(S_W)}',
                   f's_lshl_b32 {s(S_Q0)}, {s(S_Q0)}, 14',
                   f's_lshl_b32 {s(S_Q1)}, {s(S_J)}, 7',
                   f's_add_u32 {s(S_Q0)}, {s(S_Q0)}, {s(S_Q1)}',
                   ('t', f'buffer_load_dword {v(V_DUM)}, {v(V_TW2)}, {s(SRD_X, 4)}, {s(S_Q0)} offen', dict(nodst=True))])
        return it

    def post_l1(self, b, role):
        it = []
        if OPT['touch']:
            srd(b, SRD_U, P_WOUT, 688 * 1024)
            srd(b, SRD_X, P_WO, 512 * 1024)
            b(f'v_lshlrev_b32 {v(V_TW1)}, 10, {v(V_LANE)}')
            b(f'v_mov_b32 {v(V_TW2)}, {v(V_TW1)}')
            b(f'v_mov_b32 {v(V_T0)}, {hex(OOB)}')
            b(f'v_cmp_lt_u32 vcc, 21, {v(V_LANE)}')
            b(f'v_cndmask_b32 {v(V_TW1)}, {v(V_TW1)}, {v(V_T0)}, vcc')
            b(f'v_cmp_lt_u32 vcc, 15, {v(V_LANE)}')
            b(f'v_cndmask_b32 {v(V_TW2)}, {v(V_TW2)}, {v(V_T0)}, vcc')
        for p in (0, 1):
            it += w_piece_items(p, R2, 'w2')
        it += self.touch_items()
        it += a_chunk_items(0)
        return it

    def set_wr(self, b):
        with b.atomic():
            tr_addr(b, V_WR, False)
            b(f's_and_b32 {s(S_T0)}, {s(S_W)}, 1')
            b(f's_lshl_b32 {s(S_T0)}, {s(S_T0)}, 6')
            b(f'v_xor_b32 {v(V_WR)}, {s(S_T0)}, {v(V_WR)}')
            b(f'v_add_u32 {v(V_WR)}, {R2}, {v(V_WR)}')

    def main_loop(self, b, orient, apf, hooks=None):
        hooks = hooks or {}
        D = 3

        def rd(K):
            wf = V_WF + 4 * (K & 3)
            for t in range(2):
                b(f'ds_read_b64_tr_b16 {v(wf + 2 * t, 2)}, {v(V_WR)} offset:{2048 * K + 512 * t}')
        sv = b.period
        b.period = 0
        for K in range(D):
            rd(K)
        for K in range(32):
            if K + D < 32:
                rd(K + D)
            wf = V_WF + 4 * (K & 3)
            for sl in range(2):
                acc = V_ACC1 + 16 * sl
                x = a(8 * K + 4 * sl, 4)
                c = '0' if K == 0 else v(acc, 16)
                if orient == 'T':
                    b(f'v_mfma_f32_32x32x16_bf16 {v(acc, 16)}, {v(wf, 4)}, {x}, {c}')
                else:
                    b(f'v_mfma_f32_32x32x16_bf16 {v(acc, 16)}, {x}, {v(wf, 4)}, {c}')
            if apf:
                mv = {4: 0, 8: 1, 12: 2, 20: 3, 24: 4, 28: 5}
                if K in mv:
                    c = mv[K]
                    b.ensure(f'a{c}')
                    b.wait_vm(f'a{c}')
                    a_chunk_read(b, c)
                if K - 1 in mv and mv[K - 1] + 3 < 8:
                    b(f's_waitcnt lgkmcnt({2 if K + D < 32 else 0})')
                    b.add(a_chunk_items(mv[K - 1] + 3))
            if K in hooks:
                hooks[K](b)
            if apf:
                b.pop(2 if len(b.q) > 4 else 1)
            elif K % 2 == 1:
                b.pop(1)
        b.period = sv

    def z2_epilogue(self, b):
        for g in range(4):
            gelu_group(b, [V_ACC0 + 8 * g + k for k in range(8)], V_TMP)
        s1, s2 = V_ST, V_ST + 1
        t = V_TMP
        b(f'v_add_f32 {v(s1)}, {v(V_ACC0)}, {v(V_ACC0 + 1)}')
        b(f'v_mul_f32 {v(s2)}, {v(V_ACC0)}, {v(V_ACC0)}')
        b(f'v_add_f32 {v(t)}, {v(V_ACC0 + 2)}, {v(V_ACC0 + 3)}')
        b(f'v_mul_f32 {v(t + 1)}, {v(V_ACC0 + 1)}, {v(V_ACC0 + 1)}')
        for k in range(4, 32, 2):
            b(f'v_add_f32 {v(s1)}, {v(s1)}, {v(V_ACC0 + k)}')
            b(f'v_add_f32 {v(t)}, {v(t)}, {v(V_ACC0 + k + 1)}')
        for k in range(2, 32, 2):
            b(f'v_fmac_f32 {v(s2)}, {v(V_ACC0 + k)}, {v(V_ACC0 + k)}')
            b(f'v_fmac_f32 {v(t + 1)}, {v(V_ACC0 + k + 1)}, {v(V_ACC0 + k + 1)}')
        with b.atomic():
            b(f'v_add_f32 {v(s1)}, {v(s1)}, {v(t)}')
            b(f'v_add_f32 {v(s2)}, {v(s2)}, {v(t + 1)}')
            b(f'v_permlane32_swap_b32 {v(s1)}, {v(s2)}')
            b(f'v_add_f32 {v(s1)}, {v(s1)}, {v(s2)}')
            b(f'v_mov_b32 {v(s2)}, {s(S_N)}')
            b(f's_mul_i32 {s(S_T0)}, {s(S_TB)}, 5632')
            b(f's_lshl_b32 {s(S_T1)}, {s(S_CG)}, 9')
            b(f's_add_u32 {s(S_T0)}, {s(S_T0)}, {s(S_T1)}')
            b(f's_add_u32 {s(S_T0)}, {s(S_T0)}, {WS_STATS}')
            b(f'buffer_store_dwordx2 {v(s1, 2)}, {v(V_L8)}, {s(SRD_WS, 4)}, {s(S_T0)} offen sc1', tag='st')
        stamp(b, 2)

    def stats_issue(self, b):
        with b.atomic():
            b(f's_mul_i32 {s(S_T5)}, {s(S_TB)}, 5632')
            b(f's_add_u32 {s(S_T5)}, {s(S_T5)}, {WS_STATS}')
            b(f's_add_u32 {s(S_T4)}, {s(S_T5)}, 4096')
            for js in range(11):
                so = S_T5 if js < 8 else S_T4
                off = 512 * js if js < 8 else 512 * js - 4096
                b(f'buffer_load_dwordx2 {v(V_STAT + 2 * js, 2)}, {v(V_L8)}, {s(SRD_WS, 4)}, {s(so)} offen offset:{off} sc1')

    def stats_check_code(self, b):
        t = V_TMP
        b(f'v_min3_u32 {v(t)}, {v(V_STAT + 1)}, {v(V_STAT + 3)}, {v(V_STAT + 5)}')
        b(f'v_max3_u32 {v(t + 1)}, {v(V_STAT + 1)}, {v(V_STAT + 3)}, {v(V_STAT + 5)}')
        for js in range(3, 11, 2):
            b(f'v_min3_u32 {v(t)}, {v(t)}, {v(V_STAT + 2 * js + 1)}, {v(V_STAT + 2 * js + 3)}')
            b(f'v_max3_u32 {v(t + 1)}, {v(t + 1)}, {v(V_STAT + 2 * js + 1)}, {v(V_STAT + 2 * js + 3)}')
        b(f'v_xor_b32 {v(t)}, {s(S_N)}, {v(t)}')
        b(f'v_xor_b32 {v(t + 1)}, {s(S_N)}, {v(t + 1)}')
        b(f'v_or_b32 {v(t)}, {v(t)}, {v(t + 1)}')
        b(f'v_cmp_ne_u32 vcc, 0, {v(t)}')

    def z2_norm(self, b):
        cont, slow = self.lab('ZC'), self.lab('ZS')
        with b.atomic():
            self.stats_check_code(b)
            b(f's_cbranch_vccnz {slow}')
            b.label(cont)
        sb = Block('tmp')
        sb(f's_sleep 1')
        sb(f's_mul_i32 {s(S_T5)}, {s(S_TB)}, 5632')
        sb(f's_add_u32 {s(S_T5)}, {s(S_T5)}, {WS_STATS}')
        sb(f's_add_u32 {s(S_T4)}, {s(S_T5)}, 4096')
        for js in range(11):
            so = S_T5 if js < 8 else S_T4
            off = 512 * js if js < 8 else 512 * js - 4096
            sb(f'buffer_load_dwordx2 {v(V_STAT + 2 * js, 2)}, {v(V_L8)}, {s(SRD_WS, 4)}, {s(so)} offen offset:{off} sc1')
        sb('s_waitcnt vmcnt(0)')
        self.stats_check_code(sb)
        txt = '\n'.join('    ' + i.text for i in sb.ins)
        self.slow.append(f'''{slow}:
    s_mov_b32 {s(S_CNT)}, {SPIN_MAX}
{slow}_l:
{txt}
    s_cbranch_vccz {cont}
    s_sub_u32 {s(S_CNT)}, {s(S_CNT)}, 1
    s_cmp_lg_u32 {s(S_CNT)}, 0
    s_cbranch_scc1 {slow}_l
    s_branch {cont}''')
        t = V_TMP
        b(f'v_add_f32 {v(t)}, {v(V_STAT)}, {v(V_STAT + 2)}')
        b(f'v_add_f32 {v(t + 1)}, {v(V_STAT + 4)}, {v(V_STAT + 6)}')
        for js in range(4, 11, 2):
            b(f'v_add_f32 {v(t)}, {v(t)}, {v(V_STAT + 2 * js)}')
            if js + 1 < 11:
                b(f'v_add_f32 {v(t + 1)}, {v(t + 1)}, {v(V_STAT + 2 * js + 2)}')
        b(f'v_add_f32 {v(t)}, {v(t)}, {v(t + 1)}')
        b(f'v_mov_b32 {v(t + 1)}, {v(t)}')
        b(f'v_permlane32_swap_b32 {v(t)}, {v(t + 1)}')
        b(f'v_mul_f32 {v(t)}, {hex(f2u(1.0 / 688))}, {v(t)}')
        b(f'v_mul_f32 {v(t + 1)}, {hex(f2u(1.0 / 688))}, {v(t + 1)}')
        b(f'v_fma_f32 {v(t + 1)}, -{v(t)}, {v(t)}, {v(t + 1)}')
        b(f'v_max_f32 {v(t + 1)}, 0, {v(t + 1)}')
        b(f'v_add_f32 {v(t + 1)}, {hex(f2u(1e-5))}, {v(t + 1)}')
        b(f'v_rsq_f32 {v(t + 1)}, {v(t + 1)}')
        b(f'v_mul_f32 {v(t)}, {v(t)}, {v(t + 1)}')
        b(f'v_sub_f32 {v(t)}, 0, {v(t)}')
        w0 = t + 2
        r0 = t + 6
        with b.atomic():
            b(f's_lshl_b32 {s(S_T0)}, {s(S_W)}, 13')
            b(f's_add_u32 {s(S_T0)}, {s(S_T0)}, {R1}')
            b(f'v_and_b32 {v(w0)}, 31, {v(V_LANE)}')
            b(f'v_lshrrev_b32 {v(w0 + 1)}, 5, {v(V_LANE)}')
            b(f'v_and_b32 {v(w0 + 2)}, 15, {v(V_LANE)}')
            b(f'v_xor_b32 {v(w0 + 1)}, {v(w0 + 1)}, {v(w0 + 2)}')
            b(f'v_lshlrev_b32 {v(w0 + 1)}, 3, {v(w0 + 1)}')
            b(f'v_lshl_add_u32 {v(w0)}, {v(w0)}, 7, {v(w0 + 1)}')
            b(f'v_add_u32 {v(w0)}, {s(S_T0)}, {v(w0)}')
            b(f'v_bfe_u32 {v(r0)}, {v(V_LANE)}, 2, 2')
            b(f'v_lshrrev_b32 {v(r0 + 1)}, 5, {v(V_LANE)}')
            b(f'v_lshl_add_u32 {v(r0)}, {v(r0 + 1)}, 3, {v(r0)}')
            b(f'v_bfe_u32 {v(r0 + 1)}, {v(V_LANE)}, 4, 1')
            b(f'v_and_b32 {v(r0 + 2)}, 3, {v(V_LANE)}')
            b(f'v_lshl_add_u32 {v(r0 + 1)}, {v(r0 + 1)}, 2, {v(r0 + 2)}')
            b(f'v_xor_b32 {v(r0 + 1)}, {v(r0 + 1)}, {v(r0)}')
            b(f'v_lshlrev_b32 {v(r0 + 1)}, 3, {v(r0 + 1)}')
            b(f'v_lshl_add_u32 {v(r0)}, {v(r0)}, 7, {v(r0 + 1)}')
            b(f'v_add_u32 {v(r0)}, {s(S_T0)}, {v(r0)}')
        ra = r0 + 1
        for bb in range(2):
            for tt in range(2):
                b(f'v_xor_b32 {v(ra + 2 * bb + tt)}, {8 * ((8 * bb) ^ (4 * tt))}, {v(r0)}')
        pk = V_PV
        for bb in range(2):
            for j in range(4):
                r = V_ACC0 + 16 * bb + 4 * j
                for k in range(4):
                    b(f'v_fma_f32 {v(r + k)}, {v(r + k)}, {v(t + 1)}, {v(t)}')
                b(f'v_cvt_pk_bf16_f32 {v(pk + 8 * bb + 2 * j)}, {v(r)}, {v(r + 1)}')
                b(f'v_cvt_pk_bf16_f32 {v(pk + 8 * bb + 2 * j + 1)}, {v(r + 2)}, {v(r + 3)}')
                K = 8 * bb + 2 * j
                if K:
                    b(f'v_xor_b32 {v(w0 + 1)}, {8 * K}, {v(w0)}')
                    ad = w0 + 1
                else:
                    ad = w0
                b(f'ds_write_b64 {v(ad)}, {v(pk + 8 * bb + 2 * j, 2)}')
        b.wait_lds()
        fr = V_TMP + 16
        for bb in range(2):
            for kq in range(2):
                for tt in range(2):
                    b(f'ds_read_b64_tr_b16 {v(fr + 8 * bb + 4 * kq + 2 * tt, 2)}, {v(ra + 2 * bb + tt)} offset:{512 * tt + 2048 * kq}')
        with b.atomic():
            b(f's_lshl_b32 {s(S_T0)}, {s(S_CG)}, 18')
            b(f's_lshl_b32 {s(S_T1)}, {s(S_TB)}, 11')
            b(f's_add_u32 {s(S_T0)}, {s(S_T0)}, {s(S_T1)}')
            b(f's_add_u32 {s(S_T0)}, {s(S_T0)}, {WS_Z2N}')
            b(f's_add_u32 {s(S_T1)}, {s(S_T0)}, {128 * 1024}')
            for bb in range(2):
                for kq in range(2):
                    so = S_T0 if bb == 0 else S_T1
                    b(f'buffer_store_dwordx4 {v(fr + 8 * bb + 4 * kq, 4)}, {v(V_L16)}, {s(SRD_WS, 4)}, {s(so)} offen offset:{1024 * kq} sc1', tag='z2n')
        stamp(b, 3)

    def flag_store(self, b, base, tagwait):
        b.wait_vm(tagwait)
        with b.atomic():
            b(f's_lshl4_add_u32 {s(S_T0)}, {s(S_RB)}, {s(S_CG)}')
            b(f's_lshl2_add_u32 {s(S_T0)}, {s(S_T0)}, {s(S_W)}')
            b(f's_lshl_b32 {s(S_T0)}, {s(S_T0)}, 6')
            b(f's_add_u32 {s(S_T0)}, {s(S_T0)}, {base}')
            b(f'v_mov_b32 {v(V_POLL)}, {s(S_N)}')
            b(f'buffer_store_dword {v(V_POLL)}, off, {s(SRD_WS, 4)}, {s(S_T0)} sc1', tag='flag')

    def t_epilogue(self, b, kind, acc):
        out = V_PV
        for g in range(4):
            xs = [acc + 8 * g + k for k in range(8)]
            if kind == 'gelu':
                gelu_group(b, xs, V_TMP)
            else:
                phi_group(b, xs, V_TMP)
            for k in range(4):
                b(f'v_cvt_pk_bf16_f32 {v(out + 4 * g + k)}, {v(xs[2 * k])}, {v(xs[2 * k + 1])}')
            so = S_O0 if g < 2 else S_O1
            b(f'buffer_store_dwordx4 {v(out + 4 * g, 4)}, {v(V_L16)}, {s(SRD_WS, 4)}, {s(so)} offen offset:{1024 * (g & 1)} sc1', tag='p1')

    def set_out_addr(self, b, kind, slab_code, arrangement):
        with b.atomic():
            for l in slab_code:
                b(l)
            base, stride = (WS_PQ, 32768) if kind == 'q' else (WS_Z1F, 45056)
            b(f's_lshl_b32 {s(S_T4)}, {s(S_T4)}, 12')
            b(f's_add_u32 {s(S_T4)}, {s(S_T4)}, {base}')
            b(f's_mul_i32 {s(S_O0)}, {s(S_TB)}, {stride}')
            b(f's_add_u32 {s(S_O0)}, {s(S_O0)}, {s(S_T4)}')
            if arrangement == 'R':
                b(f's_add_u32 {s(S_O1)}, {s(S_O0)}, 2048')
            else:
                b(f's_and_b32 {s(S_T3)}, {s(S_W)}, 1')
                b(f's_lshl_b32 {s(S_T3)}, {s(S_T3)}, 11')
                b(f's_add_u32 {s(S_O0)}, {s(S_O0)}, {s(S_T3)}')
                b(f's_xor_b32 {s(S_T2)}, {s(S_TB)}, 1')
                b(f's_mul_i32 {s(S_O1)}, {s(S_T2)}, {stride}')
                b(f's_add_u32 {s(S_O1)}, {s(S_O1)}, {s(S_T4)}')
                b(f's_add_u32 {s(S_O1)}, {s(S_O1)}, {s(S_T3)}')

    def k_epilogue(self, b):
        for g in range(4):
            xs = [V_ACC1 + 8 * g + k for k in range(8)]
            phi_group(b, xs, V_TMP)
            for k in range(4):
                b(f'v_cvt_pk_bf16_f32 {v(V_PK + 4 * g + k)}, {v(xs[2 * k])}, {v(xs[2 * k + 1])}')

    def v_epilogue(self, b):
        for k in range(16):
            b(f'v_cvt_pk_bf16_f32 {v(V_PV + k)}, {v(V_ACC1 + 2 * k)}, {v(V_ACC1 + 2 * k + 1)}')
        ones = V_TMP
        for k in range(4):
            b(f'v_mov_b32 {v(ones + k)}, 0x3f803f80')
        kv, zz = V_KV, V_KV + 16
        for g in range(4):
            c0 = '0' if g == 0 else v(kv, 16)
            c1 = '0' if g == 0 else v(zz, 16)
            b(f'v_mfma_f32_32x32x16_bf16 {v(kv, 16)}, {v(V_PK + 4 * g, 4)}, {v(V_PV + 4 * g, 4)}, {c0}')
            b(f'v_mfma_f32_32x32x16_bf16 {v(zz, 16)}, {v(V_PK + 4 * g, 4)}, {v(ones, 4)}, {c1}')
        return kv, zz

    def kv_finish(self, b):
        kv, zz = V_KV, V_KV + 16
        with b.atomic():
            b(f'v_and_b32 {v(V_T0)}, 31, {v(V_LANE)}')
            b(f'v_cmp_gt_u32 vcc, 16, {v(V_T0)}')
            for k in range(8):
                b(f'v_cndmask_b32 {v(kv + k)}, {v(zz + k)}, {v(kv + k)}, vcc')
            for k in range(8, 16):
                b(f'v_cndmask_b32 {v(kv + k)}, {v(kv + k)}, {v(zz + k)}, vcc')
            b('s_barrier')
            b(f's_and_b32 {s(S_T0)}, {s(S_W)}, 1')
            b(f's_lshl_b32 {s(S_T0)}, {s(S_T0)}, 12')
            b(f's_add_u32 {s(S_T0)}, {s(S_T0)}, {R2}')
            b(f'v_add_u32 {v(V_T0)}, {s(S_T0)}, {v(V_L16)}')
            skip = self.lab('KV')
            b(f's_cmp_lt_u32 {s(S_W)}, 2')
            b(f's_cbranch_scc1 {skip}')
            for q in range(4):
                b(f'ds_write_b128 {v(V_T0)}, {v(kv + 4 * q, 4)} offset:{1024 * q}')
            b.label(skip)
            b.wait_lds()
            b('s_barrier')
            for q in range(4):
                b(f'ds_read_b128 {v(zz + 4 * q, 4)}, {v(V_T0)} offset:{1024 * q}')
            for k in range(16):
                b(f'v_add_f32 {v(kv + k)}, {v(kv + k)}, {v(zz + k)}')
            b(f's_mov_b32 {s(SRD_T)}, {s(SRD_WS)}')
            b(f's_mov_b32 {s(SRD_T + 1)}, {s(SRD_WS + 1)}')
            b(f's_cmp_lt_u32 {s(S_W)}, 2')
            b(f's_cselect_b32 {s(SRD_T + 2)}, {hex(WS_SIZE)}, 0')
            b(f's_mov_b32 {s(SRD_T + 3)}, 0x20000')
            b(f's_and_b32 {s(S_T0)}, {s(S_W)}, 1')
            b(f's_lshl_b32 {s(S_T0)}, {s(S_T0)}, 1')
            b(f's_lshl2_add_u32 {s(S_T0)}, {s(S_CG)}, {s(S_T0)}')
            b(f's_lshl_b32 {s(S_T0)}, {s(S_T0)}, 15')
            b(f's_lshl_b32 {s(S_T1)}, {s(S_RB)}, 10')
            b(f's_add_u32 {s(S_T0)}, {s(S_T0)}, {s(S_T1)}')
            b(f's_add_u32 {s(S_T0)}, {s(S_T0)}, {WS_KVP}')
            for q in range(4):
                if q:
                    b(f's_add_u32 {s(S_T0)}, {s(S_T0)}, 16384')
                b(f'buffer_store_dwordx4 {v(kv + 4 * q, 4)}, {v(V_L16)}, {s(SRD_T, 4)}, {s(S_T0)} offen sc1', tag='p1')

    def after_slab2(self, b):
        b.flush()
        b('s_barrier')
        self.switch_slab(b, S_D3SEL, S_D3COL, S_D3MASK)
        for p in range(8):
            b.add(w_piece_items(p, R2, 'w3'))

    def pre_slab(self, b, tag):
        b.flush()
        b.wait_vm(tag)
        b('s_barrier')

    def a_tail(self, b, first, issued):
        b.flush()
        for c in range(first, 8):
            b.wait_vm(f'a{c}')
            a_chunk_read(b, c)
            if c + 3 <= 7 and c + 3 > issued:
                b.wait_lds()
                b.add(a_chunk_items(c + 3))
                b.flush()
        b.wait_lds()

    def g_pass(self, b):
        ga = V_T0 + 4
        b.wait_vm('gw')
        with b.atomic():
            b(f'v_lshrrev_b32 {v(ga)}, 5, {v(V_LANE)}')
            b(f'v_lshlrev_b32 {v(ga)}, 4, {v(ga)}')
            b(f's_lshl_b32 {s(S_T0)}, {s(S_W)}, 10')
            b(f's_add_u32 {s(S_T0)}, {s(S_T0)}, {R2}')
            b(f'v_add_u32 {v(ga)}, {s(S_T0)}, {v(ga)}')
        acc = V_ACC1
        sv = b.period
        b.period = 0
        mv = {4: 0, 8: 1, 12: 2}
        for K in range(32):
            wf = V_WF + 4 * (K & 3)
            if K == 0:
                for k2 in range(3):
                    b(f'ds_read_b128 {v(V_WF + 4 * k2, 4)}, {v(ga)} offset:{32 * k2}')
            if K + 3 < 32:
                b(f'ds_read_b128 {v(V_WF + 4 * ((K + 3) & 3), 4)}, {v(ga)} offset:{32 * (K + 3)}')
            b(f'v_mfma_f32_32x32x16_bf16 {v(acc, 16)}, {v(wf, 4)}, {a(8 * K, 4)}, {"0" if K == 0 else v(acc, 16)}')
            if K in mv:
                b.ensure(f'a{mv[K]}')
                b.wait_vm(f'a{mv[K]}')
                a_chunk_read(b, mv[K])
            if K - 1 in mv:
                b('s_waitcnt lgkmcnt(1)')
                b.add(a_chunk_items(mv[K - 1] + 3))
            b.pop(1)
        b.period = sv
        t = V_TMP
        b(f'v_mul_f32 {v(t)}, {hex(f2u(-LOG2E))}, {v(acc)}')
        b(f'v_exp_f32 {v(t)}, {v(t)}')
        b(f'v_add_f32 {v(t)}, 1.0, {v(t)}')
        b(f'v_rcp_f32 {v(t)}, {v(t)}')
        with b.atomic():
            b(f'v_and_b32 {v(t + 1)}, 31, {v(V_LANE)}')
            b(f'v_lshlrev_b32 {v(t + 1)}, 2, {v(t + 1)}')
            b(f's_lshl_b32 {s(S_T0)}, {s(S_TB)}, 7')
            b(f's_add_u32 {s(S_T0)}, {s(S_T0)}, {WS_GATE}')
            b(f'buffer_store_dword {v(t)}, {v(t + 1)}, {s(SRD_WS, 4)}, {s(S_T0)} offen sc1', tag='p1')

    def role_AB(self, role):
        b = St(self, 'ROLE' + role)
        b.label('L_role' + role)
        b.add(self.post_l1(b, role))
        b.period = 12
        self.z2_epilogue(b)
        self.pre_slab(b, 'w2')
        self.set_wr(b)
        stamp(b, 16)
        orient = 'N' if role == 'A' else 'T'
        b.add(a_chunk_items(1))
        self.main_loop(b, orient, False)
        stamp(b, 17)
        self.after_slab2(b)
        self.stats_issue(b)
        b.period = 10
        if role == 'A':
            self.k_epilogue(b)
        else:
            self.set_out_addr(b, 'q', [f's_sub_u32 {s(S_T4)}, {s(S_CG)}, 8'], 'N')
            self.t_epilogue(b, 'phi', V_ACC1)
        stamp(b, 18)
        self.z2_norm(b)
        b.add(a_chunk_items(2))
        self.pre_slab(b, 'w3')
        stamp(b, 20)
        hooks = {22: lambda bb: self.flag_store(bb, WS_FZ2, 'z2n')}
        self.main_loop(b, orient, True, hooks)
        stamp(b, 21)
        b.period = 8
        s1_issue(self, b)
        if role == 'A':
            self.v_epilogue(b)
            self.kv_finish(b)
        else:
            self.set_out_addr(b, 'z1', [f's_sub_u32 {s(S_T4)}, {s(S_CG)}, 8'], 'N')
            self.t_epilogue(b, 'gelu', V_ACC1)
        stamp(b, 23)
        self.a_tail(b, 6, 7)
        b('s_branch L_p1_done')
        return b.b

    def role_CD(self, role):
        b = St(self, 'ROLE' + role)
        b.label('L_role' + role)
        b.add(self.post_l1(b, role))
        b.period = 8
        self.set_out_addr(b, 'q', [f's_sub_u32 {s(S_T4)}, {s(S_CG)}, 8'], 'R')
        self.t_epilogue(b, 'phi', V_ACC0)
        self.pre_slab(b, 'w2')
        self.set_wr(b)
        b.add(a_chunk_items(1) + a_chunk_items(2))
        self.main_loop(b, 'T', False)
        if role == 'C':
            self.after_slab2(b)
            b.period = 12
            self.set_out_addr(b, 'z1', [f's_lshl_b32 {s(S_T4)}, {s(S_CG)}, 1', f's_sub_u32 {s(S_T4)}, {s(S_T4)}, 19'], 'N')
            self.t_epilogue(b, 'gelu', V_ACC1)
            self.pre_slab(b, 'w3')
            self.main_loop(b, 'T', True)
            b.period = 8
            s1_issue(self, b)
            self.set_out_addr(b, 'z1', [f's_lshl_b32 {s(S_T4)}, {s(S_CG)}, 1', f's_sub_u32 {s(S_T4)}, {s(S_T4)}, 18'], 'N')
            self.t_epilogue(b, 'gelu', V_ACC1)
            self.a_tail(b, 6, 7)
        else:
            b.flush()
            b('s_barrier')
            srd(b, SRD_T, P_GW, 1024)
            b(f's_lshl_b32 {s(S_T0)}, {s(S_W)}, 10')
            b(f's_add_u32 m0, {s(S_T0)}, {R2}')
            b(f's_lshl_b32 {s(S_T0)}, {s(S_ROT)}, 7')
            b(f'v_add_u32 {v(V_T0)}, {s(S_T0)}, {v(V_L16)}')
            b(f'v_and_b32 {v(V_T0)}, 1023, {v(V_T0)}')
            b(f'buffer_load_dwordx4 {v(V_T0)}, {s(SRD_T, 4)}, 0 offen lds', tag='gw')
            self.set_out_addr(b, 'z1', [f's_sub_u32 {s(S_T4)}, {s(S_CG)}, 5'], 'N')
            self.t_epilogue(b, 'gelu', V_ACC1)
            self.g_pass(b)
            s1_issue(self, b)
            self.a_tail(b, 3, 5)
        b('s_branch L_p1_done')
        return b.b

    def build(self):
        P = self.prologue()
        LL = self.slab1(True)
        LP = self.slab1(False)
        A = self.role_AB('A')
        B = self.role_AB('B')
        C = self.role_CD('C')
        D = self.role_CD('D')
        E1 = St(self, 'E1')
        E1.label('L_p1_done')
        stamp(E1, 4)
        from phase23 import emit_phase23
        rest = emit_phase23(self)
        END = self.blk('END')
        END.label('L_END')
        END('s_endpgm')
        P3 = Block('PRO_w3')
        P3.ins = [i for i in P.ins if not i.meta.get('loader')]
        paths = [[P, LL, R, E1.b] + rest + [END] for R in (A, B, C, D)]
        paths += [[P3, LP, R, E1.b] + rest + [END] for R in (A, B, C, D)]
        finalize(self.blocks, paths)

    def text(self):
        out = []
        for b in self.blocks:
            out.append(f'; ---- {b.name}')
            out.append(render(b))
        return '\n'.join(out) + '\n' + '\n'.join(self.slow) + '\n'


HEADER = '''; Fused gated-mix kernel: linear attention + gMLP, single persistent launch (256 workgroups x 256 threads)
; @launch grid=(256,1,1) block=(256,1,1) lds=163840
.amdgcn_target "amdgcn-amd-amdhsa--gfx950"
.text
.globl {k}
.p2align 8
.type {k},@function
{k}:
'''
FOOTER = '''
    s_endpgm
.section .rodata,"a"
.p2align 6
.amdhsa_kernel {k}
  .amdhsa_next_free_vgpr 512
  .amdhsa_next_free_sgpr 102
  .amdhsa_accum_offset 256
  .amdhsa_group_segment_fixed_size 0
  .amdhsa_kernarg_size 96
  .amdhsa_user_sgpr_count 2
  .amdhsa_user_sgpr_kernarg_segment_ptr 1
  .amdhsa_system_sgpr_workgroup_id_x 1
  .amdhsa_float_denorm_mode_32 3
.end_amdhsa_kernel
'''


def generate(**opt):
    OPT.update(opt)
    g = Gen()
    g.build()
    return HEADER.format(k=KNAME) + g.text() + FOOTER.format(k=KNAME)


if __name__ == '__main__':
    opt = {}
    for arg in sys.argv[2:]:
        k, val = arg.split('=')
        opt[k] = int(val) if val.lstrip('-').isdigit() else val
    txt = generate(**opt)
    open(sys.argv[1], 'w').write(txt)
```

```python
import re

REG_RE = re.compile(r'^(v|a|s)(\d+)$|^(v|a|s)\[(\d+):(\d+)\]$')


def parse_reg(tok):
    tok = tok.strip()
    neg = tok.lstrip('-')
    if neg.startswith('abs(') and neg.endswith(')'):
        neg = neg[4:-1]
    if neg.startswith('|') and neg.endswith('|'):
        neg = neg[1:-1]
    m = REG_RE.match(neg)
    if m:
        if m.group(1):
            return [(m.group(1), int(m.group(2)))]
        return [(m.group(3), i) for i in range(int(m.group(4)), int(m.group(5)) + 1)]
    if neg == 'vcc':
        return [('s', 106), ('s', 107)]
    if neg == 'exec':
        return [('s', 126), ('s', 127)]
    if neg == 'm0':
        return [('s', 124)]
    return []


TRANS = ('v_exp_f32', 'v_log_f32', 'v_rcp_f32', 'v_rsq_f32', 'v_sqrt_f32', 'v_sin_f32', 'v_cos_f32')
VCC = [('s', 106), ('s', 107)]
EXEC = [('s', 126), ('s', 127)]
M0 = [('s', 124)]
SCC = [('c', 0)]


class I:
    __slots__ = ('text', 'op', 'ops', 'mods', 'rd', 'wr', 'kind', 'tag', 'waits', 'nops', 'label', 'meta')

    def __init__(self, text, tag=None, meta=None):
        self.text = text
        self.tag = tag
        self.meta = meta or {}
        self.waits = None
        self.nops = 0
        self.label = None
        t = text.split(';')[0].strip()
        if t.endswith(':'):
            self.kind = 'label'
            self.label = t[:-1]
            self.op = ''
            self.rd = []
            self.wr = []
            return
        if t.startswith('.') or t == '':
            self.kind = 'dir'
            self.op = ''
            self.rd = []
            self.wr = []
            return
        parts = t.split(None, 1)
        self.op = parts[0]
        rest = parts[1] if len(parts) > 1 else ''
        ops = []
        depth = 0
        cur = ''
        for ch in rest:
            if ch in '[(':
                depth += 1
            if ch in '])':
                depth -= 1
            if ch == ',' and depth == 0:
                ops.append(cur.strip())
                cur = ''
            else:
                cur += ch
        if cur.strip():
            ops.append(cur.strip())
        mods = []
        if ops:
            last = ops[-1].split()
            ops[-1] = last[0]
            mods = last[1:]
        self.ops = ops
        self.mods = mods
        self.classify()
        if self.meta.get('nodst'):
            self.wr = []

    def classify(self):
        op = self.op
        base = re.sub(r'_e(32|64)$', '', op)
        ops = self.ops
        R = lambda i: parse_reg(ops[i]) if i < len(ops) else []
        rd, wr = [], []
        allr = lambda a, b=None: [r for i in range(a, len(ops) if b is None else b) for r in R(i)]
        if op.startswith('v_mfma'):
            self.kind = 'mfma'
            wr = R(0)
            rd = allr(1)
            self.meta['srcc'] = R(3)
            self.meta['srcab'] = R(1) + R(2)
        elif op.startswith('v_'):
            self.kind = 'trans' if base in TRANS else 'valu'
            if base.startswith('v_cmp'):
                wr = R(0)
                rd = allr(1)
            elif base in ('v_readfirstlane_b32', 'v_readlane_b32'):
                wr = R(0)
                rd = allr(1)
                self.meta['readlane'] = True
            elif base in ('v_permlane32_swap_b32', 'v_permlane16_swap_b32'):
                wr = R(0) + R(1)
                rd = R(0) + R(1)
                self.meta['permlane'] = True
            elif base in ('v_fmac_f32', 'v_mac_f32', 'v_dot2c_f32_bf16'):
                wr = R(0)
                rd = allr(0)
            elif base in ('v_add_co_u32', 'v_sub_co_u32', 'v_addc_co_u32', 'v_subb_co_u32'):
                wr = R(0) + R(1)
                rd = allr(2)
            elif base == 'v_writelane_b32':
                wr = R(0)
                rd = allr(0)
            else:
                wr = R(0)
                rd = allr(1)
                if base == 'v_cndmask_b32' and len(ops) == 3:
                    rd += VCC
            rd += EXEC
        elif op.startswith('ds_'):
            self.kind = 'ds'
            if op.startswith('ds_read') or op.startswith('ds_bpermute') or op.startswith('ds_permute') or op.startswith('ds_swizzle'):
                wr = R(0)
                rd = allr(1)
                self.meta['load'] = True
            else:
                rd = allr(0)
                self.meta['store'] = True
            rd += EXEC
        elif op.startswith('buffer_') or op.startswith('global_'):
            self.kind = 'vmem'
            is_lds = 'lds' in self.mods or '_lds_' in op
            if is_lds:
                rd = allr(0) + M0
                self.meta['dma'] = True
            elif '_load' in op:
                wr = R(0)
                rd = allr(1)
                self.meta['load'] = True
            elif '_atomic' in op and ('sc0' in self.mods):
                wr = R(0)
                rd = allr(0)
                self.meta['load'] = True
            else:
                rd = allr(0)
                self.meta['store'] = True
                if op.startswith('buffer_store'):
                    self.meta['sdata'] = R(0)
                elif op.startswith('global_store'):
                    self.meta['sdata'] = R(1)
                else:
                    self.meta['sdata'] = []
                self.meta['wide'] = ('x4' in op or 'x3' in op)
            rd += EXEC
        elif op.startswith('s_load') or op.startswith('s_buffer_load') or op in ('s_memtime', 's_memrealtime'):
            self.kind = 'smem'
            wr = R(0)
            rd = allr(1)
        elif op == 's_waitcnt':
            self.kind = 'wait'
            vm = lg = None
            m = re.search(r'vmcnt\((\d+)\)', self.text)
            if m:
                vm = int(m.group(1))
            m = re.search(r'lgkmcnt\((\d+)\)', self.text)
            if m:
                lg = int(m.group(1))
            self.meta['vm'] = vm
            self.meta['lg'] = lg
        elif op == 's_nop':
            self.kind = 'nop'
            self.meta['n'] = int(ops[0], 0) + 1
        elif op in ('s_barrier', 's_endpgm', 's_sleep', 's_setprio'):
            self.kind = 'sctl'
        elif op.startswith('s_cbranch') or op in ('s_branch', 's_setpc_b64', 's_call_b64', 's_swappc_b64'):
            self.kind = 'branch'
            if op == 's_call_b64':
                wr = R(0)
            elif op == 's_setpc_b64':
                rd = R(0)
            elif op == 's_swappc_b64':
                wr = R(0)
                rd = R(1)
            elif 'scc' in op:
                rd = SCC
            elif 'vcc' in op:
                rd = VCC
            elif 'exec' in op:
                rd = EXEC
        elif op.startswith('s_cmp') or op.startswith('s_bitcmp'):
            self.kind = 'salu'
            rd = allr(0)
            wr = SCC
        elif op.startswith('s_'):
            self.kind = 'salu'
            wr = R(0)
            rd = allr(1)
            if op in ('s_addk_i32', 's_mulk_i32'):
                rd += R(0)
            if op.startswith('s_cselect') or op.startswith('s_addc') or op.startswith('s_subb'):
                rd += SCC
            if op.startswith('s_cmov'):
                rd += SCC + R(0)
            if op.endswith('saveexec_b64'):
                wr = wr + EXEC
                rd = rd + EXEC
            if not (op.startswith('s_mov') or op.startswith('s_cmov') or op.startswith('s_cselect') or op.startswith('s_getpc') or op.startswith('s_mul_i32') or op.startswith('s_movk')):
                wr = wr + SCC
        else:
            raise ValueError('unknown op ' + self.text)
        self.rd = rd
        self.wr = wr


class Block:
    def __init__(self, name):
        self.name = name
        self.ins = []

    def __call__(self, text, tag=None, **meta):
        for line in text.split('\n'):
            if line.strip() == '':
                continue
            i = I(line.strip(), tag=tag, meta=dict(meta))
            self.ins.append(i)
        return self.ins[-1]

    def label(self, name):
        self.ins.append(I(name + ':'))

    def wait_vm(self, tag):
        i = I('s_nop 0')
        i.kind = 'pseudo'
        i.text = ''
        i.meta = {'wait_tag': tag}
        i.rd = []
        i.wr = []
        self.ins.append(i)

    def wait_lds(self):
        self('s_waitcnt lgkmcnt(0)')

    def raw(self, text):
        i = I('.dir')
        i.text = text
        i.kind = 'raw'
        self.ins.append(i)


def analyse_waits(path):
    vmq = []
    lgq = []

    def need(ins, vm=None, lg=None):
        cur = ins.waits or (None, None)
        a = cur[0] if vm is None else (vm if cur[0] is None else min(cur[0], vm))
        b = cur[1] if lg is None else (lg if cur[1] is None else min(cur[1], lg))
        ins.waits = (a, b)

    def apply(vm, lg):
        nonlocal vmq, lgq
        if vm is not None and len(vmq) > vm:
            vmq = vmq[len(vmq) - vm:] if vm > 0 else []
        if lg is not None and len(lgq) > lg:
            lgq = lgq[len(lgq) - lg:] if lg > 0 else []

    for ins in path:
        if ins.kind in ('label', 'dir', 'raw'):
            continue
        if ins.kind == 'pseudo':
            tag = ins.meta['wait_tag']
            tags = tag if isinstance(tag, (list, tuple)) else [tag]
            last = -1
            for k, e in enumerate(vmq):
                if e['tag'] in tags:
                    last = k
            if last >= 0:
                n = min(len(vmq) - 1 - last, 62)
                need(ins, vm=n)
            if ins.waits:
                apply(*ins.waits)
            continue
        touched = set(ins.rd) | set(ins.wr)
        vm = lg = None
        last = -1
        for k, e in enumerate(vmq):
            if e['dst'] & touched:
                last = k
        if last >= 0:
            vm = min(len(vmq) - 1 - last, 62)
        last = -1
        for k, e in enumerate(lgq):
            if e['dst'] & touched:
                last = k
        if last >= 0:
            if any(e['smem'] for e in lgq):
                lg = 0
            else:
                lg = min(len(lgq) - 1 - last, 14)
        if vm is not None or lg is not None:
            need(ins, vm, lg)
        if ins.waits:
            apply(*ins.waits)
        if ins.kind == 'wait':
            apply(ins.meta['vm'], ins.meta['lg'])
        elif ins.kind == 'vmem':
            if not ins.meta.get('nocount'):
                vmq.append({'dst': set(ins.wr), 'tag': ins.tag})
        elif ins.kind == 'ds':
            lgq.append({'dst': set(ins.wr), 'smem': False})
        elif ins.kind == 'smem':
            lgq.append({'dst': set(ins.wr), 'smem': True})


def isv(r):
    return r[0] in 'va'


def analyse_hazards(path):
    hist = []

    def dist_iter():
        d = 0
        for prev, w in reversed(hist):
            yield prev, d
            d += w
            if d > 24:
                break

    for ins in path:
        if ins.kind in ('label', 'dir', 'raw'):
            continue
        if ins.kind == 'pseudo':
            if ins.waits and (ins.waits[0] is not None or ins.waits[1] is not None):
                hist.append((None, 1))
            continue
        pre = 1 if (ins.waits and (ins.waits[0] is not None or ins.waits[1] is not None)) else 0
        rd, wr = set(ins.rd), set(ins.wr)
        rdv = {r for r in rd if isv(r)}
        wrv = {r for r in wr if isv(r)}
        rds = {r for r in rd if r[0] == 's'}
        req = 0
        is_valu = ins.kind in ('valu', 'trans')
        for prev, d in dist_iter():
            if prev is None:
                continue
            d = d + pre + ins.nops * 0
            pw = set(prev.wr)
            pwv = {r for r in pw if isv(r)}
            pws = {r for r in pw if r[0] == 's'}
            n = 0
            if prev.kind in ('valu', 'trans'):
                if ins.kind == 'mfma' and (pwv & rdv):
                    n = max(n, 2)
                if prev.kind == 'trans' and is_valu and ins.kind != 'trans' and (pwv & rdv):
                    n = max(n, 1)
                if prev.kind == 'trans' and ins.kind == 'trans' and (pwv & rdv):
                    n = max(n, 1)
                if ins.meta.get('permlane') and (pwv & (rdv | wrv)):
                    n = max(n, 2)
                if ins.meta.get('readlane') and (pwv & rdv):
                    n = max(n, 1)
                if is_valu and (pws & rds - set(EXEC)):
                    n = max(n, 2)
                if ins.kind == 'vmem' and (pws & rds):
                    n = max(n, 5)
                if ins.kind in ('salu', 'branch') and (pws & rds):
                    n = max(n, 1)
            if prev.kind == 'mfma':
                if ins.kind == 'mfma':
                    srcc = set(ins.meta['srcc'])
                    ab = set(ins.meta['srcab'])
                    if pwv & ab:
                        n = max(n, 12)
                    if pwv & srcc:
                        if not (srcc == pwv):
                            n = max(n, 10)
                    elif pwv & wrv and not (wrv == pwv):
                        n = max(n, 10)
                else:
                    if pwv & (rdv | wrv):
                        n = max(n, 12)
                    if is_valu and (set(prev.meta['srcc']) & wrv):
                        n = max(n, 7)
            if prev.kind == 'salu' and ins.kind == 'vmem' and ins.meta.get('dma') and (set(M0) & pw):
                n = max(n, 1)
            if prev.kind == 'vmem' and prev.meta.get('store') and prev.meta.get('wide') and (set(prev.meta['sdata']) & wrv):
                n = max(n, 2 if is_valu else 1)
            if n > d:
                req = max(req, n - d)
        ins.nops = max(ins.nops, req)
        if ins.nops:
            hist.append((None, ins.nops))
        if pre:
            hist.append((None, 1))
        w = ins.meta['n'] if ins.kind == 'nop' else 1
        hist.append((ins, w))
        if len(hist) > 64:
            hist = hist[-64:]


def render(block):
    out = []
    for ins in block.ins:
        if ins.kind == 'raw':
            out.append(ins.text)
            continue
        if ins.kind == 'label':
            out.append(ins.text)
            continue
        w = ins.waits
        pre = []
        n = ins.nops
        while n > 0:
            k = min(n, 16)
            pre.append(f'    s_nop {k - 1}')
            n -= k
        if w and (w[0] is not None or w[1] is not None):
            s = '    s_waitcnt'
            if w[0] is not None:
                s += f' vmcnt({w[0]})'
            if w[1] is not None:
                s += f' lgkmcnt({w[1]})'
            pre.append(s)
        out += pre
        if ins.kind != 'pseudo':
            out.append('    ' + ins.text)
    return '\n'.join(out)


def finalize(blocks, paths, iters=3):
    lin = [[i for b in p for i in b.ins] for p in paths]
    for _ in range(iters):
        for l in lin:
            analyse_waits(l)
    for _ in range(iters):
        for l in lin:
            analyse_hazards(l)


def weave(ins, G=5, adv=2):
    M = [i for i in ins if i.kind == 'mfma']
    F = [i for i in ins if i.kind != 'mfma']
    if not M:
        return list(ins)
    vregs = lambda rs: {r for r in rs if r[0] in 'va'}
    posM = {}
    posF = {}
    needF = []
    needM = []
    pM = []
    lastF_w, lastF_r, lastM_w, lastM_r = {}, {}, {}, {}
    nm = nf = 0
    for i in ins:
        rd, wr = vregs(i.rd), vregs(i.wr)
        if i.kind == 'mfma':
            k = 0
            for r in rd | wr:
                k = max(k, lastF_w.get(r, 0))
            for r in wr:
                k = max(k, lastF_r.get(r, 0))
            needF.append(k)
            nm += 1
            for r in wr:
                lastM_w[r] = nm
            for r in rd:
                lastM_r[r] = nm
        else:
            k = 0
            for r in rd | wr:
                k = max(k, lastM_w.get(r, 0))
            for r in wr:
                k = max(k, lastM_r.get(r, 0))
            if i.meta.get('fence'):
                k = nm
            needM.append(k)
            pM.append(nm)
            nf += 1
            for r in wr:
                lastF_w[r] = nf
            for r in rd:
                lastF_r[r] = nf
    out = []
    i = j = cnt = 0
    glue = False
    while i < len(F) or j < len(M):
        canF = i < len(F) and needM[i] <= j
        softF = canF and j >= pM[i] - adv
        canM = j < len(M) and needF[j] <= i and not glue
        if glue and i < len(F):
            assert needM[i] <= j, 'weave: dependency inside a branch shadow'
            f = F[i]
            out.append(f)
            i += 1
            if f.kind == 'label':
                glue = False
            continue
        if canM and (cnt >= G or not softF):
            out.append(M[j])
            j += 1
            cnt = 0
        elif canF:
            f = F[i]
            out.append(f)
            i += 1
            if f.kind not in ('label', 'pseudo', 'dir', 'raw'):
                cnt += 1
            if f.kind == 'branch':
                glue = True
        elif canM:
            out.append(M[j])
            j += 1
            cnt = 0
        else:
            raise RuntimeError('weave deadlock')
    return out
```

```python
from asmlib import *
import gen as G
from gen import (v, a, s, f2u, LOG2E, OOB, stamp, srd, tr_addr, St,
                 WS_FZ2, WS_FP1, WS_FY, WS_FKV, WS_GATE, WS_KVF, WS_KVP, WS_Z2N, WS_Z1F, WS_PQ, WS_Y, WS_SIZE, WS_EPOCH,
                 SRD_X, SRD_W, SRD_WS, SRD_T, SRD_U, S_W, S_WG, S_I, S_J, S_N, S_T0, S_T1, S_T2, S_T3, S_T4, S_T5, S_T6, S_T7,
                 S_ROT, S_RB, S_CG, S_Q0, S_Q1,
                 P_BSP, P_WO, P_WOUT, P_OUT, V_LANE, V_L16, V_L8, V_T0, V_POLL)

S_FB0, S_NBLK = 70, 71
S_BO = 72
S_PART = 73
S_U = 74
S_YO, S_ZO = 75, 76
S_WOB = 77
S_KVO = 78
S_BB = 80
S_FBN = 88
SRD_KV = 44

V_PA = 8
V_PR = 14
V_XW = 16
V_XR = 20
V_BS = 21
V_G0 = 22
V_NG = 26
V_BNG = 27
V_KL = 32
ACC = [64, 96]
RING = 128
D = 12
V_GS = 176
V_X = 192
V_Z1 = 224
V_KS = 236
V_WO = 240
A_PQ, A_KV, A_Y = 0, 64, 96
KVSCR = 38912
PRIV = 40960
XOFF = 22528


def s1_issue(g, b):
    t0, t1 = V_T0, V_T0 + 1
    with b.atomic():
        b(f's_mul_i32 {s(S_FB0)}, {s(S_J)}, 3')
        b(f's_min_u32 {s(S_FB0)}, {s(S_FB0)}, 20')
        b(f's_cmp_lt_u32 {s(S_J)}, 6')
        b(f's_cselect_b32 {s(S_NBLK)}, 3, 2')
        b(f's_mov_b32 {s(S_FBN)}, {s(S_FB0)}')
        b(f's_add_u32 {s(S_FBN + 1)}, {s(S_FB0)}, 1')
        b(f's_add_u32 {s(S_FBN + 2)}, {s(S_FB0)}, {s(S_NBLK)}')
        b(f's_sub_u32 {s(S_FBN + 2)}, {s(S_FBN + 2)}, 1')
        b(f's_lshr_b32 {s(S_T0)}, {s(S_FB0)}, 1')
        b(f's_lshr_b32 {s(S_T1)}, {s(S_FBN + 2)}, 1')
        b(f's_sub_u32 {s(S_T1)}, {s(S_T1)}, {s(S_T0)}')
        b(f'v_bfe_u32 {v(t0)}, {v(V_LANE)}, 3, 2')
        b(f'v_bfe_u32 {v(t1)}, {v(V_LANE)}, 2, 1')
        b(f'v_mul_u32_u24 {v(t1)}, {s(S_T1)}, {v(t1)}')
        b(f'v_lshl_add_u32 {v(t0)}, {v(t0)}, 4, {v(t1)}')
        b(f's_lshl_b32 {s(S_T2)}, {s(S_W)}, 6')
        b(f's_add_u32 {s(S_T2)}, {s(S_T2)}, {s(S_T0)}')
        b(f'v_add_u32 {v(t0)}, {s(S_T2)}, {v(t0)}')
        b(f'v_and_b32 {v(t1)}, 3, {v(V_LANE)}')
        b(f'v_lshl_add_u32 {v(t0)}, {v(t0)}, 2, {v(t1)}')
        b(f'v_lshlrev_b32 {v(V_PA)}, 6, {v(t0)}')
        b(f's_mov_b32 {s(S_T7)}, {WS_FZ2}')
        b(f'buffer_load_dword {v(V_PR)}, {v(V_PA)}, {s(SRD_WS, 4)}, {s(S_T7)} offen sc1')


def emit_phase23(g):
    t0, t1, t2 = V_T0, V_T0 + 1, V_T0 + 2
    b = St(g, 'P2')
    b(f's_mov_b32 {s(S_T7)}, {WS_FZ2}')
    g.poll(b, V_PA, s(S_T7), V_PR, first_issued=True, mark=11)
    stamp(b, 5)
    b(f's_lshl_b32 {s(S_T0)}, {s(S_W)}, 15')
    b(f's_add_u32 {s(S_BB)}, {s(S_T0)}, {WS_Z2N}')

    def bload(b, gi):
        nb, n = gi >> 5, gi & 31
        if n % 4 == 0:
            b(f's_add_u32 {s(S_BO)}, {s(G.S_ROT2)}, {n // 4}')
            b(f's_and_b32 {s(S_BO)}, {s(S_BO)}, 7')
            b(f's_lshl_b32 {s(S_BO)}, {s(S_BO)}, 12')
            b(f's_add_u32 {s(S_BO)}, {s(S_BO)}, {s(S_BB)}')
            b(f's_lshl_b32 {s(S_T4)}, {s(S_FBN + nb)}, 17')
            b(f's_add_u32 {s(S_BO)}, {s(S_BO)}, {s(S_T4)}')
        b(f'buffer_load_dwordx4 {v(RING + 4 * (gi % D), 4)}, {v(V_L16)}, {s(SRD_WS, 4)}, {s(S_BO)} offen offset:{1024 * (n & 3)} sc1')

    for gi in range(D):
        bload(b, gi)
    b(f'v_lshlrev_b32 {v(V_BS)}, 16, {v(G.V_BSP)}')
    b(f's_lshr_b32 {s(S_T0)}, {s(S_I)}, 1')
    b(f's_lshl_b32 {s(S_T0)}, {s(S_T0)}, 12')
    b(f'v_lshlrev_b32 {v(t0)}, 6, {v(V_LANE)}')
    b(f'v_add_u32 {v(V_PA + 1)}, {s(S_T0)}, {v(t0)}')
    b(f's_lshl_b32 {s(S_T0)}, {s(S_W)}, 11')
    b(f'v_add_u32 {v(t0)}, {s(S_T0)}, {v(V_L16)}')
    for d in range(4):
        b(f'v_add_u32 {v(V_XW + d)}, {PRIV * d + XOFF}, {v(t0)}')
    b(f's_mul_i32 {s(S_T0)}, {s(S_W)}, {PRIV}')
    b(f's_add_u32 {s(S_T0)}, {s(S_T0)}, {XOFF}')
    b(f'v_add_u32 {v(V_XR)}, {s(S_T0)}, {v(V_L16)}')
    b(f'v_and_b32 {v(t0)}, 31, {v(V_LANE)}')
    b(f'v_lshlrev_b32 {v(V_PA + 5)}, 2, {v(t0)}')
    b(f's_and_b32 {s(S_T0)}, {s(S_W)}, 1')
    b(f's_lshl1_add_u32 {s(S_T0)}, {s(S_I)}, {s(S_T0)}')
    b(f's_mul_i32 {s(S_T0)}, {s(S_T0)}, 45056')
    b(f's_lshr_b32 {s(S_T1)}, {s(S_W)}, 1')
    b(f's_lshl_b32 {s(S_T1)}, {s(S_T1)}, 10')
    b(f's_add_u32 {s(S_T0)}, {s(S_T0)}, {s(S_T1)}')
    b(f's_add_u32 {s(S_ZO)}, {s(S_T0)}, {WS_Z1F}')
    b(f's_add_u32 {s(S_YO)}, {s(S_T0)}, {WS_Y}')
    b(f's_cmp_ge_u32 {s(S_J)}, 6')
    b('s_cbranch_scc1 L_P2L')
    P2 = b.b

    def xw(nb, k):
        d, q = k >> 1, k & 1
        r = ACC[nb & 1] + 16 * (d & 1) + 8 * (d >> 1)
        return f'ds_write_b128 {v(V_XW + d)}, {v(r + 4 * q, 4)} offset:{8192 * (nb & 1) + 1024 * q}'

    def xr(nb, k):
        src, q = k >> 1, k & 1
        return f'ds_read_b128 {v(V_X + 8 * src + 4 * q, 4)}, {v(V_XR)} offset:{8192 * (nb & 1) + 2048 * src + 1024 * q}'

    def xsum(dst):
        o = []
        for k in range(8):
            o.append(f'v_add_f32 {v(V_X + k)}, {v(V_X + k)}, {v(V_X + 8 + k)}')
        for k in range(8):
            o.append(f'v_add_f32 {v(V_X + 16 + k)}, {v(V_X + 16 + k)}, {v(V_X + 24 + k)}')
        for k in range(8):
            o.append(f'v_add_f32 {v(dst + k)}, {v(V_X + k)}, {v(V_X + 16 + k)}')
        return o

    def ymath(nb, gs):
        o = []
        z = V_Z1 + 4 * nb
        tmp = RING
        for k in range(8):
            o.append(f'v_fma_f32 {v(gs + k)}, {v(gs + k)}, {v(V_NG)}, {v(V_BNG)}')
        for k in range(4):
            o.append(f'v_lshlrev_b32 {v(tmp + 2 * k)}, 16, {v(z + k)}')
            o.append(f'v_and_b32 {v(tmp + 2 * k + 1)}, 0xffff0000, {v(z + k)}')
        for k in range(8):
            o.append(f'v_mul_f32 {v(gs + k)}, {v(gs + k)}, {v(tmp + k)}')
        for k in range(4):
            o.append(f'v_cvt_pk_bf16_f32 {v(z + k)}, {v(gs + 2 * k)}, {v(gs + 2 * k + 1)}')
        return o

    def ystore(b, nb):
        b(f's_lshl_b32 {s(S_T0)}, {s(S_FBN + nb)}, 11')
        b(f's_add_u32 {s(S_T0)}, {s(S_T0)}, {s(S_YO)}')
        b(f'buffer_store_dwordx4 {v(V_Z1 + 4 * nb, 4)}, {v(V_L16)}, {s(SRD_WS, 4)}, {s(S_T0)} offen sc1', tag='y')

    def tail_loads(nblk):
        it = []
        for z in range(nblk):
            it.append([f's_lshl_b32 {s(S_T0)}, {s(S_FBN + z)}, 11',
                       f's_add_u32 {s(S_T0)}, {s(S_T0)}, {s(S_ZO)}',
                       f'buffer_load_dwordx4 {v(V_Z1 + 4 * z, 4)}, {v(V_L16)}, {s(SRD_WS, 4)}, {s(S_T0)} offen sc1'])
        it.append([f's_lshl_b32 {s(S_T0)}, {s(S_I)}, 8',
                   f's_add_u32 {s(S_T0)}, {s(S_T0)}, {WS_GATE}',
                   f'buffer_load_dword {v(V_G0)}, {v(V_PA + 5)}, {s(SRD_WS, 4)}, {s(S_T0)} offen sc1',
                   f'buffer_load_dword {v(V_G0 + 1)}, {v(V_PA + 5)}, {s(SRD_WS, 4)}, {s(S_T0)} offen offset:128 sc1'])
        for hd in range(8):
            for tb in range(2):
                l = []
                if hd % 4 == 0:
                    l = [f's_lshl1_add_u32 {s(S_Q0 + tb)}, {s(S_I)}, {tb}',
                         f's_lshl_b32 {s(S_Q0 + tb)}, {s(S_Q0 + tb)}, 15',
                         f's_lshl_b32 {s(S_T1)}, {s(S_W)}, 13',
                         f's_add_u32 {s(S_Q0 + tb)}, {s(S_Q0 + tb)}, {s(S_T1)}',
                         f's_add_u32 {s(S_Q0 + tb)}, {s(S_Q0 + tb)}, {WS_PQ + 1024 * hd}']
                l.append(f'buffer_load_dwordx4 {a(A_PQ + 4 * (2 * hd + tb), 4)}, {v(V_L16)}, {s(SRD_WS, 4)}, {s(S_Q0 + tb)} offen offset:{1024 * (hd & 3)} sc1')
                it.append(l)
        return it

    def gate_setup():
        return [[f's_and_b32 {s(S_T0)}, {s(S_W)}, 1',
                 f's_cmp_eq_u32 {s(S_T0)}, 0',
                 f's_cselect_b64 vcc, -1, 0',
                 f'v_cndmask_b32 {v(V_NG)}, {v(V_G0 + 1)}, {v(V_G0)}, vcc'],
                f'v_sub_f32 {v(V_NG)}, 1.0, {v(V_NG)}',
                f'v_mul_f32 {v(V_BNG)}, {v(V_BS)}, {v(V_NG)}']

    def emit1(b, x):
        if isinstance(x, list):
            for y in x:
                emit1(b, y)
        elif isinstance(x, tuple):
            b(x[1], tag=x[0])
        else:
            b(x)

    def main_stream(light):
        b = St(g, 'P2L' if light else 'P2H')
        nblk = 2 if light else 3
        NG = 32 * nblk
        if light:
            b.label('L_P2L')
            b(f's_lshl_b32 {s(S_U)}, {s(S_I)}, 1')
            b(f's_and_b32 {s(S_T0)}, {s(S_J)}, 1')
            b(f's_add_u32 {s(S_U)}, {s(S_U)}, {s(S_T0)}')
            b(f's_lshr_b32 {s(S_T0)}, {s(S_U)}, 3')
            b(f'v_lshrrev_b32 {v(t0)}, 2, {v(V_LANE)}')
            b(f'v_lshlrev_b32 {v(t0)}, 4, {v(t0)}')
            b(f'v_add_u32 {v(t0)}, {s(S_T0)}, {v(t0)}')
            b(f'v_and_b32 {v(t1)}, 3, {v(V_LANE)}')
            b(f'v_lshl_add_u32 {v(t0)}, {v(t0)}, 2, {v(t1)}')
            b(f'v_lshlrev_b32 {v(V_PA + 2)}, 6, {v(t0)}')
            b(f's_mov_b32 {s(SRD_KV)}, {s(SRD_WS)}')
            b(f's_mov_b32 {s(SRD_KV + 1)}, {s(SRD_WS + 1)}')
            b(f's_cmp_lt_u32 {s(S_W)}, 2')
            b(f's_cselect_b32 {s(SRD_KV + 2)}, {hex(WS_SIZE)}, 0')
            b(f's_mov_b32 {s(SRD_KV + 3)}, 0x20000')
            b(f's_lshl_b32 {s(S_KVO)}, {s(S_U)}, 14')
            b(f's_and_b32 {s(S_T0)}, {s(S_W)}, 1')
            b(f's_lshl_b32 {s(S_T0)}, {s(S_T0)}, 13')
            b(f's_add_u32 {s(S_KVO)}, {s(S_KVO)}, {s(S_T0)}')
            b(f's_add_u32 {s(S_KVO)}, {s(S_KVO)}, {WS_KVP}')
        fill = []
        items = []

        def drain(n):
            k = 0
            while fill and k < n:
                x = fill.pop(0)
                emit1(b, x)
                k += len(x) if isinstance(x, list) else 1

        n0 = b.mark()
        GP = NG - 36
        GT = NG - D
        for gi in range(NG):
            nb, n = gi >> 5, gi & 31
            acc = ACC[nb & 1]
            for tb in range(2):
                c = '0' if n == 0 else v(acc + 16 * tb, 16)
                b(f'v_mfma_f32_32x32x16_bf16 {v(acc + 16 * tb, 16)}, {v(RING + 4 * (gi % D), 4)}, {a(8 * n + 4 * tb, 4)}, {c}')
            if gi + D < NG:
                bload(b, gi + D)
            if gi == 4:
                g.mv_chunk(b, 3, 'f0')
            if gi == 5:
                b.wait_lds()
                b.add(G.a_chunk_items(6, 'f0'))
            if gi == 10:
                g.mv_chunk(b, 4, 'f1')
            if gi == 11:
                b.wait_lds()
                b.add(G.a_chunk_items(7, 'f1'))
            if gi == 16:
                g.mv_chunk(b, 5, 'f2')
            if gi == 22:
                g.mv_chunk(b, 6, 'f0')
            if gi == 26:
                g.mv_chunk(b, 7, 'f1')
            if gi == 31:
                b.wait_lds()
                b('s_barrier')
            if b.q:
                b.pop(2)
            if gi == GP:
                b(f's_mov_b32 {s(S_T7)}, {WS_FP1}')
                b(f'buffer_load_dword {v(V_PR)}, {v(V_PA + 1)}, {s(SRD_WS, 4)}, {s(S_T7)} offen sc1')
            if light and gi == 20:
                b(f's_mov_b32 {s(S_T7)}, {WS_FP1}')
                b(f'buffer_load_dword {v(V_PR + 1)}, {v(V_PA + 2)}, {s(SRD_WS, 4)}, {s(S_T7)} offen sc1')
            if light and gi == 34:
                b(f's_mov_b32 {s(S_T7)}, {WS_FP1}')
                g.poll(b, V_PA + 2, s(S_T7), V_PR + 1, first_issued=True, mark=13)
                for r in range(8):
                    l = []
                    if r % 4 == 0:
                        l = [f's_add_u32 {s(S_Q0)}, {s(S_KVO)}, {1024 * r}']
                    l.append(f'buffer_load_dwordx4 {v(V_KL + 4 * r, 4)}, {v(V_L16)}, {s(SRD_KV, 4)}, {s(S_Q0)} offen offset:{1024 * (r & 3)} sc1')
                    items.append(l)
            if nb > 0:
                if 2 <= n < 10:
                    b(xw(nb - 1, n - 2))
                if n == 12:
                    b.wait_lds()
                    b('s_barrier')
                if 12 <= n < 20:
                    b(xr(nb - 1, n - 12))
                if n == 21:
                    fill.extend(xsum(V_GS + 8 * (nb - 1)))
            if gi == GT:
                drain(len(fill))
                b(f's_mov_b32 {s(S_T7)}, {WS_FP1}')
                g.poll(b, V_PA + 1, s(S_T7), V_PR, first_issued=True, mark=15)
                items.extend(tail_loads(nblk))
            if light and gi == 60:
                for r in range(0, 8, 2):
                    for k in range(4):
                        fill.append(f'v_add_f32 {v(V_KL + 4 * r + k)}, {v(V_KL + 4 * r + k)}, {v(V_KL + 4 * r + 4 + k)}')
                for k in range(4):
                    fill.append(f'v_add_f32 {v(V_KL + k)}, {v(V_KL + k)}, {v(V_KL + 8 + k)}')
                    fill.append(f'v_add_f32 {v(V_KL + 16 + k)}, {v(V_KL + 16 + k)}, {v(V_KL + 24 + k)}')
                for k in range(4):
                    fill.append(f'v_add_f32 {v(V_KS + k)}, {v(V_KL + k)}, {v(V_KL + 16 + k)}')
            for _ in range(2 if gi >= GT else 1):
                if items:
                    emit1(b, items.pop(0))
            drain(6)
            if gi in (7, 23, 31, 47, 63, 79):
                stamp(b, 24 + (7, 23, 31, 47, 63, 79).index(gi))
        while items:
            emit1(b, items.pop(0))
        drain(len(fill))
        b.weave_from(n0, G=5)
        stamp(b, 6)
        last = nblk - 1
        for k in range(8):
            b(xw(last, k))
        if light:
            b(f's_mul_i32 {s(S_T0)}, {s(S_W)}, {PRIV}')
            b(f's_add_u32 {s(S_T0)}, {s(S_T0)}, {KVSCR}')
            b(f'v_add_u32 {v(t0)}, {s(S_T0)}, {v(V_L16)}')
            b(f'ds_write_b128 {v(t0)}, {v(V_KS, 4)}')
        for x in gate_setup():
            emit1(b, x)
        b.wait_lds()
        b('s_barrier')
        for k in range(8):
            b(xr(last, k))
        if light:
            b(f'v_add_u32 {v(t0)}, {PRIV + KVSCR}, {v(V_L16)}')
            b(f'ds_read_b128 {v(V_KL, 4)}, {v(t0)}')
        for nb in range(last):
            for x in ymath(nb, V_GS + 8 * nb):
                emit1(b, x)
            ystore(b, nb)
        if light:
            for k in range(4):
                b(f'v_add_f32 {v(V_KS + k)}, {v(V_KS + k)}, {v(V_KL + k)}')
            b(f'v_cvt_pk_bf16_f32 {v(V_KS)}, {v(V_KS)}, {v(V_KS + 1)}')
            b(f'v_cvt_pk_bf16_f32 {v(V_KS + 1)}, {v(V_KS + 2)}, {v(V_KS + 3)}')
            b(f's_cmp_eq_u32 {s(S_W)}, 0')
            b(f's_cselect_b32 {s(SRD_KV + 2)}, {hex(WS_SIZE)}, 0')
            b(f's_lshr_b32 {s(S_T0)}, {s(S_U)}, 1')
            b(f's_lshl_b32 {s(S_T0)}, {s(S_T0)}, 10')
            b(f's_and_b32 {s(S_T1)}, {s(S_U)}, 1')
            b(f's_lshl_b32 {s(S_T1)}, {s(S_T1)}, 3')
            b(f's_add_u32 {s(S_T0)}, {s(S_T0)}, {s(S_T1)}')
            b(f's_add_u32 {s(S_T0)}, {s(S_T0)}, {WS_KVF}')
            b(f'buffer_store_dwordx2 {v(V_KS, 2)}, {v(V_L16)}, {s(SRD_KV, 4)}, {s(S_T0)} offen sc1', tag='kvf')
        for x in xsum(V_GS) + ymath(last, V_GS):
            emit1(b, x)
        ystore(b, last)
        stamp(b, 7)
        if light:
            b.wait_vm('kvf')
            b(f's_lshl_b32 {s(S_T0)}, {s(S_U)}, 6')
            b(f's_add_u32 {s(S_T0)}, {s(S_T0)}, {WS_FKV}')
            b(f'v_mov_b32 {v(V_POLL)}, {s(S_N)}')
            b(f'buffer_store_dword {v(V_POLL)}, off, {s(SRD_KV, 4)}, {s(S_T0)} sc1', tag='flag')
            ep = g.lab('EP')
            b(f's_lshl_b32 {s(S_T0)}, {s(S_I)}, 5')
            b(f's_lshl2_add_u32 {s(S_T0)}, {s(S_J)}, {s(S_T0)}')
            b(f's_add_u32 {s(S_T0)}, {s(S_T0)}, {s(S_W)}')
            b(f's_cmp_lg_u32 {s(S_T0)}, {6 * 4 + 3}')
            b(f's_cbranch_scc1 {ep}_end')
            txt = [f'    v_lshlrev_b32 {v(t0)}, 6, {v(V_LANE)}']
            for k in range(16):
                txt.append(f'    s_mov_b32 {s(S_T3)}, {WS_FP1 + 4096 * k}')
                txt.append(f'    buffer_load_dword {v(32 + k)}, {v(t0)}, {s(SRD_WS, 4)}, {s(S_T3)} offen sc1')
            txt = [f'    s_mov_b32 {s(G.S_CNT)}, {G.SPIN_MAX}', f'{ep}:'] + txt + ['    s_waitcnt vmcnt(0)']
            for k in range(16):
                txt.append(f'    v_xor_b32 {v(32 + k)}, {s(S_N)}, {v(32 + k)}')
            for k in range(1, 16, 2):
                hi = 32 + k + 1 if k + 1 < 16 else 32 + k
                txt.append(f'    v_or3_b32 {v(32)}, {v(32)}, {v(32 + k)}, {v(hi)}')
            txt += [f'    v_cmp_ne_u32 vcc, 0, {v(32)}', f'    s_cbranch_vccz {ep}_ok',
                    f'    s_sub_u32 {s(G.S_CNT)}, {s(G.S_CNT)}, 1', f'    s_cmp_lg_u32 {s(G.S_CNT)}, 0', f'    s_cbranch_scc1 {ep}',
                    f'{ep}_ok:', f'    v_mov_b32 {v(V_POLL)}, {s(S_N)}',
                    f'    buffer_store_dword {v(V_POLL)}, off, {s(SRD_WS, 4)}, 0 sc1', f'{ep}_end:']
            b.b.raw('\n'.join(txt))
        else:
            b('s_branch L_P3')
        return b.b

    PH = main_stream(False)
    PL = main_stream(True)

    b = St(g, 'P3')
    b.label('L_P3')
    ACC3 = 64
    T = [224, 240]
    b(f'v_bfe_u32 {v(t0)}, {v(V_LANE)}, 2, 1')
    b(f'v_bfe_u32 {v(t1)}, {v(V_LANE)}, 4, 1')
    b(f'v_xor_b32 {v(t0)}, {v(t0)}, {v(t1)}')
    b(f'v_and_b32 {v(t1)}, 3, {v(V_LANE)}')
    b(f'v_lshlrev_b32 {v(t1)}, 4, {v(t1)}')
    b(f'v_lshl_add_u32 {v(t0)}, {v(t0)}, 6, {v(t1)}')
    b(f'v_lshrrev_b32 {v(t1)}, 3, {v(V_LANE)}')
    b(f'v_lshl_add_u32 {v(t0)}, {v(t1)}, 10, {v(t0)}')
    b(f's_lshl_b32 {s(S_T0)}, {s(S_J)}, 7')
    VW = 28
    b(f'v_add_u32 {v(VW)}, {s(S_T0)}, {v(t0)}')
    b(f'v_add_u32 {v(VW + 1)}, 7168, {v(VW)}')
    b(f's_cmp_eq_u32 {s(S_W)}, 0')
    b(f's_cselect_b32 {s(S_T0)}, {hex(OOB)}, 0')
    b(f'v_add_u32 {v(32)}, {s(S_T0)}, {v(VW)}')
    b(f's_mul_i32 {s(S_WOB)}, {s(S_W)}, {176 * 1024}')
    b(f's_sub_u32 {s(S_WOB)}, {s(S_WOB)}, 16384')
    b(f's_mul_i32 {s(S_PART)}, {s(S_W)}, {PRIV}')
    srd(b, SRD_X, P_WO, 512 * 1024)
    srd(b, SRD_U, P_WOUT, 688 * 1024)

    def wo_items(hd):
        return [[f's_add_u32 m0, {s(S_PART)}, {XOFF + 2048 * hd}',
                 f's_lshl_b32 {s(S_Q0)}, {s(S_W)}, 17',
                 f's_add_u32 {s(S_Q0)}, {s(S_Q0)}, {16384 * hd}',
                 (f'wo{hd}', f'buffer_load_dwordx4 {v(VW)}, {s(SRD_X, 4)}, {s(S_Q0)} offen{G.NT(8)} lds')],
                [(f'wo{hd}', f'buffer_load_dwordx4 {v(VW + 1)}, {s(SRD_X, 4)}, {s(S_Q0)} offen offset:1024{G.NT(8)} lds')]]

    def wout_items():
        it = []
        for i in range(22):
            vo = 32 if i < 2 else VW
            it.append([f's_add_u32 m0, {s(S_PART)}, {1024 * i}',
                       f's_add_u32 {s(S_Q0)}, {s(S_WOB)}, {8192 * i}',
                       f's_max_i32 {s(S_Q0)}, {s(S_Q0)}, 0',
                       ('wout', f'buffer_load_dwordx4 {v(vo)}, {s(SRD_U, 4)}, {s(S_Q0)} offen{G.NT(8)} lds')])
        return it

    b(f'v_and_b32 {v(t0)}, 15, {v(V_LANE)}')
    b(f's_lshl_b32 {s(S_T0)}, {s(S_W)}, 4')
    b(f'v_add_u32 {v(t0)}, {s(S_T0)}, {v(t0)}')
    b(f'v_lshlrev_b32 {v(V_PA + 3)}, 6, {v(t0)}')
    b(f's_mov_b32 {s(S_T7)}, {WS_FKV}')
    b(f'buffer_load_dword {v(V_PR)}, {v(V_PA + 3)}, {s(SRD_WS, 4)}, {s(S_T7)} offen sc1')
    for hd in range(4):
        b.add(wo_items(hd))
    b.flush()
    V_TW = 26
    tr_addr(b, V_TW, True)
    b(f'v_add_u32 {v(V_TW)}, {s(S_PART)}, {v(V_TW)}')
    b(f'v_xor_b32 {v(V_TW + 1)}, 64, {v(V_TW)}')
    b.wait_vm('y')
    b(f's_lshl3_add_u32 {s(S_T0)}, {s(S_I)}, {s(S_J)}')
    b(f's_lshl2_add_u32 {s(S_T0)}, {s(S_T0)}, {s(S_W)}')
    b(f's_lshl_b32 {s(S_T0)}, {s(S_T0)}, 6')
    b(f's_add_u32 {s(S_T0)}, {s(S_T0)}, {WS_FY}')
    b(f'v_mov_b32 {v(V_POLL)}, {s(S_N)}')
    b(f'buffer_store_dword {v(V_POLL)}, off, {s(SRD_WS, 4)}, {s(S_T0)} sc1', tag='flag')
    stamp(b, 8)
    g.poll(b, V_PA + 3, s(S_T7), V_PR, first_issued=True, mark=19)
    stamp(b, 14)
    b(f's_lshl_b32 {s(S_T0)}, {s(S_W)}, 13')
    b(f's_add_u32 {s(S_T0)}, {s(S_T0)}, {WS_KVF}')
    for hd in range(8):
        if hd == 4:
            b(f's_add_u32 {s(S_T0)}, {s(S_T0)}, 4096')
        b(f'buffer_load_dwordx4 {a(A_KV + 4 * hd, 4)}, {v(V_L16)}, {s(SRD_WS, 4)}, {s(S_T0)} offen offset:{1024 * (hd & 3)} sc1')
    for hd in range(4, 8):
        b.add(wo_items(hd))
    b.add(wout_items())
    WFR = 48
    OF = [[8, 12], [16, 4]]
    eps = hex(f2u(1e-6))

    def num(hd):
        for tb in range(2):
            b(f'v_mfma_f32_32x32x16_bf16 {v(T[tb], 16)}, {a(A_KV + 4 * hd, 4)}, {a(A_PQ + 4 * (2 * hd + tb), 4)}, 0')

    def wread(hd):
        st = hd & 1
        b.ensure(f'wo{hd}')
        b.wait_vm(f'wo{hd}')
        for db in range(2):
            for t in range(2):
                b(f'ds_read_b64_tr_b16 {v(WFR + 8 * st + 4 * db + 2 * t, 2)}, {v(V_TW + db)} offset:{XOFF + 2048 * hd + 1024 * t}')

    def post(hd, tb):
        n0, dn = (T[tb], T[tb] + 8) if hd % 2 == 0 else (T[tb] + 8, T[tb])
        b(f'v_add_f32 {v(dn)}, {eps}, {v(dn)}')
        b(f'v_rcp_f32 {v(dn)}, {v(dn)}')
        b(f'v_mul_f32 {v(dn)}, {v(dn)}, {v(V_G0 + tb)}')
        for k in range(8):
            b(f'v_mul_f32 {v(n0 + k)}, {v(n0 + k)}, {v(dn)}')
        of = OF[hd & 1][tb]
        for k in range(4):
            b(f'v_cvt_pk_bf16_f32 {v(of + k)}, {v(n0 + 2 * k)}, {v(n0 + 2 * k + 1)}')

    def outm(hd):
        st = hd & 1
        for tb in range(2):
            for db in range(2):
                acc = ACC3 + 16 * (2 * tb + db)
                c = '0' if hd == 0 else v(acc, 16)
                b(f'v_mfma_f32_32x32x16_bf16 {v(acc, 16)}, {v(WFR + 8 * st + 4 * db, 4)}, {v(OF[st][tb], 4)}, {c}')

    b.period = 10
    n0 = b.mark()
    for hd in range(8):
        num(hd)
        wread(hd)
        if hd > 0:
            outm(hd - 1)
        post(hd, 0)
        post(hd, 1)
        if hd == 5:
            with b.atomic():
                b(f'v_and_b32 {v(t1)}, 31, {v(V_LANE)}')
                b(f's_lshl_b32 {s(S_T0)}, {s(S_I)}, 5')
                b(f'v_add_u32 {v(t1)}, {s(S_T0)}, {v(t1)}')
                b(f'v_lshlrev_b32 {v(20)}, 6, {v(t1)}')
                b(f's_mov_b32 {s(S_T7)}, {WS_FY}')
                b(f'buffer_load_dword {v(21)}, {v(20)}, {s(SRD_WS, 4)}, {s(S_T7)} offen sc1')
    outm(7)
    b.flush()
    b.weave_from(n0, G=6)
    b.period = 0
    stamp(b, 9)
    g.poll(b, 20, s(S_T7), 21, first_issued=True, mark=22)
    stamp(b, 10)
    for n in range(11):
        for tb in range(2):
            if n % 4 == 0:
                b(f's_lshl1_add_u32 {s(S_T0 + tb)}, {s(S_I)}, {tb}')
                b(f's_mul_i32 {s(S_T0 + tb)}, {s(S_T0 + tb)}, 45056')
                b(f's_mul_i32 {s(S_T2)}, {s(S_W)}, {11 * 1024}')
                b(f's_add_u32 {s(S_T0 + tb)}, {s(S_T0 + tb)}, {s(S_T2)}')
                b(f's_add_u32 {s(S_T0 + tb)}, {s(S_T0 + tb)}, {WS_Y + 1024 * n}')
            b(f'buffer_load_dwordx4 {a(A_Y + 8 * n + 4 * tb, 4)}, {v(V_L16)}, {s(SRD_WS, 4)}, {s(S_T0 + tb)} offen offset:{1024 * (n & 3)} sc1')
    b.wait_vm('wout')

    def woutread(n):
        st = n & 1
        for db in range(2):
            for t in range(2):
                b(f'ds_read_b64_tr_b16 {v(WFR + 8 * st + 4 * db + 2 * t, 2)}, {v(V_TW + db)} offset:{2048 * n + 1024 * t}')
    n0 = b.mark()
    woutread(0)
    for n in range(11):
        if n + 1 < 11:
            woutread(n + 1)
        st = n & 1
        for tb in range(2):
            for db in range(2):
                acc = ACC3 + 16 * (2 * tb + db)
                b(f'v_mfma_f32_32x32x16_bf16 {v(acc, 16)}, {v(WFR + 8 * st + 4 * db, 4)}, {a(A_Y + 8 * n + 4 * tb, 4)}, {v(acc, 16)}')
    b.weave_from(n0, G=5)
    b.wait_lds()
    b('s_barrier')
    b(f's_lshl_b32 {s(S_T0)}, {s(S_W)}, 14')
    b(f'v_add_u32 {v(t0)}, {s(S_T0)}, {v(V_L16)}')
    for blk in range(4):
        for j in range(4):
            b(f'ds_write_b128 {v(t0)}, {v(ACC3 + 16 * blk + 4 * j, 4)} offset:{4096 * blk + 1024 * j}')
    srd(b, SRD_T, P_OUT, 2048 * 1024)
    b(f'v_and_b32 {v(t0 + 3)}, 31, {v(V_LANE)}')
    b(f'v_lshlrev_b32 {v(t0 + 3)}, 10, {v(t0 + 3)}')
    b(f'v_lshrrev_b32 {v(t1)}, 5, {v(V_LANE)}')
    b(f'v_lshl_add_u32 {v(t0 + 3)}, {v(t1)}, 4, {v(t0 + 3)}')
    b(f's_lshl_b32 {s(S_T0)}, {s(S_I)}, 16')
    b(f's_lshr_b32 {s(S_T1)}, {s(S_W)}, 1')
    b(f's_lshl_b32 {s(S_T1)}, {s(S_T1)}, 15')
    b(f's_add_u32 {s(S_T0)}, {s(S_T0)}, {s(S_T1)}')
    b(f's_lshl_b32 {s(S_T1)}, {s(S_J)}, 7')
    b(f's_add_u32 {s(S_T0)}, {s(S_T0)}, {s(S_T1)}')
    b(f's_and_b32 {s(S_T1)}, {s(S_W)}, 1')
    b(f's_lshl_b32 {s(S_T1)}, {s(S_T1)}, 6')
    b(f's_add_u32 {s(S_T4)}, {s(S_T0)}, {s(S_T1)}')
    b.wait_lds()
    b('s_barrier')
    b(f's_lshl_b32 {s(S_T0)}, {s(S_W)}, 12')
    b(f'v_add_u32 {v(t0)}, {s(S_T0)}, {v(V_L16)}')
    RB_ = 128
    for src in range(4):
        for j in range(4):
            b(f'ds_read_b128 {v(RB_ + 16 * src + 4 * j, 4)}, {v(t0)} offset:{16384 * src + 1024 * j}')
    for k in range(16):
        b(f'v_add_f32 {v(RB_ + k)}, {v(RB_ + k)}, {v(RB_ + 16 + k)}')
        b(f'v_add_f32 {v(RB_ + 32 + k)}, {v(RB_ + 32 + k)}, {v(RB_ + 48 + k)}')
    for k in range(16):
        b(f'v_add_f32 {v(RB_ + k)}, {v(RB_ + k)}, {v(RB_ + 32 + k)}')
    O = 192
    for k in range(8):
        b(f'v_cvt_pk_bf16_f32 {v(O + k)}, {v(RB_ + 2 * k)}, {v(RB_ + 2 * k + 1)}')
    for jj in range(2):
        b(f'v_permlane32_swap_b32 {v(O + 4 * jj)}, {v(O + 4 * jj + 2)}')
        b(f'v_permlane32_swap_b32 {v(O + 4 * jj + 1)}, {v(O + 4 * jj + 3)}')
    for jj in range(2):
        b(f'buffer_store_dwordx4 {v(O + 4 * jj, 4)}, {v(t0 + 3)}, {s(SRD_T, 4)}, {s(S_T4)} offen offset:{32 * jj}')
    stamp(b, 12)
    return P2, PH, PL, b.b
```

```python
import sys, struct, math
from collections import deque
from asmlib import *

KNAME = 'gated_mix__linear_attn_block__mixer_gmlp__prompt_kernel'
OPT = dict(stamps=0, rot=1, touch=0, late=0)


def v(a, n=1):
    return f'v{a}' if n == 1 else f'v[{a}:{a + n - 1}]'


def a(x, n=1):
    return f'a{x}' if n == 1 else f'a[{x}:{x + n - 1}]'


def s(x, n=1):
    return f's{x}' if n == 1 else f's[{x}:{x + n - 1}]'


WS_EPOCH = 0
WS_FZ2 = 0x10000
WS_FP1 = 0x20000
WS_FY = 0x30000
WS_FKV = 0x40000
WS_GATE = 0x50000
WS_KVF = 0x60000
WS_STATS = 0x80000
WS_KVP = 0x100000
WS_Z2N = 0x200000
WS_Z1F = 0x500000
WS_PQ = 0x800000
WS_Y = 0xB00000
WS_DBG = 0x1000000
WS_SIZE = 0x10000000
NONCE_K = 0x9E3779B1
OOB = 0x40000000
SPIN_MAX = 20000

R0 = 0
R1 = 65536
R2 = 98304
LDS_BYTES = 163840

S_WG = 2
SRD_A = 4
SRD_U = 8
S_Q0, S_Q1 = 12, 13
S_AS = 14
S_ROT = 15
S_ROT2 = 3
P_X, P_WQKV, P_WO, P_BX, P_WIN, P_WSP, P_BSP, P_WOUT = 16, 18, 20, 22, 24, 26, 28, 30
P_GW, P_OUT, P_DBG, P_WS = 32, 34, 36, 38
SRD_X = 40
SRD_W = 44
SRD_WS = 48
SRD_T = 52
S_W = 56
S_RB, S_CG, S_I, S_J = 57, 58, 59, 60
S_N = 61
S_T0, S_T1, S_T2, S_T3, S_T4, S_T5 = 64, 65, 66, 67, 68, 69
S_XL, S_XS, S_WL, S_WSO = 70, 71, 72, 73
S_RS, S_COL, S_MASK = 74, 75, 76
S_O0, S_O1 = 77, 78
S_TB = 79
S_RS64 = 80
S_LOG2E, S_EPS = 82, 83
S_CNT = 86
S_XG, S_XLW, S_WGB = 84, 85, 87
S_KC = 91
S_D2COL, S_D2MASK, S_D2SEL = 88, 89, 90
S_D3COL, S_D3MASK, S_D3SEL = 92, 93, 94
S_T6, S_T7 = 96, 97
S_VCC2 = 98

V_LANE = 0
V_T0 = 1
V_DUM = 7
V_XD = 8
V_WD = 12
V_XRO = 14
V_XRT = 18
V_WR = 22
V_L16 = 24
V_L8 = 25
V_GA = 26
V_NON = 27
V_ST = 28
V_POLL = 30
V_AR = 32
V_E = 36
V_AD = 40
V_TCH = 44
V_BSP = 45
V_TW1, V_TW2 = 46, 47
V_ACC0 = 64
V_ACC1 = 96
V_WF = 128
V_TMP = 160
V_PK = 192
V_PV = 208
V_STAT = 224
V_KV = 64
V_KZ = 224
A_X = 128


def NT(k):
    return ' nt' if OPT.get('nt', 0) & k else ''


def f2u(x):
    return struct.unpack('<I', struct.pack('<f', x))[0]


LOG2E = 1.4426950408889634
GELU_A_F = -2.0 * LOG2E * math.sqrt(2.0 / math.pi)
GELU_A = f2u(GELU_A_F)
GELU_B = f2u(GELU_A_F * 0.044715)


class St:
    def __init__(self, g, name):
        self.g = g
        self.b = g.blk(name)
        self.q = deque()
        self.period = 0
        self.cnt = 0
        self.lock = 0

    def __call__(self, text, tag=None, **meta):
        r = self.b(text, tag=tag, **meta)
        if self.period and not self.lock and self.q:
            self.cnt += 1
            if self.cnt >= self.period:
                self.pop()
        return r

    def pop(self, n=1):
        for _ in range(n):
            if not self.q:
                return
            item = self.q.popleft()
            for x in item:
                if isinstance(x, tuple):
                    self.b(x[1], tag=x[0], **(x[2] if len(x) > 2 else {}))
                else:
                    self.b(x)
        self.cnt = 0

    def add(self, items):
        self.q.extend(items)

    def flush(self):
        self.pop(len(self.q))

    def ensure(self, tag):
        def has(item):
            return any(isinstance(x, tuple) and x[0] == tag for x in item)
        while any(has(i) for i in self.q):
            self.pop(1)

    def label(self, n):
        self.b.label(n)

    def mark(self):
        return len(self.b.ins)

    def weave_from(self, n0, G=5, adv=2):
        if OPT.get('weave', 1):
            self.b.ins[n0:] = weave(self.b.ins[n0:], G, adv)

    def wait_vm(self, t):
        self.b.wait_vm(t)

    def wait_lds(self):
        self.b.wait_lds()

    class _L:
        def __init__(self, st):
            self.st = st

        def __enter__(self):
            self.st.lock += 1

        def __exit__(self, *a):
            self.st.lock -= 1

    def atomic(self):
        return St._L(self)


def gelu_group(b, xs, tmp):
    n = len(xs)
    for k in range(n):
        b(f'v_mul_f32 {v(tmp + k)}, {v(xs[k])}, {v(xs[k])}')
    for k in range(n):
        b(f'v_fmamk_f32 {v(tmp + k)}, {v(tmp + k)}, {hex(GELU_B)}, {v(V_GA)}')
    for k in range(n):
        b(f'v_mul_f32 {v(tmp + k)}, {v(tmp + k)}, {v(xs[k])}')
    for k in range(n):
        b(f'v_exp_f32 {v(tmp + k)}, {v(tmp + k)}')
    for k in range(n):
        b(f'v_add_f32 {v(tmp + k)}, 1.0, {v(tmp + k)}')
    for k in range(n):
        b(f'v_rcp_f32 {v(tmp + k)}, {v(tmp + k)}')
    for k in range(n):
        b(f'v_mul_f32 {v(xs[k])}, {v(xs[k])}, {v(tmp + k)}')


def phi_group(b, xs, tmp):
    n = len(xs)
    for k in range(n):
        b(f'v_mul_f32 {v(tmp + k)}, {s(S_LOG2E)}, {v(xs[k])}')
    for k in range(n):
        b(f'v_exp_f32_e64 {v(tmp + k)}, {v(tmp + k)} clamp')
    for k in range(n):
        b(f'v_max_f32 {v(xs[k])}, {s(S_EPS)}, {v(xs[k])}')
    for k in range(n):
        b(f'v_add_f32 {v(xs[k])}, {v(xs[k])}, {v(tmp + k)}')


def srd(b, base, ptr, nrec):
    b(f's_mov_b32 {s(base)}, {s(ptr)}')
    b(f's_mov_b32 {s(base + 1)}, {s(ptr + 1)}')
    b(f's_mov_b32 {s(base + 2)}, {hex(nrec)}')
    b(f's_mov_b32 {s(base + 3)}, 0x20000')


def dma4_voffsets(b, dst, RS):
    t0, t1, t2 = V_T0, V_T0 + 1, V_T0 + 2
    b(f'v_lshrrev_b32 {v(t0)}, 3, {v(V_LANE)}')
    b(f'v_and_b32 {v(t1)}, 7, {v(V_LANE)}')
    b(f'v_lshrrev_b32 {v(t2)}, 4, {v(V_LANE)}')
    b(f'v_xor_b32 {v(t1)}, {v(t1)}, {v(t2)}')
    b(f'v_lshlrev_b32 {v(t1)}, 4, {v(t1)}')
    b(f'v_mul_u32_u24 {v(t0)}, {RS}, {v(t0)}')
    b(f'v_add_u32 {v(dst)}, {v(t0)}, {v(t1)}')
    b(f'v_xor_b32 {v(t1)}, 64, {v(t1)}')
    b(f'v_add_u32 {v(t0)}, {v(t0)}, {v(t1)}')
    b(f'v_add_u32 {v(dst + 1)}, {8 * RS - 1024}, {v(t0)}')
    b(f'v_add_u32 {v(dst + 2)}, {16 * RS - 2048}, {v(dst)}')
    b(f'v_add_u32 {v(dst + 3)}, {24 * RS - 3072}, {v(t0)}')


def frag_read_addrs(b, dst):
    t0, t1, t2 = V_T0, V_T0 + 1, V_T0 + 2
    b(f'v_and_b32 {v(t0)}, 31, {v(V_LANE)}')
    b(f'v_lshrrev_b32 {v(t1)}, 5, {v(V_LANE)}')
    b(f'v_bfe_u32 {v(t2)}, {v(V_LANE)}, 1, 3')
    b(f'v_xor_b32 {v(t1)}, {v(t1)}, {v(t2)}')
    b(f'v_lshlrev_b32 {v(t1)}, 4, {v(t1)}')
    b(f'v_lshl_add_u32 {v(dst)}, {v(t0)}, 7, {v(t1)}')
    for kk in range(1, 4):
        b(f'v_xor_b32 {v(dst + kk)}, {32 * kk}, {v(dst)}')


def tr_addr(b, dst, pi):
    t0, t1 = V_T0, V_T0 + 1
    b(f'v_bfe_u32 {v(t0)}, {v(V_LANE)}, 2, 2')
    b(f'v_lshrrev_b32 {v(t1)}, 5, {v(V_LANE)}')
    b(f'v_lshl_add_u32 {v(t1)}, {v(t1)}, {2 if pi else 3}, {v(t0)}')
    b(f'v_lshlrev_b32 {v(t1)}, 7, {v(t1)}')
    b(f'v_lshrrev_b32 {v(t0)}, 1, {v(t0)}')
    b(f'v_lshl_add_u32 {v(t1)}, {v(t0)}, 6, {v(t1)}')
    b(f'v_bfe_u32 {v(t0)}, {v(V_LANE)}, 4, 1')
    b(f'v_lshl_add_u32 {v(t1)}, {v(t0)}, 5, {v(t1)}')
    b(f'v_and_b32 {v(t0)}, 3, {v(V_LANE)}')
    b(f'v_lshl_add_u32 {v(dst)}, {v(t0)}, 3, {v(t1)}')


def wd_voffsets(b):
    t0, t1, t2 = V_T0, V_T0 + 1, V_T0 + 2
    b(f'v_bfe_u32 {v(t0)}, {v(V_LANE)}, 2, 1')
    b(f'v_bfe_u32 {v(t1)}, {v(V_LANE)}, 4, 1')
    b(f'v_xor_b32 {v(t0)}, {v(t0)}, {v(t1)}')
    b(f'v_and_b32 {v(t1)}, 3, {v(V_LANE)}')
    b(f'v_lshlrev_b32 {v(t1)}, 4, {v(t1)}')
    b(f'v_lshl_add_u32 {v(t0)}, {v(t0)}, 6, {v(t1)}')
    b(f'v_lshrrev_b32 {v(t1)}, 3, {v(V_LANE)}')
    b(f'v_mul_lo_u32 {v(t1)}, {v(t1)}, {s(S_RS)}')
    b(f'v_add_u32 {v(t1)}, {v(t1)}, {v(t0)}')
    b(f'v_add_u32 {v(V_WD)}, {s(S_COL)}, {v(t1)}')
    b(f's_lshl_b32 {s(S_T0)}, {s(S_RS)}, 3')
    b(f's_sub_u32 {s(S_T0)}, {s(S_T0)}, 1024')
    b(f'v_add_u32 {v(V_WD + 1)}, {s(S_T0)}, {v(V_WD)}')
    b(f'v_mov_b32 {v(t2)}, {hex(OOB)}')
    b(f'v_cmp_gt_u32 vcc, {s(S_MASK)}, {v(t0)}')
    b(f'v_cndmask_b32 {v(V_WD)}, {v(V_WD)}, {v(t2)}, vcc')
    b(f'v_cndmask_b32 {v(V_WD + 1)}, {v(V_WD + 1)}, {v(t2)}, vcc')
    b(f's_lshl_b32 {s(S_RS64)}, {s(S_RS)}, 6')
    b(f's_lshl_b32 {s(S_T0)}, {s(S_RS)}, 4')
    b(f's_mul_i32 {s(S_WSO)}, {s(S_T0)}, {s(S_W)}')


def set_w_srd(b, sel):
    b(f's_cmp_eq_u32 {s(sel)}, 0')
    b(f's_cselect_b32 {s(SRD_W)}, {s(P_WQKV)}, {s(P_WIN)}')
    b(f's_cselect_b32 {s(SRD_W + 1)}, {s(P_WQKV + 1)}, {s(P_WIN + 1)}')
    b(f's_mov_b32 {s(SRD_W + 2)}, {hex(512 * 2752)}')
    b(f's_cmov_b32 {s(SRD_W + 2)}, {hex(512 * 3072)}')
    b(f's_mov_b32 {s(SRD_W + 3)}, 0x20000')


def w_piece_items(p, region, tag):
    return [
        [f's_add_u32 {s(S_Q0)}, {s(S_ROT)}, {p}',
         f's_and_b32 {s(S_Q0)}, {s(S_Q0)}, 7',
         f's_mul_i32 {s(S_Q0)}, {s(S_Q0)}, {s(S_RS64)}',
         f's_add_u32 {s(S_Q0)}, {s(S_Q0)}, {s(S_WSO)}',
         f's_add_u32 m0, {s(S_WL)}, {region + 8192 * p}',
         (tag, f'buffer_load_dwordx4 {v(V_WD)}, {s(SRD_W, 4)}, {s(S_Q0)} offen{NT(2)} lds')],
        [(tag, f'buffer_load_dwordx4 {v(V_WD + 1)}, {s(SRD_W, 4)}, {s(S_Q0)} offen offset:1024{NT(2)} lds')],
    ]


def x_chunk_items(c, tag):
    it = []
    for i in range(4):
        l = []
        if i == 0:
            l = [f's_add_u32 {s(S_Q0)}, {s(S_ROT)}, {c}',
                 f's_and_b32 {s(S_Q0)}, {s(S_Q0)}, 7',
                 f's_lshl_b32 {s(S_Q0)}, {s(S_Q0)}, 7',
                 f's_add_u32 {s(S_Q0)}, {s(S_Q0)}, {s(S_XS)}',
                 f's_add_u32 m0, {s(S_XL)}, {16384 * (c % 4)}']
        l.append((tag, f'buffer_load_dwordx4 {v(V_XD + i)}, {s(SRD_X, 4)}, {s(S_Q0)} offen offset:{1024 * i}{NT(4)} lds'))
        it.append(l)
    return it


def l1_items(c):
    tag = f'x{c}'
    slot = R1 + 16384 * (c % 3)
    it = []
    for m in range(4):
        l = []
        if m == 0:
            l = [f's_add_u32 {s(S_KC)}, {s(S_ROT)}, {c}',
                 f's_and_b32 {s(S_KC)}, {s(S_KC)}, 7',
                 f's_lshl_b32 {s(S_Q0)}, {s(S_KC)}, 7',
                 f's_add_u32 {s(S_Q0)}, {s(S_Q0)}, {s(S_XG)}',
                 f's_add_u32 m0, {s(S_XLW)}, {slot}']
        else:
            l = [f's_add_u32 {s(S_Q0)}, {s(S_Q0)}, 7168']
        l.append((tag, f'buffer_load_dwordx4 {v(V_XD + (m & 1))}, {s(SRD_X, 4)}, {s(S_Q0)} offen offset:{1024 * m} lds'))
        it.append(l)
    it.append([f's_add_u32 {s(S_Q0)}, {s(S_Q0)}, {7168 + 4096}',
               f's_add_u32 m0, {s(S_XLW)}, {slot + 4096}',
               (tag, f'buffer_load_dwordx4 {v(V_XD)}, {s(SRD_X, 4)}, {s(S_Q0)} offen lds')])
    return it


def l1_item5(g, b, c):
    tag = f'x{c}'
    l0, l1 = g.lab('M5'), g.lab('M5')
    b.b(f's_cmp_eq_u32 {s(S_W)}, 0')
    b.b(f's_cbranch_scc0 {l0}')
    b.b(f's_add_u32 {s(S_Q0)}, {s(S_Q0)}, 7168')
    b.b(f'buffer_load_dwordx4 {v(V_XD + 1)}, {s(SRD_X, 4)}, {s(S_Q0)} offen offset:1024 lds', nocount=True)
    b.b(f's_branch {l1}')
    b.b.label(l0)
    b.b(f's_mul_i32 {s(S_Q1)}, {s(S_KC)}, {s(S_RS64)}')
    b.b(f's_sub_u32 {s(S_Q0)}, {s(S_WGB)}, 1')
    b.b(f's_lshl_b32 {s(S_T0)}, {s(S_Q0)}, 10')
    b.b(f's_add_u32 m0, {s(S_T0)}, {R0 + 8192 * c}')
    b.b(f's_lshl_b32 {s(S_T0)}, {s(S_RS)}, 3')
    b.b(f's_mul_i32 {s(S_Q0)}, {s(S_Q0)}, {s(S_T0)}')
    b.b(f's_add_u32 {s(S_Q0)}, {s(S_Q0)}, {s(S_Q1)}')
    b.b(f'buffer_load_dwordx4 {v(V_WD)}, {s(SRD_W, 4)}, {s(S_Q0)} offen lds', tag=tag)
    b.b.label(l1)


def l1_w_items(c):
    tag = f'x{c}'
    return [[f's_mul_i32 {s(S_Q1)}, {s(S_KC)}, {s(S_RS64)}',
             f's_lshl_b32 {s(S_Q0)}, {s(S_WGB)}, 10',
             f's_add_u32 m0, {s(S_Q0)}, {R0 + 8192 * c}',
             f's_lshl_b32 {s(S_Q0)}, {s(S_RS)}, 3',
             f's_mul_i32 {s(S_Q0)}, {s(S_Q0)}, {s(S_WGB)}',
             f's_add_u32 {s(S_Q0)}, {s(S_Q0)}, {s(S_Q1)}',
             (tag, f'buffer_load_dwordx4 {v(V_WD)}, {s(SRD_W, 4)}, {s(S_Q0)} offen lds')],
            [(tag, f'buffer_load_dwordx4 {v(V_WD + 1)}, {s(SRD_W, 4)}, {s(S_Q0)} offen offset:1024 lds')]]


def a_slot(kind):
    return {'h0': (13, R1), 'h1': (13, R1 + 4096), 'f0': (13, R1), 'f1': (14, R2), 'f2': (14, R2 + 8192)}[kind]


def a_piece_items(c, tb, slot, off=0):
    sh, base = a_slot(slot)
    it = []
    for i in range(4):
        l = []
        if i == 0:
            l = [f's_add_u32 {s(S_Q0)}, {s(S_ROT2)}, {c}',
                 f's_and_b32 {s(S_Q0)}, {s(S_Q0)}, 7',
                 f's_lshl_b32 {s(S_Q0)}, {s(S_Q0)}, 7',
                 f's_add_u32 {s(S_Q0)}, {s(S_Q0)}, {s(S_AS)}']
            if tb:
                l.append(f's_add_u32 {s(S_Q0)}, {s(S_Q0)}, {32 * 4096}')
            l += [f's_lshl_b32 {s(S_Q1)}, {s(S_W)}, {sh}',
                  f's_add_u32 m0, {s(S_Q1)}, {base + off}']
        l.append((f'a{c}_{tb}', f'buffer_load_dwordx4 {v(V_AD + i)}, {s(SRD_A, 4)}, {s(S_Q0)} offen offset:{1024 * i}{NT(1)} lds'))
        it.append(l)
    return it


def a_piece_read(b, c, tb, slot, off=0):
    sh, base = a_slot(slot)
    with b.atomic():
        b(f's_lshl_b32 {s(S_T0)}, {s(S_W)}, {sh}')
        b(f's_add_u32 {s(S_T0)}, {s(S_T0)}, {base + off}')
        for kk in range(4):
            b(f'v_add_u32 {v(V_T0 + kk)}, {s(S_T0)}, {v(V_AR + kk)}')
        for kk in range(4):
            r = 8 * (4 * c + kk) + 4 * tb
            b(f'ds_read_b128 {a(r, 4)}, {v(V_T0 + kk)}')


def a_chunk_items(c, slot):
    return a_piece_items(c, 0, slot) + a_piece_items(c, 1, slot, 4096)


def a_chunk_read(b, c, slot):
    sh, base = a_slot(slot)
    with b.atomic():
        b(f's_lshl_b32 {s(S_T0)}, {s(S_W)}, {sh}')
        b(f's_add_u32 {s(S_T0)}, {s(S_T0)}, {base}')
        for kk in range(4):
            b(f'v_add_u32 {v(V_T0 + kk)}, {s(S_T0)}, {v(V_AR + kk)}')
        for kk in range(4):
            for tb in range(2):
                r = 8 * (4 * c + kk) + 4 * tb
                b(f'ds_read_b128 {a(r, 4)}, {v(V_T0 + kk)} offset:{4096 * tb}')


def stamp(b, idx):
    if not OPT['stamps']:
        return
    lock = b.atomic() if hasattr(b, 'atomic') else None
    if lock:
        lock.__enter__()
    b(f's_memrealtime {s(S_VCC2, 2)}' if OPT['stamps'] == 1 else f's_memtime {s(S_VCC2, 2)}')
    b('s_waitcnt lgkmcnt(0)')
    b(f's_lshl_b32 {s(S_T6)}, {s(S_WG)}, 2')
    b(f's_add_u32 {s(S_T6)}, {s(S_T6)}, {s(S_W)}')
    b(f's_lshl_b32 {s(S_T6)}, {s(S_T6)}, 7')
    b(f's_add_u32 {s(S_T6)}, {s(S_T6)}, {WS_DBG + 4 * idx}')
    b(f'v_mov_b32 {v(V_POLL + 1)}, {s(S_VCC2)}')
    b(f'buffer_store_dword {v(V_POLL + 1)}, off, {s(SRD_WS, 4)}, {s(S_T6)}')
    if lock:
        lock.__exit__()


def s1_issue(g, b):
    from phase23 import s1_issue as f
    f(g, b)


def slow_mark(idx):
    if not OPT['stamps']:
        return ''
    return f'''    s_lshl_b32 {s(S_T6)}, {s(S_WG)}, 2
    s_add_u32 {s(S_T6)}, {s(S_T6)}, {s(S_W)}
    s_lshl_b32 {s(S_T6)}, {s(S_T6)}, 7
    s_add_u32 {s(S_T6)}, {s(S_T6)}, {WS_DBG + 4 * idx}
    s_sub_u32 {s(S_VCC2)}, {SPIN_MAX + 1}, {s(S_CNT)}
    v_mov_b32 {v(V_POLL + 1)}, {s(S_VCC2)}
    buffer_store_dword {v(V_POLL + 1)}, off, {s(SRD_WS, 4)}, {s(S_T6)}
'''


class Gen:
    def __init__(self):
        self.blocks = []
        self.slow = []
        self.nlab = 0

    def blk(self, name):
        b = Block(name)
        self.blocks.append(b)
        return b

    def lab(self, p='L'):
        self.nlab += 1
        return f'{p}_{self.nlab}'

    def poll(self, b, vaddr, soff, vtmp, first_issued=False, skip_if_zero=None, mark=31):
        cont = self.lab('PC')
        slow = self.lab('PS')
        lock = b.atomic() if hasattr(b, 'atomic') else None
        if lock:
            lock.__enter__()
        if not first_issued:
            b(f'buffer_load_dword {v(vtmp)}, {v(vaddr)}, {s(SRD_WS, 4)}, {soff} offen sc1')
        b(f'v_cmp_ne_u32 vcc, {s(S_N)}, {v(vtmp)}')
        if skip_if_zero is not None:
            b(f's_cmp_eq_u32 {s(skip_if_zero)}, 0')
            b(f's_cbranch_scc1 {cont}')
        b(f's_cbranch_vccnz {slow}')
        b.label(cont)
        if lock:
            lock.__exit__()
        self.slow.append(f'''{slow}:
    s_mov_b32 {s(S_CNT)}, {SPIN_MAX}
{slow}_l:
    s_sleep 1
    buffer_load_dword {v(vtmp)}, {v(vaddr)}, {s(SRD_WS, 4)}, {soff} offen sc1
    s_waitcnt vmcnt(0)
{slow_mark(mark)}    v_cmp_ne_u32 vcc, {s(S_N)}, {v(vtmp)}
    s_cbranch_vccz {cont}
    s_sub_u32 {s(S_CNT)}, {s(S_CNT)}, 1
    s_cmp_lg_u32 {s(S_CNT)}, 0
    s_cbranch_scc1 {slow}_l
    s_branch {cont}''')

    def prologue(self):
        b = St(self, 'PRO')
        b(f's_cmp_ge_u32 {s(S_WG)}, 256')
        b('s_cbranch_scc1 L_END')
        b('s_load_dwordx16 s[16:31], s[0:1], 0x0')
        b('s_load_dwordx8 s[32:39], s[0:1], 0x40')
        b(f'v_lshrrev_b32 {v(V_T0)}, 6, {v(0)}')
        b(f'v_and_b32 {v(V_LANE)}, 63, {v(0)}')
        b(f's_and_b32 {s(S_T0)}, {s(S_WG)}, 7')
        b(f'v_readfirstlane_b32 {s(S_W)}, {v(V_T0)}')
        b(f's_lshr_b32 {s(S_T1)}, {s(S_WG)}, 3')
        b(f's_lshr_b32 {s(S_T2)}, {s(S_T1)}, 2')
        b(f's_and_b32 {s(S_T1)}, {s(S_T1)}, 3')
        b(f's_and_b32 {s(S_T3)}, {s(S_T0)}, 1')
        b(f's_lshr_b32 {s(S_T0)}, {s(S_T0)}, 1')
        b(f's_lshl3_add_u32 {s(S_RB)}, {s(S_T3)}, {s(S_T2)}')
        b(f's_lshl2_add_u32 {s(S_CG)}, {s(S_T0)}, {s(S_T1)}')
        b(f's_lshl3_add_u32 {s(S_I)}, {s(S_T0)}, {s(S_T2)}')
        b(f's_lshl2_add_u32 {s(S_J)}, {s(S_T3)}, {s(S_T1)}')
        b(f's_lshl1_add_u32 {s(S_ROT)}, {s(S_T1)}, {s(S_T2)}')
        b(f's_and_b32 {s(S_ROT)}, {s(S_ROT)}, 7')
        if OPT.get('map', 1):
            b(f's_and_b32 {s(S_T4)}, {s(S_WG)}, 7')
            b(f's_lshr_b32 {s(S_T5)}, {s(S_WG)}, 6')
            b(f's_lshl2_add_u32 {s(S_I)}, {s(S_T4)}, {s(S_T5)}')
            b(f's_bfe_u32 {s(S_J)}, {s(S_WG)}, 0x30003')
            b(f's_lshl1_add_u32 {s(S_ROT2)}, {s(S_T5)}, {s(S_J)}')
            b(f's_and_b32 {s(S_ROT2)}, {s(S_ROT2)}, 7')
        else:
            b(f's_mov_b32 {s(S_ROT2)}, {s(S_ROT)}')
        if not OPT['rot']:
            b(f's_mov_b32 {s(S_ROT)}, 0')
        b(f'v_lshrrev_b32 {v(V_T0)}, 3, {v(V_LANE)}')
        b(f'v_and_b32 {v(V_T0 + 1)}, 7, {v(V_LANE)}')
        b(f'v_lshrrev_b32 {v(V_T0 + 2)}, 4, {v(V_LANE)}')
        b(f'v_xor_b32 {v(V_T0 + 1)}, {v(V_T0 + 1)}, {v(V_T0 + 2)}')
        b(f'v_lshlrev_b32 {v(V_T0 + 1)}, 4, {v(V_T0 + 1)}')
        b(f's_cmp_eq_u32 {s(S_W)}, 2')
        b(f's_cselect_b32 {s(S_T0)}, 64, 0')
        b(f'v_xor_b32 {v(V_T0 + 1)}, {s(S_T0)}, {v(V_T0 + 1)}')
        b(f'v_lshl_add_u32 {v(V_XD)}, {v(V_T0)}, 10, {v(V_T0 + 1)}')
        b(f'v_xor_b32 {v(V_XD + 1)}, 64, {v(V_XD)}')
        b(f's_mul_i32 {s(S_XLW)}, {s(S_W)}, 6')
        b(f's_cmp_eq_u32 {s(S_W)}, 2')
        b(f's_cselect_b32 {s(S_XLW)}, 11, {s(S_XLW)}')
        b(f's_lshl_b32 {s(S_XG)}, {s(S_XLW)}, 13')
        b(f's_lshl_b32 {s(S_T0)}, {s(S_RB)}, 17')
        b(f's_add_u32 {s(S_XG)}, {s(S_XG)}, {s(S_T0)}')
        b(f's_lshl_b32 {s(S_XLW)}, {s(S_XLW)}, 10')
        b(f's_mul_i32 {s(S_WGB)}, {s(S_W)}, 3')
        b(f's_lshl_b32 {s(S_T0)}, {s(S_CG)}, 7')
        b(f's_add_u32 {s(S_T1)}, {s(S_T0)}, 1344')
        b(f's_sub_u32 {s(S_T2)}, {s(S_T0)}, 1024')
        b(f's_cmp_le_u32 {s(S_CG)}, 10')
        b(f's_cselect_b32 {s(S_COL)}, {s(S_T1)}, {s(S_T2)}')
        b(f's_mov_b32 {s(S_RS)}, 3072')
        b(f's_cmov_b32 {s(S_RS)}, 2752')
        b(f's_cselect_b32 {s(S_T3)}, 1, 0')
        b(f's_cmp_eq_u32 {s(S_CG)}, 0')
        b(f's_cselect_b32 {s(S_MASK)}, 32, 0')
        wd_voffsets(b)
        b(f's_lshl_b32 {s(S_WL)}, {s(S_W)}, 11')
        b(f's_lshl2_add_u32 {s(S_TB)}, {s(S_RB)}, {s(S_W)}')
        b('s_waitcnt lgkmcnt(0)')
        srd(b, SRD_X, P_X, 2048 * 1024)
        set_w_srd(b, S_T3)
        if OPT.get('sym', 1):
            dma4_voffsets(b, V_XD, 1024)
            b(f's_lshl_b32 {s(S_XL)}, {s(S_W)}, 12')
            b(f's_add_u32 {s(S_XL)}, {s(S_XL)}, {R1}')
            b(f's_lshl_b32 {s(S_XS)}, {s(S_TB)}, 15')
            for c in range(3):
                b.add(x_chunk_items(c, f'x{c}'))
                b.add(w_piece_items(c, R0, f'x{c}'))
            b.flush()
        else:
            b(f's_cmp_eq_u32 {s(S_W)}, 3')
            b('s_cbranch_scc1 L_noload0')
            n0 = len(b.b.ins)
            for c in range(2):
                b.add(l1_items(c))
                b.flush()
                l1_item5(self, b, c)
                b.add(l1_w_items(c))
                b.flush()
            for i in b.b.ins[n0:]:
                i.meta['loader'] = True
            b.label('L_noload0')
        srd(b, SRD_WS, P_WS, WS_SIZE)
        b(f'buffer_load_dword {v(V_E)}, off, {s(SRD_WS, 4)}, 0 sc1', tag='epoch')
        stamp(b, 0)
        b(f's_mov_b32 {s(S_LOG2E)}, {hex(f2u(LOG2E))}')
        b(f's_mov_b32 {s(S_EPS)}, {hex(f2u(1e-6))}')
        b(f'v_mov_b32 {v(V_GA)}, {hex(GELU_A)}')
        b(f'v_lshlrev_b32 {v(V_L16)}, 4, {v(V_LANE)}')
        b(f'v_lshlrev_b32 {v(V_L8)}, 3, {v(V_LANE)}')
        frag_read_addrs(b, V_AR)
        b(f's_lshl_b32 {s(S_T0)}, {s(S_W)}, 12')
        b(f's_add_u32 {s(S_T1)}, {s(S_T0)}, {R1}')
        for kk in range(4):
            b(f'v_add_u32 {v(V_XRO + kk)}, {s(S_T1)}, {v(V_AR + kk)}')
        tr_addr(b, V_WR, False)
        b(f'v_xor_b32 {v(V_WR + 1)}, 64, {v(V_WR)}')
        srd(b, SRD_A, P_WSP, 2048 * 4096)
        dma4_voffsets(b, V_AD, 4096)
        b(f'v_lshlrev_b32 {v(V_TCH)}, 7, {v(V_LANE)}')
        b(f's_lshl_b32 {s(S_AS)}, {s(S_I)}, 18')
        b(f's_lshl_b32 {s(S_T0)}, {s(S_W)}, 10')
        b(f's_add_u32 {s(S_AS)}, {s(S_AS)}, {s(S_T0)}')
        srd(b, SRD_T, P_BSP, 4096)
        b(f's_and_b32 {s(S_T0)}, {s(S_W)}, 1')
        b(f's_lshl_b32 {s(S_T0)}, {s(S_T0)}, 6')
        b(f's_lshl_b32 {s(S_T1)}, {s(S_I)}, 7')
        b(f's_add_u32 {s(S_T0)}, {s(S_T0)}, {s(S_T1)}')
        b(f'v_and_b32 {v(V_T0)}, 31, {v(V_LANE)}')
        b(f'v_lshlrev_b32 {v(V_T0)}, 1, {v(V_T0)}')
        b(f'buffer_load_ushort {v(V_BSP)}, {v(V_T0)}, {s(SRD_T, 4)}, {s(S_T0)} offen')
        b(f's_lshl_b32 {s(S_T0)}, {s(S_CG)}, 7')
        b(f's_add_u32 {s(S_D2COL)}, {s(S_T0)}, 1024')
        b(f's_add_u32 {s(S_D3COL)}, {s(S_T0)}, 2048')
        b(f's_mov_b32 {s(S_D2SEL)}, 0')
        b(f's_mov_b32 {s(S_D3SEL)}, 0')
        b(f's_mov_b32 {s(S_D2MASK)}, 0')
        b(f's_mov_b32 {s(S_D3MASK)}, 0')
        b(f's_cmp_lt_u32 {s(S_CG)}, 8')
        b('s_cbranch_scc1 L_desc_done')
        b(f's_cmp_lt_u32 {s(S_CG)}, 11')
        b('s_cbranch_scc0 L_desc_cd')
        b(f's_sub_u32 {s(S_D2COL)}, {s(S_T0)}, 1024')
        b(f's_sub_u32 {s(S_D3COL)}, {s(S_T0)}, 1056')
        b(f's_mov_b32 {s(S_D3SEL)}, 1')
        b(f's_cmp_eq_u32 {s(S_CG)}, 8')
        b(f's_cselect_b32 {s(S_D3MASK)}, 32, 0')
        b('s_branch L_desc_done')
        b.label('L_desc_cd')
        b(f's_lshl_b32 {s(S_T1)}, {s(S_T0)}, 1')
        b(f's_sub_u32 {s(S_T1)}, {s(S_T1)}, 2464')
        b(f's_sub_u32 {s(S_T2)}, {s(S_T0)}, 672')
        b(f's_cmp_lt_u32 {s(S_CG)}, 14')
        b(f's_cselect_b32 {s(S_D2COL)}, {s(S_T1)}, {s(S_T2)}')
        b(f's_add_u32 {s(S_D3COL)}, {s(S_D2COL)}, 128')
        b(f's_mov_b32 {s(S_D2SEL)}, 1')
        b(f's_mov_b32 {s(S_D3SEL)}, 1')
        b.label('L_desc_done')
        for r in range(32):
            b(f'v_mov_b32 {v(V_ACC0 + r)}, 0')
        if not OPT.get('sym', 1):
            b(f's_cmp_eq_u32 {s(S_W)}, 3')
            b('s_cbranch_scc1 L_L1P')
        return b.b

    def prefetch_items(self):
        def touch(srdreg, mul, off=0):
            return [f's_mul_i32 {s(S_Q0)}, {s(S_WG)}, {mul}',
                    ('t', f'buffer_load_dword {v(V_DUM)}, {v(V_TCH)}, {s(srdreg, 4)}, {s(S_Q0)} offen offset:{off}', dict(nodst=True))]
        it = []
        pre = lambda ptr, n: [f's_mov_b32 {s(SRD_U)}, {s(ptr)}', f's_mov_b32 {s(SRD_U + 1)}, {s(ptr + 1)}',
                              f's_mov_b32 {s(SRD_U + 2)}, {hex(n)}', f's_mov_b32 {s(SRD_U + 3)}, 0x20000']
        it.append(pre(P_WQKV, 512 * 3072) + touch(SRD_U, 6144))
        it.append(pre(P_WIN, 512 * 2752) + touch(SRD_U, 5504))
        for k in range(4):
            it.append([f's_mul_i32 {s(S_Q0)}, {s(S_WG)}, 32768', f's_add_u32 {s(S_Q0)}, {s(S_Q0)}, {8192 * k}',
                       ('t', f'buffer_load_dword {v(V_DUM)}, {v(V_TCH)}, {s(SRD_A, 4)}, {s(S_Q0)} offen', dict(nodst=True))])
        it.append(pre(P_WOUT, 688 * 1024) + touch(SRD_U, 2752))
        it.append(pre(P_WO, 512 * 1024) + touch(SRD_U, 2048))
        return it

    def slab1(self, loader):
        b = St(self, 'L1L' if loader else 'L1P')
        if not loader:
            b.label('L_L1P')
            pf = self.prefetch_items() if OPT.get('pf', 1) else []
        n0 = b.mark()
        for c in range(8):
            if loader:
                b.wait_vm(f'x{c}')
            if c == 4:
                b(f'v_add_u32 {v(V_NON)}, {hex(NONCE_K)}, {v(V_E)}')
                b(f'v_readfirstlane_b32 {s(S_N)}, {v(V_NON)}')
            b.wait_lds()
            b('s_barrier')
            if OPT.get('l1st') and c in (0, 1, 2, 4, 6):
                stamp(b, {0: 13, 1: 14, 2: 15, 4: 19, 6: 22}[c])
            m5 = None
            if c <= 4:
                if OPT.get('sym', 1):
                    b.add(x_chunk_items(c + 3, f'x{c + 3}'))
                    b.add(w_piece_items(c + 3, R0, f'x{c + 3}'))
                elif loader:
                    b.add(l1_items(c + 2))
                    m5 = c + 2
                else:
                    b.add(pf[:2])
                    pf = pf[2:]
            else:
                if c == 5:
                    self.switch_slab(b, S_D2SEL, S_D2COL, S_D2MASK)
                for p in {5: (4, 5), 6: (6, 7), 7: ()}[c]:
                    b.add(w_piece_items(p, R2, 'w2'))
                if c == 7 and OPT.get('tch', 0) & 4:
                    self.w3_touch(b)
            b.pop(1)
            b.period = OPT.get('l1p', 6) if loader else 8
            for kk in range(4):
                K = 4 * c + kk
                b(f'ds_read_b128 {a(A_X + 4 * K, 4)}, {v(V_XRO + kk)}')
                wf = V_WF + 8 * (K & 3)
                for ch in range(2):
                    for t in range(2):
                        b(f'ds_read_b64_tr_b16 {v(wf + 4 * ch + 2 * t, 2)}, {v(V_WR + ch)} offset:{2048 * K + 512 * t}')
                if K >= 2:
                    self.mfma_pair_R(b, K - 2)
                if kk == 2 and m5 is not None:
                    b.flush()
                    l1_item5(self, b, m5)
                    b.add(l1_w_items(m5))
            b.flush()
            b.period = 0
            if c < 7:
                d = 16384 if (c + 1) % 4 != 0 else -49152
                for kk in range(4):
                    if d > 0:
                        b(f'v_add_u32 {v(V_XRO + kk)}, {d}, {v(V_XRO + kk)}')
                    else:
                        b(f'v_subrev_u32 {v(V_XRO + kk)}, {-d}, {v(V_XRO + kk)}')
        self.mfma_pair_R(b, 30)
        self.mfma_pair_R(b, 31)
        b.weave_from(n0, G=6)
        b.wait_lds()
        b('s_barrier')
        stamp(b, 1)
        b(f's_cmp_lt_u32 {s(S_CG)}, 8')
        b('s_cbranch_scc1 L_roleA')
        b(f's_cmp_lt_u32 {s(S_CG)}, 11')
        b('s_cbranch_scc1 L_roleB')
        b(f's_cmp_lt_u32 {s(S_CG)}, 14')
        b('s_cbranch_scc1 L_roleC')
        b('s_branch L_roleD')
        return b.b

    def switch_slab(self, b, sel, col, mask):
        with b.atomic():
            b(f's_cmp_eq_u32 {s(sel)}, 0')
            b(f's_mov_b32 {s(S_RS)}, 2752')
            b(f's_cmov_b32 {s(S_RS)}, 3072')
            b(f's_mov_b32 {s(S_COL)}, {s(col)}')
            b(f's_mov_b32 {s(S_MASK)}, {s(mask)}')
            set_w_srd(b, sel)
            wd_voffsets(b)

    def mfma_pair_R(self, b, K):
        wf = V_WF + 8 * (K & 3)
        for ch in range(2):
            acc = V_ACC0 + 16 * ch
            b(f'v_mfma_f32_32x32x16_bf16 {v(acc, 16)}, {v(wf + 4 * ch, 4)}, {a(A_X + 4 * K, 4)}, {v(acc, 16)}')

    def touch_setup(self, b):
        b(f'v_lshrrev_b32 {v(V_T0)}, 3, {v(V_LANE)}')
        b(f'v_lshlrev_b32 {v(V_T0)}, 12, {v(V_T0)}')
        b(f'v_and_b32 {v(V_T0 + 1)}, 7, {v(V_LANE)}')
        b(f'v_lshl_add_u32 {v(V_TCH)}, {v(V_T0 + 1)}, 7, {v(V_T0)}')
        b(f'v_lshlrev_b32 {v(V_TW1)}, 10, {v(V_LANE)}')
        b(f'v_mov_b32 {v(V_TW2)}, {v(V_TW1)}')
        b(f'v_mov_b32 {v(V_T0)}, {hex(OOB)}')
        b(f'v_cmp_lt_u32 vcc, 21, {v(V_LANE)}')
        b(f'v_cndmask_b32 {v(V_TW1)}, {v(V_TW1)}, {v(V_T0)}, vcc')
        b(f'v_cmp_lt_u32 vcc, 15, {v(V_LANE)}')
        b(f'v_cndmask_b32 {v(V_TW2)}, {v(V_TW2)}, {v(V_T0)}, vcc')
        srd(b, SRD_U, P_WOUT, 688 * 1024)
        srd(b, SRD_X, P_WO, 512 * 1024)

    def touch_items(self):
        T = OPT.get('tch', 0)
        it = []
        if T & 1:
            for k in range(2):
                it.append([f's_and_b32 {s(S_Q0)}, {s(S_J)}, 3',
                           f's_lshl_b32 {s(S_Q0)}, {s(S_Q0)}, 16',
                           f's_add_u32 {s(S_Q0)}, {s(S_Q0)}, {s(S_AS)}'] +
                          ([f's_add_u32 {s(S_Q0)}, {s(S_Q0)}, {8 * 4096}'] if k else []) +
                          [('t', f'buffer_load_dword {v(V_DUM)}, {v(V_TCH)}, {s(SRD_A, 4)}, {s(S_Q0)} offen', dict(nodst=True))])
        if T & 8:
            it.append([f's_lshl2_add_u32 {s(S_Q0)}, {s(S_WG)}, {s(S_W)}',
                       f's_lshl_b32 {s(S_Q0)}, {s(S_Q0)}, 13',
                       f'v_lshlrev_b32 {v(V_T0)}, 7, {v(V_LANE)}',
                       ('t', f'buffer_load_dword {v(V_DUM)}, {v(V_T0)}, {s(SRD_A, 4)}, {s(S_Q0)} offen', dict(nodst=True))])
        if T & 2:
            it.append([f's_lshr_b32 {s(S_Q0)}, {s(S_WG)}, 5',
                       f's_mul_i32 {s(S_Q1)}, {s(S_Q0)}, 86',
                       f's_mul_i32 {s(S_Q0)}, {s(S_W)}, 22',
                       f's_add_u32 {s(S_Q0)}, {s(S_Q0)}, {s(S_Q1)}',
                       f's_lshl_b32 {s(S_Q0)}, {s(S_Q0)}, 10',
                       f's_lshl_b32 {s(S_Q1)}, {s(S_J)}, 7',
                       f's_add_u32 {s(S_Q0)}, {s(S_Q0)}, {s(S_Q1)}',
                       ('t', f'buffer_load_dword {v(V_DUM)}, {v(V_TW1)}, {s(SRD_U, 4)}, {s(S_Q0)} offen', dict(nodst=True))])
            it.append([f's_lshr_b32 {s(S_Q0)}, {s(S_WG)}, 5',
                       f's_lshl_b32 {s(S_Q0)}, {s(S_Q0)}, 2',
                       f's_add_u32 {s(S_Q0)}, {s(S_Q0)}, {s(S_W)}',
                       f's_lshl_b32 {s(S_Q0)}, {s(S_Q0)}, 14',
                       f's_lshl_b32 {s(S_Q1)}, {s(S_J)}, 7',
                       f's_add_u32 {s(S_Q0)}, {s(S_Q0)}, {s(S_Q1)}',
                       ('t', f'buffer_load_dword {v(V_DUM)}, {v(V_TW2)}, {s(SRD_X, 4)}, {s(S_Q0)} offen', dict(nodst=True))])
        return it

    def w3_touch(self, b):
        with b.atomic():
            b(f's_cmp_eq_u32 {s(S_D3SEL)}, 0')
            b(f's_cselect_b32 {s(SRD_U)}, {s(P_WQKV)}, {s(P_WIN)}')
            b(f's_cselect_b32 {s(SRD_U + 1)}, {s(P_WQKV + 1)}, {s(P_WIN + 1)}')
            b(f's_mov_b32 {s(SRD_U + 2)}, {hex(512 * 2752)}')
            b(f's_cmov_b32 {s(SRD_U + 2)}, {hex(512 * 3072)}')
            b(f's_mov_b32 {s(SRD_U + 3)}, 0x20000')
            b(f's_mov_b32 {s(S_T0)}, 2752')
            b(f's_cmov_b32 {s(S_T0)}, 3072')
            b(f'v_and_b32 {v(V_T0)}, 15, {v(V_LANE)}')
            b(f'v_mul_lo_u32 {v(V_T0)}, {v(V_T0)}, {s(S_T0)}')
            b(f'v_bfe_u32 {v(V_T0 + 1)}, {v(V_LANE)}, 4, 1')
            b(f'v_mul_u32_u24 {v(V_T0 + 1)}, 124, {v(V_T0 + 1)}')
            b(f'v_add_u32 {v(V_T0)}, {v(V_T0)}, {v(V_T0 + 1)}')
            b(f's_max_i32 {s(S_T1)}, {s(S_D3COL)}, 0')
            b(f'v_add_u32 {v(V_T0)}, {s(S_T1)}, {v(V_T0)}')
            b(f'v_mov_b32 {v(V_T0 + 1)}, {hex(OOB)}')
            b(f'v_cmp_lt_u32 vcc, 31, {v(V_LANE)}')
            b(f'v_cndmask_b32 {v(V_T0)}, {v(V_T0)}, {v(V_T0 + 1)}, vcc')
            b(f's_lshr_b32 {s(S_T1)}, {s(S_WG)}, 5')
            b(f's_lshl2_add_u32 {s(S_T1)}, {s(S_T1)}, {s(S_W)}')
            b(f's_lshl_b32 {s(S_T1)}, {s(S_T1)}, 4')
            b(f's_mul_i32 {s(S_T1)}, {s(S_T1)}, {s(S_T0)}')
            b(f'buffer_load_dword {v(V_DUM)}, {v(V_T0)}, {s(SRD_U, 4)}, {s(S_T1)} offen', tag='t', nodst=True)

    def post_l1(self, b, role):
        it = []
        self.touch_setup(b)
        for p in (0, 1, 2, 3):
            it += w_piece_items(p, R2, 'w2')
        it += self.touch_items()
        if OPT.get('c0early', 1):
            it += a_chunk_items(0, 'f0')
        return it

    def w3_items(self, b):
        b.flush()
        self.switch_slab(b, S_D3SEL, S_D3COL, S_D3MASK)
        for p in range(8):
            b.add(w_piece_items(p, R0, 'w3'))

    def set_wr(self, b, region):
        with b.atomic():
            tr_addr(b, V_WR, False)
            if region:
                b(f'v_add_u32 {v(V_WR)}, {region}, {v(V_WR)}')
            b(f'v_xor_b32 {v(V_WR + 1)}, 64, {v(V_WR)}')

    def main_loop(self, b, orient, hooks=None, pop_every=1):
        hooks = hooks or {}
        D = 2

        def rd(K):
            wf = V_WF + 8 * (K & 3)
            for ch in range(2):
                for t in range(2):
                    b(f'ds_read_b64_tr_b16 {v(wf + 4 * ch + 2 * t, 2)}, {v(V_WR + ch)} offset:{2048 * K + 512 * t}')
        sv = b.period
        b.period = 0
        n0 = b.mark()
        for K in range(D):
            rd(K)
        for K in range(32):
            if K + D < 32:
                rd(K + D)
            wf = V_WF + 8 * (K & 3)
            x = a(A_X + 4 * K, 4)
            for ch in range(2):
                acc = V_ACC1 + 16 * ch
                c = '0' if K == 0 else v(acc, 16)
                if orient == 'T':
                    b(f'v_mfma_f32_32x32x16_bf16 {v(acc, 16)}, {v(wf + 4 * ch, 4)}, {x}, {c}')
                else:
                    b(f'v_mfma_f32_32x32x16_bf16 {v(acc, 16)}, {x}, {v(wf + 4 * ch, 4)}, {c}')
            for fn in hooks.get(K, []):
                fn(b, 4 if K + D < 32 else 0)
            if K % pop_every == pop_every - 1:
                b.pop(1)
        b.weave_from(n0, G=5)
        b.period = sv

    def apipe_hooks(self, first_K, step):
        hooks = {}

        def mk_issue(p):
            return lambda b, younger: b.add(a_piece_items(p >> 1, p & 1, f'h{p & 1}'))

        def mk_move(p):
            def f(b, younger):
                b.ensure(f'a{p >> 1}_{p & 1}')
                b.wait_vm(f'a{p >> 1}_{p & 1}')
                a_piece_read(b, p >> 1, p & 1, f'h{p & 1}')
            return f

        def mk_refill(p):
            def f(b, younger):
                b(f's_waitcnt lgkmcnt({younger})')
                b.add(a_piece_items(p >> 1, p & 1, f'h{p & 1}'))
            return f
        return hooks, mk_issue, mk_move, mk_refill

    def z2_epilogue(self, b, mid=None):
        for g in range(4):
            gelu_group(b, [V_ACC0 + 8 * g + k for k in range(8)], V_TMP)
            if g == 0 and mid:
                mid()
        s1, s2 = V_ST, V_ST + 1
        t = V_TMP
        b(f'v_add_f32 {v(s1)}, {v(V_ACC0)}, {v(V_ACC0 + 1)}')
        b(f'v_mul_f32 {v(s2)}, {v(V_ACC0)}, {v(V_ACC0)}')
        b(f'v_add_f32 {v(t)}, {v(V_ACC0 + 2)}, {v(V_ACC0 + 3)}')
        b(f'v_mul_f32 {v(t + 1)}, {v(V_ACC0 + 1)}, {v(V_ACC0 + 1)}')
        for k in range(4, 32, 2):
            b(f'v_add_f32 {v(s1)}, {v(s1)}, {v(V_ACC0 + k)}')
            b(f'v_add_f32 {v(t)}, {v(t)}, {v(V_ACC0 + k + 1)}')
        for k in range(2, 32, 2):
            b(f'v_fmac_f32 {v(s2)}, {v(V_ACC0 + k)}, {v(V_ACC0 + k)}')
            b(f'v_fmac_f32 {v(t + 1)}, {v(V_ACC0 + k + 1)}, {v(V_ACC0 + k + 1)}')
        with b.atomic():
            b(f'v_add_f32 {v(s1)}, {v(s1)}, {v(t)}')
            b(f'v_add_f32 {v(s2)}, {v(s2)}, {v(t + 1)}')
            b(f'v_permlane32_swap_b32 {v(s1)}, {v(s2)}')
            b(f'v_add_f32 {v(s1)}, {v(s1)}, {v(s2)}')
            b(f'v_mov_b32 {v(s2)}, {s(S_N)}')
            b(f's_mul_i32 {s(S_T0)}, {s(S_TB)}, 5632')
            b(f's_lshl_b32 {s(S_T1)}, {s(S_CG)}, 9')
            b(f's_add_u32 {s(S_T0)}, {s(S_T0)}, {s(S_T1)}')
            b(f's_add_u32 {s(S_T0)}, {s(S_T0)}, {WS_STATS}')
            b(f'buffer_store_dwordx2 {v(s1, 2)}, {v(V_L8)}, {s(SRD_WS, 4)}, {s(S_T0)} offen sc1', tag='st')
        stamp(b, 2)

    def stats_issue(self, b):
        with b.atomic():
            b(f's_mul_i32 {s(S_T5)}, {s(S_TB)}, 5632')
            b(f's_add_u32 {s(S_T5)}, {s(S_T5)}, {WS_STATS}')
            b(f's_add_u32 {s(S_T4)}, {s(S_T5)}, 4096')
            for js in range(11):
                so = S_T5 if js < 8 else S_T4
                off = 512 * js if js < 8 else 512 * js - 4096
                b(f'buffer_load_dwordx2 {v(V_STAT + 2 * js, 2)}, {v(V_L8)}, {s(SRD_WS, 4)}, {s(so)} offen offset:{off} sc1')

    def stats_check_code(self, b):
        t = V_TMP
        b(f'v_min3_u32 {v(t)}, {v(V_STAT + 1)}, {v(V_STAT + 3)}, {v(V_STAT + 5)}')
        b(f'v_max3_u32 {v(t + 1)}, {v(V_STAT + 1)}, {v(V_STAT + 3)}, {v(V_STAT + 5)}')
        for js in range(3, 11, 2):
            b(f'v_min3_u32 {v(t)}, {v(t)}, {v(V_STAT + 2 * js + 1)}, {v(V_STAT + 2 * js + 3)}')
            b(f'v_max3_u32 {v(t + 1)}, {v(t + 1)}, {v(V_STAT + 2 * js + 1)}, {v(V_STAT + 2 * js + 3)}')
        b(f'v_xor_b32 {v(t)}, {s(S_N)}, {v(t)}')
        b(f'v_xor_b32 {v(t + 1)}, {s(S_N)}, {v(t + 1)}')
        b(f'v_or_b32 {v(t)}, {v(t)}, {v(t + 1)}')
        b(f'v_cmp_ne_u32 vcc, 0, {v(t)}')

    def z2_norm(self, b, after_check=None):
        cont, slow = self.lab('ZC'), self.lab('ZS')
        with b.atomic():
            self.stats_check_code(b)
            b(f's_cbranch_vccnz {slow}')
            b.label(cont)
        if after_check:
            after_check()
        sb = Block('tmp')
        sb(f's_sleep 1')
        sb(f's_mul_i32 {s(S_T5)}, {s(S_TB)}, 5632')
        sb(f's_add_u32 {s(S_T5)}, {s(S_T5)}, {WS_STATS}')
        sb(f's_add_u32 {s(S_T4)}, {s(S_T5)}, 4096')
        for js in range(11):
            so = S_T5 if js < 8 else S_T4
            off = 512 * js if js < 8 else 512 * js - 4096
            sb(f'buffer_load_dwordx2 {v(V_STAT + 2 * js, 2)}, {v(V_L8)}, {s(SRD_WS, 4)}, {s(so)} offen offset:{off} sc1')
        sb('s_waitcnt vmcnt(0)')
        self.stats_check_code(sb)
        txt = '\n'.join('    ' + i.text for i in sb.ins)
        self.slow.append(f'''{slow}:
    s_mov_b32 {s(S_CNT)}, {SPIN_MAX}
{slow}_l:
{txt}
{slow_mark(30)}    s_cbranch_vccz {cont}
    s_sub_u32 {s(S_CNT)}, {s(S_CNT)}, 1
    s_cmp_lg_u32 {s(S_CNT)}, 0
    s_cbranch_scc1 {slow}_l
    s_branch {cont}''')
        t = V_TMP
        b(f'v_add_f32 {v(t)}, {v(V_STAT)}, {v(V_STAT + 2)}')
        b(f'v_add_f32 {v(t + 1)}, {v(V_STAT + 4)}, {v(V_STAT + 6)}')
        for js in range(4, 11, 2):
            b(f'v_add_f32 {v(t)}, {v(t)}, {v(V_STAT + 2 * js)}')
            if js + 1 < 11:
                b(f'v_add_f32 {v(t + 1)}, {v(t + 1)}, {v(V_STAT + 2 * js + 2)}')
        b(f'v_add_f32 {v(t)}, {v(t)}, {v(t + 1)}')
        b(f'v_mov_b32 {v(t + 1)}, {v(t)}')
        b(f'v_permlane32_swap_b32 {v(t)}, {v(t + 1)}')
        b(f'v_mul_f32 {v(t)}, {hex(f2u(1.0 / 688))}, {v(t)}')
        b(f'v_mul_f32 {v(t + 1)}, {hex(f2u(1.0 / 688))}, {v(t + 1)}')
        b(f'v_fma_f32 {v(t + 1)}, -{v(t)}, {v(t)}, {v(t + 1)}')
        b(f'v_max_f32 {v(t + 1)}, 0, {v(t + 1)}')
        b(f'v_add_f32 {v(t + 1)}, {hex(f2u(1e-5))}, {v(t + 1)}')
        b(f'v_rsq_f32 {v(t + 1)}, {v(t + 1)}')
        b(f'v_mul_f32 {v(t)}, {v(t)}, {v(t + 1)}')
        b(f'v_sub_f32 {v(t)}, 0, {v(t)}')
        w0 = t + 2
        r0 = t + 6
        with b.atomic():
            b(f's_lshl_b32 {s(S_T0)}, {s(S_W)}, 14')
            b(f's_add_u32 {s(S_T0)}, {s(S_T0)}, {R2 + 8192}')
            b(f'v_and_b32 {v(w0)}, 31, {v(V_LANE)}')
            b(f'v_lshrrev_b32 {v(w0 + 1)}, 5, {v(V_LANE)}')
            b(f'v_and_b32 {v(w0 + 2)}, 15, {v(V_LANE)}')
            b(f'v_xor_b32 {v(w0 + 1)}, {v(w0 + 1)}, {v(w0 + 2)}')
            b(f'v_lshlrev_b32 {v(w0 + 1)}, 3, {v(w0 + 1)}')
            b(f'v_lshl_add_u32 {v(w0)}, {v(w0)}, 7, {v(w0 + 1)}')
            b(f'v_add_u32 {v(w0)}, {s(S_T0)}, {v(w0)}')
            b(f'v_bfe_u32 {v(r0)}, {v(V_LANE)}, 2, 2')
            b(f'v_lshrrev_b32 {v(r0 + 1)}, 5, {v(V_LANE)}')
            b(f'v_lshl_add_u32 {v(r0)}, {v(r0 + 1)}, 3, {v(r0)}')
            b(f'v_bfe_u32 {v(r0 + 1)}, {v(V_LANE)}, 4, 1')
            b(f'v_and_b32 {v(r0 + 2)}, 3, {v(V_LANE)}')
            b(f'v_lshl_add_u32 {v(r0 + 1)}, {v(r0 + 1)}, 2, {v(r0 + 2)}')
            b(f'v_xor_b32 {v(r0 + 1)}, {v(r0 + 1)}, {v(r0)}')
            b(f'v_lshlrev_b32 {v(r0 + 1)}, 3, {v(r0 + 1)}')
            b(f'v_lshl_add_u32 {v(r0)}, {v(r0)}, 7, {v(r0 + 1)}')
            b(f'v_add_u32 {v(r0)}, {s(S_T0)}, {v(r0)}')
        ra = r0 + 1
        for bb in range(2):
            for tt in range(2):
                b(f'v_xor_b32 {v(ra + 2 * bb + tt)}, {8 * ((8 * bb) ^ (4 * tt))}, {v(r0)}')
        pk = V_PV
        for bb in range(2):
            for j in range(4):
                r = V_ACC0 + 16 * bb + 4 * j
                for k in range(4):
                    b(f'v_fma_f32 {v(r + k)}, {v(r + k)}, {v(t + 1)}, {v(t)}')
                b(f'v_cvt_pk_bf16_f32 {v(pk + 8 * bb + 2 * j)}, {v(r)}, {v(r + 1)}')
                b(f'v_cvt_pk_bf16_f32 {v(pk + 8 * bb + 2 * j + 1)}, {v(r + 2)}, {v(r + 3)}')
                K = 8 * bb + 2 * j
                if K:
                    b(f'v_xor_b32 {v(w0 + 1)}, {8 * K}, {v(w0)}')
                    ad = w0 + 1
                else:
                    ad = w0
                b(f'ds_write_b64 {v(ad)}, {v(pk + 8 * bb + 2 * j, 2)}')
        b.wait_lds()
        fr = V_TMP + 16
        for bb in range(2):
            for kq in range(2):
                for tt in range(2):
                    b(f'ds_read_b64_tr_b16 {v(fr + 8 * bb + 4 * kq + 2 * tt, 2)}, {v(ra + 2 * bb + tt)} offset:{512 * tt + 2048 * kq}')
        with b.atomic():
            b(f's_lshl_b32 {s(S_T0)}, {s(S_CG)}, 18')
            b(f's_lshl_b32 {s(S_T1)}, {s(S_TB)}, 11')
            b(f's_add_u32 {s(S_T0)}, {s(S_T0)}, {s(S_T1)}')
            b(f's_add_u32 {s(S_T0)}, {s(S_T0)}, {WS_Z2N}')
            b(f's_add_u32 {s(S_T1)}, {s(S_T0)}, {128 * 1024}')
            for bb in range(2):
                for kq in range(2):
                    so = S_T0 if bb == 0 else S_T1
                    b(f'buffer_store_dwordx4 {v(fr + 8 * bb + 4 * kq, 4)}, {v(V_L16)}, {s(SRD_WS, 4)}, {s(so)} offen offset:{1024 * kq} sc1', tag='z2n')
        stamp(b, 3)

    def flag_store(self, b, base, tagwait):
        b.wait_vm(tagwait)
        with b.atomic():
            b(f's_lshl4_add_u32 {s(S_T0)}, {s(S_RB)}, {s(S_CG)}')
            b(f's_lshl2_add_u32 {s(S_T0)}, {s(S_T0)}, {s(S_W)}')
            b(f's_lshl_b32 {s(S_T0)}, {s(S_T0)}, 6')
            b(f's_add_u32 {s(S_T0)}, {s(S_T0)}, {base}')
            b(f'v_mov_b32 {v(V_POLL)}, {s(S_N)}')
            b(f'buffer_store_dword {v(V_POLL)}, off, {s(SRD_WS, 4)}, {s(S_T0)} sc1', tag='flag')

    def t_epilogue(self, b, kind, acc, mid=None):
        out = V_PV
        for g in range(4):
            if g == 1 and mid:
                mid()
            xs = [acc + 8 * g + k for k in range(8)]
            if kind == 'gelu':
                gelu_group(b, xs, V_TMP)
            else:
                phi_group(b, xs, V_TMP)
            for k in range(4):
                b(f'v_cvt_pk_bf16_f32 {v(out + 4 * g + k)}, {v(xs[2 * k])}, {v(xs[2 * k + 1])}')
            so = S_O0 if g < 2 else S_O1
            b(f'buffer_store_dwordx4 {v(out + 4 * g, 4)}, {v(V_L16)}, {s(SRD_WS, 4)}, {s(so)} offen offset:{1024 * (g & 1)} sc1', tag='p1')

    def set_out_addr(self, b, kind, slab_code):
        with b.atomic():
            for l in slab_code:
                b(l)
            base, stride = (WS_PQ, 32768) if kind == 'q' else (WS_Z1F, 45056)
            b(f's_lshl_b32 {s(S_T4)}, {s(S_T4)}, 12')
            b(f's_add_u32 {s(S_T4)}, {s(S_T4)}, {base}')
            b(f's_mul_i32 {s(S_O0)}, {s(S_TB)}, {stride}')
            b(f's_add_u32 {s(S_O0)}, {s(S_O0)}, {s(S_T4)}')
            b(f's_add_u32 {s(S_O1)}, {s(S_O0)}, 2048')

    def k_epilogue(self, b):
        for g in range(4):
            xs = [V_ACC1 + 8 * g + k for k in range(8)]
            phi_group(b, xs, V_TMP)
            for k in range(4):
                b(f'v_cvt_pk_bf16_f32 {v(V_PK + 4 * g + k)}, {v(xs[2 * k])}, {v(xs[2 * k + 1])}')

    def v_epilogue(self, b):
        for k in range(16):
            b(f'v_cvt_pk_bf16_f32 {v(V_PV + k)}, {v(V_ACC1 + 2 * k)}, {v(V_ACC1 + 2 * k + 1)}')
        ones = V_TMP
        for k in range(4):
            b(f'v_mov_b32 {v(ones + k)}, 0x3f803f80')
        for par in range(2):
            for ch in range(2):
                g = 2 * ch + par
                kv, zz = V_KV + 16 * ch, V_KZ + 16 * ch
                c0 = '0' if par == 0 else v(kv, 16)
                c1 = '0' if par == 0 else v(zz, 16)
                b(f'v_mfma_f32_32x32x16_bf16 {v(kv, 16)}, {v(V_PK + 4 * g, 4)}, {v(V_PV + 4 * g, 4)}, {c0}')
                b(f'v_mfma_f32_32x32x16_bf16 {v(zz, 16)}, {v(V_PK + 4 * g, 4)}, {v(ones, 4)}, {c1}')

    def kv_finish(self, b):
        with b.atomic():
            b(f'v_and_b32 {v(V_T0)}, 31, {v(V_LANE)}')
            b(f'v_cmp_gt_u32 vcc, 16, {v(V_T0)}')
            for ch in range(2):
                kv, zz = V_KV + 16 * ch, V_KZ + 16 * ch
                for k in range(8):
                    b(f'v_cndmask_b32 {v(kv + k)}, {v(zz + k)}, {v(kv + k)}, vcc')
                for k in range(8, 16):
                    b(f'v_cndmask_b32 {v(kv + k)}, {v(kv + k)}, {v(zz + k)}, vcc')
            b('s_barrier')
            b(f's_lshl_b32 {s(S_T0)}, {s(S_W)}, 11')
            b(f'v_add_u32 {v(V_T0)}, {s(S_T0)}, {v(V_L16)}')
            for d in range(4):
                for q in range(2):
                    b(f'ds_write_b128 {v(V_T0)}, {v(V_KV + 8 * d + 4 * q, 4)} offset:{R0 + 8192 * d + 1024 * q}')
            b(f's_lshl_b32 {s(S_T0)}, {s(S_W)}, 13')
            b(f'v_add_u32 {v(V_T0)}, {s(S_T0)}, {v(V_L16)}')
            b.wait_lds()
            b('s_barrier')
            X = V_KZ
            for src in range(4):
                for q in range(2):
                    b(f'ds_read_b128 {v(X + 8 * src + 4 * q, 4)}, {v(V_T0)} offset:{R0 + 2048 * src + 1024 * q}')
            for k in range(8):
                b(f'v_add_f32 {v(X + k)}, {v(X + k)}, {v(X + 8 + k)}')
                b(f'v_add_f32 {v(X + 16 + k)}, {v(X + 16 + k)}, {v(X + 24 + k)}')
            for k in range(8):
                b(f'v_add_f32 {v(X + k)}, {v(X + k)}, {v(X + 16 + k)}')
            b(f's_lshl2_add_u32 {s(S_T0)}, {s(S_CG)}, {s(S_W)}')
            b(f's_lshl_b32 {s(S_T0)}, {s(S_T0)}, 15')
            b(f's_lshl_b32 {s(S_T1)}, {s(S_RB)}, 10')
            b(f's_add_u32 {s(S_T0)}, {s(S_T0)}, {s(S_T1)}')
            b(f's_add_u32 {s(S_T0)}, {s(S_T0)}, {WS_KVP}')
            for q in range(2):
                if q:
                    b(f's_add_u32 {s(S_T0)}, {s(S_T0)}, 16384')
                b(f'buffer_store_dwordx4 {v(X + 4 * q, 4)}, {v(V_L16)}, {s(SRD_WS, 4)}, {s(S_T0)} offen sc1', tag='p1')

    def pre_slab(self, b, tag):
        b.ensure(tag)
        b.wait_vm(tag)
        b('s_barrier')

    def mv_piece(self, b, p):
        b.ensure(f'a{p >> 1}_{p & 1}')
        b.wait_vm(f'a{p >> 1}_{p & 1}')
        a_piece_read(b, p >> 1, p & 1, f'h{p & 1}')

    def fetch_piece(self, b, p):
        b.add(a_piece_items(p >> 1, p & 1, f'h{p & 1}'))

    def mv_chunk(self, b, c, slot):
        b.ensure(f'a{c}_0')
        b.ensure(f'a{c}_1')
        b.wait_vm([f'a{c}_0', f'a{c}_1'])
        a_chunk_read(b, c, slot)

    def slab3_hooks(self, extra=None):
        h = {}

        def add(K, fn):
            h.setdefault(K, []).append(fn)
        K0 = OPT.get('k0', 20)
        add(K0, lambda b, y: self.mv_chunk(b, 0, 'f0'))
        add(K0 + 1, lambda b, y: (b(f's_waitcnt lgkmcnt({y})'), b.add(a_chunk_items(3, 'f0'))))
        add(K0 + 4, lambda b, y: self.mv_chunk(b, 1, 'f1'))
        add(K0 + 5, lambda b, y: (b(f's_waitcnt lgkmcnt({y})'), b.add(a_chunk_items(4, 'f1'))))
        add(K0 + 8, lambda b, y: self.mv_chunk(b, 2, 'f2'))
        add(K0 + 9, lambda b, y: (b(f's_waitcnt lgkmcnt({y})'), b.add(a_chunk_items(5, 'f2'))))
        for K, fn in (extra or {}).items():
            add(K, fn)
        return h

    def mid_a(self, b):
        if not OPT.get('c0early', 1):
            b.add(a_chunk_items(0, 'f0'))
        b.add(a_chunk_items(1, 'f1'))

    def mid_b(self, b):
        pass

    def g_pass(self, b):
        ga = V_T0 + 4
        b.wait_vm('gw')
        with b.atomic():
            b(f'v_lshrrev_b32 {v(ga)}, 5, {v(V_LANE)}')
            b(f'v_lshlrev_b32 {v(ga)}, 4, {v(ga)}')
            b(f's_lshl_b32 {s(S_T0)}, {s(S_W)}, 10')
            b(f's_add_u32 {s(S_T0)}, {s(S_T0)}, {R0}')
            b(f'v_add_u32 {v(ga)}, {s(S_T0)}, {v(ga)}')
        acc = V_ACC1
        sv = b.period
        b.period = 0
        hooks = self.slab3_hooks()
        for K in range(32):
            wf = V_WF + 4 * (K & 3)
            if K == 0:
                for k2 in range(3):
                    b(f'ds_read_b128 {v(V_WF + 4 * k2, 4)}, {v(ga)} offset:{32 * k2}')
            if K + 3 < 32:
                b(f'ds_read_b128 {v(V_WF + 4 * ((K + 3) & 3), 4)}, {v(ga)} offset:{32 * (K + 3)}')
            b(f'v_mfma_f32_32x32x16_bf16 {v(acc, 16)}, {v(wf, 4)}, {a(A_X + 4 * K, 4)}, {"0" if K == 0 else v(acc, 16)}')
            for fn in hooks.get(K, []):
                fn(b, 1 if K + 3 < 32 else 0)
            b.pop(1)
        b.period = sv
        t = V_TMP
        b(f'v_mul_f32 {v(t)}, {hex(f2u(-LOG2E))}, {v(acc)}')
        b(f'v_exp_f32 {v(t)}, {v(t)}')
        b(f'v_add_f32 {v(t)}, 1.0, {v(t)}')
        b(f'v_rcp_f32 {v(t)}, {v(t)}')
        with b.atomic():
            b(f'v_and_b32 {v(t + 1)}, 31, {v(V_LANE)}')
            b(f'v_lshlrev_b32 {v(t + 1)}, 2, {v(t + 1)}')
            b(f's_lshl_b32 {s(S_T0)}, {s(S_TB)}, 7')
            b(f's_add_u32 {s(S_T0)}, {s(S_T0)}, {WS_GATE}')
            b(f'buffer_store_dword {v(t)}, {v(t + 1)}, {s(SRD_WS, 4)}, {s(S_T0)} offen sc1', tag='p1')

    def a_tail(self, b):
        b.flush()
        self.flag_store(b, WS_FP1, 'p1')

    def role_AB(self, role):
        b = St(self, 'ROLE' + role)
        b.label('L_role' + role)
        b.add(self.post_l1(b, role))
        orient = 'N' if role == 'A' else 'T'
        if OPT.get('w3z', 0):
            b.period = 9
            self.z2_epilogue(b, mid=lambda: self.w3_items(b))
            self.pre_slab(b, 'w2')
            self.set_wr(b, R2)
            stamp(b, 16)
            self.main_loop(b, orient, pop_every=1)
        else:
            b.period = 14
            self.z2_epilogue(b)
            self.pre_slab(b, 'w2')
            self.set_wr(b, R2)
            stamp(b, 16)
            self.w3_items(b)
            self.main_loop(b, orient, pop_every=1)
        stamp(b, 17)
        b.flush()
        b('s_barrier')
        self.stats_issue(b)
        b.period = 12
        if role == 'A':
            self.k_epilogue(b)
        else:
            self.set_out_addr(b, 'q', [f's_sub_u32 {s(S_T4)}, {s(S_CG)}, 8'])
            self.t_epilogue(b, 'phi', V_ACC1)
        stamp(b, 18)
        if OPT.get('aearly', 0):
            b.period = 7
            self.z2_norm(b, after_check=lambda: self.mid_a(b))
        else:
            self.z2_norm(b)
            self.mid_a(b)
        b.add(a_chunk_items(2, 'f2'))
        self.mid_b(b)
        self.pre_slab(b, 'w3')
        self.set_wr(b, R0)
        stamp(b, 20)
        hooks = self.slab3_hooks({22: lambda bb, y: self.flag_store(bb, WS_FZ2, 'z2n')})
        self.main_loop(b, orient, hooks)
        stamp(b, 21)
        b.period = 8
        s1_issue(self, b)
        if role == 'A':
            self.v_epilogue(b)
            self.kv_finish(b)
        else:
            self.set_out_addr(b, 'z1', [f's_sub_u32 {s(S_T4)}, {s(S_CG)}, 8'])
            self.t_epilogue(b, 'gelu', V_ACC1)
        stamp(b, 23)
        self.a_tail(b)
        b('s_branch L_p1_done')
        return b.b

    def role_CD(self, role):
        b = St(self, 'ROLE' + role)
        b.label('L_role' + role)
        b.add(self.post_l1(b, role))
        b.period = 8
        self.set_out_addr(b, 'q', [f's_sub_u32 {s(S_T4)}, {s(S_CG)}, 8'])
        self.t_epilogue(b, 'phi', V_ACC0)
        self.pre_slab(b, 'w2')
        self.set_wr(b, R2)
        if role == 'C':
            self.w3_items(b)
        else:
            b.flush()
            srd(b, SRD_T, P_GW, 1024)
            b(f's_lshl_b32 {s(S_T0)}, {s(S_W)}, 10')
            b(f's_add_u32 m0, {s(S_T0)}, {R0}')
            b(f's_lshl_b32 {s(S_T0)}, {s(S_ROT)}, 7')
            b(f'v_add_u32 {v(V_T0)}, {s(S_T0)}, {v(V_L16)}')
            b(f'v_and_b32 {v(V_T0)}, 1023, {v(V_T0)}')
            b(f'buffer_load_dwordx4 {v(V_T0)}, {s(SRD_T, 4)}, 0 offen lds', tag='gw')
        self.main_loop(b, 'T', pop_every=2)
        b.flush()
        b('s_barrier')
        self.mid_a(b)
        b.add(a_chunk_items(2, 'f2'))
        b.period = 12
        if role == 'C':
            self.set_out_addr(b, 'z1', [f's_lshl_b32 {s(S_T4)}, {s(S_CG)}, 1', f's_sub_u32 {s(S_T4)}, {s(S_T4)}, 19'])
            self.t_epilogue(b, 'gelu', V_ACC1)
            self.mid_b(b)
            self.pre_slab(b, 'w3')
            self.set_wr(b, R0)
            self.main_loop(b, 'T', self.slab3_hooks())
            b.period = 8
            s1_issue(self, b)
            self.set_out_addr(b, 'z1', [f's_lshl_b32 {s(S_T4)}, {s(S_CG)}, 1', f's_sub_u32 {s(S_T4)}, {s(S_T4)}, 18'])
            self.t_epilogue(b, 'gelu', V_ACC1)
        else:
            self.set_out_addr(b, 'z1', [f's_sub_u32 {s(S_T4)}, {s(S_CG)}, 5'])
            self.t_epilogue(b, 'gelu', V_ACC1)
            self.mid_b(b)
            self.g_pass(b)
            s1_issue(self, b)
        self.a_tail(b)
        b('s_branch L_p1_done')
        return b.b

    def build(self):
        P = self.prologue()
        LL = self.slab1(True)
        LP = self.slab1(False) if not OPT.get('sym', 1) else None
        A = self.role_AB('A')
        B = self.role_AB('B')
        C = self.role_CD('C')
        D = self.role_CD('D')
        E1 = St(self, 'E1')
        E1.label('L_p1_done')
        stamp(E1, 4)
        from phase23 import emit_phase23
        P2, PH, PL, P3b = emit_phase23(self)
        END = self.blk('END')
        END.label('L_END')
        END('s_endpgm')
        P3 = Block('PRO_w3')
        P3.ins = [i for i in P.ins if not i.meta.get('loader')]
        rests = [[P2, PH, P3b], [P2, PL, P3b]]
        paths = [[P, LL, R, E1.b] + rest + [END] for R in (A, B, C, D) for rest in rests]
        if LP is not None:
            paths += [[P3, LP, R, E1.b] + rest + [END] for R in (A, B, C, D) for rest in rests]
        finalize(self.blocks, paths)

    def text(self):
        out = []
        for b in self.blocks:
            out.append(f'; ---- {b.name}')
            out.append(render(b))
        return '\n'.join(out) + '\n' + '\n'.join(self.slow) + '\n'


HEADER = '''; Fused gated-mix kernel: linear attention + gMLP, single persistent launch (256 workgroups x 256 threads)
; @launch grid=(256,1,1) block=(256,1,1) lds=163840
.amdgcn_target "amdgcn-amd-amdhsa--gfx950"
.text
.globl {k}
.p2align 8
.type {k},@function
{k}:
'''
FOOTER = '''
    s_endpgm
.section .rodata,"a"
.p2align 6
.amdhsa_kernel {k}
  .amdhsa_next_free_vgpr 512
  .amdhsa_next_free_sgpr 102
  .amdhsa_accum_offset 256
  .amdhsa_group_segment_fixed_size 0
  .amdhsa_kernarg_size 96
  .amdhsa_user_sgpr_count 2
  .amdhsa_user_sgpr_kernarg_segment_ptr 1
  .amdhsa_system_sgpr_workgroup_id_x 1
  .amdhsa_float_denorm_mode_32 3
.end_amdhsa_kernel
'''


def generate(**opt):
    OPT.update(opt)
    g = Gen()
    g.build()
    return HEADER.format(k=KNAME) + g.text() + FOOTER.format(k=KNAME)


if __name__ == '__main__':
    opt = {}
    for arg in sys.argv[2:]:
        k, val = arg.split('=')
        opt[k] = int(val) if val.lstrip('-').isdigit() else val
    txt = generate(**opt)
    open(sys.argv[1], 'w').write(txt)
```

```python
from asmlib import *
import gen as G
from gen import (v, a, s, f2u, LOG2E, OOB, stamp, srd, tr_addr, St,
                 WS_FZ2, WS_FP1, WS_FY, WS_FKV, WS_GATE, WS_KVF, WS_KVP, WS_Z2N, WS_Z1F, WS_PQ, WS_Y, WS_SIZE, WS_EPOCH,
                 SRD_X, SRD_W, SRD_WS, SRD_T, SRD_U, S_W, S_WG, S_I, S_J, S_N, S_T0, S_T1, S_T2, S_T3, S_T4, S_T5, S_T6, S_T7,
                 S_ROT, S_RB, S_CG, S_Q0, S_Q1,
                 P_BSP, P_WO, P_WOUT, P_OUT, V_LANE, V_L16, V_L8, V_T0, V_POLL)

S_FB0, S_NBLK = 70, 71
S_BO = 72
S_PART = 73
S_U = 74
S_YO, S_ZO = 75, 76
S_WOB = 77
S_KVO = 78
S_BB = 80
S_FBN = 88
SRD_KV = 44

V_PA = 8
V_PR = 14
V_XW = 16
V_XR = 20
V_BS = 21
V_G0 = 22
V_NG = 26
V_BNG = 27
V_KL = 32
ACC = [64, 96]
RING = 128
D = 12
V_GS = 176
V_X = 192
V_Z1 = 224
V_KS = 236
V_WO = 240
A_PQ, A_KV, A_Y = 0, 64, 96
KVSCR = 38912
PRIV = 40960
XOFF = 22528


def flag_addr(b, dst, n, tmp):
    b(f'v_and_b32 {v(tmp)}, 3, {v(n)}')
    b(f'v_lshrrev_b32 {v(n)}, 2, {v(n)}')
    b(f'v_lshlrev_b32 {v(n)}, 4, {v(n)}')
    b(f'v_add_lshl_u32 {v(dst)}, {v(n)}, {v(tmp)}, 2')


def s1_issue(g, b):
    t0, t1 = V_T0, V_T0 + 1
    with b.atomic():
        b(f's_mul_i32 {s(S_FB0)}, {s(S_J)}, 3')
        b(f's_min_u32 {s(S_FB0)}, {s(S_FB0)}, 20')
        b(f's_cmp_lt_u32 {s(S_J)}, 6')
        b(f's_cselect_b32 {s(S_NBLK)}, 3, 2')
        b(f's_mov_b32 {s(S_FBN)}, {s(S_FB0)}')
        b(f's_add_u32 {s(S_FBN + 1)}, {s(S_FB0)}, 1')
        b(f's_add_u32 {s(S_FBN + 2)}, {s(S_FB0)}, {s(S_NBLK)}')
        b(f's_sub_u32 {s(S_FBN + 2)}, {s(S_FBN + 2)}, 1')
        b(f's_lshr_b32 {s(S_T0)}, {s(S_FB0)}, 1')
        b(f's_lshr_b32 {s(S_T1)}, {s(S_FBN + 2)}, 1')
        b(f's_sub_u32 {s(S_T1)}, {s(S_T1)}, {s(S_T0)}')
        b(f'v_bfe_u32 {v(t0)}, {v(V_LANE)}, 3, 2')
        b(f'v_bfe_u32 {v(t1)}, {v(V_LANE)}, 2, 1')
        b(f'v_mul_u32_u24 {v(t1)}, {s(S_T1)}, {v(t1)}')
        b(f'v_lshl_add_u32 {v(t0)}, {v(t0)}, 4, {v(t1)}')
        b(f's_lshl_b32 {s(S_T2)}, {s(S_W)}, 6')
        b(f's_add_u32 {s(S_T2)}, {s(S_T2)}, {s(S_T0)}')
        b(f'v_add_u32 {v(t0)}, {s(S_T2)}, {v(t0)}')
        b(f'v_and_b32 {v(t1)}, 3, {v(V_LANE)}')
        b(f'v_lshl_add_u32 {v(t0)}, {v(t0)}, 2, {v(t1)}')
        flag_addr(b, V_PA, t0, t1)
        b(f's_mov_b32 {s(S_T7)}, {WS_FZ2}')
        b(f'buffer_load_dword {v(V_PR)}, {v(V_PA)}, {s(SRD_WS, 4)}, {s(S_T7)} offen sc1')


def emit_phase23(g):
    t0, t1, t2 = V_T0, V_T0 + 1, V_T0 + 2
    b = St(g, 'P2')
    b(f's_mov_b32 {s(S_T7)}, {WS_FZ2}')
    g.poll(b, V_PA, s(S_T7), V_PR, first_issued=True, mark=11)
    stamp(b, 5)
    b(f's_lshl_b32 {s(S_T0)}, {s(S_W)}, 15')
    b(f's_add_u32 {s(S_BB)}, {s(S_T0)}, {WS_Z2N}')

    def bload(b, gi):
        nb, n = gi >> 5, gi & 31
        if n % 4 == 0:
            b(f's_add_u32 {s(S_BO)}, {s(G.S_ROT2)}, {n // 4}')
            b(f's_and_b32 {s(S_BO)}, {s(S_BO)}, 7')
            b(f's_lshl_b32 {s(S_BO)}, {s(S_BO)}, 12')
            b(f's_add_u32 {s(S_BO)}, {s(S_BO)}, {s(S_BB)}')
            b(f's_lshl_b32 {s(S_T4)}, {s(S_FBN + nb)}, 17')
            b(f's_add_u32 {s(S_BO)}, {s(S_BO)}, {s(S_T4)}')
        b(f'buffer_load_dwordx4 {v(RING + 4 * (gi % D), 4)}, {v(V_L16)}, {s(SRD_WS, 4)}, {s(S_BO)} offen offset:{1024 * (n & 3)} sc1')

    for gi in range(D):
        bload(b, gi)
    b(f'v_lshlrev_b32 {v(V_BS)}, 16, {v(G.V_BSP)}')
    b(f's_lshr_b32 {s(S_T0)}, {s(S_I)}, 1')
    b(f's_lshl_b32 {s(S_T0)}, {s(S_T0)}, 6')
    b(f'v_add_u32 {v(t0)}, {s(S_T0)}, {v(V_LANE)}')
    flag_addr(b, V_PA + 1, t0, t1)
    b(f's_lshl_b32 {s(S_T0)}, {s(S_W)}, 11')
    b(f'v_add_u32 {v(t0)}, {s(S_T0)}, {v(V_L16)}')
    for d in range(4):
        b(f'v_add_u32 {v(V_XW + d)}, {PRIV * d + XOFF}, {v(t0)}')
    b(f's_mul_i32 {s(S_T0)}, {s(S_W)}, {PRIV}')
    b(f's_add_u32 {s(S_T0)}, {s(S_T0)}, {XOFF}')
    b(f'v_add_u32 {v(V_XR)}, {s(S_T0)}, {v(V_L16)}')
    b(f'v_and_b32 {v(t0)}, 31, {v(V_LANE)}')
    b(f'v_lshlrev_b32 {v(V_PA + 5)}, 2, {v(t0)}')
    b(f's_and_b32 {s(S_T0)}, {s(S_W)}, 1')
    b(f's_lshl1_add_u32 {s(S_T0)}, {s(S_I)}, {s(S_T0)}')
    b(f's_mul_i32 {s(S_T0)}, {s(S_T0)}, 45056')
    b(f's_lshr_b32 {s(S_T1)}, {s(S_W)}, 1')
    b(f's_lshl_b32 {s(S_T1)}, {s(S_T1)}, 10')
    b(f's_add_u32 {s(S_T0)}, {s(S_T0)}, {s(S_T1)}')
    b(f's_add_u32 {s(S_ZO)}, {s(S_T0)}, {WS_Z1F}')
    b(f's_add_u32 {s(S_YO)}, {s(S_T0)}, {WS_Y}')
    b(f's_cmp_ge_u32 {s(S_J)}, 6')
    b('s_cbranch_scc1 L_P2L')
    P2 = b.b

    def xw(nb, k):
        d, q = k >> 1, k & 1
        r = ACC[nb & 1] + 16 * (d & 1) + 8 * (d >> 1)
        return f'ds_write_b128 {v(V_XW + d)}, {v(r + 4 * q, 4)} offset:{8192 * (nb & 1) + 1024 * q}'

    def xr(nb, k):
        src, q = k >> 1, k & 1
        return f'ds_read_b128 {v(V_X + 8 * src + 4 * q, 4)}, {v(V_XR)} offset:{8192 * (nb & 1) + 2048 * src + 1024 * q}'

    def xsum(dst):
        o = []
        for k in range(8):
            o.append(f'v_add_f32 {v(V_X + k)}, {v(V_X + k)}, {v(V_X + 8 + k)}')
        for k in range(8):
            o.append(f'v_add_f32 {v(V_X + 16 + k)}, {v(V_X + 16 + k)}, {v(V_X + 24 + k)}')
        for k in range(8):
            o.append(f'v_add_f32 {v(dst + k)}, {v(V_X + k)}, {v(V_X + 16 + k)}')
        return o

    def ymath(nb, gs):
        o = []
        z = V_Z1 + 4 * nb
        tmp = RING
        for k in range(8):
            o.append(f'v_fma_f32 {v(gs + k)}, {v(gs + k)}, {v(V_NG)}, {v(V_BNG)}')
        for k in range(4):
            o.append(f'v_lshlrev_b32 {v(tmp + 2 * k)}, 16, {v(z + k)}')
            o.append(f'v_and_b32 {v(tmp + 2 * k + 1)}, 0xffff0000, {v(z + k)}')
        for k in range(8):
            o.append(f'v_mul_f32 {v(gs + k)}, {v(gs + k)}, {v(tmp + k)}')
        for k in range(4):
            o.append(f'v_cvt_pk_bf16_f32 {v(z + k)}, {v(gs + 2 * k)}, {v(gs + 2 * k + 1)}')
        return o

    def ystore(b, nb):
        b(f's_lshl_b32 {s(S_T0)}, {s(S_FBN + nb)}, 11')
        b(f's_add_u32 {s(S_T0)}, {s(S_T0)}, {s(S_YO)}')
        b(f'buffer_store_dwordx4 {v(V_Z1 + 4 * nb, 4)}, {v(V_L16)}, {s(SRD_WS, 4)}, {s(S_T0)} offen sc1', tag='y')

    def tail_loads(nblk):
        it = []
        for z in range(nblk):
            it.append([f's_lshl_b32 {s(S_T0)}, {s(S_FBN + z)}, 11',
                       f's_add_u32 {s(S_T0)}, {s(S_T0)}, {s(S_ZO)}',
                       f'buffer_load_dwordx4 {v(V_Z1 + 4 * z, 4)}, {v(V_L16)}, {s(SRD_WS, 4)}, {s(S_T0)} offen sc1'])
        it.append([f's_lshl_b32 {s(S_T0)}, {s(S_I)}, 8',
                   f's_add_u32 {s(S_T0)}, {s(S_T0)}, {WS_GATE}',
                   f'buffer_load_dword {v(V_G0)}, {v(V_PA + 5)}, {s(SRD_WS, 4)}, {s(S_T0)} offen sc1',
                   f'buffer_load_dword {v(V_G0 + 1)}, {v(V_PA + 5)}, {s(SRD_WS, 4)}, {s(S_T0)} offen offset:128 sc1'])
        for hd in range(8):
            for tb in range(2):
                l = []
                if hd % 4 == 0:
                    l = [f's_lshl1_add_u32 {s(S_Q0 + tb)}, {s(S_I)}, {tb}',
                         f's_lshl_b32 {s(S_Q0 + tb)}, {s(S_Q0 + tb)}, 15',
                         f's_lshl_b32 {s(S_T1)}, {s(S_W)}, 13',
                         f's_add_u32 {s(S_Q0 + tb)}, {s(S_Q0 + tb)}, {s(S_T1)}',
                         f's_add_u32 {s(S_Q0 + tb)}, {s(S_Q0 + tb)}, {WS_PQ + 1024 * hd}']
                l.append(f'buffer_load_dwordx4 {a(A_PQ + 4 * (2 * hd + tb), 4)}, {v(V_L16)}, {s(SRD_WS, 4)}, {s(S_Q0 + tb)} offen offset:{1024 * (hd & 3)} sc1')
                it.append(l)
        return it

    def gate_setup():
        return [[f's_and_b32 {s(S_T0)}, {s(S_W)}, 1',
                 f's_cmp_eq_u32 {s(S_T0)}, 0',
                 f's_cselect_b64 vcc, -1, 0',
                 f'v_cndmask_b32 {v(V_NG)}, {v(V_G0 + 1)}, {v(V_G0)}, vcc'],
                f'v_sub_f32 {v(V_NG)}, 1.0, {v(V_NG)}',
                f'v_mul_f32 {v(V_BNG)}, {v(V_BS)}, {v(V_NG)}']

    def emit1(b, x):
        if isinstance(x, list):
            for y in x:
                emit1(b, y)
        elif isinstance(x, tuple):
            b(x[1], tag=x[0])
        else:
            b(x)

    def main_stream(light):
        b = St(g, 'P2L' if light else 'P2H')
        nblk = 2 if light else 3
        NG = 32 * nblk
        if light:
            b.label('L_P2L')
            b(f's_lshl_b32 {s(S_U)}, {s(S_I)}, 1')
            b(f's_and_b32 {s(S_T0)}, {s(S_J)}, 1')
            b(f's_add_u32 {s(S_U)}, {s(S_U)}, {s(S_T0)}')
            b(f's_lshr_b32 {s(S_T0)}, {s(S_U)}, 3')
            b(f'v_lshrrev_b32 {v(t0)}, 2, {v(V_LANE)}')
            b(f'v_lshlrev_b32 {v(t0)}, 4, {v(t0)}')
            b(f'v_add_u32 {v(t0)}, {s(S_T0)}, {v(t0)}')
            b(f'v_and_b32 {v(t1)}, 3, {v(V_LANE)}')
            b(f'v_lshl_add_u32 {v(t0)}, {v(t0)}, 2, {v(t1)}')
            flag_addr(b, V_PA + 2, t0, t1)
            b(f's_mov_b32 {s(SRD_KV)}, {s(SRD_WS)}')
            b(f's_mov_b32 {s(SRD_KV + 1)}, {s(SRD_WS + 1)}')
            b(f's_cmp_lt_u32 {s(S_W)}, 2')
            b(f's_cselect_b32 {s(SRD_KV + 2)}, {hex(WS_SIZE)}, 0')
            b(f's_mov_b32 {s(SRD_KV + 3)}, 0x20000')
            b(f's_lshl_b32 {s(S_KVO)}, {s(S_U)}, 14')
            b(f's_and_b32 {s(S_T0)}, {s(S_W)}, 1')
            b(f's_lshl_b32 {s(S_T0)}, {s(S_T0)}, 13')
            b(f's_add_u32 {s(S_KVO)}, {s(S_KVO)}, {s(S_T0)}')
            b(f's_add_u32 {s(S_KVO)}, {s(S_KVO)}, {WS_KVP}')
        fill = []
        items = []

        def drain(n):
            k = 0
            while fill and k < n:
                x = fill.pop(0)
                emit1(b, x)
                k += len(x) if isinstance(x, list) else 1

        n0 = b.mark()
        GP = NG - 36
        GT = NG - D
        for gi in range(NG):
            nb, n = gi >> 5, gi & 31
            acc = ACC[nb & 1]
            for tb in range(2):
                c = '0' if n == 0 else v(acc + 16 * tb, 16)
                b(f'v_mfma_f32_32x32x16_bf16 {v(acc + 16 * tb, 16)}, {v(RING + 4 * (gi % D), 4)}, {a(8 * n + 4 * tb, 4)}, {c}')
            if gi + D < NG:
                bload(b, gi + D)
            if gi == 4:
                g.mv_chunk(b, 3, 'f0')
            if gi == 5:
                b.wait_lds()
                b.add(G.a_chunk_items(6, 'f0'))
            if gi == 10:
                g.mv_chunk(b, 4, 'f1')
            if gi == 11:
                b.wait_lds()
                b.add(G.a_chunk_items(7, 'f1'))
            if gi == 16:
                g.mv_chunk(b, 5, 'f2')
            if gi == 22:
                g.mv_chunk(b, 6, 'f0')
            if gi == 26:
                g.mv_chunk(b, 7, 'f1')
            if gi == 31:
                b.wait_lds()
                b('s_barrier')
            if b.q:
                b.pop(2)
            if gi == GP:
                b(f's_mov_b32 {s(S_T7)}, {WS_FP1}')
                b(f'buffer_load_dword {v(V_PR)}, {v(V_PA + 1)}, {s(SRD_WS, 4)}, {s(S_T7)} offen sc1')
            if light and gi == 20:
                b(f's_mov_b32 {s(S_T7)}, {WS_FP1}')
                b(f'buffer_load_dword {v(V_PR + 1)}, {v(V_PA + 2)}, {s(SRD_WS, 4)}, {s(S_T7)} offen sc1')
            if light and gi == 34:
                b(f's_mov_b32 {s(S_T7)}, {WS_FP1}')
                g.poll(b, V_PA + 2, s(S_T7), V_PR + 1, first_issued=True, mark=13)
                for r in range(8):
                    l = []
                    if r % 4 == 0:
                        l = [f's_add_u32 {s(S_Q0)}, {s(S_KVO)}, {1024 * r}']
                    l.append(f'buffer_load_dwordx4 {v(V_KL + 4 * r, 4)}, {v(V_L16)}, {s(SRD_KV, 4)}, {s(S_Q0)} offen offset:{1024 * (r & 3)} sc1')
                    items.append(l)
            if nb > 0:
                if 2 <= n < 10:
                    b(xw(nb - 1, n - 2))
                if n == 12:
                    b.wait_lds()
                    b('s_barrier')
                if 12 <= n < 20:
                    b(xr(nb - 1, n - 12))
                if n == 21:
                    fill.extend(xsum(V_GS + 8 * (nb - 1)))
            if gi == GT:
                drain(len(fill))
                b(f's_mov_b32 {s(S_T7)}, {WS_FP1}')
                g.poll(b, V_PA + 1, s(S_T7), V_PR, first_issued=True, mark=15)
                items.extend(tail_loads(nblk))
            if light and gi == 52:
                for r in range(0, 8, 2):
                    for k in range(4):
                        fill.append(f'v_add_f32 {v(V_KL + 4 * r + k)}, {v(V_KL + 4 * r + k)}, {v(V_KL + 4 * r + 4 + k)}')
                for k in range(4):
                    fill.append(f'v_add_f32 {v(V_KL + k)}, {v(V_KL + k)}, {v(V_KL + 8 + k)}')
                    fill.append(f'v_add_f32 {v(V_KL + 16 + k)}, {v(V_KL + 16 + k)}, {v(V_KL + 24 + k)}')
                for k in range(4):
                    fill.append(f'v_add_f32 {v(V_KS + k)}, {v(V_KL + k)}, {v(V_KL + 16 + k)}')
            if light and gi == 58:
                drain(len(fill))
                b(f's_mul_i32 {s(S_T0)}, {s(S_W)}, {PRIV}')
                b(f's_add_u32 {s(S_T0)}, {s(S_T0)}, {KVSCR}')
                b(f'v_add_u32 {v(t0)}, {s(S_T0)}, {v(V_L16)}')
                b(f'ds_write_b128 {v(t0)}, {v(V_KS, 4)}')
                b.wait_lds()
                b('s_barrier')
                b(f'v_add_u32 {v(t0)}, {PRIV + KVSCR}, {v(V_L16)}')
                b(f'ds_read_b128 {v(V_KL, 4)}, {v(t0)}')
                for k in range(4):
                    b(f'v_add_f32 {v(V_KS + k)}, {v(V_KS + k)}, {v(V_KL + k)}')
                b(f'v_cvt_pk_bf16_f32 {v(V_KS)}, {v(V_KS)}, {v(V_KS + 1)}')
                b(f'v_cvt_pk_bf16_f32 {v(V_KS + 1)}, {v(V_KS + 2)}, {v(V_KS + 3)}')
                b(f's_cmp_eq_u32 {s(S_W)}, 0')
                b(f's_cselect_b32 {s(SRD_KV + 2)}, {hex(WS_SIZE)}, 0')
                b(f's_lshr_b32 {s(S_T0)}, {s(S_U)}, 1')
                b(f's_lshl_b32 {s(S_T0)}, {s(S_T0)}, 10')
                b(f's_and_b32 {s(S_T1)}, {s(S_U)}, 1')
                b(f's_lshl_b32 {s(S_T1)}, {s(S_T1)}, 3')
                b(f's_add_u32 {s(S_T0)}, {s(S_T0)}, {s(S_T1)}')
                b(f's_add_u32 {s(S_T0)}, {s(S_T0)}, {WS_KVF}')
                b(f'buffer_store_dwordx2 {v(V_KS, 2)}, {v(V_L16)}, {s(SRD_KV, 4)}, {s(S_T0)} offen sc1', tag='kvf')
            for _ in range(2 if gi >= GT else 1):
                if items:
                    emit1(b, items.pop(0))
            drain(6)
            if gi in (7, 23, 31, 47, 63, 79):
                stamp(b, 24 + (7, 23, 31, 47, 63, 79).index(gi))
        while items:
            emit1(b, items.pop(0))
        drain(len(fill))
        b.weave_from(n0, G=5)
        stamp(b, 6)
        if light:
            b.wait_vm('kvf')
            b(f's_lshl_b32 {s(S_T0)}, {s(S_U)}, 4')
            b(f's_add_u32 {s(S_T0)}, {s(S_T0)}, {WS_FKV}')
            b(f'v_mov_b32 {v(V_POLL)}, {s(S_N)}')
            b(f'buffer_store_dword {v(V_POLL)}, off, {s(SRD_KV, 4)}, {s(S_T0)} sc1', tag='flag')
        last = nblk - 1
        for k in range(8):
            b(xw(last, k))
        for x in gate_setup():
            emit1(b, x)
        b.wait_lds()
        b('s_barrier')
        for k in range(8):
            b(xr(last, k))
        for nb in range(last):
            for x in ymath(nb, V_GS + 8 * nb):
                emit1(b, x)
            ystore(b, nb)
        for x in xsum(V_GS) + ymath(last, V_GS):
            emit1(b, x)
        ystore(b, last)
        stamp(b, 7)
        if light:
            ep = g.lab('EP')
            b(f's_lshl_b32 {s(S_T0)}, {s(S_I)}, 5')
            b(f's_lshl2_add_u32 {s(S_T0)}, {s(S_J)}, {s(S_T0)}')
            b(f's_add_u32 {s(S_T0)}, {s(S_T0)}, {s(S_W)}')
            b(f's_cmp_lg_u32 {s(S_T0)}, {6 * 4 + 3}')
            b(f's_cbranch_scc1 {ep}_end')
            txt = [f'    v_and_b32 {v(t1)}, 3, {v(V_LANE)}', f'    v_lshrrev_b32 {v(t0)}, 2, {v(V_LANE)}',
                   f'    v_lshlrev_b32 {v(t0)}, 4, {v(t0)}', f'    v_add_lshl_u32 {v(t0)}, {v(t0)}, {v(t1)}, 2']
            for k in range(16):
                txt.append(f'    s_mov_b32 {s(S_T3)}, {WS_FP1 + 1024 * k}')
                txt.append(f'    buffer_load_dword {v(32 + k)}, {v(t0)}, {s(SRD_WS, 4)}, {s(S_T3)} offen sc1')
            txt = [f'    s_mov_b32 {s(G.S_CNT)}, {G.SPIN_MAX}', f'{ep}:'] + txt + ['    s_waitcnt vmcnt(0)']
            for k in range(16):
                txt.append(f'    v_xor_b32 {v(32 + k)}, {s(S_N)}, {v(32 + k)}')
            for k in range(1, 16, 2):
                hi = 32 + k + 1 if k + 1 < 16 else 32 + k
                txt.append(f'    v_or3_b32 {v(32)}, {v(32)}, {v(32 + k)}, {v(hi)}')
            txt += [f'    v_cmp_ne_u32 vcc, 0, {v(32)}', f'    s_cbranch_vccz {ep}_ok',
                    f'    s_sub_u32 {s(G.S_CNT)}, {s(G.S_CNT)}, 1', f'    s_cmp_lg_u32 {s(G.S_CNT)}, 0', f'    s_cbranch_scc1 {ep}',
                    f'{ep}_ok:', f'    v_mov_b32 {v(V_POLL)}, {s(S_N)}',
                    f'    buffer_store_dword {v(V_POLL)}, off, {s(SRD_WS, 4)}, 0 sc1', f'{ep}_end:']
            b.b.raw('\n'.join(txt))
        else:
            b('s_branch L_P3')
        return b.b

    PH = main_stream(False)
    PL = main_stream(True)

    b = St(g, 'P3')
    b.label('L_P3')
    ACC3 = 64
    T = [224, 240]
    b(f'v_bfe_u32 {v(t0)}, {v(V_LANE)}, 2, 1')
    b(f'v_bfe_u32 {v(t1)}, {v(V_LANE)}, 4, 1')
    b(f'v_xor_b32 {v(t0)}, {v(t0)}, {v(t1)}')
    b(f'v_and_b32 {v(t1)}, 3, {v(V_LANE)}')
    b(f'v_lshlrev_b32 {v(t1)}, 4, {v(t1)}')
    b(f'v_lshl_add_u32 {v(t0)}, {v(t0)}, 6, {v(t1)}')
    b(f'v_lshrrev_b32 {v(t1)}, 3, {v(V_LANE)}')
    b(f'v_lshl_add_u32 {v(t0)}, {v(t1)}, 10, {v(t0)}')
    b(f's_lshl_b32 {s(S_T0)}, {s(S_J)}, 7')
    VW = 28
    b(f'v_add_u32 {v(VW)}, {s(S_T0)}, {v(t0)}')
    b(f'v_add_u32 {v(VW + 1)}, 7168, {v(VW)}')
    b(f's_cmp_eq_u32 {s(S_W)}, 0')
    b(f's_cselect_b32 {s(S_T0)}, {hex(OOB)}, 0')
    b(f'v_add_u32 {v(32)}, {s(S_T0)}, {v(VW)}')
    b(f's_mul_i32 {s(S_WOB)}, {s(S_W)}, {176 * 1024}')
    b(f's_sub_u32 {s(S_WOB)}, {s(S_WOB)}, 16384')
    b(f's_mul_i32 {s(S_PART)}, {s(S_W)}, {PRIV}')
    srd(b, SRD_X, P_WO, 512 * 1024)
    srd(b, SRD_U, P_WOUT, 688 * 1024)

    def wo_items(hd):
        return [[f's_add_u32 m0, {s(S_PART)}, {XOFF + 2048 * hd}',
                 f's_lshl_b32 {s(S_Q0)}, {s(S_W)}, 17',
                 f's_add_u32 {s(S_Q0)}, {s(S_Q0)}, {16384 * hd}',
                 (f'wo{hd}', f'buffer_load_dwordx4 {v(VW)}, {s(SRD_X, 4)}, {s(S_Q0)} offen{G.NT(8)} lds')],
                [(f'wo{hd}', f'buffer_load_dwordx4 {v(VW + 1)}, {s(SRD_X, 4)}, {s(S_Q0)} offen offset:1024{G.NT(8)} lds')]]

    def wout_items():
        it = []
        for i in range(22):
            vo = 32 if i < 2 else VW
            it.append([f's_add_u32 m0, {s(S_PART)}, {1024 * i}',
                       f's_add_u32 {s(S_Q0)}, {s(S_WOB)}, {8192 * i}',
                       f's_max_i32 {s(S_Q0)}, {s(S_Q0)}, 0',
                       ('wout', f'buffer_load_dwordx4 {v(vo)}, {s(SRD_U, 4)}, {s(S_Q0)} offen{G.NT(8)} lds')])
        return it

    b(f'v_and_b32 {v(t0)}, 15, {v(V_LANE)}')
    b(f's_lshl_b32 {s(S_T0)}, {s(S_W)}, 4')
    b(f'v_add_u32 {v(t0)}, {s(S_T0)}, {v(t0)}')
    b(f'v_lshlrev_b32 {v(V_PA + 3)}, 4, {v(t0)}')
    b(f's_mov_b32 {s(S_T7)}, {WS_FKV}')
    b(f'buffer_load_dword {v(V_PR)}, {v(V_PA + 3)}, {s(SRD_WS, 4)}, {s(S_T7)} offen sc1')
    for hd in range(4):
        b.add(wo_items(hd))
    b.flush()
    V_TW = 26
    tr_addr(b, V_TW, True)
    b(f'v_add_u32 {v(V_TW)}, {s(S_PART)}, {v(V_TW)}')
    b(f'v_xor_b32 {v(V_TW + 1)}, 64, {v(V_TW)}')
    b.wait_vm('y')
    b(f's_lshl3_add_u32 {s(S_T0)}, {s(S_I)}, {s(S_J)}')
    b(f's_lshl4_add_u32 {s(S_T0)}, {s(S_T0)}, {s(S_W)}')
    b(f's_lshl_b32 {s(S_T0)}, {s(S_T0)}, 2')
    b(f's_add_u32 {s(S_T0)}, {s(S_T0)}, {WS_FY}')
    b(f'v_mov_b32 {v(V_POLL)}, {s(S_N)}')
    b(f'buffer_store_dword {v(V_POLL)}, off, {s(SRD_WS, 4)}, {s(S_T0)} sc1', tag='flag')
    stamp(b, 8)
    g.poll(b, V_PA + 3, s(S_T7), V_PR, first_issued=True, mark=19)
    stamp(b, 14)
    b(f's_lshl_b32 {s(S_T0)}, {s(S_W)}, 13')
    b(f's_add_u32 {s(S_T0)}, {s(S_T0)}, {WS_KVF}')
    for hd in range(8):
        if hd == 4:
            b(f's_add_u32 {s(S_T0)}, {s(S_T0)}, 4096')
        b(f'buffer_load_dwordx4 {a(A_KV + 4 * hd, 4)}, {v(V_L16)}, {s(SRD_WS, 4)}, {s(S_T0)} offen offset:{1024 * (hd & 3)} sc1')
    for hd in range(4, 8):
        b.add(wo_items(hd))
    b.add(wout_items())
    WFR = 48
    OF = [[8, 12], [16, 4]]
    eps = hex(f2u(1e-6))

    def num(hd):
        for tb in range(2):
            b(f'v_mfma_f32_32x32x16_bf16 {v(T[tb], 16)}, {a(A_KV + 4 * hd, 4)}, {a(A_PQ + 4 * (2 * hd + tb), 4)}, 0')

    def wread(hd):
        st = hd & 1
        b.ensure(f'wo{hd}')
        b.wait_vm(f'wo{hd}')
        for db in range(2):
            for t in range(2):
                b(f'ds_read_b64_tr_b16 {v(WFR + 8 * st + 4 * db + 2 * t, 2)}, {v(V_TW + db)} offset:{XOFF + 2048 * hd + 1024 * t}')

    def post(hd, tb):
        n0, dn = (T[tb], T[tb] + 8) if hd % 2 == 0 else (T[tb] + 8, T[tb])
        b(f'v_add_f32 {v(dn)}, {eps}, {v(dn)}')
        b(f'v_rcp_f32 {v(dn)}, {v(dn)}')
        b(f'v_mul_f32 {v(dn)}, {v(dn)}, {v(V_G0 + tb)}')
        for k in range(8):
            b(f'v_mul_f32 {v(n0 + k)}, {v(n0 + k)}, {v(dn)}')
        of = OF[hd & 1][tb]
        for k in range(4):
            b(f'v_cvt_pk_bf16_f32 {v(of + k)}, {v(n0 + 2 * k)}, {v(n0 + 2 * k + 1)}')

    def outm(hd):
        st = hd & 1
        for tb in range(2):
            for db in range(2):
                acc = ACC3 + 16 * (2 * tb + db)
                c = '0' if hd == 0 else v(acc, 16)
                b(f'v_mfma_f32_32x32x16_bf16 {v(acc, 16)}, {v(WFR + 8 * st + 4 * db, 4)}, {v(OF[st][tb], 4)}, {c}')

    b.period = 10
    n0 = b.mark()
    for hd in range(8):
        num(hd)
        wread(hd)
        if hd > 0:
            outm(hd - 1)
        post(hd, 0)
        post(hd, 1)
        if hd == 5:
            with b.atomic():
                b(f'v_and_b32 {v(t1)}, 31, {v(V_LANE)}')
                b(f's_lshl_b32 {s(S_T0)}, {s(S_I)}, 5')
                b(f'v_add_u32 {v(t1)}, {s(S_T0)}, {v(t1)}')
                flag_addr(b, 20, t1, t0)
                b(f's_mov_b32 {s(S_T7)}, {WS_FY}')
                b(f'buffer_load_dword {v(21)}, {v(20)}, {s(SRD_WS, 4)}, {s(S_T7)} offen sc1')
    outm(7)
    b.flush()
    b.weave_from(n0, G=6)
    b.period = 0
    stamp(b, 9)
    g.poll(b, 20, s(S_T7), 21, first_issued=True, mark=22)
    stamp(b, 10)
    for n in range(11):
        for tb in range(2):
            if n % 4 == 0:
                b(f's_lshl1_add_u32 {s(S_T0 + tb)}, {s(S_I)}, {tb}')
                b(f's_mul_i32 {s(S_T0 + tb)}, {s(S_T0 + tb)}, 45056')
                b(f's_mul_i32 {s(S_T2)}, {s(S_W)}, {11 * 1024}')
                b(f's_add_u32 {s(S_T0 + tb)}, {s(S_T0 + tb)}, {s(S_T2)}')
                b(f's_add_u32 {s(S_T0 + tb)}, {s(S_T0 + tb)}, {WS_Y + 1024 * n}')
            b(f'buffer_load_dwordx4 {a(A_Y + 8 * n + 4 * tb, 4)}, {v(V_L16)}, {s(SRD_WS, 4)}, {s(S_T0 + tb)} offen offset:{1024 * (n & 3)} sc1')
    b.wait_vm('wout')

    def woutread(n):
        st = n & 1
        for db in range(2):
            for t in range(2):
                b(f'ds_read_b64_tr_b16 {v(WFR + 8 * st + 4 * db + 2 * t, 2)}, {v(V_TW + db)} offset:{2048 * n + 1024 * t}')
    n0 = b.mark()
    woutread(0)
    for n in range(11):
        if n + 1 < 11:
            woutread(n + 1)
        st = n & 1
        for tb in range(2):
            for db in range(2):
                acc = ACC3 + 16 * (2 * tb + db)
                b(f'v_mfma_f32_32x32x16_bf16 {v(acc, 16)}, {v(WFR + 8 * st + 4 * db, 4)}, {a(A_Y + 8 * n + 4 * tb, 4)}, {v(acc, 16)}')
    b.weave_from(n0, G=5)
    b.wait_lds()
    b('s_barrier')
    b(f's_lshl_b32 {s(S_T0)}, {s(S_W)}, 14')
    b(f'v_add_u32 {v(t0)}, {s(S_T0)}, {v(V_L16)}')
    for blk in range(4):
        for j in range(4):
            b(f'ds_write_b128 {v(t0)}, {v(ACC3 + 16 * blk + 4 * j, 4)} offset:{4096 * blk + 1024 * j}')
    srd(b, SRD_T, P_OUT, 2048 * 1024)
    b(f'v_and_b32 {v(t0 + 3)}, 31, {v(V_LANE)}')
    b(f'v_lshlrev_b32 {v(t0 + 3)}, 10, {v(t0 + 3)}')
    b(f'v_lshrrev_b32 {v(t1)}, 5, {v(V_LANE)}')
    b(f'v_lshl_add_u32 {v(t0 + 3)}, {v(t1)}, 4, {v(t0 + 3)}')
    b(f's_lshl_b32 {s(S_T0)}, {s(S_I)}, 16')
    b(f's_lshr_b32 {s(S_T1)}, {s(S_W)}, 1')
    b(f's_lshl_b32 {s(S_T1)}, {s(S_T1)}, 15')
    b(f's_add_u32 {s(S_T0)}, {s(S_T0)}, {s(S_T1)}')
    b(f's_lshl_b32 {s(S_T1)}, {s(S_J)}, 7')
    b(f's_add_u32 {s(S_T0)}, {s(S_T0)}, {s(S_T1)}')
    b(f's_and_b32 {s(S_T1)}, {s(S_W)}, 1')
    b(f's_lshl_b32 {s(S_T1)}, {s(S_T1)}, 6')
    b(f's_add_u32 {s(S_T4)}, {s(S_T0)}, {s(S_T1)}')
    b.wait_lds()
    b('s_barrier')
    b(f's_lshl_b32 {s(S_T0)}, {s(S_W)}, 12')
    b(f'v_add_u32 {v(t0)}, {s(S_T0)}, {v(V_L16)}')
    RB_ = 128
    for src in range(4):
        for j in range(4):
            b(f'ds_read_b128 {v(RB_ + 16 * src + 4 * j, 4)}, {v(t0)} offset:{16384 * src + 1024 * j}')
    for k in range(16):
        b(f'v_add_f32 {v(RB_ + k)}, {v(RB_ + k)}, {v(RB_ + 16 + k)}')
        b(f'v_add_f32 {v(RB_ + 32 + k)}, {v(RB_ + 32 + k)}, {v(RB_ + 48 + k)}')
    for k in range(16):
        b(f'v_add_f32 {v(RB_ + k)}, {v(RB_ + k)}, {v(RB_ + 32 + k)}')
    O = 192
    for k in range(8):
        b(f'v_cvt_pk_bf16_f32 {v(O + k)}, {v(RB_ + 2 * k)}, {v(RB_ + 2 * k + 1)}')
    for jj in range(2):
        b(f'v_permlane32_swap_b32 {v(O + 4 * jj)}, {v(O + 4 * jj + 2)}')
        b(f'v_permlane32_swap_b32 {v(O + 4 * jj + 1)}, {v(O + 4 * jj + 3)}')
    for jj in range(2):
        b(f'buffer_store_dwordx4 {v(O + 4 * jj, 4)}, {v(t0 + 3)}, {s(SRD_T, 4)}, {s(S_T4)} offen offset:{32 * jj}')
    stamp(b, 12)
    return P2, PH, PL, b.b
```

```python
import sys, struct, math
from collections import deque
from asmlib import *

KNAME = 'gated_mix__linear_attn_block__mixer_gmlp__prompt_kernel'
OPT = dict(stamps=0, rot=1, touch=0, late=0)


def v(a, n=1):
    return f'v{a}' if n == 1 else f'v[{a}:{a + n - 1}]'


def a(x, n=1):
    return f'a{x}' if n == 1 else f'a[{x}:{x + n - 1}]'


def s(x, n=1):
    return f's{x}' if n == 1 else f's[{x}:{x + n - 1}]'


WS_EPOCH = 0
WS_FZ2 = 0x10000
WS_FP1 = 0x20000
WS_FY = 0x30000
WS_FKV = 0x40000
WS_GATE = 0x50000
WS_KVF = 0x60000
WS_STATS = 0x80000
WS_KVP = 0x100000
WS_Z2N = 0x200000
WS_Z1F = 0x500000
WS_PQ = 0x800000
WS_Y = 0xB00000
WS_DBG = 0x1000000
WS_SIZE = 0x10000000
NONCE_K = 0x9E3779B1
OOB = 0x40000000
SPIN_MAX = 20000

R0 = 0
R1 = 65536
R2 = 98304
LDS_BYTES = 163840

S_WG = 2
SRD_A = 4
SRD_U = 8
S_Q0, S_Q1 = 12, 13
S_AS = 14
S_ROT = 15
S_ROT2 = 3
P_X, P_WQKV, P_WO, P_BX, P_WIN, P_WSP, P_BSP, P_WOUT = 16, 18, 20, 22, 24, 26, 28, 30
P_GW, P_OUT, P_DBG, P_WS = 32, 34, 36, 38
SRD_X = 40
SRD_W = 44
SRD_WS = 48
SRD_T = 52
S_W = 56
S_RB, S_CG, S_I, S_J = 57, 58, 59, 60
S_N = 61
S_T0, S_T1, S_T2, S_T3, S_T4, S_T5 = 64, 65, 66, 67, 68, 69
S_XL, S_XS, S_WL, S_WSO = 70, 71, 72, 73
S_RS, S_COL, S_MASK = 74, 75, 76
S_O0, S_O1 = 77, 78
S_TB = 79
S_RS64 = 80
S_LOG2E, S_EPS = 82, 83
S_CNT = 86
S_XG, S_XLW, S_WGB = 84, 85, 87
S_KC = 91
S_D2COL, S_D2MASK, S_D2SEL = 88, 89, 90
S_D3COL, S_D3MASK, S_D3SEL = 92, 93, 94
S_T6, S_T7 = 96, 97
S_VCC2 = 98

V_LANE = 0
V_T0 = 1
V_DUM = 7
V_XD = 8
V_WD = 12
V_XRO = 14
V_XRT = 18
V_WR = 22
V_L16 = 24
V_L8 = 25
V_GA = 26
V_NON = 27
V_ST = 28
V_POLL = 30
V_AR = 32
V_E = 36
V_AD = 40
V_TCH = 44
V_BSP = 45
V_TW1, V_TW2 = 46, 47
V_ACC0 = 64
V_ACC1 = 96
V_WF = 128
V_TMP = 160
V_PK = 192
V_PV = 208
V_STAT = 224
V_KV = 64
V_KZ = 224
A_X = 128


def NT(k):
    return ' nt' if OPT.get('nt', 0) & k else ''


def f2u(x):
    return struct.unpack('<I', struct.pack('<f', x))[0]


LOG2E = 1.4426950408889634
GELU_A_F = -2.0 * LOG2E * math.sqrt(2.0 / math.pi)
GELU_A = f2u(GELU_A_F)
GELU_B = f2u(GELU_A_F * 0.044715)


class St:
    def __init__(self, g, name):
        self.g = g
        self.b = g.blk(name)
        self.q = deque()
        self.period = 0
        self.cnt = 0
        self.lock = 0

    def __call__(self, text, tag=None, **meta):
        r = self.b(text, tag=tag, **meta)
        if self.period and not self.lock and self.q:
            self.cnt += 1
            if self.cnt >= self.period:
                self.pop()
        return r

    def pop(self, n=1):
        for _ in range(n):
            if not self.q:
                return
            item = self.q.popleft()
            for x in item:
                if isinstance(x, tuple):
                    self.b(x[1], tag=x[0], **(x[2] if len(x) > 2 else {}))
                else:
                    self.b(x)
        self.cnt = 0

    def add(self, items):
        self.q.extend(items)

    def flush(self):
        self.pop(len(self.q))

    def ensure(self, tag):
        def has(item):
            return any(isinstance(x, tuple) and x[0] == tag for x in item)
        while any(has(i) for i in self.q):
            self.pop(1)

    def label(self, n):
        self.b.label(n)

    def mark(self):
        return len(self.b.ins)

    def weave_from(self, n0, G=5, adv=2):
        if OPT.get('weave', 1):
            self.b.ins[n0:] = weave(self.b.ins[n0:], G, adv)

    def wait_vm(self, t):
        self.b.wait_vm(t)

    def wait_lds(self):
        self.b.wait_lds()

    class _L:
        def __init__(self, st):
            self.st = st

        def __enter__(self):
            self.st.lock += 1

        def __exit__(self, *a):
            self.st.lock -= 1

    def atomic(self):
        return St._L(self)


def gelu_group(b, xs, tmp):
    n = len(xs)
    for k in range(n):
        b(f'v_mul_f32 {v(tmp + k)}, {v(xs[k])}, {v(xs[k])}')
    for k in range(n):
        b(f'v_fmamk_f32 {v(tmp + k)}, {v(tmp + k)}, {hex(GELU_B)}, {v(V_GA)}')
    for k in range(n):
        b(f'v_mul_f32 {v(tmp + k)}, {v(tmp + k)}, {v(xs[k])}')
    for k in range(n):
        b(f'v_exp_f32 {v(tmp + k)}, {v(tmp + k)}')
    for k in range(n):
        b(f'v_add_f32 {v(tmp + k)}, 1.0, {v(tmp + k)}')
    for k in range(n):
        b(f'v_rcp_f32 {v(tmp + k)}, {v(tmp + k)}')
    for k in range(n):
        b(f'v_mul_f32 {v(xs[k])}, {v(xs[k])}, {v(tmp + k)}')


def phi_group(b, xs, tmp):
    n = len(xs)
    for k in range(n):
        b(f'v_mul_f32 {v(tmp + k)}, {s(S_LOG2E)}, {v(xs[k])}')
    for k in range(n):
        b(f'v_exp_f32_e64 {v(tmp + k)}, {v(tmp + k)} clamp')
    for k in range(n):
        b(f'v_max_f32 {v(xs[k])}, {s(S_EPS)}, {v(xs[k])}')
    for k in range(n):
        b(f'v_add_f32 {v(xs[k])}, {v(xs[k])}, {v(tmp + k)}')


def srd(b, base, ptr, nrec):
    b(f's_mov_b32 {s(base)}, {s(ptr)}')
    b(f's_mov_b32 {s(base + 1)}, {s(ptr + 1)}')
    b(f's_mov_b32 {s(base + 2)}, {hex(nrec)}')
    b(f's_mov_b32 {s(base + 3)}, 0x20000')


def dma4_voffsets(b, dst, RS):
    t0, t1, t2 = V_T0, V_T0 + 1, V_T0 + 2
    b(f'v_lshrrev_b32 {v(t0)}, 3, {v(V_LANE)}')
    b(f'v_and_b32 {v(t1)}, 7, {v(V_LANE)}')
    b(f'v_lshrrev_b32 {v(t2)}, 4, {v(V_LANE)}')
    b(f'v_xor_b32 {v(t1)}, {v(t1)}, {v(t2)}')
    b(f'v_lshlrev_b32 {v(t1)}, 4, {v(t1)}')
    b(f'v_mul_u32_u24 {v(t0)}, {RS}, {v(t0)}')
    b(f'v_add_u32 {v(dst)}, {v(t0)}, {v(t1)}')
    b(f'v_xor_b32 {v(t1)}, 64, {v(t1)}')
    b(f'v_add_u32 {v(t0)}, {v(t0)}, {v(t1)}')
    b(f'v_add_u32 {v(dst + 1)}, {8 * RS - 1024}, {v(t0)}')
    b(f'v_add_u32 {v(dst + 2)}, {16 * RS - 2048}, {v(dst)}')
    b(f'v_add_u32 {v(dst + 3)}, {24 * RS - 3072}, {v(t0)}')


def frag_read_addrs(b, dst):
    t0, t1, t2 = V_T0, V_T0 + 1, V_T0 + 2
    b(f'v_and_b32 {v(t0)}, 31, {v(V_LANE)}')
    b(f'v_lshrrev_b32 {v(t1)}, 5, {v(V_LANE)}')
    b(f'v_bfe_u32 {v(t2)}, {v(V_LANE)}, 1, 3')
    b(f'v_xor_b32 {v(t1)}, {v(t1)}, {v(t2)}')
    b(f'v_lshlrev_b32 {v(t1)}, 4, {v(t1)}')
    b(f'v_lshl_add_u32 {v(dst)}, {v(t0)}, 7, {v(t1)}')
    for kk in range(1, 4):
        b(f'v_xor_b32 {v(dst + kk)}, {32 * kk}, {v(dst)}')


def tr_addr(b, dst, pi):
    t0, t1 = V_T0, V_T0 + 1
    b(f'v_bfe_u32 {v(t0)}, {v(V_LANE)}, 2, 2')
    b(f'v_lshrrev_b32 {v(t1)}, 5, {v(V_LANE)}')
    b(f'v_lshl_add_u32 {v(t1)}, {v(t1)}, {2 if pi else 3}, {v(t0)}')
    b(f'v_lshlrev_b32 {v(t1)}, 7, {v(t1)}')
    b(f'v_lshrrev_b32 {v(t0)}, 1, {v(t0)}')
    b(f'v_lshl_add_u32 {v(t1)}, {v(t0)}, 6, {v(t1)}')
    b(f'v_bfe_u32 {v(t0)}, {v(V_LANE)}, 4, 1')
    b(f'v_lshl_add_u32 {v(t1)}, {v(t0)}, 5, {v(t1)}')
    b(f'v_and_b32 {v(t0)}, 3, {v(V_LANE)}')
    b(f'v_lshl_add_u32 {v(dst)}, {v(t0)}, 3, {v(t1)}')


def wd_voffsets(b):
    t0, t1, t2 = V_T0, V_T0 + 1, V_T0 + 2
    b(f'v_bfe_u32 {v(t0)}, {v(V_LANE)}, 2, 1')
    b(f'v_bfe_u32 {v(t1)}, {v(V_LANE)}, 4, 1')
    b(f'v_xor_b32 {v(t0)}, {v(t0)}, {v(t1)}')
    b(f'v_and_b32 {v(t1)}, 3, {v(V_LANE)}')
    b(f'v_lshlrev_b32 {v(t1)}, 4, {v(t1)}')
    b(f'v_lshl_add_u32 {v(t0)}, {v(t0)}, 6, {v(t1)}')
    b(f'v_lshrrev_b32 {v(t1)}, 3, {v(V_LANE)}')
    b(f'v_mul_lo_u32 {v(t1)}, {v(t1)}, {s(S_RS)}')
    b(f'v_add_u32 {v(t1)}, {v(t1)}, {v(t0)}')
    b(f'v_add_u32 {v(V_WD)}, {s(S_COL)}, {v(t1)}')
    b(f's_lshl_b32 {s(S_T0)}, {s(S_RS)}, 3')
    b(f's_sub_u32 {s(S_T0)}, {s(S_T0)}, 1024')
    b(f'v_add_u32 {v(V_WD + 1)}, {s(S_T0)}, {v(V_WD)}')
    b(f'v_mov_b32 {v(t2)}, {hex(OOB)}')
    b(f'v_cmp_gt_u32 vcc, {s(S_MASK)}, {v(t0)}')
    b(f'v_cndmask_b32 {v(V_WD)}, {v(V_WD)}, {v(t2)}, vcc')
    b(f'v_cndmask_b32 {v(V_WD + 1)}, {v(V_WD + 1)}, {v(t2)}, vcc')
    b(f's_lshl_b32 {s(S_RS64)}, {s(S_RS)}, 6')
    b(f's_lshl_b32 {s(S_T0)}, {s(S_RS)}, 4')
    b(f's_mul_i32 {s(S_WSO)}, {s(S_T0)}, {s(S_W)}')


def set_w_srd(b, sel):
    b(f's_cmp_eq_u32 {s(sel)}, 0')
    b(f's_cselect_b32 {s(SRD_W)}, {s(P_WQKV)}, {s(P_WIN)}')
    b(f's_cselect_b32 {s(SRD_W + 1)}, {s(P_WQKV + 1)}, {s(P_WIN + 1)}')
    b(f's_mov_b32 {s(SRD_W + 2)}, {hex(512 * 2752)}')
    b(f's_cmov_b32 {s(SRD_W + 2)}, {hex(512 * 3072)}')
    b(f's_mov_b32 {s(SRD_W + 3)}, 0x20000')


def w_piece_items(p, region, tag):
    return [
        [f's_add_u32 {s(S_Q0)}, {s(S_ROT)}, {p}',
         f's_and_b32 {s(S_Q0)}, {s(S_Q0)}, 7',
         f's_mul_i32 {s(S_Q0)}, {s(S_Q0)}, {s(S_RS64)}',
         f's_add_u32 {s(S_Q0)}, {s(S_Q0)}, {s(S_WSO)}',
         f's_add_u32 m0, {s(S_WL)}, {region + 8192 * p}',
         (tag, f'buffer_load_dwordx4 {v(V_WD)}, {s(SRD_W, 4)}, {s(S_Q0)} offen{NT(2)} lds')],
        [(tag, f'buffer_load_dwordx4 {v(V_WD + 1)}, {s(SRD_W, 4)}, {s(S_Q0)} offen offset:1024{NT(2)} lds')],
    ]


def x_chunk_items(c, tag):
    it = []
    for i in range(4):
        l = []
        if i == 0:
            l = [f's_add_u32 {s(S_Q0)}, {s(S_ROT)}, {c}',
                 f's_and_b32 {s(S_Q0)}, {s(S_Q0)}, 7',
                 f's_lshl_b32 {s(S_Q0)}, {s(S_Q0)}, 7',
                 f's_add_u32 {s(S_Q0)}, {s(S_Q0)}, {s(S_XS)}',
                 f's_add_u32 m0, {s(S_XL)}, {16384 * (c % 4)}']
        l.append((tag, f'buffer_load_dwordx4 {v(V_XD + i)}, {s(SRD_X, 4)}, {s(S_Q0)} offen offset:{1024 * i}{NT(4)} lds'))
        it.append(l)
    return it


def l1_items(c):
    tag = f'x{c}'
    slot = R1 + 16384 * (c % 3)
    it = []
    for m in range(4):
        l = []
        if m == 0:
            l = [f's_add_u32 {s(S_KC)}, {s(S_ROT)}, {c}',
                 f's_and_b32 {s(S_KC)}, {s(S_KC)}, 7',
                 f's_lshl_b32 {s(S_Q0)}, {s(S_KC)}, 7',
                 f's_add_u32 {s(S_Q0)}, {s(S_Q0)}, {s(S_XG)}',
                 f's_add_u32 m0, {s(S_XLW)}, {slot}']
        else:
            l = [f's_add_u32 {s(S_Q0)}, {s(S_Q0)}, 7168']
        l.append((tag, f'buffer_load_dwordx4 {v(V_XD + (m & 1))}, {s(SRD_X, 4)}, {s(S_Q0)} offen offset:{1024 * m} lds'))
        it.append(l)
    it.append([f's_add_u32 {s(S_Q0)}, {s(S_Q0)}, {7168 + 4096}',
               f's_add_u32 m0, {s(S_XLW)}, {slot + 4096}',
               (tag, f'buffer_load_dwordx4 {v(V_XD)}, {s(SRD_X, 4)}, {s(S_Q0)} offen lds')])
    return it


def l1_item5(g, b, c):
    tag = f'x{c}'
    l0, l1 = g.lab('M5'), g.lab('M5')
    b.b(f's_cmp_eq_u32 {s(S_W)}, 0')
    b.b(f's_cbranch_scc0 {l0}')
    b.b(f's_add_u32 {s(S_Q0)}, {s(S_Q0)}, 7168')
    b.b(f'buffer_load_dwordx4 {v(V_XD + 1)}, {s(SRD_X, 4)}, {s(S_Q0)} offen offset:1024 lds', nocount=True)
    b.b(f's_branch {l1}')
    b.b.label(l0)
    b.b(f's_mul_i32 {s(S_Q1)}, {s(S_KC)}, {s(S_RS64)}')
    b.b(f's_sub_u32 {s(S_Q0)}, {s(S_WGB)}, 1')
    b.b(f's_lshl_b32 {s(S_T0)}, {s(S_Q0)}, 10')
    b.b(f's_add_u32 m0, {s(S_T0)}, {R0 + 8192 * c}')
    b.b(f's_lshl_b32 {s(S_T0)}, {s(S_RS)}, 3')
    b.b(f's_mul_i32 {s(S_Q0)}, {s(S_Q0)}, {s(S_T0)}')
    b.b(f's_add_u32 {s(S_Q0)}, {s(S_Q0)}, {s(S_Q1)}')
    b.b(f'buffer_load_dwordx4 {v(V_WD)}, {s(SRD_W, 4)}, {s(S_Q0)} offen lds', tag=tag)
    b.b.label(l1)


def l1_w_items(c):
    tag = f'x{c}'
    return [[f's_mul_i32 {s(S_Q1)}, {s(S_KC)}, {s(S_RS64)}',
             f's_lshl_b32 {s(S_Q0)}, {s(S_WGB)}, 10',
             f's_add_u32 m0, {s(S_Q0)}, {R0 + 8192 * c}',
             f's_lshl_b32 {s(S_Q0)}, {s(S_RS)}, 3',
             f's_mul_i32 {s(S_Q0)}, {s(S_Q0)}, {s(S_WGB)}',
             f's_add_u32 {s(S_Q0)}, {s(S_Q0)}, {s(S_Q1)}',
             (tag, f'buffer_load_dwordx4 {v(V_WD)}, {s(SRD_W, 4)}, {s(S_Q0)} offen lds')],
            [(tag, f'buffer_load_dwordx4 {v(V_WD + 1)}, {s(SRD_W, 4)}, {s(S_Q0)} offen offset:1024 lds')]]


def a_slot(kind):
    return {'h0': (13, R1), 'h1': (13, R1 + 4096), 'f0': (13, R1), 'f1': (14, R2), 'f2': (14, R2 + 8192)}[kind]


def a_piece_items(c, tb, slot, off=0):
    sh, base = a_slot(slot)
    it = []
    for i in range(4):
        l = []
        if i == 0:
            l = [f's_add_u32 {s(S_Q0)}, {s(S_ROT2)}, {c}',
                 f's_and_b32 {s(S_Q0)}, {s(S_Q0)}, 7',
                 f's_lshl_b32 {s(S_Q0)}, {s(S_Q0)}, 7',
                 f's_add_u32 {s(S_Q0)}, {s(S_Q0)}, {s(S_AS)}']
            if tb:
                l.append(f's_add_u32 {s(S_Q0)}, {s(S_Q0)}, {32 * 4096}')
            l += [f's_lshl_b32 {s(S_Q1)}, {s(S_W)}, {sh}',
                  f's_add_u32 m0, {s(S_Q1)}, {base + off}']
        l.append((f'a{c}_{tb}', f'buffer_load_dwordx4 {v(V_AD + i)}, {s(SRD_A, 4)}, {s(S_Q0)} offen offset:{1024 * i}{NT(1)} lds'))
        it.append(l)
    return it


def a_piece_read(b, c, tb, slot, off=0):
    sh, base = a_slot(slot)
    with b.atomic():
        b(f's_lshl_b32 {s(S_T0)}, {s(S_W)}, {sh}')
        b(f's_add_u32 {s(S_T0)}, {s(S_T0)}, {base + off}')
        for kk in range(4):
            b(f'v_add_u32 {v(V_T0 + kk)}, {s(S_T0)}, {v(V_AR + kk)}')
        for kk in range(4):
            r = 8 * (4 * c + kk) + 4 * tb
            b(f'ds_read_b128 {a(r, 4)}, {v(V_T0 + kk)}')


def a_chunk_items(c, slot):
    return a_piece_items(c, 0, slot) + a_piece_items(c, 1, slot, 4096)


def a_chunk_read(b, c, slot):
    sh, base = a_slot(slot)
    with b.atomic():
        b(f's_lshl_b32 {s(S_T0)}, {s(S_W)}, {sh}')
        b(f's_add_u32 {s(S_T0)}, {s(S_T0)}, {base}')
        for kk in range(4):
            b(f'v_add_u32 {v(V_T0 + kk)}, {s(S_T0)}, {v(V_AR + kk)}')
        for kk in range(4):
            for tb in range(2):
                r = 8 * (4 * c + kk) + 4 * tb
                b(f'ds_read_b128 {a(r, 4)}, {v(V_T0 + kk)} offset:{4096 * tb}')


def stamp(b, idx):
    if not OPT['stamps']:
        return
    lock = b.atomic() if hasattr(b, 'atomic') else None
    if lock:
        lock.__enter__()
    b(f's_memrealtime {s(S_VCC2, 2)}' if OPT['stamps'] == 1 else f's_memtime {s(S_VCC2, 2)}')
    b('s_waitcnt lgkmcnt(0)')
    b(f's_lshl_b32 {s(S_T6)}, {s(S_WG)}, 2')
    b(f's_add_u32 {s(S_T6)}, {s(S_T6)}, {s(S_W)}')
    b(f's_lshl_b32 {s(S_T6)}, {s(S_T6)}, 7')
    b(f's_add_u32 {s(S_T6)}, {s(S_T6)}, {WS_DBG + 4 * idx}')
    b(f'v_mov_b32 {v(V_POLL + 1)}, {s(S_VCC2)}')
    b(f'buffer_store_dword {v(V_POLL + 1)}, off, {s(SRD_WS, 4)}, {s(S_T6)}')
    if lock:
        lock.__exit__()


def s1_issue(g, b):
    from phase23 import s1_issue as f
    f(g, b)


def slow_mark(idx):
    if not OPT['stamps']:
        return ''
    return f'''    s_lshl_b32 {s(S_T6)}, {s(S_WG)}, 2
    s_add_u32 {s(S_T6)}, {s(S_T6)}, {s(S_W)}
    s_lshl_b32 {s(S_T6)}, {s(S_T6)}, 7
    s_add_u32 {s(S_T6)}, {s(S_T6)}, {WS_DBG + 4 * idx}
    s_sub_u32 {s(S_VCC2)}, {SPIN_MAX + 1}, {s(S_CNT)}
    v_mov_b32 {v(V_POLL + 1)}, {s(S_VCC2)}
    buffer_store_dword {v(V_POLL + 1)}, off, {s(SRD_WS, 4)}, {s(S_T6)}
'''


class Gen:
    def __init__(self):
        self.blocks = []
        self.slow = []
        self.nlab = 0

    def blk(self, name):
        b = Block(name)
        self.blocks.append(b)
        return b

    def lab(self, p='L'):
        self.nlab += 1
        return f'{p}_{self.nlab}'

    def poll(self, b, vaddr, soff, vtmp, first_issued=False, skip_if_zero=None, mark=31):
        cont = self.lab('PC')
        slow = self.lab('PS')
        lock = b.atomic() if hasattr(b, 'atomic') else None
        if lock:
            lock.__enter__()
        if not first_issued:
            b(f'buffer_load_dword {v(vtmp)}, {v(vaddr)}, {s(SRD_WS, 4)}, {soff} offen sc1')
        b(f'v_cmp_ne_u32 vcc, {s(S_N)}, {v(vtmp)}')
        if skip_if_zero is not None:
            b(f's_cmp_eq_u32 {s(skip_if_zero)}, 0')
            b(f's_cbranch_scc1 {cont}')
        b(f's_cbranch_vccnz {slow}')
        b.label(cont)
        if lock:
            lock.__exit__()
        self.slow.append(f'''{slow}:
    s_mov_b32 {s(S_CNT)}, {SPIN_MAX}
{slow}_l:
    s_sleep 1
    buffer_load_dword {v(vtmp)}, {v(vaddr)}, {s(SRD_WS, 4)}, {soff} offen sc1
    s_waitcnt vmcnt(0)
{slow_mark(mark)}    v_cmp_ne_u32 vcc, {s(S_N)}, {v(vtmp)}
    s_cbranch_vccz {cont}
    s_sub_u32 {s(S_CNT)}, {s(S_CNT)}, 1
    s_cmp_lg_u32 {s(S_CNT)}, 0
    s_cbranch_scc1 {slow}_l
    s_branch {cont}''')

    def prologue(self):
        b = St(self, 'PRO')
        b(f's_cmp_ge_u32 {s(S_WG)}, 256')
        b('s_cbranch_scc1 L_END')
        b('s_load_dwordx16 s[16:31], s[0:1], 0x0')
        b('s_load_dwordx8 s[32:39], s[0:1], 0x40')
        b(f'v_lshrrev_b32 {v(V_T0)}, 6, {v(0)}')
        b(f'v_and_b32 {v(V_LANE)}, 63, {v(0)}')
        b(f's_and_b32 {s(S_T0)}, {s(S_WG)}, 7')
        b(f'v_readfirstlane_b32 {s(S_W)}, {v(V_T0)}')
        b(f's_lshr_b32 {s(S_T1)}, {s(S_WG)}, 3')
        b(f's_lshr_b32 {s(S_T2)}, {s(S_T1)}, 2')
        b(f's_and_b32 {s(S_T1)}, {s(S_T1)}, 3')
        b(f's_and_b32 {s(S_T3)}, {s(S_T0)}, 1')
        b(f's_lshr_b32 {s(S_T0)}, {s(S_T0)}, 1')
        b(f's_lshl3_add_u32 {s(S_RB)}, {s(S_T3)}, {s(S_T2)}')
        b(f's_lshl2_add_u32 {s(S_CG)}, {s(S_T0)}, {s(S_T1)}')
        b(f's_lshl3_add_u32 {s(S_I)}, {s(S_T0)}, {s(S_T2)}')
        b(f's_lshl2_add_u32 {s(S_J)}, {s(S_T3)}, {s(S_T1)}')
        b(f's_lshl1_add_u32 {s(S_ROT)}, {s(S_T1)}, {s(S_T2)}')
        b(f's_and_b32 {s(S_ROT)}, {s(S_ROT)}, 7')
        if OPT.get('map', 1):
            b(f's_and_b32 {s(S_T4)}, {s(S_WG)}, 7')
            b(f's_lshr_b32 {s(S_T5)}, {s(S_WG)}, 6')
            b(f's_lshl2_add_u32 {s(S_I)}, {s(S_T4)}, {s(S_T5)}')
            b(f's_bfe_u32 {s(S_J)}, {s(S_WG)}, 0x30003')
            b(f's_lshl1_add_u32 {s(S_ROT2)}, {s(S_T5)}, {s(S_J)}')
            b(f's_and_b32 {s(S_ROT2)}, {s(S_ROT2)}, 7')
        else:
            b(f's_mov_b32 {s(S_ROT2)}, {s(S_ROT)}')
        if not OPT['rot']:
            b(f's_mov_b32 {s(S_ROT)}, 0')
        b(f'v_lshrrev_b32 {v(V_T0)}, 3, {v(V_LANE)}')
        b(f'v_and_b32 {v(V_T0 + 1)}, 7, {v(V_LANE)}')
        b(f'v_lshrrev_b32 {v(V_T0 + 2)}, 4, {v(V_LANE)}')
        b(f'v_xor_b32 {v(V_T0 + 1)}, {v(V_T0 + 1)}, {v(V_T0 + 2)}')
        b(f'v_lshlrev_b32 {v(V_T0 + 1)}, 4, {v(V_T0 + 1)}')
        b(f's_cmp_eq_u32 {s(S_W)}, 2')
        b(f's_cselect_b32 {s(S_T0)}, 64, 0')
        b(f'v_xor_b32 {v(V_T0 + 1)}, {s(S_T0)}, {v(V_T0 + 1)}')
        b(f'v_lshl_add_u32 {v(V_XD)}, {v(V_T0)}, 10, {v(V_T0 + 1)}')
        b(f'v_xor_b32 {v(V_XD + 1)}, 64, {v(V_XD)}')
        b(f's_mul_i32 {s(S_XLW)}, {s(S_W)}, 6')
        b(f's_cmp_eq_u32 {s(S_W)}, 2')
        b(f's_cselect_b32 {s(S_XLW)}, 11, {s(S_XLW)}')
        b(f's_lshl_b32 {s(S_XG)}, {s(S_XLW)}, 13')
        b(f's_lshl_b32 {s(S_T0)}, {s(S_RB)}, 17')
        b(f's_add_u32 {s(S_XG)}, {s(S_XG)}, {s(S_T0)}')
        b(f's_lshl_b32 {s(S_XLW)}, {s(S_XLW)}, 10')
        b(f's_mul_i32 {s(S_WGB)}, {s(S_W)}, 3')
        b(f's_lshl_b32 {s(S_T0)}, {s(S_CG)}, 7')
        b(f's_add_u32 {s(S_T1)}, {s(S_T0)}, 1344')
        b(f's_sub_u32 {s(S_T2)}, {s(S_T0)}, 1024')
        b(f's_cmp_le_u32 {s(S_CG)}, 10')
        b(f's_cselect_b32 {s(S_COL)}, {s(S_T1)}, {s(S_T2)}')
        b(f's_mov_b32 {s(S_RS)}, 3072')
        b(f's_cmov_b32 {s(S_RS)}, 2752')
        b(f's_cselect_b32 {s(S_T3)}, 1, 0')
        b(f's_cmp_eq_u32 {s(S_CG)}, 0')
        b(f's_cselect_b32 {s(S_MASK)}, 32, 0')
        wd_voffsets(b)
        b(f's_lshl_b32 {s(S_WL)}, {s(S_W)}, 11')
        b(f's_lshl2_add_u32 {s(S_TB)}, {s(S_RB)}, {s(S_W)}')
        if OPT.get('cpf', 1):
            b(f's_getpc_b64 {s(62, 2)}')
            b.label('L_pc0')
            b(f's_lshr_b32 {s(S_T0)}, {s(S_WG)}, 3')
            b(f's_lshl2_add_u32 {s(S_T0)}, {s(S_T0)}, {s(S_W)}')
            b(f's_lshl_b32 {s(S_T0)}, {s(S_T0)}, 9')
            b(f's_min_u32 {s(S_T0)}, {s(S_T0)}, L_code_end-L_pc0-512')
            b(f'v_lshlrev_b32 {v(V_T0 + 3)}, 3, {v(V_LANE)}')
            b(f'v_add_u32 {v(V_T0 + 3)}, {s(S_T0)}, {v(V_T0 + 3)}')
            b(f'global_load_dwordx2 {v(250, 2)}, {v(V_T0 + 3)}, {s(62, 2)}', nodst=True)
        b('s_waitcnt lgkmcnt(0)')
        srd(b, SRD_X, P_X, 2048 * 1024)
        set_w_srd(b, S_T3)
        if OPT.get('sym', 1):
            dma4_voffsets(b, V_XD, 1024)
            b(f's_lshl_b32 {s(S_XL)}, {s(S_W)}, 12')
            b(f's_add_u32 {s(S_XL)}, {s(S_XL)}, {R1}')
            b(f's_lshl_b32 {s(S_XS)}, {s(S_TB)}, 15')
            for c in range(3):
                b.add(x_chunk_items(c, f'x{c}'))
                b.add(w_piece_items(c, R0, f'x{c}'))
            b.flush()
        else:
            b(f's_cmp_eq_u32 {s(S_W)}, 3')
            b('s_cbranch_scc1 L_noload0')
            n0 = len(b.b.ins)
            for c in range(2):
                b.add(l1_items(c))
                b.flush()
                l1_item5(self, b, c)
                b.add(l1_w_items(c))
                b.flush()
            for i in b.b.ins[n0:]:
                i.meta['loader'] = True
            b.label('L_noload0')
        srd(b, SRD_WS, P_WS, WS_SIZE)
        b(f'buffer_load_dword {v(V_E)}, off, {s(SRD_WS, 4)}, 0 sc1', tag='epoch')
        stamp(b, 0)
        b(f's_mov_b32 {s(S_LOG2E)}, {hex(f2u(LOG2E))}')
        b(f's_mov_b32 {s(S_EPS)}, {hex(f2u(1e-6))}')
        b(f'v_mov_b32 {v(V_GA)}, {hex(GELU_A)}')
        b(f'v_lshlrev_b32 {v(V_L16)}, 4, {v(V_LANE)}')
        b(f'v_lshlrev_b32 {v(V_L8)}, 3, {v(V_LANE)}')
        frag_read_addrs(b, V_AR)
        b(f's_lshl_b32 {s(S_T0)}, {s(S_W)}, 12')
        b(f's_add_u32 {s(S_T1)}, {s(S_T0)}, {R1}')
        for kk in range(4):
            b(f'v_add_u32 {v(V_XRO + kk)}, {s(S_T1)}, {v(V_AR + kk)}')
        tr_addr(b, V_WR, False)
        b(f'v_xor_b32 {v(V_WR + 1)}, 64, {v(V_WR)}')
        srd(b, SRD_A, P_WSP, 2048 * 4096)
        dma4_voffsets(b, V_AD, 4096)
        b(f'v_lshlrev_b32 {v(V_TCH)}, 7, {v(V_LANE)}')
        b(f's_lshl_b32 {s(S_AS)}, {s(S_I)}, 18')
        b(f's_lshl_b32 {s(S_T0)}, {s(S_W)}, 10')
        b(f's_add_u32 {s(S_AS)}, {s(S_AS)}, {s(S_T0)}')
        srd(b, SRD_T, P_BSP, 4096)
        b(f's_and_b32 {s(S_T0)}, {s(S_W)}, 1')
        b(f's_lshl_b32 {s(S_T0)}, {s(S_T0)}, 6')
        b(f's_lshl_b32 {s(S_T1)}, {s(S_I)}, 7')
        b(f's_add_u32 {s(S_T0)}, {s(S_T0)}, {s(S_T1)}')
        b(f'v_and_b32 {v(V_T0)}, 31, {v(V_LANE)}')
        b(f'v_lshlrev_b32 {v(V_T0)}, 1, {v(V_T0)}')
        b(f'buffer_load_ushort {v(V_BSP)}, {v(V_T0)}, {s(SRD_T, 4)}, {s(S_T0)} offen')
        b(f's_lshl_b32 {s(S_T0)}, {s(S_CG)}, 7')
        b(f's_add_u32 {s(S_D2COL)}, {s(S_T0)}, 1024')
        b(f's_add_u32 {s(S_D3COL)}, {s(S_T0)}, 2048')
        b(f's_mov_b32 {s(S_D2SEL)}, 0')
        b(f's_mov_b32 {s(S_D3SEL)}, 0')
        b(f's_mov_b32 {s(S_D2MASK)}, 0')
        b(f's_mov_b32 {s(S_D3MASK)}, 0')
        b(f's_cmp_lt_u32 {s(S_CG)}, 8')
        b('s_cbranch_scc1 L_desc_done')
        b(f's_cmp_lt_u32 {s(S_CG)}, 11')
        b('s_cbranch_scc0 L_desc_cd')
        b(f's_sub_u32 {s(S_D2COL)}, {s(S_T0)}, 1024')
        b(f's_sub_u32 {s(S_D3COL)}, {s(S_T0)}, 1056')
        b(f's_mov_b32 {s(S_D3SEL)}, 1')
        b(f's_cmp_eq_u32 {s(S_CG)}, 8')
        b(f's_cselect_b32 {s(S_D3MASK)}, 32, 0')
        b('s_branch L_desc_done')
        b.label('L_desc_cd')
        b(f's_lshl_b32 {s(S_T1)}, {s(S_T0)}, 1')
        b(f's_sub_u32 {s(S_T1)}, {s(S_T1)}, 2464')
        b(f's_sub_u32 {s(S_T2)}, {s(S_T0)}, 672')
        b(f's_cmp_lt_u32 {s(S_CG)}, 14')
        b(f's_cselect_b32 {s(S_D2COL)}, {s(S_T1)}, {s(S_T2)}')
        b(f's_add_u32 {s(S_D3COL)}, {s(S_D2COL)}, 128')
        b(f's_mov_b32 {s(S_D2SEL)}, 1')
        b(f's_mov_b32 {s(S_D3SEL)}, 1')
        b.label('L_desc_done')
        for r in range(32):
            b(f'v_mov_b32 {v(V_ACC0 + r)}, 0')
        if not OPT.get('sym', 1):
            b(f's_cmp_eq_u32 {s(S_W)}, 3')
            b('s_cbranch_scc1 L_L1P')
        return b.b

    def prefetch_items(self):
        def touch(srdreg, mul, off=0):
            return [f's_mul_i32 {s(S_Q0)}, {s(S_WG)}, {mul}',
                    ('t', f'buffer_load_dword {v(V_DUM)}, {v(V_TCH)}, {s(srdreg, 4)}, {s(S_Q0)} offen offset:{off}', dict(nodst=True))]
        it = []
        pre = lambda ptr, n: [f's_mov_b32 {s(SRD_U)}, {s(ptr)}', f's_mov_b32 {s(SRD_U + 1)}, {s(ptr + 1)}',
                              f's_mov_b32 {s(SRD_U + 2)}, {hex(n)}', f's_mov_b32 {s(SRD_U + 3)}, 0x20000']
        it.append(pre(P_WQKV, 512 * 3072) + touch(SRD_U, 6144))
        it.append(pre(P_WIN, 512 * 2752) + touch(SRD_U, 5504))
        for k in range(4):
            it.append([f's_mul_i32 {s(S_Q0)}, {s(S_WG)}, 32768', f's_add_u32 {s(S_Q0)}, {s(S_Q0)}, {8192 * k}',
                       ('t', f'buffer_load_dword {v(V_DUM)}, {v(V_TCH)}, {s(SRD_A, 4)}, {s(S_Q0)} offen', dict(nodst=True))])
        it.append(pre(P_WOUT, 688 * 1024) + touch(SRD_U, 2752))
        it.append(pre(P_WO, 512 * 1024) + touch(SRD_U, 2048))
        return it

    def slab1(self, loader):
        b = St(self, 'L1L' if loader else 'L1P')
        if not loader:
            b.label('L_L1P')
            pf = self.prefetch_items() if OPT.get('pf', 1) else []
        n0 = b.mark()
        for c in range(8):
            if loader:
                b.wait_vm(f'x{c}')
            if c == 4:
                b(f'v_add_u32 {v(V_NON)}, {hex(NONCE_K)}, {v(V_E)}')
                b(f'v_readfirstlane_b32 {s(S_N)}, {v(V_NON)}')
            b.wait_lds()
            b('s_barrier')
            if OPT.get('l1st') and c in (0, 1, 2, 4, 6):
                stamp(b, {0: 13, 1: 14, 2: 15, 4: 19, 6: 22}[c])
            m5 = None
            if c <= 4:
                if OPT.get('sym', 1):
                    b.add(x_chunk_items(c + 3, f'x{c + 3}'))
                    b.add(w_piece_items(c + 3, R0, f'x{c + 3}'))
                elif loader:
                    b.add(l1_items(c + 2))
                    m5 = c + 2
                else:
                    b.add(pf[:2])
                    pf = pf[2:]
            else:
                if c == 5:
                    self.switch_slab(b, S_D2SEL, S_D2COL, S_D2MASK)
                for p in {5: (4, 5), 6: (6, 7), 7: ()}[c]:
                    b.add(w_piece_items(p, R2, 'w2'))
                if c == 7 and OPT.get('tch', 0) & 4:
                    self.w3_touch(b)
            b.pop(1)
            b.period = OPT.get('l1p', 6) if loader else 8
            for kk in range(4):
                K = 4 * c + kk
                b(f'ds_read_b128 {a(A_X + 4 * K, 4)}, {v(V_XRO + kk)}')
                wf = V_WF + 8 * (K & 3)
                for ch in range(2):
                    for t in range(2):
                        b(f'ds_read_b64_tr_b16 {v(wf + 4 * ch + 2 * t, 2)}, {v(V_WR + ch)} offset:{2048 * K + 512 * t}')
                if K >= 2:
                    self.mfma_pair_R(b, K - 2)
                if kk == 2 and m5 is not None:
                    b.flush()
                    l1_item5(self, b, m5)
                    b.add(l1_w_items(m5))
            b.flush()
            b.period = 0
            if c < 7:
                d = 16384 if (c + 1) % 4 != 0 else -49152
                for kk in range(4):
                    if d > 0:
                        b(f'v_add_u32 {v(V_XRO + kk)}, {d}, {v(V_XRO + kk)}')
                    else:
                        b(f'v_subrev_u32 {v(V_XRO + kk)}, {-d}, {v(V_XRO + kk)}')
        self.mfma_pair_R(b, 30)
        self.mfma_pair_R(b, 31)
        b.weave_from(n0, G=6)
        b.wait_lds()
        b('s_barrier')
        stamp(b, 1)
        b(f's_cmp_lt_u32 {s(S_CG)}, 8')
        b('s_cbranch_scc1 L_roleA')
        b(f's_cmp_lt_u32 {s(S_CG)}, 11')
        b('s_cbranch_scc1 L_roleB')
        b(f's_cmp_lt_u32 {s(S_CG)}, 14')
        b('s_cbranch_scc1 L_roleC')
        b('s_branch L_roleD')
        return b.b

    def switch_slab(self, b, sel, col, mask):
        with b.atomic():
            b(f's_cmp_eq_u32 {s(sel)}, 0')
            b(f's_mov_b32 {s(S_RS)}, 2752')
            b(f's_cmov_b32 {s(S_RS)}, 3072')
            b(f's_mov_b32 {s(S_COL)}, {s(col)}')
            b(f's_mov_b32 {s(S_MASK)}, {s(mask)}')
            set_w_srd(b, sel)
            wd_voffsets(b)

    def mfma_pair_R(self, b, K):
        wf = V_WF + 8 * (K & 3)
        for ch in range(2):
            acc = V_ACC0 + 16 * ch
            b(f'v_mfma_f32_32x32x16_bf16 {v(acc, 16)}, {v(wf + 4 * ch, 4)}, {a(A_X + 4 * K, 4)}, {v(acc, 16)}')

    def touch_setup(self, b):
        b(f'v_lshrrev_b32 {v(V_T0)}, 3, {v(V_LANE)}')
        b(f'v_lshlrev_b32 {v(V_T0)}, 12, {v(V_T0)}')
        b(f'v_and_b32 {v(V_T0 + 1)}, 7, {v(V_LANE)}')
        b(f'v_lshl_add_u32 {v(V_TCH)}, {v(V_T0 + 1)}, 7, {v(V_T0)}')
        b(f'v_lshlrev_b32 {v(V_TW1)}, 10, {v(V_LANE)}')
        b(f'v_mov_b32 {v(V_TW2)}, {v(V_TW1)}')
        b(f'v_mov_b32 {v(V_T0)}, {hex(OOB)}')
        b(f'v_cmp_lt_u32 vcc, 21, {v(V_LANE)}')
        b(f'v_cndmask_b32 {v(V_TW1)}, {v(V_TW1)}, {v(V_T0)}, vcc')
        b(f'v_cmp_lt_u32 vcc, 15, {v(V_LANE)}')
        b(f'v_cndmask_b32 {v(V_TW2)}, {v(V_TW2)}, {v(V_T0)}, vcc')
        srd(b, SRD_U, P_WOUT, 688 * 1024)
        srd(b, SRD_X, P_WO, 512 * 1024)

    def touch_items(self):
        T = OPT.get('tch', 0)
        it = []
        if T & 1:
            for k in range(2):
                it.append([f's_and_b32 {s(S_Q0)}, {s(S_J)}, 3',
                           f's_lshl_b32 {s(S_Q0)}, {s(S_Q0)}, 16',
                           f's_add_u32 {s(S_Q0)}, {s(S_Q0)}, {s(S_AS)}'] +
                          ([f's_add_u32 {s(S_Q0)}, {s(S_Q0)}, {8 * 4096}'] if k else []) +
                          [('t', f'buffer_load_dword {v(V_DUM)}, {v(V_TCH)}, {s(SRD_A, 4)}, {s(S_Q0)} offen', dict(nodst=True))])
        if T & 8:
            it.append([f's_lshl2_add_u32 {s(S_Q0)}, {s(S_WG)}, {s(S_W)}',
                       f's_lshl_b32 {s(S_Q0)}, {s(S_Q0)}, 13',
                       f'v_lshlrev_b32 {v(V_T0)}, 7, {v(V_LANE)}',
                       ('t', f'buffer_load_dword {v(V_DUM)}, {v(V_T0)}, {s(SRD_A, 4)}, {s(S_Q0)} offen', dict(nodst=True))])
        if T & 2:
            it.append([f's_lshr_b32 {s(S_Q0)}, {s(S_WG)}, 5',
                       f's_mul_i32 {s(S_Q1)}, {s(S_Q0)}, 86',
                       f's_mul_i32 {s(S_Q0)}, {s(S_W)}, 22',
                       f's_add_u32 {s(S_Q0)}, {s(S_Q0)}, {s(S_Q1)}',
                       f's_lshl_b32 {s(S_Q0)}, {s(S_Q0)}, 10',
                       f's_lshl_b32 {s(S_Q1)}, {s(S_J)}, 7',
                       f's_add_u32 {s(S_Q0)}, {s(S_Q0)}, {s(S_Q1)}',
                       ('t', f'buffer_load_dword {v(V_DUM)}, {v(V_TW1)}, {s(SRD_U, 4)}, {s(S_Q0)} offen', dict(nodst=True))])
            it.append([f's_lshr_b32 {s(S_Q0)}, {s(S_WG)}, 5',
                       f's_lshl_b32 {s(S_Q0)}, {s(S_Q0)}, 2',
                       f's_add_u32 {s(S_Q0)}, {s(S_Q0)}, {s(S_W)}',
                       f's_lshl_b32 {s(S_Q0)}, {s(S_Q0)}, 14',
                       f's_lshl_b32 {s(S_Q1)}, {s(S_J)}, 7',
                       f's_add_u32 {s(S_Q0)}, {s(S_Q0)}, {s(S_Q1)}',
                       ('t', f'buffer_load_dword {v(V_DUM)}, {v(V_TW2)}, {s(SRD_X, 4)}, {s(S_Q0)} offen', dict(nodst=True))])
        return it

    def w3_touch(self, b):
        with b.atomic():
            b(f's_cmp_eq_u32 {s(S_D3SEL)}, 0')
            b(f's_cselect_b32 {s(SRD_U)}, {s(P_WQKV)}, {s(P_WIN)}')
            b(f's_cselect_b32 {s(SRD_U + 1)}, {s(P_WQKV + 1)}, {s(P_WIN + 1)}')
            b(f's_mov_b32 {s(SRD_U + 2)}, {hex(512 * 2752)}')
            b(f's_cmov_b32 {s(SRD_U + 2)}, {hex(512 * 3072)}')
            b(f's_mov_b32 {s(SRD_U + 3)}, 0x20000')
            b(f's_mov_b32 {s(S_T0)}, 2752')
            b(f's_cmov_b32 {s(S_T0)}, 3072')
            b(f'v_and_b32 {v(V_T0)}, 15, {v(V_LANE)}')
            b(f'v_mul_lo_u32 {v(V_T0)}, {v(V_T0)}, {s(S_T0)}')
            b(f'v_bfe_u32 {v(V_T0 + 1)}, {v(V_LANE)}, 4, 1')
            b(f'v_mul_u32_u24 {v(V_T0 + 1)}, 124, {v(V_T0 + 1)}')
            b(f'v_add_u32 {v(V_T0)}, {v(V_T0)}, {v(V_T0 + 1)}')
            b(f's_max_i32 {s(S_T1)}, {s(S_D3COL)}, 0')
            b(f'v_add_u32 {v(V_T0)}, {s(S_T1)}, {v(V_T0)}')
            b(f'v_mov_b32 {v(V_T0 + 1)}, {hex(OOB)}')
            b(f'v_cmp_lt_u32 vcc, 31, {v(V_LANE)}')
            b(f'v_cndmask_b32 {v(V_T0)}, {v(V_T0)}, {v(V_T0 + 1)}, vcc')
            b(f's_lshr_b32 {s(S_T1)}, {s(S_WG)}, 5')
            b(f's_lshl2_add_u32 {s(S_T1)}, {s(S_T1)}, {s(S_W)}')
            b(f's_lshl_b32 {s(S_T1)}, {s(S_T1)}, 4')
            b(f's_mul_i32 {s(S_T1)}, {s(S_T1)}, {s(S_T0)}')
            b(f'buffer_load_dword {v(V_DUM)}, {v(V_T0)}, {s(SRD_U, 4)}, {s(S_T1)} offen', tag='t', nodst=True)

    def post_l1(self, b, role):
        it = []
        self.touch_setup(b)
        for p in (0, 1, 2, 3):
            it += w_piece_items(p, R2, 'w2')
        it += self.touch_items()
        if OPT.get('c0early', 1):
            it += a_chunk_items(0, 'f0')
        return it

    def w3_items(self, b):
        b.flush()
        self.switch_slab(b, S_D3SEL, S_D3COL, S_D3MASK)
        for p in range(8):
            b.add(w_piece_items(p, R0, 'w3'))

    def set_wr(self, b, region):
        with b.atomic():
            tr_addr(b, V_WR, False)
            if region:
                b(f'v_add_u32 {v(V_WR)}, {region}, {v(V_WR)}')
            b(f'v_xor_b32 {v(V_WR + 1)}, 64, {v(V_WR)}')

    def main_loop(self, b, orient, hooks=None, pop_every=1):
        hooks = hooks or {}
        D = 2

        def rd(K):
            wf = V_WF + 8 * (K & 3)
            for ch in range(2):
                for t in range(2):
                    b(f'ds_read_b64_tr_b16 {v(wf + 4 * ch + 2 * t, 2)}, {v(V_WR + ch)} offset:{2048 * K + 512 * t}')
        sv = b.period
        b.period = 0
        n0 = b.mark()
        for K in range(D):
            rd(K)
        for K in range(32):
            if K + D < 32:
                rd(K + D)
            wf = V_WF + 8 * (K & 3)
            x = a(A_X + 4 * K, 4)
            for ch in range(2):
                acc = V_ACC1 + 16 * ch
                c = '0' if K == 0 else v(acc, 16)
                if orient == 'T':
                    b(f'v_mfma_f32_32x32x16_bf16 {v(acc, 16)}, {v(wf + 4 * ch, 4)}, {x}, {c}')
                else:
                    b(f'v_mfma_f32_32x32x16_bf16 {v(acc, 16)}, {x}, {v(wf + 4 * ch, 4)}, {c}')
            for fn in hooks.get(K, []):
                fn(b, 4 if K + D < 32 else 0)
            if K % pop_every == pop_every - 1:
                b.pop(1)
        b.weave_from(n0, G=5)
        b.period = sv

    def apipe_hooks(self, first_K, step):
        hooks = {}

        def mk_issue(p):
            return lambda b, younger: b.add(a_piece_items(p >> 1, p & 1, f'h{p & 1}'))

        def mk_move(p):
            def f(b, younger):
                b.ensure(f'a{p >> 1}_{p & 1}')
                b.wait_vm(f'a{p >> 1}_{p & 1}')
                a_piece_read(b, p >> 1, p & 1, f'h{p & 1}')
            return f

        def mk_refill(p):
            def f(b, younger):
                b(f's_waitcnt lgkmcnt({younger})')
                b.add(a_piece_items(p >> 1, p & 1, f'h{p & 1}'))
            return f
        return hooks, mk_issue, mk_move, mk_refill

    def z2_epilogue(self, b, mid=None):
        for g in range(4):
            gelu_group(b, [V_ACC0 + 8 * g + k for k in range(8)], V_TMP)
            if g == 0 and mid:
                mid()
        s1, s2 = V_ST, V_ST + 1
        t = V_TMP
        b(f'v_add_f32 {v(s1)}, {v(V_ACC0)}, {v(V_ACC0 + 1)}')
        b(f'v_mul_f32 {v(s2)}, {v(V_ACC0)}, {v(V_ACC0)}')
        b(f'v_add_f32 {v(t)}, {v(V_ACC0 + 2)}, {v(V_ACC0 + 3)}')
        b(f'v_mul_f32 {v(t + 1)}, {v(V_ACC0 + 1)}, {v(V_ACC0 + 1)}')
        for k in range(4, 32, 2):
            b(f'v_add_f32 {v(s1)}, {v(s1)}, {v(V_ACC0 + k)}')
            b(f'v_add_f32 {v(t)}, {v(t)}, {v(V_ACC0 + k + 1)}')
        for k in range(2, 32, 2):
            b(f'v_fmac_f32 {v(s2)}, {v(V_ACC0 + k)}, {v(V_ACC0 + k)}')
            b(f'v_fmac_f32 {v(t + 1)}, {v(V_ACC0 + k + 1)}, {v(V_ACC0 + k + 1)}')
        with b.atomic():
            b(f'v_add_f32 {v(s1)}, {v(s1)}, {v(t)}')
            b(f'v_add_f32 {v(s2)}, {v(s2)}, {v(t + 1)}')
            b(f'v_permlane32_swap_b32 {v(s1)}, {v(s2)}')
            b(f'v_add_f32 {v(s1)}, {v(s1)}, {v(s2)}')
            b(f'v_mov_b32 {v(s2)}, {s(S_N)}')
            b(f's_mul_i32 {s(S_T0)}, {s(S_TB)}, 5632')
            b(f's_lshl_b32 {s(S_T1)}, {s(S_CG)}, 9')
            b(f's_add_u32 {s(S_T0)}, {s(S_T0)}, {s(S_T1)}')
            b(f's_add_u32 {s(S_T0)}, {s(S_T0)}, {WS_STATS}')
            b(f'buffer_store_dwordx2 {v(s1, 2)}, {v(V_L8)}, {s(SRD_WS, 4)}, {s(S_T0)} offen sc1', tag='st')
        stamp(b, 2)

    def stats_issue(self, b):
        with b.atomic():
            b(f's_mul_i32 {s(S_T5)}, {s(S_TB)}, 5632')
            b(f's_add_u32 {s(S_T5)}, {s(S_T5)}, {WS_STATS}')
            b(f's_add_u32 {s(S_T4)}, {s(S_T5)}, 4096')
            for js in range(11):
                so = S_T5 if js < 8 else S_T4
                off = 512 * js if js < 8 else 512 * js - 4096
                b(f'buffer_load_dwordx2 {v(V_STAT + 2 * js, 2)}, {v(V_L8)}, {s(SRD_WS, 4)}, {s(so)} offen offset:{off} sc1')

    def stats_check_code(self, b):
        t = V_TMP
        b(f'v_min3_u32 {v(t)}, {v(V_STAT + 1)}, {v(V_STAT + 3)}, {v(V_STAT + 5)}')
        b(f'v_max3_u32 {v(t + 1)}, {v(V_STAT + 1)}, {v(V_STAT + 3)}, {v(V_STAT + 5)}')
        for js in range(3, 11, 2):
            b(f'v_min3_u32 {v(t)}, {v(t)}, {v(V_STAT + 2 * js + 1)}, {v(V_STAT + 2 * js + 3)}')
            b(f'v_max3_u32 {v(t + 1)}, {v(t + 1)}, {v(V_STAT + 2 * js + 1)}, {v(V_STAT + 2 * js + 3)}')
        b(f'v_xor_b32 {v(t)}, {s(S_N)}, {v(t)}')
        b(f'v_xor_b32 {v(t + 1)}, {s(S_N)}, {v(t + 1)}')
        b(f'v_or_b32 {v(t)}, {v(t)}, {v(t + 1)}')
        b(f'v_cmp_ne_u32 vcc, 0, {v(t)}')

    def z2_norm(self, b, after_check=None):
        cont, slow = self.lab('ZC'), self.lab('ZS')
        with b.atomic():
            self.stats_check_code(b)
            b(f's_cbranch_vccnz {slow}')
            b.label(cont)
        if after_check:
            after_check()
        sb = Block('tmp')
        sb(f's_sleep 1')
        sb(f's_mul_i32 {s(S_T5)}, {s(S_TB)}, 5632')
        sb(f's_add_u32 {s(S_T5)}, {s(S_T5)}, {WS_STATS}')
        sb(f's_add_u32 {s(S_T4)}, {s(S_T5)}, 4096')
        for js in range(11):
            so = S_T5 if js < 8 else S_T4
            off = 512 * js if js < 8 else 512 * js - 4096
            sb(f'buffer_load_dwordx2 {v(V_STAT + 2 * js, 2)}, {v(V_L8)}, {s(SRD_WS, 4)}, {s(so)} offen offset:{off} sc1')
        sb('s_waitcnt vmcnt(0)')
        self.stats_check_code(sb)
        txt = '\n'.join('    ' + i.text for i in sb.ins)
        self.slow.append(f'''{slow}:
    s_mov_b32 {s(S_CNT)}, {SPIN_MAX}
{slow}_l:
{txt}
{slow_mark(30)}    s_cbranch_vccz {cont}
    s_sub_u32 {s(S_CNT)}, {s(S_CNT)}, 1
    s_cmp_lg_u32 {s(S_CNT)}, 0
    s_cbranch_scc1 {slow}_l
    s_branch {cont}''')
        t = V_TMP
        b(f'v_add_f32 {v(t)}, {v(V_STAT)}, {v(V_STAT + 2)}')
        b(f'v_add_f32 {v(t + 1)}, {v(V_STAT + 4)}, {v(V_STAT + 6)}')
        for js in range(4, 11, 2):
            b(f'v_add_f32 {v(t)}, {v(t)}, {v(V_STAT + 2 * js)}')
            if js + 1 < 11:
                b(f'v_add_f32 {v(t + 1)}, {v(t + 1)}, {v(V_STAT + 2 * js + 2)}')
        b(f'v_add_f32 {v(t)}, {v(t)}, {v(t + 1)}')
        b(f'v_mov_b32 {v(t + 1)}, {v(t)}')
        b(f'v_permlane32_swap_b32 {v(t)}, {v(t + 1)}')
        b(f'v_mul_f32 {v(t)}, {hex(f2u(1.0 / 688))}, {v(t)}')
        b(f'v_mul_f32 {v(t + 1)}, {hex(f2u(1.0 / 688))}, {v(t + 1)}')
        b(f'v_fma_f32 {v(t + 1)}, -{v(t)}, {v(t)}, {v(t + 1)}')
        b(f'v_max_f32 {v(t + 1)}, 0, {v(t + 1)}')
        b(f'v_add_f32 {v(t + 1)}, {hex(f2u(1e-5))}, {v(t + 1)}')
        b(f'v_rsq_f32 {v(t + 1)}, {v(t + 1)}')
        b(f'v_mul_f32 {v(t)}, {v(t)}, {v(t + 1)}')
        b(f'v_sub_f32 {v(t)}, 0, {v(t)}')
        w0 = t + 2
        r0 = t + 6
        with b.atomic():
            b(f's_lshl_b32 {s(S_T0)}, {s(S_W)}, 14')
            b(f's_add_u32 {s(S_T0)}, {s(S_T0)}, {R2 + 8192}')
            b(f'v_and_b32 {v(w0)}, 31, {v(V_LANE)}')
            b(f'v_lshrrev_b32 {v(w0 + 1)}, 5, {v(V_LANE)}')
            b(f'v_and_b32 {v(w0 + 2)}, 15, {v(V_LANE)}')
            b(f'v_xor_b32 {v(w0 + 1)}, {v(w0 + 1)}, {v(w0 + 2)}')
            b(f'v_lshlrev_b32 {v(w0 + 1)}, 3, {v(w0 + 1)}')
            b(f'v_lshl_add_u32 {v(w0)}, {v(w0)}, 7, {v(w0 + 1)}')
            b(f'v_add_u32 {v(w0)}, {s(S_T0)}, {v(w0)}')
            b(f'v_bfe_u32 {v(r0)}, {v(V_LANE)}, 2, 2')
            b(f'v_lshrrev_b32 {v(r0 + 1)}, 5, {v(V_LANE)}')
            b(f'v_lshl_add_u32 {v(r0)}, {v(r0 + 1)}, 3, {v(r0)}')
            b(f'v_bfe_u32 {v(r0 + 1)}, {v(V_LANE)}, 4, 1')
            b(f'v_and_b32 {v(r0 + 2)}, 3, {v(V_LANE)}')
            b(f'v_lshl_add_u32 {v(r0 + 1)}, {v(r0 + 1)}, 2, {v(r0 + 2)}')
            b(f'v_xor_b32 {v(r0 + 1)}, {v(r0 + 1)}, {v(r0)}')
            b(f'v_lshlrev_b32 {v(r0 + 1)}, 3, {v(r0 + 1)}')
            b(f'v_lshl_add_u32 {v(r0)}, {v(r0)}, 7, {v(r0 + 1)}')
            b(f'v_add_u32 {v(r0)}, {s(S_T0)}, {v(r0)}')
        ra = r0 + 1
        for bb in range(2):
            for tt in range(2):
                b(f'v_xor_b32 {v(ra + 2 * bb + tt)}, {8 * ((8 * bb) ^ (4 * tt))}, {v(r0)}')
        pk = V_PV
        for bb in range(2):
            for j in range(4):
                r = V_ACC0 + 16 * bb + 4 * j
                for k in range(4):
                    b(f'v_fma_f32 {v(r + k)}, {v(r + k)}, {v(t + 1)}, {v(t)}')
                b(f'v_cvt_pk_bf16_f32 {v(pk + 8 * bb + 2 * j)}, {v(r)}, {v(r + 1)}')
                b(f'v_cvt_pk_bf16_f32 {v(pk + 8 * bb + 2 * j + 1)}, {v(r + 2)}, {v(r + 3)}')
                K = 8 * bb + 2 * j
                if K:
                    b(f'v_xor_b32 {v(w0 + 1)}, {8 * K}, {v(w0)}')
                    ad = w0 + 1
                else:
                    ad = w0
                b(f'ds_write_b64 {v(ad)}, {v(pk + 8 * bb + 2 * j, 2)}')
        b.wait_lds()
        fr = V_TMP + 16
        for bb in range(2):
            for kq in range(2):
                for tt in range(2):
                    b(f'ds_read_b64_tr_b16 {v(fr + 8 * bb + 4 * kq + 2 * tt, 2)}, {v(ra + 2 * bb + tt)} offset:{512 * tt + 2048 * kq}')
        with b.atomic():
            b(f's_lshl_b32 {s(S_T0)}, {s(S_CG)}, 18')
            b(f's_lshl_b32 {s(S_T1)}, {s(S_TB)}, 11')
            b(f's_add_u32 {s(S_T0)}, {s(S_T0)}, {s(S_T1)}')
            b(f's_add_u32 {s(S_T0)}, {s(S_T0)}, {WS_Z2N}')
            b(f's_add_u32 {s(S_T1)}, {s(S_T0)}, {128 * 1024}')
            for bb in range(2):
                for kq in range(2):
                    so = S_T0 if bb == 0 else S_T1
                    b(f'buffer_store_dwordx4 {v(fr + 8 * bb + 4 * kq, 4)}, {v(V_L16)}, {s(SRD_WS, 4)}, {s(so)} offen offset:{1024 * kq} sc1', tag='z2n')
        stamp(b, 3)

    def flag_store(self, b, base, tagwait):
        b.wait_vm(tagwait)
        with b.atomic():
            b(f's_lshl4_add_u32 {s(S_T0)}, {s(S_RB)}, {s(S_CG)}')
            b(f's_lshl4_add_u32 {s(S_T0)}, {s(S_T0)}, {s(S_W)}')
            b(f's_lshl_b32 {s(S_T0)}, {s(S_T0)}, 2')
            b(f's_add_u32 {s(S_T0)}, {s(S_T0)}, {base}')
            b(f'v_mov_b32 {v(V_POLL)}, {s(S_N)}')
            b(f'buffer_store_dword {v(V_POLL)}, off, {s(SRD_WS, 4)}, {s(S_T0)} sc1', tag='flag')

    def t_epilogue(self, b, kind, acc, mid=None):
        out = V_PV
        for g in range(4):
            if g == 1 and mid:
                mid()
            xs = [acc + 8 * g + k for k in range(8)]
            if kind == 'gelu':
                gelu_group(b, xs, V_TMP)
            else:
                phi_group(b, xs, V_TMP)
            for k in range(4):
                b(f'v_cvt_pk_bf16_f32 {v(out + 4 * g + k)}, {v(xs[2 * k])}, {v(xs[2 * k + 1])}')
            so = S_O0 if g < 2 else S_O1
            b(f'buffer_store_dwordx4 {v(out + 4 * g, 4)}, {v(V_L16)}, {s(SRD_WS, 4)}, {s(so)} offen offset:{1024 * (g & 1)} sc1', tag='p1')

    def set_out_addr(self, b, kind, slab_code):
        with b.atomic():
            for l in slab_code:
                b(l)
            base, stride = (WS_PQ, 32768) if kind == 'q' else (WS_Z1F, 45056)
            b(f's_lshl_b32 {s(S_T4)}, {s(S_T4)}, 12')
            b(f's_add_u32 {s(S_T4)}, {s(S_T4)}, {base}')
            b(f's_mul_i32 {s(S_O0)}, {s(S_TB)}, {stride}')
            b(f's_add_u32 {s(S_O0)}, {s(S_O0)}, {s(S_T4)}')
            b(f's_add_u32 {s(S_O1)}, {s(S_O0)}, 2048')

    def k_epilogue(self, b):
        for g in range(4):
            xs = [V_ACC1 + 8 * g + k for k in range(8)]
            phi_group(b, xs, V_TMP)
            for k in range(4):
                b(f'v_cvt_pk_bf16_f32 {v(V_PK + 4 * g + k)}, {v(xs[2 * k])}, {v(xs[2 * k + 1])}')

    def v_epilogue(self, b):
        for k in range(16):
            b(f'v_cvt_pk_bf16_f32 {v(V_PV + k)}, {v(V_ACC1 + 2 * k)}, {v(V_ACC1 + 2 * k + 1)}')
        ones = V_TMP
        for k in range(4):
            b(f'v_mov_b32 {v(ones + k)}, 0x3f803f80')
        for par in range(2):
            for ch in range(2):
                g = 2 * ch + par
                kv, zz = V_KV + 16 * ch, V_KZ + 16 * ch
                c0 = '0' if par == 0 else v(kv, 16)
                c1 = '0' if par == 0 else v(zz, 16)
                b(f'v_mfma_f32_32x32x16_bf16 {v(kv, 16)}, {v(V_PK + 4 * g, 4)}, {v(V_PV + 4 * g, 4)}, {c0}')
                b(f'v_mfma_f32_32x32x16_bf16 {v(zz, 16)}, {v(V_PK + 4 * g, 4)}, {v(ones, 4)}, {c1}')

    def kv_finish(self, b):
        with b.atomic():
            b(f'v_and_b32 {v(V_T0)}, 31, {v(V_LANE)}')
            b(f'v_cmp_gt_u32 vcc, 16, {v(V_T0)}')
            for ch in range(2):
                kv, zz = V_KV + 16 * ch, V_KZ + 16 * ch
                for k in range(8):
                    b(f'v_cndmask_b32 {v(kv + k)}, {v(zz + k)}, {v(kv + k)}, vcc')
                for k in range(8, 16):
                    b(f'v_cndmask_b32 {v(kv + k)}, {v(kv + k)}, {v(zz + k)}, vcc')
            b('s_barrier')
            b(f's_lshl_b32 {s(S_T0)}, {s(S_W)}, 11')
            b(f'v_add_u32 {v(V_T0)}, {s(S_T0)}, {v(V_L16)}')
            for d in range(4):
                for q in range(2):
                    b(f'ds_write_b128 {v(V_T0)}, {v(V_KV + 8 * d + 4 * q, 4)} offset:{R0 + 8192 * d + 1024 * q}')
            b(f's_lshl_b32 {s(S_T0)}, {s(S_W)}, 13')
            b(f'v_add_u32 {v(V_T0)}, {s(S_T0)}, {v(V_L16)}')
            b.wait_lds()
            b('s_barrier')
            X = V_KZ
            for src in range(4):
                for q in range(2):
                    b(f'ds_read_b128 {v(X + 8 * src + 4 * q, 4)}, {v(V_T0)} offset:{R0 + 2048 * src + 1024 * q}')
            for k in range(8):
                b(f'v_add_f32 {v(X + k)}, {v(X + k)}, {v(X + 8 + k)}')
                b(f'v_add_f32 {v(X + 16 + k)}, {v(X + 16 + k)}, {v(X + 24 + k)}')
            for k in range(8):
                b(f'v_add_f32 {v(X + k)}, {v(X + k)}, {v(X + 16 + k)}')
            b(f's_lshl2_add_u32 {s(S_T0)}, {s(S_CG)}, {s(S_W)}')
            b(f's_lshl_b32 {s(S_T0)}, {s(S_T0)}, 15')
            b(f's_lshl_b32 {s(S_T1)}, {s(S_RB)}, 10')
            b(f's_add_u32 {s(S_T0)}, {s(S_T0)}, {s(S_T1)}')
            b(f's_add_u32 {s(S_T0)}, {s(S_T0)}, {WS_KVP}')
            for q in range(2):
                if q:
                    b(f's_add_u32 {s(S_T0)}, {s(S_T0)}, 16384')
                b(f'buffer_store_dwordx4 {v(X + 4 * q, 4)}, {v(V_L16)}, {s(SRD_WS, 4)}, {s(S_T0)} offen sc1', tag='p1')

    def pre_slab(self, b, tag):
        b.ensure(tag)
        b.wait_vm(tag)
        b('s_barrier')

    def mv_piece(self, b, p):
        b.ensure(f'a{p >> 1}_{p & 1}')
        b.wait_vm(f'a{p >> 1}_{p & 1}')
        a_piece_read(b, p >> 1, p & 1, f'h{p & 1}')

    def fetch_piece(self, b, p):
        b.add(a_piece_items(p >> 1, p & 1, f'h{p & 1}'))

    def mv_chunk(self, b, c, slot):
        b.ensure(f'a{c}_0')
        b.ensure(f'a{c}_1')
        b.wait_vm([f'a{c}_0', f'a{c}_1'])
        a_chunk_read(b, c, slot)

    def slab3_hooks(self, extra=None):
        h = {}

        def add(K, fn):
            h.setdefault(K, []).append(fn)
        K0 = OPT.get('k0', 20)
        add(K0, lambda b, y: self.mv_chunk(b, 0, 'f0'))
        add(K0 + 1, lambda b, y: (b(f's_waitcnt lgkmcnt({y})'), b.add(a_chunk_items(3, 'f0'))))
        add(K0 + 4, lambda b, y: self.mv_chunk(b, 1, 'f1'))
        add(K0 + 5, lambda b, y: (b(f's_waitcnt lgkmcnt({y})'), b.add(a_chunk_items(4, 'f1'))))
        add(K0 + 8, lambda b, y: self.mv_chunk(b, 2, 'f2'))
        add(K0 + 9, lambda b, y: (b(f's_waitcnt lgkmcnt({y})'), b.add(a_chunk_items(5, 'f2'))))
        for K, fn in (extra or {}).items():
            add(K, fn)
        return h

    def mid_a(self, b):
        if not OPT.get('c0early', 1):
            b.add(a_chunk_items(0, 'f0'))
        b.add(a_chunk_items(1, 'f1'))

    def mid_b(self, b):
        pass

    def g_pass(self, b):
        ga = V_T0 + 4
        b.wait_vm('gw')
        with b.atomic():
            b(f'v_lshrrev_b32 {v(ga)}, 5, {v(V_LANE)}')
            b(f'v_lshlrev_b32 {v(ga)}, 4, {v(ga)}')
            b(f's_lshl_b32 {s(S_T0)}, {s(S_W)}, 10')
            b(f's_add_u32 {s(S_T0)}, {s(S_T0)}, {R0}')
            b(f'v_add_u32 {v(ga)}, {s(S_T0)}, {v(ga)}')
        acc = V_ACC1
        sv = b.period
        b.period = 0
        hooks = self.slab3_hooks()
        for K in range(32):
            wf = V_WF + 4 * (K & 3)
            if K == 0:
                for k2 in range(3):
                    b(f'ds_read_b128 {v(V_WF + 4 * k2, 4)}, {v(ga)} offset:{32 * k2}')
            if K + 3 < 32:
                b(f'ds_read_b128 {v(V_WF + 4 * ((K + 3) & 3), 4)}, {v(ga)} offset:{32 * (K + 3)}')
            b(f'v_mfma_f32_32x32x16_bf16 {v(acc, 16)}, {v(wf, 4)}, {a(A_X + 4 * K, 4)}, {"0" if K == 0 else v(acc, 16)}')
            for fn in hooks.get(K, []):
                fn(b, 1 if K + 3 < 32 else 0)
            b.pop(1)
        b.period = sv
        t = V_TMP
        b(f'v_mul_f32 {v(t)}, {hex(f2u(-LOG2E))}, {v(acc)}')
        b(f'v_exp_f32 {v(t)}, {v(t)}')
        b(f'v_add_f32 {v(t)}, 1.0, {v(t)}')
        b(f'v_rcp_f32 {v(t)}, {v(t)}')
        with b.atomic():
            b(f'v_and_b32 {v(t + 1)}, 31, {v(V_LANE)}')
            b(f'v_lshlrev_b32 {v(t + 1)}, 2, {v(t + 1)}')
            b(f's_lshl_b32 {s(S_T0)}, {s(S_TB)}, 7')
            b(f's_add_u32 {s(S_T0)}, {s(S_T0)}, {WS_GATE}')
            b(f'buffer_store_dword {v(t)}, {v(t + 1)}, {s(SRD_WS, 4)}, {s(S_T0)} offen sc1', tag='p1')

    def a_tail(self, b):
        b.flush()
        self.flag_store(b, WS_FP1, 'p1')

    def role_AB(self, role):
        b = St(self, 'ROLE' + role)
        b.label('L_role' + role)
        b.add(self.post_l1(b, role))
        orient = 'N' if role == 'A' else 'T'
        if OPT.get('w3z', 0):
            b.period = 9
            self.z2_epilogue(b, mid=lambda: self.w3_items(b))
            self.pre_slab(b, 'w2')
            self.set_wr(b, R2)
            stamp(b, 16)
            self.main_loop(b, orient, pop_every=1)
        else:
            b.period = 14
            self.z2_epilogue(b)
            self.pre_slab(b, 'w2')
            self.set_wr(b, R2)
            stamp(b, 16)
            self.w3_items(b)
            self.main_loop(b, orient, pop_every=1)
        stamp(b, 17)
        b.flush()
        b('s_barrier')
        self.stats_issue(b)
        b.period = 12
        if role == 'A':
            self.k_epilogue(b)
        else:
            self.set_out_addr(b, 'q', [f's_sub_u32 {s(S_T4)}, {s(S_CG)}, 8'])
            self.t_epilogue(b, 'phi', V_ACC1)
        stamp(b, 18)
        if OPT.get('aearly', 0):
            b.period = 7
            self.z2_norm(b, after_check=lambda: self.mid_a(b))
        else:
            self.z2_norm(b)
            self.mid_a(b)
        b.add(a_chunk_items(2, 'f2'))
        self.mid_b(b)
        self.pre_slab(b, 'w3')
        self.set_wr(b, R0)
        stamp(b, 20)
        hooks = self.slab3_hooks({22: lambda bb, y: self.flag_store(bb, WS_FZ2, 'z2n')})
        self.main_loop(b, orient, hooks)
        stamp(b, 21)
        b.period = 8
        s1_issue(self, b)
        if role == 'A':
            self.v_epilogue(b)
            self.kv_finish(b)
        else:
            self.set_out_addr(b, 'z1', [f's_sub_u32 {s(S_T4)}, {s(S_CG)}, 8'])
            self.t_epilogue(b, 'gelu', V_ACC1)
        stamp(b, 23)
        self.a_tail(b)
        b('s_branch L_p1_done')
        return b.b

    def role_CD(self, role):
        b = St(self, 'ROLE' + role)
        b.label('L_role' + role)
        b.add(self.post_l1(b, role))
        b.period = 8
        self.set_out_addr(b, 'q', [f's_sub_u32 {s(S_T4)}, {s(S_CG)}, 8'])
        self.t_epilogue(b, 'phi', V_ACC0)
        self.pre_slab(b, 'w2')
        self.set_wr(b, R2)
        if role == 'C':
            self.w3_items(b)
        else:
            b.flush()
            srd(b, SRD_T, P_GW, 1024)
            b(f's_lshl_b32 {s(S_T0)}, {s(S_W)}, 10')
            b(f's_add_u32 m0, {s(S_T0)}, {R0}')
            b(f's_lshl_b32 {s(S_T0)}, {s(S_ROT)}, 7')
            b(f'v_add_u32 {v(V_T0)}, {s(S_T0)}, {v(V_L16)}')
            b(f'v_and_b32 {v(V_T0)}, 1023, {v(V_T0)}')
            b(f'buffer_load_dwordx4 {v(V_T0)}, {s(SRD_T, 4)}, 0 offen lds', tag='gw')
        self.main_loop(b, 'T', pop_every=2)
        b.flush()
        b('s_barrier')
        self.mid_a(b)
        b.add(a_chunk_items(2, 'f2'))
        b.period = 12
        if role == 'C':
            self.set_out_addr(b, 'z1', [f's_lshl_b32 {s(S_T4)}, {s(S_CG)}, 1', f's_sub_u32 {s(S_T4)}, {s(S_T4)}, 19'])
            self.t_epilogue(b, 'gelu', V_ACC1)
            self.mid_b(b)
            self.pre_slab(b, 'w3')
            self.set_wr(b, R0)
            self.main_loop(b, 'T', self.slab3_hooks())
            b.period = 8
            s1_issue(self, b)
            self.set_out_addr(b, 'z1', [f's_lshl_b32 {s(S_T4)}, {s(S_CG)}, 1', f's_sub_u32 {s(S_T4)}, {s(S_T4)}, 18'])
            self.t_epilogue(b, 'gelu', V_ACC1)
        else:
            self.set_out_addr(b, 'z1', [f's_sub_u32 {s(S_T4)}, {s(S_CG)}, 5'])
            self.t_epilogue(b, 'gelu', V_ACC1)
            self.mid_b(b)
            self.g_pass(b)
            s1_issue(self, b)
        self.a_tail(b)
        b('s_branch L_p1_done')
        return b.b

    def build(self):
        P = self.prologue()
        LL = self.slab1(True)
        LP = self.slab1(False) if not OPT.get('sym', 1) else None
        A = self.role_AB('A')
        B = self.role_AB('B')
        C = self.role_CD('C')
        D = self.role_CD('D')
        E1 = St(self, 'E1')
        E1.label('L_p1_done')
        stamp(E1, 4)
        from phase23 import emit_phase23
        P2, PH, PL, P3b = emit_phase23(self)
        END = self.blk('END')
        END.label('L_END')
        END('s_endpgm')
        P3 = Block('PRO_w3')
        P3.ins = [i for i in P.ins if not i.meta.get('loader')]
        rests = [[P2, PH, P3b], [P2, PL, P3b]]
        paths = [[P, LL, R, E1.b] + rest + [END] for R in (A, B, C, D) for rest in rests]
        if LP is not None:
            paths += [[P3, LP, R, E1.b] + rest + [END] for R in (A, B, C, D) for rest in rests]
        finalize(self.blocks, paths)

    def text(self):
        out = []
        for b in self.blocks:
            out.append(f'; ---- {b.name}')
            out.append(render(b))
        return '\n'.join(out) + '\n' + '\n'.join(self.slow) + '\n'


HEADER = '''; Fused gated-mix kernel: linear attention + gMLP, single persistent launch (256 workgroups x 256 threads)
; @launch grid=(256,1,1) block=(256,1,1) lds=163840
.amdgcn_target "amdgcn-amd-amdhsa--gfx950"
.text
.globl {k}
.p2align 8
.type {k},@function
{k}:
'''
FOOTER = '''
L_code_end:
    s_endpgm
.section .rodata,"a"
.p2align 6
.amdhsa_kernel {k}
  .amdhsa_next_free_vgpr 512
  .amdhsa_next_free_sgpr 102
  .amdhsa_accum_offset 256
  .amdhsa_group_segment_fixed_size 0
  .amdhsa_kernarg_size 96
  .amdhsa_user_sgpr_count 2
  .amdhsa_user_sgpr_kernarg_segment_ptr 1
  .amdhsa_system_sgpr_workgroup_id_x 1
  .amdhsa_float_denorm_mode_32 3
.end_amdhsa_kernel
'''


def generate(**opt):
    OPT.update(opt)
    g = Gen()
    g.build()
    return HEADER.format(k=KNAME) + g.text() + FOOTER.format(k=KNAME)


if __name__ == '__main__':
    opt = {}
    for arg in sys.argv[2:]:
        k, val = arg.split('=')
        opt[k] = int(val) if val.lstrip('-').isdigit() else val
    txt = generate(**opt)
    open(sys.argv[1], 'w').write(txt)
```

```python
from asmlib import *
import gen as G
from gen import (v, a, s, f2u, LOG2E, OOB, stamp, srd, tr_addr, St,
                 WS_FZ2, WS_FP1, WS_FY, WS_FKV, WS_GATE, WS_KVF, WS_KVP, WS_Z2N, WS_Z1F, WS_PQ, WS_Y, WS_SIZE, WS_EPOCH,
                 SRD_X, SRD_W, SRD_WS, SRD_T, SRD_U, S_W, S_WG, S_I, S_J, S_N, S_T0, S_T1, S_T2, S_T3, S_T4, S_T5, S_T6, S_T7,
                 S_ROT, S_RB, S_CG, S_Q0, S_Q1,
                 P_BSP, P_WO, P_WOUT, P_OUT, V_LANE, V_L16, V_L8, V_T0, V_POLL)

S_FB0, S_NBLK = 70, 71
S_BO = 72
S_PART = 73
S_U = 74
S_YO, S_ZO = 75, 76
S_WOB = 77
S_KVO = 78
S_BB = 80
S_FBN = 88
SRD_KV = 44

V_PA = 8
V_PR = 14
V_XW = 16
V_XR = 20
V_BS = 21
V_G0 = 22
V_NG = 26
V_BNG = 27
V_KL = 32
ACC = [64, 96]
RING = 128
D = 12
V_GS = 176
V_X = 192
V_Z1 = 224
V_KS = 236
V_WO = 240
A_PQ, A_KV, A_Y = 0, 64, 96
KVSCR = 38912
PRIV = 40960
XOFF = 22528


def flag_addr(b, dst, n, tmp):
    b(f'v_and_b32 {v(tmp)}, 3, {v(n)}')
    b(f'v_lshrrev_b32 {v(n)}, 2, {v(n)}')
    b(f'v_lshlrev_b32 {v(n)}, 4, {v(n)}')
    b(f'v_add_lshl_u32 {v(dst)}, {v(n)}, {v(tmp)}, 2')


def s1_issue(g, b):
    t0, t1 = V_T0, V_T0 + 1
    with b.atomic():
        b(f's_mul_i32 {s(S_FB0)}, {s(S_J)}, 3')
        b(f's_min_u32 {s(S_FB0)}, {s(S_FB0)}, 20')
        b(f's_cmp_lt_u32 {s(S_J)}, 6')
        b(f's_cselect_b32 {s(S_NBLK)}, 3, 2')
        b(f's_add_u32 {s(S_T2)}, {s(S_FB0)}, {s(S_NBLK)}')
        b(f's_sub_u32 {s(S_T3)}, {s(S_T2)}, 1')
        if G.OPT.get('nbrot', 1):
            b(f's_lshr_b32 {s(S_T0)}, {s(S_WG)}, {6 if G.OPT.get("map", 0) else 5}')
            b(f's_mul_i32 {s(S_T1)}, {s(S_T0)}, 11')
            b(f's_lshr_b32 {s(S_T1)}, {s(S_T1)}, 5')
            b(f's_mul_i32 {s(S_T1)}, {s(S_T1)}, 3')
            b(f's_sub_u32 {s(S_T1)}, {s(S_T0)}, {s(S_T1)}')
            b(f's_and_b32 {s(S_T0)}, {s(S_T0)}, 1')
            b(f's_cmp_eq_u32 {s(S_NBLK)}, 3')
            b(f's_cselect_b32 {s(S_T0)}, {s(S_T1)}, {s(S_T0)}')
        else:
            b(f's_mov_b32 {s(S_T0)}, 0')
        for nb in range(3):
            b(f's_add_u32 {s(S_FBN + nb)}, {s(S_FB0)}, {s(S_T0)}')
            if nb:
                b(f's_add_u32 {s(S_FBN + nb)}, {s(S_FBN + nb)}, {nb}')
            b(f's_cmp_ge_u32 {s(S_FBN + nb)}, {s(S_T2)}')
            b(f's_cselect_b32 {s(S_T1)}, {s(S_NBLK)}, 0')
            b(f's_sub_u32 {s(S_FBN + nb)}, {s(S_FBN + nb)}, {s(S_T1)}')
        b(f's_lshr_b32 {s(S_T0)}, {s(S_FB0)}, 1')
        b(f's_lshr_b32 {s(S_T1)}, {s(S_T3)}, 1')
        b(f's_sub_u32 {s(S_T1)}, {s(S_T1)}, {s(S_T0)}')
        b(f'v_bfe_u32 {v(t0)}, {v(V_LANE)}, 3, 2')
        b(f'v_bfe_u32 {v(t1)}, {v(V_LANE)}, 2, 1')
        b(f'v_mul_u32_u24 {v(t1)}, {s(S_T1)}, {v(t1)}')
        b(f'v_lshl_add_u32 {v(t0)}, {v(t0)}, 4, {v(t1)}')
        b(f's_lshl_b32 {s(S_T2)}, {s(S_W)}, 6')
        b(f's_add_u32 {s(S_T2)}, {s(S_T2)}, {s(S_T0)}')
        b(f'v_add_u32 {v(t0)}, {s(S_T2)}, {v(t0)}')
        b(f'v_and_b32 {v(t1)}, 3, {v(V_LANE)}')
        b(f'v_lshl_add_u32 {v(t0)}, {v(t0)}, 2, {v(t1)}')
        flag_addr(b, V_PA, t0, t1)
        b(f's_mov_b32 {s(S_T7)}, {WS_FZ2}')
        b(f'buffer_load_dword {v(V_PR)}, {v(V_PA)}, {s(SRD_WS, 4)}, {s(S_T7)} offen sc1')


def emit_phase23(g):
    t0, t1, t2 = V_T0, V_T0 + 1, V_T0 + 2
    b = St(g, 'P2')
    b(f's_mov_b32 {s(S_T7)}, {WS_FZ2}')
    g.poll(b, V_PA, s(S_T7), V_PR, first_issued=True, mark=11)
    stamp(b, 5)
    b(f's_lshl_b32 {s(S_T0)}, {s(S_W)}, 15')
    b(f's_add_u32 {s(S_BB)}, {s(S_T0)}, {WS_Z2N}')

    def bload(b, gi):
        nb, n = gi >> 5, gi & 31
        if n % 4 == 0:
            b(f's_add_u32 {s(S_BO)}, {s(G.S_ROT2)}, {n // 4}')
            b(f's_and_b32 {s(S_BO)}, {s(S_BO)}, 7')
            b(f's_lshl_b32 {s(S_BO)}, {s(S_BO)}, 12')
            b(f's_add_u32 {s(S_BO)}, {s(S_BO)}, {s(S_BB)}')
            b(f's_lshl_b32 {s(S_T4)}, {s(S_FBN + nb)}, 17')
            b(f's_add_u32 {s(S_BO)}, {s(S_BO)}, {s(S_T4)}')
        b(f'buffer_load_dwordx4 {v(RING + 4 * (gi % D), 4)}, {v(V_L16)}, {s(SRD_WS, 4)}, {s(S_BO)} offen offset:{1024 * (n & 3)} sc1')

    if G.OPT.get('aplan', 2) == 2:
        g.mv_chunk(b, 0, 'f0')
        b.wait_lds()
        b.add(G.a_chunk_items(3, 'f0'))
    for gi in range(D):
        bload(b, gi)
        if gi % 2 == 1:
            b.pop(2)
    b.flush()
    b(f'v_lshlrev_b32 {v(V_BS)}, 16, {v(G.V_BSP)}')
    b(f's_lshr_b32 {s(S_T0)}, {s(S_I)}, 1')
    b(f's_lshl_b32 {s(S_T0)}, {s(S_T0)}, 6')
    b(f'v_add_u32 {v(t0)}, {s(S_T0)}, {v(V_LANE)}')
    flag_addr(b, V_PA + 1, t0, t1)
    b(f's_lshl_b32 {s(S_T0)}, {s(S_W)}, 11')
    b(f'v_add_u32 {v(t0)}, {s(S_T0)}, {v(V_L16)}')
    for d in range(4):
        b(f'v_add_u32 {v(V_XW + d)}, {PRIV * d + XOFF}, {v(t0)}')
    b(f's_mul_i32 {s(S_T0)}, {s(S_W)}, {PRIV}')
    b(f's_add_u32 {s(S_T0)}, {s(S_T0)}, {XOFF}')
    b(f'v_add_u32 {v(V_XR)}, {s(S_T0)}, {v(V_L16)}')
    b(f'v_and_b32 {v(t0)}, 31, {v(V_LANE)}')
    b(f'v_lshlrev_b32 {v(V_PA + 5)}, 2, {v(t0)}')
    b(f's_and_b32 {s(S_T0)}, {s(S_W)}, 1')
    b(f's_lshl1_add_u32 {s(S_T0)}, {s(S_I)}, {s(S_T0)}')
    b(f's_mul_i32 {s(S_T0)}, {s(S_T0)}, 45056')
    b(f's_lshr_b32 {s(S_T1)}, {s(S_W)}, 1')
    b(f's_lshl_b32 {s(S_T1)}, {s(S_T1)}, 10')
    b(f's_add_u32 {s(S_T0)}, {s(S_T0)}, {s(S_T1)}')
    b(f's_add_u32 {s(S_ZO)}, {s(S_T0)}, {WS_Z1F}')
    b(f's_add_u32 {s(S_YO)}, {s(S_T0)}, {WS_Y}')
    b(f's_cmp_ge_u32 {s(S_J)}, 6')
    b('s_cbranch_scc1 L_P2L')
    P2 = b.b

    def xw(nb, k):
        d, q = k >> 1, k & 1
        r = ACC[nb & 1] + 16 * (d & 1) + 8 * (d >> 1)
        return f'ds_write_b128 {v(V_XW + d)}, {v(r + 4 * q, 4)} offset:{8192 * (nb & 1) + 1024 * q}'

    def xr(nb, k):
        src, q = k >> 1, k & 1
        return f'ds_read_b128 {v(V_X + 8 * src + 4 * q, 4)}, {v(V_XR)} offset:{8192 * (nb & 1) + 2048 * src + 1024 * q}'

    def xsum(dst):
        o = []
        for k in range(8):
            o.append(f'v_add_f32 {v(V_X + k)}, {v(V_X + k)}, {v(V_X + 8 + k)}')
        for k in range(8):
            o.append(f'v_add_f32 {v(V_X + 16 + k)}, {v(V_X + 16 + k)}, {v(V_X + 24 + k)}')
        for k in range(8):
            o.append(f'v_add_f32 {v(dst + k)}, {v(V_X + k)}, {v(V_X + 16 + k)}')
        return o

    def ymath(nb, gs):
        o = []
        z = V_Z1 + 4 * nb
        tmp = RING
        for k in range(8):
            o.append(f'v_fma_f32 {v(gs + k)}, {v(gs + k)}, {v(V_NG)}, {v(V_BNG)}')
        for k in range(4):
            o.append(f'v_lshlrev_b32 {v(tmp + 2 * k)}, 16, {v(z + k)}')
            o.append(f'v_and_b32 {v(tmp + 2 * k + 1)}, 0xffff0000, {v(z + k)}')
        for k in range(8):
            o.append(f'v_mul_f32 {v(gs + k)}, {v(gs + k)}, {v(tmp + k)}')
        for k in range(4):
            o.append(f'v_cvt_pk_bf16_f32 {v(z + k)}, {v(gs + 2 * k)}, {v(gs + 2 * k + 1)}')
        return o

    def ystore(b, nb):
        b(f's_lshl_b32 {s(S_T0)}, {s(S_FBN + nb)}, 11')
        b(f's_add_u32 {s(S_T0)}, {s(S_T0)}, {s(S_YO)}')
        b(f'buffer_store_dwordx4 {v(V_Z1 + 4 * nb, 4)}, {v(V_L16)}, {s(SRD_WS, 4)}, {s(S_T0)} offen sc1', tag='y')

    def tail_loads(nblk):
        it = []
        for z in range(nblk):
            it.append([f's_lshl_b32 {s(S_T0)}, {s(S_FBN + z)}, 11',
                       f's_add_u32 {s(S_T0)}, {s(S_T0)}, {s(S_ZO)}',
                       f'buffer_load_dwordx4 {v(V_Z1 + 4 * z, 4)}, {v(V_L16)}, {s(SRD_WS, 4)}, {s(S_T0)} offen sc1'])
        it.append([f's_lshl_b32 {s(S_T0)}, {s(S_I)}, 8',
                   f's_add_u32 {s(S_T0)}, {s(S_T0)}, {WS_GATE}',
                   f'buffer_load_dword {v(V_G0)}, {v(V_PA + 5)}, {s(SRD_WS, 4)}, {s(S_T0)} offen sc1',
                   f'buffer_load_dword {v(V_G0 + 1)}, {v(V_PA + 5)}, {s(SRD_WS, 4)}, {s(S_T0)} offen offset:128 sc1'])
        for hd in range(8):
            for tb in range(2):
                l = []
                if hd % 4 == 0:
                    l = [f's_lshl1_add_u32 {s(S_Q0 + tb)}, {s(S_I)}, {tb}',
                         f's_lshl_b32 {s(S_Q0 + tb)}, {s(S_Q0 + tb)}, 15',
                         f's_lshl_b32 {s(S_T1)}, {s(S_W)}, 13',
                         f's_add_u32 {s(S_Q0 + tb)}, {s(S_Q0 + tb)}, {s(S_T1)}',
                         f's_add_u32 {s(S_Q0 + tb)}, {s(S_Q0 + tb)}, {WS_PQ + 1024 * hd}']
                l.append(f'buffer_load_dwordx4 {a(A_PQ + 4 * (2 * hd + tb), 4)}, {v(V_L16)}, {s(SRD_WS, 4)}, {s(S_Q0 + tb)} offen offset:{1024 * (hd & 3)} sc1')
                it.append(l)
        return it

    def gate_setup():
        return [[f's_and_b32 {s(S_T0)}, {s(S_W)}, 1',
                 f's_cmp_eq_u32 {s(S_T0)}, 0',
                 f's_cselect_b64 vcc, -1, 0',
                 f'v_cndmask_b32 {v(V_NG)}, {v(V_G0 + 1)}, {v(V_G0)}, vcc'],
                f'v_sub_f32 {v(V_NG)}, 1.0, {v(V_NG)}',
                f'v_mul_f32 {v(V_BNG)}, {v(V_BS)}, {v(V_NG)}']

    def emit1(b, x):
        if isinstance(x, list):
            for y in x:
                emit1(b, y)
        elif isinstance(x, tuple):
            b(x[1], tag=x[0])
        else:
            b(x)

    def main_stream(light):
        b = St(g, 'P2L' if light else 'P2H')
        nblk = 2 if light else 3
        NG = 32 * nblk
        if light:
            b.label('L_P2L')
            b(f's_lshl_b32 {s(S_U)}, {s(S_I)}, 1')
            b(f's_and_b32 {s(S_T0)}, {s(S_J)}, 1')
            b(f's_add_u32 {s(S_U)}, {s(S_U)}, {s(S_T0)}')
            b(f's_lshr_b32 {s(S_T0)}, {s(S_U)}, 3')
            b(f'v_lshrrev_b32 {v(t0)}, 2, {v(V_LANE)}')
            b(f'v_lshlrev_b32 {v(t0)}, 4, {v(t0)}')
            b(f'v_add_u32 {v(t0)}, {s(S_T0)}, {v(t0)}')
            b(f'v_and_b32 {v(t1)}, 3, {v(V_LANE)}')
            b(f'v_lshl_add_u32 {v(t0)}, {v(t0)}, 2, {v(t1)}')
            flag_addr(b, V_PA + 2, t0, t1)
            b(f's_mov_b32 {s(SRD_KV)}, {s(SRD_WS)}')
            b(f's_mov_b32 {s(SRD_KV + 1)}, {s(SRD_WS + 1)}')
            b(f's_cmp_lt_u32 {s(S_W)}, 2')
            b(f's_cselect_b32 {s(SRD_KV + 2)}, {hex(WS_SIZE - (G.OPT.get('wsoff', 0) << 20))}, 0')
            b(f's_mov_b32 {s(SRD_KV + 3)}, 0x20000')
            b(f's_lshl_b32 {s(S_KVO)}, {s(S_U)}, 14')
            b(f's_and_b32 {s(S_T0)}, {s(S_W)}, 1')
            b(f's_lshl_b32 {s(S_T0)}, {s(S_T0)}, 13')
            b(f's_add_u32 {s(S_KVO)}, {s(S_KVO)}, {s(S_T0)}')
            b(f's_add_u32 {s(S_KVO)}, {s(S_KVO)}, {WS_KVP}')
        fill = []
        items = []

        def drain(n):
            k = 0
            while fill and k < n:
                x = fill.pop(0)
                emit1(b, x)
                k += len(x) if isinstance(x, list) else 1

        n0 = b.mark()
        GP = NG - 36
        GT = NG - D
        for gi in range(NG):
            nb, n = gi >> 5, gi & 31
            acc = ACC[nb & 1]
            for tb in range(2):
                c = '0' if n == 0 else v(acc + 16 * tb, 16)
                b(f'v_mfma_f32_32x32x16_bf16 {v(acc + 16 * tb, 16)}, {v(RING + 4 * (gi % D), 4)}, {a(8 * n + 4 * tb, 4)}, {c}')
            if gi + D < NG:
                bload(b, gi + D)
            if G.OPT.get('aplan', 2) == 2:
                mv = {1: 1, 2: 5, 3: 9, 4: 13, 5: 17, 6: 21, 7: 25}
                for c, st in mv.items():
                    if gi == st:
                        g.mv_chunk(b, c, f'f{c % 3}')
                    if gi == st + 1 and c + 3 < 8:
                        b.wait_lds()
                        b.add(G.a_chunk_items(c + 3, f'f{c % 3}'))
            else:
                if gi == 4:
                    g.mv_chunk(b, 3, 'f0')
                if gi == 5:
                    b.wait_lds()
                    b.add(G.a_chunk_items(6, 'f0'))
                if gi == 10:
                    g.mv_chunk(b, 4, 'f1')
                if gi == 11:
                    b.wait_lds()
                    b.add(G.a_chunk_items(7, 'f1'))
                if gi == 16:
                    g.mv_chunk(b, 5, 'f2')
                if gi == 22:
                    g.mv_chunk(b, 6, 'f0')
                if gi == 26:
                    g.mv_chunk(b, 7, 'f1')
            if gi == 31:
                b.wait_lds()
                b('s_barrier')
            if b.q:
                b.pop(2)
            if gi == GP:
                b(f's_mov_b32 {s(S_T7)}, {WS_FP1}')
                b(f'buffer_load_dword {v(V_PR)}, {v(V_PA + 1)}, {s(SRD_WS, 4)}, {s(S_T7)} offen sc1')
            if light and gi == 20:
                b(f's_mov_b32 {s(S_T7)}, {WS_FP1}')
                b(f'buffer_load_dword {v(V_PR + 1)}, {v(V_PA + 2)}, {s(SRD_WS, 4)}, {s(S_T7)} offen sc1')
            if light and gi == 34:
                b(f's_mov_b32 {s(S_T7)}, {WS_FP1}')
                g.poll(b, V_PA + 2, s(S_T7), V_PR + 1, first_issued=True, mark=13)
                for r in range(8):
                    l = []
                    if r % 4 == 0:
                        l = [f's_add_u32 {s(S_Q0)}, {s(S_KVO)}, {1024 * r}']
                    l.append(f'buffer_load_dwordx4 {v(V_KL + 4 * r, 4)}, {v(V_L16)}, {s(SRD_KV, 4)}, {s(S_Q0)} offen offset:{1024 * (r & 3)} sc1')
                    items.append(l)
            if nb > 0:
                if 2 <= n < 10:
                    b(xw(nb - 1, n - 2))
                if n == 12:
                    b.wait_lds()
                    b('s_barrier')
                if 12 <= n < 20:
                    b(xr(nb - 1, n - 12))
                if n == 21:
                    fill.extend(xsum(V_GS + 8 * (nb - 1)))
            if gi == GT:
                drain(len(fill))
                b(f's_mov_b32 {s(S_T7)}, {WS_FP1}')
                g.poll(b, V_PA + 1, s(S_T7), V_PR, first_issued=True, mark=15)
                items.extend(tail_loads(nblk))
            if light and gi == 52:
                for r in range(0, 8, 2):
                    for k in range(4):
                        fill.append(f'v_add_f32 {v(V_KL + 4 * r + k)}, {v(V_KL + 4 * r + k)}, {v(V_KL + 4 * r + 4 + k)}')
                for k in range(4):
                    fill.append(f'v_add_f32 {v(V_KL + k)}, {v(V_KL + k)}, {v(V_KL + 8 + k)}')
                    fill.append(f'v_add_f32 {v(V_KL + 16 + k)}, {v(V_KL + 16 + k)}, {v(V_KL + 24 + k)}')
                for k in range(4):
                    fill.append(f'v_add_f32 {v(V_KS + k)}, {v(V_KL + k)}, {v(V_KL + 16 + k)}')
            if light and gi == 58:
                drain(len(fill))
                b(f's_mul_i32 {s(S_T0)}, {s(S_W)}, {PRIV}')
                b(f's_add_u32 {s(S_T0)}, {s(S_T0)}, {KVSCR}')
                b(f'v_add_u32 {v(t0)}, {s(S_T0)}, {v(V_L16)}')
                b(f'ds_write_b128 {v(t0)}, {v(V_KS, 4)}')
                b.wait_lds()
                b('s_barrier')
                b(f'v_add_u32 {v(t0)}, {PRIV + KVSCR}, {v(V_L16)}')
                b(f'ds_read_b128 {v(V_KL, 4)}, {v(t0)}')
                for k in range(4):
                    b(f'v_add_f32 {v(V_KS + k)}, {v(V_KS + k)}, {v(V_KL + k)}')
                b(f'v_cvt_pk_bf16_f32 {v(V_KS)}, {v(V_KS)}, {v(V_KS + 1)}')
                b(f'v_cvt_pk_bf16_f32 {v(V_KS + 1)}, {v(V_KS + 2)}, {v(V_KS + 3)}')
                b(f's_cmp_eq_u32 {s(S_W)}, 0')
                b(f's_cselect_b32 {s(SRD_KV + 2)}, {hex(WS_SIZE - (G.OPT.get('wsoff', 0) << 20))}, 0')
                b(f's_lshr_b32 {s(S_T0)}, {s(S_U)}, 1')
                b(f's_lshl_b32 {s(S_T0)}, {s(S_T0)}, 10')
                b(f's_and_b32 {s(S_T1)}, {s(S_U)}, 1')
                b(f's_lshl_b32 {s(S_T1)}, {s(S_T1)}, 3')
                b(f's_add_u32 {s(S_T0)}, {s(S_T0)}, {s(S_T1)}')
                b(f's_add_u32 {s(S_T0)}, {s(S_T0)}, {WS_KVF}')
                b(f'buffer_store_dwordx2 {v(V_KS, 2)}, {v(V_L16)}, {s(SRD_KV, 4)}, {s(S_T0)} offen sc1', tag='kvf')
            for _ in range(2 if gi >= GT else 1):
                if items:
                    emit1(b, items.pop(0))
            drain(6)
            if gi in (7, 23, 31, 47, 63, 79):
                stamp(b, 24 + (7, 23, 31, 47, 63, 79).index(gi))
        while items:
            emit1(b, items.pop(0))
        drain(len(fill))
        b.weave_from(n0, G=5)
        stamp(b, 6)
        if light:
            b.wait_vm('kvf')
            b(f's_lshl_b32 {s(S_T0)}, {s(S_U)}, 4')
            b(f's_add_u32 {s(S_T0)}, {s(S_T0)}, {WS_FKV}')
            b(f'v_mov_b32 {v(V_POLL)}, {s(S_N)}')
            b(f'buffer_store_dword {v(V_POLL)}, off, {s(SRD_KV, 4)}, {s(S_T0)} sc1', tag='flag')
        last = nblk - 1
        for k in range(8):
            b(xw(last, k))
        for x in gate_setup():
            emit1(b, x)
        b.wait_lds()
        b('s_barrier')
        for k in range(8):
            b(xr(last, k))
        for nb in range(last):
            for x in ymath(nb, V_GS + 8 * nb):
                emit1(b, x)
            ystore(b, nb)
        for x in xsum(V_GS) + ymath(last, V_GS):
            emit1(b, x)
        ystore(b, last)
        stamp(b, 7)
        if light:
            ep = g.lab('EP')
            b(f's_lshl_b32 {s(S_T0)}, {s(S_I)}, 5')
            b(f's_lshl2_add_u32 {s(S_T0)}, {s(S_J)}, {s(S_T0)}')
            b(f's_add_u32 {s(S_T0)}, {s(S_T0)}, {s(S_W)}')
            b(f's_cmp_lg_u32 {s(S_T0)}, {6 * 4 + 3}')
            b(f's_cbranch_scc1 {ep}_end')
            txt = [f'    v_and_b32 {v(t1)}, 3, {v(V_LANE)}', f'    v_lshrrev_b32 {v(t0)}, 2, {v(V_LANE)}',
                   f'    v_lshlrev_b32 {v(t0)}, 4, {v(t0)}', f'    v_add_lshl_u32 {v(t0)}, {v(t0)}, {v(t1)}, 2']
            for k in range(16):
                txt.append(f'    s_mov_b32 {s(S_T3)}, {WS_FP1 + 1024 * k}')
                txt.append(f'    buffer_load_dword {v(32 + k)}, {v(t0)}, {s(SRD_WS, 4)}, {s(S_T3)} offen sc1')
            txt = [f'    s_mov_b32 {s(G.S_CNT)}, {G.SPIN_MAX}', f'{ep}:'] + txt + ['    s_waitcnt vmcnt(0)']
            for k in range(16):
                txt.append(f'    v_xor_b32 {v(32 + k)}, {s(S_N)}, {v(32 + k)}')
            for k in range(1, 16, 2):
                hi = 32 + k + 1 if k + 1 < 16 else 32 + k
                txt.append(f'    v_or3_b32 {v(32)}, {v(32)}, {v(32 + k)}, {v(hi)}')
            txt += [f'    v_cmp_ne_u32 vcc, 0, {v(32)}', f'    s_cbranch_vccz {ep}_ok',
                    f'    s_sub_u32 {s(G.S_CNT)}, {s(G.S_CNT)}, 1', f'    s_cmp_lg_u32 {s(G.S_CNT)}, 0', f'    s_cbranch_scc1 {ep}',
                    f'{ep}_ok:', f'    v_mov_b32 {v(V_POLL)}, {s(S_N)}',
                    f'    buffer_store_dword {v(V_POLL)}, off, {s(SRD_WS, 4)}, 0 sc1', f'{ep}_end:']
            b.b.raw('\n'.join(txt))
        else:
            b('s_branch L_P3')
        return b.b

    PH = main_stream(False)
    PL = main_stream(True)

    b = St(g, 'P3')
    b.label('L_P3')
    ACC3 = 64
    T = [224, 240]
    b(f'v_bfe_u32 {v(t0)}, {v(V_LANE)}, 2, 1')
    b(f'v_bfe_u32 {v(t1)}, {v(V_LANE)}, 4, 1')
    b(f'v_xor_b32 {v(t0)}, {v(t0)}, {v(t1)}')
    b(f'v_and_b32 {v(t1)}, 3, {v(V_LANE)}')
    b(f'v_lshlrev_b32 {v(t1)}, 4, {v(t1)}')
    b(f'v_lshl_add_u32 {v(t0)}, {v(t0)}, 6, {v(t1)}')
    b(f'v_lshrrev_b32 {v(t1)}, 3, {v(V_LANE)}')
    b(f'v_lshl_add_u32 {v(t0)}, {v(t1)}, 10, {v(t0)}')
    b(f's_lshl_b32 {s(S_T0)}, {s(S_J)}, 7')
    VW = 28
    b(f'v_add_u32 {v(VW)}, {s(S_T0)}, {v(t0)}')
    b(f'v_add_u32 {v(VW + 1)}, 7168, {v(VW)}')
    b(f's_cmp_eq_u32 {s(S_W)}, 0')
    b(f's_cselect_b32 {s(S_T0)}, {hex(OOB)}, 0')
    b(f'v_add_u32 {v(32)}, {s(S_T0)}, {v(VW)}')
    b(f's_mul_i32 {s(S_WOB)}, {s(S_W)}, {176 * 1024}')
    b(f's_sub_u32 {s(S_WOB)}, {s(S_WOB)}, 16384')
    b(f's_mul_i32 {s(S_PART)}, {s(S_W)}, {PRIV}')
    srd(b, SRD_X, P_WO, 512 * 1024)
    srd(b, SRD_U, P_WOUT, 688 * 1024)

    def wo_items(hd):
        return [[f's_add_u32 m0, {s(S_PART)}, {XOFF + 2048 * hd}',
                 f's_lshl_b32 {s(S_Q0)}, {s(S_W)}, 17',
                 f's_add_u32 {s(S_Q0)}, {s(S_Q0)}, {16384 * hd}',
                 (f'wo{hd}', f'buffer_load_dwordx4 {v(VW)}, {s(SRD_X, 4)}, {s(S_Q0)} offen{G.NT(8)} lds')],
                [(f'wo{hd}', f'buffer_load_dwordx4 {v(VW + 1)}, {s(SRD_X, 4)}, {s(S_Q0)} offen offset:1024{G.NT(8)} lds')]]

    def wout_items():
        it = []
        for i in range(22):
            vo = 32 if i < 2 else VW
            it.append([f's_add_u32 m0, {s(S_PART)}, {1024 * i}',
                       f's_add_u32 {s(S_Q0)}, {s(S_WOB)}, {8192 * i}',
                       f's_max_i32 {s(S_Q0)}, {s(S_Q0)}, 0',
                       ('wout', f'buffer_load_dwordx4 {v(vo)}, {s(SRD_U, 4)}, {s(S_Q0)} offen{G.NT(8)} lds')])
        return it

    b(f'v_and_b32 {v(t0)}, 15, {v(V_LANE)}')
    b(f's_lshl_b32 {s(S_T0)}, {s(S_W)}, 4')
    b(f'v_add_u32 {v(t0)}, {s(S_T0)}, {v(t0)}')
    b(f'v_lshlrev_b32 {v(V_PA + 3)}, 4, {v(t0)}')
    b(f's_mov_b32 {s(S_T7)}, {WS_FKV}')
    b(f'buffer_load_dword {v(V_PR)}, {v(V_PA + 3)}, {s(SRD_WS, 4)}, {s(S_T7)} offen sc1')
    for hd in range(4):
        b.add(wo_items(hd))
    b.flush()
    V_TW = 26
    tr_addr(b, V_TW, True)
    b(f'v_add_u32 {v(V_TW)}, {s(S_PART)}, {v(V_TW)}')
    b(f'v_xor_b32 {v(V_TW + 1)}, 64, {v(V_TW)}')
    b.wait_vm('y')
    b(f's_lshl3_add_u32 {s(S_T0)}, {s(S_I)}, {s(S_J)}')
    b(f's_lshl4_add_u32 {s(S_T0)}, {s(S_T0)}, {s(S_W)}')
    b(f's_lshl_b32 {s(S_T0)}, {s(S_T0)}, 2')
    b(f's_add_u32 {s(S_T0)}, {s(S_T0)}, {WS_FY}')
    b(f'v_mov_b32 {v(V_POLL)}, {s(S_N)}')
    b(f'buffer_store_dword {v(V_POLL)}, off, {s(SRD_WS, 4)}, {s(S_T0)} sc1', tag='flag')
    stamp(b, 8)
    g.poll(b, V_PA + 3, s(S_T7), V_PR, first_issued=True, mark=19)
    stamp(b, 14)
    b(f's_lshl_b32 {s(S_T0)}, {s(S_W)}, 13')
    b(f's_add_u32 {s(S_T0)}, {s(S_T0)}, {WS_KVF}')
    for hd in range(8):
        if hd == 4:
            b(f's_add_u32 {s(S_T0)}, {s(S_T0)}, 4096')
        b(f'buffer_load_dwordx4 {a(A_KV + 4 * hd, 4)}, {v(V_L16)}, {s(SRD_WS, 4)}, {s(S_T0)} offen offset:{1024 * (hd & 3)} sc1')
    for hd in range(4, 8):
        b.add(wo_items(hd))
    b.add(wout_items())
    WFR = 48
    OF = [[8, 12], [16, 4]]
    eps = hex(f2u(1e-6))

    def num(hd):
        for tb in range(2):
            b(f'v_mfma_f32_32x32x16_bf16 {v(T[tb], 16)}, {a(A_KV + 4 * hd, 4)}, {a(A_PQ + 4 * (2 * hd + tb), 4)}, 0')

    def wread(hd):
        st = hd & 1
        b.ensure(f'wo{hd}')
        b.wait_vm(f'wo{hd}')
        for db in range(2):
            for t in range(2):
                b(f'ds_read_b64_tr_b16 {v(WFR + 8 * st + 4 * db + 2 * t, 2)}, {v(V_TW + db)} offset:{XOFF + 2048 * hd + 1024 * t}')

    def post(hd, tb):
        n0, dn = (T[tb], T[tb] + 8) if hd % 2 == 0 else (T[tb] + 8, T[tb])
        b(f'v_add_f32 {v(dn)}, {eps}, {v(dn)}')
        b(f'v_rcp_f32 {v(dn)}, {v(dn)}')
        b(f'v_mul_f32 {v(dn)}, {v(dn)}, {v(V_G0 + tb)}')
        for k in range(8):
            b(f'v_mul_f32 {v(n0 + k)}, {v(n0 + k)}, {v(dn)}')
        of = OF[hd & 1][tb]
        for k in range(4):
            b(f'v_cvt_pk_bf16_f32 {v(of + k)}, {v(n0 + 2 * k)}, {v(n0 + 2 * k + 1)}')

    def outm(hd):
        st = hd & 1
        for tb in range(2):
            for db in range(2):
                acc = ACC3 + 16 * (2 * tb + db)
                c = '0' if hd == 0 else v(acc, 16)
                b(f'v_mfma_f32_32x32x16_bf16 {v(acc, 16)}, {v(WFR + 8 * st + 4 * db, 4)}, {v(OF[st][tb], 4)}, {c}')

    b.period = 10
    n0 = b.mark()
    for hd in range(8):
        num(hd)
        wread(hd)
        if hd > 0:
            outm(hd - 1)
        post(hd, 0)
        post(hd, 1)
        if hd == 5:
            with b.atomic():
                b(f'v_and_b32 {v(t1)}, 31, {v(V_LANE)}')
                b(f's_lshl_b32 {s(S_T0)}, {s(S_I)}, 5')
                b(f'v_add_u32 {v(t1)}, {s(S_T0)}, {v(t1)}')
                flag_addr(b, 20, t1, t0)
                b(f's_mov_b32 {s(S_T7)}, {WS_FY}')
                b(f'buffer_load_dword {v(21)}, {v(20)}, {s(SRD_WS, 4)}, {s(S_T7)} offen sc1')
    outm(7)
    b.flush()
    b.weave_from(n0, G=6)
    b.period = 0
    stamp(b, 9)
    g.poll(b, 20, s(S_T7), 21, first_issued=True, mark=22)
    stamp(b, 10)
    for n in range(11):
        for tb in range(2):
            if n % 4 == 0:
                b(f's_lshl1_add_u32 {s(S_T0 + tb)}, {s(S_I)}, {tb}')
                b(f's_mul_i32 {s(S_T0 + tb)}, {s(S_T0 + tb)}, 45056')
                b(f's_mul_i32 {s(S_T2)}, {s(S_W)}, {11 * 1024}')
                b(f's_add_u32 {s(S_T0 + tb)}, {s(S_T0 + tb)}, {s(S_T2)}')
                b(f's_add_u32 {s(S_T0 + tb)}, {s(S_T0 + tb)}, {WS_Y + 1024 * n}')
            b(f'buffer_load_dwordx4 {a(A_Y + 8 * n + 4 * tb, 4)}, {v(V_L16)}, {s(SRD_WS, 4)}, {s(S_T0 + tb)} offen offset:{1024 * (n & 3)} sc1')
    b.wait_vm('wout')

    def woutread(n):
        st = n & 1
        for db in range(2):
            for t in range(2):
                b(f'ds_read_b64_tr_b16 {v(WFR + 8 * st + 4 * db + 2 * t, 2)}, {v(V_TW + db)} offset:{2048 * n + 1024 * t}')
    n0 = b.mark()
    woutread(0)
    for n in range(11):
        if n + 1 < 11:
            woutread(n + 1)
        st = n & 1
        for tb in range(2):
            for db in range(2):
                acc = ACC3 + 16 * (2 * tb + db)
                b(f'v_mfma_f32_32x32x16_bf16 {v(acc, 16)}, {v(WFR + 8 * st + 4 * db, 4)}, {a(A_Y + 8 * n + 4 * tb, 4)}, {v(acc, 16)}')
    b.weave_from(n0, G=5)
    b.wait_lds()
    b('s_barrier')
    b(f's_lshl_b32 {s(S_T0)}, {s(S_W)}, 14')
    b(f'v_add_u32 {v(t0)}, {s(S_T0)}, {v(V_L16)}')
    for blk in range(4):
        for j in range(4):
            b(f'ds_write_b128 {v(t0)}, {v(ACC3 + 16 * blk + 4 * j, 4)} offset:{4096 * blk + 1024 * j}')
    srd(b, SRD_T, P_OUT, 2048 * 1024)
    b(f'v_and_b32 {v(t0 + 3)}, 31, {v(V_LANE)}')
    b(f'v_lshlrev_b32 {v(t0 + 3)}, 10, {v(t0 + 3)}')
    b(f'v_lshrrev_b32 {v(t1)}, 5, {v(V_LANE)}')
    b(f'v_lshl_add_u32 {v(t0 + 3)}, {v(t1)}, 4, {v(t0 + 3)}')
    b(f's_lshl_b32 {s(S_T0)}, {s(S_I)}, 16')
    b(f's_lshr_b32 {s(S_T1)}, {s(S_W)}, 1')
    b(f's_lshl_b32 {s(S_T1)}, {s(S_T1)}, 15')
    b(f's_add_u32 {s(S_T0)}, {s(S_T0)}, {s(S_T1)}')
    b(f's_lshl_b32 {s(S_T1)}, {s(S_J)}, 7')
    b(f's_add_u32 {s(S_T0)}, {s(S_T0)}, {s(S_T1)}')
    b(f's_and_b32 {s(S_T1)}, {s(S_W)}, 1')
    b(f's_lshl_b32 {s(S_T1)}, {s(S_T1)}, 6')
    b(f's_add_u32 {s(S_T4)}, {s(S_T0)}, {s(S_T1)}')
    b.wait_lds()
    b('s_barrier')
    b(f's_lshl_b32 {s(S_T0)}, {s(S_W)}, 12')
    b(f'v_add_u32 {v(t0)}, {s(S_T0)}, {v(V_L16)}')
    RB_ = 128
    for src in range(4):
        for j in range(4):
            b(f'ds_read_b128 {v(RB_ + 16 * src + 4 * j, 4)}, {v(t0)} offset:{16384 * src + 1024 * j}')
    for k in range(16):
        b(f'v_add_f32 {v(RB_ + k)}, {v(RB_ + k)}, {v(RB_ + 16 + k)}')
        b(f'v_add_f32 {v(RB_ + 32 + k)}, {v(RB_ + 32 + k)}, {v(RB_ + 48 + k)}')
    for k in range(16):
        b(f'v_add_f32 {v(RB_ + k)}, {v(RB_ + k)}, {v(RB_ + 32 + k)}')
    O = 192
    for k in range(8):
        b(f'v_cvt_pk_bf16_f32 {v(O + k)}, {v(RB_ + 2 * k)}, {v(RB_ + 2 * k + 1)}')
    for jj in range(2):
        b(f'v_permlane32_swap_b32 {v(O + 4 * jj)}, {v(O + 4 * jj + 2)}')
        b(f'v_permlane32_swap_b32 {v(O + 4 * jj + 1)}, {v(O + 4 * jj + 3)}')
    for jj in range(2):
        b(f'buffer_store_dwordx4 {v(O + 4 * jj, 4)}, {v(t0 + 3)}, {s(SRD_T, 4)}, {s(S_T4)} offen offset:{32 * jj}')
    stamp(b, 12)
    return P2, PH, PL, b.b
```

```python
import sys, struct, math
from collections import deque
from asmlib import *

KNAME = 'gated_mix__linear_attn_block__mixer_gmlp__prompt_kernel'
OPT = dict(stamps=0, rot=1, touch=0, late=0, map=0, cpf=0)


def v(a, n=1):
    return f'v{a}' if n == 1 else f'v[{a}:{a + n - 1}]'


def a(x, n=1):
    return f'a{x}' if n == 1 else f'a[{x}:{x + n - 1}]'


def s(x, n=1):
    return f's{x}' if n == 1 else f's[{x}:{x + n - 1}]'


WS_EPOCH = 0
WS_FZ2 = 0x10000
WS_FP1 = 0x20000
WS_FY = 0x30000
WS_FKV = 0x40000
WS_GATE = 0x50000
WS_KVF = 0x60000
WS_STATS = 0x80000
WS_KVP = 0x100000
WS_Z2N = 0x200000
WS_Z1F = 0x500000
WS_PQ = 0x800000
WS_Y = 0xB00000
WS_DBG = 0x1000000
WS_SIZE = 0x10000000
NONCE_K = 0x9E3779B1
OOB = 0x40000000
SPIN_MAX = 20000

R0 = 0
R1 = 65536
R2 = 98304
LDS_BYTES = 163840

S_WG = 2
SRD_A = 4
SRD_U = 8
S_Q0, S_Q1 = 12, 13
S_AS = 14
S_ROT = 15
S_ROT2 = 3
P_X, P_WQKV, P_WO, P_BX, P_WIN, P_WSP, P_BSP, P_WOUT = 16, 18, 20, 22, 24, 26, 28, 30
P_GW, P_OUT, P_DBG, P_WS = 32, 34, 36, 38
SRD_X = 40
SRD_W = 44
SRD_WS = 48
SRD_T = 52
S_W = 56
S_RB, S_CG, S_I, S_J = 57, 58, 59, 60
S_N = 61
S_T0, S_T1, S_T2, S_T3, S_T4, S_T5 = 64, 65, 66, 67, 68, 69
S_XL, S_XS, S_WL, S_WSO = 70, 71, 72, 73
S_RS, S_COL, S_MASK = 74, 75, 76
S_O0, S_O1 = 77, 78
S_TB = 79
S_RS64 = 80
S_LOG2E, S_EPS = 82, 83
S_CNT = 86
S_XG, S_XLW, S_WGB = 84, 85, 87
S_KC = 91
S_D2COL, S_D2MASK, S_D2SEL = 88, 89, 90
S_D3COL, S_D3MASK, S_D3SEL = 92, 93, 94
S_T6, S_T7 = 96, 97
S_VCC2 = 98

V_LANE = 0
V_T0 = 1
V_DUM = 7
V_XD = 8
V_WD = 12
V_XRO = 14
V_XRT = 18
V_WR = 22
V_L16 = 24
V_L8 = 25
V_GA = 26
V_NON = 27
V_ST = 28
V_POLL = 30
V_AR = 32
V_E = 36
V_AD = 40
V_TCH = 44
V_BSP = 45
V_TW1, V_TW2 = 46, 47
V_ACC0 = 64
V_ACC1 = 96
V_WF = 128
V_TMP = 160
V_PK = 192
V_PV = 208
V_STAT = 224
V_KV = 64
V_KZ = 224
A_X = 128


def NT(k):
    return ' nt' if OPT.get('nt', 0) & k else ''


def f2u(x):
    return struct.unpack('<I', struct.pack('<f', x))[0]


LOG2E = 1.4426950408889634
GELU_A_F = -2.0 * LOG2E * math.sqrt(2.0 / math.pi)
GELU_A = f2u(GELU_A_F)
GELU_B = f2u(GELU_A_F * 0.044715)


class St:
    def __init__(self, g, name):
        self.g = g
        self.b = g.blk(name)
        self.q = deque()
        self.period = 0
        self.cnt = 0
        self.lock = 0

    def __call__(self, text, tag=None, **meta):
        r = self.b(text, tag=tag, **meta)
        if self.period and not self.lock and self.q:
            self.cnt += 1
            if self.cnt >= self.period:
                self.pop()
        return r

    def pop(self, n=1):
        for _ in range(n):
            if not self.q:
                return
            item = self.q.popleft()
            for x in item:
                if isinstance(x, tuple):
                    self.b(x[1], tag=x[0], **(x[2] if len(x) > 2 else {}))
                else:
                    self.b(x)
        self.cnt = 0

    def add(self, items):
        self.q.extend(items)

    def flush(self):
        self.pop(len(self.q))

    def ensure(self, tag):
        def has(item):
            return any(isinstance(x, tuple) and x[0] == tag for x in item)
        while any(has(i) for i in self.q):
            self.pop(1)

    def label(self, n):
        self.b.label(n)

    def mark(self):
        return len(self.b.ins)

    def weave_from(self, n0, G=5, adv=2):
        if OPT.get('weave', 1):
            self.b.ins[n0:] = weave(self.b.ins[n0:], G, adv)

    def wait_vm(self, t):
        self.b.wait_vm(t)

    def wait_lds(self):
        self.b.wait_lds()

    class _L:
        def __init__(self, st):
            self.st = st

        def __enter__(self):
            self.st.lock += 1

        def __exit__(self, *a):
            self.st.lock -= 1

    def atomic(self):
        return St._L(self)


def gelu_group(b, xs, tmp):
    n = len(xs)
    for k in range(n):
        b(f'v_mul_f32 {v(tmp + k)}, {v(xs[k])}, {v(xs[k])}')
    for k in range(n):
        b(f'v_fmamk_f32 {v(tmp + k)}, {v(tmp + k)}, {hex(GELU_B)}, {v(V_GA)}')
    for k in range(n):
        b(f'v_mul_f32 {v(tmp + k)}, {v(tmp + k)}, {v(xs[k])}')
    for k in range(n):
        b(f'v_exp_f32 {v(tmp + k)}, {v(tmp + k)}')
    for k in range(n):
        b(f'v_add_f32 {v(tmp + k)}, 1.0, {v(tmp + k)}')
    for k in range(n):
        b(f'v_rcp_f32 {v(tmp + k)}, {v(tmp + k)}')
    for k in range(n):
        b(f'v_mul_f32 {v(xs[k])}, {v(xs[k])}, {v(tmp + k)}')


def phi_group(b, xs, tmp):
    n = len(xs)
    for k in range(n):
        b(f'v_mul_f32 {v(tmp + k)}, {s(S_LOG2E)}, {v(xs[k])}')
    for k in range(n):
        b(f'v_exp_f32_e64 {v(tmp + k)}, {v(tmp + k)} clamp')
    for k in range(n):
        b(f'v_max_f32 {v(xs[k])}, {s(S_EPS)}, {v(xs[k])}')
    for k in range(n):
        b(f'v_add_f32 {v(xs[k])}, {v(xs[k])}, {v(tmp + k)}')


def srd(b, base, ptr, nrec):
    b(f's_mov_b32 {s(base)}, {s(ptr)}')
    b(f's_mov_b32 {s(base + 1)}, {s(ptr + 1)}')
    b(f's_mov_b32 {s(base + 2)}, {hex(nrec)}')
    b(f's_mov_b32 {s(base + 3)}, 0x20000')


def dma4_voffsets(b, dst, RS):
    t0, t1, t2 = V_T0, V_T0 + 1, V_T0 + 2
    b(f'v_lshrrev_b32 {v(t0)}, 3, {v(V_LANE)}')
    b(f'v_and_b32 {v(t1)}, 7, {v(V_LANE)}')
    b(f'v_lshrrev_b32 {v(t2)}, 4, {v(V_LANE)}')
    b(f'v_xor_b32 {v(t1)}, {v(t1)}, {v(t2)}')
    b(f'v_lshlrev_b32 {v(t1)}, 4, {v(t1)}')
    b(f'v_mul_u32_u24 {v(t0)}, {RS}, {v(t0)}')
    b(f'v_add_u32 {v(dst)}, {v(t0)}, {v(t1)}')
    b(f'v_xor_b32 {v(t1)}, 64, {v(t1)}')
    b(f'v_add_u32 {v(t0)}, {v(t0)}, {v(t1)}')
    b(f'v_add_u32 {v(dst + 1)}, {8 * RS - 1024}, {v(t0)}')
    b(f'v_add_u32 {v(dst + 2)}, {16 * RS - 2048}, {v(dst)}')
    b(f'v_add_u32 {v(dst + 3)}, {24 * RS - 3072}, {v(t0)}')


def frag_read_addrs(b, dst):
    t0, t1, t2 = V_T0, V_T0 + 1, V_T0 + 2
    b(f'v_and_b32 {v(t0)}, 31, {v(V_LANE)}')
    b(f'v_lshrrev_b32 {v(t1)}, 5, {v(V_LANE)}')
    b(f'v_bfe_u32 {v(t2)}, {v(V_LANE)}, 1, 3')
    b(f'v_xor_b32 {v(t1)}, {v(t1)}, {v(t2)}')
    b(f'v_lshlrev_b32 {v(t1)}, 4, {v(t1)}')
    b(f'v_lshl_add_u32 {v(dst)}, {v(t0)}, 7, {v(t1)}')
    for kk in range(1, 4):
        b(f'v_xor_b32 {v(dst + kk)}, {32 * kk}, {v(dst)}')


def tr_addr(b, dst, pi):
    t0, t1 = V_T0, V_T0 + 1
    b(f'v_bfe_u32 {v(t0)}, {v(V_LANE)}, 2, 2')
    b(f'v_lshrrev_b32 {v(t1)}, 5, {v(V_LANE)}')
    b(f'v_lshl_add_u32 {v(t1)}, {v(t1)}, {2 if pi else 3}, {v(t0)}')
    b(f'v_lshlrev_b32 {v(t1)}, 7, {v(t1)}')
    b(f'v_lshrrev_b32 {v(t0)}, 1, {v(t0)}')
    b(f'v_lshl_add_u32 {v(t1)}, {v(t0)}, 6, {v(t1)}')
    b(f'v_bfe_u32 {v(t0)}, {v(V_LANE)}, 4, 1')
    b(f'v_lshl_add_u32 {v(t1)}, {v(t0)}, 5, {v(t1)}')
    b(f'v_and_b32 {v(t0)}, 3, {v(V_LANE)}')
    b(f'v_lshl_add_u32 {v(dst)}, {v(t0)}, 3, {v(t1)}')


def wd_voffsets(b):
    t0, t1, t2 = V_T0, V_T0 + 1, V_T0 + 2
    b(f'v_bfe_u32 {v(t0)}, {v(V_LANE)}, 2, 1')
    b(f'v_bfe_u32 {v(t1)}, {v(V_LANE)}, 4, 1')
    b(f'v_xor_b32 {v(t0)}, {v(t0)}, {v(t1)}')
    b(f'v_and_b32 {v(t1)}, 3, {v(V_LANE)}')
    b(f'v_lshlrev_b32 {v(t1)}, 4, {v(t1)}')
    b(f'v_lshl_add_u32 {v(t0)}, {v(t0)}, 6, {v(t1)}')
    b(f'v_lshrrev_b32 {v(t1)}, 3, {v(V_LANE)}')
    b(f'v_mul_lo_u32 {v(t1)}, {v(t1)}, {s(S_RS)}')
    b(f'v_add_u32 {v(t1)}, {v(t1)}, {v(t0)}')
    b(f'v_add_u32 {v(V_WD)}, {s(S_COL)}, {v(t1)}')
    b(f's_lshl_b32 {s(S_T0)}, {s(S_RS)}, 3')
    b(f's_sub_u32 {s(S_T0)}, {s(S_T0)}, 1024')
    b(f'v_add_u32 {v(V_WD + 1)}, {s(S_T0)}, {v(V_WD)}')
    b(f'v_mov_b32 {v(t2)}, {hex(OOB)}')
    b(f'v_cmp_gt_u32 vcc, {s(S_MASK)}, {v(t0)}')
    b(f'v_cndmask_b32 {v(V_WD)}, {v(V_WD)}, {v(t2)}, vcc')
    b(f'v_cndmask_b32 {v(V_WD + 1)}, {v(V_WD + 1)}, {v(t2)}, vcc')
    b(f's_lshl_b32 {s(S_RS64)}, {s(S_RS)}, 6')
    b(f's_lshl_b32 {s(S_T0)}, {s(S_RS)}, 4')
    b(f's_mul_i32 {s(S_WSO)}, {s(S_T0)}, {s(S_W)}')


def set_w_srd(b, sel):
    b(f's_cmp_eq_u32 {s(sel)}, 0')
    b(f's_cselect_b32 {s(SRD_W)}, {s(P_WQKV)}, {s(P_WIN)}')
    b(f's_cselect_b32 {s(SRD_W + 1)}, {s(P_WQKV + 1)}, {s(P_WIN + 1)}')
    b(f's_mov_b32 {s(SRD_W + 2)}, {hex(512 * 2752)}')
    b(f's_cmov_b32 {s(SRD_W + 2)}, {hex(512 * 3072)}')
    b(f's_mov_b32 {s(SRD_W + 3)}, 0x20000')


def w_piece_items(p, region, tag):
    return [
        [f's_add_u32 {s(S_Q0)}, {s(S_ROT)}, {p}',
         f's_and_b32 {s(S_Q0)}, {s(S_Q0)}, 7',
         f's_mul_i32 {s(S_Q0)}, {s(S_Q0)}, {s(S_RS64)}',
         f's_add_u32 {s(S_Q0)}, {s(S_Q0)}, {s(S_WSO)}',
         f's_add_u32 m0, {s(S_WL)}, {region + 8192 * p}',
         (tag, f'buffer_load_dwordx4 {v(V_WD)}, {s(SRD_W, 4)}, {s(S_Q0)} offen{NT(2)} lds')],
        [(tag, f'buffer_load_dwordx4 {v(V_WD + 1)}, {s(SRD_W, 4)}, {s(S_Q0)} offen offset:1024{NT(2)} lds')],
    ]


def x_chunk_items(c, tag):
    it = []
    for i in range(4):
        l = []
        if i == 0:
            l = [f's_add_u32 {s(S_Q0)}, {s(S_ROT)}, {c}',
                 f's_and_b32 {s(S_Q0)}, {s(S_Q0)}, 7',
                 f's_lshl_b32 {s(S_Q0)}, {s(S_Q0)}, 7',
                 f's_add_u32 {s(S_Q0)}, {s(S_Q0)}, {s(S_XS)}',
                 f's_add_u32 m0, {s(S_XL)}, {16384 * (c % 4)}']
        l.append((tag, f'buffer_load_dwordx4 {v(V_XD + i)}, {s(SRD_X, 4)}, {s(S_Q0)} offen offset:{1024 * i}{NT(4)} lds'))
        it.append(l)
    return it


def l1_items(c):
    tag = f'x{c}'
    slot = R1 + 16384 * (c % 3)
    it = []
    for m in range(4):
        l = []
        if m == 0:
            l = [f's_add_u32 {s(S_KC)}, {s(S_ROT)}, {c}',
                 f's_and_b32 {s(S_KC)}, {s(S_KC)}, 7',
                 f's_lshl_b32 {s(S_Q0)}, {s(S_KC)}, 7',
                 f's_add_u32 {s(S_Q0)}, {s(S_Q0)}, {s(S_XG)}',
                 f's_add_u32 m0, {s(S_XLW)}, {slot}']
        else:
            l = [f's_add_u32 {s(S_Q0)}, {s(S_Q0)}, 7168']
        l.append((tag, f'buffer_load_dwordx4 {v(V_XD + (m & 1))}, {s(SRD_X, 4)}, {s(S_Q0)} offen offset:{1024 * m} lds'))
        it.append(l)
    it.append([f's_add_u32 {s(S_Q0)}, {s(S_Q0)}, {7168 + 4096}',
               f's_add_u32 m0, {s(S_XLW)}, {slot + 4096}',
               (tag, f'buffer_load_dwordx4 {v(V_XD)}, {s(SRD_X, 4)}, {s(S_Q0)} offen lds')])
    return it


def l1_item5(g, b, c):
    tag = f'x{c}'
    l0, l1 = g.lab('M5'), g.lab('M5')
    b.b(f's_cmp_eq_u32 {s(S_W)}, 0')
    b.b(f's_cbranch_scc0 {l0}')
    b.b(f's_add_u32 {s(S_Q0)}, {s(S_Q0)}, 7168')
    b.b(f'buffer_load_dwordx4 {v(V_XD + 1)}, {s(SRD_X, 4)}, {s(S_Q0)} offen offset:1024 lds', nocount=True)
    b.b(f's_branch {l1}')
    b.b.label(l0)
    b.b(f's_mul_i32 {s(S_Q1)}, {s(S_KC)}, {s(S_RS64)}')
    b.b(f's_sub_u32 {s(S_Q0)}, {s(S_WGB)}, 1')
    b.b(f's_lshl_b32 {s(S_T0)}, {s(S_Q0)}, 10')
    b.b(f's_add_u32 m0, {s(S_T0)}, {R0 + 8192 * c}')
    b.b(f's_lshl_b32 {s(S_T0)}, {s(S_RS)}, 3')
    b.b(f's_mul_i32 {s(S_Q0)}, {s(S_Q0)}, {s(S_T0)}')
    b.b(f's_add_u32 {s(S_Q0)}, {s(S_Q0)}, {s(S_Q1)}')
    b.b(f'buffer_load_dwordx4 {v(V_WD)}, {s(SRD_W, 4)}, {s(S_Q0)} offen lds', tag=tag)
    b.b.label(l1)


def l1_w_items(c):
    tag = f'x{c}'
    return [[f's_mul_i32 {s(S_Q1)}, {s(S_KC)}, {s(S_RS64)}',
             f's_lshl_b32 {s(S_Q0)}, {s(S_WGB)}, 10',
             f's_add_u32 m0, {s(S_Q0)}, {R0 + 8192 * c}',
             f's_lshl_b32 {s(S_Q0)}, {s(S_RS)}, 3',
             f's_mul_i32 {s(S_Q0)}, {s(S_Q0)}, {s(S_WGB)}',
             f's_add_u32 {s(S_Q0)}, {s(S_Q0)}, {s(S_Q1)}',
             (tag, f'buffer_load_dwordx4 {v(V_WD)}, {s(SRD_W, 4)}, {s(S_Q0)} offen lds')],
            [(tag, f'buffer_load_dwordx4 {v(V_WD + 1)}, {s(SRD_W, 4)}, {s(S_Q0)} offen offset:1024 lds')]]


def a_slot(kind):
    return {'h0': (13, R1), 'h1': (13, R1 + 4096), 'f0': (13, R1), 'f1': (14, R2), 'f2': (14, R2 + 8192)}[kind]


def a_piece_items(c, tb, slot, off=0):
    sh, base = a_slot(slot)
    it = []
    for i in range(4):
        l = []
        if i == 0:
            l = [f's_add_u32 {s(S_Q0)}, {s(S_ROT2)}, {c}',
                 f's_and_b32 {s(S_Q0)}, {s(S_Q0)}, 7',
                 f's_lshl_b32 {s(S_Q0)}, {s(S_Q0)}, 7',
                 f's_add_u32 {s(S_Q0)}, {s(S_Q0)}, {s(S_AS)}']
            if tb:
                l.append(f's_add_u32 {s(S_Q0)}, {s(S_Q0)}, {32 * 4096}')
            l += [f's_lshl_b32 {s(S_Q1)}, {s(S_W)}, {sh}',
                  f's_add_u32 m0, {s(S_Q1)}, {base + off}']
        l.append((f'a{c}_{tb}', f'buffer_load_dwordx4 {v(V_AD + i)}, {s(SRD_A, 4)}, {s(S_Q0)} offen offset:{1024 * i}{NT(1)} lds'))
        it.append(l)
    return it


def a_piece_read(b, c, tb, slot, off=0):
    sh, base = a_slot(slot)
    with b.atomic():
        b(f's_lshl_b32 {s(S_T0)}, {s(S_W)}, {sh}')
        b(f's_add_u32 {s(S_T0)}, {s(S_T0)}, {base + off}')
        for kk in range(4):
            b(f'v_add_u32 {v(V_T0 + kk)}, {s(S_T0)}, {v(V_AR + kk)}')
        for kk in range(4):
            r = 8 * (4 * c + kk) + 4 * tb
            b(f'ds_read_b128 {a(r, 4)}, {v(V_T0 + kk)}')


def a_chunk_items(c, slot):
    return a_piece_items(c, 0, slot) + a_piece_items(c, 1, slot, 4096)


def a_chunk_read(b, c, slot):
    sh, base = a_slot(slot)
    with b.atomic():
        b(f's_lshl_b32 {s(S_T0)}, {s(S_W)}, {sh}')
        b(f's_add_u32 {s(S_T0)}, {s(S_T0)}, {base}')
        for kk in range(4):
            b(f'v_add_u32 {v(V_T0 + kk)}, {s(S_T0)}, {v(V_AR + kk)}')
        for kk in range(4):
            for tb in range(2):
                r = 8 * (4 * c + kk) + 4 * tb
                b(f'ds_read_b128 {a(r, 4)}, {v(V_T0 + kk)} offset:{4096 * tb}')


def stamp(b, idx):
    if not OPT['stamps']:
        return
    lock = b.atomic() if hasattr(b, 'atomic') else None
    if lock:
        lock.__enter__()
    b(f's_memrealtime {s(S_VCC2, 2)}' if OPT['stamps'] == 1 else f's_memtime {s(S_VCC2, 2)}')
    b('s_waitcnt lgkmcnt(0)')
    b(f's_lshl_b32 {s(S_T6)}, {s(S_WG)}, 2')
    b(f's_add_u32 {s(S_T6)}, {s(S_T6)}, {s(S_W)}')
    b(f's_lshl_b32 {s(S_T6)}, {s(S_T6)}, 7')
    b(f's_add_u32 {s(S_T6)}, {s(S_T6)}, {WS_DBG + 4 * idx}')
    b(f'v_mov_b32 {v(V_POLL + 1)}, {s(S_VCC2)}')
    b(f'buffer_store_dword {v(V_POLL + 1)}, off, {s(SRD_WS, 4)}, {s(S_T6)}')
    if lock:
        lock.__exit__()


def s1_issue(g, b):
    from phase23 import s1_issue as f
    f(g, b)


def slow_mark(idx):
    if not OPT['stamps']:
        return ''
    return f'''    s_lshl_b32 {s(S_T6)}, {s(S_WG)}, 2
    s_add_u32 {s(S_T6)}, {s(S_T6)}, {s(S_W)}
    s_lshl_b32 {s(S_T6)}, {s(S_T6)}, 7
    s_add_u32 {s(S_T6)}, {s(S_T6)}, {WS_DBG + 4 * idx}
    s_sub_u32 {s(S_VCC2)}, {SPIN_MAX + 1}, {s(S_CNT)}
    v_mov_b32 {v(V_POLL + 1)}, {s(S_VCC2)}
    buffer_store_dword {v(V_POLL + 1)}, off, {s(SRD_WS, 4)}, {s(S_T6)}
'''


class Gen:
    def __init__(self):
        self.blocks = []
        self.slow = []
        self.nlab = 0

    def blk(self, name):
        b = Block(name)
        self.blocks.append(b)
        return b

    def lab(self, p='L'):
        self.nlab += 1
        return f'{p}_{self.nlab}'

    def poll(self, b, vaddr, soff, vtmp, first_issued=False, skip_if_zero=None, mark=31):
        cont = self.lab('PC')
        slow = self.lab('PS')
        lock = b.atomic() if hasattr(b, 'atomic') else None
        if lock:
            lock.__enter__()
        if not first_issued:
            b(f'buffer_load_dword {v(vtmp)}, {v(vaddr)}, {s(SRD_WS, 4)}, {soff} offen sc1')
        b(f'v_cmp_ne_u32 vcc, {s(S_N)}, {v(vtmp)}')
        if skip_if_zero is not None:
            b(f's_cmp_eq_u32 {s(skip_if_zero)}, 0')
            b(f's_cbranch_scc1 {cont}')
        b(f's_cbranch_vccnz {slow}')
        b.label(cont)
        if lock:
            lock.__exit__()
        self.slow.append(f'''{slow}:
    s_mov_b32 {s(S_CNT)}, {SPIN_MAX}
{slow}_l:
    s_sleep 1
    buffer_load_dword {v(vtmp)}, {v(vaddr)}, {s(SRD_WS, 4)}, {soff} offen sc1
    s_waitcnt vmcnt(0)
{slow_mark(mark)}    v_cmp_ne_u32 vcc, {s(S_N)}, {v(vtmp)}
    s_cbranch_vccz {cont}
    s_sub_u32 {s(S_CNT)}, {s(S_CNT)}, 1
    s_cmp_lg_u32 {s(S_CNT)}, 0
    s_cbranch_scc1 {slow}_l
    s_branch {cont}''')

    def prologue(self):
        b = St(self, 'PRO')
        b(f's_cmp_ge_u32 {s(S_WG)}, 256')
        b('s_cbranch_scc1 L_END')
        b('s_load_dwordx16 s[16:31], s[0:1], 0x0')
        b('s_load_dwordx8 s[32:39], s[0:1], 0x40')
        b(f'v_lshrrev_b32 {v(V_T0)}, 6, {v(0)}')
        b(f'v_and_b32 {v(V_LANE)}, 63, {v(0)}')
        b(f's_and_b32 {s(S_T0)}, {s(S_WG)}, 7')
        b(f'v_readfirstlane_b32 {s(S_W)}, {v(V_T0)}')
        b(f's_lshr_b32 {s(S_T1)}, {s(S_WG)}, 3')
        b(f's_lshr_b32 {s(S_T2)}, {s(S_T1)}, 2')
        b(f's_and_b32 {s(S_T1)}, {s(S_T1)}, 3')
        b(f's_and_b32 {s(S_T3)}, {s(S_T0)}, 1')
        b(f's_lshr_b32 {s(S_T0)}, {s(S_T0)}, 1')
        b(f's_lshl3_add_u32 {s(S_RB)}, {s(S_T3)}, {s(S_T2)}')
        b(f's_lshl2_add_u32 {s(S_CG)}, {s(S_T0)}, {s(S_T1)}')
        b(f's_lshl3_add_u32 {s(S_I)}, {s(S_T0)}, {s(S_T2)}')
        b(f's_lshl2_add_u32 {s(S_J)}, {s(S_T3)}, {s(S_T1)}')
        b(f's_lshl1_add_u32 {s(S_ROT)}, {s(S_T1)}, {s(S_T2)}')
        b(f's_and_b32 {s(S_ROT)}, {s(S_ROT)}, 7')
        if OPT.get('map', 0):
            b(f's_and_b32 {s(S_T4)}, {s(S_WG)}, 7')
            b(f's_lshr_b32 {s(S_T5)}, {s(S_WG)}, 6')
            b(f's_lshl2_add_u32 {s(S_I)}, {s(S_T4)}, {s(S_T5)}')
            b(f's_bfe_u32 {s(S_J)}, {s(S_WG)}, 0x30003')
            b(f's_lshl1_add_u32 {s(S_ROT2)}, {s(S_T5)}, {s(S_J)}')
            b(f's_and_b32 {s(S_ROT2)}, {s(S_ROT2)}, 7')
        else:
            b(f's_mov_b32 {s(S_ROT2)}, {s(S_ROT)}')
        if not OPT['rot']:
            b(f's_mov_b32 {s(S_ROT)}, 0')
        b(f'v_lshrrev_b32 {v(V_T0)}, 3, {v(V_LANE)}')
        b(f'v_and_b32 {v(V_T0 + 1)}, 7, {v(V_LANE)}')
        b(f'v_lshrrev_b32 {v(V_T0 + 2)}, 4, {v(V_LANE)}')
        b(f'v_xor_b32 {v(V_T0 + 1)}, {v(V_T0 + 1)}, {v(V_T0 + 2)}')
        b(f'v_lshlrev_b32 {v(V_T0 + 1)}, 4, {v(V_T0 + 1)}')
        b(f's_cmp_eq_u32 {s(S_W)}, 2')
        b(f's_cselect_b32 {s(S_T0)}, 64, 0')
        b(f'v_xor_b32 {v(V_T0 + 1)}, {s(S_T0)}, {v(V_T0 + 1)}')
        b(f'v_lshl_add_u32 {v(V_XD)}, {v(V_T0)}, 10, {v(V_T0 + 1)}')
        b(f'v_xor_b32 {v(V_XD + 1)}, 64, {v(V_XD)}')
        b(f's_mul_i32 {s(S_XLW)}, {s(S_W)}, 6')
        b(f's_cmp_eq_u32 {s(S_W)}, 2')
        b(f's_cselect_b32 {s(S_XLW)}, 11, {s(S_XLW)}')
        b(f's_lshl_b32 {s(S_XG)}, {s(S_XLW)}, 13')
        b(f's_lshl_b32 {s(S_T0)}, {s(S_RB)}, 17')
        b(f's_add_u32 {s(S_XG)}, {s(S_XG)}, {s(S_T0)}')
        b(f's_lshl_b32 {s(S_XLW)}, {s(S_XLW)}, 10')
        b(f's_mul_i32 {s(S_WGB)}, {s(S_W)}, 3')
        b(f's_lshl_b32 {s(S_T0)}, {s(S_CG)}, 7')
        b(f's_add_u32 {s(S_T1)}, {s(S_T0)}, 1344')
        b(f's_sub_u32 {s(S_T2)}, {s(S_T0)}, 1024')
        b(f's_cmp_le_u32 {s(S_CG)}, 10')
        b(f's_cselect_b32 {s(S_COL)}, {s(S_T1)}, {s(S_T2)}')
        b(f's_mov_b32 {s(S_RS)}, 3072')
        b(f's_cmov_b32 {s(S_RS)}, 2752')
        b(f's_cselect_b32 {s(S_T3)}, 1, 0')
        b(f's_cmp_eq_u32 {s(S_CG)}, 0')
        b(f's_cselect_b32 {s(S_MASK)}, 32, 0')
        wd_voffsets(b)
        b(f's_lshl_b32 {s(S_WL)}, {s(S_W)}, 11')
        b(f's_lshl2_add_u32 {s(S_TB)}, {s(S_RB)}, {s(S_W)}')
        if OPT.get('cpf', 0):
            b(f's_getpc_b64 {s(62, 2)}')
            b.label('L_pc0')
            b(f's_lshr_b32 {s(S_T0)}, {s(S_WG)}, 3')
            b(f's_lshl2_add_u32 {s(S_T0)}, {s(S_T0)}, {s(S_W)}')
            b(f's_lshl_b32 {s(S_T0)}, {s(S_T0)}, 9')
            b(f's_min_u32 {s(S_T0)}, {s(S_T0)}, L_code_end-L_pc0-512')
            b(f'v_lshlrev_b32 {v(V_T0 + 3)}, 3, {v(V_LANE)}')
            b(f'v_add_u32 {v(V_T0 + 3)}, {s(S_T0)}, {v(V_T0 + 3)}')
            b(f'global_load_dwordx2 {v(250, 2)}, {v(V_T0 + 3)}, {s(62, 2)}', nodst=True)
        b('s_waitcnt lgkmcnt(0)')
        srd(b, SRD_X, P_X, 2048 * 1024)
        set_w_srd(b, S_T3)
        if OPT.get('sym', 1):
            dma4_voffsets(b, V_XD, 1024)
            b(f's_lshl_b32 {s(S_XL)}, {s(S_W)}, 12')
            b(f's_add_u32 {s(S_XL)}, {s(S_XL)}, {R1}')
            b(f's_lshl_b32 {s(S_XS)}, {s(S_TB)}, 15')
            for c in range(3):
                b.add(x_chunk_items(c, f'x{c}'))
                b.add(w_piece_items(c, R0, f'x{c}'))
            b.flush()
        else:
            b(f's_cmp_eq_u32 {s(S_W)}, 3')
            b('s_cbranch_scc1 L_noload0')
            n0 = len(b.b.ins)
            for c in range(2):
                b.add(l1_items(c))
                b.flush()
                l1_item5(self, b, c)
                b.add(l1_w_items(c))
                b.flush()
            for i in b.b.ins[n0:]:
                i.meta['loader'] = True
            b.label('L_noload0')
        if OPT.get('wsoff', 0):
            off = OPT['wsoff'] << 20
            b(f's_add_u32 {s(P_WS)}, {s(P_WS)}, {hex(off)}')
            b(f's_addc_u32 {s(P_WS + 1)}, {s(P_WS + 1)}, 0')
        srd(b, SRD_WS, P_WS, WS_SIZE - (OPT.get('wsoff', 0) << 20))
        b(f'buffer_load_dword {v(V_E)}, off, {s(SRD_WS, 4)}, 0 sc1', tag='epoch')
        stamp(b, 0)
        b(f's_mov_b32 {s(S_LOG2E)}, {hex(f2u(LOG2E))}')
        b(f's_mov_b32 {s(S_EPS)}, {hex(f2u(1e-6))}')
        b(f'v_mov_b32 {v(V_GA)}, {hex(GELU_A)}')
        b(f'v_lshlrev_b32 {v(V_L16)}, 4, {v(V_LANE)}')
        b(f'v_lshlrev_b32 {v(V_L8)}, 3, {v(V_LANE)}')
        frag_read_addrs(b, V_AR)
        b(f's_lshl_b32 {s(S_T0)}, {s(S_W)}, 12')
        b(f's_add_u32 {s(S_T1)}, {s(S_T0)}, {R1}')
        for kk in range(4):
            b(f'v_add_u32 {v(V_XRO + kk)}, {s(S_T1)}, {v(V_AR + kk)}')
        tr_addr(b, V_WR, False)
        b(f'v_xor_b32 {v(V_WR + 1)}, 64, {v(V_WR)}')
        srd(b, SRD_A, P_WSP, 2048 * 4096)
        dma4_voffsets(b, V_AD, 4096)
        b(f'v_lshlrev_b32 {v(V_TCH)}, 7, {v(V_LANE)}')
        b(f's_lshl_b32 {s(S_AS)}, {s(S_I)}, 18')
        b(f's_lshl_b32 {s(S_T0)}, {s(S_W)}, 10')
        b(f's_add_u32 {s(S_AS)}, {s(S_AS)}, {s(S_T0)}')
        srd(b, SRD_T, P_BSP, 4096)
        b(f's_and_b32 {s(S_T0)}, {s(S_W)}, 1')
        b(f's_lshl_b32 {s(S_T0)}, {s(S_T0)}, 6')
        b(f's_lshl_b32 {s(S_T1)}, {s(S_I)}, 7')
        b(f's_add_u32 {s(S_T0)}, {s(S_T0)}, {s(S_T1)}')
        b(f'v_and_b32 {v(V_T0)}, 31, {v(V_LANE)}')
        b(f'v_lshlrev_b32 {v(V_T0)}, 1, {v(V_T0)}')
        b(f'buffer_load_ushort {v(V_BSP)}, {v(V_T0)}, {s(SRD_T, 4)}, {s(S_T0)} offen')
        b(f's_lshl_b32 {s(S_T0)}, {s(S_CG)}, 7')
        b(f's_add_u32 {s(S_D2COL)}, {s(S_T0)}, 1024')
        b(f's_add_u32 {s(S_D3COL)}, {s(S_T0)}, 2048')
        b(f's_mov_b32 {s(S_D2SEL)}, 0')
        b(f's_mov_b32 {s(S_D3SEL)}, 0')
        b(f's_mov_b32 {s(S_D2MASK)}, 0')
        b(f's_mov_b32 {s(S_D3MASK)}, 0')
        b(f's_cmp_lt_u32 {s(S_CG)}, 8')
        b('s_cbranch_scc1 L_desc_done')
        b(f's_cmp_lt_u32 {s(S_CG)}, 11')
        b('s_cbranch_scc0 L_desc_cd')
        b(f's_sub_u32 {s(S_D2COL)}, {s(S_T0)}, 1024')
        b(f's_sub_u32 {s(S_D3COL)}, {s(S_T0)}, 1056')
        b(f's_mov_b32 {s(S_D3SEL)}, 1')
        b(f's_cmp_eq_u32 {s(S_CG)}, 8')
        b(f's_cselect_b32 {s(S_D3MASK)}, 32, 0')
        b('s_branch L_desc_done')
        b.label('L_desc_cd')
        b(f's_lshl_b32 {s(S_T1)}, {s(S_T0)}, 1')
        b(f's_sub_u32 {s(S_T1)}, {s(S_T1)}, 2464')
        b(f's_sub_u32 {s(S_T2)}, {s(S_T0)}, 672')
        b(f's_cmp_lt_u32 {s(S_CG)}, 14')
        b(f's_cselect_b32 {s(S_D2COL)}, {s(S_T1)}, {s(S_T2)}')
        b(f's_add_u32 {s(S_D3COL)}, {s(S_D2COL)}, 128')
        b(f's_mov_b32 {s(S_D2SEL)}, 1')
        b(f's_mov_b32 {s(S_D3SEL)}, 1')
        b.label('L_desc_done')
        for r in range(32):
            b(f'v_mov_b32 {v(V_ACC0 + r)}, 0')
        if not OPT.get('sym', 1):
            b(f's_cmp_eq_u32 {s(S_W)}, 3')
            b('s_cbranch_scc1 L_L1P')
        return b.b

    def prefetch_items(self):
        def touch(srdreg, mul, off=0):
            return [f's_mul_i32 {s(S_Q0)}, {s(S_WG)}, {mul}',
                    ('t', f'buffer_load_dword {v(V_DUM)}, {v(V_TCH)}, {s(srdreg, 4)}, {s(S_Q0)} offen offset:{off}', dict(nodst=True))]
        it = []
        pre = lambda ptr, n: [f's_mov_b32 {s(SRD_U)}, {s(ptr)}', f's_mov_b32 {s(SRD_U + 1)}, {s(ptr + 1)}',
                              f's_mov_b32 {s(SRD_U + 2)}, {hex(n)}', f's_mov_b32 {s(SRD_U + 3)}, 0x20000']
        it.append(pre(P_WQKV, 512 * 3072) + touch(SRD_U, 6144))
        it.append(pre(P_WIN, 512 * 2752) + touch(SRD_U, 5504))
        for k in range(4):
            it.append([f's_mul_i32 {s(S_Q0)}, {s(S_WG)}, 32768', f's_add_u32 {s(S_Q0)}, {s(S_Q0)}, {8192 * k}',
                       ('t', f'buffer_load_dword {v(V_DUM)}, {v(V_TCH)}, {s(SRD_A, 4)}, {s(S_Q0)} offen', dict(nodst=True))])
        it.append(pre(P_WOUT, 688 * 1024) + touch(SRD_U, 2752))
        it.append(pre(P_WO, 512 * 1024) + touch(SRD_U, 2048))
        return it

    def slab1(self, loader):
        b = St(self, 'L1L' if loader else 'L1P')
        if not loader:
            b.label('L_L1P')
            pf = self.prefetch_items() if OPT.get('pf', 1) else []
        n0 = b.mark()
        for c in range(8):
            if loader:
                b.wait_vm(f'x{c}')
            if c == 4:
                b(f'v_add_u32 {v(V_NON)}, {hex(NONCE_K)}, {v(V_E)}')
                b(f'v_readfirstlane_b32 {s(S_N)}, {v(V_NON)}')
            b.wait_lds()
            b('s_barrier')
            if OPT.get('l1st') and c in (0, 1, 2, 4, 6):
                stamp(b, {0: 13, 1: 14, 2: 15, 4: 19, 6: 22}[c])
            m5 = None
            if c <= 4:
                if OPT.get('sym', 1):
                    b.add(x_chunk_items(c + 3, f'x{c + 3}'))
                    b.add(w_piece_items(c + 3, R0, f'x{c + 3}'))
                elif loader:
                    b.add(l1_items(c + 2))
                    m5 = c + 2
                else:
                    b.add(pf[:2])
                    pf = pf[2:]
            else:
                if c == 5:
                    self.switch_slab(b, S_D2SEL, S_D2COL, S_D2MASK)
                for p in {5: (4, 5), 6: (6, 7), 7: ()}[c]:
                    b.add(w_piece_items(p, R2, 'w2'))
                if c == 7 and OPT.get('tch', 0) & 4:
                    self.w3_touch(b)
            b.pop(1)
            b.period = OPT.get('l1p', 6) if loader else 8
            for kk in range(4):
                K = 4 * c + kk
                b(f'ds_read_b128 {a(A_X + 4 * K, 4)}, {v(V_XRO + kk)}')
                wf = V_WF + 8 * (K & 3)
                for ch in range(2):
                    for t in range(2):
                        b(f'ds_read_b64_tr_b16 {v(wf + 4 * ch + 2 * t, 2)}, {v(V_WR + ch)} offset:{2048 * K + 512 * t}')
                if K >= 2:
                    self.mfma_pair_R(b, K - 2)
                if kk == 2 and m5 is not None:
                    b.flush()
                    l1_item5(self, b, m5)
                    b.add(l1_w_items(m5))
            b.flush()
            b.period = 0
            if c < 7:
                d = 16384 if (c + 1) % 4 != 0 else -49152
                for kk in range(4):
                    if d > 0:
                        b(f'v_add_u32 {v(V_XRO + kk)}, {d}, {v(V_XRO + kk)}')
                    else:
                        b(f'v_subrev_u32 {v(V_XRO + kk)}, {-d}, {v(V_XRO + kk)}')
        self.mfma_pair_R(b, 30)
        self.mfma_pair_R(b, 31)
        b.weave_from(n0, G=6)
        b.wait_lds()
        b('s_barrier')
        stamp(b, 1)
        b(f's_cmp_lt_u32 {s(S_CG)}, 8')
        b('s_cbranch_scc1 L_roleA')
        b(f's_cmp_lt_u32 {s(S_CG)}, 11')
        b('s_cbranch_scc1 L_roleB')
        b(f's_cmp_lt_u32 {s(S_CG)}, 14')
        b('s_cbranch_scc1 L_roleC')
        b('s_branch L_roleD')
        return b.b

    def switch_slab(self, b, sel, col, mask):
        with b.atomic():
            b(f's_cmp_eq_u32 {s(sel)}, 0')
            b(f's_mov_b32 {s(S_RS)}, 2752')
            b(f's_cmov_b32 {s(S_RS)}, 3072')
            b(f's_mov_b32 {s(S_COL)}, {s(col)}')
            b(f's_mov_b32 {s(S_MASK)}, {s(mask)}')
            set_w_srd(b, sel)
            wd_voffsets(b)

    def mfma_pair_R(self, b, K):
        wf = V_WF + 8 * (K & 3)
        for ch in range(2):
            acc = V_ACC0 + 16 * ch
            b(f'v_mfma_f32_32x32x16_bf16 {v(acc, 16)}, {v(wf + 4 * ch, 4)}, {a(A_X + 4 * K, 4)}, {v(acc, 16)}')

    def touch_setup(self, b):
        b(f'v_lshrrev_b32 {v(V_T0)}, 3, {v(V_LANE)}')
        b(f'v_lshlrev_b32 {v(V_T0)}, 12, {v(V_T0)}')
        b(f'v_and_b32 {v(V_T0 + 1)}, 7, {v(V_LANE)}')
        b(f'v_lshl_add_u32 {v(V_TCH)}, {v(V_T0 + 1)}, 7, {v(V_T0)}')
        b(f'v_lshlrev_b32 {v(V_TW1)}, 10, {v(V_LANE)}')
        b(f'v_mov_b32 {v(V_TW2)}, {v(V_TW1)}')
        b(f'v_mov_b32 {v(V_T0)}, {hex(OOB)}')
        b(f'v_cmp_lt_u32 vcc, 21, {v(V_LANE)}')
        b(f'v_cndmask_b32 {v(V_TW1)}, {v(V_TW1)}, {v(V_T0)}, vcc')
        b(f'v_cmp_lt_u32 vcc, 15, {v(V_LANE)}')
        b(f'v_cndmask_b32 {v(V_TW2)}, {v(V_TW2)}, {v(V_T0)}, vcc')
        srd(b, SRD_U, P_WOUT, 688 * 1024)
        srd(b, SRD_X, P_WO, 512 * 1024)

    def touch_items(self):
        T = OPT.get('tch', 0)
        it = []
        if T & 1:
            for k in range(2):
                it.append([f's_and_b32 {s(S_Q0)}, {s(S_J)}, 3',
                           f's_lshl_b32 {s(S_Q0)}, {s(S_Q0)}, 16',
                           f's_add_u32 {s(S_Q0)}, {s(S_Q0)}, {s(S_AS)}'] +
                          ([f's_add_u32 {s(S_Q0)}, {s(S_Q0)}, {8 * 4096}'] if k else []) +
                          [('t', f'buffer_load_dword {v(V_DUM)}, {v(V_TCH)}, {s(SRD_A, 4)}, {s(S_Q0)} offen', dict(nodst=True))])
        if T & 8:
            it.append([f's_lshl2_add_u32 {s(S_Q0)}, {s(S_WG)}, {s(S_W)}',
                       f's_lshl_b32 {s(S_Q0)}, {s(S_Q0)}, 13',
                       f'v_lshlrev_b32 {v(V_T0)}, 7, {v(V_LANE)}',
                       ('t', f'buffer_load_dword {v(V_DUM)}, {v(V_T0)}, {s(SRD_A, 4)}, {s(S_Q0)} offen', dict(nodst=True))])
        if T & 2:
            it.append([f's_lshr_b32 {s(S_Q0)}, {s(S_WG)}, 5',
                       f's_mul_i32 {s(S_Q1)}, {s(S_Q0)}, 86',
                       f's_mul_i32 {s(S_Q0)}, {s(S_W)}, 22',
                       f's_add_u32 {s(S_Q0)}, {s(S_Q0)}, {s(S_Q1)}',
                       f's_lshl_b32 {s(S_Q0)}, {s(S_Q0)}, 10',
                       f's_lshl_b32 {s(S_Q1)}, {s(S_J)}, 7',
                       f's_add_u32 {s(S_Q0)}, {s(S_Q0)}, {s(S_Q1)}',
                       ('t', f'buffer_load_dword {v(V_DUM)}, {v(V_TW1)}, {s(SRD_U, 4)}, {s(S_Q0)} offen', dict(nodst=True))])
            it.append([f's_lshr_b32 {s(S_Q0)}, {s(S_WG)}, 5',
                       f's_lshl_b32 {s(S_Q0)}, {s(S_Q0)}, 2',
                       f's_add_u32 {s(S_Q0)}, {s(S_Q0)}, {s(S_W)}',
                       f's_lshl_b32 {s(S_Q0)}, {s(S_Q0)}, 14',
                       f's_lshl_b32 {s(S_Q1)}, {s(S_J)}, 7',
                       f's_add_u32 {s(S_Q0)}, {s(S_Q0)}, {s(S_Q1)}',
                       ('t', f'buffer_load_dword {v(V_DUM)}, {v(V_TW2)}, {s(SRD_X, 4)}, {s(S_Q0)} offen', dict(nodst=True))])
        return it

    def w3_touch(self, b):
        with b.atomic():
            b(f's_cmp_eq_u32 {s(S_D3SEL)}, 0')
            b(f's_cselect_b32 {s(SRD_U)}, {s(P_WQKV)}, {s(P_WIN)}')
            b(f's_cselect_b32 {s(SRD_U + 1)}, {s(P_WQKV + 1)}, {s(P_WIN + 1)}')
            b(f's_mov_b32 {s(SRD_U + 2)}, {hex(512 * 2752)}')
            b(f's_cmov_b32 {s(SRD_U + 2)}, {hex(512 * 3072)}')
            b(f's_mov_b32 {s(SRD_U + 3)}, 0x20000')
            b(f's_mov_b32 {s(S_T0)}, 2752')
            b(f's_cmov_b32 {s(S_T0)}, 3072')
            b(f'v_and_b32 {v(V_T0)}, 15, {v(V_LANE)}')
            b(f'v_mul_lo_u32 {v(V_T0)}, {v(V_T0)}, {s(S_T0)}')
            b(f'v_bfe_u32 {v(V_T0 + 1)}, {v(V_LANE)}, 4, 1')
            b(f'v_mul_u32_u24 {v(V_T0 + 1)}, 124, {v(V_T0 + 1)}')
            b(f'v_add_u32 {v(V_T0)}, {v(V_T0)}, {v(V_T0 + 1)}')
            b(f's_max_i32 {s(S_T1)}, {s(S_D3COL)}, 0')
            b(f'v_add_u32 {v(V_T0)}, {s(S_T1)}, {v(V_T0)}')
            b(f'v_mov_b32 {v(V_T0 + 1)}, {hex(OOB)}')
            b(f'v_cmp_lt_u32 vcc, 31, {v(V_LANE)}')
            b(f'v_cndmask_b32 {v(V_T0)}, {v(V_T0)}, {v(V_T0 + 1)}, vcc')
            b(f's_lshr_b32 {s(S_T1)}, {s(S_WG)}, 5')
            b(f's_lshl2_add_u32 {s(S_T1)}, {s(S_T1)}, {s(S_W)}')
            b(f's_lshl_b32 {s(S_T1)}, {s(S_T1)}, 4')
            b(f's_mul_i32 {s(S_T1)}, {s(S_T1)}, {s(S_T0)}')
            b(f'buffer_load_dword {v(V_DUM)}, {v(V_T0)}, {s(SRD_U, 4)}, {s(S_T1)} offen', tag='t', nodst=True)

    def post_l1(self, b, role):
        it = []
        self.touch_setup(b)
        for p in (0, 1, 2, 3):
            it += w_piece_items(p, R2, 'w2')
        it += self.touch_items()
        if OPT.get('c0early', 1) == 1:
            it += a_chunk_items(0, 'f0')
        return it

    def w3_items(self, b):
        b.flush()
        self.switch_slab(b, S_D3SEL, S_D3COL, S_D3MASK)
        for p in range(8):
            b.add(w_piece_items(p, R0, 'w3'))
        if OPT.get('c0early', 1) == 2:
            b.add(a_chunk_items(0, 'f0'))

    def set_wr(self, b, region):
        with b.atomic():
            tr_addr(b, V_WR, False)
            if region:
                b(f'v_add_u32 {v(V_WR)}, {region}, {v(V_WR)}')
            b(f'v_xor_b32 {v(V_WR + 1)}, 64, {v(V_WR)}')

    def main_loop(self, b, orient, hooks=None, pop_every=1):
        hooks = hooks or {}
        D = 2

        def rd(K):
            wf = V_WF + 8 * (K & 3)
            for ch in range(2):
                for t in range(2):
                    b(f'ds_read_b64_tr_b16 {v(wf + 4 * ch + 2 * t, 2)}, {v(V_WR + ch)} offset:{2048 * K + 512 * t}')
        sv = b.period
        b.period = 0
        n0 = b.mark()
        for K in range(D):
            rd(K)
        for K in range(32):
            if K + D < 32:
                rd(K + D)
            wf = V_WF + 8 * (K & 3)
            x = a(A_X + 4 * K, 4)
            for ch in range(2):
                acc = V_ACC1 + 16 * ch
                c = '0' if K == 0 else v(acc, 16)
                if orient == 'T':
                    b(f'v_mfma_f32_32x32x16_bf16 {v(acc, 16)}, {v(wf + 4 * ch, 4)}, {x}, {c}')
                else:
                    b(f'v_mfma_f32_32x32x16_bf16 {v(acc, 16)}, {x}, {v(wf + 4 * ch, 4)}, {c}')
            for fn in hooks.get(K, []):
                fn(b, 4 if K + D < 32 else 0)
            if K % pop_every == pop_every - 1:
                b.pop(1)
        b.weave_from(n0, G=5)
        b.period = sv

    def apipe_hooks(self, first_K, step):
        hooks = {}

        def mk_issue(p):
            return lambda b, younger: b.add(a_piece_items(p >> 1, p & 1, f'h{p & 1}'))

        def mk_move(p):
            def f(b, younger):
                b.ensure(f'a{p >> 1}_{p & 1}')
                b.wait_vm(f'a{p >> 1}_{p & 1}')
                a_piece_read(b, p >> 1, p & 1, f'h{p & 1}')
            return f

        def mk_refill(p):
            def f(b, younger):
                b(f's_waitcnt lgkmcnt({younger})')
                b.add(a_piece_items(p >> 1, p & 1, f'h{p & 1}'))
            return f
        return hooks, mk_issue, mk_move, mk_refill

    def z2_epilogue(self, b, mid=None):
        for g in range(4):
            gelu_group(b, [V_ACC0 + 8 * g + k for k in range(8)], V_TMP)
            if g == 0 and mid:
                mid()
        s1, s2 = V_ST, V_ST + 1
        t = V_TMP
        b(f'v_add_f32 {v(s1)}, {v(V_ACC0)}, {v(V_ACC0 + 1)}')
        b(f'v_mul_f32 {v(s2)}, {v(V_ACC0)}, {v(V_ACC0)}')
        b(f'v_add_f32 {v(t)}, {v(V_ACC0 + 2)}, {v(V_ACC0 + 3)}')
        b(f'v_mul_f32 {v(t + 1)}, {v(V_ACC0 + 1)}, {v(V_ACC0 + 1)}')
        for k in range(4, 32, 2):
            b(f'v_add_f32 {v(s1)}, {v(s1)}, {v(V_ACC0 + k)}')
            b(f'v_add_f32 {v(t)}, {v(t)}, {v(V_ACC0 + k + 1)}')
        for k in range(2, 32, 2):
            b(f'v_fmac_f32 {v(s2)}, {v(V_ACC0 + k)}, {v(V_ACC0 + k)}')
            b(f'v_fmac_f32 {v(t + 1)}, {v(V_ACC0 + k + 1)}, {v(V_ACC0 + k + 1)}')
        with b.atomic():
            b(f'v_add_f32 {v(s1)}, {v(s1)}, {v(t)}')
            b(f'v_add_f32 {v(s2)}, {v(s2)}, {v(t + 1)}')
            b(f'v_permlane32_swap_b32 {v(s1)}, {v(s2)}')
            b(f'v_add_f32 {v(s1)}, {v(s1)}, {v(s2)}')
            b(f'v_mov_b32 {v(s2)}, {s(S_N)}')
            b(f's_mul_i32 {s(S_T0)}, {s(S_TB)}, 5632')
            b(f's_lshl_b32 {s(S_T1)}, {s(S_CG)}, 9')
            b(f's_add_u32 {s(S_T0)}, {s(S_T0)}, {s(S_T1)}')
            b(f's_add_u32 {s(S_T0)}, {s(S_T0)}, {WS_STATS}')
            b(f'buffer_store_dwordx2 {v(s1, 2)}, {v(V_L8)}, {s(SRD_WS, 4)}, {s(S_T0)} offen sc1', tag='st')
        stamp(b, 2)

    def stats_issue(self, b):
        with b.atomic():
            b(f's_mul_i32 {s(S_T5)}, {s(S_TB)}, 5632')
            b(f's_add_u32 {s(S_T5)}, {s(S_T5)}, {WS_STATS}')
            b(f's_add_u32 {s(S_T4)}, {s(S_T5)}, 4096')
            for js in range(11):
                so = S_T5 if js < 8 else S_T4
                off = 512 * js if js < 8 else 512 * js - 4096
                b(f'buffer_load_dwordx2 {v(V_STAT + 2 * js, 2)}, {v(V_L8)}, {s(SRD_WS, 4)}, {s(so)} offen offset:{off} sc1')

    def stats_check_code(self, b):
        t = V_TMP
        b(f'v_min3_u32 {v(t)}, {v(V_STAT + 1)}, {v(V_STAT + 3)}, {v(V_STAT + 5)}')
        b(f'v_max3_u32 {v(t + 1)}, {v(V_STAT + 1)}, {v(V_STAT + 3)}, {v(V_STAT + 5)}')
        for js in range(3, 11, 2):
            b(f'v_min3_u32 {v(t)}, {v(t)}, {v(V_STAT + 2 * js + 1)}, {v(V_STAT + 2 * js + 3)}')
            b(f'v_max3_u32 {v(t + 1)}, {v(t + 1)}, {v(V_STAT + 2 * js + 1)}, {v(V_STAT + 2 * js + 3)}')
        b(f'v_xor_b32 {v(t)}, {s(S_N)}, {v(t)}')
        b(f'v_xor_b32 {v(t + 1)}, {s(S_N)}, {v(t + 1)}')
        b(f'v_or_b32 {v(t)}, {v(t)}, {v(t + 1)}')
        b(f'v_cmp_ne_u32 vcc, 0, {v(t)}')

    def z2_norm(self, b, after_check=None):
        cont, slow = self.lab('ZC'), self.lab('ZS')
        with b.atomic():
            self.stats_check_code(b)
            b(f's_cbranch_vccnz {slow}')
            b.label(cont)
        if after_check:
            after_check()
        sb = Block('tmp')
        sb(f's_sleep 1')
        sb(f's_mul_i32 {s(S_T5)}, {s(S_TB)}, 5632')
        sb(f's_add_u32 {s(S_T5)}, {s(S_T5)}, {WS_STATS}')
        sb(f's_add_u32 {s(S_T4)}, {s(S_T5)}, 4096')
        for js in range(11):
            so = S_T5 if js < 8 else S_T4
            off = 512 * js if js < 8 else 512 * js - 4096
            sb(f'buffer_load_dwordx2 {v(V_STAT + 2 * js, 2)}, {v(V_L8)}, {s(SRD_WS, 4)}, {s(so)} offen offset:{off} sc1')
        sb('s_waitcnt vmcnt(0)')
        self.stats_check_code(sb)
        txt = '\n'.join('    ' + i.text for i in sb.ins)
        self.slow.append(f'''{slow}:
    s_mov_b32 {s(S_CNT)}, {SPIN_MAX}
{slow}_l:
{txt}
{slow_mark(30)}    s_cbranch_vccz {cont}
    s_sub_u32 {s(S_CNT)}, {s(S_CNT)}, 1
    s_cmp_lg_u32 {s(S_CNT)}, 0
    s_cbranch_scc1 {slow}_l
    s_branch {cont}''')
        t = V_TMP
        b(f'v_add_f32 {v(t)}, {v(V_STAT)}, {v(V_STAT + 2)}')
        b(f'v_add_f32 {v(t + 1)}, {v(V_STAT + 4)}, {v(V_STAT + 6)}')
        for js in range(4, 11, 2):
            b(f'v_add_f32 {v(t)}, {v(t)}, {v(V_STAT + 2 * js)}')
            if js + 1 < 11:
                b(f'v_add_f32 {v(t + 1)}, {v(t + 1)}, {v(V_STAT + 2 * js + 2)}')
        b(f'v_add_f32 {v(t)}, {v(t)}, {v(t + 1)}')
        b(f'v_mov_b32 {v(t + 1)}, {v(t)}')
        b(f'v_permlane32_swap_b32 {v(t)}, {v(t + 1)}')
        b(f'v_mul_f32 {v(t)}, {hex(f2u(1.0 / 688))}, {v(t)}')
        b(f'v_mul_f32 {v(t + 1)}, {hex(f2u(1.0 / 688))}, {v(t + 1)}')
        b(f'v_fma_f32 {v(t + 1)}, -{v(t)}, {v(t)}, {v(t + 1)}')
        b(f'v_max_f32 {v(t + 1)}, 0, {v(t + 1)}')
        b(f'v_add_f32 {v(t + 1)}, {hex(f2u(1e-5))}, {v(t + 1)}')
        b(f'v_rsq_f32 {v(t + 1)}, {v(t + 1)}')
        b(f'v_mul_f32 {v(t)}, {v(t)}, {v(t + 1)}')
        b(f'v_sub_f32 {v(t)}, 0, {v(t)}')
        w0 = t + 2
        r0 = t + 6
        with b.atomic():
            b(f's_lshl_b32 {s(S_T0)}, {s(S_W)}, 14')
            b(f's_add_u32 {s(S_T0)}, {s(S_T0)}, {R2 + 8192}')
            b(f'v_and_b32 {v(w0)}, 31, {v(V_LANE)}')
            b(f'v_lshrrev_b32 {v(w0 + 1)}, 5, {v(V_LANE)}')
            b(f'v_and_b32 {v(w0 + 2)}, 15, {v(V_LANE)}')
            b(f'v_xor_b32 {v(w0 + 1)}, {v(w0 + 1)}, {v(w0 + 2)}')
            b(f'v_lshlrev_b32 {v(w0 + 1)}, 3, {v(w0 + 1)}')
            b(f'v_lshl_add_u32 {v(w0)}, {v(w0)}, 7, {v(w0 + 1)}')
            b(f'v_add_u32 {v(w0)}, {s(S_T0)}, {v(w0)}')
            b(f'v_bfe_u32 {v(r0)}, {v(V_LANE)}, 2, 2')
            b(f'v_lshrrev_b32 {v(r0 + 1)}, 5, {v(V_LANE)}')
            b(f'v_lshl_add_u32 {v(r0)}, {v(r0 + 1)}, 3, {v(r0)}')
            b(f'v_bfe_u32 {v(r0 + 1)}, {v(V_LANE)}, 4, 1')
            b(f'v_and_b32 {v(r0 + 2)}, 3, {v(V_LANE)}')
            b(f'v_lshl_add_u32 {v(r0 + 1)}, {v(r0 + 1)}, 2, {v(r0 + 2)}')
            b(f'v_xor_b32 {v(r0 + 1)}, {v(r0 + 1)}, {v(r0)}')
            b(f'v_lshlrev_b32 {v(r0 + 1)}, 3, {v(r0 + 1)}')
            b(f'v_lshl_add_u32 {v(r0)}, {v(r0)}, 7, {v(r0 + 1)}')
            b(f'v_add_u32 {v(r0)}, {s(S_T0)}, {v(r0)}')
        ra = r0 + 1
        for bb in range(2):
            for tt in range(2):
                b(f'v_xor_b32 {v(ra + 2 * bb + tt)}, {8 * ((8 * bb) ^ (4 * tt))}, {v(r0)}')
        pk = V_PV
        for bb in range(2):
            for j in range(4):
                r = V_ACC0 + 16 * bb + 4 * j
                for k in range(4):
                    b(f'v_fma_f32 {v(r + k)}, {v(r + k)}, {v(t + 1)}, {v(t)}')
                b(f'v_cvt_pk_bf16_f32 {v(pk + 8 * bb + 2 * j)}, {v(r)}, {v(r + 1)}')
                b(f'v_cvt_pk_bf16_f32 {v(pk + 8 * bb + 2 * j + 1)}, {v(r + 2)}, {v(r + 3)}')
                K = 8 * bb + 2 * j
                if K:
                    b(f'v_xor_b32 {v(w0 + 1)}, {8 * K}, {v(w0)}')
                    ad = w0 + 1
                else:
                    ad = w0
                b(f'ds_write_b64 {v(ad)}, {v(pk + 8 * bb + 2 * j, 2)}')
        b.wait_lds()
        fr = V_TMP + 16
        for bb in range(2):
            for kq in range(2):
                for tt in range(2):
                    b(f'ds_read_b64_tr_b16 {v(fr + 8 * bb + 4 * kq + 2 * tt, 2)}, {v(ra + 2 * bb + tt)} offset:{512 * tt + 2048 * kq}')
        with b.atomic():
            b(f's_lshl_b32 {s(S_T0)}, {s(S_CG)}, 18')
            b(f's_lshl_b32 {s(S_T1)}, {s(S_TB)}, 11')
            b(f's_add_u32 {s(S_T0)}, {s(S_T0)}, {s(S_T1)}')
            b(f's_add_u32 {s(S_T0)}, {s(S_T0)}, {WS_Z2N}')
            b(f's_add_u32 {s(S_T1)}, {s(S_T0)}, {128 * 1024}')
            for bb in range(2):
                for kq in range(2):
                    so = S_T0 if bb == 0 else S_T1
                    b(f'buffer_store_dwordx4 {v(fr + 8 * bb + 4 * kq, 4)}, {v(V_L16)}, {s(SRD_WS, 4)}, {s(so)} offen offset:{1024 * kq} sc1', tag='z2n')
        stamp(b, 3)

    def flag_store(self, b, base, tagwait):
        b.wait_vm(tagwait)
        with b.atomic():
            b(f's_lshl4_add_u32 {s(S_T0)}, {s(S_RB)}, {s(S_CG)}')
            b(f's_lshl4_add_u32 {s(S_T0)}, {s(S_T0)}, {s(S_W)}')
            b(f's_lshl_b32 {s(S_T0)}, {s(S_T0)}, 2')
            b(f's_add_u32 {s(S_T0)}, {s(S_T0)}, {base}')
            b(f'v_mov_b32 {v(V_POLL)}, {s(S_N)}')
            b(f'buffer_store_dword {v(V_POLL)}, off, {s(SRD_WS, 4)}, {s(S_T0)} sc1', tag='flag')

    def t_epilogue(self, b, kind, acc, mid=None):
        out = V_PV
        for g in range(4):
            if g == 1 and mid:
                mid()
            xs = [acc + 8 * g + k for k in range(8)]
            if kind == 'gelu':
                gelu_group(b, xs, V_TMP)
            else:
                phi_group(b, xs, V_TMP)
            for k in range(4):
                b(f'v_cvt_pk_bf16_f32 {v(out + 4 * g + k)}, {v(xs[2 * k])}, {v(xs[2 * k + 1])}')
            so = S_O0 if g < 2 else S_O1
            b(f'buffer_store_dwordx4 {v(out + 4 * g, 4)}, {v(V_L16)}, {s(SRD_WS, 4)}, {s(so)} offen offset:{1024 * (g & 1)} sc1', tag='p1')

    def set_out_addr(self, b, kind, slab_code):
        with b.atomic():
            for l in slab_code:
                b(l)
            base, stride = (WS_PQ, 32768) if kind == 'q' else (WS_Z1F, 45056)
            b(f's_lshl_b32 {s(S_T4)}, {s(S_T4)}, 12')
            b(f's_add_u32 {s(S_T4)}, {s(S_T4)}, {base}')
            b(f's_mul_i32 {s(S_O0)}, {s(S_TB)}, {stride}')
            b(f's_add_u32 {s(S_O0)}, {s(S_O0)}, {s(S_T4)}')
            b(f's_add_u32 {s(S_O1)}, {s(S_O0)}, 2048')

    def k_epilogue(self, b):
        for g in range(4):
            xs = [V_ACC1 + 8 * g + k for k in range(8)]
            phi_group(b, xs, V_TMP)
            for k in range(4):
                b(f'v_cvt_pk_bf16_f32 {v(V_PK + 4 * g + k)}, {v(xs[2 * k])}, {v(xs[2 * k + 1])}')

    def v_epilogue(self, b):
        for k in range(16):
            b(f'v_cvt_pk_bf16_f32 {v(V_PV + k)}, {v(V_ACC1 + 2 * k)}, {v(V_ACC1 + 2 * k + 1)}')
        ones = V_TMP
        for k in range(4):
            b(f'v_mov_b32 {v(ones + k)}, 0x3f803f80')
        for par in range(2):
            for ch in range(2):
                g = 2 * ch + par
                kv, zz = V_KV + 16 * ch, V_KZ + 16 * ch
                c0 = '0' if par == 0 else v(kv, 16)
                c1 = '0' if par == 0 else v(zz, 16)
                b(f'v_mfma_f32_32x32x16_bf16 {v(kv, 16)}, {v(V_PK + 4 * g, 4)}, {v(V_PV + 4 * g, 4)}, {c0}')
                b(f'v_mfma_f32_32x32x16_bf16 {v(zz, 16)}, {v(V_PK + 4 * g, 4)}, {v(ones, 4)}, {c1}')

    def kv_finish(self, b):
        with b.atomic():
            b(f'v_and_b32 {v(V_T0)}, 31, {v(V_LANE)}')
            b(f'v_cmp_gt_u32 vcc, 16, {v(V_T0)}')
            for ch in range(2):
                kv, zz = V_KV + 16 * ch, V_KZ + 16 * ch
                for k in range(8):
                    b(f'v_cndmask_b32 {v(kv + k)}, {v(zz + k)}, {v(kv + k)}, vcc')
                for k in range(8, 16):
                    b(f'v_cndmask_b32 {v(kv + k)}, {v(kv + k)}, {v(zz + k)}, vcc')
            b('s_barrier')
            b(f's_lshl_b32 {s(S_T0)}, {s(S_W)}, 11')
            b(f'v_add_u32 {v(V_T0)}, {s(S_T0)}, {v(V_L16)}')
            for d in range(4):
                for q in range(2):
                    b(f'ds_write_b128 {v(V_T0)}, {v(V_KV + 8 * d + 4 * q, 4)} offset:{R0 + 8192 * d + 1024 * q}')
            b(f's_lshl_b32 {s(S_T0)}, {s(S_W)}, 13')
            b(f'v_add_u32 {v(V_T0)}, {s(S_T0)}, {v(V_L16)}')
            b.wait_lds()
            b('s_barrier')
            X = V_KZ
            for src in range(4):
                for q in range(2):
                    b(f'ds_read_b128 {v(X + 8 * src + 4 * q, 4)}, {v(V_T0)} offset:{R0 + 2048 * src + 1024 * q}')
            for k in range(8):
                b(f'v_add_f32 {v(X + k)}, {v(X + k)}, {v(X + 8 + k)}')
                b(f'v_add_f32 {v(X + 16 + k)}, {v(X + 16 + k)}, {v(X + 24 + k)}')
            for k in range(8):
                b(f'v_add_f32 {v(X + k)}, {v(X + k)}, {v(X + 16 + k)}')
            b(f's_lshl2_add_u32 {s(S_T0)}, {s(S_CG)}, {s(S_W)}')
            b(f's_lshl_b32 {s(S_T0)}, {s(S_T0)}, 15')
            b(f's_lshl_b32 {s(S_T1)}, {s(S_RB)}, 10')
            b(f's_add_u32 {s(S_T0)}, {s(S_T0)}, {s(S_T1)}')
            b(f's_add_u32 {s(S_T0)}, {s(S_T0)}, {WS_KVP}')
            for q in range(2):
                if q:
                    b(f's_add_u32 {s(S_T0)}, {s(S_T0)}, 16384')
                b(f'buffer_store_dwordx4 {v(X + 4 * q, 4)}, {v(V_L16)}, {s(SRD_WS, 4)}, {s(S_T0)} offen sc1', tag='p1')

    def pre_slab(self, b, tag):
        b.ensure(tag)
        b.wait_vm(tag)
        b('s_barrier')

    def mv_piece(self, b, p):
        b.ensure(f'a{p >> 1}_{p & 1}')
        b.wait_vm(f'a{p >> 1}_{p & 1}')
        a_piece_read(b, p >> 1, p & 1, f'h{p & 1}')

    def fetch_piece(self, b, p):
        b.add(a_piece_items(p >> 1, p & 1, f'h{p & 1}'))

    def mv_chunk(self, b, c, slot):
        b.ensure(f'a{c}_0')
        b.ensure(f'a{c}_1')
        b.wait_vm([f'a{c}_0', f'a{c}_1'])
        a_chunk_read(b, c, slot)

    def slab3_hooks(self, extra=None):
        h = {}

        def add(K, fn):
            h.setdefault(K, []).append(fn)
        K0 = OPT.get('k0', 20)
        if OPT.get('aplan', 2) == 2:
            for K, fn in (extra or {}).items():
                add(K, fn)
            return h
        add(K0, lambda b, y: self.mv_chunk(b, 0, 'f0'))
        add(K0 + 1, lambda b, y: (b(f's_waitcnt lgkmcnt({y})'), b.add(a_chunk_items(3, 'f0'))))
        add(K0 + 4, lambda b, y: self.mv_chunk(b, 1, 'f1'))
        add(K0 + 5, lambda b, y: (b(f's_waitcnt lgkmcnt({y})'), b.add(a_chunk_items(4, 'f1'))))
        add(K0 + 8, lambda b, y: self.mv_chunk(b, 2, 'f2'))
        add(K0 + 9, lambda b, y: (b(f's_waitcnt lgkmcnt({y})'), b.add(a_chunk_items(5, 'f2'))))
        for K, fn in (extra or {}).items():
            add(K, fn)
        return h

    def mid_a(self, b):
        if OPT.get('aplan', 2) == 2:
            return
        if not OPT.get('c0early', 1):
            b.add(a_chunk_items(0, 'f0'))
        b.add(a_chunk_items(1, 'f1'))

    def mid_b(self, b):
        pass

    def g_pass(self, b):
        ga = V_T0 + 4
        b.wait_vm('gw')
        with b.atomic():
            b(f'v_lshrrev_b32 {v(ga)}, 5, {v(V_LANE)}')
            b(f'v_lshlrev_b32 {v(ga)}, 4, {v(ga)}')
            b(f's_lshl_b32 {s(S_T0)}, {s(S_W)}, 10')
            b(f's_add_u32 {s(S_T0)}, {s(S_T0)}, {R0}')
            b(f'v_add_u32 {v(ga)}, {s(S_T0)}, {v(ga)}')
        acc = V_ACC1
        sv = b.period
        b.period = 0
        hooks = self.slab3_hooks()
        for K in range(32):
            wf = V_WF + 4 * (K & 3)
            if K == 0:
                for k2 in range(3):
                    b(f'ds_read_b128 {v(V_WF + 4 * k2, 4)}, {v(ga)} offset:{32 * k2}')
            if K + 3 < 32:
                b(f'ds_read_b128 {v(V_WF + 4 * ((K + 3) & 3), 4)}, {v(ga)} offset:{32 * (K + 3)}')
            b(f'v_mfma_f32_32x32x16_bf16 {v(acc, 16)}, {v(wf, 4)}, {a(A_X + 4 * K, 4)}, {"0" if K == 0 else v(acc, 16)}')
            for fn in hooks.get(K, []):
                fn(b, 1 if K + 3 < 32 else 0)
            b.pop(1)
        b.period = sv
        t = V_TMP
        b(f'v_mul_f32 {v(t)}, {hex(f2u(-LOG2E))}, {v(acc)}')
        b(f'v_exp_f32 {v(t)}, {v(t)}')
        b(f'v_add_f32 {v(t)}, 1.0, {v(t)}')
        b(f'v_rcp_f32 {v(t)}, {v(t)}')
        with b.atomic():
            b(f'v_and_b32 {v(t + 1)}, 31, {v(V_LANE)}')
            b(f'v_lshlrev_b32 {v(t + 1)}, 2, {v(t + 1)}')
            b(f's_lshl_b32 {s(S_T0)}, {s(S_TB)}, 7')
            b(f's_add_u32 {s(S_T0)}, {s(S_T0)}, {WS_GATE}')
            b(f'buffer_store_dword {v(t)}, {v(t + 1)}, {s(SRD_WS, 4)}, {s(S_T0)} offen sc1', tag='p1')

    def pre_epi3(self, b):
        if OPT.get('aplan', 2) == 2:
            b.add(a_chunk_items(1, 'f1'))
            b.add(a_chunk_items(2, 'f2'))

    def a_tail(self, b):
        b.flush()
        self.flag_store(b, WS_FP1, 'p1')

    def role_AB(self, role):
        b = St(self, 'ROLE' + role)
        b.label('L_role' + role)
        b.add(self.post_l1(b, role))
        orient = 'N' if role == 'A' else 'T'
        if OPT.get('w3z', 0):
            b.period = 9
            self.z2_epilogue(b, mid=lambda: self.w3_items(b))
            self.pre_slab(b, 'w2')
            self.set_wr(b, R2)
            stamp(b, 16)
            self.main_loop(b, orient, pop_every=1)
        else:
            b.period = 14
            self.z2_epilogue(b)
            self.pre_slab(b, 'w2')
            self.set_wr(b, R2)
            stamp(b, 16)
            self.w3_items(b)
            self.main_loop(b, orient, pop_every=1)
        stamp(b, 17)
        b.flush()
        b('s_barrier')
        self.stats_issue(b)
        b.period = 12
        if role == 'A':
            self.k_epilogue(b)
        else:
            self.set_out_addr(b, 'q', [f's_sub_u32 {s(S_T4)}, {s(S_CG)}, 8'])
            self.t_epilogue(b, 'phi', V_ACC1)
        stamp(b, 18)
        if OPT.get('aearly', 0):
            b.period = 7
            self.z2_norm(b, after_check=lambda: self.mid_a(b))
        else:
            self.z2_norm(b)
            self.mid_a(b)
        if OPT.get('aplan', 2) != 2:
            b.add(a_chunk_items(2, 'f2'))
        self.mid_b(b)
        self.pre_slab(b, 'w3')
        self.set_wr(b, R0)
        stamp(b, 20)
        hooks = self.slab3_hooks({OPT.get('kz', 8): lambda bb, y: self.flag_store(bb, WS_FZ2, 'z2n')})
        self.main_loop(b, orient, hooks)
        stamp(b, 21)
        b.period = 8
        s1_issue(self, b)
        self.pre_epi3(b)
        if role == 'A':
            self.v_epilogue(b)
            self.kv_finish(b)
        else:
            self.set_out_addr(b, 'z1', [f's_sub_u32 {s(S_T4)}, {s(S_CG)}, 8'])
            self.t_epilogue(b, 'gelu', V_ACC1)
        stamp(b, 23)
        self.a_tail(b)
        b('s_branch L_p1_done')
        return b.b

    def role_CD(self, role):
        b = St(self, 'ROLE' + role)
        b.label('L_role' + role)
        b.add(self.post_l1(b, role))
        b.period = 8
        self.set_out_addr(b, 'q', [f's_sub_u32 {s(S_T4)}, {s(S_CG)}, 8'])
        self.t_epilogue(b, 'phi', V_ACC0)
        self.pre_slab(b, 'w2')
        self.set_wr(b, R2)
        if role == 'C':
            self.w3_items(b)
        else:
            b.flush()
            srd(b, SRD_T, P_GW, 1024)
            b(f's_lshl_b32 {s(S_T0)}, {s(S_W)}, 10')
            b(f's_add_u32 m0, {s(S_T0)}, {R0}')
            b(f's_lshl_b32 {s(S_T0)}, {s(S_ROT)}, 7')
            b(f'v_add_u32 {v(V_T0)}, {s(S_T0)}, {v(V_L16)}')
            b(f'v_and_b32 {v(V_T0)}, 1023, {v(V_T0)}')
            b(f'buffer_load_dwordx4 {v(V_T0)}, {s(SRD_T, 4)}, 0 offen lds', tag='gw')
            if OPT.get('c0early', 1) == 2:
                b.add(a_chunk_items(0, 'f0'))
        self.main_loop(b, 'T', pop_every=1)
        b.flush()
        b('s_barrier')
        self.mid_a(b)
        if OPT.get('aplan', 2) != 2:
            b.add(a_chunk_items(2, 'f2'))
        b.period = 12
        if role == 'C':
            self.set_out_addr(b, 'z1', [f's_lshl_b32 {s(S_T4)}, {s(S_CG)}, 1', f's_sub_u32 {s(S_T4)}, {s(S_T4)}, 19'])
            self.t_epilogue(b, 'gelu', V_ACC1)
            self.mid_b(b)
            self.pre_slab(b, 'w3')
            self.set_wr(b, R0)
            self.main_loop(b, 'T', self.slab3_hooks())
            b.period = 8
            s1_issue(self, b)
            self.pre_epi3(b)
            self.set_out_addr(b, 'z1', [f's_lshl_b32 {s(S_T4)}, {s(S_CG)}, 1', f's_sub_u32 {s(S_T4)}, {s(S_T4)}, 18'])
            self.t_epilogue(b, 'gelu', V_ACC1)
        else:
            self.set_out_addr(b, 'z1', [f's_sub_u32 {s(S_T4)}, {s(S_CG)}, 5'])
            self.t_epilogue(b, 'gelu', V_ACC1)
            self.mid_b(b)
            self.g_pass(b)
            s1_issue(self, b)
            self.pre_epi3(b)
        self.a_tail(b)
        b('s_branch L_p1_done')
        return b.b

    def build(self):
        P = self.prologue()
        LL = self.slab1(True)
        LP = self.slab1(False) if not OPT.get('sym', 1) else None
        A = self.role_AB('A')
        B = self.role_AB('B')
        C = self.role_CD('C')
        D = self.role_CD('D')
        E1 = St(self, 'E1')
        E1.label('L_p1_done')
        stamp(E1, 4)
        from phase23 import emit_phase23
        P2, PH, PL, P3b = emit_phase23(self)
        END = self.blk('END')
        END.label('L_END')
        END('s_endpgm')
        P3 = Block('PRO_w3')
        P3.ins = [i for i in P.ins if not i.meta.get('loader')]
        rests = [[P2, PH, P3b], [P2, PL, P3b]]
        paths = [[P, LL, R, E1.b] + rest + [END] for R in (A, B, C, D) for rest in rests]
        if LP is not None:
            paths += [[P3, LP, R, E1.b] + rest + [END] for R in (A, B, C, D) for rest in rests]
        finalize(self.blocks, paths)

    def text(self):
        out = []
        for b in self.blocks:
            out.append(f'; ---- {b.name}')
            out.append(render(b))
        return '\n'.join(out) + '\n' + '\n'.join(self.slow) + '\n'


HEADER = '''; Fused gated-mix kernel: linear attention + gMLP, single persistent launch (256 workgroups x 256 threads)
; @launch grid=(256,1,1) block=(256,1,1) lds=163840
.amdgcn_target "amdgcn-amd-amdhsa--gfx950"
.text
.globl {k}
.p2align 8
.type {k},@function
{k}:
'''
FOOTER = '''
L_code_end:
    s_endpgm
.section .rodata,"a"
.p2align 6
.amdhsa_kernel {k}
  .amdhsa_next_free_vgpr 512
  .amdhsa_next_free_sgpr 102
  .amdhsa_accum_offset 256
  .amdhsa_group_segment_fixed_size 0
  .amdhsa_kernarg_size 96
  .amdhsa_user_sgpr_count 2
  .amdhsa_user_sgpr_kernarg_segment_ptr 1
  .amdhsa_system_sgpr_workgroup_id_x 1
  .amdhsa_float_denorm_mode_32 3
.end_amdhsa_kernel
'''


def generate(**opt):
    OPT.update(opt)
    g = Gen()
    g.build()
    return HEADER.format(k=KNAME) + g.text() + FOOTER.format(k=KNAME)


if __name__ == '__main__':
    opt = {}
    for arg in sys.argv[2:]:
        k, val = arg.split('=')
        opt[k] = int(val) if val.lstrip('-').isdigit() else val
    import gen as _g
    txt = _g.generate(**opt)
    open(sys.argv[1], 'w').write(txt)
```

```python
from asmlib import *
import gen as G
from gen import (v, a, s, f2u, LOG2E, OOB, stamp, srd, tr_addr, St,
                 WS_FZ2, WS_FP1, WS_FY, WS_FKV, WS_GATE, WS_KVF, WS_KVP, WS_Z2N, WS_Z1F, WS_PQ, WS_Y, WS_SIZE, WS_EPOCH,
                 SRD_X, SRD_W, SRD_WS, SRD_T, SRD_U, S_W, S_WG, S_I, S_J, S_N, S_T0, S_T1, S_T2, S_T3, S_T4, S_T5, S_T6, S_T7,
                 S_ROT, S_RB, S_CG, S_Q0, S_Q1,
                 P_BSP, P_WO, P_WOUT, P_OUT, V_LANE, V_L16, V_L8, V_T0, V_POLL)

S_FB0, S_NBLK = 70, 71
S_BO = 72
S_PART = 73
S_U = 74
S_YO, S_ZO = 75, 76
S_WOB = 77
S_KVO = 78
S_BB = 80
S_FBN = 88
SRD_KV = 44

V_PA = 8
V_PR = 14
V_XW = 16
V_XR = 20
V_BS = 21
V_G0 = 22
V_NG = 26
V_BNG = 27
V_KL = 32
ACC = [64, 96]
RING = 128
D = 12
V_GS = 176
V_X = 192
V_Z1 = 224
V_KS = 236
V_WO = 240
A_PQ, A_KV, A_Y = 0, 64, 96
KVSCR = 38912
PRIV = 40960
XOFF = 22528


def flag_addr(b, dst, n, tmp):
    b(f'v_and_b32 {v(tmp)}, 3, {v(n)}')
    b(f'v_lshrrev_b32 {v(n)}, 2, {v(n)}')
    b(f'v_lshlrev_b32 {v(n)}, 4, {v(n)}')
    b(f'v_add_lshl_u32 {v(dst)}, {v(n)}, {v(tmp)}, 2')


def s1_issue(g, b):
    t0, t1 = V_T0, V_T0 + 1
    with b.atomic():
        b(f's_mul_i32 {s(S_FB0)}, {s(S_J)}, 3')
        b(f's_min_u32 {s(S_FB0)}, {s(S_FB0)}, 20')
        b(f's_cmp_lt_u32 {s(S_J)}, 6')
        b(f's_cselect_b32 {s(S_NBLK)}, 3, 2')
        b(f's_add_u32 {s(S_T2)}, {s(S_FB0)}, {s(S_NBLK)}')
        b(f's_sub_u32 {s(S_T3)}, {s(S_T2)}, 1')
        if G.OPT.get('nbrot', 1):
            b(f's_lshr_b32 {s(S_T0)}, {s(S_WG)}, {6 if G.OPT.get("map", 0) else 5}')
            b(f's_mul_i32 {s(S_T1)}, {s(S_T0)}, 11')
            b(f's_lshr_b32 {s(S_T1)}, {s(S_T1)}, 5')
            b(f's_mul_i32 {s(S_T1)}, {s(S_T1)}, 3')
            b(f's_sub_u32 {s(S_T1)}, {s(S_T0)}, {s(S_T1)}')
            b(f's_and_b32 {s(S_T0)}, {s(S_T0)}, 1')
            b(f's_cmp_eq_u32 {s(S_NBLK)}, 3')
            b(f's_cselect_b32 {s(S_T0)}, {s(S_T1)}, {s(S_T0)}')
        else:
            b(f's_mov_b32 {s(S_T0)}, 0')
        for nb in range(3):
            b(f's_add_u32 {s(S_FBN + nb)}, {s(S_FB0)}, {s(S_T0)}')
            if nb:
                b(f's_add_u32 {s(S_FBN + nb)}, {s(S_FBN + nb)}, {nb}')
            b(f's_cmp_ge_u32 {s(S_FBN + nb)}, {s(S_T2)}')
            b(f's_cselect_b32 {s(S_T1)}, {s(S_NBLK)}, 0')
            b(f's_sub_u32 {s(S_FBN + nb)}, {s(S_FBN + nb)}, {s(S_T1)}')
        b(f's_lshr_b32 {s(S_T0)}, {s(S_FB0)}, 1')
        b(f's_lshr_b32 {s(S_T1)}, {s(S_T3)}, 1')
        b(f's_sub_u32 {s(S_T1)}, {s(S_T1)}, {s(S_T0)}')
        b(f'v_bfe_u32 {v(t0)}, {v(V_LANE)}, 3, 2')
        b(f'v_bfe_u32 {v(t1)}, {v(V_LANE)}, 2, 1')
        b(f'v_mul_u32_u24 {v(t1)}, {s(S_T1)}, {v(t1)}')
        b(f'v_lshl_add_u32 {v(t0)}, {v(t0)}, 4, {v(t1)}')
        b(f's_lshl_b32 {s(S_T2)}, {s(S_W)}, 6')
        b(f's_add_u32 {s(S_T2)}, {s(S_T2)}, {s(S_T0)}')
        b(f'v_add_u32 {v(t0)}, {s(S_T2)}, {v(t0)}')
        b(f'v_and_b32 {v(t1)}, 3, {v(V_LANE)}')
        b(f'v_lshl_add_u32 {v(t0)}, {v(t0)}, 2, {v(t1)}')
        flag_addr(b, V_PA, t0, t1)
        b(f's_mov_b32 {s(S_T7)}, {WS_FZ2}')
        b(f'buffer_load_dword {v(V_PR)}, {v(V_PA)}, {s(SRD_WS, 4)}, {s(S_T7)} offen sc1')


def emit_phase23(g):
    t0, t1, t2 = V_T0, V_T0 + 1, V_T0 + 2
    b = St(g, 'P2')
    b(f's_mov_b32 {s(S_T7)}, {WS_FZ2}')
    if not G.OPT.get('x_nos1'):
        g.poll(b, V_PA, s(S_T7), V_PR, first_issued=True, mark=11)
    stamp(b, 5)
    b(f's_lshl_b32 {s(S_T0)}, {s(S_W)}, 15')
    b(f's_add_u32 {s(S_BB)}, {s(S_T0)}, {WS_Z2N}')

    def bload(b, gi):
        nb, n = gi >> 5, gi & 31
        if n % 4 == 0:
            b(f's_add_u32 {s(S_BO)}, {s(G.S_ROT2)}, {n // 4}')
            b(f's_and_b32 {s(S_BO)}, {s(S_BO)}, 7')
            b(f's_lshl_b32 {s(S_BO)}, {s(S_BO)}, 12')
            b(f's_add_u32 {s(S_BO)}, {s(S_BO)}, {s(S_BB)}')
            b(f's_lshl_b32 {s(S_T4)}, {s(S_FBN + nb)}, 17')
            b(f's_add_u32 {s(S_BO)}, {s(S_BO)}, {s(S_T4)}')
        b(f'buffer_load_dwordx4 {v(RING + 4 * (gi % D), 4)}, {v(V_L16)}, {s(SRD_WS, 4)}, {s(S_BO)} offen offset:{1024 * (n & 3)} sc1')

    if G.OPT.get('aplan', 3) == 2:
        g.mv_chunk(b, 0, 'f0')
        b.wait_lds()
        b.add(G.a_chunk_items(3, 'f0'))
    for gi in range(D):
        bload(b, gi)
        if gi % 2 == 1:
            b.pop(2)
    b.flush()
    b(f'v_lshlrev_b32 {v(V_BS)}, 16, {v(G.V_BSP)}')
    b(f's_lshr_b32 {s(S_T0)}, {s(S_I)}, 1')
    b(f's_lshl_b32 {s(S_T0)}, {s(S_T0)}, 6')
    b(f'v_add_u32 {v(t0)}, {s(S_T0)}, {v(V_LANE)}')
    flag_addr(b, V_PA + 1, t0, t1)
    b(f's_lshl_b32 {s(S_T0)}, {s(S_W)}, 11')
    b(f'v_add_u32 {v(t0)}, {s(S_T0)}, {v(V_L16)}')
    for d in range(4):
        b(f'v_add_u32 {v(V_XW + d)}, {PRIV * d + XOFF}, {v(t0)}')
    b(f's_mul_i32 {s(S_T0)}, {s(S_W)}, {PRIV}')
    b(f's_add_u32 {s(S_T0)}, {s(S_T0)}, {XOFF}')
    b(f'v_add_u32 {v(V_XR)}, {s(S_T0)}, {v(V_L16)}')
    b(f'v_and_b32 {v(t0)}, 31, {v(V_LANE)}')
    b(f'v_lshlrev_b32 {v(V_PA + 5)}, 2, {v(t0)}')
    b(f's_and_b32 {s(S_T0)}, {s(S_W)}, 1')
    b(f's_lshl1_add_u32 {s(S_T0)}, {s(S_I)}, {s(S_T0)}')
    b(f's_mul_i32 {s(S_T0)}, {s(S_T0)}, 45056')
    b(f's_lshr_b32 {s(S_T1)}, {s(S_W)}, 1')
    b(f's_lshl_b32 {s(S_T1)}, {s(S_T1)}, 10')
    b(f's_add_u32 {s(S_T0)}, {s(S_T0)}, {s(S_T1)}')
    b(f's_add_u32 {s(S_ZO)}, {s(S_T0)}, {WS_Z1F}')
    b(f's_add_u32 {s(S_YO)}, {s(S_T0)}, {WS_Y}')
    b(f's_cmp_ge_u32 {s(S_J)}, 6')
    b('s_cbranch_scc1 L_P2L')
    P2 = b.b

    def xw(nb, k):
        d, q = k >> 1, k & 1
        r = ACC[nb & 1] + 16 * (d & 1) + 8 * (d >> 1)
        return f'ds_write_b128 {v(V_XW + d)}, {v(r + 4 * q, 4)} offset:{8192 * (nb & 1) + 1024 * q}'

    def xr(nb, k):
        src, q = k >> 1, k & 1
        return f'ds_read_b128 {v(V_X + 8 * src + 4 * q, 4)}, {v(V_XR)} offset:{8192 * (nb & 1) + 2048 * src + 1024 * q}'

    def xsum(dst):
        o = []
        for k in range(8):
            o.append(f'v_add_f32 {v(V_X + k)}, {v(V_X + k)}, {v(V_X + 8 + k)}')
        for k in range(8):
            o.append(f'v_add_f32 {v(V_X + 16 + k)}, {v(V_X + 16 + k)}, {v(V_X + 24 + k)}')
        for k in range(8):
            o.append(f'v_add_f32 {v(dst + k)}, {v(V_X + k)}, {v(V_X + 16 + k)}')
        return o

    def ymath(nb, gs):
        o = []
        z = V_Z1 + 4 * nb
        tmp = RING
        for k in range(8):
            o.append(f'v_fma_f32 {v(gs + k)}, {v(gs + k)}, {v(V_NG)}, {v(V_BNG)}')
        for k in range(4):
            o.append(f'v_lshlrev_b32 {v(tmp + 2 * k)}, 16, {v(z + k)}')
            o.append(f'v_and_b32 {v(tmp + 2 * k + 1)}, 0xffff0000, {v(z + k)}')
        for k in range(8):
            o.append(f'v_mul_f32 {v(gs + k)}, {v(gs + k)}, {v(tmp + k)}')
        for k in range(4):
            o.append(f'v_cvt_pk_bf16_f32 {v(z + k)}, {v(gs + 2 * k)}, {v(gs + 2 * k + 1)}')
        return o

    def ystore(b, nb):
        b(f's_lshl_b32 {s(S_T0)}, {s(S_FBN + nb)}, 11')
        b(f's_add_u32 {s(S_T0)}, {s(S_T0)}, {s(S_YO)}')
        b(f'buffer_store_dwordx4 {v(V_Z1 + 4 * nb, 4)}, {v(V_L16)}, {s(SRD_WS, 4)}, {s(S_T0)} offen sc1', tag='y')

    def tail_loads(nblk):
        it = []
        for z in range(nblk):
            it.append([f's_lshl_b32 {s(S_T0)}, {s(S_FBN + z)}, 11',
                       f's_add_u32 {s(S_T0)}, {s(S_T0)}, {s(S_ZO)}',
                       f'buffer_load_dwordx4 {v(V_Z1 + 4 * z, 4)}, {v(V_L16)}, {s(SRD_WS, 4)}, {s(S_T0)} offen sc1'])
        it.append([f's_lshl_b32 {s(S_T0)}, {s(S_I)}, 8',
                   f's_add_u32 {s(S_T0)}, {s(S_T0)}, {WS_GATE}',
                   f'buffer_load_dword {v(V_G0)}, {v(V_PA + 5)}, {s(SRD_WS, 4)}, {s(S_T0)} offen sc1',
                   f'buffer_load_dword {v(V_G0 + 1)}, {v(V_PA + 5)}, {s(SRD_WS, 4)}, {s(S_T0)} offen offset:128 sc1'])
        for hd in range(8):
            for tb in range(2):
                l = []
                if hd % 4 == 0:
                    l = [f's_lshl1_add_u32 {s(S_Q0 + tb)}, {s(S_I)}, {tb}',
                         f's_lshl_b32 {s(S_Q0 + tb)}, {s(S_Q0 + tb)}, 15',
                         f's_lshl_b32 {s(S_T1)}, {s(S_W)}, 13',
                         f's_add_u32 {s(S_Q0 + tb)}, {s(S_Q0 + tb)}, {s(S_T1)}',
                         f's_add_u32 {s(S_Q0 + tb)}, {s(S_Q0 + tb)}, {WS_PQ + 1024 * hd}']
                l.append(f'buffer_load_dwordx4 {a(A_PQ + 4 * (2 * hd + tb), 4)}, {v(V_L16)}, {s(SRD_WS, 4)}, {s(S_Q0 + tb)} offen offset:{1024 * (hd & 3)} sc1')
                it.append(l)
        return it

    def gate_setup():
        return [[f's_and_b32 {s(S_T0)}, {s(S_W)}, 1',
                 f's_cmp_eq_u32 {s(S_T0)}, 0',
                 f's_cselect_b64 vcc, -1, 0',
                 f'v_cndmask_b32 {v(V_NG)}, {v(V_G0 + 1)}, {v(V_G0)}, vcc'],
                f'v_sub_f32 {v(V_NG)}, 1.0, {v(V_NG)}',
                f'v_mul_f32 {v(V_BNG)}, {v(V_BS)}, {v(V_NG)}']

    def emit1(b, x):
        if isinstance(x, list):
            for y in x:
                emit1(b, y)
        elif isinstance(x, tuple):
            b(x[1], tag=x[0])
        else:
            b(x)

    def main_stream(light):
        b = St(g, 'P2L' if light else 'P2H')
        nblk = 2 if light else 3
        NG = 32 * nblk
        if light:
            b.label('L_P2L')
            b(f's_lshl_b32 {s(S_U)}, {s(S_I)}, 1')
            b(f's_and_b32 {s(S_T0)}, {s(S_J)}, 1')
            b(f's_add_u32 {s(S_U)}, {s(S_U)}, {s(S_T0)}')
            b(f's_lshr_b32 {s(S_T0)}, {s(S_U)}, 3')
            b(f'v_lshrrev_b32 {v(t0)}, 2, {v(V_LANE)}')
            b(f'v_lshlrev_b32 {v(t0)}, 4, {v(t0)}')
            b(f'v_add_u32 {v(t0)}, {s(S_T0)}, {v(t0)}')
            b(f'v_and_b32 {v(t1)}, 3, {v(V_LANE)}')
            b(f'v_lshl_add_u32 {v(t0)}, {v(t0)}, 2, {v(t1)}')
            flag_addr(b, V_PA + 2, t0, t1)
            b(f's_mov_b32 {s(SRD_KV)}, {s(SRD_WS)}')
            b(f's_mov_b32 {s(SRD_KV + 1)}, {s(SRD_WS + 1)}')
            b(f's_cmp_lt_u32 {s(S_W)}, 2')
            b(f's_cselect_b32 {s(SRD_KV + 2)}, {hex(WS_SIZE - (G.OPT.get('wsoff', 0) << 20))}, 0')
            b(f's_mov_b32 {s(SRD_KV + 3)}, 0x20000')
            b(f's_lshl_b32 {s(S_KVO)}, {s(S_U)}, 14')
            b(f's_and_b32 {s(S_T0)}, {s(S_W)}, 1')
            b(f's_lshl_b32 {s(S_T0)}, {s(S_T0)}, 13')
            b(f's_add_u32 {s(S_KVO)}, {s(S_KVO)}, {s(S_T0)}')
            b(f's_add_u32 {s(S_KVO)}, {s(S_KVO)}, {WS_KVP}')
        fill = []
        items = []

        def drain(n):
            k = 0
            while fill and k < n:
                x = fill.pop(0)
                emit1(b, x)
                k += len(x) if isinstance(x, list) else 1

        n0 = b.mark()
        GP = NG - 36
        GT = NG - D
        for gi in range(NG):
            nb, n = gi >> 5, gi & 31
            acc = ACC[nb & 1]
            for tb in range(2):
                c = '0' if n == 0 else v(acc + 16 * tb, 16)
                b(f'v_mfma_f32_32x32x16_bf16 {v(acc + 16 * tb, 16)}, {v(RING + 4 * (gi % D), 4)}, {a(8 * n + 4 * tb, 4)}, {c}')
            if gi + D < NG:
                bload(b, gi + D)
            if G.OPT.get('aplan', 3) == 2:
                mv = {1: 1, 2: 5, 3: 9, 4: 13, 5: 17, 6: 21, 7: 25}
                for c, st in mv.items():
                    if gi == st:
                        g.mv_chunk(b, c, f'f{c % 3}')
                    if gi == st + 1 and c + 3 < 8:
                        b.wait_lds()
                        b.add(G.a_chunk_items(c + 3, f'f{c % 3}'))
            elif G.OPT.get('aplan', 3) == 1:
                if gi == 4:
                    g.mv_chunk(b, 3, 'f0')
                if gi == 5:
                    b.wait_lds()
                    b.add(G.a_chunk_items(6, 'f0'))
                if gi == 10:
                    g.mv_chunk(b, 4, 'f1')
                if gi == 11:
                    b.wait_lds()
                    b.add(G.a_chunk_items(7, 'f1'))
                if gi == 16:
                    g.mv_chunk(b, 5, 'f2')
                if gi == 22:
                    g.mv_chunk(b, 6, 'f0')
                if gi == 26:
                    g.mv_chunk(b, 7, 'f1')
            if gi == 31:
                b.wait_lds()
                b('s_barrier')
            if b.q:
                b.pop(2)
            if gi == GP:
                b(f's_mov_b32 {s(S_T7)}, {WS_FP1}')
                b(f'buffer_load_dword {v(V_PR)}, {v(V_PA + 1)}, {s(SRD_WS, 4)}, {s(S_T7)} offen sc1')
            if light and gi == 20:
                b(f's_mov_b32 {s(S_T7)}, {WS_FP1}')
                b(f'buffer_load_dword {v(V_PR + 1)}, {v(V_PA + 2)}, {s(SRD_WS, 4)}, {s(S_T7)} offen sc1')
            if light and gi == 34:
                b(f's_mov_b32 {s(S_T7)}, {WS_FP1}')
                g.poll(b, V_PA + 2, s(S_T7), V_PR + 1, first_issued=True, mark=13)
                for r in range(8):
                    l = []
                    if r % 4 == 0:
                        l = [f's_add_u32 {s(S_Q0)}, {s(S_KVO)}, {1024 * r}']
                    l.append(f'buffer_load_dwordx4 {v(V_KL + 4 * r, 4)}, {v(V_L16)}, {s(SRD_KV, 4)}, {s(S_Q0)} offen offset:{1024 * (r & 3)} sc1')
                    items.append(l)
            if nb > 0:
                if 2 <= n < 10:
                    b(xw(nb - 1, n - 2))
                if n == 12:
                    b.wait_lds()
                    b('s_barrier')
                if 12 <= n < 20:
                    b(xr(nb - 1, n - 12))
                if n == 21:
                    fill.extend(xsum(V_GS + 8 * (nb - 1)))
            if gi == GT:
                drain(len(fill))
                b(f's_mov_b32 {s(S_T7)}, {WS_FP1}')
                g.poll(b, V_PA + 1, s(S_T7), V_PR, first_issued=True, mark=15)
                items.extend(tail_loads(nblk))
            if light and gi == 52:
                for r in range(0, 8, 2):
                    for k in range(4):
                        fill.append(f'v_add_f32 {v(V_KL + 4 * r + k)}, {v(V_KL + 4 * r + k)}, {v(V_KL + 4 * r + 4 + k)}')
                for k in range(4):
                    fill.append(f'v_add_f32 {v(V_KL + k)}, {v(V_KL + k)}, {v(V_KL + 8 + k)}')
                    fill.append(f'v_add_f32 {v(V_KL + 16 + k)}, {v(V_KL + 16 + k)}, {v(V_KL + 24 + k)}')
                for k in range(4):
                    fill.append(f'v_add_f32 {v(V_KS + k)}, {v(V_KL + k)}, {v(V_KL + 16 + k)}')
            if light and gi == 58:
                drain(len(fill))
                b(f's_mul_i32 {s(S_T0)}, {s(S_W)}, {PRIV}')
                b(f's_add_u32 {s(S_T0)}, {s(S_T0)}, {KVSCR}')
                b(f'v_add_u32 {v(t0)}, {s(S_T0)}, {v(V_L16)}')
                b(f'ds_write_b128 {v(t0)}, {v(V_KS, 4)}')
                b.wait_lds()
                b('s_barrier')
                b(f'v_add_u32 {v(t0)}, {PRIV + KVSCR}, {v(V_L16)}')
                b(f'ds_read_b128 {v(V_KL, 4)}, {v(t0)}')
                for k in range(4):
                    b(f'v_add_f32 {v(V_KS + k)}, {v(V_KS + k)}, {v(V_KL + k)}')
                b(f'v_cvt_pk_bf16_f32 {v(V_KS)}, {v(V_KS)}, {v(V_KS + 1)}')
                b(f'v_cvt_pk_bf16_f32 {v(V_KS + 1)}, {v(V_KS + 2)}, {v(V_KS + 3)}')
                b(f's_cmp_eq_u32 {s(S_W)}, 0')
                b(f's_cselect_b32 {s(SRD_KV + 2)}, {hex(WS_SIZE - (G.OPT.get('wsoff', 0) << 20))}, 0')
                b(f's_lshr_b32 {s(S_T0)}, {s(S_U)}, 1')
                b(f's_lshl_b32 {s(S_T0)}, {s(S_T0)}, 10')
                b(f's_and_b32 {s(S_T1)}, {s(S_U)}, 1')
                b(f's_lshl_b32 {s(S_T1)}, {s(S_T1)}, 3')
                b(f's_add_u32 {s(S_T0)}, {s(S_T0)}, {s(S_T1)}')
                b(f's_add_u32 {s(S_T0)}, {s(S_T0)}, {WS_KVF}')
                b(f'buffer_store_dwordx2 {v(V_KS, 2)}, {v(V_L16)}, {s(SRD_KV, 4)}, {s(S_T0)} offen sc1', tag='kvf')
            for _ in range(2 if gi >= GT else 1):
                if items:
                    emit1(b, items.pop(0))
            drain(6)
            if gi in (7, 23, 31, 47, 63, 79):
                stamp(b, 24 + (7, 23, 31, 47, 63, 79).index(gi))
        while items:
            emit1(b, items.pop(0))
        drain(len(fill))
        b.weave_from(n0, G=5)
        stamp(b, 6)
        if light:
            b.wait_vm('kvf')
            b(f's_lshl_b32 {s(S_T0)}, {s(S_U)}, 4')
            b(f's_add_u32 {s(S_T0)}, {s(S_T0)}, {WS_FKV}')
            b(f'v_mov_b32 {v(V_POLL)}, {s(S_N)}')
            b(f'buffer_store_dword {v(V_POLL)}, off, {s(SRD_KV, 4)}, {s(S_T0)} sc1', tag='flag')
        last = nblk - 1
        for k in range(8):
            b(xw(last, k))
        for x in gate_setup():
            emit1(b, x)
        b.wait_lds()
        b('s_barrier')
        for k in range(8):
            b(xr(last, k))
        for nb in range(last):
            for x in ymath(nb, V_GS + 8 * nb):
                emit1(b, x)
            ystore(b, nb)
        for x in xsum(V_GS) + ymath(last, V_GS):
            emit1(b, x)
        ystore(b, last)
        stamp(b, 7)
        if light:
            ep = g.lab('EP')
            b(f's_lshl_b32 {s(S_T0)}, {s(S_I)}, 5')
            b(f's_lshl2_add_u32 {s(S_T0)}, {s(S_J)}, {s(S_T0)}')
            b(f's_add_u32 {s(S_T0)}, {s(S_T0)}, {s(S_W)}')
            b(f's_cmp_lg_u32 {s(S_T0)}, {6 * 4 + 3}')
            b(f's_cbranch_scc1 {ep}_end')
            txt = [f'    v_and_b32 {v(t1)}, 3, {v(V_LANE)}', f'    v_lshrrev_b32 {v(t0)}, 2, {v(V_LANE)}',
                   f'    v_lshlrev_b32 {v(t0)}, 4, {v(t0)}', f'    v_add_lshl_u32 {v(t0)}, {v(t0)}, {v(t1)}, 2']
            for k in range(16):
                txt.append(f'    s_mov_b32 {s(S_T3)}, {WS_FP1 + 1024 * k}')
                txt.append(f'    buffer_load_dword {v(32 + k)}, {v(t0)}, {s(SRD_WS, 4)}, {s(S_T3)} offen sc1')
            txt = [f'    s_mov_b32 {s(G.S_CNT)}, {G.SPIN_MAX}', f'{ep}:'] + txt + ['    s_waitcnt vmcnt(0)']
            for k in range(16):
                txt.append(f'    v_xor_b32 {v(32 + k)}, {s(S_N)}, {v(32 + k)}')
            for k in range(1, 16, 2):
                hi = 32 + k + 1 if k + 1 < 16 else 32 + k
                txt.append(f'    v_or3_b32 {v(32)}, {v(32)}, {v(32 + k)}, {v(hi)}')
            txt += [f'    v_cmp_ne_u32 vcc, 0, {v(32)}', f'    s_cbranch_vccz {ep}_ok',
                    f'    s_sub_u32 {s(G.S_CNT)}, {s(G.S_CNT)}, 1', f'    s_cmp_lg_u32 {s(G.S_CNT)}, 0', f'    s_cbranch_scc1 {ep}',
                    f'{ep}_ok:', f'    v_mov_b32 {v(V_POLL)}, {s(S_N)}',
                    f'    buffer_store_dword {v(V_POLL)}, off, {s(SRD_WS, 4)}, 0 sc1', f'{ep}_end:']
            b.b.raw('\n'.join(txt))
        else:
            b('s_branch L_P3')
        return b.b

    PH = main_stream(False)
    PL = main_stream(True)

    b = St(g, 'P3')
    b.label('L_P3')
    ACC3 = 64
    T = [224, 240]
    b(f'v_bfe_u32 {v(t0)}, {v(V_LANE)}, 2, 1')
    b(f'v_bfe_u32 {v(t1)}, {v(V_LANE)}, 4, 1')
    b(f'v_xor_b32 {v(t0)}, {v(t0)}, {v(t1)}')
    b(f'v_and_b32 {v(t1)}, 3, {v(V_LANE)}')
    b(f'v_lshlrev_b32 {v(t1)}, 4, {v(t1)}')
    b(f'v_lshl_add_u32 {v(t0)}, {v(t0)}, 6, {v(t1)}')
    b(f'v_lshrrev_b32 {v(t1)}, 3, {v(V_LANE)}')
    b(f'v_lshl_add_u32 {v(t0)}, {v(t1)}, 10, {v(t0)}')
    b(f's_lshl_b32 {s(S_T0)}, {s(S_J)}, 7')
    VW = 28
    b(f'v_add_u32 {v(VW)}, {s(S_T0)}, {v(t0)}')
    b(f'v_add_u32 {v(VW + 1)}, 7168, {v(VW)}')
    b(f's_cmp_eq_u32 {s(S_W)}, 0')
    b(f's_cselect_b32 {s(S_T0)}, {hex(OOB)}, 0')
    b(f'v_add_u32 {v(32)}, {s(S_T0)}, {v(VW)}')
    b(f's_mul_i32 {s(S_WOB)}, {s(S_W)}, {176 * 1024}')
    b(f's_sub_u32 {s(S_WOB)}, {s(S_WOB)}, 16384')
    b(f's_mul_i32 {s(S_PART)}, {s(S_W)}, {PRIV}')
    srd(b, SRD_X, P_WO, 512 * 1024)
    srd(b, SRD_U, P_WOUT, 688 * 1024)

    def wo_items(hd):
        return [[f's_add_u32 m0, {s(S_PART)}, {XOFF + 2048 * hd}',
                 f's_lshl_b32 {s(S_Q0)}, {s(S_W)}, 17',
                 f's_add_u32 {s(S_Q0)}, {s(S_Q0)}, {16384 * hd}',
                 (f'wo{hd}', f'buffer_load_dwordx4 {v(VW)}, {s(SRD_X, 4)}, {s(S_Q0)} offen{G.NT(8)} lds')],
                [(f'wo{hd}', f'buffer_load_dwordx4 {v(VW + 1)}, {s(SRD_X, 4)}, {s(S_Q0)} offen offset:1024{G.NT(8)} lds')]]

    def wout_items():
        it = []
        for i in range(22):
            vo = 32 if i < 2 else VW
            it.append([f's_add_u32 m0, {s(S_PART)}, {1024 * i}',
                       f's_add_u32 {s(S_Q0)}, {s(S_WOB)}, {8192 * i}',
                       f's_max_i32 {s(S_Q0)}, {s(S_Q0)}, 0',
                       ('wout', f'buffer_load_dwordx4 {v(vo)}, {s(SRD_U, 4)}, {s(S_Q0)} offen{G.NT(8)} lds')])
        return it

    b(f'v_and_b32 {v(t0)}, 15, {v(V_LANE)}')
    b(f's_lshl_b32 {s(S_T0)}, {s(S_W)}, 4')
    b(f'v_add_u32 {v(t0)}, {s(S_T0)}, {v(t0)}')
    b(f'v_lshlrev_b32 {v(V_PA + 3)}, 4, {v(t0)}')
    b(f's_mov_b32 {s(S_T7)}, {WS_FKV}')
    b(f'buffer_load_dword {v(V_PR)}, {v(V_PA + 3)}, {s(SRD_WS, 4)}, {s(S_T7)} offen sc1')
    for hd in range(4):
        b.add(wo_items(hd))
    b.flush()
    V_TW = 26
    tr_addr(b, V_TW, True)
    b(f'v_add_u32 {v(V_TW)}, {s(S_PART)}, {v(V_TW)}')
    b(f'v_xor_b32 {v(V_TW + 1)}, 64, {v(V_TW)}')
    b.wait_vm('y')
    b(f's_lshl3_add_u32 {s(S_T0)}, {s(S_I)}, {s(S_J)}')
    b(f's_lshl4_add_u32 {s(S_T0)}, {s(S_T0)}, {s(S_W)}')
    b(f's_lshl_b32 {s(S_T0)}, {s(S_T0)}, 2')
    b(f's_add_u32 {s(S_T0)}, {s(S_T0)}, {WS_FY}')
    b(f'v_mov_b32 {v(V_POLL)}, {s(S_N)}')
    b(f'buffer_store_dword {v(V_POLL)}, off, {s(SRD_WS, 4)}, {s(S_T0)} sc1', tag='flag')
    stamp(b, 8)
    g.poll(b, V_PA + 3, s(S_T7), V_PR, first_issued=True, mark=19)
    stamp(b, 14)
    b(f's_lshl_b32 {s(S_T0)}, {s(S_W)}, 13')
    b(f's_add_u32 {s(S_T0)}, {s(S_T0)}, {WS_KVF}')
    for hd in range(8):
        if hd == 4:
            b(f's_add_u32 {s(S_T0)}, {s(S_T0)}, 4096')
        b(f'buffer_load_dwordx4 {a(A_KV + 4 * hd, 4)}, {v(V_L16)}, {s(SRD_WS, 4)}, {s(S_T0)} offen offset:{1024 * (hd & 3)} sc1')
    for hd in range(4, 8):
        b.add(wo_items(hd))
    b.add(wout_items())
    WFR = 48
    OF = [[8, 12], [16, 4]]
    eps = hex(f2u(1e-6))

    def num(hd):
        for tb in range(2):
            b(f'v_mfma_f32_32x32x16_bf16 {v(T[tb], 16)}, {a(A_KV + 4 * hd, 4)}, {a(A_PQ + 4 * (2 * hd + tb), 4)}, 0')

    def wread(hd):
        st = hd & 1
        b.ensure(f'wo{hd}')
        b.wait_vm(f'wo{hd}')
        for db in range(2):
            for t in range(2):
                b(f'ds_read_b64_tr_b16 {v(WFR + 8 * st + 4 * db + 2 * t, 2)}, {v(V_TW + db)} offset:{XOFF + 2048 * hd + 1024 * t}')

    def post(hd, tb):
        n0, dn = (T[tb], T[tb] + 8) if hd % 2 == 0 else (T[tb] + 8, T[tb])
        b(f'v_add_f32 {v(dn)}, {eps}, {v(dn)}')
        b(f'v_rcp_f32 {v(dn)}, {v(dn)}')
        b(f'v_mul_f32 {v(dn)}, {v(dn)}, {v(V_G0 + tb)}')
        for k in range(8):
            b(f'v_mul_f32 {v(n0 + k)}, {v(n0 + k)}, {v(dn)}')
        of = OF[hd & 1][tb]
        for k in range(4):
            b(f'v_cvt_pk_bf16_f32 {v(of + k)}, {v(n0 + 2 * k)}, {v(n0 + 2 * k + 1)}')

    def outm(hd):
        st = hd & 1
        for tb in range(2):
            for db in range(2):
                acc = ACC3 + 16 * (2 * tb + db)
                c = '0' if hd == 0 else v(acc, 16)
                b(f'v_mfma_f32_32x32x16_bf16 {v(acc, 16)}, {v(WFR + 8 * st + 4 * db, 4)}, {v(OF[st][tb], 4)}, {c}')

    b.period = 10
    n0 = b.mark()
    for hd in range(8):
        num(hd)
        wread(hd)
        if hd > 0:
            outm(hd - 1)
        post(hd, 0)
        post(hd, 1)
        if hd == 5:
            with b.atomic():
                b(f'v_and_b32 {v(t1)}, 31, {v(V_LANE)}')
                b(f's_lshl_b32 {s(S_T0)}, {s(S_I)}, 5')
                b(f'v_add_u32 {v(t1)}, {s(S_T0)}, {v(t1)}')
                flag_addr(b, 20, t1, t0)
                b(f's_mov_b32 {s(S_T7)}, {WS_FY}')
                b(f'buffer_load_dword {v(21)}, {v(20)}, {s(SRD_WS, 4)}, {s(S_T7)} offen sc1')
    outm(7)
    b.flush()
    b.weave_from(n0, G=6)
    b.period = 0
    stamp(b, 9)
    g.poll(b, 20, s(S_T7), 21, first_issued=True, mark=22)
    stamp(b, 10)
    for n in range(11):
        for tb in range(2):
            if n % 4 == 0:
                b(f's_lshl1_add_u32 {s(S_T0 + tb)}, {s(S_I)}, {tb}')
                b(f's_mul_i32 {s(S_T0 + tb)}, {s(S_T0 + tb)}, 45056')
                b(f's_mul_i32 {s(S_T2)}, {s(S_W)}, {11 * 1024}')
                b(f's_add_u32 {s(S_T0 + tb)}, {s(S_T0 + tb)}, {s(S_T2)}')
                b(f's_add_u32 {s(S_T0 + tb)}, {s(S_T0 + tb)}, {WS_Y + 1024 * n}')
            b(f'buffer_load_dwordx4 {a(A_Y + 8 * n + 4 * tb, 4)}, {v(V_L16)}, {s(SRD_WS, 4)}, {s(S_T0 + tb)} offen offset:{1024 * (n & 3)} sc1')
    b.wait_vm('wout')

    def woutread(n):
        st = n & 1
        for db in range(2):
            for t in range(2):
                b(f'ds_read_b64_tr_b16 {v(WFR + 8 * st + 4 * db + 2 * t, 2)}, {v(V_TW + db)} offset:{2048 * n + 1024 * t}')
    n0 = b.mark()
    woutread(0)
    for n in range(11):
        if n + 1 < 11:
            woutread(n + 1)
        st = n & 1
        for tb in range(2):
            for db in range(2):
                acc = ACC3 + 16 * (2 * tb + db)
                b(f'v_mfma_f32_32x32x16_bf16 {v(acc, 16)}, {v(WFR + 8 * st + 4 * db, 4)}, {a(A_Y + 8 * n + 4 * tb, 4)}, {v(acc, 16)}')
    b.weave_from(n0, G=5)
    b.wait_lds()
    b('s_barrier')
    b(f's_lshl_b32 {s(S_T0)}, {s(S_W)}, 14')
    b(f'v_add_u32 {v(t0)}, {s(S_T0)}, {v(V_L16)}')
    for blk in range(4):
        for j in range(4):
            b(f'ds_write_b128 {v(t0)}, {v(ACC3 + 16 * blk + 4 * j, 4)} offset:{4096 * blk + 1024 * j}')
    srd(b, SRD_T, P_OUT, 2048 * 1024)
    b(f'v_and_b32 {v(t0 + 3)}, 31, {v(V_LANE)}')
    b(f'v_lshlrev_b32 {v(t0 + 3)}, 10, {v(t0 + 3)}')
    b(f'v_lshrrev_b32 {v(t1)}, 5, {v(V_LANE)}')
    b(f'v_lshl_add_u32 {v(t0 + 3)}, {v(t1)}, 4, {v(t0 + 3)}')
    b(f's_lshl_b32 {s(S_T0)}, {s(S_I)}, 16')
    b(f's_lshr_b32 {s(S_T1)}, {s(S_W)}, 1')
    b(f's_lshl_b32 {s(S_T1)}, {s(S_T1)}, 15')
    b(f's_add_u32 {s(S_T0)}, {s(S_T0)}, {s(S_T1)}')
    b(f's_lshl_b32 {s(S_T1)}, {s(S_J)}, 7')
    b(f's_add_u32 {s(S_T0)}, {s(S_T0)}, {s(S_T1)}')
    b(f's_and_b32 {s(S_T1)}, {s(S_W)}, 1')
    b(f's_lshl_b32 {s(S_T1)}, {s(S_T1)}, 6')
    b(f's_add_u32 {s(S_T4)}, {s(S_T0)}, {s(S_T1)}')
    b.wait_lds()
    b('s_barrier')
    b(f's_lshl_b32 {s(S_T0)}, {s(S_W)}, 12')
    b(f'v_add_u32 {v(t0)}, {s(S_T0)}, {v(V_L16)}')
    RB_ = 128
    for src in range(4):
        for j in range(4):
            b(f'ds_read_b128 {v(RB_ + 16 * src + 4 * j, 4)}, {v(t0)} offset:{16384 * src + 1024 * j}')
    for k in range(16):
        b(f'v_add_f32 {v(RB_ + k)}, {v(RB_ + k)}, {v(RB_ + 16 + k)}')
        b(f'v_add_f32 {v(RB_ + 32 + k)}, {v(RB_ + 32 + k)}, {v(RB_ + 48 + k)}')
    for k in range(16):
        b(f'v_add_f32 {v(RB_ + k)}, {v(RB_ + k)}, {v(RB_ + 32 + k)}')
    O = 192
    for k in range(8):
        b(f'v_cvt_pk_bf16_f32 {v(O + k)}, {v(RB_ + 2 * k)}, {v(RB_ + 2 * k + 1)}')
    for jj in range(2):
        b(f'v_permlane32_swap_b32 {v(O + 4 * jj)}, {v(O + 4 * jj + 2)}')
        b(f'v_permlane32_swap_b32 {v(O + 4 * jj + 1)}, {v(O + 4 * jj + 3)}')
    for jj in range(2):
        b(f'buffer_store_dwordx4 {v(O + 4 * jj, 4)}, {v(t0 + 3)}, {s(SRD_T, 4)}, {s(S_T4)} offen offset:{32 * jj}')
    stamp(b, 12)
    return P2, PH, PL, b.b
```

```python
import sys, struct, math
from collections import deque
from asmlib import *

KNAME = 'gated_mix__linear_attn_block__mixer_gmlp__prompt_kernel'
OPT = dict(stamps=0, rot=1, touch=0, late=0, map=0, cpf=0)


def v(a, n=1):
    return f'v{a}' if n == 1 else f'v[{a}:{a + n - 1}]'


def a(x, n=1):
    return f'a{x}' if n == 1 else f'a[{x}:{x + n - 1}]'


def s(x, n=1):
    return f's{x}' if n == 1 else f's[{x}:{x + n - 1}]'


WS_EPOCH = 0
WS_FZ2 = 0x10000
WS_FP1 = 0x20000
WS_FY = 0x30000
WS_FKV = 0x40000
WS_GATE = 0x50000
WS_KVF = 0x60000
WS_STATS = 0x80000
WS_KVP = 0x100000
WS_Z2N = 0x200000
WS_Z1F = 0x500000
WS_PQ = 0x800000
WS_Y = 0xB00000
WS_DBG = 0x1000000
WS_SIZE = 0x10000000
NONCE_K = 0x9E3779B1
OOB = 0x40000000
SPIN_MAX = 20000

R0 = 0
R1 = 65536
R2 = 98304
LDS_BYTES = 163840

S_WG = 2
SRD_A = 4
SRD_U = 8
S_Q0, S_Q1 = 12, 13
S_AS = 14
S_ROT = 15
S_ROT2 = 3
P_X, P_WQKV, P_WO, P_BX, P_WIN, P_WSP, P_BSP, P_WOUT = 16, 18, 20, 22, 24, 26, 28, 30
P_GW, P_OUT, P_DBG, P_WS = 32, 34, 36, 38
SRD_X = 40
SRD_W = 44
SRD_WS = 48
SRD_T = 52
S_W = 56
S_RB, S_CG, S_I, S_J = 57, 58, 59, 60
S_N = 61
S_T0, S_T1, S_T2, S_T3, S_T4, S_T5 = 64, 65, 66, 67, 68, 69
S_XL, S_XS, S_WL, S_WSO = 70, 71, 72, 73
S_RS, S_COL, S_MASK = 74, 75, 76
S_O0, S_O1 = 77, 78
S_TB = 79
S_RS64 = 80
S_LOG2E, S_EPS = 82, 83
S_CNT = 86
S_XG, S_XLW, S_WGB = 84, 85, 87
S_KC = 91
S_D2COL, S_D2MASK, S_D2SEL = 88, 89, 90
S_D3COL, S_D3MASK, S_D3SEL = 92, 93, 94
S_T6, S_T7 = 96, 97
S_VCC2 = 98

V_LANE = 0
V_T0 = 1
V_DUM = 7
V_XD = 8
V_WD = 12
V_XRO = 14
V_XRT = 18
V_WR = 22
V_L16 = 24
V_L8 = 25
V_GA = 26
V_NON = 27
V_ST = 28
V_POLL = 30
V_AR = 32
V_E = 36
V_AD = 40
V_TCH = 44
V_BSP = 45
V_TW1, V_TW2 = 46, 47
V_ACC0 = 64
V_ACC1 = 96
V_WF = 128
V_TMP = 160
V_PK = 192
V_PV = 208
V_STAT = 224
V_KV = 64
V_KZ = 224
A_X = 128


def NT(k):
    return ' nt' if OPT.get('nt', 0) & k else ''


def f2u(x):
    return struct.unpack('<I', struct.pack('<f', x))[0]


LOG2E = 1.4426950408889634
GELU_A_F = -2.0 * LOG2E * math.sqrt(2.0 / math.pi)
GELU_A = f2u(GELU_A_F)
GELU_B = f2u(GELU_A_F * 0.044715)


class St:
    def __init__(self, g, name):
        self.g = g
        self.b = g.blk(name)
        self.q = deque()
        self.period = 0
        self.cnt = 0
        self.lock = 0

    def __call__(self, text, tag=None, **meta):
        r = self.b(text, tag=tag, **meta)
        if self.period and not self.lock and self.q:
            self.cnt += 1
            if self.cnt >= self.period:
                self.pop()
        return r

    def pop(self, n=1):
        for _ in range(n):
            if not self.q:
                return
            item = self.q.popleft()
            for x in item:
                if isinstance(x, tuple):
                    self.b(x[1], tag=x[0], **(x[2] if len(x) > 2 else {}))
                else:
                    self.b(x)
        self.cnt = 0

    def add(self, items):
        self.q.extend(items)

    def flush(self):
        self.pop(len(self.q))

    def ensure(self, tag):
        def has(item):
            return any(isinstance(x, tuple) and x[0] == tag for x in item)
        while any(has(i) for i in self.q):
            self.pop(1)

    def label(self, n):
        self.b.label(n)

    def mark(self):
        return len(self.b.ins)

    def weave_from(self, n0, G=5, adv=2):
        if OPT.get('weave', 1):
            self.b.ins[n0:] = weave(self.b.ins[n0:], G, adv)

    def wait_vm(self, t):
        self.b.wait_vm(t)

    def wait_lds(self):
        self.b.wait_lds()

    class _L:
        def __init__(self, st):
            self.st = st

        def __enter__(self):
            self.st.lock += 1

        def __exit__(self, *a):
            self.st.lock -= 1

    def atomic(self):
        return St._L(self)


def gelu_group(b, xs, tmp):
    n = len(xs)
    for k in range(n):
        b(f'v_mul_f32 {v(tmp + k)}, {v(xs[k])}, {v(xs[k])}')
    for k in range(n):
        b(f'v_fmamk_f32 {v(tmp + k)}, {v(tmp + k)}, {hex(GELU_B)}, {v(V_GA)}')
    for k in range(n):
        b(f'v_mul_f32 {v(tmp + k)}, {v(tmp + k)}, {v(xs[k])}')
    for k in range(n):
        b(f'v_exp_f32 {v(tmp + k)}, {v(tmp + k)}')
    for k in range(n):
        b(f'v_add_f32 {v(tmp + k)}, 1.0, {v(tmp + k)}')
    for k in range(n):
        b(f'v_rcp_f32 {v(tmp + k)}, {v(tmp + k)}')
    for k in range(n):
        b(f'v_mul_f32 {v(xs[k])}, {v(xs[k])}, {v(tmp + k)}')


def phi_group(b, xs, tmp):
    n = len(xs)
    for k in range(n):
        b(f'v_mul_f32 {v(tmp + k)}, {s(S_LOG2E)}, {v(xs[k])}')
    for k in range(n):
        b(f'v_exp_f32_e64 {v(tmp + k)}, {v(tmp + k)} clamp')
    for k in range(n):
        b(f'v_max_f32 {v(xs[k])}, {s(S_EPS)}, {v(xs[k])}')
    for k in range(n):
        b(f'v_add_f32 {v(xs[k])}, {v(xs[k])}, {v(tmp + k)}')


def srd(b, base, ptr, nrec):
    b(f's_mov_b32 {s(base)}, {s(ptr)}')
    b(f's_mov_b32 {s(base + 1)}, {s(ptr + 1)}')
    b(f's_mov_b32 {s(base + 2)}, {hex(nrec)}')
    b(f's_mov_b32 {s(base + 3)}, 0x20000')


def dma4_voffsets(b, dst, RS):
    t0, t1, t2 = V_T0, V_T0 + 1, V_T0 + 2
    b(f'v_lshrrev_b32 {v(t0)}, 3, {v(V_LANE)}')
    b(f'v_and_b32 {v(t1)}, 7, {v(V_LANE)}')
    b(f'v_lshrrev_b32 {v(t2)}, 4, {v(V_LANE)}')
    b(f'v_xor_b32 {v(t1)}, {v(t1)}, {v(t2)}')
    b(f'v_lshlrev_b32 {v(t1)}, 4, {v(t1)}')
    b(f'v_mul_u32_u24 {v(t0)}, {RS}, {v(t0)}')
    b(f'v_add_u32 {v(dst)}, {v(t0)}, {v(t1)}')
    b(f'v_xor_b32 {v(t1)}, 64, {v(t1)}')
    b(f'v_add_u32 {v(t0)}, {v(t0)}, {v(t1)}')
    b(f'v_add_u32 {v(dst + 1)}, {8 * RS - 1024}, {v(t0)}')
    b(f'v_add_u32 {v(dst + 2)}, {16 * RS - 2048}, {v(dst)}')
    b(f'v_add_u32 {v(dst + 3)}, {24 * RS - 3072}, {v(t0)}')


def frag_read_addrs(b, dst):
    t0, t1, t2 = V_T0, V_T0 + 1, V_T0 + 2
    b(f'v_and_b32 {v(t0)}, 31, {v(V_LANE)}')
    b(f'v_lshrrev_b32 {v(t1)}, 5, {v(V_LANE)}')
    b(f'v_bfe_u32 {v(t2)}, {v(V_LANE)}, 1, 3')
    b(f'v_xor_b32 {v(t1)}, {v(t1)}, {v(t2)}')
    b(f'v_lshlrev_b32 {v(t1)}, 4, {v(t1)}')
    b(f'v_lshl_add_u32 {v(dst)}, {v(t0)}, 7, {v(t1)}')
    for kk in range(1, 4):
        b(f'v_xor_b32 {v(dst + kk)}, {32 * kk}, {v(dst)}')


def tr_addr(b, dst, pi):
    t0, t1 = V_T0, V_T0 + 1
    b(f'v_bfe_u32 {v(t0)}, {v(V_LANE)}, 2, 2')
    b(f'v_lshrrev_b32 {v(t1)}, 5, {v(V_LANE)}')
    b(f'v_lshl_add_u32 {v(t1)}, {v(t1)}, {2 if pi else 3}, {v(t0)}')
    b(f'v_lshlrev_b32 {v(t1)}, 7, {v(t1)}')
    b(f'v_lshrrev_b32 {v(t0)}, 1, {v(t0)}')
    b(f'v_lshl_add_u32 {v(t1)}, {v(t0)}, 6, {v(t1)}')
    b(f'v_bfe_u32 {v(t0)}, {v(V_LANE)}, 4, 1')
    b(f'v_lshl_add_u32 {v(t1)}, {v(t0)}, 5, {v(t1)}')
    b(f'v_and_b32 {v(t0)}, 3, {v(V_LANE)}')
    b(f'v_lshl_add_u32 {v(dst)}, {v(t0)}, 3, {v(t1)}')


def wd_voffsets(b):
    t0, t1, t2 = V_T0, V_T0 + 1, V_T0 + 2
    b(f'v_bfe_u32 {v(t0)}, {v(V_LANE)}, 2, 1')
    b(f'v_bfe_u32 {v(t1)}, {v(V_LANE)}, 4, 1')
    b(f'v_xor_b32 {v(t0)}, {v(t0)}, {v(t1)}')
    b(f'v_and_b32 {v(t1)}, 3, {v(V_LANE)}')
    b(f'v_lshlrev_b32 {v(t1)}, 4, {v(t1)}')
    b(f'v_lshl_add_u32 {v(t0)}, {v(t0)}, 6, {v(t1)}')
    b(f'v_lshrrev_b32 {v(t1)}, 3, {v(V_LANE)}')
    b(f'v_mul_lo_u32 {v(t1)}, {v(t1)}, {s(S_RS)}')
    b(f'v_add_u32 {v(t1)}, {v(t1)}, {v(t0)}')
    b(f'v_add_u32 {v(V_WD)}, {s(S_COL)}, {v(t1)}')
    b(f's_lshl_b32 {s(S_T0)}, {s(S_RS)}, 3')
    b(f's_sub_u32 {s(S_T0)}, {s(S_T0)}, 1024')
    b(f'v_add_u32 {v(V_WD + 1)}, {s(S_T0)}, {v(V_WD)}')
    b(f'v_mov_b32 {v(t2)}, {hex(OOB)}')
    b(f'v_cmp_gt_u32 vcc, {s(S_MASK)}, {v(t0)}')
    b(f'v_cndmask_b32 {v(V_WD)}, {v(V_WD)}, {v(t2)}, vcc')
    b(f'v_cndmask_b32 {v(V_WD + 1)}, {v(V_WD + 1)}, {v(t2)}, vcc')
    b(f's_lshl_b32 {s(S_RS64)}, {s(S_RS)}, 6')
    b(f's_lshl_b32 {s(S_T0)}, {s(S_RS)}, 4')
    b(f's_mul_i32 {s(S_WSO)}, {s(S_T0)}, {s(S_W)}')


def set_w_srd(b, sel):
    b(f's_cmp_eq_u32 {s(sel)}, 0')
    b(f's_cselect_b32 {s(SRD_W)}, {s(P_WQKV)}, {s(P_WIN)}')
    b(f's_cselect_b32 {s(SRD_W + 1)}, {s(P_WQKV + 1)}, {s(P_WIN + 1)}')
    b(f's_mov_b32 {s(SRD_W + 2)}, {hex(512 * 2752)}')
    b(f's_cmov_b32 {s(SRD_W + 2)}, {hex(512 * 3072)}')
    b(f's_mov_b32 {s(SRD_W + 3)}, 0x20000')


def w_piece_items(p, region, tag):
    return [
        [f's_add_u32 {s(S_Q0)}, {s(S_ROT)}, {p}',
         f's_and_b32 {s(S_Q0)}, {s(S_Q0)}, 7',
         f's_mul_i32 {s(S_Q0)}, {s(S_Q0)}, {s(S_RS64)}',
         f's_add_u32 {s(S_Q0)}, {s(S_Q0)}, {s(S_WSO)}',
         f's_add_u32 m0, {s(S_WL)}, {region + 8192 * p}',
         (tag, f'buffer_load_dwordx4 {v(V_WD)}, {s(SRD_W, 4)}, {s(S_Q0)} offen{NT(2)} lds')],
        [(tag, f'buffer_load_dwordx4 {v(V_WD + 1)}, {s(SRD_W, 4)}, {s(S_Q0)} offen offset:1024{NT(2)} lds')],
    ]


def x_chunk_items(c, tag):
    it = []
    for i in range(4):
        l = []
        if i == 0:
            l = [f's_add_u32 {s(S_Q0)}, {s(S_ROT)}, {c}',
                 f's_and_b32 {s(S_Q0)}, {s(S_Q0)}, 7',
                 f's_lshl_b32 {s(S_Q0)}, {s(S_Q0)}, 7',
                 f's_add_u32 {s(S_Q0)}, {s(S_Q0)}, {s(S_XS)}',
                 f's_add_u32 m0, {s(S_XL)}, {16384 * (c % 4)}']
        l.append((tag, f'buffer_load_dwordx4 {v(V_XD + i)}, {s(SRD_X, 4)}, {s(S_Q0)} offen offset:{1024 * i}{NT(4)} lds'))
        it.append(l)
    return it


def l1_items(c):
    tag = f'x{c}'
    slot = R1 + 16384 * (c % 3)
    it = []
    for m in range(4):
        l = []
        if m == 0:
            l = [f's_add_u32 {s(S_KC)}, {s(S_ROT)}, {c}',
                 f's_and_b32 {s(S_KC)}, {s(S_KC)}, 7',
                 f's_lshl_b32 {s(S_Q0)}, {s(S_KC)}, 7',
                 f's_add_u32 {s(S_Q0)}, {s(S_Q0)}, {s(S_XG)}',
                 f's_add_u32 m0, {s(S_XLW)}, {slot}']
        else:
            l = [f's_add_u32 {s(S_Q0)}, {s(S_Q0)}, 7168']
        l.append((tag, f'buffer_load_dwordx4 {v(V_XD + (m & 1))}, {s(SRD_X, 4)}, {s(S_Q0)} offen offset:{1024 * m} lds'))
        it.append(l)
    it.append([f's_add_u32 {s(S_Q0)}, {s(S_Q0)}, {7168 + 4096}',
               f's_add_u32 m0, {s(S_XLW)}, {slot + 4096}',
               (tag, f'buffer_load_dwordx4 {v(V_XD)}, {s(SRD_X, 4)}, {s(S_Q0)} offen lds')])
    return it


def l1_item5(g, b, c):
    tag = f'x{c}'
    l0, l1 = g.lab('M5'), g.lab('M5')
    b.b(f's_cmp_eq_u32 {s(S_W)}, 0')
    b.b(f's_cbranch_scc0 {l0}')
    b.b(f's_add_u32 {s(S_Q0)}, {s(S_Q0)}, 7168')
    b.b(f'buffer_load_dwordx4 {v(V_XD + 1)}, {s(SRD_X, 4)}, {s(S_Q0)} offen offset:1024 lds', nocount=True)
    b.b(f's_branch {l1}')
    b.b.label(l0)
    b.b(f's_mul_i32 {s(S_Q1)}, {s(S_KC)}, {s(S_RS64)}')
    b.b(f's_sub_u32 {s(S_Q0)}, {s(S_WGB)}, 1')
    b.b(f's_lshl_b32 {s(S_T0)}, {s(S_Q0)}, 10')
    b.b(f's_add_u32 m0, {s(S_T0)}, {R0 + 8192 * c}')
    b.b(f's_lshl_b32 {s(S_T0)}, {s(S_RS)}, 3')
    b.b(f's_mul_i32 {s(S_Q0)}, {s(S_Q0)}, {s(S_T0)}')
    b.b(f's_add_u32 {s(S_Q0)}, {s(S_Q0)}, {s(S_Q1)}')
    b.b(f'buffer_load_dwordx4 {v(V_WD)}, {s(SRD_W, 4)}, {s(S_Q0)} offen lds', tag=tag)
    b.b.label(l1)


def l1_w_items(c):
    tag = f'x{c}'
    return [[f's_mul_i32 {s(S_Q1)}, {s(S_KC)}, {s(S_RS64)}',
             f's_lshl_b32 {s(S_Q0)}, {s(S_WGB)}, 10',
             f's_add_u32 m0, {s(S_Q0)}, {R0 + 8192 * c}',
             f's_lshl_b32 {s(S_Q0)}, {s(S_RS)}, 3',
             f's_mul_i32 {s(S_Q0)}, {s(S_Q0)}, {s(S_WGB)}',
             f's_add_u32 {s(S_Q0)}, {s(S_Q0)}, {s(S_Q1)}',
             (tag, f'buffer_load_dwordx4 {v(V_WD)}, {s(SRD_W, 4)}, {s(S_Q0)} offen lds')],
            [(tag, f'buffer_load_dwordx4 {v(V_WD + 1)}, {s(SRD_W, 4)}, {s(S_Q0)} offen offset:1024 lds')]]


def a_slot(kind):
    return {'h0': (13, R1), 'h1': (13, R1 + 4096), 'f0': (13, R1), 'f1': (14, R2), 'f2': (14, R2 + 8192),
            'g1': (14, R0), 'g2': (14, R0 + 8192)}[kind]


def a_piece_items(c, tb, slot, off=0):
    sh, base = a_slot(slot)
    it = []
    for i in range(4):
        l = []
        if i == 0:
            l = [f's_add_u32 {s(S_Q0)}, {s(S_ROT2)}, {c}',
                 f's_and_b32 {s(S_Q0)}, {s(S_Q0)}, 7',
                 f's_lshl_b32 {s(S_Q0)}, {s(S_Q0)}, 7',
                 f's_add_u32 {s(S_Q0)}, {s(S_Q0)}, {s(S_AS)}']
            if tb:
                l.append(f's_add_u32 {s(S_Q0)}, {s(S_Q0)}, {32 * 4096}')
            l += [f's_lshl_b32 {s(S_Q1)}, {s(S_W)}, {sh}',
                  f's_add_u32 m0, {s(S_Q1)}, {base + off}']
        l.append((f'a{c}_{tb}', f'buffer_load_dwordx4 {v(V_AD + i)}, {s(SRD_A, 4)}, {s(S_Q0)} offen offset:{1024 * i}{NT(1)} lds'))
        it.append(l)
    return it


def a_piece_read(b, c, tb, slot, off=0):
    sh, base = a_slot(slot)
    with b.atomic():
        b(f's_lshl_b32 {s(S_T0)}, {s(S_W)}, {sh}')
        b(f's_add_u32 {s(S_T0)}, {s(S_T0)}, {base + off}')
        for kk in range(4):
            b(f'v_add_u32 {v(V_T0 + kk)}, {s(S_T0)}, {v(V_AR + kk)}')
        for kk in range(4):
            r = 8 * (4 * c + kk) + 4 * tb
            b(f'ds_read_b128 {a(r, 4)}, {v(V_T0 + kk)}')


def a_chunk_items(c, slot):
    return a_piece_items(c, 0, slot) + a_piece_items(c, 1, slot, 4096)


def a_chunk_read(b, c, slot):
    sh, base = a_slot(slot)
    with b.atomic():
        b(f's_lshl_b32 {s(S_T0)}, {s(S_W)}, {sh}')
        b(f's_add_u32 {s(S_T0)}, {s(S_T0)}, {base}')
        for kk in range(4):
            b(f'v_add_u32 {v(V_T0 + kk)}, {s(S_T0)}, {v(V_AR + kk)}')
        for kk in range(4):
            for tb in range(2):
                r = 8 * (4 * c + kk) + 4 * tb
                b(f'ds_read_b128 {a(r, 4)}, {v(V_T0 + kk)} offset:{4096 * tb}')


def stamp(b, idx):
    if not OPT['stamps']:
        return
    if OPT['stamps'] == 3 and idx not in (0, 12):
        return
    lock = b.atomic() if hasattr(b, 'atomic') else None
    if lock:
        lock.__enter__()
    b(f's_memrealtime {s(S_VCC2, 2)}' if OPT['stamps'] in (1, 3) else f's_memtime {s(S_VCC2, 2)}')
    b('s_waitcnt lgkmcnt(0)')
    b(f's_lshl_b32 {s(S_T6)}, {s(S_WG)}, 2')
    b(f's_add_u32 {s(S_T6)}, {s(S_T6)}, {s(S_W)}')
    b(f's_lshl_b32 {s(S_T6)}, {s(S_T6)}, 7')
    b(f's_add_u32 {s(S_T6)}, {s(S_T6)}, {WS_DBG + 4 * idx}')
    b(f'v_mov_b32 {v(V_POLL + 1)}, {s(S_VCC2)}')
    b(f'buffer_store_dword {v(V_POLL + 1)}, off, {s(SRD_WS, 4)}, {s(S_T6)}')
    if lock:
        lock.__exit__()


def s1_issue(g, b):
    from phase23 import s1_issue as f
    f(g, b)


def slow_mark(idx):
    if not OPT['stamps'] or OPT.get('s3st') or OPT['stamps'] == 3:
        return ''
    return f'''    s_lshl_b32 {s(S_T6)}, {s(S_WG)}, 2
    s_add_u32 {s(S_T6)}, {s(S_T6)}, {s(S_W)}
    s_lshl_b32 {s(S_T6)}, {s(S_T6)}, 7
    s_add_u32 {s(S_T6)}, {s(S_T6)}, {WS_DBG + 4 * idx}
    s_sub_u32 {s(S_VCC2)}, {SPIN_MAX + 1}, {s(S_CNT)}
    v_mov_b32 {v(V_POLL + 1)}, {s(S_VCC2)}
    buffer_store_dword {v(V_POLL + 1)}, off, {s(SRD_WS, 4)}, {s(S_T6)}
'''


class Gen:
    def __init__(self):
        self.blocks = []
        self.s3flag = False
        self.slow = []
        self.nlab = 0

    def blk(self, name):
        b = Block(name)
        self.blocks.append(b)
        return b

    def lab(self, p='L'):
        self.nlab += 1
        return f'{p}_{self.nlab}'

    def poll(self, b, vaddr, soff, vtmp, first_issued=False, skip_if_zero=None, mark=31):
        cont = self.lab('PC')
        slow = self.lab('PS')
        lock = b.atomic() if hasattr(b, 'atomic') else None
        if lock:
            lock.__enter__()
        if not first_issued:
            b(f'buffer_load_dword {v(vtmp)}, {v(vaddr)}, {s(SRD_WS, 4)}, {soff} offen sc1')
        b(f'v_cmp_ne_u32 vcc, {s(S_N)}, {v(vtmp)}')
        if skip_if_zero is not None:
            b(f's_cmp_eq_u32 {s(skip_if_zero)}, 0')
            b(f's_cbranch_scc1 {cont}')
        b(f's_cbranch_vccnz {slow}')
        b.label(cont)
        if lock:
            lock.__exit__()
        self.slow.append(f'''{slow}:
    s_mov_b32 {s(S_CNT)}, {SPIN_MAX}
{slow}_l:
    s_sleep 1
    buffer_load_dword {v(vtmp)}, {v(vaddr)}, {s(SRD_WS, 4)}, {soff} offen sc1
    s_waitcnt vmcnt(0)
{slow_mark(mark)}    v_cmp_ne_u32 vcc, {s(S_N)}, {v(vtmp)}
    s_cbranch_vccz {cont}
    s_sub_u32 {s(S_CNT)}, {s(S_CNT)}, 1
    s_cmp_lg_u32 {s(S_CNT)}, 0
    s_cbranch_scc1 {slow}_l
    s_branch {cont}''')

    def prologue(self):
        b = St(self, 'PRO')
        b(f's_cmp_ge_u32 {s(S_WG)}, 256')
        b('s_cbranch_scc1 L_END')
        b('s_load_dwordx16 s[16:31], s[0:1], 0x0')
        b('s_load_dwordx8 s[32:39], s[0:1], 0x40')
        b(f'v_lshrrev_b32 {v(V_T0)}, 6, {v(0)}')
        b(f'v_and_b32 {v(V_LANE)}, 63, {v(0)}')
        b(f's_and_b32 {s(S_T0)}, {s(S_WG)}, 7')
        b(f'v_readfirstlane_b32 {s(S_W)}, {v(V_T0)}')
        b(f's_lshr_b32 {s(S_T1)}, {s(S_WG)}, 3')
        b(f's_lshr_b32 {s(S_T2)}, {s(S_T1)}, 2')
        b(f's_and_b32 {s(S_T1)}, {s(S_T1)}, 3')
        b(f's_and_b32 {s(S_T3)}, {s(S_T0)}, 1')
        b(f's_lshr_b32 {s(S_T0)}, {s(S_T0)}, 1')
        b(f's_lshl3_add_u32 {s(S_RB)}, {s(S_T3)}, {s(S_T2)}')
        b(f's_lshl2_add_u32 {s(S_CG)}, {s(S_T0)}, {s(S_T1)}')
        b(f's_lshl3_add_u32 {s(S_I)}, {s(S_T0)}, {s(S_T2)}')
        b(f's_lshl2_add_u32 {s(S_J)}, {s(S_T3)}, {s(S_T1)}')
        b(f's_lshl1_add_u32 {s(S_ROT)}, {s(S_T1)}, {s(S_T2)}')
        b(f's_and_b32 {s(S_ROT)}, {s(S_ROT)}, 7')
        if OPT.get('map', 0):
            b(f's_and_b32 {s(S_T4)}, {s(S_WG)}, 7')
            b(f's_lshr_b32 {s(S_T5)}, {s(S_WG)}, 6')
            b(f's_lshl2_add_u32 {s(S_I)}, {s(S_T4)}, {s(S_T5)}')
            b(f's_bfe_u32 {s(S_J)}, {s(S_WG)}, 0x30003')
            b(f's_lshl1_add_u32 {s(S_ROT2)}, {s(S_T5)}, {s(S_J)}')
            b(f's_and_b32 {s(S_ROT2)}, {s(S_ROT2)}, 7')
        else:
            b(f's_mov_b32 {s(S_ROT2)}, {s(S_ROT)}')
        if not OPT['rot']:
            b(f's_mov_b32 {s(S_ROT)}, 0')
        b(f'v_lshrrev_b32 {v(V_T0)}, 3, {v(V_LANE)}')
        b(f'v_and_b32 {v(V_T0 + 1)}, 7, {v(V_LANE)}')
        b(f'v_lshrrev_b32 {v(V_T0 + 2)}, 4, {v(V_LANE)}')
        b(f'v_xor_b32 {v(V_T0 + 1)}, {v(V_T0 + 1)}, {v(V_T0 + 2)}')
        b(f'v_lshlrev_b32 {v(V_T0 + 1)}, 4, {v(V_T0 + 1)}')
        b(f's_cmp_eq_u32 {s(S_W)}, 2')
        b(f's_cselect_b32 {s(S_T0)}, 64, 0')
        b(f'v_xor_b32 {v(V_T0 + 1)}, {s(S_T0)}, {v(V_T0 + 1)}')
        b(f'v_lshl_add_u32 {v(V_XD)}, {v(V_T0)}, 10, {v(V_T0 + 1)}')
        b(f'v_xor_b32 {v(V_XD + 1)}, 64, {v(V_XD)}')
        b(f's_mul_i32 {s(S_XLW)}, {s(S_W)}, 6')
        b(f's_cmp_eq_u32 {s(S_W)}, 2')
        b(f's_cselect_b32 {s(S_XLW)}, 11, {s(S_XLW)}')
        b(f's_lshl_b32 {s(S_XG)}, {s(S_XLW)}, 13')
        b(f's_lshl_b32 {s(S_T0)}, {s(S_RB)}, 17')
        b(f's_add_u32 {s(S_XG)}, {s(S_XG)}, {s(S_T0)}')
        b(f's_lshl_b32 {s(S_XLW)}, {s(S_XLW)}, 10')
        b(f's_mul_i32 {s(S_WGB)}, {s(S_W)}, 3')
        b(f's_lshl_b32 {s(S_T0)}, {s(S_CG)}, 7')
        b(f's_add_u32 {s(S_T1)}, {s(S_T0)}, 1344')
        b(f's_sub_u32 {s(S_T2)}, {s(S_T0)}, 1024')
        b(f's_cmp_le_u32 {s(S_CG)}, 10')
        b(f's_cselect_b32 {s(S_COL)}, {s(S_T1)}, {s(S_T2)}')
        b(f's_mov_b32 {s(S_RS)}, 3072')
        b(f's_cmov_b32 {s(S_RS)}, 2752')
        b(f's_cselect_b32 {s(S_T3)}, 1, 0')
        b(f's_cmp_eq_u32 {s(S_CG)}, 0')
        b(f's_cselect_b32 {s(S_MASK)}, 32, 0')
        wd_voffsets(b)
        b(f's_lshl_b32 {s(S_WL)}, {s(S_W)}, 11')
        b(f's_lshl2_add_u32 {s(S_TB)}, {s(S_RB)}, {s(S_W)}')
        if OPT.get('cpf', 0):
            b(f's_getpc_b64 {s(62, 2)}')
            b.label('L_pc0')
            b(f's_lshr_b32 {s(S_T0)}, {s(S_WG)}, 3')
            b(f's_lshl2_add_u32 {s(S_T0)}, {s(S_T0)}, {s(S_W)}')
            b(f's_lshl_b32 {s(S_T0)}, {s(S_T0)}, 9')
            b(f's_min_u32 {s(S_T0)}, {s(S_T0)}, L_code_end-L_pc0-512')
            b(f'v_lshlrev_b32 {v(V_T0 + 3)}, 3, {v(V_LANE)}')
            b(f'v_add_u32 {v(V_T0 + 3)}, {s(S_T0)}, {v(V_T0 + 3)}')
            b(f'global_load_dwordx2 {v(250, 2)}, {v(V_T0 + 3)}, {s(62, 2)}', nodst=True)
        b('s_waitcnt lgkmcnt(0)')
        srd(b, SRD_X, P_X, 2048 * 1024)
        set_w_srd(b, S_T3)
        if OPT.get('sym', 1):
            dma4_voffsets(b, V_XD, 1024)
            b(f's_lshl_b32 {s(S_XL)}, {s(S_W)}, 12')
            b(f's_add_u32 {s(S_XL)}, {s(S_XL)}, {R1}')
            b(f's_lshl_b32 {s(S_XS)}, {s(S_TB)}, 15')
            for c in range(3):
                b.add(x_chunk_items(c, f'x{c}'))
                b.add(w_piece_items(c, R0, f'x{c}'))
            b.flush()
        else:
            b(f's_cmp_eq_u32 {s(S_W)}, 3')
            b('s_cbranch_scc1 L_noload0')
            n0 = len(b.b.ins)
            for c in range(2):
                b.add(l1_items(c))
                b.flush()
                l1_item5(self, b, c)
                b.add(l1_w_items(c))
                b.flush()
            for i in b.b.ins[n0:]:
                i.meta['loader'] = True
            b.label('L_noload0')
        if OPT.get('wsoff', 0):
            off = OPT['wsoff'] << 20
            b(f's_add_u32 {s(P_WS)}, {s(P_WS)}, {hex(off)}')
            b(f's_addc_u32 {s(P_WS + 1)}, {s(P_WS + 1)}, 0')
        srd(b, SRD_WS, P_WS, WS_SIZE - (OPT.get('wsoff', 0) << 20))
        b(f'buffer_load_dword {v(V_E)}, off, {s(SRD_WS, 4)}, 0 sc1', tag='epoch')
        stamp(b, 0)
        b(f's_mov_b32 {s(S_LOG2E)}, {hex(f2u(LOG2E))}')
        b(f's_mov_b32 {s(S_EPS)}, {hex(f2u(1e-6))}')
        b(f'v_mov_b32 {v(V_GA)}, {hex(GELU_A)}')
        b(f'v_lshlrev_b32 {v(V_L16)}, 4, {v(V_LANE)}')
        b(f'v_lshlrev_b32 {v(V_L8)}, 3, {v(V_LANE)}')
        frag_read_addrs(b, V_AR)
        b(f's_lshl_b32 {s(S_T0)}, {s(S_W)}, 12')
        b(f's_add_u32 {s(S_T1)}, {s(S_T0)}, {R1}')
        for kk in range(4):
            b(f'v_add_u32 {v(V_XRO + kk)}, {s(S_T1)}, {v(V_AR + kk)}')
        tr_addr(b, V_WR, False)
        b(f'v_xor_b32 {v(V_WR + 1)}, 64, {v(V_WR)}')
        srd(b, SRD_A, P_WSP, 2048 * 4096)
        dma4_voffsets(b, V_AD, 4096)
        b(f'v_lshlrev_b32 {v(V_TCH)}, 7, {v(V_LANE)}')
        b(f's_lshl_b32 {s(S_AS)}, {s(S_I)}, 18')
        b(f's_lshl_b32 {s(S_T0)}, {s(S_W)}, 10')
        b(f's_add_u32 {s(S_AS)}, {s(S_AS)}, {s(S_T0)}')
        srd(b, SRD_T, P_BSP, 4096)
        b(f's_and_b32 {s(S_T0)}, {s(S_W)}, 1')
        b(f's_lshl_b32 {s(S_T0)}, {s(S_T0)}, 6')
        b(f's_lshl_b32 {s(S_T1)}, {s(S_I)}, 7')
        b(f's_add_u32 {s(S_T0)}, {s(S_T0)}, {s(S_T1)}')
        b(f'v_and_b32 {v(V_T0)}, 31, {v(V_LANE)}')
        b(f'v_lshlrev_b32 {v(V_T0)}, 1, {v(V_T0)}')
        b(f'buffer_load_ushort {v(V_BSP)}, {v(V_T0)}, {s(SRD_T, 4)}, {s(S_T0)} offen')
        b(f's_lshl_b32 {s(S_T0)}, {s(S_CG)}, 7')
        b(f's_add_u32 {s(S_D2COL)}, {s(S_T0)}, 1024')
        b(f's_add_u32 {s(S_D3COL)}, {s(S_T0)}, 2048')
        b(f's_mov_b32 {s(S_D2SEL)}, 0')
        b(f's_mov_b32 {s(S_D3SEL)}, 0')
        b(f's_mov_b32 {s(S_D2MASK)}, 0')
        b(f's_mov_b32 {s(S_D3MASK)}, 0')
        b(f's_cmp_lt_u32 {s(S_CG)}, 8')
        b('s_cbranch_scc1 L_desc_done')
        b(f's_cmp_lt_u32 {s(S_CG)}, 11')
        b('s_cbranch_scc0 L_desc_cd')
        b(f's_sub_u32 {s(S_D2COL)}, {s(S_T0)}, 1024')
        b(f's_sub_u32 {s(S_D3COL)}, {s(S_T0)}, 1056')
        b(f's_mov_b32 {s(S_D3SEL)}, 1')
        b(f's_cmp_eq_u32 {s(S_CG)}, 8')
        b(f's_cselect_b32 {s(S_D3MASK)}, 32, 0')
        b('s_branch L_desc_done')
        b.label('L_desc_cd')
        b(f's_lshl_b32 {s(S_T1)}, {s(S_T0)}, 1')
        b(f's_sub_u32 {s(S_T1)}, {s(S_T1)}, 2464')
        b(f's_sub_u32 {s(S_T2)}, {s(S_T0)}, 672')
        b(f's_cmp_lt_u32 {s(S_CG)}, 14')
        b(f's_cselect_b32 {s(S_D2COL)}, {s(S_T1)}, {s(S_T2)}')
        b(f's_add_u32 {s(S_D3COL)}, {s(S_D2COL)}, 128')
        b(f's_mov_b32 {s(S_D2SEL)}, 1')
        b(f's_mov_b32 {s(S_D3SEL)}, 1')
        b.label('L_desc_done')
        for r in range(32):
            b(f'v_mov_b32 {v(V_ACC0 + r)}, 0')
        if not OPT.get('sym', 1):
            b(f's_cmp_eq_u32 {s(S_W)}, 3')
            b('s_cbranch_scc1 L_L1P')
        return b.b

    def prefetch_items(self):
        def touch(srdreg, mul, off=0):
            return [f's_mul_i32 {s(S_Q0)}, {s(S_WG)}, {mul}',
                    ('t', f'buffer_load_dword {v(V_DUM)}, {v(V_TCH)}, {s(srdreg, 4)}, {s(S_Q0)} offen offset:{off}', dict(nodst=True))]
        it = []
        pre = lambda ptr, n: [f's_mov_b32 {s(SRD_U)}, {s(ptr)}', f's_mov_b32 {s(SRD_U + 1)}, {s(ptr + 1)}',
                              f's_mov_b32 {s(SRD_U + 2)}, {hex(n)}', f's_mov_b32 {s(SRD_U + 3)}, 0x20000']
        it.append(pre(P_WQKV, 512 * 3072) + touch(SRD_U, 6144))
        it.append(pre(P_WIN, 512 * 2752) + touch(SRD_U, 5504))
        for k in range(4):
            it.append([f's_mul_i32 {s(S_Q0)}, {s(S_WG)}, 32768', f's_add_u32 {s(S_Q0)}, {s(S_Q0)}, {8192 * k}',
                       ('t', f'buffer_load_dword {v(V_DUM)}, {v(V_TCH)}, {s(SRD_A, 4)}, {s(S_Q0)} offen', dict(nodst=True))])
        it.append(pre(P_WOUT, 688 * 1024) + touch(SRD_U, 2752))
        it.append(pre(P_WO, 512 * 1024) + touch(SRD_U, 2048))
        return it

    def slab1(self, loader):
        b = St(self, 'L1L' if loader else 'L1P')
        if not loader:
            b.label('L_L1P')
            pf = self.prefetch_items() if OPT.get('pf', 1) else []
        n0 = b.mark()
        for c in range(8):
            if loader:
                b.wait_vm(f'x{c}')
            if c == 4:
                b(f'v_add_u32 {v(V_NON)}, {hex(NONCE_K)}, {v(V_E)}')
                b(f'v_readfirstlane_b32 {s(S_N)}, {v(V_NON)}')
            b.wait_lds()
            b('s_barrier')
            if OPT.get('l1st') and c in (0, 1, 2, 4, 6):
                stamp(b, {0: 13, 1: 14, 2: 15, 4: 19, 6: 22}[c])
            m5 = None
            if c <= 4:
                if OPT.get('sym', 1):
                    b.add(x_chunk_items(c + 3, f'x{c + 3}'))
                    b.add(w_piece_items(c + 3, R0, f'x{c + 3}'))
                elif loader:
                    b.add(l1_items(c + 2))
                    m5 = c + 2
                else:
                    b.add(pf[:2])
                    pf = pf[2:]
            else:
                if c == 5:
                    self.switch_slab(b, S_D2SEL, S_D2COL, S_D2MASK)
                for p in {5: (4, 5), 6: (6, 7), 7: ()}[c]:
                    b.add(w_piece_items(p, R2, 'w2'))
                if c == 7 and OPT.get('tch', 0) & 4:
                    self.w3_touch(b)
            b.pop(1)
            b.period = OPT.get('l1p', 6) if loader else 8
            for kk in range(4):
                K = 4 * c + kk
                b(f'ds_read_b128 {a(A_X + 4 * K, 4)}, {v(V_XRO + kk)}')
                wf = V_WF + 8 * (K & 3)
                for ch in range(2):
                    for t in range(2):
                        b(f'ds_read_b64_tr_b16 {v(wf + 4 * ch + 2 * t, 2)}, {v(V_WR + ch)} offset:{2048 * K + 512 * t}')
                if K >= 2:
                    self.mfma_pair_R(b, K - 2)
                if kk == 2 and m5 is not None:
                    b.flush()
                    l1_item5(self, b, m5)
                    b.add(l1_w_items(m5))
            b.flush()
            b.period = 0
            if c < 7:
                d = 16384 if (c + 1) % 4 != 0 else -49152
                for kk in range(4):
                    if d > 0:
                        b(f'v_add_u32 {v(V_XRO + kk)}, {d}, {v(V_XRO + kk)}')
                    else:
                        b(f'v_subrev_u32 {v(V_XRO + kk)}, {-d}, {v(V_XRO + kk)}')
        self.mfma_pair_R(b, 30)
        self.mfma_pair_R(b, 31)
        b.weave_from(n0, G=6)
        b.wait_lds()
        b('s_barrier')
        stamp(b, 1)
        b(f's_cmp_lt_u32 {s(S_CG)}, 8')
        b('s_cbranch_scc1 L_roleA')
        b(f's_cmp_lt_u32 {s(S_CG)}, 11')
        b('s_cbranch_scc1 L_roleB')
        b(f's_cmp_lt_u32 {s(S_CG)}, 14')
        b('s_cbranch_scc1 L_roleC')
        b('s_branch L_roleD')
        return b.b

    def switch_slab(self, b, sel, col, mask):
        with b.atomic():
            b(f's_cmp_eq_u32 {s(sel)}, 0')
            b(f's_mov_b32 {s(S_RS)}, 2752')
            b(f's_cmov_b32 {s(S_RS)}, 3072')
            b(f's_mov_b32 {s(S_COL)}, {s(col)}')
            b(f's_mov_b32 {s(S_MASK)}, {s(mask)}')
            set_w_srd(b, sel)
            wd_voffsets(b)

    def mfma_pair_R(self, b, K):
        wf = V_WF + 8 * (K & 3)
        for ch in range(2):
            acc = V_ACC0 + 16 * ch
            b(f'v_mfma_f32_32x32x16_bf16 {v(acc, 16)}, {v(wf + 4 * ch, 4)}, {a(A_X + 4 * K, 4)}, {v(acc, 16)}')

    def touch_setup(self, b):
        b(f'v_lshrrev_b32 {v(V_T0)}, 3, {v(V_LANE)}')
        b(f'v_lshlrev_b32 {v(V_T0)}, 12, {v(V_T0)}')
        b(f'v_and_b32 {v(V_T0 + 1)}, 7, {v(V_LANE)}')
        b(f'v_lshl_add_u32 {v(V_TCH)}, {v(V_T0 + 1)}, 7, {v(V_T0)}')
        b(f'v_lshlrev_b32 {v(V_TW1)}, 10, {v(V_LANE)}')
        b(f'v_mov_b32 {v(V_TW2)}, {v(V_TW1)}')
        b(f'v_mov_b32 {v(V_T0)}, {hex(OOB)}')
        b(f'v_cmp_lt_u32 vcc, 21, {v(V_LANE)}')
        b(f'v_cndmask_b32 {v(V_TW1)}, {v(V_TW1)}, {v(V_T0)}, vcc')
        b(f'v_cmp_lt_u32 vcc, 15, {v(V_LANE)}')
        b(f'v_cndmask_b32 {v(V_TW2)}, {v(V_TW2)}, {v(V_T0)}, vcc')
        srd(b, SRD_U, P_WOUT, 688 * 1024)
        srd(b, SRD_X, P_WO, 512 * 1024)

    def touch_items(self):
        T = OPT.get('tch', 0)
        it = []
        if T & 1:
            for k in range(2):
                it.append([f's_and_b32 {s(S_Q0)}, {s(S_J)}, 3',
                           f's_lshl_b32 {s(S_Q0)}, {s(S_Q0)}, 16',
                           f's_add_u32 {s(S_Q0)}, {s(S_Q0)}, {s(S_AS)}'] +
                          ([f's_add_u32 {s(S_Q0)}, {s(S_Q0)}, {8 * 4096}'] if k else []) +
                          [('t', f'buffer_load_dword {v(V_DUM)}, {v(V_TCH)}, {s(SRD_A, 4)}, {s(S_Q0)} offen', dict(nodst=True))])
        if T & 8:
            it.append([f's_lshl2_add_u32 {s(S_Q0)}, {s(S_WG)}, {s(S_W)}',
                       f's_lshl_b32 {s(S_Q0)}, {s(S_Q0)}, 13',
                       f'v_lshlrev_b32 {v(V_T0)}, 7, {v(V_LANE)}',
                       ('t', f'buffer_load_dword {v(V_DUM)}, {v(V_T0)}, {s(SRD_A, 4)}, {s(S_Q0)} offen', dict(nodst=True))])
        if T & 2:
            it.append([f's_lshr_b32 {s(S_Q0)}, {s(S_WG)}, 5',
                       f's_mul_i32 {s(S_Q1)}, {s(S_Q0)}, 86',
                       f's_mul_i32 {s(S_Q0)}, {s(S_W)}, 22',
                       f's_add_u32 {s(S_Q0)}, {s(S_Q0)}, {s(S_Q1)}',
                       f's_lshl_b32 {s(S_Q0)}, {s(S_Q0)}, 10',
                       f's_lshl_b32 {s(S_Q1)}, {s(S_J)}, 7',
                       f's_add_u32 {s(S_Q0)}, {s(S_Q0)}, {s(S_Q1)}',
                       ('t', f'buffer_load_dword {v(V_DUM)}, {v(V_TW1)}, {s(SRD_U, 4)}, {s(S_Q0)} offen', dict(nodst=True))])
            it.append([f's_lshr_b32 {s(S_Q0)}, {s(S_WG)}, 5',
                       f's_lshl_b32 {s(S_Q0)}, {s(S_Q0)}, 2',
                       f's_add_u32 {s(S_Q0)}, {s(S_Q0)}, {s(S_W)}',
                       f's_lshl_b32 {s(S_Q0)}, {s(S_Q0)}, 14',
                       f's_lshl_b32 {s(S_Q1)}, {s(S_J)}, 7',
                       f's_add_u32 {s(S_Q0)}, {s(S_Q0)}, {s(S_Q1)}',
                       ('t', f'buffer_load_dword {v(V_DUM)}, {v(V_TW2)}, {s(SRD_X, 4)}, {s(S_Q0)} offen', dict(nodst=True))])
        return it

    def w3_touch(self, b):
        with b.atomic():
            b(f's_cmp_eq_u32 {s(S_D3SEL)}, 0')
            b(f's_cselect_b32 {s(SRD_U)}, {s(P_WQKV)}, {s(P_WIN)}')
            b(f's_cselect_b32 {s(SRD_U + 1)}, {s(P_WQKV + 1)}, {s(P_WIN + 1)}')
            b(f's_mov_b32 {s(SRD_U + 2)}, {hex(512 * 2752)}')
            b(f's_cmov_b32 {s(SRD_U + 2)}, {hex(512 * 3072)}')
            b(f's_mov_b32 {s(SRD_U + 3)}, 0x20000')
            b(f's_mov_b32 {s(S_T0)}, 2752')
            b(f's_cmov_b32 {s(S_T0)}, 3072')
            b(f'v_and_b32 {v(V_T0)}, 15, {v(V_LANE)}')
            b(f'v_mul_lo_u32 {v(V_T0)}, {v(V_T0)}, {s(S_T0)}')
            b(f'v_bfe_u32 {v(V_T0 + 1)}, {v(V_LANE)}, 4, 1')
            b(f'v_mul_u32_u24 {v(V_T0 + 1)}, 124, {v(V_T0 + 1)}')
            b(f'v_add_u32 {v(V_T0)}, {v(V_T0)}, {v(V_T0 + 1)}')
            b(f's_max_i32 {s(S_T1)}, {s(S_D3COL)}, 0')
            b(f'v_add_u32 {v(V_T0)}, {s(S_T1)}, {v(V_T0)}')
            b(f'v_mov_b32 {v(V_T0 + 1)}, {hex(OOB)}')
            b(f'v_cmp_lt_u32 vcc, 31, {v(V_LANE)}')
            b(f'v_cndmask_b32 {v(V_T0)}, {v(V_T0)}, {v(V_T0 + 1)}, vcc')
            b(f's_lshr_b32 {s(S_T1)}, {s(S_WG)}, 5')
            b(f's_lshl2_add_u32 {s(S_T1)}, {s(S_T1)}, {s(S_W)}')
            b(f's_lshl_b32 {s(S_T1)}, {s(S_T1)}, 4')
            b(f's_mul_i32 {s(S_T1)}, {s(S_T1)}, {s(S_T0)}')
            b(f'buffer_load_dword {v(V_DUM)}, {v(V_T0)}, {s(SRD_U, 4)}, {s(S_T1)} offen', tag='t', nodst=True)

    def post_l1(self, b, role):
        it = []
        self.touch_setup(b)
        for p in (0, 1, 2, 3):
            it += w_piece_items(p, R2, 'w2')
        it += self.touch_items()
        if OPT.get('c0early', 1) == 1:
            it += a_chunk_items(0, 'f0')
        return it

    def w3_items(self, b, region=R0):
        b.flush()
        self.switch_slab(b, S_D3SEL, S_D3COL, S_D3MASK)
        for p in range(8):
            b.add(w_piece_items(p, region, 'w3'))
        if OPT.get('c0early', 1) == 2:
            b.add(a_chunk_items(0, 'f0'))

    def set_wr(self, b, region):
        with b.atomic():
            tr_addr(b, V_WR, False)
            if region:
                b(f'v_add_u32 {v(V_WR)}, {region}, {v(V_WR)}')
            b(f'v_xor_b32 {v(V_WR + 1)}, 64, {v(V_WR)}')

    def main_loop(self, b, orient, hooks=None, pop_every=1):
        hooks = hooks or {}
        D = 2

        def rd(K):
            wf = V_WF + 8 * (K & 3)
            for ch in range(2):
                for t in range(2):
                    b(f'ds_read_b64_tr_b16 {v(wf + 4 * ch + 2 * t, 2)}, {v(V_WR + ch)} offset:{2048 * K + 512 * t}')
        sv = b.period
        b.period = 0
        n0 = b.mark()
        for K in range(D):
            rd(K)
        for K in range(32):
            if K + D < 32:
                rd(K + D)
            wf = V_WF + 8 * (K & 3)
            x = a(A_X + 4 * K, 4)
            for ch in range(2):
                acc = V_ACC1 + 16 * ch
                c = '0' if K == 0 else v(acc, 16)
                if orient == 'T':
                    b(f'v_mfma_f32_32x32x16_bf16 {v(acc, 16)}, {v(wf + 4 * ch, 4)}, {x}, {c}')
                else:
                    b(f'v_mfma_f32_32x32x16_bf16 {v(acc, 16)}, {x}, {v(wf + 4 * ch, 4)}, {c}')
            for fn in hooks.get(K, []):
                fn(b, 4 if K + D < 32 else 0)
            if OPT.get('s3st') and self.s3flag and K in (7, 15, 19, 23, 27):
                stamp(b, {7: 11, 15: 13, 19: 15, 23: 19, 27: 22}[K])
            if K % pop_every == pop_every - 1:
                b.pop(1)
        b.weave_from(n0, G=5)
        b.period = sv

    def apipe_hooks(self, first_K, step):
        hooks = {}

        def mk_issue(p):
            return lambda b, younger: b.add(a_piece_items(p >> 1, p & 1, f'h{p & 1}'))

        def mk_move(p):
            def f(b, younger):
                b.ensure(f'a{p >> 1}_{p & 1}')
                b.wait_vm(f'a{p >> 1}_{p & 1}')
                a_piece_read(b, p >> 1, p & 1, f'h{p & 1}')
            return f

        def mk_refill(p):
            def f(b, younger):
                b(f's_waitcnt lgkmcnt({younger})')
                b.add(a_piece_items(p >> 1, p & 1, f'h{p & 1}'))
            return f
        return hooks, mk_issue, mk_move, mk_refill

    def z2_epilogue(self, b, mid=None):
        for g in range(4):
            gelu_group(b, [V_ACC0 + 8 * g + k for k in range(8)], V_TMP)
            if g == 0 and mid:
                mid()
        s1, s2 = V_ST, V_ST + 1
        t = V_TMP
        b(f'v_add_f32 {v(s1)}, {v(V_ACC0)}, {v(V_ACC0 + 1)}')
        b(f'v_mul_f32 {v(s2)}, {v(V_ACC0)}, {v(V_ACC0)}')
        b(f'v_add_f32 {v(t)}, {v(V_ACC0 + 2)}, {v(V_ACC0 + 3)}')
        b(f'v_mul_f32 {v(t + 1)}, {v(V_ACC0 + 1)}, {v(V_ACC0 + 1)}')
        for k in range(4, 32, 2):
            b(f'v_add_f32 {v(s1)}, {v(s1)}, {v(V_ACC0 + k)}')
            b(f'v_add_f32 {v(t)}, {v(t)}, {v(V_ACC0 + k + 1)}')
        for k in range(2, 32, 2):
            b(f'v_fmac_f32 {v(s2)}, {v(V_ACC0 + k)}, {v(V_ACC0 + k)}')
            b(f'v_fmac_f32 {v(t + 1)}, {v(V_ACC0 + k + 1)}, {v(V_ACC0 + k + 1)}')
        with b.atomic():
            b(f'v_add_f32 {v(s1)}, {v(s1)}, {v(t)}')
            b(f'v_add_f32 {v(s2)}, {v(s2)}, {v(t + 1)}')
            b(f'v_permlane32_swap_b32 {v(s1)}, {v(s2)}')
            b(f'v_add_f32 {v(s1)}, {v(s1)}, {v(s2)}')
            b(f'v_mov_b32 {v(s2)}, {s(S_N)}')
            b(f's_mul_i32 {s(S_T0)}, {s(S_TB)}, 5632')
            b(f's_lshl_b32 {s(S_T1)}, {s(S_CG)}, 9')
            b(f's_add_u32 {s(S_T0)}, {s(S_T0)}, {s(S_T1)}')
            b(f's_add_u32 {s(S_T0)}, {s(S_T0)}, {WS_STATS}')
            b(f'buffer_store_dwordx2 {v(s1, 2)}, {v(V_L8)}, {s(SRD_WS, 4)}, {s(S_T0)} offen sc1', tag='st')
        stamp(b, 2)

    def stats_issue(self, b):
        with b.atomic():
            b(f's_mul_i32 {s(S_T5)}, {s(S_TB)}, 5632')
            b(f's_add_u32 {s(S_T5)}, {s(S_T5)}, {WS_STATS}')
            b(f's_add_u32 {s(S_T4)}, {s(S_T5)}, 4096')
            for js in range(11):
                so = S_T5 if js < 8 else S_T4
                off = 512 * js if js < 8 else 512 * js - 4096
                b(f'buffer_load_dwordx2 {v(V_STAT + 2 * js, 2)}, {v(V_L8)}, {s(SRD_WS, 4)}, {s(so)} offen offset:{off} sc1')

    def stats_check_code(self, b):
        t = V_TMP
        b(f'v_min3_u32 {v(t)}, {v(V_STAT + 1)}, {v(V_STAT + 3)}, {v(V_STAT + 5)}')
        b(f'v_max3_u32 {v(t + 1)}, {v(V_STAT + 1)}, {v(V_STAT + 3)}, {v(V_STAT + 5)}')
        for js in range(3, 11, 2):
            b(f'v_min3_u32 {v(t)}, {v(t)}, {v(V_STAT + 2 * js + 1)}, {v(V_STAT + 2 * js + 3)}')
            b(f'v_max3_u32 {v(t + 1)}, {v(t + 1)}, {v(V_STAT + 2 * js + 1)}, {v(V_STAT + 2 * js + 3)}')
        b(f'v_xor_b32 {v(t)}, {s(S_N)}, {v(t)}')
        b(f'v_xor_b32 {v(t + 1)}, {s(S_N)}, {v(t + 1)}')
        b(f'v_or_b32 {v(t)}, {v(t)}, {v(t + 1)}')
        b(f'v_cmp_ne_u32 vcc, 0, {v(t)}')

    def z2_norm(self, b, after_check=None):
        cont, slow = self.lab('ZC'), self.lab('ZS')
        with b.atomic():
            self.stats_check_code(b)
            b(f's_cbranch_vccnz {slow}')
            b.label(cont)
        if after_check:
            after_check()
        sb = Block('tmp')
        sb(f's_sleep 1')
        sb(f's_mul_i32 {s(S_T5)}, {s(S_TB)}, 5632')
        sb(f's_add_u32 {s(S_T5)}, {s(S_T5)}, {WS_STATS}')
        sb(f's_add_u32 {s(S_T4)}, {s(S_T5)}, 4096')
        for js in range(11):
            so = S_T5 if js < 8 else S_T4
            off = 512 * js if js < 8 else 512 * js - 4096
            sb(f'buffer_load_dwordx2 {v(V_STAT + 2 * js, 2)}, {v(V_L8)}, {s(SRD_WS, 4)}, {s(so)} offen offset:{off} sc1')
        sb('s_waitcnt vmcnt(0)')
        self.stats_check_code(sb)
        txt = '\n'.join('    ' + i.text for i in sb.ins)
        self.slow.append(f'''{slow}:
    s_mov_b32 {s(S_CNT)}, {SPIN_MAX}
{slow}_l:
{txt}
{slow_mark(30)}    s_cbranch_vccz {cont}
    s_sub_u32 {s(S_CNT)}, {s(S_CNT)}, 1
    s_cmp_lg_u32 {s(S_CNT)}, 0
    s_cbranch_scc1 {slow}_l
    s_branch {cont}''')
        t = V_TMP
        b(f'v_add_f32 {v(t)}, {v(V_STAT)}, {v(V_STAT + 2)}')
        b(f'v_add_f32 {v(t + 1)}, {v(V_STAT + 4)}, {v(V_STAT + 6)}')
        for js in range(4, 11, 2):
            b(f'v_add_f32 {v(t)}, {v(t)}, {v(V_STAT + 2 * js)}')
            if js + 1 < 11:
                b(f'v_add_f32 {v(t + 1)}, {v(t + 1)}, {v(V_STAT + 2 * js + 2)}')
        b(f'v_add_f32 {v(t)}, {v(t)}, {v(t + 1)}')
        b(f'v_mov_b32 {v(t + 1)}, {v(t)}')
        b(f'v_permlane32_swap_b32 {v(t)}, {v(t + 1)}')
        b(f'v_mul_f32 {v(t)}, {hex(f2u(1.0 / 688))}, {v(t)}')
        b(f'v_mul_f32 {v(t + 1)}, {hex(f2u(1.0 / 688))}, {v(t + 1)}')
        b(f'v_fma_f32 {v(t + 1)}, -{v(t)}, {v(t)}, {v(t + 1)}')
        b(f'v_max_f32 {v(t + 1)}, 0, {v(t + 1)}')
        b(f'v_add_f32 {v(t + 1)}, {hex(f2u(1e-5))}, {v(t + 1)}')
        b(f'v_rsq_f32 {v(t + 1)}, {v(t + 1)}')
        b(f'v_mul_f32 {v(t)}, {v(t)}, {v(t + 1)}')
        b(f'v_sub_f32 {v(t)}, 0, {v(t)}')
        w0 = t + 2
        r0 = t + 6
        with b.atomic():
            b(f's_lshl_b32 {s(S_T0)}, {s(S_W)}, 14')
            b(f's_add_u32 {s(S_T0)}, {s(S_T0)}, {(R0 + 8192) if OPT.get("aplan", 3) == 3 else (R2 + 8192)}')
            b(f'v_and_b32 {v(w0)}, 31, {v(V_LANE)}')
            b(f'v_lshrrev_b32 {v(w0 + 1)}, 5, {v(V_LANE)}')
            b(f'v_and_b32 {v(w0 + 2)}, 15, {v(V_LANE)}')
            b(f'v_xor_b32 {v(w0 + 1)}, {v(w0 + 1)}, {v(w0 + 2)}')
            b(f'v_lshlrev_b32 {v(w0 + 1)}, 3, {v(w0 + 1)}')
            b(f'v_lshl_add_u32 {v(w0)}, {v(w0)}, 7, {v(w0 + 1)}')
            b(f'v_add_u32 {v(w0)}, {s(S_T0)}, {v(w0)}')
            b(f'v_bfe_u32 {v(r0)}, {v(V_LANE)}, 2, 2')
            b(f'v_lshrrev_b32 {v(r0 + 1)}, 5, {v(V_LANE)}')
            b(f'v_lshl_add_u32 {v(r0)}, {v(r0 + 1)}, 3, {v(r0)}')
            b(f'v_bfe_u32 {v(r0 + 1)}, {v(V_LANE)}, 4, 1')
            b(f'v_and_b32 {v(r0 + 2)}, 3, {v(V_LANE)}')
            b(f'v_lshl_add_u32 {v(r0 + 1)}, {v(r0 + 1)}, 2, {v(r0 + 2)}')
            b(f'v_xor_b32 {v(r0 + 1)}, {v(r0 + 1)}, {v(r0)}')
            b(f'v_lshlrev_b32 {v(r0 + 1)}, 3, {v(r0 + 1)}')
            b(f'v_lshl_add_u32 {v(r0)}, {v(r0)}, 7, {v(r0 + 1)}')
            b(f'v_add_u32 {v(r0)}, {s(S_T0)}, {v(r0)}')
        ra = r0 + 1
        for bb in range(2):
            for tt in range(2):
                b(f'v_xor_b32 {v(ra + 2 * bb + tt)}, {8 * ((8 * bb) ^ (4 * tt))}, {v(r0)}')
        pk = V_PV
        for bb in range(2):
            for j in range(4):
                r = V_ACC0 + 16 * bb + 4 * j
                for k in range(4):
                    b(f'v_fma_f32 {v(r + k)}, {v(r + k)}, {v(t + 1)}, {v(t)}')
                b(f'v_cvt_pk_bf16_f32 {v(pk + 8 * bb + 2 * j)}, {v(r)}, {v(r + 1)}')
                b(f'v_cvt_pk_bf16_f32 {v(pk + 8 * bb + 2 * j + 1)}, {v(r + 2)}, {v(r + 3)}')
                K = 8 * bb + 2 * j
                if K:
                    b(f'v_xor_b32 {v(w0 + 1)}, {8 * K}, {v(w0)}')
                    ad = w0 + 1
                else:
                    ad = w0
                b(f'ds_write_b64 {v(ad)}, {v(pk + 8 * bb + 2 * j, 2)}')
        b.wait_lds()
        fr = V_TMP + 16
        for bb in range(2):
            for kq in range(2):
                for tt in range(2):
                    b(f'ds_read_b64_tr_b16 {v(fr + 8 * bb + 4 * kq + 2 * tt, 2)}, {v(ra + 2 * bb + tt)} offset:{512 * tt + 2048 * kq}')
        with b.atomic():
            b(f's_lshl_b32 {s(S_T0)}, {s(S_CG)}, 18')
            b(f's_lshl_b32 {s(S_T1)}, {s(S_TB)}, 11')
            b(f's_add_u32 {s(S_T0)}, {s(S_T0)}, {s(S_T1)}')
            b(f's_add_u32 {s(S_T0)}, {s(S_T0)}, {WS_Z2N}')
            b(f's_add_u32 {s(S_T1)}, {s(S_T0)}, {128 * 1024}')
            for bb in range(2):
                for kq in range(2):
                    so = S_T0 if bb == 0 else S_T1
                    b(f'buffer_store_dwordx4 {v(fr + 8 * bb + 4 * kq, 4)}, {v(V_L16)}, {s(SRD_WS, 4)}, {s(so)} offen offset:{1024 * kq} sc1', tag='z2n')
        stamp(b, 3)

    def flag_store(self, b, base, tagwait):
        b.wait_vm(tagwait)
        with b.atomic():
            b(f's_lshl4_add_u32 {s(S_T0)}, {s(S_RB)}, {s(S_CG)}')
            b(f's_lshl4_add_u32 {s(S_T0)}, {s(S_T0)}, {s(S_W)}')
            b(f's_lshl_b32 {s(S_T0)}, {s(S_T0)}, 2')
            b(f's_add_u32 {s(S_T0)}, {s(S_T0)}, {base}')
            b(f'v_mov_b32 {v(V_POLL)}, {s(S_N)}')
            b(f'buffer_store_dword {v(V_POLL)}, off, {s(SRD_WS, 4)}, {s(S_T0)} sc1', tag='flag')

    def t_epilogue(self, b, kind, acc, mid=None, midg=1):
        out = V_PV
        for g in range(4):
            if g == midg and mid:
                mid()
            xs = [acc + 8 * g + k for k in range(8)]
            if kind == 'gelu':
                gelu_group(b, xs, V_TMP)
            else:
                phi_group(b, xs, V_TMP)
            for k in range(4):
                b(f'v_cvt_pk_bf16_f32 {v(out + 4 * g + k)}, {v(xs[2 * k])}, {v(xs[2 * k + 1])}')
            so = S_O0 if g < 2 else S_O1
            b(f'buffer_store_dwordx4 {v(out + 4 * g, 4)}, {v(V_L16)}, {s(SRD_WS, 4)}, {s(so)} offen offset:{1024 * (g & 1)} sc1', tag='p1')

    def set_out_addr(self, b, kind, slab_code):
        with b.atomic():
            for l in slab_code:
                b(l)
            base, stride = (WS_PQ, 32768) if kind == 'q' else (WS_Z1F, 45056)
            b(f's_lshl_b32 {s(S_T4)}, {s(S_T4)}, 12')
            b(f's_add_u32 {s(S_T4)}, {s(S_T4)}, {base}')
            b(f's_mul_i32 {s(S_O0)}, {s(S_TB)}, {stride}')
            b(f's_add_u32 {s(S_O0)}, {s(S_O0)}, {s(S_T4)}')
            b(f's_add_u32 {s(S_O1)}, {s(S_O0)}, 2048')

    def k_epilogue(self, b):
        for g in range(4):
            xs = [V_ACC1 + 8 * g + k for k in range(8)]
            phi_group(b, xs, V_TMP)
            for k in range(4):
                b(f'v_cvt_pk_bf16_f32 {v(V_PK + 4 * g + k)}, {v(xs[2 * k])}, {v(xs[2 * k + 1])}')

    def v_epilogue(self, b):
        for k in range(16):
            b(f'v_cvt_pk_bf16_f32 {v(V_PV + k)}, {v(V_ACC1 + 2 * k)}, {v(V_ACC1 + 2 * k + 1)}')
        ones = V_TMP
        for k in range(4):
            b(f'v_mov_b32 {v(ones + k)}, 0x3f803f80')
        for par in range(2):
            for ch in range(2):
                g = 2 * ch + par
                kv, zz = V_KV + 16 * ch, V_KZ + 16 * ch
                c0 = '0' if par == 0 else v(kv, 16)
                c1 = '0' if par == 0 else v(zz, 16)
                b(f'v_mfma_f32_32x32x16_bf16 {v(kv, 16)}, {v(V_PK + 4 * g, 4)}, {v(V_PV + 4 * g, 4)}, {c0}')
                b(f'v_mfma_f32_32x32x16_bf16 {v(zz, 16)}, {v(V_PK + 4 * g, 4)}, {v(ones, 4)}, {c1}')

    def kv_finish(self, b, R0=R0):
        with b.atomic():
            b(f'v_and_b32 {v(V_T0)}, 31, {v(V_LANE)}')
            b(f'v_cmp_gt_u32 vcc, 16, {v(V_T0)}')
            for ch in range(2):
                kv, zz = V_KV + 16 * ch, V_KZ + 16 * ch
                for k in range(8):
                    b(f'v_cndmask_b32 {v(kv + k)}, {v(zz + k)}, {v(kv + k)}, vcc')
                for k in range(8, 16):
                    b(f'v_cndmask_b32 {v(kv + k)}, {v(kv + k)}, {v(zz + k)}, vcc')
            b('s_barrier')
            b(f's_lshl_b32 {s(S_T0)}, {s(S_W)}, 11')
            b(f's_add_u32 {s(S_T0)}, {s(S_T0)}, {R0}')
            b(f'v_add_u32 {v(V_T0)}, {s(S_T0)}, {v(V_L16)}')
            for d in range(4):
                for q in range(2):
                    b(f'ds_write_b128 {v(V_T0)}, {v(V_KV + 8 * d + 4 * q, 4)} offset:{8192 * d + 1024 * q}')
            b(f's_lshl_b32 {s(S_T0)}, {s(S_W)}, 13')
            b(f's_add_u32 {s(S_T0)}, {s(S_T0)}, {R0}')
            b(f'v_add_u32 {v(V_T0)}, {s(S_T0)}, {v(V_L16)}')
            b.wait_lds()
            b('s_barrier')
            X = V_KZ
            for src in range(4):
                for q in range(2):
                    b(f'ds_read_b128 {v(X + 8 * src + 4 * q, 4)}, {v(V_T0)} offset:{2048 * src + 1024 * q}')
            for k in range(8):
                b(f'v_add_f32 {v(X + k)}, {v(X + k)}, {v(X + 8 + k)}')
                b(f'v_add_f32 {v(X + 16 + k)}, {v(X + 16 + k)}, {v(X + 24 + k)}')
            for k in range(8):
                b(f'v_add_f32 {v(X + k)}, {v(X + k)}, {v(X + 16 + k)}')
            b(f's_lshl2_add_u32 {s(S_T0)}, {s(S_CG)}, {s(S_W)}')
            b(f's_lshl_b32 {s(S_T0)}, {s(S_T0)}, 15')
            b(f's_lshl_b32 {s(S_T1)}, {s(S_RB)}, 10')
            b(f's_add_u32 {s(S_T0)}, {s(S_T0)}, {s(S_T1)}')
            b(f's_add_u32 {s(S_T0)}, {s(S_T0)}, {WS_KVP}')
            for q in range(2):
                if q:
                    b(f's_add_u32 {s(S_T0)}, {s(S_T0)}, 16384')
                b(f'buffer_store_dwordx4 {v(X + 4 * q, 4)}, {v(V_L16)}, {s(SRD_WS, 4)}, {s(S_T0)} offen sc1', tag='p1')

    def pre_slab(self, b, tag):
        b.ensure(tag)
        b.wait_vm(tag)
        b('s_barrier')

    def mv_piece(self, b, p):
        b.ensure(f'a{p >> 1}_{p & 1}')
        b.wait_vm(f'a{p >> 1}_{p & 1}')
        a_piece_read(b, p >> 1, p & 1, f'h{p & 1}')

    def fetch_piece(self, b, p):
        b.add(a_piece_items(p >> 1, p & 1, f'h{p & 1}'))

    def mv_chunk(self, b, c, slot):
        b.ensure(f'a{c}_0')
        b.ensure(f'a{c}_1')
        b.wait_vm([f'a{c}_0', f'a{c}_1'])
        a_chunk_read(b, c, slot)

    def slab3_hooks(self, extra=None):
        h = {}

        def add(K, fn):
            h.setdefault(K, []).append(fn)
        K0 = OPT.get('k0', 20)
        if OPT.get('aplan', 3) == 2:
            for K, fn in (extra or {}).items():
                add(K, fn)
            return h
        add(K0, lambda b, y: self.mv_chunk(b, 0, 'f0'))
        add(K0 + 1, lambda b, y: (b(f's_waitcnt lgkmcnt({y})'), b.add(a_chunk_items(3, 'f0'))))
        add(K0 + 4, lambda b, y: self.mv_chunk(b, 1, 'f1'))
        add(K0 + 5, lambda b, y: (b(f's_waitcnt lgkmcnt({y})'), b.add(a_chunk_items(4, 'f1'))))
        add(K0 + 8, lambda b, y: self.mv_chunk(b, 2, 'f2'))
        add(K0 + 9, lambda b, y: (b(f's_waitcnt lgkmcnt({y})'), b.add(a_chunk_items(5, 'f2'))))
        for K, fn in (extra or {}).items():
            add(K, fn)
        return h

    def mid_a(self, b):
        if OPT.get('aplan', 3) == 2:
            return
        if not OPT.get('c0early', 1):
            b.add(a_chunk_items(0, 'f0'))
        b.add(a_chunk_items(1, 'f1'))

    def mid_b(self, b):
        pass

    def g_pass(self, b, R0=R0, hooks3=None):
        ga = V_T0 + 4
        b.wait_vm('gw')
        with b.atomic():
            b(f'v_lshrrev_b32 {v(ga)}, 5, {v(V_LANE)}')
            b(f'v_lshlrev_b32 {v(ga)}, 4, {v(ga)}')
            b(f's_lshl_b32 {s(S_T0)}, {s(S_W)}, 10')
            b(f's_add_u32 {s(S_T0)}, {s(S_T0)}, {R0}')
            b(f'v_add_u32 {v(ga)}, {s(S_T0)}, {v(ga)}')
        acc = V_ACC1
        sv = b.period
        b.period = 0
        hooks = hooks3 if hooks3 is not None else self.slab3_hooks()
        for K in range(32):
            wf = V_WF + 4 * (K & 3)
            if K == 0:
                for k2 in range(3):
                    b(f'ds_read_b128 {v(V_WF + 4 * k2, 4)}, {v(ga)} offset:{32 * k2}')
            if K + 3 < 32:
                b(f'ds_read_b128 {v(V_WF + 4 * ((K + 3) & 3), 4)}, {v(ga)} offset:{32 * (K + 3)}')
            b(f'v_mfma_f32_32x32x16_bf16 {v(acc, 16)}, {v(wf, 4)}, {a(A_X + 4 * K, 4)}, {"0" if K == 0 else v(acc, 16)}')
            for fn in hooks.get(K, []):
                fn(b, 1 if K + 3 < 32 else 0)
            b.pop(1)
        b.period = sv
        t = V_TMP
        b(f'v_mul_f32 {v(t)}, {hex(f2u(-LOG2E))}, {v(acc)}')
        b(f'v_exp_f32 {v(t)}, {v(t)}')
        b(f'v_add_f32 {v(t)}, 1.0, {v(t)}')
        b(f'v_rcp_f32 {v(t)}, {v(t)}')
        with b.atomic():
            b(f'v_and_b32 {v(t + 1)}, 31, {v(V_LANE)}')
            b(f'v_lshlrev_b32 {v(t + 1)}, 2, {v(t + 1)}')
            b(f's_lshl_b32 {s(S_T0)}, {s(S_TB)}, 7')
            b(f's_add_u32 {s(S_T0)}, {s(S_T0)}, {WS_GATE}')
            b(f'buffer_store_dword {v(t)}, {v(t + 1)}, {s(SRD_WS, 4)}, {s(S_T0)} offen sc1', tag='p1')

    def pre_epi3(self, b):
        if OPT.get('aplan', 3) == 2:
            b.add(a_chunk_items(1, 'f1'))
            b.add(a_chunk_items(2, 'f2'))

    def a_tail(self, b):
        b.flush()
        self.flag_store(b, WS_FP1, 'p1')

    def role_AB(self, role):
        b = St(self, 'ROLE' + role)
        b.label('L_role' + role)
        b.add(self.post_l1(b, role))
        orient = 'N' if role == 'A' else 'T'
        if OPT.get('w3z', 0):
            b.period = 9
            self.z2_epilogue(b, mid=lambda: self.w3_items(b))
            self.pre_slab(b, 'w2')
            self.set_wr(b, R2)
            stamp(b, 16)
            self.main_loop(b, orient, pop_every=1)
        else:
            b.period = 14
            self.z2_epilogue(b)
            self.pre_slab(b, 'w2')
            self.set_wr(b, R2)
            stamp(b, 16)
            self.w3_items(b)
            self.s3flag = (OPT.get('s3st') == 2)
            self.main_loop(b, orient, pop_every=1)
            self.s3flag = False
        stamp(b, 17)
        b.flush()
        b('s_barrier')
        self.stats_issue(b)
        b.period = 12
        if role == 'A':
            self.k_epilogue(b)
        else:
            self.set_out_addr(b, 'q', [f's_sub_u32 {s(S_T4)}, {s(S_CG)}, 8'])
            self.t_epilogue(b, 'phi', V_ACC1)
        stamp(b, 18)
        if OPT.get('aearly', 0):
            b.period = 7
            self.z2_norm(b, after_check=lambda: self.mid_a(b))
        else:
            self.z2_norm(b)
            self.mid_a(b)
        if OPT.get('aplan', 3) != 2:
            b.add(a_chunk_items(2, 'f2'))
        self.mid_b(b)
        self.pre_slab(b, 'w3')
        self.set_wr(b, R0)
        stamp(b, 20)
        hooks = self.slab3_hooks({OPT.get('kz', 12): lambda bb, y: self.flag_store(bb, WS_FZ2, 'z2n')})
        self.s3flag = (OPT.get('s3st') == 3)
        self.main_loop(b, orient, hooks)
        self.s3flag = False
        stamp(b, 21)
        b.period = 8
        late = OPT.get('s1late', 1)
        if not late:
            s1_issue(self, b)
        self.pre_epi3(b)
        if role == 'A':
            self.v_epilogue(b)
            if late:
                s1_issue(self, b)
            self.kv_finish(b)
        else:
            self.set_out_addr(b, 'z1', [f's_sub_u32 {s(S_T4)}, {s(S_CG)}, 8'])
            self.t_epilogue(b, 'gelu', V_ACC1, mid=(lambda: s1_issue(self, b)) if late else None, midg=2)
        stamp(b, 23)
        self.a_tail(b)
        b('s_branch L_p1_done')
        return b.b

    def p3_slab2_hooks(self):
        h = {}

        def add(K, fn):
            h.setdefault(K, []).append(fn)
        add(0, lambda b, y: (b.add(a_chunk_items(1, 'g1')), b.add(a_chunk_items(2, 'g2'))))
        k0, k1, k2 = OPT.get('m0', 12), OPT.get('m1', 26), OPT.get('m2', 99)
        add(k0, lambda b, y: self.mv_chunk(b, 0, 'f0'))
        add(k0 + 1, lambda b, y: (b(f's_waitcnt lgkmcnt({y})'), b.add(a_chunk_items(3, 'f0'))))
        if k1 < 32:
            add(k1, lambda b, y: self.mv_chunk(b, 1, 'g1'))
        if k2 < 32:
            add(k2, lambda b, y: self.mv_chunk(b, 2, 'g2'))
        return h

    def p3_late_moves(self, b):
        if OPT.get('m1', 26) >= 32:
            self.mv_chunk(b, 1, 'g1')
        if OPT.get('m2', 99) >= 32:
            self.mv_chunk(b, 2, 'g2')

    def p3_slab3_hooks(self, extra=None):
        h = {}

        def add(K, fn):
            h.setdefault(K, []).append(fn)
        add(14, lambda b, y: self.mv_chunk(b, 4, 'f0'))
        add(15, lambda b, y: (b(f's_waitcnt lgkmcnt({y})'), b.add(a_chunk_items(7, 'f0'))))
        add(22, lambda b, y: self.mv_chunk(b, 5, 'g1'))
        add(30, lambda b, y: self.mv_chunk(b, 6, 'g2'))
        for K, fn in (extra or {}).items():
            add(K, fn)
        return h

    def p3_mid(self, b):
        self.mv_chunk(b, 3, 'f0')
        b.wait_lds()
        b.add(a_chunk_items(4, 'f0'))
        b.add(a_chunk_items(5, 'g1'))
        b.add(a_chunk_items(6, 'g2'))

    def p3_tail(self, b):
        b.flush()
        self.flag_store(b, WS_FP1, 'p1')
        self.mv_chunk(b, 7, 'f0')
        b.wait_lds()

    def role3(self, role):
        b = St(self, 'ROLE' + role)
        b.label('L_role' + role)
        z2 = role in 'AB'
        orient = 'N' if role == 'A' else 'T'
        b.add(self.post_l1(b, role))
        if z2:
            b.period = 14
            self.z2_epilogue(b)
        else:
            b.period = 8
            self.set_out_addr(b, 'q', [f's_sub_u32 {s(S_T4)}, {s(S_CG)}, 8'])
            self.t_epilogue(b, 'phi', V_ACC0)
        self.pre_slab(b, 'w2')
        self.set_wr(b, R2)
        b.flush()
        stamp(b, 16)
        self.main_loop(b, orient, self.p3_slab2_hooks())
        stamp(b, 17)
        b.flush()
        b('s_barrier')
        if z2:
            self.stats_issue(b)
        if role != 'D':
            self.w3_items(b, R2)
        else:
            srd(b, SRD_T, P_GW, 1024)
            b(f's_lshl_b32 {s(S_T0)}, {s(S_W)}, 10')
            b(f's_add_u32 m0, {s(S_T0)}, {R2}')
            b(f's_lshl_b32 {s(S_T0)}, {s(S_ROT)}, 7')
            b(f'v_add_u32 {v(V_T0)}, {s(S_T0)}, {v(V_L16)}')
            b(f'v_and_b32 {v(V_T0)}, 1023, {v(V_T0)}')
            b(f'buffer_load_dwordx4 {v(V_T0)}, {s(SRD_T, 4)}, 0 offen lds', tag='gw')
        b.period = OPT.get('p3p', 12)
        if role == 'A':
            self.k_epilogue(b)
        elif role == 'B':
            self.set_out_addr(b, 'q', [f's_sub_u32 {s(S_T4)}, {s(S_CG)}, 8'])
            self.t_epilogue(b, 'phi', V_ACC1)
        elif role == 'C':
            self.set_out_addr(b, 'z1', [f's_lshl_b32 {s(S_T4)}, {s(S_CG)}, 1', f's_sub_u32 {s(S_T4)}, {s(S_T4)}, 19'])
            self.t_epilogue(b, 'gelu', V_ACC1)
        else:
            self.set_out_addr(b, 'z1', [f's_sub_u32 {s(S_T4)}, {s(S_CG)}, 5'])
            self.t_epilogue(b, 'gelu', V_ACC1)
        stamp(b, 18)
        self.p3_late_moves(b)
        if z2:
            self.z2_norm(b)
        self.p3_mid(b)
        if role != 'D':
            self.pre_slab(b, 'w3')
            stamp(b, 20)
            extra = {OPT.get('kz', 12): lambda bb, y: self.flag_store(bb, WS_FZ2, 'z2n')} if z2 else None
            self.main_loop(b, orient, self.p3_slab3_hooks(extra))
            stamp(b, 21)
            b.period = 8
            if role == 'A':
                self.v_epilogue(b)
                s1_issue(self, b)
                self.kv_finish(b, R2)
            elif role == 'B':
                self.set_out_addr(b, 'z1', [f's_sub_u32 {s(S_T4)}, {s(S_CG)}, 8'])
                self.t_epilogue(b, 'gelu', V_ACC1, mid=lambda: s1_issue(self, b), midg=2)
            else:
                self.set_out_addr(b, 'z1', [f's_lshl_b32 {s(S_T4)}, {s(S_CG)}, 1', f's_sub_u32 {s(S_T4)}, {s(S_T4)}, 18'])
                self.t_epilogue(b, 'gelu', V_ACC1, mid=lambda: s1_issue(self, b), midg=2)
        else:
            self.g_pass(b, R2, self.p3_slab3_hooks())
            s1_issue(self, b)
        stamp(b, 23)
        self.p3_tail(b)
        b('s_branch L_p1_done')
        return b.b

    def role_CD(self, role):
        b = St(self, 'ROLE' + role)
        b.label('L_role' + role)
        b.add(self.post_l1(b, role))
        b.period = 8
        self.set_out_addr(b, 'q', [f's_sub_u32 {s(S_T4)}, {s(S_CG)}, 8'])
        self.t_epilogue(b, 'phi', V_ACC0)
        self.pre_slab(b, 'w2')
        self.set_wr(b, R2)
        if role == 'C':
            self.w3_items(b)
        else:
            b.flush()
            srd(b, SRD_T, P_GW, 1024)
            b(f's_lshl_b32 {s(S_T0)}, {s(S_W)}, 10')
            b(f's_add_u32 m0, {s(S_T0)}, {R0}')
            b(f's_lshl_b32 {s(S_T0)}, {s(S_ROT)}, 7')
            b(f'v_add_u32 {v(V_T0)}, {s(S_T0)}, {v(V_L16)}')
            b(f'v_and_b32 {v(V_T0)}, 1023, {v(V_T0)}')
            b(f'buffer_load_dwordx4 {v(V_T0)}, {s(SRD_T, 4)}, 0 offen lds', tag='gw')
            if OPT.get('c0early', 1) == 2:
                b.add(a_chunk_items(0, 'f0'))
        self.main_loop(b, 'T', pop_every=1)
        b.flush()
        b('s_barrier')
        self.mid_a(b)
        if OPT.get('aplan', 3) != 2:
            b.add(a_chunk_items(2, 'f2'))
        b.period = 12
        if role == 'C':
            self.set_out_addr(b, 'z1', [f's_lshl_b32 {s(S_T4)}, {s(S_CG)}, 1', f's_sub_u32 {s(S_T4)}, {s(S_T4)}, 19'])
            self.t_epilogue(b, 'gelu', V_ACC1)
            self.mid_b(b)
            self.pre_slab(b, 'w3')
            self.set_wr(b, R0)
            self.main_loop(b, 'T', self.slab3_hooks())
            b.period = 8
            late = OPT.get('s1late', 1)
            if not late:
                s1_issue(self, b)
            self.pre_epi3(b)
            self.set_out_addr(b, 'z1', [f's_lshl_b32 {s(S_T4)}, {s(S_CG)}, 1', f's_sub_u32 {s(S_T4)}, {s(S_T4)}, 18'])
            self.t_epilogue(b, 'gelu', V_ACC1, mid=(lambda: s1_issue(self, b)) if late else None, midg=2)
        else:
            self.set_out_addr(b, 'z1', [f's_sub_u32 {s(S_T4)}, {s(S_CG)}, 5'])
            self.t_epilogue(b, 'gelu', V_ACC1)
            self.mid_b(b)
            self.g_pass(b)
            s1_issue(self, b)
            self.pre_epi3(b)
        self.a_tail(b)
        b('s_branch L_p1_done')
        return b.b

    def build(self):
        P = self.prologue()
        LL = self.slab1(True)
        LP = self.slab1(False) if not OPT.get('sym', 1) else None
        if OPT.get('aplan', 3) == 3:
            A, B, C, D = [self.role3(r) for r in 'ABCD']
        else:
            A = self.role_AB('A')
            B = self.role_AB('B')
            C = self.role_CD('C')
            D = self.role_CD('D')
        E1 = St(self, 'E1')
        E1.label('L_p1_done')
        stamp(E1, 4)
        from phase23 import emit_phase23
        P2, PH, PL, P3b = emit_phase23(self)
        END = self.blk('END')
        END.label('L_END')
        END('s_endpgm')
        P3 = Block('PRO_w3')
        P3.ins = [i for i in P.ins if not i.meta.get('loader')]
        rests = [[P2, PH, P3b], [P2, PL, P3b]]
        paths = [[P, LL, R, E1.b] + rest + [END] for R in (A, B, C, D) for rest in rests]
        if LP is not None:
            paths += [[P3, LP, R, E1.b] + rest + [END] for R in (A, B, C, D) for rest in rests]
        finalize(self.blocks, paths)

    def text(self):
        out = []
        for b in self.blocks:
            out.append(f'; ---- {b.name}')
            out.append(render(b))
        return '\n'.join(out) + '\n' + '\n'.join(self.slow) + '\n'


HEADER = '''; Fused gated-mix kernel: linear attention + gMLP, single persistent launch (256 workgroups x 256 threads)
; @launch grid=(256,1,1) block=(256,1,1) lds=163840
.amdgcn_target "amdgcn-amd-amdhsa--gfx950"
.text
.globl {k}
.p2align 8
.type {k},@function
{k}:
'''
FOOTER = '''
L_code_end:
    s_endpgm
.section .rodata,"a"
.p2align 6
.amdhsa_kernel {k}
  .amdhsa_next_free_vgpr 512
  .amdhsa_next_free_sgpr 102
  .amdhsa_accum_offset 256
  .amdhsa_group_segment_fixed_size 0
  .amdhsa_kernarg_size 96
  .amdhsa_user_sgpr_count 2
  .amdhsa_user_sgpr_kernarg_segment_ptr 1
  .amdhsa_system_sgpr_workgroup_id_x 1
  .amdhsa_float_denorm_mode_32 3
.end_amdhsa_kernel
'''


def generate(**opt):
    OPT.update(opt)
    g = Gen()
    g.build()
    return HEADER.format(k=KNAME) + g.text() + FOOTER.format(k=KNAME)


if __name__ == '__main__':
    opt = {}
    for arg in sys.argv[2:]:
        k, val = arg.split('=')
        opt[k] = int(val) if val.lstrip('-').isdigit() else val
    import gen as _g
    txt = _g.generate(**opt)
    open(sys.argv[1], 'w').write(txt)
```

```python
from asmlib import *
import gen as G
from gen import (v, a, s, f2u, LOG2E, OOB, stamp, srd, tr_addr, St,
                 WS_FZ2, WS_FP1, WS_FY, WS_FKV, WS_GATE, WS_KVF, WS_KVP, WS_Z2N, WS_Z1F, WS_PQ, WS_Y, WS_SIZE, WS_EPOCH,
                 SRD_X, SRD_W, SRD_WS, SRD_T, SRD_U, S_W, S_WG, S_I, S_J, S_N, S_T0, S_T1, S_T2, S_T3, S_T4, S_T5, S_T6, S_T7,
                 S_ROT, S_RB, S_CG, S_Q0, S_Q1,
                 P_BSP, P_WO, P_WOUT, P_OUT, V_LANE, V_L16, V_L8, V_T0, V_POLL)

S_FB0, S_NBLK = 70, 71
S_BO = 72
S_PART = 73
S_U = 74
S_YO, S_ZO = 75, 76
S_WOB = 77
S_KVO = 78
S_BB = 80
S_FBN = 88
SRD_KV = 44

V_PA = 8
V_PR = 14
V_XW = 16
V_XR = 20
V_BS = 21
V_G0 = 22
V_NG = 26
V_BNG = 27
V_KL = 32
ACC = [64, 96]
RING = 128
D = 12
V_GS = 176
V_X = 192
V_Z1 = 224
V_KS = 236
V_WO = 240
A_PQ, A_KV, A_Y = 0, 64, 96
KVSCR = 38912
PRIV = 40960
XOFF = 22528


def flag_addr(b, dst, n, tmp):
    b(f'v_and_b32 {v(tmp)}, 3, {v(n)}')
    b(f'v_lshrrev_b32 {v(n)}, 2, {v(n)}')
    b(f'v_lshlrev_b32 {v(n)}, 4, {v(n)}')
    b(f'v_add_lshl_u32 {v(dst)}, {v(n)}, {v(tmp)}, 2')


def s1_issue(g, b):
    t0, t1 = V_T0, V_T0 + 1
    with b.atomic():
        b(f's_mul_i32 {s(S_FB0)}, {s(S_J)}, 3')
        b(f's_min_u32 {s(S_FB0)}, {s(S_FB0)}, 20')
        b(f's_cmp_lt_u32 {s(S_J)}, 6')
        b(f's_cselect_b32 {s(S_NBLK)}, 3, 2')
        b(f's_add_u32 {s(S_T2)}, {s(S_FB0)}, {s(S_NBLK)}')
        b(f's_sub_u32 {s(S_T3)}, {s(S_T2)}, 1')
        if G.OPT.get('nbrot', 0):
            b(f's_lshr_b32 {s(S_T0)}, {s(S_WG)}, {6 if G.OPT.get("map", 0) else 5}')
            b(f's_mul_i32 {s(S_T1)}, {s(S_T0)}, 11')
            b(f's_lshr_b32 {s(S_T1)}, {s(S_T1)}, 5')
            b(f's_mul_i32 {s(S_T1)}, {s(S_T1)}, 3')
            b(f's_sub_u32 {s(S_T1)}, {s(S_T0)}, {s(S_T1)}')
            b(f's_and_b32 {s(S_T0)}, {s(S_T0)}, 1')
            b(f's_cmp_eq_u32 {s(S_NBLK)}, 3')
            b(f's_cselect_b32 {s(S_T0)}, {s(S_T1)}, {s(S_T0)}')
        else:
            b(f's_mov_b32 {s(S_T0)}, 0')
        for nb in range(3):
            b(f's_add_u32 {s(S_FBN + nb)}, {s(S_FB0)}, {s(S_T0)}')
            if nb:
                b(f's_add_u32 {s(S_FBN + nb)}, {s(S_FBN + nb)}, {nb}')
            b(f's_cmp_ge_u32 {s(S_FBN + nb)}, {s(S_T2)}')
            b(f's_cselect_b32 {s(S_T1)}, {s(S_NBLK)}, 0')
            b(f's_sub_u32 {s(S_FBN + nb)}, {s(S_FBN + nb)}, {s(S_T1)}')
        b(f's_lshr_b32 {s(S_T0)}, {s(S_FB0)}, 1')
        b(f's_lshr_b32 {s(S_T1)}, {s(S_T3)}, 1')
        b(f's_sub_u32 {s(S_T1)}, {s(S_T1)}, {s(S_T0)}')
        b(f'v_bfe_u32 {v(t0)}, {v(V_LANE)}, 3, 2')
        b(f'v_bfe_u32 {v(t1)}, {v(V_LANE)}, 2, 1')
        b(f'v_mul_u32_u24 {v(t1)}, {s(S_T1)}, {v(t1)}')
        b(f'v_lshl_add_u32 {v(t0)}, {v(t0)}, 4, {v(t1)}')
        b(f's_lshl_b32 {s(S_T2)}, {s(S_W)}, 6')
        b(f's_add_u32 {s(S_T2)}, {s(S_T2)}, {s(S_T0)}')
        b(f'v_add_u32 {v(t0)}, {s(S_T2)}, {v(t0)}')
        b(f'v_and_b32 {v(t1)}, 3, {v(V_LANE)}')
        b(f'v_lshl_add_u32 {v(t0)}, {v(t0)}, 2, {v(t1)}')
        flag_addr(b, V_PA, t0, t1)
        b(f's_mov_b32 {s(S_T7)}, {WS_FZ2}')
        b(f'buffer_load_dword {v(V_PR)}, {v(V_PA)}, {s(SRD_WS, 4)}, {s(S_T7)} offen sc1')


def emit_phase23(g):
    t0, t1, t2 = V_T0, V_T0 + 1, V_T0 + 2
    b = St(g, 'P2')
    b(f's_mov_b32 {s(S_T7)}, {WS_FZ2}')
    if not G.OPT.get('x_nos1'):
        g.poll(b, V_PA, s(S_T7), V_PR, first_issued=True, mark=11)
    stamp(b, 5)
    b(f's_lshl_b32 {s(S_T0)}, {s(S_W)}, 15')
    b(f's_add_u32 {s(S_BB)}, {s(S_T0)}, {WS_Z2N}')

    def bload(b, gi):
        nb, n = gi >> 5, gi & 31
        if n % 4 == 0:
            b(f's_add_u32 {s(S_BO)}, {s(G.S_ROT2)}, {n // 4}')
            b(f's_and_b32 {s(S_BO)}, {s(S_BO)}, 7')
            b(f's_lshl_b32 {s(S_BO)}, {s(S_BO)}, 12')
            b(f's_add_u32 {s(S_BO)}, {s(S_BO)}, {s(S_BB)}')
            b(f's_lshl_b32 {s(S_T4)}, {s(S_FBN + nb)}, 17')
            b(f's_add_u32 {s(S_BO)}, {s(S_BO)}, {s(S_T4)}')
        b(f'buffer_load_dwordx4 {v(RING + 4 * (gi % D), 4)}, {v(V_L16)}, {s(SRD_WS, 4)}, {s(S_BO)} offen offset:{1024 * (n & 3)} sc1')

    if G.OPT.get('aplan', 1) == 2:
        g.mv_chunk(b, 0, 'f0')
        b.wait_lds()
        b.add(G.a_chunk_items(3, 'f0'))
    for gi in range(D):
        bload(b, gi)
        if gi % 2 == 1:
            b.pop(2)
    b.flush()
    b(f'v_lshlrev_b32 {v(V_BS)}, 16, {v(G.V_BSP)}')
    b(f's_lshr_b32 {s(S_T0)}, {s(S_I)}, 1')
    b(f's_lshl_b32 {s(S_T0)}, {s(S_T0)}, 6')
    b(f'v_add_u32 {v(t0)}, {s(S_T0)}, {v(V_LANE)}')
    flag_addr(b, V_PA + 1, t0, t1)
    b(f's_lshl_b32 {s(S_T0)}, {s(S_W)}, 11')
    b(f'v_add_u32 {v(t0)}, {s(S_T0)}, {v(V_L16)}')
    for d in range(4):
        b(f'v_add_u32 {v(V_XW + d)}, {PRIV * d + XOFF}, {v(t0)}')
    b(f's_mul_i32 {s(S_T0)}, {s(S_W)}, {PRIV}')
    b(f's_add_u32 {s(S_T0)}, {s(S_T0)}, {XOFF}')
    b(f'v_add_u32 {v(V_XR)}, {s(S_T0)}, {v(V_L16)}')
    b(f'v_and_b32 {v(t0)}, 31, {v(V_LANE)}')
    b(f'v_lshlrev_b32 {v(V_PA + 5)}, 2, {v(t0)}')
    b(f's_and_b32 {s(S_T0)}, {s(S_W)}, 1')
    b(f's_lshl1_add_u32 {s(S_T0)}, {s(S_I)}, {s(S_T0)}')
    b(f's_mul_i32 {s(S_T0)}, {s(S_T0)}, 45056')
    b(f's_lshr_b32 {s(S_T1)}, {s(S_W)}, 1')
    b(f's_lshl_b32 {s(S_T1)}, {s(S_T1)}, 10')
    b(f's_add_u32 {s(S_T0)}, {s(S_T0)}, {s(S_T1)}')
    b(f's_add_u32 {s(S_ZO)}, {s(S_T0)}, {WS_Z1F}')
    b(f's_add_u32 {s(S_YO)}, {s(S_T0)}, {WS_Y}')
    b(f's_cmp_ge_u32 {s(S_J)}, 6')
    b('s_cbranch_scc1 L_P2L')
    P2 = b.b

    def xw(nb, k):
        d, q = k >> 1, k & 1
        r = ACC[nb & 1] + 16 * (d & 1) + 8 * (d >> 1)
        return f'ds_write_b128 {v(V_XW + d)}, {v(r + 4 * q, 4)} offset:{8192 * (nb & 1) + 1024 * q}'

    def xr(nb, k):
        src, q = k >> 1, k & 1
        return f'ds_read_b128 {v(V_X + 8 * src + 4 * q, 4)}, {v(V_XR)} offset:{8192 * (nb & 1) + 2048 * src + 1024 * q}'

    def xsum(dst):
        o = []
        for k in range(8):
            o.append(f'v_add_f32 {v(V_X + k)}, {v(V_X + k)}, {v(V_X + 8 + k)}')
        for k in range(8):
            o.append(f'v_add_f32 {v(V_X + 16 + k)}, {v(V_X + 16 + k)}, {v(V_X + 24 + k)}')
        for k in range(8):
            o.append(f'v_add_f32 {v(dst + k)}, {v(V_X + k)}, {v(V_X + 16 + k)}')
        return o

    def ymath(nb, gs):
        o = []
        z = V_Z1 + 4 * nb
        tmp = RING
        for k in range(8):
            o.append(f'v_fma_f32 {v(gs + k)}, {v(gs + k)}, {v(V_NG)}, {v(V_BNG)}')
        for k in range(4):
            o.append(f'v_lshlrev_b32 {v(tmp + 2 * k)}, 16, {v(z + k)}')
            o.append(f'v_and_b32 {v(tmp + 2 * k + 1)}, 0xffff0000, {v(z + k)}')
        for k in range(8):
            o.append(f'v_mul_f32 {v(gs + k)}, {v(gs + k)}, {v(tmp + k)}')
        for k in range(4):
            o.append(f'v_cvt_pk_bf16_f32 {v(z + k)}, {v(gs + 2 * k)}, {v(gs + 2 * k + 1)}')
        return o

    def ystore(b, nb):
        b(f's_lshl_b32 {s(S_T0)}, {s(S_FBN + nb)}, 11')
        b(f's_add_u32 {s(S_T0)}, {s(S_T0)}, {s(S_YO)}')
        b(f'buffer_store_dwordx4 {v(V_Z1 + 4 * nb, 4)}, {v(V_L16)}, {s(SRD_WS, 4)}, {s(S_T0)} offen sc1', tag='y')

    def tail_loads(nblk):
        it = []
        for z in range(nblk):
            it.append([f's_lshl_b32 {s(S_T0)}, {s(S_FBN + z)}, 11',
                       f's_add_u32 {s(S_T0)}, {s(S_T0)}, {s(S_ZO)}',
                       f'buffer_load_dwordx4 {v(V_Z1 + 4 * z, 4)}, {v(V_L16)}, {s(SRD_WS, 4)}, {s(S_T0)} offen sc1'])
        it.append([f's_lshl_b32 {s(S_T0)}, {s(S_I)}, 8',
                   f's_add_u32 {s(S_T0)}, {s(S_T0)}, {WS_GATE}',
                   f'buffer_load_dword {v(V_G0)}, {v(V_PA + 5)}, {s(SRD_WS, 4)}, {s(S_T0)} offen sc1',
                   f'buffer_load_dword {v(V_G0 + 1)}, {v(V_PA + 5)}, {s(SRD_WS, 4)}, {s(S_T0)} offen offset:128 sc1'])
        for hd in range(8):
            for tb in range(2):
                l = []
                if hd % 4 == 0:
                    l = [f's_lshl1_add_u32 {s(S_Q0 + tb)}, {s(S_I)}, {tb}',
                         f's_lshl_b32 {s(S_Q0 + tb)}, {s(S_Q0 + tb)}, 15',
                         f's_lshl_b32 {s(S_T1)}, {s(S_W)}, 13',
                         f's_add_u32 {s(S_Q0 + tb)}, {s(S_Q0 + tb)}, {s(S_T1)}',
                         f's_add_u32 {s(S_Q0 + tb)}, {s(S_Q0 + tb)}, {WS_PQ + 1024 * hd}']
                l.append(f'buffer_load_dwordx4 {a(A_PQ + 4 * (2 * hd + tb), 4)}, {v(V_L16)}, {s(SRD_WS, 4)}, {s(S_Q0 + tb)} offen offset:{1024 * (hd & 3)} sc1')
                it.append(l)
        return it

    def gate_setup():
        return [[f's_and_b32 {s(S_T0)}, {s(S_W)}, 1',
                 f's_cmp_eq_u32 {s(S_T0)}, 0',
                 f's_cselect_b64 vcc, -1, 0',
                 f'v_cndmask_b32 {v(V_NG)}, {v(V_G0 + 1)}, {v(V_G0)}, vcc'],
                f'v_sub_f32 {v(V_NG)}, 1.0, {v(V_NG)}',
                f'v_mul_f32 {v(V_BNG)}, {v(V_BS)}, {v(V_NG)}']

    def emit1(b, x):
        if isinstance(x, list):
            for y in x:
                emit1(b, y)
        elif isinstance(x, tuple):
            b(x[1], tag=x[0])
        else:
            b(x)

    def main_stream(light):
        b = St(g, 'P2L' if light else 'P2H')
        nblk = 2 if light else 3
        NG = 32 * nblk
        if light:
            b.label('L_P2L')
            b(f's_lshl_b32 {s(S_U)}, {s(S_I)}, 1')
            b(f's_and_b32 {s(S_T0)}, {s(S_J)}, 1')
            b(f's_add_u32 {s(S_U)}, {s(S_U)}, {s(S_T0)}')
            b(f's_lshr_b32 {s(S_T0)}, {s(S_U)}, 3')
            b(f'v_lshrrev_b32 {v(t0)}, 2, {v(V_LANE)}')
            b(f'v_lshlrev_b32 {v(t0)}, 4, {v(t0)}')
            b(f'v_add_u32 {v(t0)}, {s(S_T0)}, {v(t0)}')
            b(f'v_and_b32 {v(t1)}, 3, {v(V_LANE)}')
            b(f'v_lshl_add_u32 {v(t0)}, {v(t0)}, 2, {v(t1)}')
            flag_addr(b, V_PA + 2, t0, t1)
            b(f's_mov_b32 {s(SRD_KV)}, {s(SRD_WS)}')
            b(f's_mov_b32 {s(SRD_KV + 1)}, {s(SRD_WS + 1)}')
            b(f's_cmp_lt_u32 {s(S_W)}, 2')
            b(f's_cselect_b32 {s(SRD_KV + 2)}, {hex(WS_SIZE - (G.OPT.get('wsoff', 0) << 20))}, 0')
            b(f's_mov_b32 {s(SRD_KV + 3)}, 0x20000')
            b(f's_lshl_b32 {s(S_KVO)}, {s(S_U)}, 14')
            b(f's_and_b32 {s(S_T0)}, {s(S_W)}, 1')
            b(f's_lshl_b32 {s(S_T0)}, {s(S_T0)}, 13')
            b(f's_add_u32 {s(S_KVO)}, {s(S_KVO)}, {s(S_T0)}')
            b(f's_add_u32 {s(S_KVO)}, {s(S_KVO)}, {WS_KVP}')
        fill = []
        items = []

        def drain(n):
            k = 0
            while fill and k < n:
                x = fill.pop(0)
                emit1(b, x)
                k += len(x) if isinstance(x, list) else 1

        n0 = b.mark()
        GP = NG - 36
        GT = NG - D
        for gi in range(NG):
            nb, n = gi >> 5, gi & 31
            acc = ACC[nb & 1]
            for tb in range(2):
                c = '0' if n == 0 else v(acc + 16 * tb, 16)
                b(f'v_mfma_f32_32x32x16_bf16 {v(acc + 16 * tb, 16)}, {v(RING + 4 * (gi % D), 4)}, {a(8 * n + 4 * tb, 4)}, {c}')
            if gi + D < NG:
                bload(b, gi + D)
            if G.OPT.get('aplan', 1) == 2:
                mv = {1: 1, 2: 5, 3: 9, 4: 13, 5: 17, 6: 21, 7: 25}
                for c, st in mv.items():
                    if gi == st:
                        g.mv_chunk(b, c, f'f{c % 3}')
                    if gi == st + 1 and c + 3 < 8:
                        b.wait_lds()
                        b.add(G.a_chunk_items(c + 3, f'f{c % 3}'))
            elif G.OPT.get('aplan', 1) == 1:
                if gi == 4:
                    g.mv_chunk(b, 3, 'f0')
                if gi == 5:
                    b.wait_lds()
                    b.add(G.a_chunk_items(6, 'f0'))
                if gi == 10:
                    g.mv_chunk(b, 4, 'f1')
                if gi == 11:
                    b.wait_lds()
                    b.add(G.a_chunk_items(7, 'f1'))
                if gi == 16:
                    g.mv_chunk(b, 5, 'f2')
                if gi == 22:
                    g.mv_chunk(b, 6, 'f0')
                if gi == 26:
                    g.mv_chunk(b, 7, 'f1')
            if gi == 31:
                b.wait_lds()
                b('s_barrier')
            if b.q:
                b.pop(2)
            if gi == GP:
                b(f's_mov_b32 {s(S_T7)}, {WS_FP1}')
                b(f'buffer_load_dword {v(V_PR)}, {v(V_PA + 1)}, {s(SRD_WS, 4)}, {s(S_T7)} offen sc1')
            if light and gi == 20:
                b(f's_mov_b32 {s(S_T7)}, {WS_FP1}')
                b(f'buffer_load_dword {v(V_PR + 1)}, {v(V_PA + 2)}, {s(SRD_WS, 4)}, {s(S_T7)} offen sc1')
            if light and gi == 34:
                b(f's_mov_b32 {s(S_T7)}, {WS_FP1}')
                g.poll(b, V_PA + 2, s(S_T7), V_PR + 1, first_issued=True, mark=13)
                for r in range(8):
                    l = []
                    if r % 4 == 0:
                        l = [f's_add_u32 {s(S_Q0)}, {s(S_KVO)}, {1024 * r}']
                    l.append(f'buffer_load_dwordx4 {v(V_KL + 4 * r, 4)}, {v(V_L16)}, {s(SRD_KV, 4)}, {s(S_Q0)} offen offset:{1024 * (r & 3)} sc1')
                    items.append(l)
            if nb > 0:
                if 2 <= n < 10:
                    b(xw(nb - 1, n - 2))
                if n == 12:
                    b.wait_lds()
                    b('s_barrier')
                if 12 <= n < 20:
                    b(xr(nb - 1, n - 12))
                if n == 21:
                    fill.extend(xsum(V_GS + 8 * (nb - 1)))
            if gi == GT:
                drain(len(fill))
                b(f's_mov_b32 {s(S_T7)}, {WS_FP1}')
                g.poll(b, V_PA + 1, s(S_T7), V_PR, first_issued=True, mark=15)
                items.extend(tail_loads(nblk))
            if light and gi == 52:
                for r in range(0, 8, 2):
                    for k in range(4):
                        fill.append(f'v_add_f32 {v(V_KL + 4 * r + k)}, {v(V_KL + 4 * r + k)}, {v(V_KL + 4 * r + 4 + k)}')
                for k in range(4):
                    fill.append(f'v_add_f32 {v(V_KL + k)}, {v(V_KL + k)}, {v(V_KL + 8 + k)}')
                    fill.append(f'v_add_f32 {v(V_KL + 16 + k)}, {v(V_KL + 16 + k)}, {v(V_KL + 24 + k)}')
                for k in range(4):
                    fill.append(f'v_add_f32 {v(V_KS + k)}, {v(V_KL + k)}, {v(V_KL + 16 + k)}')
            if light and gi == 58:
                drain(len(fill))
                b(f's_mul_i32 {s(S_T0)}, {s(S_W)}, {PRIV}')
                b(f's_add_u32 {s(S_T0)}, {s(S_T0)}, {KVSCR}')
                b(f'v_add_u32 {v(t0)}, {s(S_T0)}, {v(V_L16)}')
                b(f'ds_write_b128 {v(t0)}, {v(V_KS, 4)}')
                b.wait_lds()
                b('s_barrier')
                b(f'v_add_u32 {v(t0)}, {PRIV + KVSCR}, {v(V_L16)}')
                b(f'ds_read_b128 {v(V_KL, 4)}, {v(t0)}')
                for k in range(4):
                    b(f'v_add_f32 {v(V_KS + k)}, {v(V_KS + k)}, {v(V_KL + k)}')
                b(f'v_cvt_pk_bf16_f32 {v(V_KS)}, {v(V_KS)}, {v(V_KS + 1)}')
                b(f'v_cvt_pk_bf16_f32 {v(V_KS + 1)}, {v(V_KS + 2)}, {v(V_KS + 3)}')
                b(f's_cmp_eq_u32 {s(S_W)}, 0')
                b(f's_cselect_b32 {s(SRD_KV + 2)}, {hex(WS_SIZE - (G.OPT.get('wsoff', 0) << 20))}, 0')
                b(f's_lshr_b32 {s(S_T0)}, {s(S_U)}, 1')
                b(f's_lshl_b32 {s(S_T0)}, {s(S_T0)}, 10')
                b(f's_and_b32 {s(S_T1)}, {s(S_U)}, 1')
                b(f's_lshl_b32 {s(S_T1)}, {s(S_T1)}, 3')
                b(f's_add_u32 {s(S_T0)}, {s(S_T0)}, {s(S_T1)}')
                b(f's_add_u32 {s(S_T0)}, {s(S_T0)}, {WS_KVF}')
                b(f'buffer_store_dwordx2 {v(V_KS, 2)}, {v(V_L16)}, {s(SRD_KV, 4)}, {s(S_T0)} offen sc1', tag='kvf')
            for _ in range(2 if gi >= GT else 1):
                if items:
                    emit1(b, items.pop(0))
            drain(6)
            if gi in (7, 23, 31, 47, 63, 79):
                stamp(b, 24 + (7, 23, 31, 47, 63, 79).index(gi))
        while items:
            emit1(b, items.pop(0))
        drain(len(fill))
        b.weave_from(n0, G=5)
        stamp(b, 6)
        if light:
            b.wait_vm('kvf')
            b(f's_lshl_b32 {s(S_T0)}, {s(S_U)}, 4')
            b(f's_add_u32 {s(S_T0)}, {s(S_T0)}, {WS_FKV}')
            b(f'v_mov_b32 {v(V_POLL)}, {s(S_N)}')
            b(f'buffer_store_dword {v(V_POLL)}, off, {s(SRD_KV, 4)}, {s(S_T0)} sc1', tag='flag')
        last = nblk - 1
        for k in range(8):
            b(xw(last, k))
        for x in gate_setup():
            emit1(b, x)
        b.wait_lds()
        b('s_barrier')
        for k in range(8):
            b(xr(last, k))
        for nb in range(last):
            for x in ymath(nb, V_GS + 8 * nb):
                emit1(b, x)
            ystore(b, nb)
        for x in xsum(V_GS) + ymath(last, V_GS):
            emit1(b, x)
        ystore(b, last)
        stamp(b, 7)
        if light:
            ep = g.lab('EP')
            b(f's_lshl_b32 {s(S_T0)}, {s(S_I)}, 5')
            b(f's_lshl2_add_u32 {s(S_T0)}, {s(S_J)}, {s(S_T0)}')
            b(f's_add_u32 {s(S_T0)}, {s(S_T0)}, {s(S_W)}')
            b(f's_cmp_lg_u32 {s(S_T0)}, {6 * 4 + 3}')
            b(f's_cbranch_scc1 {ep}_end')
            txt = [f'    v_and_b32 {v(t1)}, 3, {v(V_LANE)}', f'    v_lshrrev_b32 {v(t0)}, 2, {v(V_LANE)}',
                   f'    v_lshlrev_b32 {v(t0)}, 4, {v(t0)}', f'    v_add_lshl_u32 {v(t0)}, {v(t0)}, {v(t1)}, 2']
            for k in range(16):
                txt.append(f'    s_mov_b32 {s(S_T3)}, {WS_FP1 + 1024 * k}')
                txt.append(f'    buffer_load_dword {v(32 + k)}, {v(t0)}, {s(SRD_WS, 4)}, {s(S_T3)} offen sc1')
            txt = [f'    s_mov_b32 {s(G.S_CNT)}, {G.SPIN_MAX}', f'{ep}:'] + txt + ['    s_waitcnt vmcnt(0)']
            for k in range(16):
                txt.append(f'    v_xor_b32 {v(32 + k)}, {s(S_N)}, {v(32 + k)}')
            for k in range(1, 16, 2):
                hi = 32 + k + 1 if k + 1 < 16 else 32 + k
                txt.append(f'    v_or3_b32 {v(32)}, {v(32)}, {v(32 + k)}, {v(hi)}')
            txt += [f'    v_cmp_ne_u32 vcc, 0, {v(32)}', f'    s_cbranch_vccz {ep}_ok',
                    f'    s_sub_u32 {s(G.S_CNT)}, {s(G.S_CNT)}, 1', f'    s_cmp_lg_u32 {s(G.S_CNT)}, 0', f'    s_cbranch_scc1 {ep}',
                    f'{ep}_ok:', f'    v_mov_b32 {v(V_POLL)}, {s(S_N)}',
                    f'    buffer_store_dword {v(V_POLL)}, off, {s(SRD_WS, 4)}, 0 sc1', f'{ep}_end:']
            b.b.raw('\n'.join(txt))
        else:
            b('s_branch L_P3')
        return b.b

    PH = main_stream(False)
    PL = main_stream(True)

    b = St(g, 'P3')
    b.label('L_P3')
    ACC3 = 64
    T = [224, 240]
    b(f'v_bfe_u32 {v(t0)}, {v(V_LANE)}, 2, 1')
    b(f'v_bfe_u32 {v(t1)}, {v(V_LANE)}, 4, 1')
    b(f'v_xor_b32 {v(t0)}, {v(t0)}, {v(t1)}')
    b(f'v_and_b32 {v(t1)}, 3, {v(V_LANE)}')
    b(f'v_lshlrev_b32 {v(t1)}, 4, {v(t1)}')
    b(f'v_lshl_add_u32 {v(t0)}, {v(t0)}, 6, {v(t1)}')
    b(f'v_lshrrev_b32 {v(t1)}, 3, {v(V_LANE)}')
    b(f'v_lshl_add_u32 {v(t0)}, {v(t1)}, 10, {v(t0)}')
    b(f's_lshl_b32 {s(S_T0)}, {s(S_J)}, 7')
    VW = 28
    b(f'v_add_u32 {v(VW)}, {s(S_T0)}, {v(t0)}')
    b(f'v_add_u32 {v(VW + 1)}, 7168, {v(VW)}')
    b(f's_cmp_eq_u32 {s(S_W)}, 0')
    b(f's_cselect_b32 {s(S_T0)}, {hex(OOB)}, 0')
    b(f'v_add_u32 {v(32)}, {s(S_T0)}, {v(VW)}')
    b(f's_mul_i32 {s(S_WOB)}, {s(S_W)}, {176 * 1024}')
    b(f's_sub_u32 {s(S_WOB)}, {s(S_WOB)}, 16384')
    b(f's_mul_i32 {s(S_PART)}, {s(S_W)}, {PRIV}')
    srd(b, SRD_X, P_WO, 512 * 1024)
    srd(b, SRD_U, P_WOUT, 688 * 1024)

    def wo_items(hd):
        return [[f's_add_u32 m0, {s(S_PART)}, {XOFF + 2048 * hd}',
                 f's_lshl_b32 {s(S_Q0)}, {s(S_W)}, 17',
                 f's_add_u32 {s(S_Q0)}, {s(S_Q0)}, {16384 * hd}',
                 (f'wo{hd}', f'buffer_load_dwordx4 {v(VW)}, {s(SRD_X, 4)}, {s(S_Q0)} offen{G.NT(8)} lds')],
                [(f'wo{hd}', f'buffer_load_dwordx4 {v(VW + 1)}, {s(SRD_X, 4)}, {s(S_Q0)} offen offset:1024{G.NT(8)} lds')]]

    def wout_items():
        it = []
        for i in range(22):
            vo = 32 if i < 2 else VW
            it.append([f's_add_u32 m0, {s(S_PART)}, {1024 * i}',
                       f's_add_u32 {s(S_Q0)}, {s(S_WOB)}, {8192 * i}',
                       f's_max_i32 {s(S_Q0)}, {s(S_Q0)}, 0',
                       ('wout', f'buffer_load_dwordx4 {v(vo)}, {s(SRD_U, 4)}, {s(S_Q0)} offen{G.NT(8)} lds')])
        return it

    b(f'v_and_b32 {v(t0)}, 15, {v(V_LANE)}')
    b(f's_lshl_b32 {s(S_T0)}, {s(S_W)}, 4')
    b(f'v_add_u32 {v(t0)}, {s(S_T0)}, {v(t0)}')
    b(f'v_lshlrev_b32 {v(V_PA + 3)}, 4, {v(t0)}')
    b(f's_mov_b32 {s(S_T7)}, {WS_FKV}')
    b(f'buffer_load_dword {v(V_PR)}, {v(V_PA + 3)}, {s(SRD_WS, 4)}, {s(S_T7)} offen sc1')
    for hd in range(4):
        b.add(wo_items(hd))
    b.flush()
    V_TW = 26
    tr_addr(b, V_TW, True)
    b(f'v_add_u32 {v(V_TW)}, {s(S_PART)}, {v(V_TW)}')
    b(f'v_xor_b32 {v(V_TW + 1)}, 64, {v(V_TW)}')
    b.wait_vm('y')
    b(f's_lshl3_add_u32 {s(S_T0)}, {s(S_I)}, {s(S_J)}')
    b(f's_lshl4_add_u32 {s(S_T0)}, {s(S_T0)}, {s(S_W)}')
    b(f's_lshl_b32 {s(S_T0)}, {s(S_T0)}, 2')
    b(f's_add_u32 {s(S_T0)}, {s(S_T0)}, {WS_FY}')
    b(f'v_mov_b32 {v(V_POLL)}, {s(S_N)}')
    b(f'buffer_store_dword {v(V_POLL)}, off, {s(SRD_WS, 4)}, {s(S_T0)} sc1', tag='flag')
    stamp(b, 8)
    g.poll(b, V_PA + 3, s(S_T7), V_PR, first_issued=True, mark=19)
    stamp(b, 14)
    b(f's_lshl_b32 {s(S_T0)}, {s(S_W)}, 13')
    b(f's_add_u32 {s(S_T0)}, {s(S_T0)}, {WS_KVF}')
    for hd in range(8):
        if hd == 4:
            b(f's_add_u32 {s(S_T0)}, {s(S_T0)}, 4096')
        b(f'buffer_load_dwordx4 {a(A_KV + 4 * hd, 4)}, {v(V_L16)}, {s(SRD_WS, 4)}, {s(S_T0)} offen offset:{1024 * (hd & 3)} sc1')
    for hd in range(4, 8):
        b.add(wo_items(hd))
    b.add(wout_items())
    WFR = 48
    OF = [[8, 12], [16, 4]]
    eps = hex(f2u(1e-6))

    def num(hd):
        for tb in range(2):
            b(f'v_mfma_f32_32x32x16_bf16 {v(T[tb], 16)}, {a(A_KV + 4 * hd, 4)}, {a(A_PQ + 4 * (2 * hd + tb), 4)}, 0')

    def wread(hd):
        st = hd & 1
        b.ensure(f'wo{hd}')
        b.wait_vm(f'wo{hd}')
        for db in range(2):
            for t in range(2):
                b(f'ds_read_b64_tr_b16 {v(WFR + 8 * st + 4 * db + 2 * t, 2)}, {v(V_TW + db)} offset:{XOFF + 2048 * hd + 1024 * t}')

    def post(hd, tb):
        n0, dn = (T[tb], T[tb] + 8) if hd % 2 == 0 else (T[tb] + 8, T[tb])
        b(f'v_add_f32 {v(dn)}, {eps}, {v(dn)}')
        b(f'v_rcp_f32 {v(dn)}, {v(dn)}')
        b(f'v_mul_f32 {v(dn)}, {v(dn)}, {v(V_G0 + tb)}')
        for k in range(8):
            b(f'v_mul_f32 {v(n0 + k)}, {v(n0 + k)}, {v(dn)}')
        of = OF[hd & 1][tb]
        for k in range(4):
            b(f'v_cvt_pk_bf16_f32 {v(of + k)}, {v(n0 + 2 * k)}, {v(n0 + 2 * k + 1)}')

    def outm(hd):
        st = hd & 1
        for tb in range(2):
            for db in range(2):
                acc = ACC3 + 16 * (2 * tb + db)
                c = '0' if hd == 0 else v(acc, 16)
                b(f'v_mfma_f32_32x32x16_bf16 {v(acc, 16)}, {v(WFR + 8 * st + 4 * db, 4)}, {v(OF[st][tb], 4)}, {c}')

    b.period = 10
    n0 = b.mark()
    for hd in range(8):
        num(hd)
        wread(hd)
        if hd > 0:
            outm(hd - 1)
        post(hd, 0)
        post(hd, 1)
        if hd == 5:
            with b.atomic():
                b(f'v_and_b32 {v(t1)}, 31, {v(V_LANE)}')
                b(f's_lshl_b32 {s(S_T0)}, {s(S_I)}, 5')
                b(f'v_add_u32 {v(t1)}, {s(S_T0)}, {v(t1)}')
                flag_addr(b, 20, t1, t0)
                b(f's_mov_b32 {s(S_T7)}, {WS_FY}')
                b(f'buffer_load_dword {v(21)}, {v(20)}, {s(SRD_WS, 4)}, {s(S_T7)} offen sc1')
    outm(7)
    b.flush()
    b.weave_from(n0, G=6)
    b.period = 0
    stamp(b, 9)
    g.poll(b, 20, s(S_T7), 21, first_issued=True, mark=22)
    stamp(b, 10)
    for n in range(11):
        for tb in range(2):
            if n % 4 == 0:
                b(f's_lshl1_add_u32 {s(S_T0 + tb)}, {s(S_I)}, {tb}')
                b(f's_mul_i32 {s(S_T0 + tb)}, {s(S_T0 + tb)}, 45056')
                b(f's_mul_i32 {s(S_T2)}, {s(S_W)}, {11 * 1024}')
                b(f's_add_u32 {s(S_T0 + tb)}, {s(S_T0 + tb)}, {s(S_T2)}')
                b(f's_add_u32 {s(S_T0 + tb)}, {s(S_T0 + tb)}, {WS_Y + 1024 * n}')
            b(f'buffer_load_dwordx4 {a(A_Y + 8 * n + 4 * tb, 4)}, {v(V_L16)}, {s(SRD_WS, 4)}, {s(S_T0 + tb)} offen offset:{1024 * (n & 3)} sc1')
    b.wait_vm('wout')

    def woutread(n):
        st = n & 1
        for db in range(2):
            for t in range(2):
                b(f'ds_read_b64_tr_b16 {v(WFR + 8 * st + 4 * db + 2 * t, 2)}, {v(V_TW + db)} offset:{2048 * n + 1024 * t}')
    n0 = b.mark()
    woutread(0)
    for n in range(11):
        if n + 1 < 11:
            woutread(n + 1)
        st = n & 1
        for tb in range(2):
            for db in range(2):
                acc = ACC3 + 16 * (2 * tb + db)
                b(f'v_mfma_f32_32x32x16_bf16 {v(acc, 16)}, {v(WFR + 8 * st + 4 * db, 4)}, {a(A_Y + 8 * n + 4 * tb, 4)}, {v(acc, 16)}')
    b.weave_from(n0, G=5)
    b.wait_lds()
    b('s_barrier')
    b(f's_lshl_b32 {s(S_T0)}, {s(S_W)}, 14')
    b(f'v_add_u32 {v(t0)}, {s(S_T0)}, {v(V_L16)}')
    for blk in range(4):
        for j in range(4):
            b(f'ds_write_b128 {v(t0)}, {v(ACC3 + 16 * blk + 4 * j, 4)} offset:{4096 * blk + 1024 * j}')
    srd(b, SRD_T, P_OUT, 2048 * 1024)
    b(f'v_and_b32 {v(t0 + 3)}, 31, {v(V_LANE)}')
    b(f'v_lshlrev_b32 {v(t0 + 3)}, 10, {v(t0 + 3)}')
    b(f'v_lshrrev_b32 {v(t1)}, 5, {v(V_LANE)}')
    b(f'v_lshl_add_u32 {v(t0 + 3)}, {v(t1)}, 4, {v(t0 + 3)}')
    b(f's_lshl_b32 {s(S_T0)}, {s(S_I)}, 16')
    b(f's_lshr_b32 {s(S_T1)}, {s(S_W)}, 1')
    b(f's_lshl_b32 {s(S_T1)}, {s(S_T1)}, 15')
    b(f's_add_u32 {s(S_T0)}, {s(S_T0)}, {s(S_T1)}')
    b(f's_lshl_b32 {s(S_T1)}, {s(S_J)}, 7')
    b(f's_add_u32 {s(S_T0)}, {s(S_T0)}, {s(S_T1)}')
    b(f's_and_b32 {s(S_T1)}, {s(S_W)}, 1')
    b(f's_lshl_b32 {s(S_T1)}, {s(S_T1)}, 6')
    b(f's_add_u32 {s(S_T4)}, {s(S_T0)}, {s(S_T1)}')
    b.wait_lds()
    b('s_barrier')
    b(f's_lshl_b32 {s(S_T0)}, {s(S_W)}, 12')
    b(f'v_add_u32 {v(t0)}, {s(S_T0)}, {v(V_L16)}')
    RB_ = 128
    for src in range(4):
        for j in range(4):
            b(f'ds_read_b128 {v(RB_ + 16 * src + 4 * j, 4)}, {v(t0)} offset:{16384 * src + 1024 * j}')
    for k in range(16):
        b(f'v_add_f32 {v(RB_ + k)}, {v(RB_ + k)}, {v(RB_ + 16 + k)}')
        b(f'v_add_f32 {v(RB_ + 32 + k)}, {v(RB_ + 32 + k)}, {v(RB_ + 48 + k)}')
    for k in range(16):
        b(f'v_add_f32 {v(RB_ + k)}, {v(RB_ + k)}, {v(RB_ + 32 + k)}')
    O = 192
    for k in range(8):
        b(f'v_cvt_pk_bf16_f32 {v(O + k)}, {v(RB_ + 2 * k)}, {v(RB_ + 2 * k + 1)}')
    for jj in range(2):
        b(f'v_permlane32_swap_b32 {v(O + 4 * jj)}, {v(O + 4 * jj + 2)}')
        b(f'v_permlane32_swap_b32 {v(O + 4 * jj + 1)}, {v(O + 4 * jj + 3)}')
    for jj in range(2):
        b(f'buffer_store_dwordx4 {v(O + 4 * jj, 4)}, {v(t0 + 3)}, {s(SRD_T, 4)}, {s(S_T4)} offen offset:{32 * jj}')
    stamp(b, 12)
    if G.OPT.get('clk'):
        b('s_memtime s[64:65]')
        b('s_memrealtime s[66:67]')
        b('s_waitcnt lgkmcnt(0)')
        b('s_sub_u32 s64, s64, s62')
        b('s_sub_u32 s66, s66, s100')
        b(f's_mov_b32 {s(SRD_T)}, {s(G.P_DBG)}')
        b(f's_mov_b32 {s(SRD_T + 1)}, {s(G.P_DBG + 1)}')
        b(f's_lshr_b32 {s(S_T4)}, {s(S_WG)}, 5')
        b(f's_and_b32 {s(S_T5)}, {s(S_WG)}, 31')
        b(f's_or_b32 {s(S_T5)}, {s(S_T5)}, {s(S_W)}')
        b(f's_cmp_eq_u32 {s(S_T5)}, 0')
        b(f's_cselect_b32 {s(SRD_T + 2)}, 256, 0')
        b(f's_mov_b32 {s(SRD_T + 3)}, 0x20000')
        b(f's_lshl_b32 {s(S_T4)}, {s(S_T4)}, 3')
        b(f'v_mov_b32 {v(2)}, s64')
        b(f'v_mov_b32 {v(3)}, s66')
        b(f'buffer_store_dwordx2 {v(2, 2)}, off, {s(SRD_T, 4)}, {s(S_T4)}')
    return P2, PH, PL, b.b
```

```python
import sys, struct, math
from collections import deque
from asmlib import *

KNAME = 'gated_mix__linear_attn_block__mixer_gmlp__prompt_kernel'
OPT = dict(stamps=0, rot=1, touch=0, late=0, map=0, cpf=0)


def v(a, n=1):
    return f'v{a}' if n == 1 else f'v[{a}:{a + n - 1}]'


def a(x, n=1):
    return f'a{x}' if n == 1 else f'a[{x}:{x + n - 1}]'


def s(x, n=1):
    return f's{x}' if n == 1 else f's[{x}:{x + n - 1}]'


WS_EPOCH = 0
WS_FZ2 = 0x10000
WS_FP1 = 0x20000
WS_FY = 0x30000
WS_FKV = 0x40000
WS_GATE = 0x50000
WS_KVF = 0x60000
WS_STATS = 0x80000
WS_KVP = 0x100000
WS_Z2N = 0x200000
WS_Z1F = 0x500000
WS_PQ = 0x800000
WS_Y = 0xB00000
WS_DBG = 0x1000000
WS_SIZE = 0x10000000
NONCE_K = 0x9E3779B1
OOB = 0x40000000
SPIN_MAX = 20000

R0 = 0
R1 = 65536
R2 = 98304
LDS_BYTES = 163840

S_WG = 2
SRD_A = 4
SRD_U = 8
S_Q0, S_Q1 = 12, 13
S_AS = 14
S_ROT = 15
S_ROT2 = 3
P_X, P_WQKV, P_WO, P_BX, P_WIN, P_WSP, P_BSP, P_WOUT = 16, 18, 20, 22, 24, 26, 28, 30
P_GW, P_OUT, P_DBG, P_WS = 32, 34, 36, 38
SRD_X = 40
SRD_W = 44
SRD_WS = 48
SRD_T = 52
S_W = 56
S_RB, S_CG, S_I, S_J = 57, 58, 59, 60
S_N = 61
S_T0, S_T1, S_T2, S_T3, S_T4, S_T5 = 64, 65, 66, 67, 68, 69
S_XL, S_XS, S_WL, S_WSO = 70, 71, 72, 73
S_RS, S_COL, S_MASK = 74, 75, 76
S_O0, S_O1 = 77, 78
S_TB = 79
S_RS64 = 80
S_LOG2E, S_EPS = 82, 83
S_CNT = 86
S_XG, S_XLW, S_WGB = 84, 85, 87
S_KC = 91
S_D2COL, S_D2MASK, S_D2SEL = 88, 89, 90
S_D3COL, S_D3MASK, S_D3SEL = 92, 93, 94
S_T6, S_T7 = 96, 97
S_VCC2 = 98

V_LANE = 0
V_T0 = 1
V_DUM = 7
V_XD = 8
V_WD = 12
V_XRO = 14
V_XRT = 18
V_WR = 22
V_L16 = 24
V_L8 = 25
V_GA = 26
V_NON = 27
V_ST = 28
V_POLL = 30
V_AR = 32
V_E = 36
V_AD = 40
V_TCH = 44
V_BSP = 45
V_TW1, V_TW2 = 46, 47
V_ACC0 = 64
V_ACC1 = 96
V_WF = 128
V_TMP = 160
V_PK = 192
V_PV = 208
V_STAT = 224
V_KV = 64
V_KZ = 224
A_X = 128


def NT(k):
    return ' nt' if OPT.get('nt', 0) & k else ''


def f2u(x):
    return struct.unpack('<I', struct.pack('<f', x))[0]


LOG2E = 1.4426950408889634
GELU_A_F = -2.0 * LOG2E * math.sqrt(2.0 / math.pi)
GELU_A = f2u(GELU_A_F)
GELU_B = f2u(GELU_A_F * 0.044715)


class St:
    def __init__(self, g, name):
        self.g = g
        self.b = g.blk(name)
        self.q = deque()
        self.period = 0
        self.cnt = 0
        self.lock = 0

    def __call__(self, text, tag=None, **meta):
        r = self.b(text, tag=tag, **meta)
        if self.period and not self.lock and self.q:
            self.cnt += 1
            if self.cnt >= self.period:
                self.pop()
        return r

    def pop(self, n=1):
        for _ in range(n):
            if not self.q:
                return
            item = self.q.popleft()
            for x in item:
                if isinstance(x, tuple):
                    self.b(x[1], tag=x[0], **(x[2] if len(x) > 2 else {}))
                else:
                    self.b(x)
        self.cnt = 0

    def add(self, items):
        self.q.extend(items)

    def flush(self):
        self.pop(len(self.q))

    def ensure(self, tag):
        def has(item):
            return any(isinstance(x, tuple) and x[0] == tag for x in item)
        while any(has(i) for i in self.q):
            self.pop(1)

    def label(self, n):
        self.b.label(n)

    def mark(self):
        return len(self.b.ins)

    def weave_from(self, n0, G=5, adv=2):
        if OPT.get('weave', 1):
            self.b.ins[n0:] = weave(self.b.ins[n0:], G, adv)

    def wait_vm(self, t):
        self.b.wait_vm(t)

    def wait_lds(self):
        self.b.wait_lds()

    class _L:
        def __init__(self, st):
            self.st = st

        def __enter__(self):
            self.st.lock += 1

        def __exit__(self, *a):
            self.st.lock -= 1

    def atomic(self):
        return St._L(self)


def gelu_group(b, xs, tmp):
    n = len(xs)
    for k in range(n):
        b(f'v_mul_f32 {v(tmp + k)}, {v(xs[k])}, {v(xs[k])}')
    for k in range(n):
        b(f'v_fmamk_f32 {v(tmp + k)}, {v(tmp + k)}, {hex(GELU_B)}, {v(V_GA)}')
    for k in range(n):
        b(f'v_mul_f32 {v(tmp + k)}, {v(tmp + k)}, {v(xs[k])}')
    for k in range(n):
        b(f'v_exp_f32 {v(tmp + k)}, {v(tmp + k)}')
    for k in range(n):
        b(f'v_add_f32 {v(tmp + k)}, 1.0, {v(tmp + k)}')
    for k in range(n):
        b(f'v_rcp_f32 {v(tmp + k)}, {v(tmp + k)}')
    for k in range(n):
        b(f'v_mul_f32 {v(xs[k])}, {v(xs[k])}, {v(tmp + k)}')


def phi_group(b, xs, tmp):
    n = len(xs)
    for k in range(n):
        b(f'v_mul_f32 {v(tmp + k)}, {s(S_LOG2E)}, {v(xs[k])}')
    for k in range(n):
        b(f'v_exp_f32_e64 {v(tmp + k)}, {v(tmp + k)} clamp')
    for k in range(n):
        b(f'v_max_f32 {v(xs[k])}, {s(S_EPS)}, {v(xs[k])}')
    for k in range(n):
        b(f'v_add_f32 {v(xs[k])}, {v(xs[k])}, {v(tmp + k)}')


def srd(b, base, ptr, nrec):
    b(f's_mov_b32 {s(base)}, {s(ptr)}')
    b(f's_mov_b32 {s(base + 1)}, {s(ptr + 1)}')
    b(f's_mov_b32 {s(base + 2)}, {hex(nrec)}')
    b(f's_mov_b32 {s(base + 3)}, 0x20000')


def dma4_voffsets(b, dst, RS):
    t0, t1, t2 = V_T0, V_T0 + 1, V_T0 + 2
    b(f'v_lshrrev_b32 {v(t0)}, 3, {v(V_LANE)}')
    b(f'v_and_b32 {v(t1)}, 7, {v(V_LANE)}')
    b(f'v_lshrrev_b32 {v(t2)}, 4, {v(V_LANE)}')
    b(f'v_xor_b32 {v(t1)}, {v(t1)}, {v(t2)}')
    b(f'v_lshlrev_b32 {v(t1)}, 4, {v(t1)}')
    b(f'v_mul_u32_u24 {v(t0)}, {RS}, {v(t0)}')
    b(f'v_add_u32 {v(dst)}, {v(t0)}, {v(t1)}')
    b(f'v_xor_b32 {v(t1)}, 64, {v(t1)}')
    b(f'v_add_u32 {v(t0)}, {v(t0)}, {v(t1)}')
    b(f'v_add_u32 {v(dst + 1)}, {8 * RS - 1024}, {v(t0)}')
    b(f'v_add_u32 {v(dst + 2)}, {16 * RS - 2048}, {v(dst)}')
    b(f'v_add_u32 {v(dst + 3)}, {24 * RS - 3072}, {v(t0)}')


def frag_read_addrs(b, dst):
    t0, t1, t2 = V_T0, V_T0 + 1, V_T0 + 2
    b(f'v_and_b32 {v(t0)}, 31, {v(V_LANE)}')
    b(f'v_lshrrev_b32 {v(t1)}, 5, {v(V_LANE)}')
    b(f'v_bfe_u32 {v(t2)}, {v(V_LANE)}, 1, 3')
    b(f'v_xor_b32 {v(t1)}, {v(t1)}, {v(t2)}')
    b(f'v_lshlrev_b32 {v(t1)}, 4, {v(t1)}')
    b(f'v_lshl_add_u32 {v(dst)}, {v(t0)}, 7, {v(t1)}')
    for kk in range(1, 4):
        b(f'v_xor_b32 {v(dst + kk)}, {32 * kk}, {v(dst)}')


def tr_addr(b, dst, pi):
    t0, t1 = V_T0, V_T0 + 1
    b(f'v_bfe_u32 {v(t0)}, {v(V_LANE)}, 2, 2')
    b(f'v_lshrrev_b32 {v(t1)}, 5, {v(V_LANE)}')
    b(f'v_lshl_add_u32 {v(t1)}, {v(t1)}, {2 if pi else 3}, {v(t0)}')
    b(f'v_lshlrev_b32 {v(t1)}, 7, {v(t1)}')
    b(f'v_lshrrev_b32 {v(t0)}, 1, {v(t0)}')
    b(f'v_lshl_add_u32 {v(t1)}, {v(t0)}, 6, {v(t1)}')
    b(f'v_bfe_u32 {v(t0)}, {v(V_LANE)}, 4, 1')
    b(f'v_lshl_add_u32 {v(t1)}, {v(t0)}, 5, {v(t1)}')
    b(f'v_and_b32 {v(t0)}, 3, {v(V_LANE)}')
    b(f'v_lshl_add_u32 {v(dst)}, {v(t0)}, 3, {v(t1)}')


def wd_voffsets(b):
    t0, t1, t2 = V_T0, V_T0 + 1, V_T0 + 2
    b(f'v_bfe_u32 {v(t0)}, {v(V_LANE)}, 2, 1')
    b(f'v_bfe_u32 {v(t1)}, {v(V_LANE)}, 4, 1')
    b(f'v_xor_b32 {v(t0)}, {v(t0)}, {v(t1)}')
    b(f'v_and_b32 {v(t1)}, 3, {v(V_LANE)}')
    b(f'v_lshlrev_b32 {v(t1)}, 4, {v(t1)}')
    b(f'v_lshl_add_u32 {v(t0)}, {v(t0)}, 6, {v(t1)}')
    b(f'v_lshrrev_b32 {v(t1)}, 3, {v(V_LANE)}')
    b(f'v_mul_lo_u32 {v(t1)}, {v(t1)}, {s(S_RS)}')
    b(f'v_add_u32 {v(t1)}, {v(t1)}, {v(t0)}')
    b(f'v_add_u32 {v(V_WD)}, {s(S_COL)}, {v(t1)}')
    b(f's_lshl_b32 {s(S_T0)}, {s(S_RS)}, 3')
    b(f's_sub_u32 {s(S_T0)}, {s(S_T0)}, 1024')
    b(f'v_add_u32 {v(V_WD + 1)}, {s(S_T0)}, {v(V_WD)}')
    b(f'v_mov_b32 {v(t2)}, {hex(OOB)}')
    b(f'v_cmp_gt_u32 vcc, {s(S_MASK)}, {v(t0)}')
    b(f'v_cndmask_b32 {v(V_WD)}, {v(V_WD)}, {v(t2)}, vcc')
    b(f'v_cndmask_b32 {v(V_WD + 1)}, {v(V_WD + 1)}, {v(t2)}, vcc')
    b(f's_lshl_b32 {s(S_RS64)}, {s(S_RS)}, 6')
    b(f's_lshl_b32 {s(S_T0)}, {s(S_RS)}, 4')
    b(f's_mul_i32 {s(S_WSO)}, {s(S_T0)}, {s(S_W)}')


def set_w_srd(b, sel):
    b(f's_cmp_eq_u32 {s(sel)}, 0')
    b(f's_cselect_b32 {s(SRD_W)}, {s(P_WQKV)}, {s(P_WIN)}')
    b(f's_cselect_b32 {s(SRD_W + 1)}, {s(P_WQKV + 1)}, {s(P_WIN + 1)}')
    b(f's_mov_b32 {s(SRD_W + 2)}, {hex(512 * 2752)}')
    b(f's_cmov_b32 {s(SRD_W + 2)}, {hex(512 * 3072)}')
    b(f's_mov_b32 {s(SRD_W + 3)}, 0x20000')


def w_piece_items(p, region, tag):
    return [
        [f's_add_u32 {s(S_Q0)}, {s(S_ROT)}, {p}',
         f's_and_b32 {s(S_Q0)}, {s(S_Q0)}, 7',
         f's_mul_i32 {s(S_Q0)}, {s(S_Q0)}, {s(S_RS64)}',
         f's_add_u32 {s(S_Q0)}, {s(S_Q0)}, {s(S_WSO)}',
         f's_add_u32 m0, {s(S_WL)}, {region + 8192 * p}',
         (tag, f'buffer_load_dwordx4 {v(V_WD)}, {s(SRD_W, 4)}, {s(S_Q0)} offen{NT(2)} lds')],
        [(tag, f'buffer_load_dwordx4 {v(V_WD + 1)}, {s(SRD_W, 4)}, {s(S_Q0)} offen offset:1024{NT(2)} lds')],
    ]


def x_chunk_items(c, tag):
    it = []
    for i in range(4):
        l = []
        if i == 0:
            l = [f's_add_u32 {s(S_Q0)}, {s(S_ROT)}, {c}',
                 f's_and_b32 {s(S_Q0)}, {s(S_Q0)}, 7',
                 f's_lshl_b32 {s(S_Q0)}, {s(S_Q0)}, 7',
                 f's_add_u32 {s(S_Q0)}, {s(S_Q0)}, {s(S_XS)}',
                 f's_add_u32 m0, {s(S_XL)}, {16384 * (c % 4)}']
        l.append((tag, f'buffer_load_dwordx4 {v(V_XD + i)}, {s(SRD_X, 4)}, {s(S_Q0)} offen offset:{1024 * i}{NT(4)} lds'))
        it.append(l)
    return it


def l1_items(c):
    tag = f'x{c}'
    slot = R1 + 16384 * (c % 3)
    it = []
    for m in range(4):
        l = []
        if m == 0:
            l = [f's_add_u32 {s(S_KC)}, {s(S_ROT)}, {c}',
                 f's_and_b32 {s(S_KC)}, {s(S_KC)}, 7',
                 f's_lshl_b32 {s(S_Q0)}, {s(S_KC)}, 7',
                 f's_add_u32 {s(S_Q0)}, {s(S_Q0)}, {s(S_XG)}',
                 f's_add_u32 m0, {s(S_XLW)}, {slot}']
        else:
            l = [f's_add_u32 {s(S_Q0)}, {s(S_Q0)}, 7168']
        l.append((tag, f'buffer_load_dwordx4 {v(V_XD + (m & 1))}, {s(SRD_X, 4)}, {s(S_Q0)} offen offset:{1024 * m} lds'))
        it.append(l)
    it.append([f's_add_u32 {s(S_Q0)}, {s(S_Q0)}, {7168 + 4096}',
               f's_add_u32 m0, {s(S_XLW)}, {slot + 4096}',
               (tag, f'buffer_load_dwordx4 {v(V_XD)}, {s(SRD_X, 4)}, {s(S_Q0)} offen lds')])
    return it


def l1_item5(g, b, c):
    tag = f'x{c}'
    l0, l1 = g.lab('M5'), g.lab('M5')
    b.b(f's_cmp_eq_u32 {s(S_W)}, 0')
    b.b(f's_cbranch_scc0 {l0}')
    b.b(f's_add_u32 {s(S_Q0)}, {s(S_Q0)}, 7168')
    b.b(f'buffer_load_dwordx4 {v(V_XD + 1)}, {s(SRD_X, 4)}, {s(S_Q0)} offen offset:1024 lds', nocount=True)
    b.b(f's_branch {l1}')
    b.b.label(l0)
    b.b(f's_mul_i32 {s(S_Q1)}, {s(S_KC)}, {s(S_RS64)}')
    b.b(f's_sub_u32 {s(S_Q0)}, {s(S_WGB)}, 1')
    b.b(f's_lshl_b32 {s(S_T0)}, {s(S_Q0)}, 10')
    b.b(f's_add_u32 m0, {s(S_T0)}, {R0 + 8192 * c}')
    b.b(f's_lshl_b32 {s(S_T0)}, {s(S_RS)}, 3')
    b.b(f's_mul_i32 {s(S_Q0)}, {s(S_Q0)}, {s(S_T0)}')
    b.b(f's_add_u32 {s(S_Q0)}, {s(S_Q0)}, {s(S_Q1)}')
    b.b(f'buffer_load_dwordx4 {v(V_WD)}, {s(SRD_W, 4)}, {s(S_Q0)} offen lds', tag=tag)
    b.b.label(l1)


def l1_w_items(c):
    tag = f'x{c}'
    return [[f's_mul_i32 {s(S_Q1)}, {s(S_KC)}, {s(S_RS64)}',
             f's_lshl_b32 {s(S_Q0)}, {s(S_WGB)}, 10',
             f's_add_u32 m0, {s(S_Q0)}, {R0 + 8192 * c}',
             f's_lshl_b32 {s(S_Q0)}, {s(S_RS)}, 3',
             f's_mul_i32 {s(S_Q0)}, {s(S_Q0)}, {s(S_WGB)}',
             f's_add_u32 {s(S_Q0)}, {s(S_Q0)}, {s(S_Q1)}',
             (tag, f'buffer_load_dwordx4 {v(V_WD)}, {s(SRD_W, 4)}, {s(S_Q0)} offen lds')],
            [(tag, f'buffer_load_dwordx4 {v(V_WD + 1)}, {s(SRD_W, 4)}, {s(S_Q0)} offen offset:1024 lds')]]


def a_slot(kind):
    return {'h0': (13, R1), 'h1': (13, R1 + 4096), 'f0': (13, R1), 'f1': (14, R2), 'f2': (14, R2 + 8192),
            'g1': (14, R0), 'g2': (14, R0 + 8192)}[kind]


def a_piece_items(c, tb, slot, off=0):
    sh, base = a_slot(slot)
    it = []
    for i in range(4):
        l = []
        if i == 0:
            l = [f's_add_u32 {s(S_Q0)}, {s(S_ROT2)}, {c}',
                 f's_and_b32 {s(S_Q0)}, {s(S_Q0)}, 7',
                 f's_lshl_b32 {s(S_Q0)}, {s(S_Q0)}, 7',
                 f's_add_u32 {s(S_Q0)}, {s(S_Q0)}, {s(S_AS)}']
            if tb:
                l.append(f's_add_u32 {s(S_Q0)}, {s(S_Q0)}, {32 * 4096}')
            l += [f's_lshl_b32 {s(S_Q1)}, {s(S_W)}, {sh}',
                  f's_add_u32 m0, {s(S_Q1)}, {base + off}']
        l.append((f'a{c}_{tb}', f'buffer_load_dwordx4 {v(V_AD + i)}, {s(SRD_A, 4)}, {s(S_Q0)} offen offset:{1024 * i}{NT(1)} lds'))
        it.append(l)
    return it


def a_piece_read(b, c, tb, slot, off=0):
    sh, base = a_slot(slot)
    with b.atomic():
        b(f's_lshl_b32 {s(S_T0)}, {s(S_W)}, {sh}')
        b(f's_add_u32 {s(S_T0)}, {s(S_T0)}, {base + off}')
        for kk in range(4):
            b(f'v_add_u32 {v(V_T0 + kk)}, {s(S_T0)}, {v(V_AR + kk)}')
        for kk in range(4):
            r = 8 * (4 * c + kk) + 4 * tb
            b(f'ds_read_b128 {a(r, 4)}, {v(V_T0 + kk)}')


def a_chunk_items(c, slot):
    return a_piece_items(c, 0, slot) + a_piece_items(c, 1, slot, 4096)


def a_chunk_read(b, c, slot):
    sh, base = a_slot(slot)
    with b.atomic():
        b(f's_lshl_b32 {s(S_T0)}, {s(S_W)}, {sh}')
        b(f's_add_u32 {s(S_T0)}, {s(S_T0)}, {base}')
        for kk in range(4):
            b(f'v_add_u32 {v(V_T0 + kk)}, {s(S_T0)}, {v(V_AR + kk)}')
        for kk in range(4):
            for tb in range(2):
                r = 8 * (4 * c + kk) + 4 * tb
                b(f'ds_read_b128 {a(r, 4)}, {v(V_T0 + kk)} offset:{4096 * tb}')


def stamp(b, idx):
    if not OPT['stamps']:
        return
    if OPT['stamps'] == 3 and idx not in (0, 12):
        return
    lock = b.atomic() if hasattr(b, 'atomic') else None
    if lock:
        lock.__enter__()
    b(f's_memrealtime {s(S_VCC2, 2)}' if OPT['stamps'] in (1, 3) else f's_memtime {s(S_VCC2, 2)}')
    b('s_waitcnt lgkmcnt(0)')
    b(f's_lshl_b32 {s(S_T6)}, {s(S_WG)}, 2')
    b(f's_add_u32 {s(S_T6)}, {s(S_T6)}, {s(S_W)}')
    b(f's_lshl_b32 {s(S_T6)}, {s(S_T6)}, 7')
    b(f's_add_u32 {s(S_T6)}, {s(S_T6)}, {WS_DBG + 4 * idx}')
    b(f'v_mov_b32 {v(V_POLL + 1)}, {s(S_VCC2)}')
    b(f'buffer_store_dword {v(V_POLL + 1)}, off, {s(SRD_WS, 4)}, {s(S_T6)}')
    if lock:
        lock.__exit__()


def s1_issue(g, b):
    from phase23 import s1_issue as f
    f(g, b)


def slow_mark(idx):
    if not OPT['stamps'] or OPT.get('s3st') or OPT['stamps'] == 3:
        return ''
    return f'''    s_lshl_b32 {s(S_T6)}, {s(S_WG)}, 2
    s_add_u32 {s(S_T6)}, {s(S_T6)}, {s(S_W)}
    s_lshl_b32 {s(S_T6)}, {s(S_T6)}, 7
    s_add_u32 {s(S_T6)}, {s(S_T6)}, {WS_DBG + 4 * idx}
    s_sub_u32 {s(S_VCC2)}, {SPIN_MAX + 1}, {s(S_CNT)}
    v_mov_b32 {v(V_POLL + 1)}, {s(S_VCC2)}
    buffer_store_dword {v(V_POLL + 1)}, off, {s(SRD_WS, 4)}, {s(S_T6)}
'''


class Gen:
    def __init__(self):
        self.blocks = []
        self.s3flag = False
        self.slow = []
        self.nlab = 0

    def blk(self, name):
        b = Block(name)
        self.blocks.append(b)
        return b

    def lab(self, p='L'):
        self.nlab += 1
        return f'{p}_{self.nlab}'

    def poll(self, b, vaddr, soff, vtmp, first_issued=False, skip_if_zero=None, mark=31):
        cont = self.lab('PC')
        slow = self.lab('PS')
        lock = b.atomic() if hasattr(b, 'atomic') else None
        if lock:
            lock.__enter__()
        if not first_issued:
            b(f'buffer_load_dword {v(vtmp)}, {v(vaddr)}, {s(SRD_WS, 4)}, {soff} offen sc1')
        b(f'v_cmp_ne_u32 vcc, {s(S_N)}, {v(vtmp)}')
        if skip_if_zero is not None:
            b(f's_cmp_eq_u32 {s(skip_if_zero)}, 0')
            b(f's_cbranch_scc1 {cont}')
        b(f's_cbranch_vccnz {slow}')
        b.label(cont)
        if lock:
            lock.__exit__()
        self.slow.append(f'''{slow}:
    s_mov_b32 {s(S_CNT)}, {SPIN_MAX}
{slow}_l:
    s_sleep 1
    buffer_load_dword {v(vtmp)}, {v(vaddr)}, {s(SRD_WS, 4)}, {soff} offen sc1
    s_waitcnt vmcnt(0)
{slow_mark(mark)}    v_cmp_ne_u32 vcc, {s(S_N)}, {v(vtmp)}
    s_cbranch_vccz {cont}
    s_sub_u32 {s(S_CNT)}, {s(S_CNT)}, 1
    s_cmp_lg_u32 {s(S_CNT)}, 0
    s_cbranch_scc1 {slow}_l
    s_branch {cont}''')

    def prologue(self):
        b = St(self, 'PRO')
        b(f's_cmp_ge_u32 {s(S_WG)}, 256')
        b('s_cbranch_scc1 L_END')
        if OPT.get('clk'):
            b('s_memtime s[62:63]')
            b('s_memrealtime s[100:101]')
        b('s_load_dwordx16 s[16:31], s[0:1], 0x0')
        b('s_load_dwordx8 s[32:39], s[0:1], 0x40')
        b(f'v_lshrrev_b32 {v(V_T0)}, 6, {v(0)}')
        b(f'v_and_b32 {v(V_LANE)}, 63, {v(0)}')
        b(f's_and_b32 {s(S_T0)}, {s(S_WG)}, 7')
        b(f'v_readfirstlane_b32 {s(S_W)}, {v(V_T0)}')
        b(f's_lshr_b32 {s(S_T1)}, {s(S_WG)}, 3')
        b(f's_lshr_b32 {s(S_T2)}, {s(S_T1)}, 2')
        b(f's_and_b32 {s(S_T1)}, {s(S_T1)}, 3')
        b(f's_and_b32 {s(S_T3)}, {s(S_T0)}, 1')
        b(f's_lshr_b32 {s(S_T0)}, {s(S_T0)}, 1')
        b(f's_lshl3_add_u32 {s(S_RB)}, {s(S_T3)}, {s(S_T2)}')
        b(f's_lshl2_add_u32 {s(S_CG)}, {s(S_T0)}, {s(S_T1)}')
        b(f's_lshl3_add_u32 {s(S_I)}, {s(S_T0)}, {s(S_T2)}')
        b(f's_lshl2_add_u32 {s(S_J)}, {s(S_T3)}, {s(S_T1)}')
        b(f's_lshl1_add_u32 {s(S_ROT)}, {s(S_T1)}, {s(S_T2)}')
        b(f's_and_b32 {s(S_ROT)}, {s(S_ROT)}, 7')
        if OPT.get('map', 0):
            b(f's_and_b32 {s(S_T4)}, {s(S_WG)}, 7')
            b(f's_lshr_b32 {s(S_T5)}, {s(S_WG)}, 6')
            b(f's_lshl2_add_u32 {s(S_I)}, {s(S_T4)}, {s(S_T5)}')
            b(f's_bfe_u32 {s(S_J)}, {s(S_WG)}, 0x30003')
            b(f's_lshl1_add_u32 {s(S_ROT2)}, {s(S_T5)}, {s(S_J)}')
            b(f's_and_b32 {s(S_ROT2)}, {s(S_ROT2)}, 7')
        else:
            b(f's_mov_b32 {s(S_ROT2)}, {s(S_ROT)}')
        if not OPT['rot']:
            b(f's_mov_b32 {s(S_ROT)}, 0')
        b(f'v_lshrrev_b32 {v(V_T0)}, 3, {v(V_LANE)}')
        b(f'v_and_b32 {v(V_T0 + 1)}, 7, {v(V_LANE)}')
        b(f'v_lshrrev_b32 {v(V_T0 + 2)}, 4, {v(V_LANE)}')
        b(f'v_xor_b32 {v(V_T0 + 1)}, {v(V_T0 + 1)}, {v(V_T0 + 2)}')
        b(f'v_lshlrev_b32 {v(V_T0 + 1)}, 4, {v(V_T0 + 1)}')
        b(f's_cmp_eq_u32 {s(S_W)}, 2')
        b(f's_cselect_b32 {s(S_T0)}, 64, 0')
        b(f'v_xor_b32 {v(V_T0 + 1)}, {s(S_T0)}, {v(V_T0 + 1)}')
        b(f'v_lshl_add_u32 {v(V_XD)}, {v(V_T0)}, 10, {v(V_T0 + 1)}')
        b(f'v_xor_b32 {v(V_XD + 1)}, 64, {v(V_XD)}')
        b(f's_mul_i32 {s(S_XLW)}, {s(S_W)}, 6')
        b(f's_cmp_eq_u32 {s(S_W)}, 2')
        b(f's_cselect_b32 {s(S_XLW)}, 11, {s(S_XLW)}')
        b(f's_lshl_b32 {s(S_XG)}, {s(S_XLW)}, 13')
        b(f's_lshl_b32 {s(S_T0)}, {s(S_RB)}, 17')
        b(f's_add_u32 {s(S_XG)}, {s(S_XG)}, {s(S_T0)}')
        b(f's_lshl_b32 {s(S_XLW)}, {s(S_XLW)}, 10')
        b(f's_mul_i32 {s(S_WGB)}, {s(S_W)}, 3')
        b(f's_lshl_b32 {s(S_T0)}, {s(S_CG)}, 7')
        b(f's_add_u32 {s(S_T1)}, {s(S_T0)}, 1344')
        b(f's_sub_u32 {s(S_T2)}, {s(S_T0)}, 1024')
        b(f's_cmp_le_u32 {s(S_CG)}, 10')
        b(f's_cselect_b32 {s(S_COL)}, {s(S_T1)}, {s(S_T2)}')
        b(f's_mov_b32 {s(S_RS)}, 3072')
        b(f's_cmov_b32 {s(S_RS)}, 2752')
        b(f's_cselect_b32 {s(S_T3)}, 1, 0')
        b(f's_cmp_eq_u32 {s(S_CG)}, 0')
        b(f's_cselect_b32 {s(S_MASK)}, 32, 0')
        wd_voffsets(b)
        b(f's_lshl_b32 {s(S_WL)}, {s(S_W)}, 11')
        b(f's_lshl2_add_u32 {s(S_TB)}, {s(S_RB)}, {s(S_W)}')
        if OPT.get('cpf', 0):
            b(f's_getpc_b64 {s(62, 2)}')
            b.label('L_pc0')
            b(f's_lshr_b32 {s(S_T0)}, {s(S_WG)}, 3')
            b(f's_lshl2_add_u32 {s(S_T0)}, {s(S_T0)}, {s(S_W)}')
            b(f's_lshl_b32 {s(S_T0)}, {s(S_T0)}, 9')
            b(f's_min_u32 {s(S_T0)}, {s(S_T0)}, L_code_end-L_pc0-512')
            b(f'v_lshlrev_b32 {v(V_T0 + 3)}, 3, {v(V_LANE)}')
            b(f'v_add_u32 {v(V_T0 + 3)}, {s(S_T0)}, {v(V_T0 + 3)}')
            b(f'global_load_dwordx2 {v(250, 2)}, {v(V_T0 + 3)}, {s(62, 2)}', nodst=True)
        b('s_waitcnt lgkmcnt(0)')
        srd(b, SRD_X, P_X, 2048 * 1024)
        set_w_srd(b, S_T3)
        if OPT.get('sym', 1):
            dma4_voffsets(b, V_XD, 1024)
            b(f's_lshl_b32 {s(S_XL)}, {s(S_W)}, 12')
            b(f's_add_u32 {s(S_XL)}, {s(S_XL)}, {R1}')
            b(f's_lshl_b32 {s(S_XS)}, {s(S_TB)}, 15')
            for c in range(3):
                b.add(x_chunk_items(c, f'x{c}'))
                b.add(w_piece_items(c, R0, f'x{c}'))
            b.flush()
        else:
            b(f's_cmp_eq_u32 {s(S_W)}, 3')
            b('s_cbranch_scc1 L_noload0')
            n0 = len(b.b.ins)
            for c in range(2):
                b.add(l1_items(c))
                b.flush()
                l1_item5(self, b, c)
                b.add(l1_w_items(c))
                b.flush()
            for i in b.b.ins[n0:]:
                i.meta['loader'] = True
            b.label('L_noload0')
        if OPT.get('wsoff', 0):
            off = OPT['wsoff'] << 20
            b(f's_add_u32 {s(P_WS)}, {s(P_WS)}, {hex(off)}')
            b(f's_addc_u32 {s(P_WS + 1)}, {s(P_WS + 1)}, 0')
        srd(b, SRD_WS, P_WS, WS_SIZE - (OPT.get('wsoff', 0) << 20))
        b(f'buffer_load_dword {v(V_E)}, off, {s(SRD_WS, 4)}, 0 sc1', tag='epoch')
        stamp(b, 0)
        b(f's_mov_b32 {s(S_LOG2E)}, {hex(f2u(LOG2E))}')
        b(f's_mov_b32 {s(S_EPS)}, {hex(f2u(1e-6))}')
        b(f'v_mov_b32 {v(V_GA)}, {hex(GELU_A)}')
        b(f'v_lshlrev_b32 {v(V_L16)}, 4, {v(V_LANE)}')
        b(f'v_lshlrev_b32 {v(V_L8)}, 3, {v(V_LANE)}')
        frag_read_addrs(b, V_AR)
        b(f's_lshl_b32 {s(S_T0)}, {s(S_W)}, 12')
        b(f's_add_u32 {s(S_T1)}, {s(S_T0)}, {R1}')
        for kk in range(4):
            b(f'v_add_u32 {v(V_XRO + kk)}, {s(S_T1)}, {v(V_AR + kk)}')
        tr_addr(b, V_WR, False)
        b(f'v_xor_b32 {v(V_WR + 1)}, 64, {v(V_WR)}')
        srd(b, SRD_A, P_WSP, 2048 * 4096)
        dma4_voffsets(b, V_AD, 4096)
        b(f'v_lshlrev_b32 {v(V_TCH)}, 7, {v(V_LANE)}')
        b(f's_lshl_b32 {s(S_AS)}, {s(S_I)}, 18')
        b(f's_lshl_b32 {s(S_T0)}, {s(S_W)}, 10')
        b(f's_add_u32 {s(S_AS)}, {s(S_AS)}, {s(S_T0)}')
        srd(b, SRD_T, P_BSP, 4096)
        b(f's_and_b32 {s(S_T0)}, {s(S_W)}, 1')
        b(f's_lshl_b32 {s(S_T0)}, {s(S_T0)}, 6')
        b(f's_lshl_b32 {s(S_T1)}, {s(S_I)}, 7')
        b(f's_add_u32 {s(S_T0)}, {s(S_T0)}, {s(S_T1)}')
        b(f'v_and_b32 {v(V_T0)}, 31, {v(V_LANE)}')
        b(f'v_lshlrev_b32 {v(V_T0)}, 1, {v(V_T0)}')
        b(f'buffer_load_ushort {v(V_BSP)}, {v(V_T0)}, {s(SRD_T, 4)}, {s(S_T0)} offen')
        b(f's_lshl_b32 {s(S_T0)}, {s(S_CG)}, 7')
        b(f's_add_u32 {s(S_D2COL)}, {s(S_T0)}, 1024')
        b(f's_add_u32 {s(S_D3COL)}, {s(S_T0)}, 2048')
        b(f's_mov_b32 {s(S_D2SEL)}, 0')
        b(f's_mov_b32 {s(S_D3SEL)}, 0')
        b(f's_mov_b32 {s(S_D2MASK)}, 0')
        b(f's_mov_b32 {s(S_D3MASK)}, 0')
        b(f's_cmp_lt_u32 {s(S_CG)}, 8')
        b('s_cbranch_scc1 L_desc_done')
        b(f's_cmp_lt_u32 {s(S_CG)}, 11')
        b('s_cbranch_scc0 L_desc_cd')
        b(f's_sub_u32 {s(S_D2COL)}, {s(S_T0)}, 1024')
        b(f's_sub_u32 {s(S_D3COL)}, {s(S_T0)}, 1056')
        b(f's_mov_b32 {s(S_D3SEL)}, 1')
        b(f's_cmp_eq_u32 {s(S_CG)}, 8')
        b(f's_cselect_b32 {s(S_D3MASK)}, 32, 0')
        b('s_branch L_desc_done')
        b.label('L_desc_cd')
        b(f's_lshl_b32 {s(S_T1)}, {s(S_T0)}, 1')
        b(f's_sub_u32 {s(S_T1)}, {s(S_T1)}, 2464')
        b(f's_sub_u32 {s(S_T2)}, {s(S_T0)}, 672')
        b(f's_cmp_lt_u32 {s(S_CG)}, 14')
        b(f's_cselect_b32 {s(S_D2COL)}, {s(S_T1)}, {s(S_T2)}')
        b(f's_add_u32 {s(S_D3COL)}, {s(S_D2COL)}, 128')
        b(f's_mov_b32 {s(S_D2SEL)}, 1')
        b(f's_mov_b32 {s(S_D3SEL)}, 1')
        b.label('L_desc_done')
        for r in range(32):
            b(f'v_mov_b32 {v(V_ACC0 + r)}, 0')
        if not OPT.get('sym', 1):
            b(f's_cmp_eq_u32 {s(S_W)}, 3')
            b('s_cbranch_scc1 L_L1P')
        return b.b

    def prefetch_items(self):
        def touch(srdreg, mul, off=0):
            return [f's_mul_i32 {s(S_Q0)}, {s(S_WG)}, {mul}',
                    ('t', f'buffer_load_dword {v(V_DUM)}, {v(V_TCH)}, {s(srdreg, 4)}, {s(S_Q0)} offen offset:{off}', dict(nodst=True))]
        it = []
        pre = lambda ptr, n: [f's_mov_b32 {s(SRD_U)}, {s(ptr)}', f's_mov_b32 {s(SRD_U + 1)}, {s(ptr + 1)}',
                              f's_mov_b32 {s(SRD_U + 2)}, {hex(n)}', f's_mov_b32 {s(SRD_U + 3)}, 0x20000']
        it.append(pre(P_WQKV, 512 * 3072) + touch(SRD_U, 6144))
        it.append(pre(P_WIN, 512 * 2752) + touch(SRD_U, 5504))
        for k in range(4):
            it.append([f's_mul_i32 {s(S_Q0)}, {s(S_WG)}, 32768', f's_add_u32 {s(S_Q0)}, {s(S_Q0)}, {8192 * k}',
                       ('t', f'buffer_load_dword {v(V_DUM)}, {v(V_TCH)}, {s(SRD_A, 4)}, {s(S_Q0)} offen', dict(nodst=True))])
        it.append(pre(P_WOUT, 688 * 1024) + touch(SRD_U, 2752))
        it.append(pre(P_WO, 512 * 1024) + touch(SRD_U, 2048))
        return it

    def slab1(self, loader):
        b = St(self, 'L1L' if loader else 'L1P')
        if not loader:
            b.label('L_L1P')
            pf = self.prefetch_items() if OPT.get('pf', 1) else []
        n0 = b.mark()
        for c in range(8):
            if loader:
                b.wait_vm(f'x{c}')
            if c == 4:
                b(f'v_add_u32 {v(V_NON)}, {hex(NONCE_K)}, {v(V_E)}')
                b(f'v_readfirstlane_b32 {s(S_N)}, {v(V_NON)}')
            b.wait_lds()
            b('s_barrier')
            if OPT.get('l1st') and c in (0, 1, 2, 4, 6):
                stamp(b, {0: 13, 1: 14, 2: 15, 4: 19, 6: 22}[c])
            m5 = None
            if c <= 4:
                if OPT.get('sym', 1):
                    b.add(x_chunk_items(c + 3, f'x{c + 3}'))
                    b.add(w_piece_items(c + 3, R0, f'x{c + 3}'))
                elif loader:
                    b.add(l1_items(c + 2))
                    m5 = c + 2
                else:
                    b.add(pf[:2])
                    pf = pf[2:]
            else:
                if c == 5:
                    self.switch_slab(b, S_D2SEL, S_D2COL, S_D2MASK)
                for p in {5: (4, 5), 6: (6, 7), 7: ()}[c]:
                    b.add(w_piece_items(p, R2, 'w2'))
                if c == 7 and OPT.get('tch', 0) & 4:
                    self.w3_touch(b)
            b.pop(1)
            b.period = OPT.get('l1p', 6) if loader else 8
            for kk in range(4):
                K = 4 * c + kk
                b(f'ds_read_b128 {a(A_X + 4 * K, 4)}, {v(V_XRO + kk)}')
                wf = V_WF + 8 * (K & 3)
                for ch in range(2):
                    for t in range(2):
                        b(f'ds_read_b64_tr_b16 {v(wf + 4 * ch + 2 * t, 2)}, {v(V_WR + ch)} offset:{2048 * K + 512 * t}')
                if K >= 2:
                    self.mfma_pair_R(b, K - 2)
                if kk == 2 and m5 is not None:
                    b.flush()
                    l1_item5(self, b, m5)
                    b.add(l1_w_items(m5))
            b.flush()
            b.period = 0
            if c < 7:
                d = 16384 if (c + 1) % 4 != 0 else -49152
                for kk in range(4):
                    if d > 0:
                        b(f'v_add_u32 {v(V_XRO + kk)}, {d}, {v(V_XRO + kk)}')
                    else:
                        b(f'v_subrev_u32 {v(V_XRO + kk)}, {-d}, {v(V_XRO + kk)}')
        self.mfma_pair_R(b, 30)
        self.mfma_pair_R(b, 31)
        b.weave_from(n0, G=6)
        b.wait_lds()
        b('s_barrier')
        stamp(b, 1)
        b(f's_cmp_lt_u32 {s(S_CG)}, 8')
        b('s_cbranch_scc1 L_roleA')
        b(f's_cmp_lt_u32 {s(S_CG)}, 11')
        b('s_cbranch_scc1 L_roleB')
        b(f's_cmp_lt_u32 {s(S_CG)}, 14')
        b('s_cbranch_scc1 L_roleC')
        b('s_branch L_roleD')
        return b.b

    def switch_slab(self, b, sel, col, mask):
        with b.atomic():
            b(f's_cmp_eq_u32 {s(sel)}, 0')
            b(f's_mov_b32 {s(S_RS)}, 2752')
            b(f's_cmov_b32 {s(S_RS)}, 3072')
            b(f's_mov_b32 {s(S_COL)}, {s(col)}')
            b(f's_mov_b32 {s(S_MASK)}, {s(mask)}')
            set_w_srd(b, sel)
            wd_voffsets(b)

    def mfma_pair_R(self, b, K):
        wf = V_WF + 8 * (K & 3)
        for ch in range(2):
            acc = V_ACC0 + 16 * ch
            b(f'v_mfma_f32_32x32x16_bf16 {v(acc, 16)}, {v(wf + 4 * ch, 4)}, {a(A_X + 4 * K, 4)}, {v(acc, 16)}')

    def touch_setup(self, b):
        b(f'v_lshrrev_b32 {v(V_T0)}, 3, {v(V_LANE)}')
        b(f'v_lshlrev_b32 {v(V_T0)}, 12, {v(V_T0)}')
        b(f'v_and_b32 {v(V_T0 + 1)}, 7, {v(V_LANE)}')
        b(f'v_lshl_add_u32 {v(V_TCH)}, {v(V_T0 + 1)}, 7, {v(V_T0)}')
        b(f'v_lshlrev_b32 {v(V_TW1)}, 10, {v(V_LANE)}')
        b(f'v_mov_b32 {v(V_TW2)}, {v(V_TW1)}')
        b(f'v_mov_b32 {v(V_T0)}, {hex(OOB)}')
        b(f'v_cmp_lt_u32 vcc, 21, {v(V_LANE)}')
        b(f'v_cndmask_b32 {v(V_TW1)}, {v(V_TW1)}, {v(V_T0)}, vcc')
        b(f'v_cmp_lt_u32 vcc, 15, {v(V_LANE)}')
        b(f'v_cndmask_b32 {v(V_TW2)}, {v(V_TW2)}, {v(V_T0)}, vcc')
        srd(b, SRD_U, P_WOUT, 688 * 1024)
        srd(b, SRD_X, P_WO, 512 * 1024)

    def touch_items(self):
        T = OPT.get('tch', 0)
        it = []
        if T & 1:
            for k in range(2):
                it.append([f's_and_b32 {s(S_Q0)}, {s(S_J)}, 3',
                           f's_lshl_b32 {s(S_Q0)}, {s(S_Q0)}, 16',
                           f's_add_u32 {s(S_Q0)}, {s(S_Q0)}, {s(S_AS)}'] +
                          ([f's_add_u32 {s(S_Q0)}, {s(S_Q0)}, {8 * 4096}'] if k else []) +
                          [('t', f'buffer_load_dword {v(V_DUM)}, {v(V_TCH)}, {s(SRD_A, 4)}, {s(S_Q0)} offen', dict(nodst=True))])
        if T & 8:
            it.append([f's_lshl2_add_u32 {s(S_Q0)}, {s(S_WG)}, {s(S_W)}',
                       f's_lshl_b32 {s(S_Q0)}, {s(S_Q0)}, 13',
                       f'v_lshlrev_b32 {v(V_T0)}, 7, {v(V_LANE)}',
                       ('t', f'buffer_load_dword {v(V_DUM)}, {v(V_T0)}, {s(SRD_A, 4)}, {s(S_Q0)} offen', dict(nodst=True))])
        if T & 2:
            it.append([f's_lshr_b32 {s(S_Q0)}, {s(S_WG)}, 5',
                       f's_mul_i32 {s(S_Q1)}, {s(S_Q0)}, 86',
                       f's_mul_i32 {s(S_Q0)}, {s(S_W)}, 22',
                       f's_add_u32 {s(S_Q0)}, {s(S_Q0)}, {s(S_Q1)}',
                       f's_lshl_b32 {s(S_Q0)}, {s(S_Q0)}, 10',
                       f's_lshl_b32 {s(S_Q1)}, {s(S_J)}, 7',
                       f's_add_u32 {s(S_Q0)}, {s(S_Q0)}, {s(S_Q1)}',
                       ('t', f'buffer_load_dword {v(V_DUM)}, {v(V_TW1)}, {s(SRD_U, 4)}, {s(S_Q0)} offen', dict(nodst=True))])
            it.append([f's_lshr_b32 {s(S_Q0)}, {s(S_WG)}, 5',
                       f's_lshl_b32 {s(S_Q0)}, {s(S_Q0)}, 2',
                       f's_add_u32 {s(S_Q0)}, {s(S_Q0)}, {s(S_W)}',
                       f's_lshl_b32 {s(S_Q0)}, {s(S_Q0)}, 14',
                       f's_lshl_b32 {s(S_Q1)}, {s(S_J)}, 7',
                       f's_add_u32 {s(S_Q0)}, {s(S_Q0)}, {s(S_Q1)}',
                       ('t', f'buffer_load_dword {v(V_DUM)}, {v(V_TW2)}, {s(SRD_X, 4)}, {s(S_Q0)} offen', dict(nodst=True))])
        return it

    def w3_touch(self, b):
        with b.atomic():
            b(f's_cmp_eq_u32 {s(S_D3SEL)}, 0')
            b(f's_cselect_b32 {s(SRD_U)}, {s(P_WQKV)}, {s(P_WIN)}')
            b(f's_cselect_b32 {s(SRD_U + 1)}, {s(P_WQKV + 1)}, {s(P_WIN + 1)}')
            b(f's_mov_b32 {s(SRD_U + 2)}, {hex(512 * 2752)}')
            b(f's_cmov_b32 {s(SRD_U + 2)}, {hex(512 * 3072)}')
            b(f's_mov_b32 {s(SRD_U + 3)}, 0x20000')
            b(f's_mov_b32 {s(S_T0)}, 2752')
            b(f's_cmov_b32 {s(S_T0)}, 3072')
            b(f'v_and_b32 {v(V_T0)}, 15, {v(V_LANE)}')
            b(f'v_mul_lo_u32 {v(V_T0)}, {v(V_T0)}, {s(S_T0)}')
            b(f'v_bfe_u32 {v(V_T0 + 1)}, {v(V_LANE)}, 4, 1')
            b(f'v_mul_u32_u24 {v(V_T0 + 1)}, 124, {v(V_T0 + 1)}')
            b(f'v_add_u32 {v(V_T0)}, {v(V_T0)}, {v(V_T0 + 1)}')
            b(f's_max_i32 {s(S_T1)}, {s(S_D3COL)}, 0')
            b(f'v_add_u32 {v(V_T0)}, {s(S_T1)}, {v(V_T0)}')
            b(f'v_mov_b32 {v(V_T0 + 1)}, {hex(OOB)}')
            b(f'v_cmp_lt_u32 vcc, 31, {v(V_LANE)}')
            b(f'v_cndmask_b32 {v(V_T0)}, {v(V_T0)}, {v(V_T0 + 1)}, vcc')
            b(f's_lshr_b32 {s(S_T1)}, {s(S_WG)}, 5')
            b(f's_lshl2_add_u32 {s(S_T1)}, {s(S_T1)}, {s(S_W)}')
            b(f's_lshl_b32 {s(S_T1)}, {s(S_T1)}, 4')
            b(f's_mul_i32 {s(S_T1)}, {s(S_T1)}, {s(S_T0)}')
            b(f'buffer_load_dword {v(V_DUM)}, {v(V_T0)}, {s(SRD_U, 4)}, {s(S_T1)} offen', tag='t', nodst=True)

    def post_l1(self, b, role):
        it = []
        self.touch_setup(b)
        for p in (0, 1, 2, 3):
            it += w_piece_items(p, R2, 'w2')
        it += self.touch_items()
        if OPT.get('c0early', 1) == 1:
            it += a_chunk_items(0, 'f0')
        return it

    def w3_items(self, b, region=R0):
        b.flush()
        self.switch_slab(b, S_D3SEL, S_D3COL, S_D3MASK)
        for p in range(8):
            b.add(w_piece_items(p, region, 'w3'))
        if OPT.get('c0early', 1) == 2:
            b.add(a_chunk_items(0, 'f0'))

    def set_wr(self, b, region):
        with b.atomic():
            tr_addr(b, V_WR, False)
            if region:
                b(f'v_add_u32 {v(V_WR)}, {region}, {v(V_WR)}')
            b(f'v_xor_b32 {v(V_WR + 1)}, 64, {v(V_WR)}')

    def main_loop(self, b, orient, hooks=None, pop_every=1):
        hooks = hooks or {}
        D = 2

        def rd(K):
            wf = V_WF + 8 * (K & 3)
            for ch in range(2):
                for t in range(2):
                    b(f'ds_read_b64_tr_b16 {v(wf + 4 * ch + 2 * t, 2)}, {v(V_WR + ch)} offset:{2048 * K + 512 * t}')
        sv = b.period
        b.period = 0
        n0 = b.mark()
        for K in range(D):
            rd(K)
        for K in range(32):
            if K + D < 32:
                rd(K + D)
            wf = V_WF + 8 * (K & 3)
            x = a(A_X + 4 * K, 4)
            for ch in range(2):
                acc = V_ACC1 + 16 * ch
                c = '0' if K == 0 else v(acc, 16)
                if orient == 'T':
                    b(f'v_mfma_f32_32x32x16_bf16 {v(acc, 16)}, {v(wf + 4 * ch, 4)}, {x}, {c}')
                else:
                    b(f'v_mfma_f32_32x32x16_bf16 {v(acc, 16)}, {x}, {v(wf + 4 * ch, 4)}, {c}')
            for fn in hooks.get(K, []):
                fn(b, 4 if K + D < 32 else 0)
            if OPT.get('s3st') and self.s3flag and K in (7, 15, 19, 23, 27):
                stamp(b, {7: 11, 15: 13, 19: 15, 23: 19, 27: 22}[K])
            if K % pop_every == pop_every - 1:
                b.pop(1)
        b.weave_from(n0, G=5)
        b.period = sv

    def apipe_hooks(self, first_K, step):
        hooks = {}

        def mk_issue(p):
            return lambda b, younger: b.add(a_piece_items(p >> 1, p & 1, f'h{p & 1}'))

        def mk_move(p):
            def f(b, younger):
                b.ensure(f'a{p >> 1}_{p & 1}')
                b.wait_vm(f'a{p >> 1}_{p & 1}')
                a_piece_read(b, p >> 1, p & 1, f'h{p & 1}')
            return f

        def mk_refill(p):
            def f(b, younger):
                b(f's_waitcnt lgkmcnt({younger})')
                b.add(a_piece_items(p >> 1, p & 1, f'h{p & 1}'))
            return f
        return hooks, mk_issue, mk_move, mk_refill

    def z2_epilogue(self, b, mid=None):
        for g in range(4):
            gelu_group(b, [V_ACC0 + 8 * g + k for k in range(8)], V_TMP)
            if g == 0 and mid:
                mid()
        s1, s2 = V_ST, V_ST + 1
        t = V_TMP
        b(f'v_add_f32 {v(s1)}, {v(V_ACC0)}, {v(V_ACC0 + 1)}')
        b(f'v_mul_f32 {v(s2)}, {v(V_ACC0)}, {v(V_ACC0)}')
        b(f'v_add_f32 {v(t)}, {v(V_ACC0 + 2)}, {v(V_ACC0 + 3)}')
        b(f'v_mul_f32 {v(t + 1)}, {v(V_ACC0 + 1)}, {v(V_ACC0 + 1)}')
        for k in range(4, 32, 2):
            b(f'v_add_f32 {v(s1)}, {v(s1)}, {v(V_ACC0 + k)}')
            b(f'v_add_f32 {v(t)}, {v(t)}, {v(V_ACC0 + k + 1)}')
        for k in range(2, 32, 2):
            b(f'v_fmac_f32 {v(s2)}, {v(V_ACC0 + k)}, {v(V_ACC0 + k)}')
            b(f'v_fmac_f32 {v(t + 1)}, {v(V_ACC0 + k + 1)}, {v(V_ACC0 + k + 1)}')
        with b.atomic():
            b(f'v_add_f32 {v(s1)}, {v(s1)}, {v(t)}')
            b(f'v_add_f32 {v(s2)}, {v(s2)}, {v(t + 1)}')
            b(f'v_permlane32_swap_b32 {v(s1)}, {v(s2)}')
            b(f'v_add_f32 {v(s1)}, {v(s1)}, {v(s2)}')
            b(f'v_mov_b32 {v(s2)}, {s(S_N)}')
            b(f's_mul_i32 {s(S_T0)}, {s(S_TB)}, 5632')
            b(f's_lshl_b32 {s(S_T1)}, {s(S_CG)}, 9')
            b(f's_add_u32 {s(S_T0)}, {s(S_T0)}, {s(S_T1)}')
            b(f's_add_u32 {s(S_T0)}, {s(S_T0)}, {WS_STATS}')
            b(f'buffer_store_dwordx2 {v(s1, 2)}, {v(V_L8)}, {s(SRD_WS, 4)}, {s(S_T0)} offen sc1', tag='st')
        stamp(b, 2)

    def stats_issue(self, b):
        with b.atomic():
            b(f's_mul_i32 {s(S_T5)}, {s(S_TB)}, 5632')
            b(f's_add_u32 {s(S_T5)}, {s(S_T5)}, {WS_STATS}')
            b(f's_add_u32 {s(S_T4)}, {s(S_T5)}, 4096')
            for js in range(11):
                so = S_T5 if js < 8 else S_T4
                off = 512 * js if js < 8 else 512 * js - 4096
                b(f'buffer_load_dwordx2 {v(V_STAT + 2 * js, 2)}, {v(V_L8)}, {s(SRD_WS, 4)}, {s(so)} offen offset:{off} sc1')

    def stats_check_code(self, b):
        t = V_TMP
        b(f'v_min3_u32 {v(t)}, {v(V_STAT + 1)}, {v(V_STAT + 3)}, {v(V_STAT + 5)}')
        b(f'v_max3_u32 {v(t + 1)}, {v(V_STAT + 1)}, {v(V_STAT + 3)}, {v(V_STAT + 5)}')
        for js in range(3, 11, 2):
            b(f'v_min3_u32 {v(t)}, {v(t)}, {v(V_STAT + 2 * js + 1)}, {v(V_STAT + 2 * js + 3)}')
            b(f'v_max3_u32 {v(t + 1)}, {v(t + 1)}, {v(V_STAT + 2 * js + 1)}, {v(V_STAT + 2 * js + 3)}')
        b(f'v_xor_b32 {v(t)}, {s(S_N)}, {v(t)}')
        b(f'v_xor_b32 {v(t + 1)}, {s(S_N)}, {v(t + 1)}')
        b(f'v_or_b32 {v(t)}, {v(t)}, {v(t + 1)}')
        b(f'v_cmp_ne_u32 vcc, 0, {v(t)}')

    def z2_norm(self, b, after_check=None):
        cont, slow = self.lab('ZC'), self.lab('ZS')
        with b.atomic():
            self.stats_check_code(b)
            b(f's_cbranch_vccnz {slow}')
            b.label(cont)
        if after_check:
            after_check()
        sb = Block('tmp')
        sb(f's_sleep 1')
        sb(f's_mul_i32 {s(S_T5)}, {s(S_TB)}, 5632')
        sb(f's_add_u32 {s(S_T5)}, {s(S_T5)}, {WS_STATS}')
        sb(f's_add_u32 {s(S_T4)}, {s(S_T5)}, 4096')
        for js in range(11):
            so = S_T5 if js < 8 else S_T4
            off = 512 * js if js < 8 else 512 * js - 4096
            sb(f'buffer_load_dwordx2 {v(V_STAT + 2 * js, 2)}, {v(V_L8)}, {s(SRD_WS, 4)}, {s(so)} offen offset:{off} sc1')
        sb('s_waitcnt vmcnt(0)')
        self.stats_check_code(sb)
        txt = '\n'.join('    ' + i.text for i in sb.ins)
        self.slow.append(f'''{slow}:
    s_mov_b32 {s(S_CNT)}, {SPIN_MAX}
{slow}_l:
{txt}
{slow_mark(30)}    s_cbranch_vccz {cont}
    s_sub_u32 {s(S_CNT)}, {s(S_CNT)}, 1
    s_cmp_lg_u32 {s(S_CNT)}, 0
    s_cbranch_scc1 {slow}_l
    s_branch {cont}''')
        t = V_TMP
        b(f'v_add_f32 {v(t)}, {v(V_STAT)}, {v(V_STAT + 2)}')
        b(f'v_add_f32 {v(t + 1)}, {v(V_STAT + 4)}, {v(V_STAT + 6)}')
        for js in range(4, 11, 2):
            b(f'v_add_f32 {v(t)}, {v(t)}, {v(V_STAT + 2 * js)}')
            if js + 1 < 11:
                b(f'v_add_f32 {v(t + 1)}, {v(t + 1)}, {v(V_STAT + 2 * js + 2)}')
        b(f'v_add_f32 {v(t)}, {v(t)}, {v(t + 1)}')
        b(f'v_mov_b32 {v(t + 1)}, {v(t)}')
        b(f'v_permlane32_swap_b32 {v(t)}, {v(t + 1)}')
        b(f'v_mul_f32 {v(t)}, {hex(f2u(1.0 / 688))}, {v(t)}')
        b(f'v_mul_f32 {v(t + 1)}, {hex(f2u(1.0 / 688))}, {v(t + 1)}')
        b(f'v_fma_f32 {v(t + 1)}, -{v(t)}, {v(t)}, {v(t + 1)}')
        b(f'v_max_f32 {v(t + 1)}, 0, {v(t + 1)}')
        b(f'v_add_f32 {v(t + 1)}, {hex(f2u(1e-5))}, {v(t + 1)}')
        b(f'v_rsq_f32 {v(t + 1)}, {v(t + 1)}')
        b(f'v_mul_f32 {v(t)}, {v(t)}, {v(t + 1)}')
        b(f'v_sub_f32 {v(t)}, 0, {v(t)}')
        w0 = t + 2
        r0 = t + 6
        with b.atomic():
            b(f's_lshl_b32 {s(S_T0)}, {s(S_W)}, 14')
            b(f's_add_u32 {s(S_T0)}, {s(S_T0)}, {(R0 + 8192) if OPT.get("aplan", 1) == 3 else (R2 + 8192)}')
            b(f'v_and_b32 {v(w0)}, 31, {v(V_LANE)}')
            b(f'v_lshrrev_b32 {v(w0 + 1)}, 5, {v(V_LANE)}')
            b(f'v_and_b32 {v(w0 + 2)}, 15, {v(V_LANE)}')
            b(f'v_xor_b32 {v(w0 + 1)}, {v(w0 + 1)}, {v(w0 + 2)}')
            b(f'v_lshlrev_b32 {v(w0 + 1)}, 3, {v(w0 + 1)}')
            b(f'v_lshl_add_u32 {v(w0)}, {v(w0)}, 7, {v(w0 + 1)}')
            b(f'v_add_u32 {v(w0)}, {s(S_T0)}, {v(w0)}')
            b(f'v_bfe_u32 {v(r0)}, {v(V_LANE)}, 2, 2')
            b(f'v_lshrrev_b32 {v(r0 + 1)}, 5, {v(V_LANE)}')
            b(f'v_lshl_add_u32 {v(r0)}, {v(r0 + 1)}, 3, {v(r0)}')
            b(f'v_bfe_u32 {v(r0 + 1)}, {v(V_LANE)}, 4, 1')
            b(f'v_and_b32 {v(r0 + 2)}, 3, {v(V_LANE)}')
            b(f'v_lshl_add_u32 {v(r0 + 1)}, {v(r0 + 1)}, 2, {v(r0 + 2)}')
            b(f'v_xor_b32 {v(r0 + 1)}, {v(r0 + 1)}, {v(r0)}')
            b(f'v_lshlrev_b32 {v(r0 + 1)}, 3, {v(r0 + 1)}')
            b(f'v_lshl_add_u32 {v(r0)}, {v(r0)}, 7, {v(r0 + 1)}')
            b(f'v_add_u32 {v(r0)}, {s(S_T0)}, {v(r0)}')
        ra = r0 + 1
        for bb in range(2):
            for tt in range(2):
                b(f'v_xor_b32 {v(ra + 2 * bb + tt)}, {8 * ((8 * bb) ^ (4 * tt))}, {v(r0)}')
        pk = V_PV
        for bb in range(2):
            for j in range(4):
                r = V_ACC0 + 16 * bb + 4 * j
                for k in range(4):
                    b(f'v_fma_f32 {v(r + k)}, {v(r + k)}, {v(t + 1)}, {v(t)}')
                b(f'v_cvt_pk_bf16_f32 {v(pk + 8 * bb + 2 * j)}, {v(r)}, {v(r + 1)}')
                b(f'v_cvt_pk_bf16_f32 {v(pk + 8 * bb + 2 * j + 1)}, {v(r + 2)}, {v(r + 3)}')
                K = 8 * bb + 2 * j
                if K:
                    b(f'v_xor_b32 {v(w0 + 1)}, {8 * K}, {v(w0)}')
                    ad = w0 + 1
                else:
                    ad = w0
                b(f'ds_write_b64 {v(ad)}, {v(pk + 8 * bb + 2 * j, 2)}')
        b.wait_lds()
        fr = V_TMP + 16
        for bb in range(2):
            for kq in range(2):
                for tt in range(2):
                    b(f'ds_read_b64_tr_b16 {v(fr + 8 * bb + 4 * kq + 2 * tt, 2)}, {v(ra + 2 * bb + tt)} offset:{512 * tt + 2048 * kq}')
        with b.atomic():
            b(f's_lshl_b32 {s(S_T0)}, {s(S_CG)}, 18')
            b(f's_lshl_b32 {s(S_T1)}, {s(S_TB)}, 11')
            b(f's_add_u32 {s(S_T0)}, {s(S_T0)}, {s(S_T1)}')
            b(f's_add_u32 {s(S_T0)}, {s(S_T0)}, {WS_Z2N}')
            b(f's_add_u32 {s(S_T1)}, {s(S_T0)}, {128 * 1024}')
            for bb in range(2):
                for kq in range(2):
                    so = S_T0 if bb == 0 else S_T1
                    b(f'buffer_store_dwordx4 {v(fr + 8 * bb + 4 * kq, 4)}, {v(V_L16)}, {s(SRD_WS, 4)}, {s(so)} offen offset:{1024 * kq} sc1', tag='z2n')
        stamp(b, 3)

    def flag_store(self, b, base, tagwait):
        b.wait_vm(tagwait)
        with b.atomic():
            b(f's_lshl4_add_u32 {s(S_T0)}, {s(S_RB)}, {s(S_CG)}')
            b(f's_lshl4_add_u32 {s(S_T0)}, {s(S_T0)}, {s(S_W)}')
            b(f's_lshl_b32 {s(S_T0)}, {s(S_T0)}, 2')
            b(f's_add_u32 {s(S_T0)}, {s(S_T0)}, {base}')
            b(f'v_mov_b32 {v(V_POLL)}, {s(S_N)}')
            b(f'buffer_store_dword {v(V_POLL)}, off, {s(SRD_WS, 4)}, {s(S_T0)} sc1', tag='flag')

    def t_epilogue(self, b, kind, acc, mid=None, midg=1):
        out = V_PV
        for g in range(4):
            if g == midg and mid:
                mid()
            xs = [acc + 8 * g + k for k in range(8)]
            if kind == 'gelu':
                gelu_group(b, xs, V_TMP)
            else:
                phi_group(b, xs, V_TMP)
            for k in range(4):
                b(f'v_cvt_pk_bf16_f32 {v(out + 4 * g + k)}, {v(xs[2 * k])}, {v(xs[2 * k + 1])}')
            so = S_O0 if g < 2 else S_O1
            b(f'buffer_store_dwordx4 {v(out + 4 * g, 4)}, {v(V_L16)}, {s(SRD_WS, 4)}, {s(so)} offen offset:{1024 * (g & 1)} sc1', tag='p1')

    def set_out_addr(self, b, kind, slab_code):
        with b.atomic():
            for l in slab_code:
                b(l)
            base, stride = (WS_PQ, 32768) if kind == 'q' else (WS_Z1F, 45056)
            b(f's_lshl_b32 {s(S_T4)}, {s(S_T4)}, 12')
            b(f's_add_u32 {s(S_T4)}, {s(S_T4)}, {base}')
            b(f's_mul_i32 {s(S_O0)}, {s(S_TB)}, {stride}')
            b(f's_add_u32 {s(S_O0)}, {s(S_O0)}, {s(S_T4)}')
            b(f's_add_u32 {s(S_O1)}, {s(S_O0)}, 2048')

    def k_epilogue(self, b):
        for g in range(4):
            xs = [V_ACC1 + 8 * g + k for k in range(8)]
            phi_group(b, xs, V_TMP)
            for k in range(4):
                b(f'v_cvt_pk_bf16_f32 {v(V_PK + 4 * g + k)}, {v(xs[2 * k])}, {v(xs[2 * k + 1])}')

    def v_epilogue(self, b):
        for k in range(16):
            b(f'v_cvt_pk_bf16_f32 {v(V_PV + k)}, {v(V_ACC1 + 2 * k)}, {v(V_ACC1 + 2 * k + 1)}')
        ones = V_TMP
        for k in range(4):
            b(f'v_mov_b32 {v(ones + k)}, 0x3f803f80')
        for par in range(2):
            for ch in range(2):
                g = 2 * ch + par
                kv, zz = V_KV + 16 * ch, V_KZ + 16 * ch
                c0 = '0' if par == 0 else v(kv, 16)
                c1 = '0' if par == 0 else v(zz, 16)
                b(f'v_mfma_f32_32x32x16_bf16 {v(kv, 16)}, {v(V_PK + 4 * g, 4)}, {v(V_PV + 4 * g, 4)}, {c0}')
                b(f'v_mfma_f32_32x32x16_bf16 {v(zz, 16)}, {v(V_PK + 4 * g, 4)}, {v(ones, 4)}, {c1}')

    def kv_finish(self, b, R0=R0):
        with b.atomic():
            b(f'v_and_b32 {v(V_T0)}, 31, {v(V_LANE)}')
            b(f'v_cmp_gt_u32 vcc, 16, {v(V_T0)}')
            for ch in range(2):
                kv, zz = V_KV + 16 * ch, V_KZ + 16 * ch
                for k in range(8):
                    b(f'v_cndmask_b32 {v(kv + k)}, {v(zz + k)}, {v(kv + k)}, vcc')
                for k in range(8, 16):
                    b(f'v_cndmask_b32 {v(kv + k)}, {v(kv + k)}, {v(zz + k)}, vcc')
            b('s_barrier')
            b(f's_lshl_b32 {s(S_T0)}, {s(S_W)}, 11')
            b(f's_add_u32 {s(S_T0)}, {s(S_T0)}, {R0}')
            b(f'v_add_u32 {v(V_T0)}, {s(S_T0)}, {v(V_L16)}')
            for d in range(4):
                for q in range(2):
                    b(f'ds_write_b128 {v(V_T0)}, {v(V_KV + 8 * d + 4 * q, 4)} offset:{8192 * d + 1024 * q}')
            b(f's_lshl_b32 {s(S_T0)}, {s(S_W)}, 13')
            b(f's_add_u32 {s(S_T0)}, {s(S_T0)}, {R0}')
            b(f'v_add_u32 {v(V_T0)}, {s(S_T0)}, {v(V_L16)}')
            b.wait_lds()
            b('s_barrier')
            X = V_KZ
            for src in range(4):
                for q in range(2):
                    b(f'ds_read_b128 {v(X + 8 * src + 4 * q, 4)}, {v(V_T0)} offset:{2048 * src + 1024 * q}')
            for k in range(8):
                b(f'v_add_f32 {v(X + k)}, {v(X + k)}, {v(X + 8 + k)}')
                b(f'v_add_f32 {v(X + 16 + k)}, {v(X + 16 + k)}, {v(X + 24 + k)}')
            for k in range(8):
                b(f'v_add_f32 {v(X + k)}, {v(X + k)}, {v(X + 16 + k)}')
            b(f's_lshl2_add_u32 {s(S_T0)}, {s(S_CG)}, {s(S_W)}')
            b(f's_lshl_b32 {s(S_T0)}, {s(S_T0)}, 15')
            b(f's_lshl_b32 {s(S_T1)}, {s(S_RB)}, 10')
            b(f's_add_u32 {s(S_T0)}, {s(S_T0)}, {s(S_T1)}')
            b(f's_add_u32 {s(S_T0)}, {s(S_T0)}, {WS_KVP}')
            for q in range(2):
                if q:
                    b(f's_add_u32 {s(S_T0)}, {s(S_T0)}, 16384')
                b(f'buffer_store_dwordx4 {v(X + 4 * q, 4)}, {v(V_L16)}, {s(SRD_WS, 4)}, {s(S_T0)} offen sc1', tag='p1')

    def pre_slab(self, b, tag):
        b.ensure(tag)
        b.wait_vm(tag)
        b('s_barrier')

    def mv_piece(self, b, p):
        b.ensure(f'a{p >> 1}_{p & 1}')
        b.wait_vm(f'a{p >> 1}_{p & 1}')
        a_piece_read(b, p >> 1, p & 1, f'h{p & 1}')

    def fetch_piece(self, b, p):
        b.add(a_piece_items(p >> 1, p & 1, f'h{p & 1}'))

    def mv_chunk(self, b, c, slot):
        b.ensure(f'a{c}_0')
        b.ensure(f'a{c}_1')
        b.wait_vm([f'a{c}_0', f'a{c}_1'])
        a_chunk_read(b, c, slot)

    def slab3_hooks(self, extra=None):
        h = {}

        def add(K, fn):
            h.setdefault(K, []).append(fn)
        K0 = OPT.get('k0', 20)
        if OPT.get('aplan', 1) == 2:
            for K, fn in (extra or {}).items():
                add(K, fn)
            return h
        add(K0, lambda b, y: self.mv_chunk(b, 0, 'f0'))
        add(K0 + 1, lambda b, y: (b(f's_waitcnt lgkmcnt({y})'), b.add(a_chunk_items(3, 'f0'))))
        add(K0 + 4, lambda b, y: self.mv_chunk(b, 1, 'f1'))
        add(K0 + 5, lambda b, y: (b(f's_waitcnt lgkmcnt({y})'), b.add(a_chunk_items(4, 'f1'))))
        add(K0 + 8, lambda b, y: self.mv_chunk(b, 2, 'f2'))
        add(K0 + 9, lambda b, y: (b(f's_waitcnt lgkmcnt({y})'), b.add(a_chunk_items(5, 'f2'))))
        for K, fn in (extra or {}).items():
            add(K, fn)
        return h

    def mid_a(self, b):
        if OPT.get('aplan', 1) == 2:
            return
        if not OPT.get('c0early', 1):
            b.add(a_chunk_items(0, 'f0'))
        b.add(a_chunk_items(1, 'f1'))

    def mid_b(self, b):
        pass

    def g_pass(self, b, R0=R0, hooks3=None):
        ga = V_T0 + 4
        b.wait_vm('gw')
        with b.atomic():
            b(f'v_lshrrev_b32 {v(ga)}, 5, {v(V_LANE)}')
            b(f'v_lshlrev_b32 {v(ga)}, 4, {v(ga)}')
            b(f's_lshl_b32 {s(S_T0)}, {s(S_W)}, 10')
            b(f's_add_u32 {s(S_T0)}, {s(S_T0)}, {R0}')
            b(f'v_add_u32 {v(ga)}, {s(S_T0)}, {v(ga)}')
        acc = V_ACC1
        sv = b.period
        b.period = 0
        hooks = hooks3 if hooks3 is not None else self.slab3_hooks()
        for K in range(32):
            wf = V_WF + 4 * (K & 3)
            if K == 0:
                for k2 in range(3):
                    b(f'ds_read_b128 {v(V_WF + 4 * k2, 4)}, {v(ga)} offset:{32 * k2}')
            if K + 3 < 32:
                b(f'ds_read_b128 {v(V_WF + 4 * ((K + 3) & 3), 4)}, {v(ga)} offset:{32 * (K + 3)}')
            b(f'v_mfma_f32_32x32x16_bf16 {v(acc, 16)}, {v(wf, 4)}, {a(A_X + 4 * K, 4)}, {"0" if K == 0 else v(acc, 16)}')
            for fn in hooks.get(K, []):
                fn(b, 1 if K + 3 < 32 else 0)
            b.pop(1)
        b.period = sv
        t = V_TMP
        b(f'v_mul_f32 {v(t)}, {hex(f2u(-LOG2E))}, {v(acc)}')
        b(f'v_exp_f32 {v(t)}, {v(t)}')
        b(f'v_add_f32 {v(t)}, 1.0, {v(t)}')
        b(f'v_rcp_f32 {v(t)}, {v(t)}')
        with b.atomic():
            b(f'v_and_b32 {v(t + 1)}, 31, {v(V_LANE)}')
            b(f'v_lshlrev_b32 {v(t + 1)}, 2, {v(t + 1)}')
            b(f's_lshl_b32 {s(S_T0)}, {s(S_TB)}, 7')
            b(f's_add_u32 {s(S_T0)}, {s(S_T0)}, {WS_GATE}')
            b(f'buffer_store_dword {v(t)}, {v(t + 1)}, {s(SRD_WS, 4)}, {s(S_T0)} offen sc1', tag='p1')

    def pre_epi3(self, b):
        if OPT.get('aplan', 1) == 2:
            b.add(a_chunk_items(1, 'f1'))
            b.add(a_chunk_items(2, 'f2'))

    def a_tail(self, b):
        b.flush()
        self.flag_store(b, WS_FP1, 'p1')

    def role_AB(self, role):
        b = St(self, 'ROLE' + role)
        b.label('L_role' + role)
        b.add(self.post_l1(b, role))
        orient = 'N' if role == 'A' else 'T'
        if OPT.get('w3z', 0):
            b.period = 9
            self.z2_epilogue(b, mid=lambda: self.w3_items(b))
            self.pre_slab(b, 'w2')
            self.set_wr(b, R2)
            stamp(b, 16)
            self.main_loop(b, orient, pop_every=1)
        else:
            b.period = 14
            self.z2_epilogue(b)
            self.pre_slab(b, 'w2')
            self.set_wr(b, R2)
            stamp(b, 16)
            self.w3_items(b)
            self.s3flag = (OPT.get('s3st') == 2)
            self.main_loop(b, orient, pop_every=1)
            self.s3flag = False
        stamp(b, 17)
        b.flush()
        b('s_barrier')
        self.stats_issue(b)
        b.period = 12
        if role == 'A':
            self.k_epilogue(b)
        else:
            self.set_out_addr(b, 'q', [f's_sub_u32 {s(S_T4)}, {s(S_CG)}, 8'])
            self.t_epilogue(b, 'phi', V_ACC1)
        stamp(b, 18)
        if OPT.get('aearly', 0):
            b.period = 7
            self.z2_norm(b, after_check=lambda: self.mid_a(b))
        else:
            self.z2_norm(b)
            self.mid_a(b)
        if OPT.get('aplan', 1) != 2:
            b.add(a_chunk_items(2, 'f2'))
        self.mid_b(b)
        self.pre_slab(b, 'w3')
        self.set_wr(b, R0)
        stamp(b, 20)
        hooks = self.slab3_hooks({OPT.get('kz', 12): lambda bb, y: self.flag_store(bb, WS_FZ2, 'z2n')})
        self.s3flag = (OPT.get('s3st') == 3)
        self.main_loop(b, orient, hooks)
        self.s3flag = False
        stamp(b, 21)
        b.period = 8
        late = OPT.get('s1late', 1)
        if not late:
            s1_issue(self, b)
        self.pre_epi3(b)
        if role == 'A':
            self.v_epilogue(b)
            if late:
                s1_issue(self, b)
            self.kv_finish(b)
        else:
            self.set_out_addr(b, 'z1', [f's_sub_u32 {s(S_T4)}, {s(S_CG)}, 8'])
            self.t_epilogue(b, 'gelu', V_ACC1, mid=(lambda: s1_issue(self, b)) if late else None, midg=2)
        stamp(b, 23)
        self.a_tail(b)
        b('s_branch L_p1_done')
        return b.b

    def p3_slab2_hooks(self):
        h = {}

        def add(K, fn):
            h.setdefault(K, []).append(fn)
        add(0, lambda b, y: (b.add(a_chunk_items(1, 'g1')), b.add(a_chunk_items(2, 'g2'))))
        k0, k1, k2 = OPT.get('m0', 12), OPT.get('m1', 26), OPT.get('m2', 99)
        add(k0, lambda b, y: self.mv_chunk(b, 0, 'f0'))
        add(k0 + 1, lambda b, y: (b(f's_waitcnt lgkmcnt({y})'), b.add(a_chunk_items(3, 'f0'))))
        if k1 < 32:
            add(k1, lambda b, y: self.mv_chunk(b, 1, 'g1'))
        if k2 < 32:
            add(k2, lambda b, y: self.mv_chunk(b, 2, 'g2'))
        return h

    def p3_late_moves(self, b):
        if OPT.get('m1', 26) >= 32:
            self.mv_chunk(b, 1, 'g1')
        if OPT.get('m2', 99) >= 32:
            self.mv_chunk(b, 2, 'g2')

    def p3_slab3_hooks(self, extra=None):
        h = {}

        def add(K, fn):
            h.setdefault(K, []).append(fn)
        add(14, lambda b, y: self.mv_chunk(b, 4, 'f0'))
        add(15, lambda b, y: (b(f's_waitcnt lgkmcnt({y})'), b.add(a_chunk_items(7, 'f0'))))
        add(22, lambda b, y: self.mv_chunk(b, 5, 'g1'))
        add(30, lambda b, y: self.mv_chunk(b, 6, 'g2'))
        for K, fn in (extra or {}).items():
            add(K, fn)
        return h

    def p3_mid(self, b):
        self.mv_chunk(b, 3, 'f0')
        b.wait_lds()
        b.add(a_chunk_items(4, 'f0'))
        b.add(a_chunk_items(5, 'g1'))
        b.add(a_chunk_items(6, 'g2'))

    def p3_tail(self, b):
        b.flush()
        self.flag_store(b, WS_FP1, 'p1')
        self.mv_chunk(b, 7, 'f0')
        b.wait_lds()

    def role3(self, role):
        b = St(self, 'ROLE' + role)
        b.label('L_role' + role)
        z2 = role in 'AB'
        orient = 'N' if role == 'A' else 'T'
        b.add(self.post_l1(b, role))
        if z2:
            b.period = 14
            self.z2_epilogue(b)
        else:
            b.period = 8
            self.set_out_addr(b, 'q', [f's_sub_u32 {s(S_T4)}, {s(S_CG)}, 8'])
            self.t_epilogue(b, 'phi', V_ACC0)
        self.pre_slab(b, 'w2')
        self.set_wr(b, R2)
        b.flush()
        stamp(b, 16)
        self.main_loop(b, orient, self.p3_slab2_hooks())
        stamp(b, 17)
        b.flush()
        b('s_barrier')
        if z2:
            self.stats_issue(b)
        if role != 'D':
            self.w3_items(b, R2)
        else:
            srd(b, SRD_T, P_GW, 1024)
            b(f's_lshl_b32 {s(S_T0)}, {s(S_W)}, 10')
            b(f's_add_u32 m0, {s(S_T0)}, {R2}')
            b(f's_lshl_b32 {s(S_T0)}, {s(S_ROT)}, 7')
            b(f'v_add_u32 {v(V_T0)}, {s(S_T0)}, {v(V_L16)}')
            b(f'v_and_b32 {v(V_T0)}, 1023, {v(V_T0)}')
            b(f'buffer_load_dwordx4 {v(V_T0)}, {s(SRD_T, 4)}, 0 offen lds', tag='gw')
        b.period = OPT.get('p3p', 12)
        if role == 'A':
            self.k_epilogue(b)
        elif role == 'B':
            self.set_out_addr(b, 'q', [f's_sub_u32 {s(S_T4)}, {s(S_CG)}, 8'])
            self.t_epilogue(b, 'phi', V_ACC1)
        elif role == 'C':
            self.set_out_addr(b, 'z1', [f's_lshl_b32 {s(S_T4)}, {s(S_CG)}, 1', f's_sub_u32 {s(S_T4)}, {s(S_T4)}, 19'])
            self.t_epilogue(b, 'gelu', V_ACC1)
        else:
            self.set_out_addr(b, 'z1', [f's_sub_u32 {s(S_T4)}, {s(S_CG)}, 5'])
            self.t_epilogue(b, 'gelu', V_ACC1)
        stamp(b, 18)
        self.p3_late_moves(b)
        if z2:
            self.z2_norm(b)
        self.p3_mid(b)
        if role != 'D':
            self.pre_slab(b, 'w3')
            stamp(b, 20)
            extra = {OPT.get('kz', 12): lambda bb, y: self.flag_store(bb, WS_FZ2, 'z2n')} if z2 else None
            self.main_loop(b, orient, self.p3_slab3_hooks(extra))
            stamp(b, 21)
            b.period = 8
            if role == 'A':
                self.v_epilogue(b)
                s1_issue(self, b)
                self.kv_finish(b, R2)
            elif role == 'B':
                self.set_out_addr(b, 'z1', [f's_sub_u32 {s(S_T4)}, {s(S_CG)}, 8'])
                self.t_epilogue(b, 'gelu', V_ACC1, mid=lambda: s1_issue(self, b), midg=2)
            else:
                self.set_out_addr(b, 'z1', [f's_lshl_b32 {s(S_T4)}, {s(S_CG)}, 1', f's_sub_u32 {s(S_T4)}, {s(S_T4)}, 18'])
                self.t_epilogue(b, 'gelu', V_ACC1, mid=lambda: s1_issue(self, b), midg=2)
        else:
            self.g_pass(b, R2, self.p3_slab3_hooks())
            s1_issue(self, b)
        stamp(b, 23)
        self.p3_tail(b)
        b('s_branch L_p1_done')
        return b.b

    def role_CD(self, role):
        b = St(self, 'ROLE' + role)
        b.label('L_role' + role)
        b.add(self.post_l1(b, role))
        b.period = 8
        self.set_out_addr(b, 'q', [f's_sub_u32 {s(S_T4)}, {s(S_CG)}, 8'])
        self.t_epilogue(b, 'phi', V_ACC0)
        self.pre_slab(b, 'w2')
        self.set_wr(b, R2)
        if role == 'C':
            self.w3_items(b)
        else:
            b.flush()
            srd(b, SRD_T, P_GW, 1024)
            b(f's_lshl_b32 {s(S_T0)}, {s(S_W)}, 10')
            b(f's_add_u32 m0, {s(S_T0)}, {R0}')
            b(f's_lshl_b32 {s(S_T0)}, {s(S_ROT)}, 7')
            b(f'v_add_u32 {v(V_T0)}, {s(S_T0)}, {v(V_L16)}')
            b(f'v_and_b32 {v(V_T0)}, 1023, {v(V_T0)}')
            b(f'buffer_load_dwordx4 {v(V_T0)}, {s(SRD_T, 4)}, 0 offen lds', tag='gw')
            if OPT.get('c0early', 1) == 2:
                b.add(a_chunk_items(0, 'f0'))
        self.main_loop(b, 'T', pop_every=1)
        b.flush()
        b('s_barrier')
        self.mid_a(b)
        if OPT.get('aplan', 1) != 2:
            b.add(a_chunk_items(2, 'f2'))
        b.period = 12
        if role == 'C':
            self.set_out_addr(b, 'z1', [f's_lshl_b32 {s(S_T4)}, {s(S_CG)}, 1', f's_sub_u32 {s(S_T4)}, {s(S_T4)}, 19'])
            self.t_epilogue(b, 'gelu', V_ACC1)
            self.mid_b(b)
            self.pre_slab(b, 'w3')
            self.set_wr(b, R0)
            self.main_loop(b, 'T', self.slab3_hooks())
            b.period = 8
            late = OPT.get('s1late', 1)
            if not late:
                s1_issue(self, b)
            self.pre_epi3(b)
            self.set_out_addr(b, 'z1', [f's_lshl_b32 {s(S_T4)}, {s(S_CG)}, 1', f's_sub_u32 {s(S_T4)}, {s(S_T4)}, 18'])
            self.t_epilogue(b, 'gelu', V_ACC1, mid=(lambda: s1_issue(self, b)) if late else None, midg=2)
        else:
            self.set_out_addr(b, 'z1', [f's_sub_u32 {s(S_T4)}, {s(S_CG)}, 5'])
            self.t_epilogue(b, 'gelu', V_ACC1)
            self.mid_b(b)
            self.g_pass(b)
            s1_issue(self, b)
            self.pre_epi3(b)
        self.a_tail(b)
        b('s_branch L_p1_done')
        return b.b

    def build(self):
        P = self.prologue()
        LL = self.slab1(True)
        LP = self.slab1(False) if not OPT.get('sym', 1) else None
        if OPT.get('aplan', 1) == 3:
            A, B, C, D = [self.role3(r) for r in 'ABCD']
        else:
            A = self.role_AB('A')
            B = self.role_AB('B')
            C = self.role_CD('C')
            D = self.role_CD('D')
        E1 = St(self, 'E1')
        E1.label('L_p1_done')
        stamp(E1, 4)
        from phase23 import emit_phase23
        P2, PH, PL, P3b = emit_phase23(self)
        END = self.blk('END')
        END.label('L_END')
        END('s_endpgm')
        P3 = Block('PRO_w3')
        P3.ins = [i for i in P.ins if not i.meta.get('loader')]
        rests = [[P2, PH, P3b], [P2, PL, P3b]]
        paths = [[P, LL, R, E1.b] + rest + [END] for R in (A, B, C, D) for rest in rests]
        if LP is not None:
            paths += [[P3, LP, R, E1.b] + rest + [END] for R in (A, B, C, D) for rest in rests]
        finalize(self.blocks, paths)

    def text(self):
        out = []
        for b in self.blocks:
            out.append(f'; ---- {b.name}')
            out.append(render(b))
        return '\n'.join(out) + '\n' + '\n'.join(self.slow) + '\n'


HEADER = '''; Fused gated-mix kernel: linear attention + gMLP, single persistent launch (256 workgroups x 256 threads)
; @launch grid=(256,1,1) block=(256,1,1) lds=163840
.amdgcn_target "amdgcn-amd-amdhsa--gfx950"
.text
.globl {k}
.p2align 8
.type {k},@function
{k}:
'''
FOOTER = '''
L_code_end:
    s_endpgm
.section .rodata,"a"
.p2align 6
.amdhsa_kernel {k}
  .amdhsa_next_free_vgpr 512
  .amdhsa_next_free_sgpr 102
  .amdhsa_accum_offset 256
  .amdhsa_group_segment_fixed_size 0
  .amdhsa_kernarg_size 96
  .amdhsa_user_sgpr_count 2
  .amdhsa_user_sgpr_kernarg_segment_ptr 1
  .amdhsa_system_sgpr_workgroup_id_x 1
  .amdhsa_float_denorm_mode_32 3
.end_amdhsa_kernel
'''


def generate(**opt):
    OPT.update(opt)
    g = Gen()
    g.build()
    return HEADER.format(k=KNAME) + g.text() + FOOTER.format(k=KNAME)


if __name__ == '__main__':
    opt = {}
    for arg in sys.argv[2:]:
        k, val = arg.split('=')
        opt[k] = int(val) if val.lstrip('-').isdigit() else val
    import gen as _g
    txt = _g.generate(**opt)
    open(sys.argv[1], 'w').write(txt)
```

```python
from asmlib import *
import gen as G
from gen import (v, a, s, f2u, LOG2E, OOB, stamp, srd, tr_addr, St,
                 WS_FZ2, WS_FP1, WS_FY, WS_FKV, WS_GATE, WS_KVF, WS_KVP, WS_Z2N, WS_Z1F, WS_PQ, WS_Y, WS_SIZE, WS_EPOCH,
                 SRD_X, SRD_W, SRD_WS, SRD_T, SRD_U, S_W, S_WG, S_I, S_J, S_N, S_T0, S_T1, S_T2, S_T3, S_T4, S_T5, S_T6, S_T7,
                 S_ROT, S_RB, S_CG, S_Q0, S_Q1,
                 P_BSP, P_WO, P_WOUT, P_OUT, V_LANE, V_L16, V_L8, V_T0, V_POLL)

S_FB0, S_NBLK = 70, 71
S_BO = 72
S_PART = 73
S_U = 74
S_YO, S_ZO = 75, 76
S_WOB = 77
S_KVO = 78
S_BB = 80
S_FBN = 88
SRD_KV = 44

V_PA = 8
V_PR = 14
V_XW = 16
V_XR = 20
V_BS = 21
V_G0 = 22
V_NG = 26
V_BNG = 27
V_KL = 32
ACC = [64, 96]
RING = 128
D = 12
V_GS = 176
V_X = 192
V_Z1 = 224
V_KS = 236
V_WO = 240
A_PQ, A_KV, A_Y = 0, 64, 96
KVSCR = 38912
PRIV = 40960
XOFF = 22528


def flag_addr(b, dst, n, tmp):
    b(f'v_and_b32 {v(tmp)}, 3, {v(n)}')
    b(f'v_lshrrev_b32 {v(n)}, 2, {v(n)}')
    b(f'v_lshlrev_b32 {v(n)}, 4, {v(n)}')
    b(f'v_add_lshl_u32 {v(dst)}, {v(n)}, {v(tmp)}, 2')


def s1_issue(g, b):
    t0, t1 = V_T0, V_T0 + 1
    with b.atomic():
        b(f's_mul_i32 {s(S_FB0)}, {s(S_J)}, 3')
        b(f's_min_u32 {s(S_FB0)}, {s(S_FB0)}, 20')
        b(f's_cmp_lt_u32 {s(S_J)}, 6')
        b(f's_cselect_b32 {s(S_NBLK)}, 3, 2')
        b(f's_add_u32 {s(S_T2)}, {s(S_FB0)}, {s(S_NBLK)}')
        b(f's_sub_u32 {s(S_T3)}, {s(S_T2)}, 1')
        if G.OPT.get('nbrot', 0):
            b(f's_lshr_b32 {s(S_T0)}, {s(S_WG)}, {6 if G.OPT.get("map", 0) else 5}')
            b(f's_mul_i32 {s(S_T1)}, {s(S_T0)}, 11')
            b(f's_lshr_b32 {s(S_T1)}, {s(S_T1)}, 5')
            b(f's_mul_i32 {s(S_T1)}, {s(S_T1)}, 3')
            b(f's_sub_u32 {s(S_T1)}, {s(S_T0)}, {s(S_T1)}')
            b(f's_and_b32 {s(S_T0)}, {s(S_T0)}, 1')
            b(f's_cmp_eq_u32 {s(S_NBLK)}, 3')
            b(f's_cselect_b32 {s(S_T0)}, {s(S_T1)}, {s(S_T0)}')
        else:
            b(f's_mov_b32 {s(S_T0)}, 0')
        for nb in range(3):
            b(f's_add_u32 {s(S_FBN + nb)}, {s(S_FB0)}, {s(S_T0)}')
            if nb:
                b(f's_add_u32 {s(S_FBN + nb)}, {s(S_FBN + nb)}, {nb}')
            b(f's_cmp_ge_u32 {s(S_FBN + nb)}, {s(S_T2)}')
            b(f's_cselect_b32 {s(S_T1)}, {s(S_NBLK)}, 0')
            b(f's_sub_u32 {s(S_FBN + nb)}, {s(S_FBN + nb)}, {s(S_T1)}')
        b(f's_lshr_b32 {s(S_T0)}, {s(S_FB0)}, 1')
        b(f's_lshr_b32 {s(S_T1)}, {s(S_T3)}, 1')
        b(f's_sub_u32 {s(S_T1)}, {s(S_T1)}, {s(S_T0)}')
        b(f'v_bfe_u32 {v(t0)}, {v(V_LANE)}, 3, 2')
        b(f'v_bfe_u32 {v(t1)}, {v(V_LANE)}, 2, 1')
        b(f'v_mul_u32_u24 {v(t1)}, {s(S_T1)}, {v(t1)}')
        b(f'v_lshl_add_u32 {v(t0)}, {v(t0)}, 4, {v(t1)}')
        b(f's_lshl_b32 {s(S_T2)}, {s(S_W)}, 6')
        b(f's_add_u32 {s(S_T2)}, {s(S_T2)}, {s(S_T0)}')
        b(f'v_add_u32 {v(t0)}, {s(S_T2)}, {v(t0)}')
        b(f'v_and_b32 {v(t1)}, 3, {v(V_LANE)}')
        b(f'v_lshl_add_u32 {v(t0)}, {v(t0)}, 2, {v(t1)}')
        flag_addr(b, V_PA, t0, t1)
        b(f's_mov_b32 {s(S_T7)}, {WS_FZ2}')
        b(f'buffer_load_dword {v(V_PR)}, {v(V_PA)}, {s(SRD_WS, 4)}, {s(S_T7)} offen sc1')


def emit_phase23(g):
    t0, t1, t2 = V_T0, V_T0 + 1, V_T0 + 2
    b = St(g, 'P2')
    b(f's_mov_b32 {s(S_T7)}, {WS_FZ2}')
    if not G.OPT.get('x_nos1'):
        g.poll(b, V_PA, s(S_T7), V_PR, first_issued=True, mark=11)
    stamp(b, 5)
    b(f's_lshl_b32 {s(S_T0)}, {s(S_W)}, 15')
    b(f's_add_u32 {s(S_BB)}, {s(S_T0)}, {WS_Z2N}')

    def bload(b, gi):
        nb, n = gi >> 5, gi & 31
        if n % 4 == 0:
            b(f's_add_u32 {s(S_BO)}, {s(G.S_ROT2)}, {n // 4}')
            b(f's_and_b32 {s(S_BO)}, {s(S_BO)}, 7')
            b(f's_lshl_b32 {s(S_BO)}, {s(S_BO)}, 12')
            b(f's_add_u32 {s(S_BO)}, {s(S_BO)}, {s(S_BB)}')
            b(f's_lshl_b32 {s(S_T4)}, {s(S_FBN + nb)}, 17')
            b(f's_add_u32 {s(S_BO)}, {s(S_BO)}, {s(S_T4)}')
        b(f'buffer_load_dwordx4 {v(RING + 4 * (gi % D), 4)}, {v(V_L16)}, {s(SRD_WS, 4)}, {s(S_BO)} offen offset:{1024 * (n & 3)} sc1')

    if G.OPT.get('aplan', 1) == 2:
        g.mv_chunk(b, 0, 'f0')
        b.wait_lds()
        b.add(G.a_chunk_items(3, 'f0'))
    for gi in range(D):
        bload(b, gi)
        if gi % 2 == 1:
            b.pop(2)
    b.flush()
    b(f'v_lshlrev_b32 {v(V_BS)}, 16, {v(G.V_BSP)}')
    b(f's_lshr_b32 {s(S_T0)}, {s(S_I)}, 1')
    b(f's_lshl_b32 {s(S_T0)}, {s(S_T0)}, 6')
    b(f'v_add_u32 {v(t0)}, {s(S_T0)}, {v(V_LANE)}')
    flag_addr(b, V_PA + 1, t0, t1)
    b(f's_lshl_b32 {s(S_T0)}, {s(S_W)}, 11')
    b(f'v_add_u32 {v(t0)}, {s(S_T0)}, {v(V_L16)}')
    for d in range(4):
        b(f'v_add_u32 {v(V_XW + d)}, {PRIV * d + XOFF}, {v(t0)}')
    b(f's_mul_i32 {s(S_T0)}, {s(S_W)}, {PRIV}')
    b(f's_add_u32 {s(S_T0)}, {s(S_T0)}, {XOFF}')
    b(f'v_add_u32 {v(V_XR)}, {s(S_T0)}, {v(V_L16)}')
    b(f'v_and_b32 {v(t0)}, 31, {v(V_LANE)}')
    b(f'v_lshlrev_b32 {v(V_PA + 5)}, 2, {v(t0)}')
    b(f's_and_b32 {s(S_T0)}, {s(S_W)}, 1')
    b(f's_lshl1_add_u32 {s(S_T0)}, {s(S_I)}, {s(S_T0)}')
    b(f's_mul_i32 {s(S_T0)}, {s(S_T0)}, 45056')
    b(f's_lshr_b32 {s(S_T1)}, {s(S_W)}, 1')
    b(f's_lshl_b32 {s(S_T1)}, {s(S_T1)}, 10')
    b(f's_add_u32 {s(S_T0)}, {s(S_T0)}, {s(S_T1)}')
    b(f's_add_u32 {s(S_ZO)}, {s(S_T0)}, {WS_Z1F}')
    b(f's_add_u32 {s(S_YO)}, {s(S_T0)}, {WS_Y}')
    b(f's_cmp_ge_u32 {s(S_J)}, 6')
    b('s_cbranch_scc1 L_P2L')
    P2 = b.b

    def xw(nb, k):
        d, q = k >> 1, k & 1
        r = ACC[nb & 1] + 16 * (d & 1) + 8 * (d >> 1)
        return f'ds_write_b128 {v(V_XW + d)}, {v(r + 4 * q, 4)} offset:{8192 * (nb & 1) + 1024 * q}'

    def xr(nb, k):
        src, q = k >> 1, k & 1
        return f'ds_read_b128 {v(V_X + 8 * src + 4 * q, 4)}, {v(V_XR)} offset:{8192 * (nb & 1) + 2048 * src + 1024 * q}'

    def xsum(dst):
        o = []
        for k in range(8):
            o.append(f'v_add_f32 {v(V_X + k)}, {v(V_X + k)}, {v(V_X + 8 + k)}')
        for k in range(8):
            o.append(f'v_add_f32 {v(V_X + 16 + k)}, {v(V_X + 16 + k)}, {v(V_X + 24 + k)}')
        for k in range(8):
            o.append(f'v_add_f32 {v(dst + k)}, {v(V_X + k)}, {v(V_X + 16 + k)}')
        return o

    def ymath(nb, gs):
        o = []
        z = V_Z1 + 4 * nb
        tmp = RING
        for k in range(8):
            o.append(f'v_fma_f32 {v(gs + k)}, {v(gs + k)}, {v(V_NG)}, {v(V_BNG)}')
        for k in range(4):
            o.append(f'v_lshlrev_b32 {v(tmp + 2 * k)}, 16, {v(z + k)}')
            o.append(f'v_and_b32 {v(tmp + 2 * k + 1)}, 0xffff0000, {v(z + k)}')
        for k in range(8):
            o.append(f'v_mul_f32 {v(gs + k)}, {v(gs + k)}, {v(tmp + k)}')
        for k in range(4):
            o.append(f'v_cvt_pk_bf16_f32 {v(z + k)}, {v(gs + 2 * k)}, {v(gs + 2 * k + 1)}')
        return o

    def ystore(b, nb):
        b(f's_lshl_b32 {s(S_T0)}, {s(S_FBN + nb)}, 11')
        b(f's_add_u32 {s(S_T0)}, {s(S_T0)}, {s(S_YO)}')
        b(f'buffer_store_dwordx4 {v(V_Z1 + 4 * nb, 4)}, {v(V_L16)}, {s(SRD_WS, 4)}, {s(S_T0)} offen sc1', tag='y')

    def tail_loads(nblk):
        it = []
        for z in range(nblk):
            it.append([f's_lshl_b32 {s(S_T0)}, {s(S_FBN + z)}, 11',
                       f's_add_u32 {s(S_T0)}, {s(S_T0)}, {s(S_ZO)}',
                       f'buffer_load_dwordx4 {v(V_Z1 + 4 * z, 4)}, {v(V_L16)}, {s(SRD_WS, 4)}, {s(S_T0)} offen sc1'])
        it.append([f's_lshl_b32 {s(S_T0)}, {s(S_I)}, 8',
                   f's_add_u32 {s(S_T0)}, {s(S_T0)}, {WS_GATE}',
                   f'buffer_load_dword {v(V_G0)}, {v(V_PA + 5)}, {s(SRD_WS, 4)}, {s(S_T0)} offen sc1',
                   f'buffer_load_dword {v(V_G0 + 1)}, {v(V_PA + 5)}, {s(SRD_WS, 4)}, {s(S_T0)} offen offset:128 sc1'])
        for hd in range(8):
            for tb in range(2):
                l = []
                if hd % 4 == 0:
                    l = [f's_lshl1_add_u32 {s(S_Q0 + tb)}, {s(S_I)}, {tb}',
                         f's_lshl_b32 {s(S_Q0 + tb)}, {s(S_Q0 + tb)}, 15',
                         f's_lshl_b32 {s(S_T1)}, {s(S_W)}, 13',
                         f's_add_u32 {s(S_Q0 + tb)}, {s(S_Q0 + tb)}, {s(S_T1)}',
                         f's_add_u32 {s(S_Q0 + tb)}, {s(S_Q0 + tb)}, {WS_PQ + 1024 * hd}']
                l.append(f'buffer_load_dwordx4 {a(A_PQ + 4 * (2 * hd + tb), 4)}, {v(V_L16)}, {s(SRD_WS, 4)}, {s(S_Q0 + tb)} offen offset:{1024 * (hd & 3)} sc1')
                it.append(l)
        return it

    def gate_setup():
        return [[f's_and_b32 {s(S_T0)}, {s(S_W)}, 1',
                 f's_cmp_eq_u32 {s(S_T0)}, 0',
                 f's_cselect_b64 vcc, -1, 0',
                 f'v_cndmask_b32 {v(V_NG)}, {v(V_G0 + 1)}, {v(V_G0)}, vcc'],
                f'v_sub_f32 {v(V_NG)}, 1.0, {v(V_NG)}',
                f'v_mul_f32 {v(V_BNG)}, {v(V_BS)}, {v(V_NG)}']

    def emit1(b, x):
        if isinstance(x, list):
            for y in x:
                emit1(b, y)
        elif isinstance(x, tuple):
            b(x[1], tag=x[0])
        else:
            b(x)

    def main_stream(light):
        b = St(g, 'P2L' if light else 'P2H')
        nblk = 2 if light else 3
        NG = 32 * nblk
        if light:
            b.label('L_P2L')
            b(f's_lshl_b32 {s(S_U)}, {s(S_I)}, 1')
            b(f's_and_b32 {s(S_T0)}, {s(S_J)}, 1')
            b(f's_add_u32 {s(S_U)}, {s(S_U)}, {s(S_T0)}')
            b(f's_lshr_b32 {s(S_T0)}, {s(S_U)}, 3')
            b(f'v_lshrrev_b32 {v(t0)}, 2, {v(V_LANE)}')
            b(f'v_lshlrev_b32 {v(t0)}, 4, {v(t0)}')
            b(f'v_add_u32 {v(t0)}, {s(S_T0)}, {v(t0)}')
            b(f'v_and_b32 {v(t1)}, 3, {v(V_LANE)}')
            b(f'v_lshl_add_u32 {v(t0)}, {v(t0)}, 2, {v(t1)}')
            flag_addr(b, V_PA + 2, t0, t1)
            b(f's_mov_b32 {s(SRD_KV)}, {s(SRD_WS)}')
            b(f's_mov_b32 {s(SRD_KV + 1)}, {s(SRD_WS + 1)}')
            b(f's_cmp_lt_u32 {s(S_W)}, 2')
            b(f's_cselect_b32 {s(SRD_KV + 2)}, {hex(WS_SIZE - (G.OPT.get('wsoff', 0) << 20))}, 0')
            b(f's_mov_b32 {s(SRD_KV + 3)}, 0x20000')
            b(f's_lshl_b32 {s(S_KVO)}, {s(S_U)}, 14')
            b(f's_and_b32 {s(S_T0)}, {s(S_W)}, 1')
            b(f's_lshl_b32 {s(S_T0)}, {s(S_T0)}, 13')
            b(f's_add_u32 {s(S_KVO)}, {s(S_KVO)}, {s(S_T0)}')
            b(f's_add_u32 {s(S_KVO)}, {s(S_KVO)}, {WS_KVP}')
        fill = []
        items = []

        def drain(n):
            k = 0
            while fill and k < n:
                x = fill.pop(0)
                emit1(b, x)
                k += len(x) if isinstance(x, list) else 1

        n0 = b.mark()
        GP = NG - 36
        GT = NG - D
        for gi in range(NG):
            nb, n = gi >> 5, gi & 31
            acc = ACC[nb & 1]
            for tb in range(2):
                c = '0' if n == 0 else v(acc + 16 * tb, 16)
                b(f'v_mfma_f32_32x32x16_bf16 {v(acc + 16 * tb, 16)}, {v(RING + 4 * (gi % D), 4)}, {a(8 * n + 4 * tb, 4)}, {c}')
            if gi + D < NG:
                bload(b, gi + D)
            if G.OPT.get('aplan', 1) == 2:
                mv = {1: 1, 2: 5, 3: 9, 4: 13, 5: 17, 6: 21, 7: 25}
                for c, st in mv.items():
                    if gi == st:
                        g.mv_chunk(b, c, f'f{c % 3}')
                    if gi == st + 1 and c + 3 < 8:
                        b.wait_lds()
                        b.add(G.a_chunk_items(c + 3, f'f{c % 3}'))
            elif G.OPT.get('aplan', 1) == 1:
                if gi == 4:
                    g.mv_chunk(b, 3, 'f0')
                if gi == 5:
                    b.wait_lds()
                    b.add(G.a_chunk_items(6, 'f0'))
                if gi == 10:
                    g.mv_chunk(b, 4, 'f1')
                if gi == 11:
                    b.wait_lds()
                    b.add(G.a_chunk_items(7, 'f1'))
                if gi == 16:
                    g.mv_chunk(b, 5, 'f2')
                if gi == 22:
                    g.mv_chunk(b, 6, 'f0')
                if gi == 26:
                    g.mv_chunk(b, 7, 'f1')
            if gi == 31:
                b.wait_lds()
                b('s_barrier')
            if b.q:
                b.pop(2)
            if gi == GP:
                b(f's_mov_b32 {s(S_T7)}, {WS_FP1}')
                b(f'buffer_load_dword {v(V_PR)}, {v(V_PA + 1)}, {s(SRD_WS, 4)}, {s(S_T7)} offen sc1')
            if light and gi == 20:
                b(f's_mov_b32 {s(S_T7)}, {WS_FP1}')
                b(f'buffer_load_dword {v(V_PR + 1)}, {v(V_PA + 2)}, {s(SRD_WS, 4)}, {s(S_T7)} offen sc1')
            if light and gi == 34:
                b(f's_mov_b32 {s(S_T7)}, {WS_FP1}')
                g.poll(b, V_PA + 2, s(S_T7), V_PR + 1, first_issued=True, mark=13)
                for r in range(8):
                    l = []
                    if r % 4 == 0:
                        l = [f's_add_u32 {s(S_Q0)}, {s(S_KVO)}, {1024 * r}']
                    l.append(f'buffer_load_dwordx4 {v(V_KL + 4 * r, 4)}, {v(V_L16)}, {s(SRD_KV, 4)}, {s(S_Q0)} offen offset:{1024 * (r & 3)} sc1')
                    items.append(l)
            if nb > 0:
                if 2 <= n < 10:
                    b(xw(nb - 1, n - 2))
                if n == 12:
                    b.wait_lds()
                    b('s_barrier')
                if 12 <= n < 20:
                    b(xr(nb - 1, n - 12))
                if n == 21:
                    fill.extend(xsum(V_GS + 8 * (nb - 1)))
            if gi == GT:
                drain(len(fill))
                b(f's_mov_b32 {s(S_T7)}, {WS_FP1}')
                g.poll(b, V_PA + 1, s(S_T7), V_PR, first_issued=True, mark=15)
                items.extend(tail_loads(nblk))
            if light and gi == 52:
                for r in range(0, 8, 2):
                    for k in range(4):
                        fill.append(f'v_add_f32 {v(V_KL + 4 * r + k)}, {v(V_KL + 4 * r + k)}, {v(V_KL + 4 * r + 4 + k)}')
                for k in range(4):
                    fill.append(f'v_add_f32 {v(V_KL + k)}, {v(V_KL + k)}, {v(V_KL + 8 + k)}')
                    fill.append(f'v_add_f32 {v(V_KL + 16 + k)}, {v(V_KL + 16 + k)}, {v(V_KL + 24 + k)}')
                for k in range(4):
                    fill.append(f'v_add_f32 {v(V_KS + k)}, {v(V_KL + k)}, {v(V_KL + 16 + k)}')
            if light and gi == 58:
                drain(len(fill))
                b(f's_mul_i32 {s(S_T0)}, {s(S_W)}, {PRIV}')
                b(f's_add_u32 {s(S_T0)}, {s(S_T0)}, {KVSCR}')
                b(f'v_add_u32 {v(t0)}, {s(S_T0)}, {v(V_L16)}')
                b(f'ds_write_b128 {v(t0)}, {v(V_KS, 4)}')
                b.wait_lds()
                b('s_barrier')
                b(f'v_add_u32 {v(t0)}, {PRIV + KVSCR}, {v(V_L16)}')
                b(f'ds_read_b128 {v(V_KL, 4)}, {v(t0)}')
                for k in range(4):
                    b(f'v_add_f32 {v(V_KS + k)}, {v(V_KS + k)}, {v(V_KL + k)}')
                b(f'v_cvt_pk_bf16_f32 {v(V_KS)}, {v(V_KS)}, {v(V_KS + 1)}')
                b(f'v_cvt_pk_bf16_f32 {v(V_KS + 1)}, {v(V_KS + 2)}, {v(V_KS + 3)}')
                b(f's_cmp_eq_u32 {s(S_W)}, 0')
                b(f's_cselect_b32 {s(SRD_KV + 2)}, {hex(WS_SIZE - (G.OPT.get('wsoff', 0) << 20))}, 0')
                b(f's_lshr_b32 {s(S_T0)}, {s(S_U)}, 1')
                b(f's_lshl_b32 {s(S_T0)}, {s(S_T0)}, 10')
                b(f's_and_b32 {s(S_T1)}, {s(S_U)}, 1')
                b(f's_lshl_b32 {s(S_T1)}, {s(S_T1)}, 3')
                b(f's_add_u32 {s(S_T0)}, {s(S_T0)}, {s(S_T1)}')
                b(f's_add_u32 {s(S_T0)}, {s(S_T0)}, {WS_KVF}')
                b(f'buffer_store_dwordx2 {v(V_KS, 2)}, {v(V_L16)}, {s(SRD_KV, 4)}, {s(S_T0)} offen sc1', tag='kvf')
            for _ in range(2 if gi >= GT else 1):
                if items:
                    emit1(b, items.pop(0))
            drain(6)
            if gi in (7, 23, 31, 47, 63, 79):
                stamp(b, 24 + (7, 23, 31, 47, 63, 79).index(gi))
        while items:
            emit1(b, items.pop(0))
        drain(len(fill))
        b.weave_from(n0, G=5)
        stamp(b, 6)
        if light:
            b.wait_vm('kvf')
            b(f's_lshl_b32 {s(S_T0)}, {s(S_U)}, 4')
            b(f's_add_u32 {s(S_T0)}, {s(S_T0)}, {WS_FKV}')
            b(f'v_mov_b32 {v(V_POLL)}, {s(S_N)}')
            b(f'buffer_store_dword {v(V_POLL)}, off, {s(SRD_KV, 4)}, {s(S_T0)} sc1', tag='flag')
        last = nblk - 1
        for k in range(8):
            b(xw(last, k))
        for x in gate_setup():
            emit1(b, x)
        b.wait_lds()
        b('s_barrier')
        for k in range(8):
            b(xr(last, k))
        for nb in range(last):
            for x in ymath(nb, V_GS + 8 * nb):
                emit1(b, x)
            ystore(b, nb)
        for x in xsum(V_GS) + ymath(last, V_GS):
            emit1(b, x)
        ystore(b, last)
        stamp(b, 7)
        if light:
            ep = g.lab('EP')
            b(f's_lshl_b32 {s(S_T0)}, {s(S_I)}, 5')
            b(f's_lshl2_add_u32 {s(S_T0)}, {s(S_J)}, {s(S_T0)}')
            b(f's_add_u32 {s(S_T0)}, {s(S_T0)}, {s(S_W)}')
            b(f's_cmp_lg_u32 {s(S_T0)}, {6 * 4 + 3}')
            b(f's_cbranch_scc1 {ep}_end')
            txt = [f'    v_and_b32 {v(t1)}, 3, {v(V_LANE)}', f'    v_lshrrev_b32 {v(t0)}, 2, {v(V_LANE)}',
                   f'    v_lshlrev_b32 {v(t0)}, 4, {v(t0)}', f'    v_add_lshl_u32 {v(t0)}, {v(t0)}, {v(t1)}, 2']
            for k in range(16):
                txt.append(f'    s_mov_b32 {s(S_T3)}, {WS_FP1 + 1024 * k}')
                txt.append(f'    buffer_load_dword {v(32 + k)}, {v(t0)}, {s(SRD_WS, 4)}, {s(S_T3)} offen sc1')
            txt = [f'    s_mov_b32 {s(G.S_CNT)}, {G.SPIN_MAX}', f'{ep}:'] + txt + ['    s_waitcnt vmcnt(0)']
            for k in range(16):
                txt.append(f'    v_xor_b32 {v(32 + k)}, {s(S_N)}, {v(32 + k)}')
            for k in range(1, 16, 2):
                hi = 32 + k + 1 if k + 1 < 16 else 32 + k
                txt.append(f'    v_or3_b32 {v(32)}, {v(32)}, {v(32 + k)}, {v(hi)}')
            txt += [f'    v_cmp_ne_u32 vcc, 0, {v(32)}', f'    s_cbranch_vccz {ep}_ok',
                    f'    s_sub_u32 {s(G.S_CNT)}, {s(G.S_CNT)}, 1', f'    s_cmp_lg_u32 {s(G.S_CNT)}, 0', f'    s_cbranch_scc1 {ep}',
                    f'{ep}_ok:', f'    v_mov_b32 {v(V_POLL)}, {s(S_N)}',
                    f'    buffer_store_dword {v(V_POLL)}, off, {s(SRD_WS, 4)}, 0 sc1', f'{ep}_end:']
            b.b.raw('\n'.join(txt))
        else:
            b('s_branch L_P3')
        return b.b

    PH = main_stream(False)
    PL = main_stream(True)

    b = St(g, 'P3')
    b.label('L_P3')
    ACC3 = 64
    T = [224, 240]
    b(f'v_bfe_u32 {v(t0)}, {v(V_LANE)}, 2, 1')
    b(f'v_bfe_u32 {v(t1)}, {v(V_LANE)}, 4, 1')
    b(f'v_xor_b32 {v(t0)}, {v(t0)}, {v(t1)}')
    b(f'v_and_b32 {v(t1)}, 3, {v(V_LANE)}')
    b(f'v_lshlrev_b32 {v(t1)}, 4, {v(t1)}')
    b(f'v_lshl_add_u32 {v(t0)}, {v(t0)}, 6, {v(t1)}')
    b(f'v_lshrrev_b32 {v(t1)}, 3, {v(V_LANE)}')
    b(f'v_lshl_add_u32 {v(t0)}, {v(t1)}, 10, {v(t0)}')
    b(f's_lshl_b32 {s(S_T0)}, {s(S_J)}, 7')
    VW = 28
    b(f'v_add_u32 {v(VW)}, {s(S_T0)}, {v(t0)}')
    b(f'v_add_u32 {v(VW + 1)}, 7168, {v(VW)}')
    b(f's_cmp_eq_u32 {s(S_W)}, 0')
    b(f's_cselect_b32 {s(S_T0)}, {hex(OOB)}, 0')
    b(f'v_add_u32 {v(32)}, {s(S_T0)}, {v(VW)}')
    b(f's_mul_i32 {s(S_WOB)}, {s(S_W)}, {176 * 1024}')
    b(f's_sub_u32 {s(S_WOB)}, {s(S_WOB)}, 16384')
    b(f's_mul_i32 {s(S_PART)}, {s(S_W)}, {PRIV}')
    srd(b, SRD_X, P_WO, 512 * 1024)
    srd(b, SRD_U, P_WOUT, 688 * 1024)

    def wo_items(hd):
        return [[f's_add_u32 m0, {s(S_PART)}, {XOFF + 2048 * hd}',
                 f's_lshl_b32 {s(S_Q0)}, {s(S_W)}, 17',
                 f's_add_u32 {s(S_Q0)}, {s(S_Q0)}, {16384 * hd}',
                 (f'wo{hd}', f'buffer_load_dwordx4 {v(VW)}, {s(SRD_X, 4)}, {s(S_Q0)} offen{G.NT(8)} lds')],
                [(f'wo{hd}', f'buffer_load_dwordx4 {v(VW + 1)}, {s(SRD_X, 4)}, {s(S_Q0)} offen offset:1024{G.NT(8)} lds')]]

    def wout_items():
        it = []
        for i in range(22):
            vo = 32 if i < 2 else VW
            it.append([f's_add_u32 m0, {s(S_PART)}, {1024 * i}',
                       f's_add_u32 {s(S_Q0)}, {s(S_WOB)}, {8192 * i}',
                       f's_max_i32 {s(S_Q0)}, {s(S_Q0)}, 0',
                       ('wout', f'buffer_load_dwordx4 {v(vo)}, {s(SRD_U, 4)}, {s(S_Q0)} offen{G.NT(8)} lds')])
        return it

    b(f'v_and_b32 {v(t0)}, 15, {v(V_LANE)}')
    b(f's_lshl_b32 {s(S_T0)}, {s(S_W)}, 4')
    b(f'v_add_u32 {v(t0)}, {s(S_T0)}, {v(t0)}')
    b(f'v_lshlrev_b32 {v(V_PA + 3)}, 4, {v(t0)}')
    b(f's_mov_b32 {s(S_T7)}, {WS_FKV}')
    b(f'buffer_load_dword {v(V_PR)}, {v(V_PA + 3)}, {s(SRD_WS, 4)}, {s(S_T7)} offen sc1')
    for hd in range(4):
        b.add(wo_items(hd))
    b.flush()
    V_TW = 26
    tr_addr(b, V_TW, True)
    b(f'v_add_u32 {v(V_TW)}, {s(S_PART)}, {v(V_TW)}')
    b(f'v_xor_b32 {v(V_TW + 1)}, 64, {v(V_TW)}')
    b.wait_vm('y')
    b(f's_lshl3_add_u32 {s(S_T0)}, {s(S_I)}, {s(S_J)}')
    b(f's_lshl4_add_u32 {s(S_T0)}, {s(S_T0)}, {s(S_W)}')
    b(f's_lshl_b32 {s(S_T0)}, {s(S_T0)}, 2')
    b(f's_add_u32 {s(S_T0)}, {s(S_T0)}, {WS_FY}')
    b(f'v_mov_b32 {v(V_POLL)}, {s(S_N)}')
    b(f'buffer_store_dword {v(V_POLL)}, off, {s(SRD_WS, 4)}, {s(S_T0)} sc1', tag='flag')
    stamp(b, 8)
    g.poll(b, V_PA + 3, s(S_T7), V_PR, first_issued=True, mark=19)
    stamp(b, 14)
    b(f's_lshl_b32 {s(S_T0)}, {s(S_W)}, 13')
    b(f's_add_u32 {s(S_T0)}, {s(S_T0)}, {WS_KVF}')
    for hd in range(8):
        if hd == 4:
            b(f's_add_u32 {s(S_T0)}, {s(S_T0)}, 4096')
        b(f'buffer_load_dwordx4 {a(A_KV + 4 * hd, 4)}, {v(V_L16)}, {s(SRD_WS, 4)}, {s(S_T0)} offen offset:{1024 * (hd & 3)} sc1')
    for hd in range(4, 8):
        b.add(wo_items(hd))
    b.add(wout_items())
    WFR = 48
    OF = [[8, 12], [16, 4]]
    eps = hex(f2u(1e-6))

    def num(hd):
        for tb in range(2):
            b(f'v_mfma_f32_32x32x16_bf16 {v(T[tb], 16)}, {a(A_KV + 4 * hd, 4)}, {a(A_PQ + 4 * (2 * hd + tb), 4)}, 0')

    def wread(hd):
        st = hd & 1
        b.ensure(f'wo{hd}')
        b.wait_vm(f'wo{hd}')
        for db in range(2):
            for t in range(2):
                b(f'ds_read_b64_tr_b16 {v(WFR + 8 * st + 4 * db + 2 * t, 2)}, {v(V_TW + db)} offset:{XOFF + 2048 * hd + 1024 * t}')

    def post(hd, tb):
        n0, dn = (T[tb], T[tb] + 8) if hd % 2 == 0 else (T[tb] + 8, T[tb])
        b(f'v_add_f32 {v(dn)}, {eps}, {v(dn)}')
        b(f'v_rcp_f32 {v(dn)}, {v(dn)}')
        b(f'v_mul_f32 {v(dn)}, {v(dn)}, {v(V_G0 + tb)}')
        for k in range(8):
            b(f'v_mul_f32 {v(n0 + k)}, {v(n0 + k)}, {v(dn)}')
        of = OF[hd & 1][tb]
        for k in range(4):
            b(f'v_cvt_pk_bf16_f32 {v(of + k)}, {v(n0 + 2 * k)}, {v(n0 + 2 * k + 1)}')

    def outm(hd):
        st = hd & 1
        for tb in range(2):
            for db in range(2):
                acc = ACC3 + 16 * (2 * tb + db)
                c = '0' if hd == 0 else v(acc, 16)
                b(f'v_mfma_f32_32x32x16_bf16 {v(acc, 16)}, {v(WFR + 8 * st + 4 * db, 4)}, {v(OF[st][tb], 4)}, {c}')

    S_Y0, S_Y1 = S_KVO, S_WOB + 4

    def y_items():
        it = []
        for n in range(11):
            for tb in range(2):
                l = []
                sy = (S_KVO, 81)[tb]
                if n % 4 == 0:
                    l = [f's_lshl1_add_u32 {s(sy)}, {s(S_I)}, {tb}',
                         f's_mul_i32 {s(sy)}, {s(sy)}, 45056',
                         f's_mul_i32 {s(S_Q1)}, {s(S_W)}, {11 * 1024}',
                         f's_add_u32 {s(sy)}, {s(sy)}, {s(S_Q1)}',
                         f's_add_u32 {s(sy)}, {s(sy)}, {WS_Y + 1024 * n}']
                l.append(f'buffer_load_dwordx4 {a(A_Y + 8 * n + 4 * tb, 4)}, {v(V_L16)}, {s(SRD_WS, 4)}, {s(sy)} offen offset:{1024 * (n & 3)} sc1')
                it.append(l)
        return it

    b.period = G.OPT.get('abp', 8)
    n0 = b.mark()
    for hd in range(8):
        num(hd)
        wread(hd)
        if hd > 0:
            outm(hd - 1)
        post(hd, 0)
        post(hd, 1)
        if hd == G.OPT.get('s3i', 2):
            with b.atomic():
                b(f'v_and_b32 {v(t1)}, 31, {v(V_LANE)}')
                b(f's_lshl_b32 {s(S_T0)}, {s(S_I)}, 5')
                b(f'v_add_u32 {v(t1)}, {s(S_T0)}, {v(t1)}')
                flag_addr(b, 20, t1, t0)
                b(f's_mov_b32 {s(S_T7)}, {WS_FY}')
                b(f'buffer_load_dword {v(21)}, {v(20)}, {s(SRD_WS, 4)}, {s(S_T7)} offen sc1')
        if hd == G.OPT.get('s3c', 5):
            g.poll(b, 20, s(S_T7), 21, first_issued=True, mark=22)
            stamp(b, 10)
            b.add(y_items())
    outm(7)
    b.flush()
    b.weave_from(n0, G=6)
    b.period = 0
    stamp(b, 9)
    b.wait_vm('wout')

    def woutread(n):
        st = n & 1
        for db in range(2):
            for t in range(2):
                b(f'ds_read_b64_tr_b16 {v(WFR + 8 * st + 4 * db + 2 * t, 2)}, {v(V_TW + db)} offset:{2048 * n + 1024 * t}')
    n0 = b.mark()
    woutread(0)
    for n in range(11):
        if n + 1 < 11:
            woutread(n + 1)
        st = n & 1
        for tb in range(2):
            for db in range(2):
                acc = ACC3 + 16 * (2 * tb + db)
                b(f'v_mfma_f32_32x32x16_bf16 {v(acc, 16)}, {v(WFR + 8 * st + 4 * db, 4)}, {a(A_Y + 8 * n + 4 * tb, 4)}, {v(acc, 16)}')
    b.weave_from(n0, G=5)
    b.wait_lds()
    b('s_barrier')
    b(f's_lshl_b32 {s(S_T0)}, {s(S_W)}, 14')
    b(f'v_add_u32 {v(t0)}, {s(S_T0)}, {v(V_L16)}')
    for blk in range(4):
        for j in range(4):
            b(f'ds_write_b128 {v(t0)}, {v(ACC3 + 16 * blk + 4 * j, 4)} offset:{4096 * blk + 1024 * j}')
    srd(b, SRD_T, P_OUT, 2048 * 1024)
    b(f'v_and_b32 {v(t0 + 3)}, 31, {v(V_LANE)}')
    b(f'v_lshlrev_b32 {v(t0 + 3)}, 10, {v(t0 + 3)}')
    b(f'v_lshrrev_b32 {v(t1)}, 5, {v(V_LANE)}')
    b(f'v_lshl_add_u32 {v(t0 + 3)}, {v(t1)}, 4, {v(t0 + 3)}')
    b(f's_lshl_b32 {s(S_T0)}, {s(S_I)}, 16')
    b(f's_lshr_b32 {s(S_T1)}, {s(S_W)}, 1')
    b(f's_lshl_b32 {s(S_T1)}, {s(S_T1)}, 15')
    b(f's_add_u32 {s(S_T0)}, {s(S_T0)}, {s(S_T1)}')
    b(f's_lshl_b32 {s(S_T1)}, {s(S_J)}, 7')
    b(f's_add_u32 {s(S_T0)}, {s(S_T0)}, {s(S_T1)}')
    b(f's_and_b32 {s(S_T1)}, {s(S_W)}, 1')
    b(f's_lshl_b32 {s(S_T1)}, {s(S_T1)}, 6')
    b(f's_add_u32 {s(S_T4)}, {s(S_T0)}, {s(S_T1)}')
    b.wait_lds()
    b('s_barrier')
    b(f's_lshl_b32 {s(S_T0)}, {s(S_W)}, 12')
    b(f'v_add_u32 {v(t0)}, {s(S_T0)}, {v(V_L16)}')
    RB_ = 128
    for src in range(4):
        for j in range(4):
            b(f'ds_read_b128 {v(RB_ + 16 * src + 4 * j, 4)}, {v(t0)} offset:{16384 * src + 1024 * j}')
    for k in range(16):
        b(f'v_add_f32 {v(RB_ + k)}, {v(RB_ + k)}, {v(RB_ + 16 + k)}')
        b(f'v_add_f32 {v(RB_ + 32 + k)}, {v(RB_ + 32 + k)}, {v(RB_ + 48 + k)}')
    for k in range(16):
        b(f'v_add_f32 {v(RB_ + k)}, {v(RB_ + k)}, {v(RB_ + 32 + k)}')
    O = 192
    for k in range(8):
        b(f'v_cvt_pk_bf16_f32 {v(O + k)}, {v(RB_ + 2 * k)}, {v(RB_ + 2 * k + 1)}')
    for jj in range(2):
        b(f'v_permlane32_swap_b32 {v(O + 4 * jj)}, {v(O + 4 * jj + 2)}')
        b(f'v_permlane32_swap_b32 {v(O + 4 * jj + 1)}, {v(O + 4 * jj + 3)}')
    for jj in range(2):
        b(f'buffer_store_dwordx4 {v(O + 4 * jj, 4)}, {v(t0 + 3)}, {s(SRD_T, 4)}, {s(S_T4)} offen offset:{32 * jj}')
    stamp(b, 12)
    if G.OPT.get('clk'):
        b('s_memtime s[64:65]')
        b('s_memrealtime s[66:67]')
        b('s_waitcnt lgkmcnt(0)')
        b('s_sub_u32 s64, s64, s62')
        b('s_sub_u32 s66, s66, s100')
        b(f's_mov_b32 {s(SRD_T)}, {s(G.P_DBG)}')
        b(f's_mov_b32 {s(SRD_T + 1)}, {s(G.P_DBG + 1)}')
        b(f's_lshr_b32 {s(S_T4)}, {s(S_WG)}, 5')
        b(f's_and_b32 {s(S_T5)}, {s(S_WG)}, 31')
        b(f's_or_b32 {s(S_T5)}, {s(S_T5)}, {s(S_W)}')
        b(f's_cmp_eq_u32 {s(S_T5)}, 0')
        b(f's_cselect_b32 {s(SRD_T + 2)}, 256, 0')
        b(f's_mov_b32 {s(SRD_T + 3)}, 0x20000')
        b(f's_lshl_b32 {s(S_T4)}, {s(S_T4)}, 3')
        b(f'v_mov_b32 {v(2)}, s64')
        b(f'v_mov_b32 {v(3)}, s66')
        b(f'buffer_store_dwordx2 {v(2, 2)}, off, {s(SRD_T, 4)}, {s(S_T4)}')
    return P2, PH, PL, b.b
```

```python
import sys, struct, math
from collections import deque
from asmlib import *

KNAME = 'gated_mix__linear_attn_block__mixer_gmlp__prompt_kernel'
OPT = dict(stamps=0, rot=1, touch=0, late=0, map=0, cpf=0)


def v(a, n=1):
    return f'v{a}' if n == 1 else f'v[{a}:{a + n - 1}]'


def a(x, n=1):
    return f'a{x}' if n == 1 else f'a[{x}:{x + n - 1}]'


def s(x, n=1):
    return f's{x}' if n == 1 else f's[{x}:{x + n - 1}]'


WS_EPOCH = 0
WS_FZ2 = 0x10000
WS_FP1 = 0x20000
WS_FY = 0x30000
WS_FKV = 0x40000
WS_GATE = 0x50000
WS_KVF = 0x60000
WS_STATS = 0x80000
WS_KVP = 0x100000
WS_Z2N = 0x200000
WS_Z1F = 0x500000
WS_PQ = 0x800000
WS_Y = 0xB00000
WS_DBG = 0x1000000
WS_SIZE = 0x10000000
NONCE_K = 0x9E3779B1
OOB = 0x40000000
SPIN_MAX = 20000

R0 = 0
R1 = 65536
R2 = 98304
LDS_BYTES = 163840

S_WG = 2
SRD_A = 4
SRD_U = 8
S_Q0, S_Q1 = 12, 13
S_AS = 14
S_ROT = 15
S_ROT2 = 3
P_X, P_WQKV, P_WO, P_BX, P_WIN, P_WSP, P_BSP, P_WOUT = 16, 18, 20, 22, 24, 26, 28, 30
P_GW, P_OUT, P_DBG, P_WS = 32, 34, 36, 38
SRD_X = 40
SRD_W = 44
SRD_WS = 48
SRD_T = 52
S_W = 56
S_RB, S_CG, S_I, S_J = 57, 58, 59, 60
S_N = 61
S_T0, S_T1, S_T2, S_T3, S_T4, S_T5 = 64, 65, 66, 67, 68, 69
S_XL, S_XS, S_WL, S_WSO = 70, 71, 72, 73
S_RS, S_COL, S_MASK = 74, 75, 76
S_O0, S_O1 = 77, 78
S_TB = 79
S_RS64 = 80
S_LOG2E, S_EPS = 82, 83
S_CNT = 86
S_PKB, S_PK1, S_PKL = 62, 84, 100
S_XG, S_XLW, S_WGB = 84, 85, 87
S_KC = 91
S_D2COL, S_D2MASK, S_D2SEL = 88, 89, 90
S_D3COL, S_D3MASK, S_D3SEL = 92, 93, 94
S_T6, S_T7 = 96, 97
S_VCC2 = 98

V_LANE = 0
V_T0 = 1
V_DUM = 7
V_XD = 8
V_WD = 12
V_XRO = 14
V_XRT = 18
V_WR = 22
V_L16 = 24
V_L8 = 25
V_GA = 26
V_NON = 27
V_ST = 28
V_POLL = 30
V_AR = 32
V_E = 36
V_GA2 = 38
V_AD = 40
V_TCH = 44
V_BSP = 45
V_TW1, V_TW2 = 46, 47
V_ACC0 = 64
V_ACC1 = 96
V_WF = 128
V_TMP = 160
V_PK = 192
V_PV = 208
V_STAT = 224
V_KV = 64
V_KZ = 224
A_X = 128


def NT(k):
    return ' nt' if OPT.get('nt', 0) & k else ''


def f2u(x):
    return struct.unpack('<I', struct.pack('<f', x))[0]


LOG2E = 1.4426950408889634
GELU_A_F = -2.0 * LOG2E * math.sqrt(2.0 / math.pi)
GELU_A = f2u(GELU_A_F)
GELU_B = f2u(GELU_A_F * 0.044715)


class St:
    def __init__(self, g, name):
        self.g = g
        self.b = g.blk(name)
        self.q = deque()
        self.period = 0
        self.cnt = 0
        self.lock = 0

    def __call__(self, text, tag=None, **meta):
        r = self.b(text, tag=tag, **meta)
        if self.period and not self.lock and self.q:
            self.cnt += 1
            if self.cnt >= self.period:
                self.pop()
        return r

    def pop(self, n=1):
        for _ in range(n):
            if not self.q:
                return
            item = self.q.popleft()
            for x in item:
                if isinstance(x, tuple):
                    self.b(x[1], tag=x[0], **(x[2] if len(x) > 2 else {}))
                else:
                    self.b(x)
        self.cnt = 0

    def add(self, items):
        self.q.extend(items)

    def flush(self):
        self.pop(len(self.q))

    def ensure(self, tag):
        def has(item):
            return any(isinstance(x, tuple) and x[0] == tag for x in item)
        while any(has(i) for i in self.q):
            self.pop(1)

    def label(self, n):
        self.b.label(n)

    def mark(self):
        return len(self.b.ins)

    def weave_from(self, n0, G=5, adv=2):
        if OPT.get('weave', 1):
            self.b.ins[n0:] = weave(self.b.ins[n0:], G, adv)

    def wait_vm(self, t):
        self.b.wait_vm(t)

    def wait_lds(self):
        self.b.wait_lds()

    class _L:
        def __init__(self, st):
            self.st = st

        def __enter__(self):
            self.st.lock += 1

        def __exit__(self, *a):
            self.st.lock -= 1

    def atomic(self):
        return St._L(self)


def gelu_group(b, xs, tmp):
    n = len(xs)
    if OPT.get('pk', 1):
        x0 = xs[0]
        for k in range(0, n, 2):
            b(f'v_pk_mul_f32 {v(tmp + k, 2)}, {v(x0 + k, 2)}, {v(x0 + k, 2)}')
        for k in range(0, n, 2):
            b(f'v_pk_fma_f32 {v(tmp + k, 2)}, {v(tmp + k, 2)}, {s(S_PKB, 2)}, {v(V_GA2, 2)}')
        for k in range(0, n, 2):
            b(f'v_pk_mul_f32 {v(tmp + k, 2)}, {v(tmp + k, 2)}, {v(x0 + k, 2)}')
        for k in range(n):
            b(f'v_exp_f32 {v(tmp + k)}, {v(tmp + k)}')
        for k in range(0, n, 2):
            b(f'v_pk_add_f32 {v(tmp + k, 2)}, {v(tmp + k, 2)}, {s(S_PK1, 2)}')
        for k in range(n):
            b(f'v_rcp_f32 {v(tmp + k)}, {v(tmp + k)}')
        for k in range(0, n, 2):
            b(f'v_pk_mul_f32 {v(x0 + k, 2)}, {v(x0 + k, 2)}, {v(tmp + k, 2)}')
        return
    for k in range(n):
        b(f'v_mul_f32 {v(tmp + k)}, {v(xs[k])}, {v(xs[k])}')
    for k in range(n):
        b(f'v_fmamk_f32 {v(tmp + k)}, {v(tmp + k)}, {hex(GELU_B)}, {v(V_GA)}')
    for k in range(n):
        b(f'v_mul_f32 {v(tmp + k)}, {v(tmp + k)}, {v(xs[k])}')
    for k in range(n):
        b(f'v_exp_f32 {v(tmp + k)}, {v(tmp + k)}')
    for k in range(n):
        b(f'v_add_f32 {v(tmp + k)}, 1.0, {v(tmp + k)}')
    for k in range(n):
        b(f'v_rcp_f32 {v(tmp + k)}, {v(tmp + k)}')
    for k in range(n):
        b(f'v_mul_f32 {v(xs[k])}, {v(xs[k])}, {v(tmp + k)}')


def phi_group(b, xs, tmp):
    n = len(xs)
    if OPT.get('pk', 1):
        x0 = xs[0]
        for k in range(0, n, 2):
            b(f'v_pk_mul_f32 {v(tmp + k, 2)}, {v(x0 + k, 2)}, {s(S_PKL, 2)}')
        for k in range(n):
            b(f'v_exp_f32_e64 {v(tmp + k)}, {v(tmp + k)} clamp')
        for k in range(n):
            b(f'v_max_f32 {v(xs[k])}, {s(S_EPS)}, {v(xs[k])}')
        for k in range(0, n, 2):
            b(f'v_pk_add_f32 {v(x0 + k, 2)}, {v(x0 + k, 2)}, {v(tmp + k, 2)}')
        return
    for k in range(n):
        b(f'v_mul_f32 {v(tmp + k)}, {s(S_LOG2E)}, {v(xs[k])}')
    for k in range(n):
        b(f'v_exp_f32_e64 {v(tmp + k)}, {v(tmp + k)} clamp')
    for k in range(n):
        b(f'v_max_f32 {v(xs[k])}, {s(S_EPS)}, {v(xs[k])}')
    for k in range(n):
        b(f'v_add_f32 {v(xs[k])}, {v(xs[k])}, {v(tmp + k)}')


def srd(b, base, ptr, nrec):
    b(f's_mov_b32 {s(base)}, {s(ptr)}')
    b(f's_mov_b32 {s(base + 1)}, {s(ptr + 1)}')
    b(f's_mov_b32 {s(base + 2)}, {hex(nrec)}')
    b(f's_mov_b32 {s(base + 3)}, 0x20000')


def dma4_voffsets(b, dst, RS):
    t0, t1, t2 = V_T0, V_T0 + 1, V_T0 + 2
    b(f'v_lshrrev_b32 {v(t0)}, 3, {v(V_LANE)}')
    b(f'v_and_b32 {v(t1)}, 7, {v(V_LANE)}')
    b(f'v_lshrrev_b32 {v(t2)}, 4, {v(V_LANE)}')
    b(f'v_xor_b32 {v(t1)}, {v(t1)}, {v(t2)}')
    b(f'v_lshlrev_b32 {v(t1)}, 4, {v(t1)}')
    b(f'v_mul_u32_u24 {v(t0)}, {RS}, {v(t0)}')
    b(f'v_add_u32 {v(dst)}, {v(t0)}, {v(t1)}')
    b(f'v_xor_b32 {v(t1)}, 64, {v(t1)}')
    b(f'v_add_u32 {v(t0)}, {v(t0)}, {v(t1)}')
    b(f'v_add_u32 {v(dst + 1)}, {8 * RS - 1024}, {v(t0)}')
    b(f'v_add_u32 {v(dst + 2)}, {16 * RS - 2048}, {v(dst)}')
    b(f'v_add_u32 {v(dst + 3)}, {24 * RS - 3072}, {v(t0)}')


def frag_read_addrs(b, dst):
    t0, t1, t2 = V_T0, V_T0 + 1, V_T0 + 2
    b(f'v_and_b32 {v(t0)}, 31, {v(V_LANE)}')
    b(f'v_lshrrev_b32 {v(t1)}, 5, {v(V_LANE)}')
    b(f'v_bfe_u32 {v(t2)}, {v(V_LANE)}, 1, 3')
    b(f'v_xor_b32 {v(t1)}, {v(t1)}, {v(t2)}')
    b(f'v_lshlrev_b32 {v(t1)}, 4, {v(t1)}')
    b(f'v_lshl_add_u32 {v(dst)}, {v(t0)}, 7, {v(t1)}')
    for kk in range(1, 4):
        b(f'v_xor_b32 {v(dst + kk)}, {32 * kk}, {v(dst)}')


def tr_addr(b, dst, pi):
    t0, t1 = V_T0, V_T0 + 1
    b(f'v_bfe_u32 {v(t0)}, {v(V_LANE)}, 2, 2')
    b(f'v_lshrrev_b32 {v(t1)}, 5, {v(V_LANE)}')
    b(f'v_lshl_add_u32 {v(t1)}, {v(t1)}, {2 if pi else 3}, {v(t0)}')
    b(f'v_lshlrev_b32 {v(t1)}, 7, {v(t1)}')
    b(f'v_lshrrev_b32 {v(t0)}, 1, {v(t0)}')
    b(f'v_lshl_add_u32 {v(t1)}, {v(t0)}, 6, {v(t1)}')
    b(f'v_bfe_u32 {v(t0)}, {v(V_LANE)}, 4, 1')
    b(f'v_lshl_add_u32 {v(t1)}, {v(t0)}, 5, {v(t1)}')
    b(f'v_and_b32 {v(t0)}, 3, {v(V_LANE)}')
    b(f'v_lshl_add_u32 {v(dst)}, {v(t0)}, 3, {v(t1)}')


def wd_voffsets(b):
    t0, t1, t2 = V_T0, V_T0 + 1, V_T0 + 2
    b(f'v_bfe_u32 {v(t0)}, {v(V_LANE)}, 2, 1')
    b(f'v_bfe_u32 {v(t1)}, {v(V_LANE)}, 4, 1')
    b(f'v_xor_b32 {v(t0)}, {v(t0)}, {v(t1)}')
    b(f'v_and_b32 {v(t1)}, 3, {v(V_LANE)}')
    b(f'v_lshlrev_b32 {v(t1)}, 4, {v(t1)}')
    b(f'v_lshl_add_u32 {v(t0)}, {v(t0)}, 6, {v(t1)}')
    b(f'v_lshrrev_b32 {v(t1)}, 3, {v(V_LANE)}')
    b(f'v_mul_lo_u32 {v(t1)}, {v(t1)}, {s(S_RS)}')
    b(f'v_add_u32 {v(t1)}, {v(t1)}, {v(t0)}')
    b(f'v_add_u32 {v(V_WD)}, {s(S_COL)}, {v(t1)}')
    b(f's_lshl_b32 {s(S_T0)}, {s(S_RS)}, 3')
    b(f's_sub_u32 {s(S_T0)}, {s(S_T0)}, 1024')
    b(f'v_add_u32 {v(V_WD + 1)}, {s(S_T0)}, {v(V_WD)}')
    b(f'v_mov_b32 {v(t2)}, {hex(OOB)}')
    b(f'v_cmp_gt_u32 vcc, {s(S_MASK)}, {v(t0)}')
    b(f'v_cndmask_b32 {v(V_WD)}, {v(V_WD)}, {v(t2)}, vcc')
    b(f'v_cndmask_b32 {v(V_WD + 1)}, {v(V_WD + 1)}, {v(t2)}, vcc')
    b(f's_lshl_b32 {s(S_RS64)}, {s(S_RS)}, 6')
    b(f's_lshl_b32 {s(S_T0)}, {s(S_RS)}, 4')
    b(f's_mul_i32 {s(S_WSO)}, {s(S_T0)}, {s(S_W)}')


def set_w_srd(b, sel):
    b(f's_cmp_eq_u32 {s(sel)}, 0')
    b(f's_cselect_b32 {s(SRD_W)}, {s(P_WQKV)}, {s(P_WIN)}')
    b(f's_cselect_b32 {s(SRD_W + 1)}, {s(P_WQKV + 1)}, {s(P_WIN + 1)}')
    b(f's_mov_b32 {s(SRD_W + 2)}, {hex(512 * 2752)}')
    b(f's_cmov_b32 {s(SRD_W + 2)}, {hex(512 * 3072)}')
    b(f's_mov_b32 {s(SRD_W + 3)}, 0x20000')


def w_piece_items(p, region, tag):
    return [
        [f's_add_u32 {s(S_Q0)}, {s(S_ROT)}, {p}',
         f's_and_b32 {s(S_Q0)}, {s(S_Q0)}, 7',
         f's_mul_i32 {s(S_Q0)}, {s(S_Q0)}, {s(S_RS64)}',
         f's_add_u32 {s(S_Q0)}, {s(S_Q0)}, {s(S_WSO)}',
         f's_add_u32 m0, {s(S_WL)}, {region + 8192 * p}',
         (tag, f'buffer_load_dwordx4 {v(V_WD)}, {s(SRD_W, 4)}, {s(S_Q0)} offen{NT(2)} lds')],
        [(tag, f'buffer_load_dwordx4 {v(V_WD + 1)}, {s(SRD_W, 4)}, {s(S_Q0)} offen offset:1024{NT(2)} lds')],
    ]


def x_chunk_items(c, tag):
    it = []
    for i in range(4):
        l = []
        if i == 0:
            l = [f's_add_u32 {s(S_Q0)}, {s(S_ROT)}, {c}',
                 f's_and_b32 {s(S_Q0)}, {s(S_Q0)}, 7',
                 f's_lshl_b32 {s(S_Q0)}, {s(S_Q0)}, 7',
                 f's_add_u32 {s(S_Q0)}, {s(S_Q0)}, {s(S_XS)}',
                 f's_add_u32 m0, {s(S_XL)}, {16384 * (c % 4)}']
        l.append((tag, f'buffer_load_dwordx4 {v(V_XD + i)}, {s(SRD_X, 4)}, {s(S_Q0)} offen offset:{1024 * i}{NT(4)} lds'))
        it.append(l)
    return it


def l1_items(c):
    tag = f'x{c}'
    slot = R1 + 16384 * (c % 3)
    it = []
    for m in range(4):
        l = []
        if m == 0:
            l = [f's_add_u32 {s(S_KC)}, {s(S_ROT)}, {c}',
                 f's_and_b32 {s(S_KC)}, {s(S_KC)}, 7',
                 f's_lshl_b32 {s(S_Q0)}, {s(S_KC)}, 7',
                 f's_add_u32 {s(S_Q0)}, {s(S_Q0)}, {s(S_XG)}',
                 f's_add_u32 m0, {s(S_XLW)}, {slot}']
        else:
            l = [f's_add_u32 {s(S_Q0)}, {s(S_Q0)}, 7168']
        l.append((tag, f'buffer_load_dwordx4 {v(V_XD + (m & 1))}, {s(SRD_X, 4)}, {s(S_Q0)} offen offset:{1024 * m} lds'))
        it.append(l)
    it.append([f's_add_u32 {s(S_Q0)}, {s(S_Q0)}, {7168 + 4096}',
               f's_add_u32 m0, {s(S_XLW)}, {slot + 4096}',
               (tag, f'buffer_load_dwordx4 {v(V_XD)}, {s(SRD_X, 4)}, {s(S_Q0)} offen lds')])
    return it


def l1_item5(g, b, c):
    tag = f'x{c}'
    l0, l1 = g.lab('M5'), g.lab('M5')
    b.b(f's_cmp_eq_u32 {s(S_W)}, 0')
    b.b(f's_cbranch_scc0 {l0}')
    b.b(f's_add_u32 {s(S_Q0)}, {s(S_Q0)}, 7168')
    b.b(f'buffer_load_dwordx4 {v(V_XD + 1)}, {s(SRD_X, 4)}, {s(S_Q0)} offen offset:1024 lds', nocount=True)
    b.b(f's_branch {l1}')
    b.b.label(l0)
    b.b(f's_mul_i32 {s(S_Q1)}, {s(S_KC)}, {s(S_RS64)}')
    b.b(f's_sub_u32 {s(S_Q0)}, {s(S_WGB)}, 1')
    b.b(f's_lshl_b32 {s(S_T0)}, {s(S_Q0)}, 10')
    b.b(f's_add_u32 m0, {s(S_T0)}, {R0 + 8192 * c}')
    b.b(f's_lshl_b32 {s(S_T0)}, {s(S_RS)}, 3')
    b.b(f's_mul_i32 {s(S_Q0)}, {s(S_Q0)}, {s(S_T0)}')
    b.b(f's_add_u32 {s(S_Q0)}, {s(S_Q0)}, {s(S_Q1)}')
    b.b(f'buffer_load_dwordx4 {v(V_WD)}, {s(SRD_W, 4)}, {s(S_Q0)} offen lds', tag=tag)
    b.b.label(l1)


def l1_w_items(c):
    tag = f'x{c}'
    return [[f's_mul_i32 {s(S_Q1)}, {s(S_KC)}, {s(S_RS64)}',
             f's_lshl_b32 {s(S_Q0)}, {s(S_WGB)}, 10',
             f's_add_u32 m0, {s(S_Q0)}, {R0 + 8192 * c}',
             f's_lshl_b32 {s(S_Q0)}, {s(S_RS)}, 3',
             f's_mul_i32 {s(S_Q0)}, {s(S_Q0)}, {s(S_WGB)}',
             f's_add_u32 {s(S_Q0)}, {s(S_Q0)}, {s(S_Q1)}',
             (tag, f'buffer_load_dwordx4 {v(V_WD)}, {s(SRD_W, 4)}, {s(S_Q0)} offen lds')],
            [(tag, f'buffer_load_dwordx4 {v(V_WD + 1)}, {s(SRD_W, 4)}, {s(S_Q0)} offen offset:1024 lds')]]


def a_slot(kind):
    return {'h0': (13, R1), 'h1': (13, R1 + 4096), 'f0': (13, R1), 'f1': (14, R2), 'f2': (14, R2 + 8192),
            'g1': (14, R0), 'g2': (14, R0 + 8192)}[kind]


def a_piece_items(c, tb, slot, off=0):
    sh, base = a_slot(slot)
    it = []
    for i in range(4):
        l = []
        if i == 0:
            l = [f's_add_u32 {s(S_Q0)}, {s(S_ROT2)}, {c}',
                 f's_and_b32 {s(S_Q0)}, {s(S_Q0)}, 7',
                 f's_lshl_b32 {s(S_Q0)}, {s(S_Q0)}, 7',
                 f's_add_u32 {s(S_Q0)}, {s(S_Q0)}, {s(S_AS)}']
            if tb:
                l.append(f's_add_u32 {s(S_Q0)}, {s(S_Q0)}, {32 * 4096}')
            l += [f's_lshl_b32 {s(S_Q1)}, {s(S_W)}, {sh}',
                  f's_add_u32 m0, {s(S_Q1)}, {base + off}']
        l.append((f'a{c}_{tb}', f'buffer_load_dwordx4 {v(V_AD + i)}, {s(SRD_A, 4)}, {s(S_Q0)} offen offset:{1024 * i}{NT(1)} lds'))
        it.append(l)
    return it


def a_piece_read(b, c, tb, slot, off=0):
    sh, base = a_slot(slot)
    with b.atomic():
        b(f's_lshl_b32 {s(S_T0)}, {s(S_W)}, {sh}')
        b(f's_add_u32 {s(S_T0)}, {s(S_T0)}, {base + off}')
        for kk in range(4):
            b(f'v_add_u32 {v(V_T0 + kk)}, {s(S_T0)}, {v(V_AR + kk)}')
        for kk in range(4):
            r = 8 * (4 * c + kk) + 4 * tb
            b(f'ds_read_b128 {a(r, 4)}, {v(V_T0 + kk)}')


def a_chunk_items(c, slot):
    return a_piece_items(c, 0, slot) + a_piece_items(c, 1, slot, 4096)


def a_chunk_read(b, c, slot):
    sh, base = a_slot(slot)
    with b.atomic():
        b(f's_lshl_b32 {s(S_T0)}, {s(S_W)}, {sh}')
        b(f's_add_u32 {s(S_T0)}, {s(S_T0)}, {base}')
        for kk in range(4):
            b(f'v_add_u32 {v(V_T0 + kk)}, {s(S_T0)}, {v(V_AR + kk)}')
        for kk in range(4):
            for tb in range(2):
                r = 8 * (4 * c + kk) + 4 * tb
                b(f'ds_read_b128 {a(r, 4)}, {v(V_T0 + kk)} offset:{4096 * tb}')


def stamp(b, idx):
    if not OPT['stamps']:
        return
    if OPT['stamps'] == 3 and idx not in (0, 12):
        return
    lock = b.atomic() if hasattr(b, 'atomic') else None
    if lock:
        lock.__enter__()
    b(f's_memrealtime {s(S_VCC2, 2)}' if OPT['stamps'] in (1, 3) else f's_memtime {s(S_VCC2, 2)}')
    b('s_waitcnt lgkmcnt(0)')
    b(f's_lshl_b32 {s(S_T6)}, {s(S_WG)}, 2')
    b(f's_add_u32 {s(S_T6)}, {s(S_T6)}, {s(S_W)}')
    b(f's_lshl_b32 {s(S_T6)}, {s(S_T6)}, 7')
    b(f's_add_u32 {s(S_T6)}, {s(S_T6)}, {WS_DBG + 4 * idx}')
    b(f'v_mov_b32 {v(V_POLL + 1)}, {s(S_VCC2)}')
    b(f'buffer_store_dword {v(V_POLL + 1)}, off, {s(SRD_WS, 4)}, {s(S_T6)}')
    if lock:
        lock.__exit__()


def s1_issue(g, b):
    from phase23 import s1_issue as f
    f(g, b)


def slow_mark(idx):
    if not OPT['stamps'] or OPT.get('s3st') or OPT['stamps'] == 3:
        return ''
    return f'''    s_lshl_b32 {s(S_T6)}, {s(S_WG)}, 2
    s_add_u32 {s(S_T6)}, {s(S_T6)}, {s(S_W)}
    s_lshl_b32 {s(S_T6)}, {s(S_T6)}, 7
    s_add_u32 {s(S_T6)}, {s(S_T6)}, {WS_DBG + 4 * idx}
    s_sub_u32 {s(S_VCC2)}, {SPIN_MAX + 1}, {s(S_CNT)}
    v_mov_b32 {v(V_POLL + 1)}, {s(S_VCC2)}
    buffer_store_dword {v(V_POLL + 1)}, off, {s(SRD_WS, 4)}, {s(S_T6)}
'''


class Gen:
    def __init__(self):
        self.blocks = []
        self.s3flag = False
        self.slow = []
        self.nlab = 0

    def blk(self, name):
        b = Block(name)
        self.blocks.append(b)
        return b

    def lab(self, p='L'):
        self.nlab += 1
        return f'{p}_{self.nlab}'

    def poll(self, b, vaddr, soff, vtmp, first_issued=False, skip_if_zero=None, mark=31):
        cont = self.lab('PC')
        slow = self.lab('PS')
        lock = b.atomic() if hasattr(b, 'atomic') else None
        if lock:
            lock.__enter__()
        if not first_issued:
            b(f'buffer_load_dword {v(vtmp)}, {v(vaddr)}, {s(SRD_WS, 4)}, {soff} offen sc1')
        b(f'v_cmp_ne_u32 vcc, {s(S_N)}, {v(vtmp)}')
        if skip_if_zero is not None:
            b(f's_cmp_eq_u32 {s(skip_if_zero)}, 0')
            b(f's_cbranch_scc1 {cont}')
        b(f's_cbranch_vccnz {slow}')
        b.label(cont)
        if lock:
            lock.__exit__()
        self.slow.append(f'''{slow}:
    s_mov_b32 {s(S_CNT)}, {SPIN_MAX}
{slow}_l:
    s_sleep 1
    buffer_load_dword {v(vtmp)}, {v(vaddr)}, {s(SRD_WS, 4)}, {soff} offen sc1
    s_waitcnt vmcnt(0)
{slow_mark(mark)}    v_cmp_ne_u32 vcc, {s(S_N)}, {v(vtmp)}
    s_cbranch_vccz {cont}
    s_sub_u32 {s(S_CNT)}, {s(S_CNT)}, 1
    s_cmp_lg_u32 {s(S_CNT)}, 0
    s_cbranch_scc1 {slow}_l
    s_branch {cont}''')

    def prologue(self):
        b = St(self, 'PRO')
        b(f's_cmp_ge_u32 {s(S_WG)}, 256')
        b('s_cbranch_scc1 L_END')
        if OPT.get('clk'):
            b('s_memtime s[62:63]')
            b('s_memrealtime s[100:101]')
        b('s_load_dwordx16 s[16:31], s[0:1], 0x0')
        b('s_load_dwordx8 s[32:39], s[0:1], 0x40')
        b(f'v_lshrrev_b32 {v(V_T0)}, 6, {v(0)}')
        b(f'v_and_b32 {v(V_LANE)}, 63, {v(0)}')
        b(f's_and_b32 {s(S_T0)}, {s(S_WG)}, 7')
        b(f'v_readfirstlane_b32 {s(S_W)}, {v(V_T0)}')
        b(f's_lshr_b32 {s(S_T1)}, {s(S_WG)}, 3')
        b(f's_lshr_b32 {s(S_T2)}, {s(S_T1)}, 2')
        b(f's_and_b32 {s(S_T1)}, {s(S_T1)}, 3')
        b(f's_and_b32 {s(S_T3)}, {s(S_T0)}, 1')
        b(f's_lshr_b32 {s(S_T0)}, {s(S_T0)}, 1')
        b(f's_lshl3_add_u32 {s(S_RB)}, {s(S_T3)}, {s(S_T2)}')
        b(f's_lshl2_add_u32 {s(S_CG)}, {s(S_T0)}, {s(S_T1)}')
        b(f's_lshl3_add_u32 {s(S_I)}, {s(S_T0)}, {s(S_T2)}')
        b(f's_lshl2_add_u32 {s(S_J)}, {s(S_T3)}, {s(S_T1)}')
        b(f's_lshl1_add_u32 {s(S_ROT)}, {s(S_T1)}, {s(S_T2)}')
        b(f's_and_b32 {s(S_ROT)}, {s(S_ROT)}, 7')
        if OPT.get('map', 0):
            b(f's_and_b32 {s(S_T4)}, {s(S_WG)}, 7')
            b(f's_lshr_b32 {s(S_T5)}, {s(S_WG)}, 6')
            b(f's_lshl2_add_u32 {s(S_I)}, {s(S_T4)}, {s(S_T5)}')
            b(f's_bfe_u32 {s(S_J)}, {s(S_WG)}, 0x30003')
            b(f's_lshl1_add_u32 {s(S_ROT2)}, {s(S_T5)}, {s(S_J)}')
            b(f's_and_b32 {s(S_ROT2)}, {s(S_ROT2)}, 7')
        else:
            b(f's_mov_b32 {s(S_ROT2)}, {s(S_ROT)}')
        if not OPT['rot']:
            b(f's_mov_b32 {s(S_ROT)}, 0')
        b(f'v_lshrrev_b32 {v(V_T0)}, 3, {v(V_LANE)}')
        b(f'v_and_b32 {v(V_T0 + 1)}, 7, {v(V_LANE)}')
        b(f'v_lshrrev_b32 {v(V_T0 + 2)}, 4, {v(V_LANE)}')
        b(f'v_xor_b32 {v(V_T0 + 1)}, {v(V_T0 + 1)}, {v(V_T0 + 2)}')
        b(f'v_lshlrev_b32 {v(V_T0 + 1)}, 4, {v(V_T0 + 1)}')
        b(f's_cmp_eq_u32 {s(S_W)}, 2')
        b(f's_cselect_b32 {s(S_T0)}, 64, 0')
        b(f'v_xor_b32 {v(V_T0 + 1)}, {s(S_T0)}, {v(V_T0 + 1)}')
        b(f'v_lshl_add_u32 {v(V_XD)}, {v(V_T0)}, 10, {v(V_T0 + 1)}')
        b(f'v_xor_b32 {v(V_XD + 1)}, 64, {v(V_XD)}')
        b(f's_mul_i32 {s(S_XLW)}, {s(S_W)}, 6')
        b(f's_cmp_eq_u32 {s(S_W)}, 2')
        b(f's_cselect_b32 {s(S_XLW)}, 11, {s(S_XLW)}')
        b(f's_lshl_b32 {s(S_XG)}, {s(S_XLW)}, 13')
        b(f's_lshl_b32 {s(S_T0)}, {s(S_RB)}, 17')
        b(f's_add_u32 {s(S_XG)}, {s(S_XG)}, {s(S_T0)}')
        b(f's_lshl_b32 {s(S_XLW)}, {s(S_XLW)}, 10')
        b(f's_mul_i32 {s(S_WGB)}, {s(S_W)}, 3')
        b(f's_lshl_b32 {s(S_T0)}, {s(S_CG)}, 7')
        b(f's_add_u32 {s(S_T1)}, {s(S_T0)}, 1344')
        b(f's_sub_u32 {s(S_T2)}, {s(S_T0)}, 1024')
        b(f's_cmp_le_u32 {s(S_CG)}, 10')
        b(f's_cselect_b32 {s(S_COL)}, {s(S_T1)}, {s(S_T2)}')
        b(f's_mov_b32 {s(S_RS)}, 3072')
        b(f's_cmov_b32 {s(S_RS)}, 2752')
        b(f's_cselect_b32 {s(S_T3)}, 1, 0')
        b(f's_cmp_eq_u32 {s(S_CG)}, 0')
        b(f's_cselect_b32 {s(S_MASK)}, 32, 0')
        wd_voffsets(b)
        b(f's_lshl_b32 {s(S_WL)}, {s(S_W)}, 11')
        b(f's_lshl2_add_u32 {s(S_TB)}, {s(S_RB)}, {s(S_W)}')
        if OPT.get('cpf', 0):
            b(f's_getpc_b64 {s(62, 2)}')
            b.label('L_pc0')
            b(f's_lshr_b32 {s(S_T0)}, {s(S_WG)}, 3')
            b(f's_lshl2_add_u32 {s(S_T0)}, {s(S_T0)}, {s(S_W)}')
            b(f's_lshl_b32 {s(S_T0)}, {s(S_T0)}, 9')
            b(f's_min_u32 {s(S_T0)}, {s(S_T0)}, L_code_end-L_pc0-512')
            b(f'v_lshlrev_b32 {v(V_T0 + 3)}, 3, {v(V_LANE)}')
            b(f'v_add_u32 {v(V_T0 + 3)}, {s(S_T0)}, {v(V_T0 + 3)}')
            b(f'global_load_dwordx2 {v(250, 2)}, {v(V_T0 + 3)}, {s(62, 2)}', nodst=True)
        b('s_waitcnt lgkmcnt(0)')
        srd(b, SRD_X, P_X, 2048 * 1024)
        set_w_srd(b, S_T3)
        if OPT.get('sym', 1):
            dma4_voffsets(b, V_XD, 1024)
            b(f's_lshl_b32 {s(S_XL)}, {s(S_W)}, 12')
            b(f's_add_u32 {s(S_XL)}, {s(S_XL)}, {R1}')
            b(f's_lshl_b32 {s(S_XS)}, {s(S_TB)}, 15')
            for c in range(3):
                b.add(x_chunk_items(c, f'x{c}'))
                b.add(w_piece_items(c, R0, f'x{c}'))
            b.flush()
        else:
            b(f's_cmp_eq_u32 {s(S_W)}, 3')
            b('s_cbranch_scc1 L_noload0')
            n0 = len(b.b.ins)
            for c in range(2):
                b.add(l1_items(c))
                b.flush()
                l1_item5(self, b, c)
                b.add(l1_w_items(c))
                b.flush()
            for i in b.b.ins[n0:]:
                i.meta['loader'] = True
            b.label('L_noload0')
        if OPT.get('wsoff', 0):
            off = OPT['wsoff'] << 20
            b(f's_add_u32 {s(P_WS)}, {s(P_WS)}, {hex(off)}')
            b(f's_addc_u32 {s(P_WS + 1)}, {s(P_WS + 1)}, 0')
        srd(b, SRD_WS, P_WS, WS_SIZE - (OPT.get('wsoff', 0) << 20))
        b(f'buffer_load_dword {v(V_E)}, off, {s(SRD_WS, 4)}, 0 sc1', tag='epoch')
        stamp(b, 0)
        b(f's_mov_b32 {s(S_LOG2E)}, {hex(f2u(LOG2E))}')
        b(f's_mov_b32 {s(S_EPS)}, {hex(f2u(1e-6))}')
        b(f'v_mov_b32 {v(V_GA)}, {hex(GELU_A)}')
        b(f'v_mov_b32 {v(V_GA2)}, {hex(GELU_A)}')
        b(f'v_mov_b32 {v(V_GA2 + 1)}, {hex(GELU_A)}')
        b(f's_mov_b32 {s(S_PKB)}, {hex(GELU_B)}')
        b(f's_mov_b32 {s(S_PKB + 1)}, {hex(GELU_B)}')
        b(f's_mov_b32 {s(S_PK1)}, 1.0')
        b(f's_mov_b32 {s(S_PK1 + 1)}, 1.0')
        b(f's_mov_b32 {s(S_PKL)}, {hex(f2u(LOG2E))}')
        b(f's_mov_b32 {s(S_PKL + 1)}, {hex(f2u(LOG2E))}')
        b(f'v_lshlrev_b32 {v(V_L16)}, 4, {v(V_LANE)}')
        b(f'v_lshlrev_b32 {v(V_L8)}, 3, {v(V_LANE)}')
        frag_read_addrs(b, V_AR)
        b(f's_lshl_b32 {s(S_T0)}, {s(S_W)}, 12')
        b(f's_add_u32 {s(S_T1)}, {s(S_T0)}, {R1}')
        for kk in range(4):
            b(f'v_add_u32 {v(V_XRO + kk)}, {s(S_T1)}, {v(V_AR + kk)}')
        tr_addr(b, V_WR, False)
        b(f'v_xor_b32 {v(V_WR + 1)}, 64, {v(V_WR)}')
        srd(b, SRD_A, P_WSP, 2048 * 4096)
        dma4_voffsets(b, V_AD, 4096)
        b(f'v_lshlrev_b32 {v(V_TCH)}, 7, {v(V_LANE)}')
        b(f's_lshl_b32 {s(S_AS)}, {s(S_I)}, 18')
        b(f's_lshl_b32 {s(S_T0)}, {s(S_W)}, 10')
        b(f's_add_u32 {s(S_AS)}, {s(S_AS)}, {s(S_T0)}')
        srd(b, SRD_T, P_BSP, 4096)
        b(f's_and_b32 {s(S_T0)}, {s(S_W)}, 1')
        b(f's_lshl_b32 {s(S_T0)}, {s(S_T0)}, 6')
        b(f's_lshl_b32 {s(S_T1)}, {s(S_I)}, 7')
        b(f's_add_u32 {s(S_T0)}, {s(S_T0)}, {s(S_T1)}')
        b(f'v_and_b32 {v(V_T0)}, 31, {v(V_LANE)}')
        b(f'v_lshlrev_b32 {v(V_T0)}, 1, {v(V_T0)}')
        b(f'buffer_load_ushort {v(V_BSP)}, {v(V_T0)}, {s(SRD_T, 4)}, {s(S_T0)} offen')
        b(f's_lshl_b32 {s(S_T0)}, {s(S_CG)}, 7')
        b(f's_add_u32 {s(S_D2COL)}, {s(S_T0)}, 1024')
        b(f's_add_u32 {s(S_D3COL)}, {s(S_T0)}, 2048')
        b(f's_mov_b32 {s(S_D2SEL)}, 0')
        b(f's_mov_b32 {s(S_D3SEL)}, 0')
        b(f's_mov_b32 {s(S_D2MASK)}, 0')
        b(f's_mov_b32 {s(S_D3MASK)}, 0')
        b(f's_cmp_lt_u32 {s(S_CG)}, 8')
        b('s_cbranch_scc1 L_desc_done')
        b(f's_cmp_lt_u32 {s(S_CG)}, 11')
        b('s_cbranch_scc0 L_desc_cd')
        b(f's_sub_u32 {s(S_D2COL)}, {s(S_T0)}, 1024')
        b(f's_sub_u32 {s(S_D3COL)}, {s(S_T0)}, 1056')
        b(f's_mov_b32 {s(S_D3SEL)}, 1')
        b(f's_cmp_eq_u32 {s(S_CG)}, 8')
        b(f's_cselect_b32 {s(S_D3MASK)}, 32, 0')
        b('s_branch L_desc_done')
        b.label('L_desc_cd')
        b(f's_lshl_b32 {s(S_T1)}, {s(S_T0)}, 1')
        b(f's_sub_u32 {s(S_T1)}, {s(S_T1)}, 2464')
        b(f's_sub_u32 {s(S_T2)}, {s(S_T0)}, 672')
        b(f's_cmp_lt_u32 {s(S_CG)}, 14')
        b(f's_cselect_b32 {s(S_D2COL)}, {s(S_T1)}, {s(S_T2)}')
        b(f's_add_u32 {s(S_D3COL)}, {s(S_D2COL)}, 128')
        b(f's_mov_b32 {s(S_D2SEL)}, 1')
        b(f's_mov_b32 {s(S_D3SEL)}, 1')
        b.label('L_desc_done')
        for r in range(32):
            b(f'v_mov_b32 {v(V_ACC0 + r)}, 0')
        if not OPT.get('sym', 1):
            b(f's_cmp_eq_u32 {s(S_W)}, 3')
            b('s_cbranch_scc1 L_L1P')
        return b.b

    def prefetch_items(self):
        def touch(srdreg, mul, off=0):
            return [f's_mul_i32 {s(S_Q0)}, {s(S_WG)}, {mul}',
                    ('t', f'buffer_load_dword {v(V_DUM)}, {v(V_TCH)}, {s(srdreg, 4)}, {s(S_Q0)} offen offset:{off}', dict(nodst=True))]
        it = []
        pre = lambda ptr, n: [f's_mov_b32 {s(SRD_U)}, {s(ptr)}', f's_mov_b32 {s(SRD_U + 1)}, {s(ptr + 1)}',
                              f's_mov_b32 {s(SRD_U + 2)}, {hex(n)}', f's_mov_b32 {s(SRD_U + 3)}, 0x20000']
        it.append(pre(P_WQKV, 512 * 3072) + touch(SRD_U, 6144))
        it.append(pre(P_WIN, 512 * 2752) + touch(SRD_U, 5504))
        for k in range(4):
            it.append([f's_mul_i32 {s(S_Q0)}, {s(S_WG)}, 32768', f's_add_u32 {s(S_Q0)}, {s(S_Q0)}, {8192 * k}',
                       ('t', f'buffer_load_dword {v(V_DUM)}, {v(V_TCH)}, {s(SRD_A, 4)}, {s(S_Q0)} offen', dict(nodst=True))])
        it.append(pre(P_WOUT, 688 * 1024) + touch(SRD_U, 2752))
        it.append(pre(P_WO, 512 * 1024) + touch(SRD_U, 2048))
        return it

    def slab1(self, loader):
        b = St(self, 'L1L' if loader else 'L1P')
        if not loader:
            b.label('L_L1P')
            pf = self.prefetch_items() if OPT.get('pf', 1) else []
        n0 = b.mark()
        for c in range(8):
            if loader:
                b.wait_vm(f'x{c}')
            if c == 4:
                b(f'v_add_u32 {v(V_NON)}, {hex(NONCE_K)}, {v(V_E)}')
                b(f'v_readfirstlane_b32 {s(S_N)}, {v(V_NON)}')
            b.wait_lds()
            b('s_barrier')
            if OPT.get('l1st') and c in (0, 1, 2, 4, 6):
                stamp(b, {0: 13, 1: 14, 2: 15, 4: 19, 6: 22}[c])
            m5 = None
            if c <= 4:
                if OPT.get('sym', 1):
                    b.add(x_chunk_items(c + 3, f'x{c + 3}'))
                    b.add(w_piece_items(c + 3, R0, f'x{c + 3}'))
                elif loader:
                    b.add(l1_items(c + 2))
                    m5 = c + 2
                else:
                    b.add(pf[:2])
                    pf = pf[2:]
            else:
                if c == 5:
                    self.switch_slab(b, S_D2SEL, S_D2COL, S_D2MASK)
                for p in {5: (4, 5), 6: (6, 7), 7: ()}[c]:
                    b.add(w_piece_items(p, R2, 'w2'))
                if c == 7 and OPT.get('tch', 0) & 4:
                    self.w3_touch(b)
            b.pop(1)
            b.period = OPT.get('l1p', 6) if loader else 8
            for kk in range(4):
                K = 4 * c + kk
                b(f'ds_read_b128 {a(A_X + 4 * K, 4)}, {v(V_XRO + kk)}')
                wf = V_WF + 8 * (K & 3)
                for ch in range(2):
                    for t in range(2):
                        b(f'ds_read_b64_tr_b16 {v(wf + 4 * ch + 2 * t, 2)}, {v(V_WR + ch)} offset:{2048 * K + 512 * t}')
                if K >= 2:
                    self.mfma_pair_R(b, K - 2)
                if kk == 2 and m5 is not None:
                    b.flush()
                    l1_item5(self, b, m5)
                    b.add(l1_w_items(m5))
            b.flush()
            b.period = 0
            if c < 7:
                d = 16384 if (c + 1) % 4 != 0 else -49152
                for kk in range(4):
                    if d > 0:
                        b(f'v_add_u32 {v(V_XRO + kk)}, {d}, {v(V_XRO + kk)}')
                    else:
                        b(f'v_subrev_u32 {v(V_XRO + kk)}, {-d}, {v(V_XRO + kk)}')
        self.mfma_pair_R(b, 30)
        self.mfma_pair_R(b, 31)
        b.weave_from(n0, G=6)
        b.wait_lds()
        b('s_barrier')
        stamp(b, 1)
        b(f's_cmp_lt_u32 {s(S_CG)}, 8')
        b('s_cbranch_scc1 L_roleA')
        b(f's_cmp_lt_u32 {s(S_CG)}, 11')
        b('s_cbranch_scc1 L_roleB')
        b(f's_cmp_lt_u32 {s(S_CG)}, 14')
        b('s_cbranch_scc1 L_roleC')
        b('s_branch L_roleD')
        return b.b

    def switch_slab(self, b, sel, col, mask):
        with b.atomic():
            b(f's_cmp_eq_u32 {s(sel)}, 0')
            b(f's_mov_b32 {s(S_RS)}, 2752')
            b(f's_cmov_b32 {s(S_RS)}, 3072')
            b(f's_mov_b32 {s(S_COL)}, {s(col)}')
            b(f's_mov_b32 {s(S_MASK)}, {s(mask)}')
            set_w_srd(b, sel)
            wd_voffsets(b)

    def mfma_pair_R(self, b, K):
        wf = V_WF + 8 * (K & 3)
        for ch in range(2):
            acc = V_ACC0 + 16 * ch
            b(f'v_mfma_f32_32x32x16_bf16 {v(acc, 16)}, {v(wf + 4 * ch, 4)}, {a(A_X + 4 * K, 4)}, {v(acc, 16)}')

    def touch_setup(self, b):
        b(f'v_lshrrev_b32 {v(V_T0)}, 3, {v(V_LANE)}')
        b(f'v_lshlrev_b32 {v(V_T0)}, 12, {v(V_T0)}')
        b(f'v_and_b32 {v(V_T0 + 1)}, 7, {v(V_LANE)}')
        b(f'v_lshl_add_u32 {v(V_TCH)}, {v(V_T0 + 1)}, 7, {v(V_T0)}')
        b(f'v_lshlrev_b32 {v(V_TW1)}, 10, {v(V_LANE)}')
        b(f'v_mov_b32 {v(V_TW2)}, {v(V_TW1)}')
        b(f'v_mov_b32 {v(V_T0)}, {hex(OOB)}')
        b(f'v_cmp_lt_u32 vcc, 21, {v(V_LANE)}')
        b(f'v_cndmask_b32 {v(V_TW1)}, {v(V_TW1)}, {v(V_T0)}, vcc')
        b(f'v_cmp_lt_u32 vcc, 15, {v(V_LANE)}')
        b(f'v_cndmask_b32 {v(V_TW2)}, {v(V_TW2)}, {v(V_T0)}, vcc')
        srd(b, SRD_U, P_WOUT, 688 * 1024)
        srd(b, SRD_X, P_WO, 512 * 1024)

    def touch_items(self):
        T = OPT.get('tch', 0)
        it = []
        if T & 1:
            for k in range(2):
                it.append([f's_and_b32 {s(S_Q0)}, {s(S_J)}, 3',
                           f's_lshl_b32 {s(S_Q0)}, {s(S_Q0)}, 16',
                           f's_add_u32 {s(S_Q0)}, {s(S_Q0)}, {s(S_AS)}'] +
                          ([f's_add_u32 {s(S_Q0)}, {s(S_Q0)}, {8 * 4096}'] if k else []) +
                          [('t', f'buffer_load_dword {v(V_DUM)}, {v(V_TCH)}, {s(SRD_A, 4)}, {s(S_Q0)} offen', dict(nodst=True))])
        if T & 8:
            it.append([f's_lshl2_add_u32 {s(S_Q0)}, {s(S_WG)}, {s(S_W)}',
                       f's_lshl_b32 {s(S_Q0)}, {s(S_Q0)}, 13',
                       f'v_lshlrev_b32 {v(V_T0)}, 7, {v(V_LANE)}',
                       ('t', f'buffer_load_dword {v(V_DUM)}, {v(V_T0)}, {s(SRD_A, 4)}, {s(S_Q0)} offen', dict(nodst=True))])
        if T & 2:
            it.append([f's_lshr_b32 {s(S_Q0)}, {s(S_WG)}, 5',
                       f's_mul_i32 {s(S_Q1)}, {s(S_Q0)}, 86',
                       f's_mul_i32 {s(S_Q0)}, {s(S_W)}, 22',
                       f's_add_u32 {s(S_Q0)}, {s(S_Q0)}, {s(S_Q1)}',
                       f's_lshl_b32 {s(S_Q0)}, {s(S_Q0)}, 10',
                       f's_lshl_b32 {s(S_Q1)}, {s(S_J)}, 7',
                       f's_add_u32 {s(S_Q0)}, {s(S_Q0)}, {s(S_Q1)}',
                       ('t', f'buffer_load_dword {v(V_DUM)}, {v(V_TW1)}, {s(SRD_U, 4)}, {s(S_Q0)} offen', dict(nodst=True))])
            it.append([f's_lshr_b32 {s(S_Q0)}, {s(S_WG)}, 5',
                       f's_lshl_b32 {s(S_Q0)}, {s(S_Q0)}, 2',
                       f's_add_u32 {s(S_Q0)}, {s(S_Q0)}, {s(S_W)}',
                       f's_lshl_b32 {s(S_Q0)}, {s(S_Q0)}, 14',
                       f's_lshl_b32 {s(S_Q1)}, {s(S_J)}, 7',
                       f's_add_u32 {s(S_Q0)}, {s(S_Q0)}, {s(S_Q1)}',
                       ('t', f'buffer_load_dword {v(V_DUM)}, {v(V_TW2)}, {s(SRD_X, 4)}, {s(S_Q0)} offen', dict(nodst=True))])
        return it

    def w3_touch(self, b):
        with b.atomic():
            b(f's_cmp_eq_u32 {s(S_D3SEL)}, 0')
            b(f's_cselect_b32 {s(SRD_U)}, {s(P_WQKV)}, {s(P_WIN)}')
            b(f's_cselect_b32 {s(SRD_U + 1)}, {s(P_WQKV + 1)}, {s(P_WIN + 1)}')
            b(f's_mov_b32 {s(SRD_U + 2)}, {hex(512 * 2752)}')
            b(f's_cmov_b32 {s(SRD_U + 2)}, {hex(512 * 3072)}')
            b(f's_mov_b32 {s(SRD_U + 3)}, 0x20000')
            b(f's_mov_b32 {s(S_T0)}, 2752')
            b(f's_cmov_b32 {s(S_T0)}, 3072')
            b(f'v_and_b32 {v(V_T0)}, 15, {v(V_LANE)}')
            b(f'v_mul_lo_u32 {v(V_T0)}, {v(V_T0)}, {s(S_T0)}')
            b(f'v_bfe_u32 {v(V_T0 + 1)}, {v(V_LANE)}, 4, 1')
            b(f'v_mul_u32_u24 {v(V_T0 + 1)}, 124, {v(V_T0 + 1)}')
            b(f'v_add_u32 {v(V_T0)}, {v(V_T0)}, {v(V_T0 + 1)}')
            b(f's_max_i32 {s(S_T1)}, {s(S_D3COL)}, 0')
            b(f'v_add_u32 {v(V_T0)}, {s(S_T1)}, {v(V_T0)}')
            b(f'v_mov_b32 {v(V_T0 + 1)}, {hex(OOB)}')
            b(f'v_cmp_lt_u32 vcc, 31, {v(V_LANE)}')
            b(f'v_cndmask_b32 {v(V_T0)}, {v(V_T0)}, {v(V_T0 + 1)}, vcc')
            b(f's_lshr_b32 {s(S_T1)}, {s(S_WG)}, 5')
            b(f's_lshl2_add_u32 {s(S_T1)}, {s(S_T1)}, {s(S_W)}')
            b(f's_lshl_b32 {s(S_T1)}, {s(S_T1)}, 4')
            b(f's_mul_i32 {s(S_T1)}, {s(S_T1)}, {s(S_T0)}')
            b(f'buffer_load_dword {v(V_DUM)}, {v(V_T0)}, {s(SRD_U, 4)}, {s(S_T1)} offen', tag='t', nodst=True)

    def post_l1(self, b, role):
        it = []
        self.touch_setup(b)
        for p in (0, 1, 2, 3):
            it += w_piece_items(p, R2, 'w2')
        it += self.touch_items()
        if OPT.get('c0early', 1) == 1:
            it += a_chunk_items(0, 'f0')
        return it

    def w3_items(self, b, region=R0):
        b.flush()
        self.switch_slab(b, S_D3SEL, S_D3COL, S_D3MASK)
        for p in range(8):
            b.add(w_piece_items(p, region, 'w3'))
        if OPT.get('c0early', 1) == 2:
            b.add(a_chunk_items(0, 'f0'))

    def set_wr(self, b, region):
        with b.atomic():
            tr_addr(b, V_WR, False)
            if region:
                b(f'v_add_u32 {v(V_WR)}, {region}, {v(V_WR)}')
            b(f'v_xor_b32 {v(V_WR + 1)}, 64, {v(V_WR)}')

    def main_loop(self, b, orient, hooks=None, pop_every=1):
        hooks = hooks or {}
        D = 2

        def rd(K):
            wf = V_WF + 8 * (K & 3)
            for ch in range(2):
                for t in range(2):
                    b(f'ds_read_b64_tr_b16 {v(wf + 4 * ch + 2 * t, 2)}, {v(V_WR + ch)} offset:{2048 * K + 512 * t}')
        sv = b.period
        b.period = 0
        n0 = b.mark()
        for K in range(D):
            rd(K)
        for K in range(32):
            if K + D < 32:
                rd(K + D)
            wf = V_WF + 8 * (K & 3)
            x = a(A_X + 4 * K, 4)
            for ch in range(2):
                acc = V_ACC1 + 16 * ch
                c = '0' if K == 0 else v(acc, 16)
                if orient == 'T':
                    b(f'v_mfma_f32_32x32x16_bf16 {v(acc, 16)}, {v(wf + 4 * ch, 4)}, {x}, {c}')
                else:
                    b(f'v_mfma_f32_32x32x16_bf16 {v(acc, 16)}, {x}, {v(wf + 4 * ch, 4)}, {c}')
            for fn in hooks.get(K, []):
                fn(b, 4 if K + D < 32 else 0)
            if OPT.get('s3st') and self.s3flag and K in (7, 15, 19, 23, 27):
                stamp(b, {7: 11, 15: 13, 19: 15, 23: 19, 27: 22}[K])
            if K % pop_every == pop_every - 1:
                b.pop(1)
        b.weave_from(n0, G=5)
        b.period = sv

    def apipe_hooks(self, first_K, step):
        hooks = {}

        def mk_issue(p):
            return lambda b, younger: b.add(a_piece_items(p >> 1, p & 1, f'h{p & 1}'))

        def mk_move(p):
            def f(b, younger):
                b.ensure(f'a{p >> 1}_{p & 1}')
                b.wait_vm(f'a{p >> 1}_{p & 1}')
                a_piece_read(b, p >> 1, p & 1, f'h{p & 1}')
            return f

        def mk_refill(p):
            def f(b, younger):
                b(f's_waitcnt lgkmcnt({younger})')
                b.add(a_piece_items(p >> 1, p & 1, f'h{p & 1}'))
            return f
        return hooks, mk_issue, mk_move, mk_refill

    def z2_epilogue(self, b, mid=None):
        for g in range(4):
            gelu_group(b, [V_ACC0 + 8 * g + k for k in range(8)], V_TMP)
            if g == 0 and mid:
                mid()
        s1, s2 = V_ST, V_ST + 1
        t = V_TMP
        if OPT.get('pk', 1):
            p, q = t + 2, t + 4
            b(f'v_pk_add_f32 {v(p, 2)}, {v(V_ACC0, 2)}, {v(V_ACC0 + 2, 2)}')
            b(f'v_pk_mul_f32 {v(q, 2)}, {v(V_ACC0, 2)}, {v(V_ACC0, 2)}')
            for k in range(4, 32, 2):
                b(f'v_pk_add_f32 {v(p, 2)}, {v(p, 2)}, {v(V_ACC0 + k, 2)}')
            for k in range(2, 32, 2):
                b(f'v_pk_fma_f32 {v(q, 2)}, {v(V_ACC0 + k, 2)}, {v(V_ACC0 + k, 2)}, {v(q, 2)}')
            b(f'v_mov_b32 {v(s1)}, {v(p)}')
            b(f'v_mov_b32 {v(t)}, {v(p + 1)}')
            b(f'v_mov_b32 {v(s2)}, {v(q)}')
            b(f'v_mov_b32 {v(t + 1)}, {v(q + 1)}')
        else:
            b(f'v_add_f32 {v(s1)}, {v(V_ACC0)}, {v(V_ACC0 + 1)}')
            b(f'v_mul_f32 {v(s2)}, {v(V_ACC0)}, {v(V_ACC0)}')
            b(f'v_add_f32 {v(t)}, {v(V_ACC0 + 2)}, {v(V_ACC0 + 3)}')
            b(f'v_mul_f32 {v(t + 1)}, {v(V_ACC0 + 1)}, {v(V_ACC0 + 1)}')
            for k in range(4, 32, 2):
                b(f'v_add_f32 {v(s1)}, {v(s1)}, {v(V_ACC0 + k)}')
                b(f'v_add_f32 {v(t)}, {v(t)}, {v(V_ACC0 + k + 1)}')
            for k in range(2, 32, 2):
                b(f'v_fmac_f32 {v(s2)}, {v(V_ACC0 + k)}, {v(V_ACC0 + k)}')
                b(f'v_fmac_f32 {v(t + 1)}, {v(V_ACC0 + k + 1)}, {v(V_ACC0 + k + 1)}')
        with b.atomic():
            b(f'v_add_f32 {v(s1)}, {v(s1)}, {v(t)}')
            b(f'v_add_f32 {v(s2)}, {v(s2)}, {v(t + 1)}')
            b(f'v_permlane32_swap_b32 {v(s1)}, {v(s2)}')
            b(f'v_add_f32 {v(s1)}, {v(s1)}, {v(s2)}')
            b(f'v_mov_b32 {v(s2)}, {s(S_N)}')
            b(f's_mul_i32 {s(S_T0)}, {s(S_TB)}, 5632')
            b(f's_lshl_b32 {s(S_T1)}, {s(S_CG)}, 9')
            b(f's_add_u32 {s(S_T0)}, {s(S_T0)}, {s(S_T1)}')
            b(f's_add_u32 {s(S_T0)}, {s(S_T0)}, {WS_STATS}')
            b(f'buffer_store_dwordx2 {v(s1, 2)}, {v(V_L8)}, {s(SRD_WS, 4)}, {s(S_T0)} offen sc1', tag='st')
        stamp(b, 2)

    def stats_issue(self, b):
        with b.atomic():
            b(f's_mul_i32 {s(S_T5)}, {s(S_TB)}, 5632')
            b(f's_add_u32 {s(S_T5)}, {s(S_T5)}, {WS_STATS}')
            b(f's_add_u32 {s(S_T4)}, {s(S_T5)}, 4096')
            for js in range(11):
                so = S_T5 if js < 8 else S_T4
                off = 512 * js if js < 8 else 512 * js - 4096
                b(f'buffer_load_dwordx2 {v(V_STAT + 2 * js, 2)}, {v(V_L8)}, {s(SRD_WS, 4)}, {s(so)} offen offset:{off} sc1')

    def stats_check_code(self, b):
        t = V_TMP
        b(f'v_min3_u32 {v(t)}, {v(V_STAT + 1)}, {v(V_STAT + 3)}, {v(V_STAT + 5)}')
        b(f'v_max3_u32 {v(t + 1)}, {v(V_STAT + 1)}, {v(V_STAT + 3)}, {v(V_STAT + 5)}')
        for js in range(3, 11, 2):
            b(f'v_min3_u32 {v(t)}, {v(t)}, {v(V_STAT + 2 * js + 1)}, {v(V_STAT + 2 * js + 3)}')
            b(f'v_max3_u32 {v(t + 1)}, {v(t + 1)}, {v(V_STAT + 2 * js + 1)}, {v(V_STAT + 2 * js + 3)}')
        b(f'v_xor_b32 {v(t)}, {s(S_N)}, {v(t)}')
        b(f'v_xor_b32 {v(t + 1)}, {s(S_N)}, {v(t + 1)}')
        b(f'v_or_b32 {v(t)}, {v(t)}, {v(t + 1)}')
        b(f'v_cmp_ne_u32 vcc, 0, {v(t)}')

    def z2_norm(self, b, after_check=None):
        cont, slow = self.lab('ZC'), self.lab('ZS')
        with b.atomic():
            self.stats_check_code(b)
            b(f's_cbranch_vccnz {slow}')
            b.label(cont)
        if after_check:
            after_check()
        sb = Block('tmp')
        sb(f's_sleep 1')
        sb(f's_mul_i32 {s(S_T5)}, {s(S_TB)}, 5632')
        sb(f's_add_u32 {s(S_T5)}, {s(S_T5)}, {WS_STATS}')
        sb(f's_add_u32 {s(S_T4)}, {s(S_T5)}, 4096')
        for js in range(11):
            so = S_T5 if js < 8 else S_T4
            off = 512 * js if js < 8 else 512 * js - 4096
            sb(f'buffer_load_dwordx2 {v(V_STAT + 2 * js, 2)}, {v(V_L8)}, {s(SRD_WS, 4)}, {s(so)} offen offset:{off} sc1')
        sb('s_waitcnt vmcnt(0)')
        self.stats_check_code(sb)
        txt = '\n'.join('    ' + i.text for i in sb.ins)
        self.slow.append(f'''{slow}:
    s_mov_b32 {s(S_CNT)}, {SPIN_MAX}
{slow}_l:
{txt}
{slow_mark(30)}    s_cbranch_vccz {cont}
    s_sub_u32 {s(S_CNT)}, {s(S_CNT)}, 1
    s_cmp_lg_u32 {s(S_CNT)}, 0
    s_cbranch_scc1 {slow}_l
    s_branch {cont}''')
        t = V_TMP
        b(f'v_add_f32 {v(t)}, {v(V_STAT)}, {v(V_STAT + 2)}')
        b(f'v_add_f32 {v(t + 1)}, {v(V_STAT + 4)}, {v(V_STAT + 6)}')
        for js in range(4, 11, 2):
            b(f'v_add_f32 {v(t)}, {v(t)}, {v(V_STAT + 2 * js)}')
            if js + 1 < 11:
                b(f'v_add_f32 {v(t + 1)}, {v(t + 1)}, {v(V_STAT + 2 * js + 2)}')
        b(f'v_add_f32 {v(t)}, {v(t)}, {v(t + 1)}')
        b(f'v_mov_b32 {v(t + 1)}, {v(t)}')
        b(f'v_permlane32_swap_b32 {v(t)}, {v(t + 1)}')
        b(f'v_mul_f32 {v(t)}, {hex(f2u(1.0 / 688))}, {v(t)}')
        b(f'v_mul_f32 {v(t + 1)}, {hex(f2u(1.0 / 688))}, {v(t + 1)}')
        b(f'v_fma_f32 {v(t + 1)}, -{v(t)}, {v(t)}, {v(t + 1)}')
        b(f'v_max_f32 {v(t + 1)}, 0, {v(t + 1)}')
        b(f'v_add_f32 {v(t + 1)}, {hex(f2u(1e-5))}, {v(t + 1)}')
        b(f'v_rsq_f32 {v(t + 1)}, {v(t + 1)}')
        b(f'v_mul_f32 {v(t)}, {v(t)}, {v(t + 1)}')
        b(f'v_sub_f32 {v(t)}, 0, {v(t)}')
        w0 = t + 2
        r0 = t + 6
        with b.atomic():
            b(f's_lshl_b32 {s(S_T0)}, {s(S_W)}, 14')
            b(f's_add_u32 {s(S_T0)}, {s(S_T0)}, {(R0 + 8192) if OPT.get("aplan", 1) == 3 else (R2 + 8192)}')
            b(f'v_and_b32 {v(w0)}, 31, {v(V_LANE)}')
            b(f'v_lshrrev_b32 {v(w0 + 1)}, 5, {v(V_LANE)}')
            b(f'v_and_b32 {v(w0 + 2)}, 15, {v(V_LANE)}')
            b(f'v_xor_b32 {v(w0 + 1)}, {v(w0 + 1)}, {v(w0 + 2)}')
            b(f'v_lshlrev_b32 {v(w0 + 1)}, 3, {v(w0 + 1)}')
            b(f'v_lshl_add_u32 {v(w0)}, {v(w0)}, 7, {v(w0 + 1)}')
            b(f'v_add_u32 {v(w0)}, {s(S_T0)}, {v(w0)}')
            b(f'v_bfe_u32 {v(r0)}, {v(V_LANE)}, 2, 2')
            b(f'v_lshrrev_b32 {v(r0 + 1)}, 5, {v(V_LANE)}')
            b(f'v_lshl_add_u32 {v(r0)}, {v(r0 + 1)}, 3, {v(r0)}')
            b(f'v_bfe_u32 {v(r0 + 1)}, {v(V_LANE)}, 4, 1')
            b(f'v_and_b32 {v(r0 + 2)}, 3, {v(V_LANE)}')
            b(f'v_lshl_add_u32 {v(r0 + 1)}, {v(r0 + 1)}, 2, {v(r0 + 2)}')
            b(f'v_xor_b32 {v(r0 + 1)}, {v(r0 + 1)}, {v(r0)}')
            b(f'v_lshlrev_b32 {v(r0 + 1)}, 3, {v(r0 + 1)}')
            b(f'v_lshl_add_u32 {v(r0)}, {v(r0)}, 7, {v(r0 + 1)}')
            b(f'v_add_u32 {v(r0)}, {s(S_T0)}, {v(r0)}')
        ra = r0 + 1
        for bb in range(2):
            for tt in range(2):
                b(f'v_xor_b32 {v(ra + 2 * bb + tt)}, {8 * ((8 * bb) ^ (4 * tt))}, {v(r0)}')
        pk = V_PV
        for bb in range(2):
            for j in range(4):
                r = V_ACC0 + 16 * bb + 4 * j
                for k in range(4):
                    b(f'v_fma_f32 {v(r + k)}, {v(r + k)}, {v(t + 1)}, {v(t)}')
                b(f'v_cvt_pk_bf16_f32 {v(pk + 8 * bb + 2 * j)}, {v(r)}, {v(r + 1)}')
                b(f'v_cvt_pk_bf16_f32 {v(pk + 8 * bb + 2 * j + 1)}, {v(r + 2)}, {v(r + 3)}')
                K = 8 * bb + 2 * j
                if K:
                    b(f'v_xor_b32 {v(w0 + 1)}, {8 * K}, {v(w0)}')
                    ad = w0 + 1
                else:
                    ad = w0
                b(f'ds_write_b64 {v(ad)}, {v(pk + 8 * bb + 2 * j, 2)}')
        b.wait_lds()
        fr = V_TMP + 16
        for bb in range(2):
            for kq in range(2):
                for tt in range(2):
                    b(f'ds_read_b64_tr_b16 {v(fr + 8 * bb + 4 * kq + 2 * tt, 2)}, {v(ra + 2 * bb + tt)} offset:{512 * tt + 2048 * kq}')
        with b.atomic():
            b(f's_lshl_b32 {s(S_T0)}, {s(S_CG)}, 18')
            b(f's_lshl_b32 {s(S_T1)}, {s(S_TB)}, 11')
            b(f's_add_u32 {s(S_T0)}, {s(S_T0)}, {s(S_T1)}')
            b(f's_add_u32 {s(S_T0)}, {s(S_T0)}, {WS_Z2N}')
            b(f's_add_u32 {s(S_T1)}, {s(S_T0)}, {128 * 1024}')
            for bb in range(2):
                for kq in range(2):
                    so = S_T0 if bb == 0 else S_T1
                    b(f'buffer_store_dwordx4 {v(fr + 8 * bb + 4 * kq, 4)}, {v(V_L16)}, {s(SRD_WS, 4)}, {s(so)} offen offset:{1024 * kq} sc1', tag='z2n')
        stamp(b, 3)

    def flag_store(self, b, base, tagwait):
        b.wait_vm(tagwait)
        with b.atomic():
            b(f's_lshl4_add_u32 {s(S_T0)}, {s(S_RB)}, {s(S_CG)}')
            b(f's_lshl4_add_u32 {s(S_T0)}, {s(S_T0)}, {s(S_W)}')
            b(f's_lshl_b32 {s(S_T0)}, {s(S_T0)}, 2')
            b(f's_add_u32 {s(S_T0)}, {s(S_T0)}, {base}')
            b(f'v_mov_b32 {v(V_POLL)}, {s(S_N)}')
            b(f'buffer_store_dword {v(V_POLL)}, off, {s(SRD_WS, 4)}, {s(S_T0)} sc1', tag='flag')

    def t_epilogue(self, b, kind, acc, mid=None, midg=1):
        out = V_PV
        for g in range(4):
            if g == midg and mid:
                mid()
            xs = [acc + 8 * g + k for k in range(8)]
            if kind == 'gelu':
                gelu_group(b, xs, V_TMP)
            else:
                phi_group(b, xs, V_TMP)
            for k in range(4):
                b(f'v_cvt_pk_bf16_f32 {v(out + 4 * g + k)}, {v(xs[2 * k])}, {v(xs[2 * k + 1])}')
            so = S_O0 if g < 2 else S_O1
            b(f'buffer_store_dwordx4 {v(out + 4 * g, 4)}, {v(V_L16)}, {s(SRD_WS, 4)}, {s(so)} offen offset:{1024 * (g & 1)} sc1', tag='p1')

    def set_out_addr(self, b, kind, slab_code):
        with b.atomic():
            for l in slab_code:
                b(l)
            base, stride = (WS_PQ, 32768) if kind == 'q' else (WS_Z1F, 45056)
            b(f's_lshl_b32 {s(S_T4)}, {s(S_T4)}, 12')
            b(f's_add_u32 {s(S_T4)}, {s(S_T4)}, {base}')
            b(f's_mul_i32 {s(S_O0)}, {s(S_TB)}, {stride}')
            b(f's_add_u32 {s(S_O0)}, {s(S_O0)}, {s(S_T4)}')
            b(f's_add_u32 {s(S_O1)}, {s(S_O0)}, 2048')

    def k_epilogue(self, b):
        for g in range(4):
            xs = [V_ACC1 + 8 * g + k for k in range(8)]
            phi_group(b, xs, V_TMP)
            for k in range(4):
                b(f'v_cvt_pk_bf16_f32 {v(V_PK + 4 * g + k)}, {v(xs[2 * k])}, {v(xs[2 * k + 1])}')

    def v_epilogue(self, b):
        for k in range(16):
            b(f'v_cvt_pk_bf16_f32 {v(V_PV + k)}, {v(V_ACC1 + 2 * k)}, {v(V_ACC1 + 2 * k + 1)}')
        ones = V_TMP
        for k in range(4):
            b(f'v_mov_b32 {v(ones + k)}, 0x3f803f80')
        for par in range(2):
            for ch in range(2):
                g = 2 * ch + par
                kv, zz = V_KV + 16 * ch, V_KZ + 16 * ch
                c0 = '0' if par == 0 else v(kv, 16)
                c1 = '0' if par == 0 else v(zz, 16)
                b(f'v_mfma_f32_32x32x16_bf16 {v(kv, 16)}, {v(V_PK + 4 * g, 4)}, {v(V_PV + 4 * g, 4)}, {c0}')
                b(f'v_mfma_f32_32x32x16_bf16 {v(zz, 16)}, {v(V_PK + 4 * g, 4)}, {v(ones, 4)}, {c1}')

    def kv_finish(self, b, R0=R0):
        with b.atomic():
            b(f'v_and_b32 {v(V_T0)}, 31, {v(V_LANE)}')
            b(f'v_cmp_gt_u32 vcc, 16, {v(V_T0)}')
            for ch in range(2):
                kv, zz = V_KV + 16 * ch, V_KZ + 16 * ch
                for k in range(8):
                    b(f'v_cndmask_b32 {v(kv + k)}, {v(zz + k)}, {v(kv + k)}, vcc')
                for k in range(8, 16):
                    b(f'v_cndmask_b32 {v(kv + k)}, {v(kv + k)}, {v(zz + k)}, vcc')
            b('s_barrier')
            b(f's_lshl_b32 {s(S_T0)}, {s(S_W)}, 11')
            b(f's_add_u32 {s(S_T0)}, {s(S_T0)}, {R0}')
            b(f'v_add_u32 {v(V_T0)}, {s(S_T0)}, {v(V_L16)}')
            for d in range(4):
                for q in range(2):
                    b(f'ds_write_b128 {v(V_T0)}, {v(V_KV + 8 * d + 4 * q, 4)} offset:{8192 * d + 1024 * q}')
            b(f's_lshl_b32 {s(S_T0)}, {s(S_W)}, 13')
            b(f's_add_u32 {s(S_T0)}, {s(S_T0)}, {R0}')
            b(f'v_add_u32 {v(V_T0)}, {s(S_T0)}, {v(V_L16)}')
            b.wait_lds()
            b('s_barrier')
            X = V_KZ
            for src in range(4):
                for q in range(2):
                    b(f'ds_read_b128 {v(X + 8 * src + 4 * q, 4)}, {v(V_T0)} offset:{2048 * src + 1024 * q}')
            for k in range(8):
                b(f'v_add_f32 {v(X + k)}, {v(X + k)}, {v(X + 8 + k)}')
                b(f'v_add_f32 {v(X + 16 + k)}, {v(X + 16 + k)}, {v(X + 24 + k)}')
            for k in range(8):
                b(f'v_add_f32 {v(X + k)}, {v(X + k)}, {v(X + 16 + k)}')
            b(f's_lshl2_add_u32 {s(S_T0)}, {s(S_CG)}, {s(S_W)}')
            b(f's_lshl_b32 {s(S_T0)}, {s(S_T0)}, 15')
            b(f's_lshl_b32 {s(S_T1)}, {s(S_RB)}, 10')
            b(f's_add_u32 {s(S_T0)}, {s(S_T0)}, {s(S_T1)}')
            b(f's_add_u32 {s(S_T0)}, {s(S_T0)}, {WS_KVP}')
            for q in range(2):
                if q:
                    b(f's_add_u32 {s(S_T0)}, {s(S_T0)}, 16384')
                b(f'buffer_store_dwordx4 {v(X + 4 * q, 4)}, {v(V_L16)}, {s(SRD_WS, 4)}, {s(S_T0)} offen sc1', tag='p1')

    def pre_slab(self, b, tag):
        b.ensure(tag)
        b.wait_vm(tag)
        b('s_barrier')

    def mv_piece(self, b, p):
        b.ensure(f'a{p >> 1}_{p & 1}')
        b.wait_vm(f'a{p >> 1}_{p & 1}')
        a_piece_read(b, p >> 1, p & 1, f'h{p & 1}')

    def fetch_piece(self, b, p):
        b.add(a_piece_items(p >> 1, p & 1, f'h{p & 1}'))

    def mv_chunk(self, b, c, slot):
        b.ensure(f'a{c}_0')
        b.ensure(f'a{c}_1')
        b.wait_vm([f'a{c}_0', f'a{c}_1'])
        a_chunk_read(b, c, slot)

    def slab3_hooks(self, extra=None):
        h = {}

        def add(K, fn):
            h.setdefault(K, []).append(fn)
        K0 = OPT.get('k0', 20)
        if OPT.get('aplan', 1) == 2:
            for K, fn in (extra or {}).items():
                add(K, fn)
            return h
        add(K0, lambda b, y: self.mv_chunk(b, 0, 'f0'))
        add(K0 + 1, lambda b, y: (b(f's_waitcnt lgkmcnt({y})'), b.add(a_chunk_items(3, 'f0'))))
        add(K0 + 4, lambda b, y: self.mv_chunk(b, 1, 'f1'))
        add(K0 + 5, lambda b, y: (b(f's_waitcnt lgkmcnt({y})'), b.add(a_chunk_items(4, 'f1'))))
        add(K0 + 8, lambda b, y: self.mv_chunk(b, 2, 'f2'))
        add(K0 + 9, lambda b, y: (b(f's_waitcnt lgkmcnt({y})'), b.add(a_chunk_items(5, 'f2'))))
        for K, fn in (extra or {}).items():
            add(K, fn)
        return h

    def mid_a(self, b):
        if OPT.get('aplan', 1) == 2:
            return
        if not OPT.get('c0early', 1):
            b.add(a_chunk_items(0, 'f0'))
        b.add(a_chunk_items(1, 'f1'))

    def mid_b(self, b):
        pass

    def g_pass(self, b, R0=R0, hooks3=None):
        ga = V_T0 + 4
        b.wait_vm('gw')
        with b.atomic():
            b(f'v_lshrrev_b32 {v(ga)}, 5, {v(V_LANE)}')
            b(f'v_lshlrev_b32 {v(ga)}, 4, {v(ga)}')
            b(f's_lshl_b32 {s(S_T0)}, {s(S_W)}, 10')
            b(f's_add_u32 {s(S_T0)}, {s(S_T0)}, {R0}')
            b(f'v_add_u32 {v(ga)}, {s(S_T0)}, {v(ga)}')
        acc = V_ACC1
        sv = b.period
        b.period = 0
        hooks = hooks3 if hooks3 is not None else self.slab3_hooks()
        for K in range(32):
            wf = V_WF + 4 * (K & 3)
            if K == 0:
                for k2 in range(3):
                    b(f'ds_read_b128 {v(V_WF + 4 * k2, 4)}, {v(ga)} offset:{32 * k2}')
            if K + 3 < 32:
                b(f'ds_read_b128 {v(V_WF + 4 * ((K + 3) & 3), 4)}, {v(ga)} offset:{32 * (K + 3)}')
            b(f'v_mfma_f32_32x32x16_bf16 {v(acc, 16)}, {v(wf, 4)}, {a(A_X + 4 * K, 4)}, {"0" if K == 0 else v(acc, 16)}')
            for fn in hooks.get(K, []):
                fn(b, 1 if K + 3 < 32 else 0)
            b.pop(1)
        b.period = sv
        t = V_TMP
        b(f'v_mul_f32 {v(t)}, {hex(f2u(-LOG2E))}, {v(acc)}')
        b(f'v_exp_f32 {v(t)}, {v(t)}')
        b(f'v_add_f32 {v(t)}, 1.0, {v(t)}')
        b(f'v_rcp_f32 {v(t)}, {v(t)}')
        with b.atomic():
            b(f'v_and_b32 {v(t + 1)}, 31, {v(V_LANE)}')
            b(f'v_lshlrev_b32 {v(t + 1)}, 2, {v(t + 1)}')
            b(f's_lshl_b32 {s(S_T0)}, {s(S_TB)}, 7')
            b(f's_add_u32 {s(S_T0)}, {s(S_T0)}, {WS_GATE}')
            b(f'buffer_store_dword {v(t)}, {v(t + 1)}, {s(SRD_WS, 4)}, {s(S_T0)} offen sc1', tag='p1')

    def pre_epi3(self, b):
        if OPT.get('aplan', 1) == 2:
            b.add(a_chunk_items(1, 'f1'))
            b.add(a_chunk_items(2, 'f2'))

    def a_tail(self, b):
        b.flush()
        self.flag_store(b, WS_FP1, 'p1')

    def role_AB(self, role):
        b = St(self, 'ROLE' + role)
        b.label('L_role' + role)
        b.add(self.post_l1(b, role))
        orient = 'N' if role == 'A' else 'T'
        if OPT.get('w3z', 0):
            b.period = 9
            self.z2_epilogue(b, mid=lambda: self.w3_items(b))
            self.pre_slab(b, 'w2')
            self.set_wr(b, R2)
            stamp(b, 16)
            self.main_loop(b, orient, pop_every=1)
        else:
            b.period = 14
            self.z2_epilogue(b)
            self.pre_slab(b, 'w2')
            self.set_wr(b, R2)
            stamp(b, 16)
            self.w3_items(b)
            self.s3flag = (OPT.get('s3st') == 2)
            self.main_loop(b, orient, pop_every=1)
            self.s3flag = False
        stamp(b, 17)
        b.flush()
        b('s_barrier')
        self.stats_issue(b)
        b.period = 12
        if role == 'A':
            self.k_epilogue(b)
        else:
            self.set_out_addr(b, 'q', [f's_sub_u32 {s(S_T4)}, {s(S_CG)}, 8'])
            self.t_epilogue(b, 'phi', V_ACC1)
        stamp(b, 18)
        if OPT.get('aearly', 0):
            b.period = 7
            self.z2_norm(b, after_check=lambda: self.mid_a(b))
        else:
            self.z2_norm(b)
            self.mid_a(b)
        if OPT.get('aplan', 1) != 2:
            b.add(a_chunk_items(2, 'f2'))
        self.mid_b(b)
        self.pre_slab(b, 'w3')
        self.set_wr(b, R0)
        stamp(b, 20)
        hooks = self.slab3_hooks({OPT.get('kz', 12): lambda bb, y: self.flag_store(bb, WS_FZ2, 'z2n')})
        self.s3flag = (OPT.get('s3st') == 3)
        self.main_loop(b, orient, hooks)
        self.s3flag = False
        stamp(b, 21)
        b.period = 8
        late = OPT.get('s1late', 1)
        if not late:
            s1_issue(self, b)
        self.pre_epi3(b)
        if role == 'A':
            self.v_epilogue(b)
            if late:
                s1_issue(self, b)
            self.kv_finish(b)
        else:
            self.set_out_addr(b, 'z1', [f's_sub_u32 {s(S_T4)}, {s(S_CG)}, 8'])
            self.t_epilogue(b, 'gelu', V_ACC1, mid=(lambda: s1_issue(self, b)) if late else None, midg=2)
        stamp(b, 23)
        self.a_tail(b)
        b('s_branch L_p1_done')
        return b.b

    def p3_slab2_hooks(self):
        h = {}

        def add(K, fn):
            h.setdefault(K, []).append(fn)
        add(0, lambda b, y: (b.add(a_chunk_items(1, 'g1')), b.add(a_chunk_items(2, 'g2'))))
        k0, k1, k2 = OPT.get('m0', 12), OPT.get('m1', 26), OPT.get('m2', 99)
        add(k0, lambda b, y: self.mv_chunk(b, 0, 'f0'))
        add(k0 + 1, lambda b, y: (b(f's_waitcnt lgkmcnt({y})'), b.add(a_chunk_items(3, 'f0'))))
        if k1 < 32:
            add(k1, lambda b, y: self.mv_chunk(b, 1, 'g1'))
        if k2 < 32:
            add(k2, lambda b, y: self.mv_chunk(b, 2, 'g2'))
        return h

    def p3_late_moves(self, b):
        if OPT.get('m1', 26) >= 32:
            self.mv_chunk(b, 1, 'g1')
        if OPT.get('m2', 99) >= 32:
            self.mv_chunk(b, 2, 'g2')

    def p3_slab3_hooks(self, extra=None):
        h = {}

        def add(K, fn):
            h.setdefault(K, []).append(fn)
        add(14, lambda b, y: self.mv_chunk(b, 4, 'f0'))
        add(15, lambda b, y: (b(f's_waitcnt lgkmcnt({y})'), b.add(a_chunk_items(7, 'f0'))))
        add(22, lambda b, y: self.mv_chunk(b, 5, 'g1'))
        add(30, lambda b, y: self.mv_chunk(b, 6, 'g2'))
        for K, fn in (extra or {}).items():
            add(K, fn)
        return h

    def p3_mid(self, b):
        self.mv_chunk(b, 3, 'f0')
        b.wait_lds()
        b.add(a_chunk_items(4, 'f0'))
        b.add(a_chunk_items(5, 'g1'))
        b.add(a_chunk_items(6, 'g2'))

    def p3_tail(self, b):
        b.flush()
        self.flag_store(b, WS_FP1, 'p1')
        self.mv_chunk(b, 7, 'f0')
        b.wait_lds()

    def role3(self, role):
        b = St(self, 'ROLE' + role)
        b.label('L_role' + role)
        z2 = role in 'AB'
        orient = 'N' if role == 'A' else 'T'
        b.add(self.post_l1(b, role))
        if z2:
            b.period = 14
            self.z2_epilogue(b)
        else:
            b.period = 8
            self.set_out_addr(b, 'q', [f's_sub_u32 {s(S_T4)}, {s(S_CG)}, 8'])
            self.t_epilogue(b, 'phi', V_ACC0)
        self.pre_slab(b, 'w2')
        self.set_wr(b, R2)
        b.flush()
        stamp(b, 16)
        self.main_loop(b, orient, self.p3_slab2_hooks())
        stamp(b, 17)
        b.flush()
        b('s_barrier')
        if z2:
            self.stats_issue(b)
        if role != 'D':
            self.w3_items(b, R2)
        else:
            srd(b, SRD_T, P_GW, 1024)
            b(f's_lshl_b32 {s(S_T0)}, {s(S_W)}, 10')
            b(f's_add_u32 m0, {s(S_T0)}, {R2}')
            b(f's_lshl_b32 {s(S_T0)}, {s(S_ROT)}, 7')
            b(f'v_add_u32 {v(V_T0)}, {s(S_T0)}, {v(V_L16)}')
            b(f'v_and_b32 {v(V_T0)}, 1023, {v(V_T0)}')
            b(f'buffer_load_dwordx4 {v(V_T0)}, {s(SRD_T, 4)}, 0 offen lds', tag='gw')
        b.period = OPT.get('p3p', 12)
        if role == 'A':
            self.k_epilogue(b)
        elif role == 'B':
            self.set_out_addr(b, 'q', [f's_sub_u32 {s(S_T4)}, {s(S_CG)}, 8'])
            self.t_epilogue(b, 'phi', V_ACC1)
        elif role == 'C':
            self.set_out_addr(b, 'z1', [f's_lshl_b32 {s(S_T4)}, {s(S_CG)}, 1', f's_sub_u32 {s(S_T4)}, {s(S_T4)}, 19'])
            self.t_epilogue(b, 'gelu', V_ACC1)
        else:
            self.set_out_addr(b, 'z1', [f's_sub_u32 {s(S_T4)}, {s(S_CG)}, 5'])
            self.t_epilogue(b, 'gelu', V_ACC1)
        stamp(b, 18)
        self.p3_late_moves(b)
        if z2:
            self.z2_norm(b)
        self.p3_mid(b)
        if role != 'D':
            self.pre_slab(b, 'w3')
            stamp(b, 20)
            extra = {OPT.get('kz', 12): lambda bb, y: self.flag_store(bb, WS_FZ2, 'z2n')} if z2 else None
            self.main_loop(b, orient, self.p3_slab3_hooks(extra))
            stamp(b, 21)
            b.period = 8
            if role == 'A':
                self.v_epilogue(b)
                s1_issue(self, b)
                self.kv_finish(b, R2)
            elif role == 'B':
                self.set_out_addr(b, 'z1', [f's_sub_u32 {s(S_T4)}, {s(S_CG)}, 8'])
                self.t_epilogue(b, 'gelu', V_ACC1, mid=lambda: s1_issue(self, b), midg=2)
            else:
                self.set_out_addr(b, 'z1', [f's_lshl_b32 {s(S_T4)}, {s(S_CG)}, 1', f's_sub_u32 {s(S_T4)}, {s(S_T4)}, 18'])
                self.t_epilogue(b, 'gelu', V_ACC1, mid=lambda: s1_issue(self, b), midg=2)
        else:
            self.g_pass(b, R2, self.p3_slab3_hooks())
            s1_issue(self, b)
        stamp(b, 23)
        self.p3_tail(b)
        b('s_branch L_p1_done')
        return b.b

    def role_CD(self, role):
        b = St(self, 'ROLE' + role)
        b.label('L_role' + role)
        b.add(self.post_l1(b, role))
        b.period = 8
        self.set_out_addr(b, 'q', [f's_sub_u32 {s(S_T4)}, {s(S_CG)}, 8'])
        self.t_epilogue(b, 'phi', V_ACC0)
        self.pre_slab(b, 'w2')
        self.set_wr(b, R2)
        if role == 'C':
            self.w3_items(b)
        else:
            b.flush()
            srd(b, SRD_T, P_GW, 1024)
            b(f's_lshl_b32 {s(S_T0)}, {s(S_W)}, 10')
            b(f's_add_u32 m0, {s(S_T0)}, {R0}')
            b(f's_lshl_b32 {s(S_T0)}, {s(S_ROT)}, 7')
            b(f'v_add_u32 {v(V_T0)}, {s(S_T0)}, {v(V_L16)}')
            b(f'v_and_b32 {v(V_T0)}, 1023, {v(V_T0)}')
            b(f'buffer_load_dwordx4 {v(V_T0)}, {s(SRD_T, 4)}, 0 offen lds', tag='gw')
            if OPT.get('c0early', 1) == 2:
                b.add(a_chunk_items(0, 'f0'))
        self.main_loop(b, 'T', pop_every=1)
        b.flush()
        b('s_barrier')
        self.mid_a(b)
        if OPT.get('aplan', 1) != 2:
            b.add(a_chunk_items(2, 'f2'))
        b.period = 12
        if role == 'C':
            self.set_out_addr(b, 'z1', [f's_lshl_b32 {s(S_T4)}, {s(S_CG)}, 1', f's_sub_u32 {s(S_T4)}, {s(S_T4)}, 19'])
            self.t_epilogue(b, 'gelu', V_ACC1)
            self.mid_b(b)
            self.pre_slab(b, 'w3')
            self.set_wr(b, R0)
            self.main_loop(b, 'T', self.slab3_hooks())
            b.period = 8
            late = OPT.get('s1late', 1)
            if not late:
                s1_issue(self, b)
            self.pre_epi3(b)
            self.set_out_addr(b, 'z1', [f's_lshl_b32 {s(S_T4)}, {s(S_CG)}, 1', f's_sub_u32 {s(S_T4)}, {s(S_T4)}, 18'])
            self.t_epilogue(b, 'gelu', V_ACC1, mid=(lambda: s1_issue(self, b)) if late else None, midg=2)
        else:
            self.set_out_addr(b, 'z1', [f's_sub_u32 {s(S_T4)}, {s(S_CG)}, 5'])
            self.t_epilogue(b, 'gelu', V_ACC1)
            self.mid_b(b)
            self.g_pass(b)
            s1_issue(self, b)
            self.pre_epi3(b)
        self.a_tail(b)
        b('s_branch L_p1_done')
        return b.b

    def build(self):
        P = self.prologue()
        LL = self.slab1(True)
        LP = self.slab1(False) if not OPT.get('sym', 1) else None
        if OPT.get('aplan', 1) == 3:
            A, B, C, D = [self.role3(r) for r in 'ABCD']
        else:
            A = self.role_AB('A')
            B = self.role_AB('B')
            C = self.role_CD('C')
            D = self.role_CD('D')
        E1 = St(self, 'E1')
        E1.label('L_p1_done')
        stamp(E1, 4)
        from phase23 import emit_phase23
        P2, PH, PL, P3b = emit_phase23(self)
        END = self.blk('END')
        END.label('L_END')
        END('s_endpgm')
        P3 = Block('PRO_w3')
        P3.ins = [i for i in P.ins if not i.meta.get('loader')]
        rests = [[P2, PH, P3b], [P2, PL, P3b]]
        paths = [[P, LL, R, E1.b] + rest + [END] for R in (A, B, C, D) for rest in rests]
        if LP is not None:
            paths += [[P3, LP, R, E1.b] + rest + [END] for R in (A, B, C, D) for rest in rests]
        finalize(self.blocks, paths)

    def text(self):
        out = []
        for b in self.blocks:
            out.append(f'; ---- {b.name}')
            out.append(render(b))
        return '\n'.join(out) + '\n' + '\n'.join(self.slow) + '\n'


HEADER = '''; Fused gated-mix kernel: linear attention + gMLP, single persistent launch (256 workgroups x 256 threads)
; @launch grid=(256,1,1) block=(256,1,1) lds=163840
.amdgcn_target "amdgcn-amd-amdhsa--gfx950"
.text
.globl {k}
.p2align 8
.type {k},@function
{k}:
'''
FOOTER = '''
L_code_end:
    s_endpgm
.section .rodata,"a"
.p2align 6
.amdhsa_kernel {k}
  .amdhsa_next_free_vgpr 512
  .amdhsa_next_free_sgpr 102
  .amdhsa_accum_offset 256
  .amdhsa_group_segment_fixed_size 0
  .amdhsa_kernarg_size 96
  .amdhsa_user_sgpr_count 2
  .amdhsa_user_sgpr_kernarg_segment_ptr 1
  .amdhsa_system_sgpr_workgroup_id_x 1
  .amdhsa_float_denorm_mode_32 3
.end_amdhsa_kernel
'''


def generate(**opt):
    OPT.update(opt)
    g = Gen()
    g.build()
    return HEADER.format(k=KNAME) + g.text() + FOOTER.format(k=KNAME)


if __name__ == '__main__':
    opt = {}
    for arg in sys.argv[2:]:
        k, val = arg.split('=')
        opt[k] = int(val) if val.lstrip('-').isdigit() else val
    import gen as _g
    txt = _g.generate(**opt)
    open(sys.argv[1], 'w').write(txt)
```

```python
from asmlib import *
import gen as G
from gen import (v, a, s, f2u, LOG2E, OOB, stamp, srd, tr_addr, St,
                 WS_FZ2, WS_FP1, WS_FY, WS_FKV, WS_GATE, WS_KVF, WS_KVP, WS_Z2N, WS_Z1F, WS_PQ, WS_Y, WS_SIZE, WS_EPOCH,
                 SRD_X, SRD_W, SRD_WS, SRD_T, SRD_U, S_W, S_WG, S_I, S_J, S_N, S_T0, S_T1, S_T2, S_T3, S_T4, S_T5, S_T6, S_T7,
                 S_ROT, S_RB, S_CG, S_Q0, S_Q1,
                 P_BSP, P_WO, P_WOUT, P_OUT, V_LANE, V_L16, V_L8, V_T0, V_POLL)

S_FB0, S_NBLK = 70, 71
S_BO = 72
S_PART = 73
S_U = 74
S_YO, S_ZO = 75, 76
S_WOB = 77
S_KVO = 78
S_BB = 80
S_FBN = 88
SRD_KV = 44

V_PA = 8
V_PR = 14
V_XW = 16
V_XR = 20
V_BS = 21
V_G0 = 22
V_NG = 26
V_BNG = 27
V_KL = 32
ACC = [64, 96]
RING = 128
D = 12
V_GS = 176
V_X = 192
V_Z1 = 224
V_KS = 236
V_WO = 240
A_PQ, A_KV, A_Y = 0, 64, 96
KVSCR = 38912
PRIV = 40960
XOFF = 22528


def flag_addr(b, dst, n, tmp):
    b(f'v_and_b32 {v(tmp)}, 3, {v(n)}')
    b(f'v_lshrrev_b32 {v(n)}, 2, {v(n)}')
    b(f'v_lshlrev_b32 {v(n)}, 4, {v(n)}')
    b(f'v_add_lshl_u32 {v(dst)}, {v(n)}, {v(tmp)}, 2')


def s1_issue(g, b):
    t0, t1 = V_T0, V_T0 + 1
    with b.atomic():
        b(f's_mul_i32 {s(S_FB0)}, {s(S_J)}, 3')
        b(f's_min_u32 {s(S_FB0)}, {s(S_FB0)}, 20')
        b(f's_cmp_lt_u32 {s(S_J)}, 6')
        b(f's_cselect_b32 {s(S_NBLK)}, 3, 2')
        b(f's_add_u32 {s(S_T2)}, {s(S_FB0)}, {s(S_NBLK)}')
        b(f's_sub_u32 {s(S_T3)}, {s(S_T2)}, 1')
        if G.OPT.get('nbrot', 0):
            b(f's_lshr_b32 {s(S_T0)}, {s(S_WG)}, {6 if G.OPT.get("map", 0) else 5}')
            b(f's_mul_i32 {s(S_T1)}, {s(S_T0)}, 11')
            b(f's_lshr_b32 {s(S_T1)}, {s(S_T1)}, 5')
            b(f's_mul_i32 {s(S_T1)}, {s(S_T1)}, 3')
            b(f's_sub_u32 {s(S_T1)}, {s(S_T0)}, {s(S_T1)}')
            b(f's_and_b32 {s(S_T0)}, {s(S_T0)}, 1')
            b(f's_cmp_eq_u32 {s(S_NBLK)}, 3')
            b(f's_cselect_b32 {s(S_T0)}, {s(S_T1)}, {s(S_T0)}')
        else:
            b(f's_mov_b32 {s(S_T0)}, 0')
        for nb in range(3):
            b(f's_add_u32 {s(S_FBN + nb)}, {s(S_FB0)}, {s(S_T0)}')
            if nb:
                b(f's_add_u32 {s(S_FBN + nb)}, {s(S_FBN + nb)}, {nb}')
            b(f's_cmp_ge_u32 {s(S_FBN + nb)}, {s(S_T2)}')
            b(f's_cselect_b32 {s(S_T1)}, {s(S_NBLK)}, 0')
            b(f's_sub_u32 {s(S_FBN + nb)}, {s(S_FBN + nb)}, {s(S_T1)}')
        b(f's_lshr_b32 {s(S_T0)}, {s(S_FB0)}, 1')
        b(f's_lshr_b32 {s(S_T1)}, {s(S_T3)}, 1')
        b(f's_sub_u32 {s(S_T1)}, {s(S_T1)}, {s(S_T0)}')
        b(f'v_bfe_u32 {v(t0)}, {v(V_LANE)}, 3, 2')
        b(f'v_bfe_u32 {v(t1)}, {v(V_LANE)}, 2, 1')
        b(f'v_mul_u32_u24 {v(t1)}, {s(S_T1)}, {v(t1)}')
        b(f'v_lshl_add_u32 {v(t0)}, {v(t0)}, 4, {v(t1)}')
        b(f's_lshl_b32 {s(S_T2)}, {s(S_W)}, 6')
        b(f's_add_u32 {s(S_T2)}, {s(S_T2)}, {s(S_T0)}')
        b(f'v_add_u32 {v(t0)}, {s(S_T2)}, {v(t0)}')
        b(f'v_and_b32 {v(t1)}, 3, {v(V_LANE)}')
        b(f'v_lshl_add_u32 {v(t0)}, {v(t0)}, 2, {v(t1)}')
        flag_addr(b, V_PA, t0, t1)
        b(f's_mov_b32 {s(S_T7)}, {WS_FZ2}')
        b(f'buffer_load_dword {v(V_PR)}, {v(V_PA)}, {s(SRD_WS, 4)}, {s(S_T7)} offen sc1')


def emit_phase23(g):
    t0, t1, t2 = V_T0, V_T0 + 1, V_T0 + 2
    b = St(g, 'P2')
    b(f's_mov_b32 {s(S_T7)}, {WS_FZ2}')
    if not G.OPT.get('x_nos1'):
        g.poll(b, V_PA, s(S_T7), V_PR, first_issued=True, mark=11)
    stamp(b, 5)
    b(f's_lshl_b32 {s(S_T0)}, {s(S_W)}, 15')
    b(f's_add_u32 {s(S_BB)}, {s(S_T0)}, {WS_Z2N}')

    def bload(b, gi):
        nb, n = gi >> 5, gi & 31
        if n % 4 == 0:
            b(f's_add_u32 {s(S_BO)}, {s(G.S_ROT2)}, {n // 4}')
            b(f's_and_b32 {s(S_BO)}, {s(S_BO)}, 7')
            b(f's_lshl_b32 {s(S_BO)}, {s(S_BO)}, 12')
            b(f's_add_u32 {s(S_BO)}, {s(S_BO)}, {s(S_BB)}')
            b(f's_lshl_b32 {s(S_T4)}, {s(S_FBN + nb)}, 17')
            b(f's_add_u32 {s(S_BO)}, {s(S_BO)}, {s(S_T4)}')
        b(f'buffer_load_dwordx4 {v(RING + 4 * (gi % D), 4)}, {v(V_L16)}, {s(SRD_WS, 4)}, {s(S_BO)} offen offset:{1024 * (n & 3)} sc1')

    if G.OPT.get('aplan', 1) == 2:
        g.mv_chunk(b, 0, 'f0')
        b.wait_lds()
        b.add(G.a_chunk_items(3, 'f0'))
    for gi in range(D):
        bload(b, gi)
        if gi % 2 == 1:
            b.pop(2)
    b.flush()
    b(f'v_lshlrev_b32 {v(V_BS)}, 16, {v(G.V_BSP)}')
    b(f's_lshr_b32 {s(S_T0)}, {s(S_I)}, 1')
    b(f's_lshl_b32 {s(S_T0)}, {s(S_T0)}, 6')
    b(f'v_add_u32 {v(t0)}, {s(S_T0)}, {v(V_LANE)}')
    flag_addr(b, V_PA + 1, t0, t1)
    b(f's_lshl_b32 {s(S_T0)}, {s(S_W)}, 11')
    b(f'v_add_u32 {v(t0)}, {s(S_T0)}, {v(V_L16)}')
    for d in range(4):
        b(f'v_add_u32 {v(V_XW + d)}, {PRIV * d + XOFF}, {v(t0)}')
    b(f's_mul_i32 {s(S_T0)}, {s(S_W)}, {PRIV}')
    b(f's_add_u32 {s(S_T0)}, {s(S_T0)}, {XOFF}')
    b(f'v_add_u32 {v(V_XR)}, {s(S_T0)}, {v(V_L16)}')
    b(f'v_and_b32 {v(t0)}, 31, {v(V_LANE)}')
    b(f'v_lshlrev_b32 {v(V_PA + 5)}, 2, {v(t0)}')
    b(f's_and_b32 {s(S_T0)}, {s(S_W)}, 1')
    b(f's_lshl1_add_u32 {s(S_T0)}, {s(S_I)}, {s(S_T0)}')
    b(f's_mul_i32 {s(S_T0)}, {s(S_T0)}, 45056')
    b(f's_lshr_b32 {s(S_T1)}, {s(S_W)}, 1')
    b(f's_lshl_b32 {s(S_T1)}, {s(S_T1)}, 10')
    b(f's_add_u32 {s(S_T0)}, {s(S_T0)}, {s(S_T1)}')
    b(f's_add_u32 {s(S_ZO)}, {s(S_T0)}, {WS_Z1F}')
    b(f's_add_u32 {s(S_YO)}, {s(S_T0)}, {WS_Y}')
    b(f's_cmp_ge_u32 {s(S_J)}, 6')
    b('s_cbranch_scc1 L_P2L')
    P2 = b.b

    def xw(nb, k):
        d, q = k >> 1, k & 1
        r = ACC[nb & 1] + 16 * (d & 1) + 8 * (d >> 1)
        return f'ds_write_b128 {v(V_XW + d)}, {v(r + 4 * q, 4)} offset:{8192 * (nb & 1) + 1024 * q}'

    def xr(nb, k):
        src, q = k >> 1, k & 1
        return f'ds_read_b128 {v(V_X + 8 * src + 4 * q, 4)}, {v(V_XR)} offset:{8192 * (nb & 1) + 2048 * src + 1024 * q}'

    def xsum(dst):
        o = []
        for k in range(8):
            o.append(f'v_add_f32 {v(V_X + k)}, {v(V_X + k)}, {v(V_X + 8 + k)}')
        for k in range(8):
            o.append(f'v_add_f32 {v(V_X + 16 + k)}, {v(V_X + 16 + k)}, {v(V_X + 24 + k)}')
        for k in range(8):
            o.append(f'v_add_f32 {v(dst + k)}, {v(V_X + k)}, {v(V_X + 16 + k)}')
        return o

    def ymath(nb, gs):
        o = []
        z = V_Z1 + 4 * nb
        tmp = RING
        for k in range(8):
            o.append(f'v_fma_f32 {v(gs + k)}, {v(gs + k)}, {v(V_NG)}, {v(V_BNG)}')
        for k in range(4):
            o.append(f'v_lshlrev_b32 {v(tmp + 2 * k)}, 16, {v(z + k)}')
            o.append(f'v_and_b32 {v(tmp + 2 * k + 1)}, 0xffff0000, {v(z + k)}')
        for k in range(8):
            o.append(f'v_mul_f32 {v(gs + k)}, {v(gs + k)}, {v(tmp + k)}')
        for k in range(4):
            o.append(f'v_cvt_pk_bf16_f32 {v(z + k)}, {v(gs + 2 * k)}, {v(gs + 2 * k + 1)}')
        return o

    def ystore(b, nb):
        b(f's_lshl_b32 {s(S_T0)}, {s(S_FBN + nb)}, 11')
        b(f's_add_u32 {s(S_T0)}, {s(S_T0)}, {s(S_YO)}')
        b(f'buffer_store_dwordx4 {v(V_Z1 + 4 * nb, 4)}, {v(V_L16)}, {s(SRD_WS, 4)}, {s(S_T0)} offen sc1', tag='y')

    def tail_loads(nblk):
        it = []
        for z in range(nblk):
            it.append([f's_lshl_b32 {s(S_T0)}, {s(S_FBN + z)}, 11',
                       f's_add_u32 {s(S_T0)}, {s(S_T0)}, {s(S_ZO)}',
                       f'buffer_load_dwordx4 {v(V_Z1 + 4 * z, 4)}, {v(V_L16)}, {s(SRD_WS, 4)}, {s(S_T0)} offen sc1'])
        it.append([f's_lshl_b32 {s(S_T0)}, {s(S_I)}, 8',
                   f's_add_u32 {s(S_T0)}, {s(S_T0)}, {WS_GATE}',
                   f'buffer_load_dword {v(V_G0)}, {v(V_PA + 5)}, {s(SRD_WS, 4)}, {s(S_T0)} offen sc1',
                   f'buffer_load_dword {v(V_G0 + 1)}, {v(V_PA + 5)}, {s(SRD_WS, 4)}, {s(S_T0)} offen offset:128 sc1'])
        for hd in range(8):
            for tb in range(2):
                l = []
                if hd % 4 == 0:
                    l = [f's_lshl1_add_u32 {s(S_Q0 + tb)}, {s(S_I)}, {tb}',
                         f's_lshl_b32 {s(S_Q0 + tb)}, {s(S_Q0 + tb)}, 15',
                         f's_lshl_b32 {s(S_T1)}, {s(S_W)}, 13',
                         f's_add_u32 {s(S_Q0 + tb)}, {s(S_Q0 + tb)}, {s(S_T1)}',
                         f's_add_u32 {s(S_Q0 + tb)}, {s(S_Q0 + tb)}, {WS_PQ + 1024 * hd}']
                l.append(f'buffer_load_dwordx4 {a(A_PQ + 4 * (2 * hd + tb), 4)}, {v(V_L16)}, {s(SRD_WS, 4)}, {s(S_Q0 + tb)} offen offset:{1024 * (hd & 3)} sc1')
                it.append(l)
        return it

    def gate_setup():
        return [[f's_and_b32 {s(S_T0)}, {s(S_W)}, 1',
                 f's_cmp_eq_u32 {s(S_T0)}, 0',
                 f's_cselect_b64 vcc, -1, 0',
                 f'v_cndmask_b32 {v(V_NG)}, {v(V_G0 + 1)}, {v(V_G0)}, vcc'],
                f'v_sub_f32 {v(V_NG)}, 1.0, {v(V_NG)}',
                f'v_mul_f32 {v(V_BNG)}, {v(V_BS)}, {v(V_NG)}']

    def emit1(b, x):
        if isinstance(x, list):
            for y in x:
                emit1(b, y)
        elif isinstance(x, tuple):
            b(x[1], tag=x[0])
        else:
            b(x)

    def main_stream(light):
        b = St(g, 'P2L' if light else 'P2H')
        nblk = 2 if light else 3
        NG = 32 * nblk
        if light:
            b.label('L_P2L')
            b(f's_lshl_b32 {s(S_U)}, {s(S_I)}, 1')
            b(f's_and_b32 {s(S_T0)}, {s(S_J)}, 1')
            b(f's_add_u32 {s(S_U)}, {s(S_U)}, {s(S_T0)}')
            b(f's_lshr_b32 {s(S_T0)}, {s(S_U)}, 3')
            b(f'v_lshrrev_b32 {v(t0)}, 2, {v(V_LANE)}')
            b(f'v_lshlrev_b32 {v(t0)}, 4, {v(t0)}')
            b(f'v_add_u32 {v(t0)}, {s(S_T0)}, {v(t0)}')
            b(f'v_and_b32 {v(t1)}, 3, {v(V_LANE)}')
            b(f'v_lshl_add_u32 {v(t0)}, {v(t0)}, 2, {v(t1)}')
            flag_addr(b, V_PA + 2, t0, t1)
            b(f's_mov_b32 {s(SRD_KV)}, {s(SRD_WS)}')
            b(f's_mov_b32 {s(SRD_KV + 1)}, {s(SRD_WS + 1)}')
            b(f's_cmp_lt_u32 {s(S_W)}, 2')
            b(f's_cselect_b32 {s(SRD_KV + 2)}, {hex(WS_SIZE - (G.OPT.get('wsoff', 0) << 20))}, 0')
            b(f's_mov_b32 {s(SRD_KV + 3)}, 0x20000')
            b(f's_lshl_b32 {s(S_KVO)}, {s(S_U)}, 14')
            b(f's_and_b32 {s(S_T0)}, {s(S_W)}, 1')
            b(f's_lshl_b32 {s(S_T0)}, {s(S_T0)}, 13')
            b(f's_add_u32 {s(S_KVO)}, {s(S_KVO)}, {s(S_T0)}')
            b(f's_add_u32 {s(S_KVO)}, {s(S_KVO)}, {WS_KVP}')
        fill = []
        items = []

        def drain(n):
            k = 0
            while fill and k < n:
                x = fill.pop(0)
                emit1(b, x)
                k += len(x) if isinstance(x, list) else 1

        n0 = b.mark()
        GP = NG - 36
        GT = NG - D
        for gi in range(NG):
            nb, n = gi >> 5, gi & 31
            acc = ACC[nb & 1]
            for tb in range(2):
                c = '0' if n == 0 else v(acc + 16 * tb, 16)
                b(f'v_mfma_f32_32x32x16_bf16 {v(acc + 16 * tb, 16)}, {v(RING + 4 * (gi % D), 4)}, {a(8 * n + 4 * tb, 4)}, {c}')
            if gi + D < NG:
                bload(b, gi + D)
            if G.OPT.get('aplan', 1) == 2:
                mv = {1: 1, 2: 5, 3: 9, 4: 13, 5: 17, 6: 21, 7: 25}
                for c, st in mv.items():
                    if gi == st:
                        g.mv_chunk(b, c, f'f{c % 3}')
                    if gi == st + 1 and c + 3 < 8:
                        b.wait_lds()
                        b.add(G.a_chunk_items(c + 3, f'f{c % 3}'))
            elif G.OPT.get('aplan', 1) == 1:
                if gi == 4:
                    g.mv_chunk(b, 3, 'f0')
                if gi == 5:
                    b.wait_lds()
                    b.add(G.a_chunk_items(6, 'f0'))
                if gi == 10:
                    g.mv_chunk(b, 4, 'f1')
                if gi == 11:
                    b.wait_lds()
                    b.add(G.a_chunk_items(7, 'f1'))
                if gi == 16:
                    g.mv_chunk(b, 5, 'f2')
                if gi == 22:
                    g.mv_chunk(b, 6, 'f0')
                if gi == 26:
                    g.mv_chunk(b, 7, 'f1')
            if gi == 31:
                b.wait_lds()
                b('s_barrier')
            if b.q:
                b.pop(2)
            if gi == GP:
                b(f's_mov_b32 {s(S_T7)}, {WS_FP1}')
                b(f'buffer_load_dword {v(V_PR)}, {v(V_PA + 1)}, {s(SRD_WS, 4)}, {s(S_T7)} offen sc1')
            if light and gi == 20:
                b(f's_mov_b32 {s(S_T7)}, {WS_FP1}')
                b(f'buffer_load_dword {v(V_PR + 1)}, {v(V_PA + 2)}, {s(SRD_WS, 4)}, {s(S_T7)} offen sc1')
            if light and gi == 34:
                b(f's_mov_b32 {s(S_T7)}, {WS_FP1}')
                g.poll(b, V_PA + 2, s(S_T7), V_PR + 1, first_issued=True, mark=13)
                for r in range(8):
                    l = []
                    if r % 4 == 0:
                        l = [f's_add_u32 {s(S_Q0)}, {s(S_KVO)}, {1024 * r}']
                    l.append(f'buffer_load_dwordx4 {v(V_KL + 4 * r, 4)}, {v(V_L16)}, {s(SRD_KV, 4)}, {s(S_Q0)} offen offset:{1024 * (r & 3)} sc1')
                    items.append(l)
            if nb > 0:
                if 2 <= n < 10:
                    b(xw(nb - 1, n - 2))
                if n == 12:
                    b.wait_lds()
                    b('s_barrier')
                if 12 <= n < 20:
                    b(xr(nb - 1, n - 12))
                if n == 21:
                    fill.extend(xsum(V_GS + 8 * (nb - 1)))
            if gi == GT:
                drain(len(fill))
                b(f's_mov_b32 {s(S_T7)}, {WS_FP1}')
                g.poll(b, V_PA + 1, s(S_T7), V_PR, first_issued=True, mark=15)
                items.extend(tail_loads(nblk))
            if light and gi == 52:
                for r in range(0, 8, 2):
                    for k in range(4):
                        fill.append(f'v_add_f32 {v(V_KL + 4 * r + k)}, {v(V_KL + 4 * r + k)}, {v(V_KL + 4 * r + 4 + k)}')
                for k in range(4):
                    fill.append(f'v_add_f32 {v(V_KL + k)}, {v(V_KL + k)}, {v(V_KL + 8 + k)}')
                    fill.append(f'v_add_f32 {v(V_KL + 16 + k)}, {v(V_KL + 16 + k)}, {v(V_KL + 24 + k)}')
                for k in range(4):
                    fill.append(f'v_add_f32 {v(V_KS + k)}, {v(V_KL + k)}, {v(V_KL + 16 + k)}')
            if light and gi == 58:
                drain(len(fill))
                b(f's_mul_i32 {s(S_T0)}, {s(S_W)}, {PRIV}')
                b(f's_add_u32 {s(S_T0)}, {s(S_T0)}, {KVSCR}')
                b(f'v_add_u32 {v(t0)}, {s(S_T0)}, {v(V_L16)}')
                b(f'ds_write_b128 {v(t0)}, {v(V_KS, 4)}')
                b.wait_lds()
                b('s_barrier')
                b(f'v_add_u32 {v(t0)}, {PRIV + KVSCR}, {v(V_L16)}')
                b(f'ds_read_b128 {v(V_KL, 4)}, {v(t0)}')
                for k in range(4):
                    b(f'v_add_f32 {v(V_KS + k)}, {v(V_KS + k)}, {v(V_KL + k)}')
                b(f'v_cvt_pk_bf16_f32 {v(V_KS)}, {v(V_KS)}, {v(V_KS + 1)}')
                b(f'v_cvt_pk_bf16_f32 {v(V_KS + 1)}, {v(V_KS + 2)}, {v(V_KS + 3)}')
                b(f's_cmp_eq_u32 {s(S_W)}, 0')
                b(f's_cselect_b32 {s(SRD_KV + 2)}, {hex(WS_SIZE - (G.OPT.get('wsoff', 0) << 20))}, 0')
                b(f's_lshr_b32 {s(S_T0)}, {s(S_U)}, 1')
                b(f's_lshl_b32 {s(S_T0)}, {s(S_T0)}, 10')
                b(f's_and_b32 {s(S_T1)}, {s(S_U)}, 1')
                b(f's_lshl_b32 {s(S_T1)}, {s(S_T1)}, 3')
                b(f's_add_u32 {s(S_T0)}, {s(S_T0)}, {s(S_T1)}')
                b(f's_add_u32 {s(S_T0)}, {s(S_T0)}, {WS_KVF}')
                b(f'buffer_store_dwordx2 {v(V_KS, 2)}, {v(V_L16)}, {s(SRD_KV, 4)}, {s(S_T0)} offen sc1', tag='kvf')
            for _ in range(2 if gi >= GT else 1):
                if items:
                    emit1(b, items.pop(0))
            drain(6)
            if gi in (7, 23, 31, 47, 63, 79):
                stamp(b, 24 + (7, 23, 31, 47, 63, 79).index(gi))
        while items:
            emit1(b, items.pop(0))
        drain(len(fill))
        b.weave_from(n0, G=5)
        stamp(b, 6)
        G.dstamp(b, 5)
        if light:
            b.wait_vm('kvf')
            b(f's_lshl_b32 {s(S_T0)}, {s(S_U)}, 4')
            b(f's_add_u32 {s(S_T0)}, {s(S_T0)}, {WS_FKV}')
            b(f'v_mov_b32 {v(V_POLL)}, {s(S_N)}')
            b(f'buffer_store_dword {v(V_POLL)}, off, {s(SRD_KV, 4)}, {s(S_T0)} sc1', tag='flag')
        last = nblk - 1
        for k in range(8):
            b(xw(last, k))
        for x in gate_setup():
            emit1(b, x)
        b.wait_lds()
        b('s_barrier')
        for k in range(8):
            b(xr(last, k))
        for nb in range(last):
            for x in ymath(nb, V_GS + 8 * nb):
                emit1(b, x)
            ystore(b, nb)
        for x in xsum(V_GS) + ymath(last, V_GS):
            emit1(b, x)
        ystore(b, last)
        stamp(b, 7)
        if light:
            ep = g.lab('EP')
            b(f's_lshl_b32 {s(S_T0)}, {s(S_I)}, 5')
            b(f's_lshl2_add_u32 {s(S_T0)}, {s(S_J)}, {s(S_T0)}')
            b(f's_add_u32 {s(S_T0)}, {s(S_T0)}, {s(S_W)}')
            b(f's_cmp_lg_u32 {s(S_T0)}, {6 * 4 + 3}')
            b(f's_cbranch_scc1 {ep}_end')
            txt = [f'    v_and_b32 {v(t1)}, 3, {v(V_LANE)}', f'    v_lshrrev_b32 {v(t0)}, 2, {v(V_LANE)}',
                   f'    v_lshlrev_b32 {v(t0)}, 4, {v(t0)}', f'    v_add_lshl_u32 {v(t0)}, {v(t0)}, {v(t1)}, 2']
            for k in range(16):
                txt.append(f'    s_mov_b32 {s(S_T3)}, {WS_FP1 + 1024 * k}')
                txt.append(f'    buffer_load_dword {v(32 + k)}, {v(t0)}, {s(SRD_WS, 4)}, {s(S_T3)} offen sc1')
            txt = [f'    s_mov_b32 {s(G.S_CNT)}, {G.SPIN_MAX}', f'{ep}:'] + txt + ['    s_waitcnt vmcnt(0)']
            for k in range(16):
                txt.append(f'    v_xor_b32 {v(32 + k)}, {s(S_N)}, {v(32 + k)}')
            for k in range(1, 16, 2):
                hi = 32 + k + 1 if k + 1 < 16 else 32 + k
                txt.append(f'    v_or3_b32 {v(32)}, {v(32)}, {v(32 + k)}, {v(hi)}')
            txt += [f'    v_cmp_ne_u32 vcc, 0, {v(32)}', f'    s_cbranch_vccz {ep}_ok',
                    f'    s_sub_u32 {s(G.S_CNT)}, {s(G.S_CNT)}, 1', f'    s_cmp_lg_u32 {s(G.S_CNT)}, 0', f'    s_cbranch_scc1 {ep}',
                    f'{ep}_ok:', f'    v_mov_b32 {v(V_POLL)}, {s(S_N)}',
                    f'    buffer_store_dword {v(V_POLL)}, off, {s(SRD_WS, 4)}, 0 sc1', f'{ep}_end:']
            b.b.raw('\n'.join(txt))
        else:
            b('s_branch L_P3')
        return b.b

    PH = main_stream(False)
    PL = main_stream(True)

    b = St(g, 'P3')
    b.label('L_P3')
    ACC3 = 64
    T = [224, 240]
    b(f'v_bfe_u32 {v(t0)}, {v(V_LANE)}, 2, 1')
    b(f'v_bfe_u32 {v(t1)}, {v(V_LANE)}, 4, 1')
    b(f'v_xor_b32 {v(t0)}, {v(t0)}, {v(t1)}')
    b(f'v_and_b32 {v(t1)}, 3, {v(V_LANE)}')
    b(f'v_lshlrev_b32 {v(t1)}, 4, {v(t1)}')
    b(f'v_lshl_add_u32 {v(t0)}, {v(t0)}, 6, {v(t1)}')
    b(f'v_lshrrev_b32 {v(t1)}, 3, {v(V_LANE)}')
    b(f'v_lshl_add_u32 {v(t0)}, {v(t1)}, 10, {v(t0)}')
    b(f's_lshl_b32 {s(S_T0)}, {s(S_J)}, 7')
    VW = 28
    b(f'v_add_u32 {v(VW)}, {s(S_T0)}, {v(t0)}')
    b(f'v_add_u32 {v(VW + 1)}, 7168, {v(VW)}')
    b(f's_cmp_eq_u32 {s(S_W)}, 0')
    b(f's_cselect_b32 {s(S_T0)}, {hex(OOB)}, 0')
    b(f'v_add_u32 {v(32)}, {s(S_T0)}, {v(VW)}')
    b(f's_mul_i32 {s(S_WOB)}, {s(S_W)}, {176 * 1024}')
    b(f's_sub_u32 {s(S_WOB)}, {s(S_WOB)}, 16384')
    b(f's_mul_i32 {s(S_PART)}, {s(S_W)}, {PRIV}')
    srd(b, SRD_X, P_WO, 512 * 1024)
    srd(b, SRD_U, P_WOUT, 688 * 1024)

    def wo_items(hd):
        return [[f's_add_u32 m0, {s(S_PART)}, {XOFF + 2048 * hd}',
                 f's_lshl_b32 {s(S_Q0)}, {s(S_W)}, 17',
                 f's_add_u32 {s(S_Q0)}, {s(S_Q0)}, {16384 * hd}',
                 (f'wo{hd}', f'buffer_load_dwordx4 {v(VW)}, {s(SRD_X, 4)}, {s(S_Q0)} offen{G.NT(8)} lds')],
                [(f'wo{hd}', f'buffer_load_dwordx4 {v(VW + 1)}, {s(SRD_X, 4)}, {s(S_Q0)} offen offset:1024{G.NT(8)} lds')]]

    def wout_items():
        it = []
        for i in range(22):
            vo = 32 if i < 2 else VW
            it.append([f's_add_u32 m0, {s(S_PART)}, {1024 * i}',
                       f's_add_u32 {s(S_Q0)}, {s(S_WOB)}, {8192 * i}',
                       f's_max_i32 {s(S_Q0)}, {s(S_Q0)}, 0',
                       ('wout', f'buffer_load_dwordx4 {v(vo)}, {s(SRD_U, 4)}, {s(S_Q0)} offen{G.NT(8)} lds')])
        return it

    b(f'v_and_b32 {v(t0)}, 15, {v(V_LANE)}')
    b(f's_lshl_b32 {s(S_T0)}, {s(S_W)}, 4')
    b(f'v_add_u32 {v(t0)}, {s(S_T0)}, {v(t0)}')
    b(f'v_lshlrev_b32 {v(V_PA + 3)}, 4, {v(t0)}')
    b(f's_mov_b32 {s(S_T7)}, {WS_FKV}')
    b(f'buffer_load_dword {v(V_PR)}, {v(V_PA + 3)}, {s(SRD_WS, 4)}, {s(S_T7)} offen sc1')
    for hd in range(4):
        b.add(wo_items(hd))
    b.flush()
    V_TW = 26
    tr_addr(b, V_TW, True)
    b(f'v_add_u32 {v(V_TW)}, {s(S_PART)}, {v(V_TW)}')
    b(f'v_xor_b32 {v(V_TW + 1)}, 64, {v(V_TW)}')
    b.wait_vm('y')
    b(f's_lshl3_add_u32 {s(S_T0)}, {s(S_I)}, {s(S_J)}')
    b(f's_lshl4_add_u32 {s(S_T0)}, {s(S_T0)}, {s(S_W)}')
    b(f's_lshl_b32 {s(S_T0)}, {s(S_T0)}, 2')
    b(f's_add_u32 {s(S_T0)}, {s(S_T0)}, {WS_FY}')
    b(f'v_mov_b32 {v(V_POLL)}, {s(S_N)}')
    b(f'buffer_store_dword {v(V_POLL)}, off, {s(SRD_WS, 4)}, {s(S_T0)} sc1', tag='flag')
    stamp(b, 8)
    g.poll(b, V_PA + 3, s(S_T7), V_PR, first_issued=True, mark=19)
    stamp(b, 14)
    b(f's_lshl_b32 {s(S_T0)}, {s(S_W)}, 13')
    b(f's_add_u32 {s(S_T0)}, {s(S_T0)}, {WS_KVF}')
    for hd in range(8):
        if hd == 4:
            b(f's_add_u32 {s(S_T0)}, {s(S_T0)}, 4096')
        b(f'buffer_load_dwordx4 {a(A_KV + 4 * hd, 4)}, {v(V_L16)}, {s(SRD_WS, 4)}, {s(S_T0)} offen offset:{1024 * (hd & 3)} sc1')
    for hd in range(4, 8):
        b.add(wo_items(hd))
    b.add(wout_items())
    WFR = 48
    OF = [[8, 12], [16, 4]]
    eps = hex(f2u(1e-6))

    def num(hd):
        for tb in range(2):
            b(f'v_mfma_f32_32x32x16_bf16 {v(T[tb], 16)}, {a(A_KV + 4 * hd, 4)}, {a(A_PQ + 4 * (2 * hd + tb), 4)}, 0')

    def wread(hd):
        st = hd & 1
        b.ensure(f'wo{hd}')
        b.wait_vm(f'wo{hd}')
        for db in range(2):
            for t in range(2):
                b(f'ds_read_b64_tr_b16 {v(WFR + 8 * st + 4 * db + 2 * t, 2)}, {v(V_TW + db)} offset:{XOFF + 2048 * hd + 1024 * t}')

    def post(hd, tb):
        n0, dn = (T[tb], T[tb] + 8) if hd % 2 == 0 else (T[tb] + 8, T[tb])
        b(f'v_add_f32 {v(dn)}, {eps}, {v(dn)}')
        b(f'v_rcp_f32 {v(dn)}, {v(dn)}')
        b(f'v_mul_f32 {v(dn)}, {v(dn)}, {v(V_G0 + tb)}')
        for k in range(8):
            b(f'v_mul_f32 {v(n0 + k)}, {v(n0 + k)}, {v(dn)}')
        of = OF[hd & 1][tb]
        for k in range(4):
            b(f'v_cvt_pk_bf16_f32 {v(of + k)}, {v(n0 + 2 * k)}, {v(n0 + 2 * k + 1)}')

    def outm(hd):
        st = hd & 1
        for tb in range(2):
            for db in range(2):
                acc = ACC3 + 16 * (2 * tb + db)
                c = '0' if hd == 0 else v(acc, 16)
                b(f'v_mfma_f32_32x32x16_bf16 {v(acc, 16)}, {v(WFR + 8 * st + 4 * db, 4)}, {v(OF[st][tb], 4)}, {c}')

    S_Y0, S_Y1 = S_KVO, S_WOB + 4

    def y_items():
        it = []
        for n in range(11):
            for tb in range(2):
                l = []
                sy = (S_KVO, 81)[tb]
                if n % 4 == 0:
                    l = [f's_lshl1_add_u32 {s(sy)}, {s(S_I)}, {tb}',
                         f's_mul_i32 {s(sy)}, {s(sy)}, 45056',
                         f's_mul_i32 {s(S_Q1)}, {s(S_W)}, {11 * 1024}',
                         f's_add_u32 {s(sy)}, {s(sy)}, {s(S_Q1)}',
                         f's_add_u32 {s(sy)}, {s(sy)}, {WS_Y + 1024 * n}']
                l.append(f'buffer_load_dwordx4 {a(A_Y + 8 * n + 4 * tb, 4)}, {v(V_L16)}, {s(SRD_WS, 4)}, {s(sy)} offen offset:{1024 * (n & 3)} sc1')
                it.append(l)
        return it

    b.period = G.OPT.get('abp', 8)
    n0 = b.mark()
    for hd in range(8):
        num(hd)
        wread(hd)
        if hd > 0:
            outm(hd - 1)
        post(hd, 0)
        post(hd, 1)
        if hd == G.OPT.get('s3i', 2):
            with b.atomic():
                b(f'v_and_b32 {v(t1)}, 31, {v(V_LANE)}')
                b(f's_lshl_b32 {s(S_T0)}, {s(S_I)}, 5')
                b(f'v_add_u32 {v(t1)}, {s(S_T0)}, {v(t1)}')
                flag_addr(b, 20, t1, t0)
                b(f's_mov_b32 {s(S_T7)}, {WS_FY}')
                b(f'buffer_load_dword {v(21)}, {v(20)}, {s(SRD_WS, 4)}, {s(S_T7)} offen sc1')
        if hd == G.OPT.get('s3c', 5):
            g.poll(b, 20, s(S_T7), 21, first_issued=True, mark=22)
            stamp(b, 10)
            b.add(y_items())
    outm(7)
    b.flush()
    b.weave_from(n0, G=6)
    b.period = 0
    stamp(b, 9)
    G.dstamp(b, 6)
    b.wait_vm('wout')

    def woutread(n):
        st = n & 1
        for db in range(2):
            for t in range(2):
                b(f'ds_read_b64_tr_b16 {v(WFR + 8 * st + 4 * db + 2 * t, 2)}, {v(V_TW + db)} offset:{2048 * n + 1024 * t}')
    n0 = b.mark()
    woutread(0)
    for n in range(11):
        if n + 1 < 11:
            woutread(n + 1)
        st = n & 1
        for tb in range(2):
            for db in range(2):
                acc = ACC3 + 16 * (2 * tb + db)
                b(f'v_mfma_f32_32x32x16_bf16 {v(acc, 16)}, {v(WFR + 8 * st + 4 * db, 4)}, {a(A_Y + 8 * n + 4 * tb, 4)}, {v(acc, 16)}')
    b.weave_from(n0, G=5)
    b.wait_lds()
    b('s_barrier')
    b(f's_lshl_b32 {s(S_T0)}, {s(S_W)}, 14')
    b(f'v_add_u32 {v(t0)}, {s(S_T0)}, {v(V_L16)}')
    for blk in range(4):
        for j in range(4):
            b(f'ds_write_b128 {v(t0)}, {v(ACC3 + 16 * blk + 4 * j, 4)} offset:{4096 * blk + 1024 * j}')
    srd(b, SRD_T, P_OUT, 2048 * 1024)
    b(f'v_and_b32 {v(t0 + 3)}, 31, {v(V_LANE)}')
    b(f'v_lshlrev_b32 {v(t0 + 3)}, 10, {v(t0 + 3)}')
    b(f'v_lshrrev_b32 {v(t1)}, 5, {v(V_LANE)}')
    b(f'v_lshl_add_u32 {v(t0 + 3)}, {v(t1)}, 4, {v(t0 + 3)}')
    b(f's_lshl_b32 {s(S_T0)}, {s(S_I)}, 16')
    b(f's_lshr_b32 {s(S_T1)}, {s(S_W)}, 1')
    b(f's_lshl_b32 {s(S_T1)}, {s(S_T1)}, 15')
    b(f's_add_u32 {s(S_T0)}, {s(S_T0)}, {s(S_T1)}')
    b(f's_lshl_b32 {s(S_T1)}, {s(S_J)}, 7')
    b(f's_add_u32 {s(S_T0)}, {s(S_T0)}, {s(S_T1)}')
    b(f's_and_b32 {s(S_T1)}, {s(S_W)}, 1')
    b(f's_lshl_b32 {s(S_T1)}, {s(S_T1)}, 6')
    b(f's_add_u32 {s(S_T4)}, {s(S_T0)}, {s(S_T1)}')
    b.wait_lds()
    b('s_barrier')
    b(f's_lshl_b32 {s(S_T0)}, {s(S_W)}, 12')
    b(f'v_add_u32 {v(t0)}, {s(S_T0)}, {v(V_L16)}')
    RB_ = 128
    for src in range(4):
        for j in range(4):
            b(f'ds_read_b128 {v(RB_ + 16 * src + 4 * j, 4)}, {v(t0)} offset:{16384 * src + 1024 * j}')
    for k in range(16):
        b(f'v_add_f32 {v(RB_ + k)}, {v(RB_ + k)}, {v(RB_ + 16 + k)}')
        b(f'v_add_f32 {v(RB_ + 32 + k)}, {v(RB_ + 32 + k)}, {v(RB_ + 48 + k)}')
    for k in range(16):
        b(f'v_add_f32 {v(RB_ + k)}, {v(RB_ + k)}, {v(RB_ + 32 + k)}')
    O = 192
    for k in range(8):
        b(f'v_cvt_pk_bf16_f32 {v(O + k)}, {v(RB_ + 2 * k)}, {v(RB_ + 2 * k + 1)}')
    for jj in range(2):
        b(f'v_permlane32_swap_b32 {v(O + 4 * jj)}, {v(O + 4 * jj + 2)}')
        b(f'v_permlane32_swap_b32 {v(O + 4 * jj + 1)}, {v(O + 4 * jj + 3)}')
    for jj in range(2):
        b(f'buffer_store_dwordx4 {v(O + 4 * jj, 4)}, {v(t0 + 3)}, {s(SRD_T, 4)}, {s(S_T4)} offen offset:{32 * jj}')
    stamp(b, 12)
    G.dstamp(b, 7)
    if G.OPT.get('clk') == 1:
        b('s_memtime s[64:65]')
        b('s_memrealtime s[66:67]')
        b('s_waitcnt lgkmcnt(0)')
        b('s_sub_u32 s64, s64, s62')
        b('s_sub_u32 s66, s66, s100')
        b(f's_mov_b32 {s(SRD_T)}, {s(G.P_DBG)}')
        b(f's_mov_b32 {s(SRD_T + 1)}, {s(G.P_DBG + 1)}')
        b(f's_lshr_b32 {s(S_T4)}, {s(S_WG)}, 5')
        b(f's_and_b32 {s(S_T5)}, {s(S_WG)}, 31')
        b(f's_or_b32 {s(S_T5)}, {s(S_T5)}, {s(S_W)}')
        b(f's_cmp_eq_u32 {s(S_T5)}, 0')
        b(f's_cselect_b32 {s(SRD_T + 2)}, 256, 0')
        b(f's_mov_b32 {s(SRD_T + 3)}, 0x20000')
        b(f's_lshl_b32 {s(S_T4)}, {s(S_T4)}, 3')
        b(f'v_mov_b32 {v(2)}, s64')
        b(f'v_mov_b32 {v(3)}, s66')
        b(f'buffer_store_dwordx2 {v(2, 2)}, off, {s(SRD_T, 4)}, {s(S_T4)}')
    return P2, PH, PL, b.b
```

```python
import sys, struct, math
from collections import deque
from asmlib import *

KNAME = 'gated_mix__linear_attn_block__mixer_gmlp__prompt_kernel'
OPT = dict(stamps=0, rot=1, touch=0, late=0, map=0, cpf=0)


def v(a, n=1):
    return f'v{a}' if n == 1 else f'v[{a}:{a + n - 1}]'


def a(x, n=1):
    return f'a{x}' if n == 1 else f'a[{x}:{x + n - 1}]'


def s(x, n=1):
    return f's{x}' if n == 1 else f's[{x}:{x + n - 1}]'


WS_EPOCH = 0
WS_FZ2 = 0x10000
WS_FP1 = 0x20000
WS_FY = 0x30000
WS_FKV = 0x40000
WS_GATE = 0x50000
WS_KVF = 0x60000
WS_STATS = 0x80000
WS_KVP = 0x100000
WS_Z2N = 0x200000
WS_Z1F = 0x500000
WS_PQ = 0x800000
WS_Y = 0xB00000
WS_DBG = 0x1000000
WS_SIZE = 0x10000000
NONCE_K = 0x9E3779B1
OOB = 0x40000000
SPIN_MAX = 20000

R0 = 0
R1 = 65536
R2 = 98304
LDS_BYTES = 163840

S_WG = 2
SRD_A = 4
SRD_U = 8
S_Q0, S_Q1 = 12, 13
S_AS = 14
S_ROT = 15
S_ROT2 = 3
P_X, P_WQKV, P_WO, P_BX, P_WIN, P_WSP, P_BSP, P_WOUT = 16, 18, 20, 22, 24, 26, 28, 30
P_GW, P_OUT, P_DBG, P_WS = 32, 34, 36, 38
SRD_X = 40
SRD_W = 44
SRD_WS = 48
SRD_T = 52
S_W = 56
S_RB, S_CG, S_I, S_J = 57, 58, 59, 60
S_N = 61
S_T0, S_T1, S_T2, S_T3, S_T4, S_T5 = 64, 65, 66, 67, 68, 69
S_XL, S_XS, S_WL, S_WSO = 70, 71, 72, 73
S_RS, S_COL, S_MASK = 74, 75, 76
S_O0, S_O1 = 77, 78
S_TB = 79
S_RS64 = 80
S_LOG2E, S_EPS = 82, 83
S_CNT = 86
S_PKB, S_PK1, S_PKL = 62, 84, 100
S_XG, S_XLW, S_WGB = 84, 85, 87
S_KC = 91
S_D2COL, S_D2MASK, S_D2SEL = 88, 89, 90
S_D3COL, S_D3MASK, S_D3SEL = 92, 93, 94
S_T6, S_T7 = 96, 97
S_VCC2 = 98

V_LANE = 0
V_T0 = 1
V_DUM = 7
V_XD = 8
V_WD = 12
V_XRO = 14
V_XRT = 18
V_WR = 22
V_L16 = 24
V_L8 = 25
V_GA = 26
V_NON = 27
V_ST = 28
V_POLL = 30
V_AR = 32
V_E = 36
V_GA2 = 38
V_AD = 40
V_TCH = 44
V_BSP = 45
V_TW1, V_TW2 = 46, 47
V_ACC0 = 64
V_ACC1 = 96
V_WF = 128
V_TMP = 160
V_PK = 192
V_PV = 208
V_STAT = 224
V_KV = 64
V_KZ = 224
A_X = 128


def NT(k):
    return ' nt' if OPT.get('nt', 0) & k else ''


def f2u(x):
    return struct.unpack('<I', struct.pack('<f', x))[0]


LOG2E = 1.4426950408889634
GELU_A_F = -2.0 * LOG2E * math.sqrt(2.0 / math.pi)
GELU_A = f2u(GELU_A_F)
GELU_B = f2u(GELU_A_F * 0.044715)


class St:
    def __init__(self, g, name):
        self.g = g
        self.b = g.blk(name)
        self.q = deque()
        self.period = 0
        self.cnt = 0
        self.lock = 0

    def __call__(self, text, tag=None, **meta):
        r = self.b(text, tag=tag, **meta)
        if self.period and not self.lock and self.q:
            self.cnt += 1
            if self.cnt >= self.period:
                self.pop()
        return r

    def pop(self, n=1):
        for _ in range(n):
            if not self.q:
                return
            item = self.q.popleft()
            for x in item:
                if isinstance(x, tuple):
                    self.b(x[1], tag=x[0], **(x[2] if len(x) > 2 else {}))
                else:
                    self.b(x)
        self.cnt = 0

    def add(self, items):
        self.q.extend(items)

    def flush(self):
        self.pop(len(self.q))

    def ensure(self, tag):
        def has(item):
            return any(isinstance(x, tuple) and x[0] == tag for x in item)
        while any(has(i) for i in self.q):
            self.pop(1)

    def label(self, n):
        self.b.label(n)

    def mark(self):
        return len(self.b.ins)

    def weave_from(self, n0, G=5, adv=2):
        if OPT.get('weave', 1):
            self.b.ins[n0:] = weave(self.b.ins[n0:], G, adv)

    def wait_vm(self, t):
        self.b.wait_vm(t)

    def wait_lds(self):
        self.b.wait_lds()

    class _L:
        def __init__(self, st):
            self.st = st

        def __enter__(self):
            self.st.lock += 1

        def __exit__(self, *a):
            self.st.lock -= 1

    def atomic(self):
        return St._L(self)


def gelu_group(b, xs, tmp):
    n = len(xs)
    if OPT.get('pk', 1):
        x0 = xs[0]
        for k in range(0, n, 2):
            b(f'v_pk_mul_f32 {v(tmp + k, 2)}, {v(x0 + k, 2)}, {v(x0 + k, 2)}')
        for k in range(0, n, 2):
            b(f'v_pk_fma_f32 {v(tmp + k, 2)}, {v(tmp + k, 2)}, {s(S_PKB, 2)}, {v(V_GA2, 2)}')
        for k in range(0, n, 2):
            b(f'v_pk_mul_f32 {v(tmp + k, 2)}, {v(tmp + k, 2)}, {v(x0 + k, 2)}')
        for k in range(n):
            b(f'v_exp_f32 {v(tmp + k)}, {v(tmp + k)}')
        for k in range(0, n, 2):
            b(f'v_pk_add_f32 {v(tmp + k, 2)}, {v(tmp + k, 2)}, {s(S_PK1, 2)}')
        for k in range(n):
            b(f'v_rcp_f32 {v(tmp + k)}, {v(tmp + k)}')
        for k in range(0, n, 2):
            b(f'v_pk_mul_f32 {v(x0 + k, 2)}, {v(x0 + k, 2)}, {v(tmp + k, 2)}')
        return
    for k in range(n):
        b(f'v_mul_f32 {v(tmp + k)}, {v(xs[k])}, {v(xs[k])}')
    for k in range(n):
        b(f'v_fmamk_f32 {v(tmp + k)}, {v(tmp + k)}, {hex(GELU_B)}, {v(V_GA)}')
    for k in range(n):
        b(f'v_mul_f32 {v(tmp + k)}, {v(tmp + k)}, {v(xs[k])}')
    for k in range(n):
        b(f'v_exp_f32 {v(tmp + k)}, {v(tmp + k)}')
    for k in range(n):
        b(f'v_add_f32 {v(tmp + k)}, 1.0, {v(tmp + k)}')
    for k in range(n):
        b(f'v_rcp_f32 {v(tmp + k)}, {v(tmp + k)}')
    for k in range(n):
        b(f'v_mul_f32 {v(xs[k])}, {v(xs[k])}, {v(tmp + k)}')


def phi_group(b, xs, tmp):
    n = len(xs)
    if OPT.get('pk', 1):
        x0 = xs[0]
        for k in range(0, n, 2):
            b(f'v_pk_mul_f32 {v(tmp + k, 2)}, {v(x0 + k, 2)}, {s(S_PKL, 2)}')
        for k in range(n):
            b(f'v_exp_f32_e64 {v(tmp + k)}, {v(tmp + k)} clamp')
        for k in range(n):
            b(f'v_max_f32 {v(xs[k])}, {s(S_EPS)}, {v(xs[k])}')
        for k in range(0, n, 2):
            b(f'v_pk_add_f32 {v(x0 + k, 2)}, {v(x0 + k, 2)}, {v(tmp + k, 2)}')
        return
    for k in range(n):
        b(f'v_mul_f32 {v(tmp + k)}, {s(S_LOG2E)}, {v(xs[k])}')
    for k in range(n):
        b(f'v_exp_f32_e64 {v(tmp + k)}, {v(tmp + k)} clamp')
    for k in range(n):
        b(f'v_max_f32 {v(xs[k])}, {s(S_EPS)}, {v(xs[k])}')
    for k in range(n):
        b(f'v_add_f32 {v(xs[k])}, {v(xs[k])}, {v(tmp + k)}')


def srd(b, base, ptr, nrec):
    b(f's_mov_b32 {s(base)}, {s(ptr)}')
    b(f's_mov_b32 {s(base + 1)}, {s(ptr + 1)}')
    b(f's_mov_b32 {s(base + 2)}, {hex(nrec)}')
    b(f's_mov_b32 {s(base + 3)}, 0x20000')


def dma4_voffsets(b, dst, RS):
    t0, t1, t2 = V_T0, V_T0 + 1, V_T0 + 2
    b(f'v_lshrrev_b32 {v(t0)}, 3, {v(V_LANE)}')
    b(f'v_and_b32 {v(t1)}, 7, {v(V_LANE)}')
    b(f'v_lshrrev_b32 {v(t2)}, 4, {v(V_LANE)}')
    b(f'v_xor_b32 {v(t1)}, {v(t1)}, {v(t2)}')
    b(f'v_lshlrev_b32 {v(t1)}, 4, {v(t1)}')
    b(f'v_mul_u32_u24 {v(t0)}, {RS}, {v(t0)}')
    b(f'v_add_u32 {v(dst)}, {v(t0)}, {v(t1)}')
    b(f'v_xor_b32 {v(t1)}, 64, {v(t1)}')
    b(f'v_add_u32 {v(t0)}, {v(t0)}, {v(t1)}')
    b(f'v_add_u32 {v(dst + 1)}, {8 * RS - 1024}, {v(t0)}')
    b(f'v_add_u32 {v(dst + 2)}, {16 * RS - 2048}, {v(dst)}')
    b(f'v_add_u32 {v(dst + 3)}, {24 * RS - 3072}, {v(t0)}')


def frag_read_addrs(b, dst):
    t0, t1, t2 = V_T0, V_T0 + 1, V_T0 + 2
    b(f'v_and_b32 {v(t0)}, 31, {v(V_LANE)}')
    b(f'v_lshrrev_b32 {v(t1)}, 5, {v(V_LANE)}')
    b(f'v_bfe_u32 {v(t2)}, {v(V_LANE)}, 1, 3')
    b(f'v_xor_b32 {v(t1)}, {v(t1)}, {v(t2)}')
    b(f'v_lshlrev_b32 {v(t1)}, 4, {v(t1)}')
    b(f'v_lshl_add_u32 {v(dst)}, {v(t0)}, 7, {v(t1)}')
    for kk in range(1, 4):
        b(f'v_xor_b32 {v(dst + kk)}, {32 * kk}, {v(dst)}')


def tr_addr(b, dst, pi):
    t0, t1 = V_T0, V_T0 + 1
    b(f'v_bfe_u32 {v(t0)}, {v(V_LANE)}, 2, 2')
    b(f'v_lshrrev_b32 {v(t1)}, 5, {v(V_LANE)}')
    b(f'v_lshl_add_u32 {v(t1)}, {v(t1)}, {2 if pi else 3}, {v(t0)}')
    b(f'v_lshlrev_b32 {v(t1)}, 7, {v(t1)}')
    b(f'v_lshrrev_b32 {v(t0)}, 1, {v(t0)}')
    b(f'v_lshl_add_u32 {v(t1)}, {v(t0)}, 6, {v(t1)}')
    b(f'v_bfe_u32 {v(t0)}, {v(V_LANE)}, 4, 1')
    b(f'v_lshl_add_u32 {v(t1)}, {v(t0)}, 5, {v(t1)}')
    b(f'v_and_b32 {v(t0)}, 3, {v(V_LANE)}')
    b(f'v_lshl_add_u32 {v(dst)}, {v(t0)}, 3, {v(t1)}')


def wd_voffsets(b):
    t0, t1, t2 = V_T0, V_T0 + 1, V_T0 + 2
    b(f'v_bfe_u32 {v(t0)}, {v(V_LANE)}, 2, 1')
    b(f'v_bfe_u32 {v(t1)}, {v(V_LANE)}, 4, 1')
    b(f'v_xor_b32 {v(t0)}, {v(t0)}, {v(t1)}')
    b(f'v_and_b32 {v(t1)}, 3, {v(V_LANE)}')
    b(f'v_lshlrev_b32 {v(t1)}, 4, {v(t1)}')
    b(f'v_lshl_add_u32 {v(t0)}, {v(t0)}, 6, {v(t1)}')
    b(f'v_lshrrev_b32 {v(t1)}, 3, {v(V_LANE)}')
    b(f'v_mul_lo_u32 {v(t1)}, {v(t1)}, {s(S_RS)}')
    b(f'v_add_u32 {v(t1)}, {v(t1)}, {v(t0)}')
    b(f'v_add_u32 {v(V_WD)}, {s(S_COL)}, {v(t1)}')
    b(f's_lshl_b32 {s(S_T0)}, {s(S_RS)}, 3')
    b(f's_sub_u32 {s(S_T0)}, {s(S_T0)}, 1024')
    b(f'v_add_u32 {v(V_WD + 1)}, {s(S_T0)}, {v(V_WD)}')
    b(f'v_mov_b32 {v(t2)}, {hex(OOB)}')
    b(f'v_cmp_gt_u32 vcc, {s(S_MASK)}, {v(t0)}')
    b(f'v_cndmask_b32 {v(V_WD)}, {v(V_WD)}, {v(t2)}, vcc')
    b(f'v_cndmask_b32 {v(V_WD + 1)}, {v(V_WD + 1)}, {v(t2)}, vcc')
    b(f's_lshl_b32 {s(S_RS64)}, {s(S_RS)}, 6')
    b(f's_lshl_b32 {s(S_T0)}, {s(S_RS)}, 4')
    b(f's_mul_i32 {s(S_WSO)}, {s(S_T0)}, {s(S_W)}')


def set_w_srd(b, sel):
    b(f's_cmp_eq_u32 {s(sel)}, 0')
    b(f's_cselect_b32 {s(SRD_W)}, {s(P_WQKV)}, {s(P_WIN)}')
    b(f's_cselect_b32 {s(SRD_W + 1)}, {s(P_WQKV + 1)}, {s(P_WIN + 1)}')
    b(f's_mov_b32 {s(SRD_W + 2)}, {hex(512 * 2752)}')
    b(f's_cmov_b32 {s(SRD_W + 2)}, {hex(512 * 3072)}')
    b(f's_mov_b32 {s(SRD_W + 3)}, 0x20000')


def w_piece_items(p, region, tag):
    return [
        [f's_add_u32 {s(S_Q0)}, {s(S_ROT)}, {p}',
         f's_and_b32 {s(S_Q0)}, {s(S_Q0)}, 7',
         f's_mul_i32 {s(S_Q0)}, {s(S_Q0)}, {s(S_RS64)}',
         f's_add_u32 {s(S_Q0)}, {s(S_Q0)}, {s(S_WSO)}',
         f's_add_u32 m0, {s(S_WL)}, {region + 8192 * p}',
         (tag, f'buffer_load_dwordx4 {v(V_WD)}, {s(SRD_W, 4)}, {s(S_Q0)} offen{NT(2)} lds')],
        [(tag, f'buffer_load_dwordx4 {v(V_WD + 1)}, {s(SRD_W, 4)}, {s(S_Q0)} offen offset:1024{NT(2)} lds')],
    ]


def x_chunk_items(c, tag):
    it = []
    for i in range(4):
        l = []
        if i == 0:
            l = [f's_add_u32 {s(S_Q0)}, {s(S_ROT)}, {c}',
                 f's_and_b32 {s(S_Q0)}, {s(S_Q0)}, 7',
                 f's_lshl_b32 {s(S_Q0)}, {s(S_Q0)}, 7',
                 f's_add_u32 {s(S_Q0)}, {s(S_Q0)}, {s(S_XS)}',
                 f's_add_u32 m0, {s(S_XL)}, {16384 * (c % 4)}']
        l.append((tag, f'buffer_load_dwordx4 {v(V_XD + i)}, {s(SRD_X, 4)}, {s(S_Q0)} offen offset:{1024 * i}{NT(4)} lds'))
        it.append(l)
    return it


def l1_items(c):
    tag = f'x{c}'
    slot = R1 + 16384 * (c % 3)
    it = []
    for m in range(4):
        l = []
        if m == 0:
            l = [f's_add_u32 {s(S_KC)}, {s(S_ROT)}, {c}',
                 f's_and_b32 {s(S_KC)}, {s(S_KC)}, 7',
                 f's_lshl_b32 {s(S_Q0)}, {s(S_KC)}, 7',
                 f's_add_u32 {s(S_Q0)}, {s(S_Q0)}, {s(S_XG)}',
                 f's_add_u32 m0, {s(S_XLW)}, {slot}']
        else:
            l = [f's_add_u32 {s(S_Q0)}, {s(S_Q0)}, 7168']
        l.append((tag, f'buffer_load_dwordx4 {v(V_XD + (m & 1))}, {s(SRD_X, 4)}, {s(S_Q0)} offen offset:{1024 * m} lds'))
        it.append(l)
    it.append([f's_add_u32 {s(S_Q0)}, {s(S_Q0)}, {7168 + 4096}',
               f's_add_u32 m0, {s(S_XLW)}, {slot + 4096}',
               (tag, f'buffer_load_dwordx4 {v(V_XD)}, {s(SRD_X, 4)}, {s(S_Q0)} offen lds')])
    return it


def l1_item5(g, b, c):
    tag = f'x{c}'
    l0, l1 = g.lab('M5'), g.lab('M5')
    b.b(f's_cmp_eq_u32 {s(S_W)}, 0')
    b.b(f's_cbranch_scc0 {l0}')
    b.b(f's_add_u32 {s(S_Q0)}, {s(S_Q0)}, 7168')
    b.b(f'buffer_load_dwordx4 {v(V_XD + 1)}, {s(SRD_X, 4)}, {s(S_Q0)} offen offset:1024 lds', nocount=True)
    b.b(f's_branch {l1}')
    b.b.label(l0)
    b.b(f's_mul_i32 {s(S_Q1)}, {s(S_KC)}, {s(S_RS64)}')
    b.b(f's_sub_u32 {s(S_Q0)}, {s(S_WGB)}, 1')
    b.b(f's_lshl_b32 {s(S_T0)}, {s(S_Q0)}, 10')
    b.b(f's_add_u32 m0, {s(S_T0)}, {R0 + 8192 * c}')
    b.b(f's_lshl_b32 {s(S_T0)}, {s(S_RS)}, 3')
    b.b(f's_mul_i32 {s(S_Q0)}, {s(S_Q0)}, {s(S_T0)}')
    b.b(f's_add_u32 {s(S_Q0)}, {s(S_Q0)}, {s(S_Q1)}')
    b.b(f'buffer_load_dwordx4 {v(V_WD)}, {s(SRD_W, 4)}, {s(S_Q0)} offen lds', tag=tag)
    b.b.label(l1)


def l1_w_items(c):
    tag = f'x{c}'
    return [[f's_mul_i32 {s(S_Q1)}, {s(S_KC)}, {s(S_RS64)}',
             f's_lshl_b32 {s(S_Q0)}, {s(S_WGB)}, 10',
             f's_add_u32 m0, {s(S_Q0)}, {R0 + 8192 * c}',
             f's_lshl_b32 {s(S_Q0)}, {s(S_RS)}, 3',
             f's_mul_i32 {s(S_Q0)}, {s(S_Q0)}, {s(S_WGB)}',
             f's_add_u32 {s(S_Q0)}, {s(S_Q0)}, {s(S_Q1)}',
             (tag, f'buffer_load_dwordx4 {v(V_WD)}, {s(SRD_W, 4)}, {s(S_Q0)} offen lds')],
            [(tag, f'buffer_load_dwordx4 {v(V_WD + 1)}, {s(SRD_W, 4)}, {s(S_Q0)} offen offset:1024 lds')]]


def a_slot(kind):
    return {'h0': (13, R1), 'h1': (13, R1 + 4096), 'f0': (13, R1), 'f1': (14, R2), 'f2': (14, R2 + 8192),
            'g1': (14, R0), 'g2': (14, R0 + 8192)}[kind]


def a_piece_items(c, tb, slot, off=0):
    sh, base = a_slot(slot)
    it = []
    for i in range(4):
        l = []
        if i == 0:
            l = [f's_add_u32 {s(S_Q0)}, {s(S_ROT2)}, {c}',
                 f's_and_b32 {s(S_Q0)}, {s(S_Q0)}, 7',
                 f's_lshl_b32 {s(S_Q0)}, {s(S_Q0)}, 7',
                 f's_add_u32 {s(S_Q0)}, {s(S_Q0)}, {s(S_AS)}']
            if tb:
                l.append(f's_add_u32 {s(S_Q0)}, {s(S_Q0)}, {32 * 4096}')
            l += [f's_lshl_b32 {s(S_Q1)}, {s(S_W)}, {sh}',
                  f's_add_u32 m0, {s(S_Q1)}, {base + off}']
        l.append((f'a{c}_{tb}', f'buffer_load_dwordx4 {v(V_AD + i)}, {s(SRD_A, 4)}, {s(S_Q0)} offen offset:{1024 * i}{NT(1)} lds'))
        it.append(l)
    return it


def a_piece_read(b, c, tb, slot, off=0):
    sh, base = a_slot(slot)
    with b.atomic():
        b(f's_lshl_b32 {s(S_T0)}, {s(S_W)}, {sh}')
        b(f's_add_u32 {s(S_T0)}, {s(S_T0)}, {base + off}')
        for kk in range(4):
            b(f'v_add_u32 {v(V_T0 + kk)}, {s(S_T0)}, {v(V_AR + kk)}')
        for kk in range(4):
            r = 8 * (4 * c + kk) + 4 * tb
            b(f'ds_read_b128 {a(r, 4)}, {v(V_T0 + kk)}')


def a_chunk_items(c, slot):
    return a_piece_items(c, 0, slot) + a_piece_items(c, 1, slot, 4096)


def a_chunk_read(b, c, slot):
    sh, base = a_slot(slot)
    with b.atomic():
        b(f's_lshl_b32 {s(S_T0)}, {s(S_W)}, {sh}')
        b(f's_add_u32 {s(S_T0)}, {s(S_T0)}, {base}')
        for kk in range(4):
            b(f'v_add_u32 {v(V_T0 + kk)}, {s(S_T0)}, {v(V_AR + kk)}')
        for kk in range(4):
            for tb in range(2):
                r = 8 * (4 * c + kk) + 4 * tb
                b(f'ds_read_b128 {a(r, 4)}, {v(V_T0 + kk)} offset:{4096 * tb}')


def stamp(b, idx):
    if not OPT['stamps']:
        return
    if OPT['stamps'] == 3 and idx not in (0, 12):
        return
    lock = b.atomic() if hasattr(b, 'atomic') else None
    if lock:
        lock.__enter__()
    b(f's_memrealtime {s(S_VCC2, 2)}' if OPT['stamps'] in (1, 3) else f's_memtime {s(S_VCC2, 2)}')
    b('s_waitcnt lgkmcnt(0)')
    b(f's_lshl_b32 {s(S_T6)}, {s(S_WG)}, 2')
    b(f's_add_u32 {s(S_T6)}, {s(S_T6)}, {s(S_W)}')
    b(f's_lshl_b32 {s(S_T6)}, {s(S_T6)}, 7')
    b(f's_add_u32 {s(S_T6)}, {s(S_T6)}, {WS_DBG + 4 * idx}')
    b(f'v_mov_b32 {v(V_POLL + 1)}, {s(S_VCC2)}')
    b(f'buffer_store_dword {v(V_POLL + 1)}, off, {s(SRD_WS, 4)}, {s(S_T6)}')
    if lock:
        lock.__exit__()


def s1_issue(g, b):
    from phase23 import s1_issue as f
    f(g, b)


def dstamp(b, k):
    if OPT.get('clk') != 2:
        return
    lock = b.atomic() if hasattr(b, 'atomic') else None
    if lock:
        lock.__enter__()
    b('s_memtime s[98:99]')
    b('s_waitcnt lgkmcnt(0)')
    b('s_sub_u32 s98, s98, s62')
    b(f's_mov_b32 {s(SRD_T)}, {s(P_DBG)}')
    b(f's_mov_b32 {s(SRD_T + 1)}, {s(P_DBG + 1)}')
    b(f's_cmp_eq_u32 {s(S_WG)}, 100')
    b(f's_cselect_b32 s99, 32, 0')
    b(f's_cselect_b32 s97, 0, {s(S_WG)}')
    b(f's_or_b32 s97, s97, {s(S_W)}')
    b(f's_cmp_eq_u32 s97, 0')
    b(f's_cselect_b32 {s(SRD_T + 2)}, 256, 0')
    b(f's_mov_b32 {s(SRD_T + 3)}, 0x20000')
    b(f's_add_u32 s99, s99, {4 * k}')
    b(f'v_mov_b32 {v(V_POLL + 1)}, s98')
    b(f'buffer_store_dword {v(V_POLL + 1)}, off, {s(SRD_T, 4)}, s99')
    if lock:
        lock.__exit__()


def slow_mark(idx):
    if not OPT['stamps'] or OPT.get('s3st') or OPT['stamps'] == 3:
        return ''
    return f'''    s_lshl_b32 {s(S_T6)}, {s(S_WG)}, 2
    s_add_u32 {s(S_T6)}, {s(S_T6)}, {s(S_W)}
    s_lshl_b32 {s(S_T6)}, {s(S_T6)}, 7
    s_add_u32 {s(S_T6)}, {s(S_T6)}, {WS_DBG + 4 * idx}
    s_sub_u32 {s(S_VCC2)}, {SPIN_MAX + 1}, {s(S_CNT)}
    v_mov_b32 {v(V_POLL + 1)}, {s(S_VCC2)}
    buffer_store_dword {v(V_POLL + 1)}, off, {s(SRD_WS, 4)}, {s(S_T6)}
'''


class Gen:
    def __init__(self):
        self.blocks = []
        self.s3flag = False
        self.slow = []
        self.nlab = 0

    def blk(self, name):
        b = Block(name)
        self.blocks.append(b)
        return b

    def lab(self, p='L'):
        self.nlab += 1
        return f'{p}_{self.nlab}'

    def poll(self, b, vaddr, soff, vtmp, first_issued=False, skip_if_zero=None, mark=31):
        cont = self.lab('PC')
        slow = self.lab('PS')
        lock = b.atomic() if hasattr(b, 'atomic') else None
        if lock:
            lock.__enter__()
        if not first_issued:
            b(f'buffer_load_dword {v(vtmp)}, {v(vaddr)}, {s(SRD_WS, 4)}, {soff} offen sc1')
        b(f'v_cmp_ne_u32 vcc, {s(S_N)}, {v(vtmp)}')
        if skip_if_zero is not None:
            b(f's_cmp_eq_u32 {s(skip_if_zero)}, 0')
            b(f's_cbranch_scc1 {cont}')
        b(f's_cbranch_vccnz {slow}')
        b.label(cont)
        if lock:
            lock.__exit__()
        self.slow.append(f'''{slow}:
    s_mov_b32 {s(S_CNT)}, {SPIN_MAX}
{slow}_l:
    s_sleep 1
    buffer_load_dword {v(vtmp)}, {v(vaddr)}, {s(SRD_WS, 4)}, {soff} offen sc1
    s_waitcnt vmcnt(0)
{slow_mark(mark)}    v_cmp_ne_u32 vcc, {s(S_N)}, {v(vtmp)}
    s_cbranch_vccz {cont}
    s_sub_u32 {s(S_CNT)}, {s(S_CNT)}, 1
    s_cmp_lg_u32 {s(S_CNT)}, 0
    s_cbranch_scc1 {slow}_l
    s_branch {cont}''')

    def prologue(self):
        b = St(self, 'PRO')
        b(f's_cmp_ge_u32 {s(S_WG)}, 256')
        b('s_cbranch_scc1 L_END')
        if OPT.get('clk'):
            b('s_memtime s[62:63]')
            if OPT.get('clk') == 1:
                b('s_memrealtime s[100:101]')
        b('s_load_dwordx16 s[16:31], s[0:1], 0x0')
        b('s_load_dwordx8 s[32:39], s[0:1], 0x40')
        b(f'v_lshrrev_b32 {v(V_T0)}, 6, {v(0)}')
        b(f'v_and_b32 {v(V_LANE)}, 63, {v(0)}')
        b(f's_and_b32 {s(S_T0)}, {s(S_WG)}, 7')
        b(f'v_readfirstlane_b32 {s(S_W)}, {v(V_T0)}')
        b(f's_lshr_b32 {s(S_T1)}, {s(S_WG)}, 3')
        b(f's_lshr_b32 {s(S_T2)}, {s(S_T1)}, 2')
        b(f's_and_b32 {s(S_T1)}, {s(S_T1)}, 3')
        b(f's_and_b32 {s(S_T3)}, {s(S_T0)}, 1')
        b(f's_lshr_b32 {s(S_T0)}, {s(S_T0)}, 1')
        b(f's_lshl3_add_u32 {s(S_RB)}, {s(S_T3)}, {s(S_T2)}')
        b(f's_lshl2_add_u32 {s(S_CG)}, {s(S_T0)}, {s(S_T1)}')
        b(f's_lshl3_add_u32 {s(S_I)}, {s(S_T0)}, {s(S_T2)}')
        b(f's_lshl2_add_u32 {s(S_J)}, {s(S_T3)}, {s(S_T1)}')
        b(f's_lshl1_add_u32 {s(S_ROT)}, {s(S_T1)}, {s(S_T2)}')
        b(f's_and_b32 {s(S_ROT)}, {s(S_ROT)}, 7')
        if OPT.get('map', 0):
            b(f's_and_b32 {s(S_T4)}, {s(S_WG)}, 7')
            b(f's_lshr_b32 {s(S_T5)}, {s(S_WG)}, 6')
            b(f's_lshl2_add_u32 {s(S_I)}, {s(S_T4)}, {s(S_T5)}')
            b(f's_bfe_u32 {s(S_J)}, {s(S_WG)}, 0x30003')
            b(f's_lshl1_add_u32 {s(S_ROT2)}, {s(S_T5)}, {s(S_J)}')
            b(f's_and_b32 {s(S_ROT2)}, {s(S_ROT2)}, 7')
        else:
            b(f's_mov_b32 {s(S_ROT2)}, {s(S_ROT)}')
        if not OPT['rot']:
            b(f's_mov_b32 {s(S_ROT)}, 0')
        b(f'v_lshrrev_b32 {v(V_T0)}, 3, {v(V_LANE)}')
        b(f'v_and_b32 {v(V_T0 + 1)}, 7, {v(V_LANE)}')
        b(f'v_lshrrev_b32 {v(V_T0 + 2)}, 4, {v(V_LANE)}')
        b(f'v_xor_b32 {v(V_T0 + 1)}, {v(V_T0 + 1)}, {v(V_T0 + 2)}')
        b(f'v_lshlrev_b32 {v(V_T0 + 1)}, 4, {v(V_T0 + 1)}')
        b(f's_cmp_eq_u32 {s(S_W)}, 2')
        b(f's_cselect_b32 {s(S_T0)}, 64, 0')
        b(f'v_xor_b32 {v(V_T0 + 1)}, {s(S_T0)}, {v(V_T0 + 1)}')
        b(f'v_lshl_add_u32 {v(V_XD)}, {v(V_T0)}, 10, {v(V_T0 + 1)}')
        b(f'v_xor_b32 {v(V_XD + 1)}, 64, {v(V_XD)}')
        b(f's_mul_i32 {s(S_XLW)}, {s(S_W)}, 6')
        b(f's_cmp_eq_u32 {s(S_W)}, 2')
        b(f's_cselect_b32 {s(S_XLW)}, 11, {s(S_XLW)}')
        b(f's_lshl_b32 {s(S_XG)}, {s(S_XLW)}, 13')
        b(f's_lshl_b32 {s(S_T0)}, {s(S_RB)}, 17')
        b(f's_add_u32 {s(S_XG)}, {s(S_XG)}, {s(S_T0)}')
        b(f's_lshl_b32 {s(S_XLW)}, {s(S_XLW)}, 10')
        b(f's_mul_i32 {s(S_WGB)}, {s(S_W)}, 3')
        b(f's_lshl_b32 {s(S_T0)}, {s(S_CG)}, 7')
        b(f's_add_u32 {s(S_T1)}, {s(S_T0)}, 1344')
        b(f's_sub_u32 {s(S_T2)}, {s(S_T0)}, 1024')
        b(f's_cmp_le_u32 {s(S_CG)}, 10')
        b(f's_cselect_b32 {s(S_COL)}, {s(S_T1)}, {s(S_T2)}')
        b(f's_mov_b32 {s(S_RS)}, 3072')
        b(f's_cmov_b32 {s(S_RS)}, 2752')
        b(f's_cselect_b32 {s(S_T3)}, 1, 0')
        b(f's_cmp_eq_u32 {s(S_CG)}, 0')
        b(f's_cselect_b32 {s(S_MASK)}, 32, 0')
        wd_voffsets(b)
        b(f's_lshl_b32 {s(S_WL)}, {s(S_W)}, 11')
        b(f's_lshl2_add_u32 {s(S_TB)}, {s(S_RB)}, {s(S_W)}')
        if OPT.get('cpf', 0):
            b(f's_getpc_b64 {s(62, 2)}')
            b.label('L_pc0')
            b(f's_lshr_b32 {s(S_T0)}, {s(S_WG)}, 3')
            b(f's_lshl2_add_u32 {s(S_T0)}, {s(S_T0)}, {s(S_W)}')
            b(f's_lshl_b32 {s(S_T0)}, {s(S_T0)}, 9')
            b(f's_min_u32 {s(S_T0)}, {s(S_T0)}, L_code_end-L_pc0-512')
            b(f'v_lshlrev_b32 {v(V_T0 + 3)}, 3, {v(V_LANE)}')
            b(f'v_add_u32 {v(V_T0 + 3)}, {s(S_T0)}, {v(V_T0 + 3)}')
            b(f'global_load_dwordx2 {v(250, 2)}, {v(V_T0 + 3)}, {s(62, 2)}', nodst=True)
        b('s_waitcnt lgkmcnt(0)')
        dstamp(b, 0)
        srd(b, SRD_X, P_X, 2048 * 1024)
        set_w_srd(b, S_T3)
        if OPT.get('sym', 1):
            dma4_voffsets(b, V_XD, 1024)
            b(f's_lshl_b32 {s(S_XL)}, {s(S_W)}, 12')
            b(f's_add_u32 {s(S_XL)}, {s(S_XL)}, {R1}')
            b(f's_lshl_b32 {s(S_XS)}, {s(S_TB)}, 15')
            for c in range(3):
                b.add(x_chunk_items(c, f'x{c}'))
                b.add(w_piece_items(c, R0, f'x{c}'))
            b.flush()
        else:
            b(f's_cmp_eq_u32 {s(S_W)}, 3')
            b('s_cbranch_scc1 L_noload0')
            n0 = len(b.b.ins)
            for c in range(2):
                b.add(l1_items(c))
                b.flush()
                l1_item5(self, b, c)
                b.add(l1_w_items(c))
                b.flush()
            for i in b.b.ins[n0:]:
                i.meta['loader'] = True
            b.label('L_noload0')
        if OPT.get('wsoff', 0):
            off = OPT['wsoff'] << 20
            b(f's_add_u32 {s(P_WS)}, {s(P_WS)}, {hex(off)}')
            b(f's_addc_u32 {s(P_WS + 1)}, {s(P_WS + 1)}, 0')
        srd(b, SRD_WS, P_WS, WS_SIZE - (OPT.get('wsoff', 0) << 20))
        b(f'buffer_load_dword {v(V_E)}, off, {s(SRD_WS, 4)}, 0 sc1', tag='epoch')
        stamp(b, 0)
        dstamp(b, 1)
        b(f's_mov_b32 {s(S_LOG2E)}, {hex(f2u(LOG2E))}')
        b(f's_mov_b32 {s(S_EPS)}, {hex(f2u(1e-6))}')
        b(f'v_mov_b32 {v(V_GA)}, {hex(GELU_A)}')
        b(f'v_mov_b32 {v(V_GA2)}, {hex(GELU_A)}')
        b(f'v_mov_b32 {v(V_GA2 + 1)}, {hex(GELU_A)}')
        b(f's_mov_b32 {s(S_PKB)}, {hex(GELU_B)}')
        b(f's_mov_b32 {s(S_PKB + 1)}, {hex(GELU_B)}')
        b(f's_mov_b32 {s(S_PK1)}, 1.0')
        b(f's_mov_b32 {s(S_PK1 + 1)}, 1.0')
        b(f's_mov_b32 {s(S_PKL)}, {hex(f2u(LOG2E))}')
        b(f's_mov_b32 {s(S_PKL + 1)}, {hex(f2u(LOG2E))}')
        b(f'v_lshlrev_b32 {v(V_L16)}, 4, {v(V_LANE)}')
        b(f'v_lshlrev_b32 {v(V_L8)}, 3, {v(V_LANE)}')
        frag_read_addrs(b, V_AR)
        b(f's_lshl_b32 {s(S_T0)}, {s(S_W)}, 12')
        b(f's_add_u32 {s(S_T1)}, {s(S_T0)}, {R1}')
        for kk in range(4):
            b(f'v_add_u32 {v(V_XRO + kk)}, {s(S_T1)}, {v(V_AR + kk)}')
        tr_addr(b, V_WR, False)
        b(f'v_xor_b32 {v(V_WR + 1)}, 64, {v(V_WR)}')
        srd(b, SRD_A, P_WSP, 2048 * 4096)
        dma4_voffsets(b, V_AD, 4096)
        b(f'v_lshlrev_b32 {v(V_TCH)}, 7, {v(V_LANE)}')
        b(f's_lshl_b32 {s(S_AS)}, {s(S_I)}, 18')
        b(f's_lshl_b32 {s(S_T0)}, {s(S_W)}, 10')
        b(f's_add_u32 {s(S_AS)}, {s(S_AS)}, {s(S_T0)}')
        srd(b, SRD_T, P_BSP, 4096)
        b(f's_and_b32 {s(S_T0)}, {s(S_W)}, 1')
        b(f's_lshl_b32 {s(S_T0)}, {s(S_T0)}, 6')
        b(f's_lshl_b32 {s(S_T1)}, {s(S_I)}, 7')
        b(f's_add_u32 {s(S_T0)}, {s(S_T0)}, {s(S_T1)}')
        b(f'v_and_b32 {v(V_T0)}, 31, {v(V_LANE)}')
        b(f'v_lshlrev_b32 {v(V_T0)}, 1, {v(V_T0)}')
        b(f'buffer_load_ushort {v(V_BSP)}, {v(V_T0)}, {s(SRD_T, 4)}, {s(S_T0)} offen')
        b(f's_lshl_b32 {s(S_T0)}, {s(S_CG)}, 7')
        b(f's_add_u32 {s(S_D2COL)}, {s(S_T0)}, 1024')
        b(f's_add_u32 {s(S_D3COL)}, {s(S_T0)}, 2048')
        b(f's_mov_b32 {s(S_D2SEL)}, 0')
        b(f's_mov_b32 {s(S_D3SEL)}, 0')
        b(f's_mov_b32 {s(S_D2MASK)}, 0')
        b(f's_mov_b32 {s(S_D3MASK)}, 0')
        b(f's_cmp_lt_u32 {s(S_CG)}, 8')
        b('s_cbranch_scc1 L_desc_done')
        b(f's_cmp_lt_u32 {s(S_CG)}, 11')
        b('s_cbranch_scc0 L_desc_cd')
        b(f's_sub_u32 {s(S_D2COL)}, {s(S_T0)}, 1024')
        b(f's_sub_u32 {s(S_D3COL)}, {s(S_T0)}, 1056')
        b(f's_mov_b32 {s(S_D3SEL)}, 1')
        b(f's_cmp_eq_u32 {s(S_CG)}, 8')
        b(f's_cselect_b32 {s(S_D3MASK)}, 32, 0')
        b('s_branch L_desc_done')
        b.label('L_desc_cd')
        b(f's_lshl_b32 {s(S_T1)}, {s(S_T0)}, 1')
        b(f's_sub_u32 {s(S_T1)}, {s(S_T1)}, 2464')
        b(f's_sub_u32 {s(S_T2)}, {s(S_T0)}, 672')
        b(f's_cmp_lt_u32 {s(S_CG)}, 14')
        b(f's_cselect_b32 {s(S_D2COL)}, {s(S_T1)}, {s(S_T2)}')
        b(f's_add_u32 {s(S_D3COL)}, {s(S_D2COL)}, 128')
        b(f's_mov_b32 {s(S_D2SEL)}, 1')
        b(f's_mov_b32 {s(S_D3SEL)}, 1')
        b.label('L_desc_done')
        for r in range(32):
            b(f'v_mov_b32 {v(V_ACC0 + r)}, 0')
        if not OPT.get('sym', 1):
            b(f's_cmp_eq_u32 {s(S_W)}, 3')
            b('s_cbranch_scc1 L_L1P')
        return b.b

    def prefetch_items(self):
        def touch(srdreg, mul, off=0):
            return [f's_mul_i32 {s(S_Q0)}, {s(S_WG)}, {mul}',
                    ('t', f'buffer_load_dword {v(V_DUM)}, {v(V_TCH)}, {s(srdreg, 4)}, {s(S_Q0)} offen offset:{off}', dict(nodst=True))]
        it = []
        pre = lambda ptr, n: [f's_mov_b32 {s(SRD_U)}, {s(ptr)}', f's_mov_b32 {s(SRD_U + 1)}, {s(ptr + 1)}',
                              f's_mov_b32 {s(SRD_U + 2)}, {hex(n)}', f's_mov_b32 {s(SRD_U + 3)}, 0x20000']
        it.append(pre(P_WQKV, 512 * 3072) + touch(SRD_U, 6144))
        it.append(pre(P_WIN, 512 * 2752) + touch(SRD_U, 5504))
        for k in range(4):
            it.append([f's_mul_i32 {s(S_Q0)}, {s(S_WG)}, 32768', f's_add_u32 {s(S_Q0)}, {s(S_Q0)}, {8192 * k}',
                       ('t', f'buffer_load_dword {v(V_DUM)}, {v(V_TCH)}, {s(SRD_A, 4)}, {s(S_Q0)} offen', dict(nodst=True))])
        it.append(pre(P_WOUT, 688 * 1024) + touch(SRD_U, 2752))
        it.append(pre(P_WO, 512 * 1024) + touch(SRD_U, 2048))
        return it

    def slab1(self, loader):
        b = St(self, 'L1L' if loader else 'L1P')
        if not loader:
            b.label('L_L1P')
            pf = self.prefetch_items() if OPT.get('pf', 1) else []
        n0 = b.mark()
        for c in range(8):
            if loader:
                b.wait_vm(f'x{c}')
            if c == 4:
                b(f'v_add_u32 {v(V_NON)}, {hex(NONCE_K)}, {v(V_E)}')
                b(f'v_readfirstlane_b32 {s(S_N)}, {v(V_NON)}')
            b.wait_lds()
            b('s_barrier')
            if c == 0:
                dstamp(b, 2)
            if OPT.get('l1st') and c in (0, 1, 2, 4, 6):
                stamp(b, {0: 13, 1: 14, 2: 15, 4: 19, 6: 22}[c])
            m5 = None
            if c <= 4:
                if OPT.get('sym', 1):
                    b.add(x_chunk_items(c + 3, f'x{c + 3}'))
                    b.add(w_piece_items(c + 3, R0, f'x{c + 3}'))
                elif loader:
                    b.add(l1_items(c + 2))
                    m5 = c + 2
                else:
                    b.add(pf[:2])
                    pf = pf[2:]
            else:
                if c == 5:
                    self.switch_slab(b, S_D2SEL, S_D2COL, S_D2MASK)
                for p in {5: (4, 5), 6: (6, 7), 7: ()}[c]:
                    b.add(w_piece_items(p, R2, 'w2'))
                if c == 7 and OPT.get('tch', 0) & 4:
                    self.w3_touch(b)
            b.pop(1)
            b.period = OPT.get('l1p', 6) if loader else 8
            for kk in range(4):
                K = 4 * c + kk
                b(f'ds_read_b128 {a(A_X + 4 * K, 4)}, {v(V_XRO + kk)}')
                wf = V_WF + 8 * (K & 3)
                for ch in range(2):
                    for t in range(2):
                        b(f'ds_read_b64_tr_b16 {v(wf + 4 * ch + 2 * t, 2)}, {v(V_WR + ch)} offset:{2048 * K + 512 * t}')
                if K >= 2:
                    self.mfma_pair_R(b, K - 2)
                if kk == 2 and m5 is not None:
                    b.flush()
                    l1_item5(self, b, m5)
                    b.add(l1_w_items(m5))
            b.flush()
            b.period = 0
            if c < 7:
                d = 16384 if (c + 1) % 4 != 0 else -49152
                for kk in range(4):
                    if d > 0:
                        b(f'v_add_u32 {v(V_XRO + kk)}, {d}, {v(V_XRO + kk)}')
                    else:
                        b(f'v_subrev_u32 {v(V_XRO + kk)}, {-d}, {v(V_XRO + kk)}')
        self.mfma_pair_R(b, 30)
        self.mfma_pair_R(b, 31)
        b.weave_from(n0, G=6)
        b.wait_lds()
        b('s_barrier')
        stamp(b, 1)
        dstamp(b, 3)
        b(f's_cmp_lt_u32 {s(S_CG)}, 8')
        b('s_cbranch_scc1 L_roleA')
        b(f's_cmp_lt_u32 {s(S_CG)}, 11')
        b('s_cbranch_scc1 L_roleB')
        b(f's_cmp_lt_u32 {s(S_CG)}, 14')
        b('s_cbranch_scc1 L_roleC')
        b('s_branch L_roleD')
        return b.b

    def switch_slab(self, b, sel, col, mask):
        with b.atomic():
            b(f's_cmp_eq_u32 {s(sel)}, 0')
            b(f's_mov_b32 {s(S_RS)}, 2752')
            b(f's_cmov_b32 {s(S_RS)}, 3072')
            b(f's_mov_b32 {s(S_COL)}, {s(col)}')
            b(f's_mov_b32 {s(S_MASK)}, {s(mask)}')
            set_w_srd(b, sel)
            wd_voffsets(b)

    def mfma_pair_R(self, b, K):
        wf = V_WF + 8 * (K & 3)
        for ch in range(2):
            acc = V_ACC0 + 16 * ch
            b(f'v_mfma_f32_32x32x16_bf16 {v(acc, 16)}, {v(wf + 4 * ch, 4)}, {a(A_X + 4 * K, 4)}, {v(acc, 16)}')

    def touch_setup(self, b):
        b(f'v_lshrrev_b32 {v(V_T0)}, 3, {v(V_LANE)}')
        b(f'v_lshlrev_b32 {v(V_T0)}, 12, {v(V_T0)}')
        b(f'v_and_b32 {v(V_T0 + 1)}, 7, {v(V_LANE)}')
        b(f'v_lshl_add_u32 {v(V_TCH)}, {v(V_T0 + 1)}, 7, {v(V_T0)}')
        b(f'v_lshlrev_b32 {v(V_TW1)}, 10, {v(V_LANE)}')
        b(f'v_mov_b32 {v(V_TW2)}, {v(V_TW1)}')
        b(f'v_mov_b32 {v(V_T0)}, {hex(OOB)}')
        b(f'v_cmp_lt_u32 vcc, 21, {v(V_LANE)}')
        b(f'v_cndmask_b32 {v(V_TW1)}, {v(V_TW1)}, {v(V_T0)}, vcc')
        b(f'v_cmp_lt_u32 vcc, 15, {v(V_LANE)}')
        b(f'v_cndmask_b32 {v(V_TW2)}, {v(V_TW2)}, {v(V_T0)}, vcc')
        srd(b, SRD_U, P_WOUT, 688 * 1024)
        srd(b, SRD_X, P_WO, 512 * 1024)

    def touch_items(self):
        T = OPT.get('tch', 0)
        it = []
        if T & 1:
            for k in range(2):
                it.append([f's_and_b32 {s(S_Q0)}, {s(S_J)}, 3',
                           f's_lshl_b32 {s(S_Q0)}, {s(S_Q0)}, 16',
                           f's_add_u32 {s(S_Q0)}, {s(S_Q0)}, {s(S_AS)}'] +
                          ([f's_add_u32 {s(S_Q0)}, {s(S_Q0)}, {8 * 4096}'] if k else []) +
                          [('t', f'buffer_load_dword {v(V_DUM)}, {v(V_TCH)}, {s(SRD_A, 4)}, {s(S_Q0)} offen', dict(nodst=True))])
        if T & 8:
            it.append([f's_lshl2_add_u32 {s(S_Q0)}, {s(S_WG)}, {s(S_W)}',
                       f's_lshl_b32 {s(S_Q0)}, {s(S_Q0)}, 13',
                       f'v_lshlrev_b32 {v(V_T0)}, 7, {v(V_LANE)}',
                       ('t', f'buffer_load_dword {v(V_DUM)}, {v(V_T0)}, {s(SRD_A, 4)}, {s(S_Q0)} offen', dict(nodst=True))])
        if T & 2:
            it.append([f's_lshr_b32 {s(S_Q0)}, {s(S_WG)}, 5',
                       f's_mul_i32 {s(S_Q1)}, {s(S_Q0)}, 86',
                       f's_mul_i32 {s(S_Q0)}, {s(S_W)}, 22',
                       f's_add_u32 {s(S_Q0)}, {s(S_Q0)}, {s(S_Q1)}',
                       f's_lshl_b32 {s(S_Q0)}, {s(S_Q0)}, 10',
                       f's_lshl_b32 {s(S_Q1)}, {s(S_J)}, 7',
                       f's_add_u32 {s(S_Q0)}, {s(S_Q0)}, {s(S_Q1)}',
                       ('t', f'buffer_load_dword {v(V_DUM)}, {v(V_TW1)}, {s(SRD_U, 4)}, {s(S_Q0)} offen', dict(nodst=True))])
            it.append([f's_lshr_b32 {s(S_Q0)}, {s(S_WG)}, 5',
                       f's_lshl_b32 {s(S_Q0)}, {s(S_Q0)}, 2',
                       f's_add_u32 {s(S_Q0)}, {s(S_Q0)}, {s(S_W)}',
                       f's_lshl_b32 {s(S_Q0)}, {s(S_Q0)}, 14',
                       f's_lshl_b32 {s(S_Q1)}, {s(S_J)}, 7',
                       f's_add_u32 {s(S_Q0)}, {s(S_Q0)}, {s(S_Q1)}',
                       ('t', f'buffer_load_dword {v(V_DUM)}, {v(V_TW2)}, {s(SRD_X, 4)}, {s(S_Q0)} offen', dict(nodst=True))])
        return it

    def w3_touch(self, b):
        with b.atomic():
            b(f's_cmp_eq_u32 {s(S_D3SEL)}, 0')
            b(f's_cselect_b32 {s(SRD_U)}, {s(P_WQKV)}, {s(P_WIN)}')
            b(f's_cselect_b32 {s(SRD_U + 1)}, {s(P_WQKV + 1)}, {s(P_WIN + 1)}')
            b(f's_mov_b32 {s(SRD_U + 2)}, {hex(512 * 2752)}')
            b(f's_cmov_b32 {s(SRD_U + 2)}, {hex(512 * 3072)}')
            b(f's_mov_b32 {s(SRD_U + 3)}, 0x20000')
            b(f's_mov_b32 {s(S_T0)}, 2752')
            b(f's_cmov_b32 {s(S_T0)}, 3072')
            b(f'v_and_b32 {v(V_T0)}, 15, {v(V_LANE)}')
            b(f'v_mul_lo_u32 {v(V_T0)}, {v(V_T0)}, {s(S_T0)}')
            b(f'v_bfe_u32 {v(V_T0 + 1)}, {v(V_LANE)}, 4, 1')
            b(f'v_mul_u32_u24 {v(V_T0 + 1)}, 124, {v(V_T0 + 1)}')
            b(f'v_add_u32 {v(V_T0)}, {v(V_T0)}, {v(V_T0 + 1)}')
            b(f's_max_i32 {s(S_T1)}, {s(S_D3COL)}, 0')
            b(f'v_add_u32 {v(V_T0)}, {s(S_T1)}, {v(V_T0)}')
            b(f'v_mov_b32 {v(V_T0 + 1)}, {hex(OOB)}')
            b(f'v_cmp_lt_u32 vcc, 31, {v(V_LANE)}')
            b(f'v_cndmask_b32 {v(V_T0)}, {v(V_T0)}, {v(V_T0 + 1)}, vcc')
            b(f's_lshr_b32 {s(S_T1)}, {s(S_WG)}, 5')
            b(f's_lshl2_add_u32 {s(S_T1)}, {s(S_T1)}, {s(S_W)}')
            b(f's_lshl_b32 {s(S_T1)}, {s(S_T1)}, 4')
            b(f's_mul_i32 {s(S_T1)}, {s(S_T1)}, {s(S_T0)}')
            b(f'buffer_load_dword {v(V_DUM)}, {v(V_T0)}, {s(SRD_U, 4)}, {s(S_T1)} offen', tag='t', nodst=True)

    def post_l1(self, b, role):
        it = []
        self.touch_setup(b)
        for p in (0, 1, 2, 3):
            it += w_piece_items(p, R2, 'w2')
        it += self.touch_items()
        if OPT.get('c0early', 1) == 1:
            it += a_chunk_items(0, 'f0')
        return it

    def w3_items(self, b, region=R0):
        b.flush()
        self.switch_slab(b, S_D3SEL, S_D3COL, S_D3MASK)
        for p in range(8):
            b.add(w_piece_items(p, region, 'w3'))
        if OPT.get('c0early', 1) == 2:
            b.add(a_chunk_items(0, 'f0'))

    def set_wr(self, b, region):
        with b.atomic():
            tr_addr(b, V_WR, False)
            if region:
                b(f'v_add_u32 {v(V_WR)}, {region}, {v(V_WR)}')
            b(f'v_xor_b32 {v(V_WR + 1)}, 64, {v(V_WR)}')

    def main_loop(self, b, orient, hooks=None, pop_every=1):
        hooks = hooks or {}
        D = 2

        def rd(K):
            wf = V_WF + 8 * (K & 3)
            for ch in range(2):
                for t in range(2):
                    b(f'ds_read_b64_tr_b16 {v(wf + 4 * ch + 2 * t, 2)}, {v(V_WR + ch)} offset:{2048 * K + 512 * t}')
        sv = b.period
        b.period = 0
        n0 = b.mark()
        for K in range(D):
            rd(K)
        for K in range(32):
            if K + D < 32:
                rd(K + D)
            wf = V_WF + 8 * (K & 3)
            x = a(A_X + 4 * K, 4)
            for ch in range(2):
                acc = V_ACC1 + 16 * ch
                c = '0' if K == 0 else v(acc, 16)
                if orient == 'T':
                    b(f'v_mfma_f32_32x32x16_bf16 {v(acc, 16)}, {v(wf + 4 * ch, 4)}, {x}, {c}')
                else:
                    b(f'v_mfma_f32_32x32x16_bf16 {v(acc, 16)}, {x}, {v(wf + 4 * ch, 4)}, {c}')
            for fn in hooks.get(K, []):
                fn(b, 4 if K + D < 32 else 0)
            if OPT.get('s3st') and self.s3flag and K in (7, 15, 19, 23, 27):
                stamp(b, {7: 11, 15: 13, 19: 15, 23: 19, 27: 22}[K])
            if K % pop_every == pop_every - 1:
                b.pop(1)
        b.weave_from(n0, G=5)
        b.period = sv

    def apipe_hooks(self, first_K, step):
        hooks = {}

        def mk_issue(p):
            return lambda b, younger: b.add(a_piece_items(p >> 1, p & 1, f'h{p & 1}'))

        def mk_move(p):
            def f(b, younger):
                b.ensure(f'a{p >> 1}_{p & 1}')
                b.wait_vm(f'a{p >> 1}_{p & 1}')
                a_piece_read(b, p >> 1, p & 1, f'h{p & 1}')
            return f

        def mk_refill(p):
            def f(b, younger):
                b(f's_waitcnt lgkmcnt({younger})')
                b.add(a_piece_items(p >> 1, p & 1, f'h{p & 1}'))
            return f
        return hooks, mk_issue, mk_move, mk_refill

    def z2_epilogue(self, b, mid=None):
        for g in range(4):
            gelu_group(b, [V_ACC0 + 8 * g + k for k in range(8)], V_TMP)
            if g == 0 and mid:
                mid()
        s1, s2 = V_ST, V_ST + 1
        t = V_TMP
        if OPT.get('pk', 1):
            p, q = t + 2, t + 4
            b(f'v_pk_add_f32 {v(p, 2)}, {v(V_ACC0, 2)}, {v(V_ACC0 + 2, 2)}')
            b(f'v_pk_mul_f32 {v(q, 2)}, {v(V_ACC0, 2)}, {v(V_ACC0, 2)}')
            for k in range(4, 32, 2):
                b(f'v_pk_add_f32 {v(p, 2)}, {v(p, 2)}, {v(V_ACC0 + k, 2)}')
            for k in range(2, 32, 2):
                b(f'v_pk_fma_f32 {v(q, 2)}, {v(V_ACC0 + k, 2)}, {v(V_ACC0 + k, 2)}, {v(q, 2)}')
            b(f'v_mov_b32 {v(s1)}, {v(p)}')
            b(f'v_mov_b32 {v(t)}, {v(p + 1)}')
            b(f'v_mov_b32 {v(s2)}, {v(q)}')
            b(f'v_mov_b32 {v(t + 1)}, {v(q + 1)}')
        else:
            b(f'v_add_f32 {v(s1)}, {v(V_ACC0)}, {v(V_ACC0 + 1)}')
            b(f'v_mul_f32 {v(s2)}, {v(V_ACC0)}, {v(V_ACC0)}')
            b(f'v_add_f32 {v(t)}, {v(V_ACC0 + 2)}, {v(V_ACC0 + 3)}')
            b(f'v_mul_f32 {v(t + 1)}, {v(V_ACC0 + 1)}, {v(V_ACC0 + 1)}')
            for k in range(4, 32, 2):
                b(f'v_add_f32 {v(s1)}, {v(s1)}, {v(V_ACC0 + k)}')
                b(f'v_add_f32 {v(t)}, {v(t)}, {v(V_ACC0 + k + 1)}')
            for k in range(2, 32, 2):
                b(f'v_fmac_f32 {v(s2)}, {v(V_ACC0 + k)}, {v(V_ACC0 + k)}')
                b(f'v_fmac_f32 {v(t + 1)}, {v(V_ACC0 + k + 1)}, {v(V_ACC0 + k + 1)}')
        with b.atomic():
            b(f'v_add_f32 {v(s1)}, {v(s1)}, {v(t)}')
            b(f'v_add_f32 {v(s2)}, {v(s2)}, {v(t + 1)}')
            b(f'v_permlane32_swap_b32 {v(s1)}, {v(s2)}')
            b(f'v_add_f32 {v(s1)}, {v(s1)}, {v(s2)}')
            b(f'v_mov_b32 {v(s2)}, {s(S_N)}')
            b(f's_mul_i32 {s(S_T0)}, {s(S_TB)}, 5632')
            b(f's_lshl_b32 {s(S_T1)}, {s(S_CG)}, 9')
            b(f's_add_u32 {s(S_T0)}, {s(S_T0)}, {s(S_T1)}')
            b(f's_add_u32 {s(S_T0)}, {s(S_T0)}, {WS_STATS}')
            b(f'buffer_store_dwordx2 {v(s1, 2)}, {v(V_L8)}, {s(SRD_WS, 4)}, {s(S_T0)} offen sc1', tag='st')
        stamp(b, 2)

    def stats_issue(self, b):
        with b.atomic():
            b(f's_mul_i32 {s(S_T5)}, {s(S_TB)}, 5632')
            b(f's_add_u32 {s(S_T5)}, {s(S_T5)}, {WS_STATS}')
            b(f's_add_u32 {s(S_T4)}, {s(S_T5)}, 4096')
            for js in range(11):
                so = S_T5 if js < 8 else S_T4
                off = 512 * js if js < 8 else 512 * js - 4096
                b(f'buffer_load_dwordx2 {v(V_STAT + 2 * js, 2)}, {v(V_L8)}, {s(SRD_WS, 4)}, {s(so)} offen offset:{off} sc1')

    def stats_check_code(self, b):
        t = V_TMP
        b(f'v_min3_u32 {v(t)}, {v(V_STAT + 1)}, {v(V_STAT + 3)}, {v(V_STAT + 5)}')
        b(f'v_max3_u32 {v(t + 1)}, {v(V_STAT + 1)}, {v(V_STAT + 3)}, {v(V_STAT + 5)}')
        for js in range(3, 11, 2):
            b(f'v_min3_u32 {v(t)}, {v(t)}, {v(V_STAT + 2 * js + 1)}, {v(V_STAT + 2 * js + 3)}')
            b(f'v_max3_u32 {v(t + 1)}, {v(t + 1)}, {v(V_STAT + 2 * js + 1)}, {v(V_STAT + 2 * js + 3)}')
        b(f'v_xor_b32 {v(t)}, {s(S_N)}, {v(t)}')
        b(f'v_xor_b32 {v(t + 1)}, {s(S_N)}, {v(t + 1)}')
        b(f'v_or_b32 {v(t)}, {v(t)}, {v(t + 1)}')
        b(f'v_cmp_ne_u32 vcc, 0, {v(t)}')

    def z2_norm(self, b, after_check=None):
        cont, slow = self.lab('ZC'), self.lab('ZS')
        with b.atomic():
            self.stats_check_code(b)
            b(f's_cbranch_vccnz {slow}')
            b.label(cont)
        if after_check:
            after_check()
        sb = Block('tmp')
        sb(f's_sleep 1')
        sb(f's_mul_i32 {s(S_T5)}, {s(S_TB)}, 5632')
        sb(f's_add_u32 {s(S_T5)}, {s(S_T5)}, {WS_STATS}')
        sb(f's_add_u32 {s(S_T4)}, {s(S_T5)}, 4096')
        for js in range(11):
            so = S_T5 if js < 8 else S_T4
            off = 512 * js if js < 8 else 512 * js - 4096
            sb(f'buffer_load_dwordx2 {v(V_STAT + 2 * js, 2)}, {v(V_L8)}, {s(SRD_WS, 4)}, {s(so)} offen offset:{off} sc1')
        sb('s_waitcnt vmcnt(0)')
        self.stats_check_code(sb)
        txt = '\n'.join('    ' + i.text for i in sb.ins)
        self.slow.append(f'''{slow}:
    s_mov_b32 {s(S_CNT)}, {SPIN_MAX}
{slow}_l:
{txt}
{slow_mark(30)}    s_cbranch_vccz {cont}
    s_sub_u32 {s(S_CNT)}, {s(S_CNT)}, 1
    s_cmp_lg_u32 {s(S_CNT)}, 0
    s_cbranch_scc1 {slow}_l
    s_branch {cont}''')
        t = V_TMP
        b(f'v_add_f32 {v(t)}, {v(V_STAT)}, {v(V_STAT + 2)}')
        b(f'v_add_f32 {v(t + 1)}, {v(V_STAT + 4)}, {v(V_STAT + 6)}')
        for js in range(4, 11, 2):
            b(f'v_add_f32 {v(t)}, {v(t)}, {v(V_STAT + 2 * js)}')
            if js + 1 < 11:
                b(f'v_add_f32 {v(t + 1)}, {v(t + 1)}, {v(V_STAT + 2 * js + 2)}')
        b(f'v_add_f32 {v(t)}, {v(t)}, {v(t + 1)}')
        b(f'v_mov_b32 {v(t + 1)}, {v(t)}')
        b(f'v_permlane32_swap_b32 {v(t)}, {v(t + 1)}')
        b(f'v_mul_f32 {v(t)}, {hex(f2u(1.0 / 688))}, {v(t)}')
        b(f'v_mul_f32 {v(t + 1)}, {hex(f2u(1.0 / 688))}, {v(t + 1)}')
        b(f'v_fma_f32 {v(t + 1)}, -{v(t)}, {v(t)}, {v(t + 1)}')
        b(f'v_max_f32 {v(t + 1)}, 0, {v(t + 1)}')
        b(f'v_add_f32 {v(t + 1)}, {hex(f2u(1e-5))}, {v(t + 1)}')
        b(f'v_rsq_f32 {v(t + 1)}, {v(t + 1)}')
        b(f'v_mul_f32 {v(t)}, {v(t)}, {v(t + 1)}')
        b(f'v_sub_f32 {v(t)}, 0, {v(t)}')
        w0 = t + 2
        r0 = t + 6
        with b.atomic():
            b(f's_lshl_b32 {s(S_T0)}, {s(S_W)}, 14')
            b(f's_add_u32 {s(S_T0)}, {s(S_T0)}, {(R0 + 8192) if OPT.get("aplan", 1) == 3 else (R2 + 8192)}')
            b(f'v_and_b32 {v(w0)}, 31, {v(V_LANE)}')
            b(f'v_lshrrev_b32 {v(w0 + 1)}, 5, {v(V_LANE)}')
            b(f'v_and_b32 {v(w0 + 2)}, 15, {v(V_LANE)}')
            b(f'v_xor_b32 {v(w0 + 1)}, {v(w0 + 1)}, {v(w0 + 2)}')
            b(f'v_lshlrev_b32 {v(w0 + 1)}, 3, {v(w0 + 1)}')
            b(f'v_lshl_add_u32 {v(w0)}, {v(w0)}, 7, {v(w0 + 1)}')
            b(f'v_add_u32 {v(w0)}, {s(S_T0)}, {v(w0)}')
            b(f'v_bfe_u32 {v(r0)}, {v(V_LANE)}, 2, 2')
            b(f'v_lshrrev_b32 {v(r0 + 1)}, 5, {v(V_LANE)}')
            b(f'v_lshl_add_u32 {v(r0)}, {v(r0 + 1)}, 3, {v(r0)}')
            b(f'v_bfe_u32 {v(r0 + 1)}, {v(V_LANE)}, 4, 1')
            b(f'v_and_b32 {v(r0 + 2)}, 3, {v(V_LANE)}')
            b(f'v_lshl_add_u32 {v(r0 + 1)}, {v(r0 + 1)}, 2, {v(r0 + 2)}')
            b(f'v_xor_b32 {v(r0 + 1)}, {v(r0 + 1)}, {v(r0)}')
            b(f'v_lshlrev_b32 {v(r0 + 1)}, 3, {v(r0 + 1)}')
            b(f'v_lshl_add_u32 {v(r0)}, {v(r0)}, 7, {v(r0 + 1)}')
            b(f'v_add_u32 {v(r0)}, {s(S_T0)}, {v(r0)}')
        ra = r0 + 1
        for bb in range(2):
            for tt in range(2):
                b(f'v_xor_b32 {v(ra + 2 * bb + tt)}, {8 * ((8 * bb) ^ (4 * tt))}, {v(r0)}')
        pk = V_PV
        for bb in range(2):
            for j in range(4):
                r = V_ACC0 + 16 * bb + 4 * j
                for k in range(4):
                    b(f'v_fma_f32 {v(r + k)}, {v(r + k)}, {v(t + 1)}, {v(t)}')
                b(f'v_cvt_pk_bf16_f32 {v(pk + 8 * bb + 2 * j)}, {v(r)}, {v(r + 1)}')
                b(f'v_cvt_pk_bf16_f32 {v(pk + 8 * bb + 2 * j + 1)}, {v(r + 2)}, {v(r + 3)}')
                K = 8 * bb + 2 * j
                if K:
                    b(f'v_xor_b32 {v(w0 + 1)}, {8 * K}, {v(w0)}')
                    ad = w0 + 1
                else:
                    ad = w0
                b(f'ds_write_b64 {v(ad)}, {v(pk + 8 * bb + 2 * j, 2)}')
        b.wait_lds()
        fr = V_TMP + 16
        for bb in range(2):
            for kq in range(2):
                for tt in range(2):
                    b(f'ds_read_b64_tr_b16 {v(fr + 8 * bb + 4 * kq + 2 * tt, 2)}, {v(ra + 2 * bb + tt)} offset:{512 * tt + 2048 * kq}')
        with b.atomic():
            b(f's_lshl_b32 {s(S_T0)}, {s(S_CG)}, 18')
            b(f's_lshl_b32 {s(S_T1)}, {s(S_TB)}, 11')
            b(f's_add_u32 {s(S_T0)}, {s(S_T0)}, {s(S_T1)}')
            b(f's_add_u32 {s(S_T0)}, {s(S_T0)}, {WS_Z2N}')
            b(f's_add_u32 {s(S_T1)}, {s(S_T0)}, {128 * 1024}')
            for bb in range(2):
                for kq in range(2):
                    so = S_T0 if bb == 0 else S_T1
                    b(f'buffer_store_dwordx4 {v(fr + 8 * bb + 4 * kq, 4)}, {v(V_L16)}, {s(SRD_WS, 4)}, {s(so)} offen offset:{1024 * kq} sc1', tag='z2n')
        stamp(b, 3)

    def flag_store(self, b, base, tagwait):
        b.wait_vm(tagwait)
        with b.atomic():
            b(f's_lshl4_add_u32 {s(S_T0)}, {s(S_RB)}, {s(S_CG)}')
            b(f's_lshl4_add_u32 {s(S_T0)}, {s(S_T0)}, {s(S_W)}')
            b(f's_lshl_b32 {s(S_T0)}, {s(S_T0)}, 2')
            b(f's_add_u32 {s(S_T0)}, {s(S_T0)}, {base}')
            b(f'v_mov_b32 {v(V_POLL)}, {s(S_N)}')
            b(f'buffer_store_dword {v(V_POLL)}, off, {s(SRD_WS, 4)}, {s(S_T0)} sc1', tag='flag')

    def t_epilogue(self, b, kind, acc, mid=None, midg=1):
        out = V_PV
        for g in range(4):
            if g == midg and mid:
                mid()
            xs = [acc + 8 * g + k for k in range(8)]
            if kind == 'gelu':
                gelu_group(b, xs, V_TMP)
            else:
                phi_group(b, xs, V_TMP)
            for k in range(4):
                b(f'v_cvt_pk_bf16_f32 {v(out + 4 * g + k)}, {v(xs[2 * k])}, {v(xs[2 * k + 1])}')
            so = S_O0 if g < 2 else S_O1
            b(f'buffer_store_dwordx4 {v(out + 4 * g, 4)}, {v(V_L16)}, {s(SRD_WS, 4)}, {s(so)} offen offset:{1024 * (g & 1)} sc1', tag='p1')

    def set_out_addr(self, b, kind, slab_code):
        with b.atomic():
            for l in slab_code:
                b(l)
            base, stride = (WS_PQ, 32768) if kind == 'q' else (WS_Z1F, 45056)
            b(f's_lshl_b32 {s(S_T4)}, {s(S_T4)}, 12')
            b(f's_add_u32 {s(S_T4)}, {s(S_T4)}, {base}')
            b(f's_mul_i32 {s(S_O0)}, {s(S_TB)}, {stride}')
            b(f's_add_u32 {s(S_O0)}, {s(S_O0)}, {s(S_T4)}')
            b(f's_add_u32 {s(S_O1)}, {s(S_O0)}, 2048')

    def k_epilogue(self, b):
        for g in range(4):
            xs = [V_ACC1 + 8 * g + k for k in range(8)]
            phi_group(b, xs, V_TMP)
            for k in range(4):
                b(f'v_cvt_pk_bf16_f32 {v(V_PK + 4 * g + k)}, {v(xs[2 * k])}, {v(xs[2 * k + 1])}')

    def v_epilogue(self, b):
        for k in range(16):
            b(f'v_cvt_pk_bf16_f32 {v(V_PV + k)}, {v(V_ACC1 + 2 * k)}, {v(V_ACC1 + 2 * k + 1)}')
        ones = V_TMP
        for k in range(4):
            b(f'v_mov_b32 {v(ones + k)}, 0x3f803f80')
        for par in range(2):
            for ch in range(2):
                g = 2 * ch + par
                kv, zz = V_KV + 16 * ch, V_KZ + 16 * ch
                c0 = '0' if par == 0 else v(kv, 16)
                c1 = '0' if par == 0 else v(zz, 16)
                b(f'v_mfma_f32_32x32x16_bf16 {v(kv, 16)}, {v(V_PK + 4 * g, 4)}, {v(V_PV + 4 * g, 4)}, {c0}')
                b(f'v_mfma_f32_32x32x16_bf16 {v(zz, 16)}, {v(V_PK + 4 * g, 4)}, {v(ones, 4)}, {c1}')

    def kv_finish(self, b, R0=R0):
        with b.atomic():
            b(f'v_and_b32 {v(V_T0)}, 31, {v(V_LANE)}')
            b(f'v_cmp_gt_u32 vcc, 16, {v(V_T0)}')
            for ch in range(2):
                kv, zz = V_KV + 16 * ch, V_KZ + 16 * ch
                for k in range(8):
                    b(f'v_cndmask_b32 {v(kv + k)}, {v(zz + k)}, {v(kv + k)}, vcc')
                for k in range(8, 16):
                    b(f'v_cndmask_b32 {v(kv + k)}, {v(kv + k)}, {v(zz + k)}, vcc')
            b('s_barrier')
            b(f's_lshl_b32 {s(S_T0)}, {s(S_W)}, 11')
            b(f's_add_u32 {s(S_T0)}, {s(S_T0)}, {R0}')
            b(f'v_add_u32 {v(V_T0)}, {s(S_T0)}, {v(V_L16)}')
            for d in range(4):
                for q in range(2):
                    b(f'ds_write_b128 {v(V_T0)}, {v(V_KV + 8 * d + 4 * q, 4)} offset:{8192 * d + 1024 * q}')
            b(f's_lshl_b32 {s(S_T0)}, {s(S_W)}, 13')
            b(f's_add_u32 {s(S_T0)}, {s(S_T0)}, {R0}')
            b(f'v_add_u32 {v(V_T0)}, {s(S_T0)}, {v(V_L16)}')
            b.wait_lds()
            b('s_barrier')
            X = V_KZ
            for src in range(4):
                for q in range(2):
                    b(f'ds_read_b128 {v(X + 8 * src + 4 * q, 4)}, {v(V_T0)} offset:{2048 * src + 1024 * q}')
            for k in range(8):
                b(f'v_add_f32 {v(X + k)}, {v(X + k)}, {v(X + 8 + k)}')
                b(f'v_add_f32 {v(X + 16 + k)}, {v(X + 16 + k)}, {v(X + 24 + k)}')
            for k in range(8):
                b(f'v_add_f32 {v(X + k)}, {v(X + k)}, {v(X + 16 + k)}')
            b(f's_lshl2_add_u32 {s(S_T0)}, {s(S_CG)}, {s(S_W)}')
            b(f's_lshl_b32 {s(S_T0)}, {s(S_T0)}, 15')
            b(f's_lshl_b32 {s(S_T1)}, {s(S_RB)}, 10')
            b(f's_add_u32 {s(S_T0)}, {s(S_T0)}, {s(S_T1)}')
            b(f's_add_u32 {s(S_T0)}, {s(S_T0)}, {WS_KVP}')
            for q in range(2):
                if q:
                    b(f's_add_u32 {s(S_T0)}, {s(S_T0)}, 16384')
                b(f'buffer_store_dwordx4 {v(X + 4 * q, 4)}, {v(V_L16)}, {s(SRD_WS, 4)}, {s(S_T0)} offen sc1', tag='p1')

    def pre_slab(self, b, tag):
        b.ensure(tag)
        b.wait_vm(tag)
        b('s_barrier')

    def mv_piece(self, b, p):
        b.ensure(f'a{p >> 1}_{p & 1}')
        b.wait_vm(f'a{p >> 1}_{p & 1}')
        a_piece_read(b, p >> 1, p & 1, f'h{p & 1}')

    def fetch_piece(self, b, p):
        b.add(a_piece_items(p >> 1, p & 1, f'h{p & 1}'))

    def mv_chunk(self, b, c, slot):
        b.ensure(f'a{c}_0')
        b.ensure(f'a{c}_1')
        b.wait_vm([f'a{c}_0', f'a{c}_1'])
        a_chunk_read(b, c, slot)

    def slab3_hooks(self, extra=None):
        h = {}

        def add(K, fn):
            h.setdefault(K, []).append(fn)
        K0 = OPT.get('k0', 20)
        if OPT.get('aplan', 1) == 2:
            for K, fn in (extra or {}).items():
                add(K, fn)
            return h
        add(K0, lambda b, y: self.mv_chunk(b, 0, 'f0'))
        add(K0 + 1, lambda b, y: (b(f's_waitcnt lgkmcnt({y})'), b.add(a_chunk_items(3, 'f0'))))
        add(K0 + 4, lambda b, y: self.mv_chunk(b, 1, 'f1'))
        add(K0 + 5, lambda b, y: (b(f's_waitcnt lgkmcnt({y})'), b.add(a_chunk_items(4, 'f1'))))
        add(K0 + 8, lambda b, y: self.mv_chunk(b, 2, 'f2'))
        add(K0 + 9, lambda b, y: (b(f's_waitcnt lgkmcnt({y})'), b.add(a_chunk_items(5, 'f2'))))
        for K, fn in (extra or {}).items():
            add(K, fn)
        return h

    def mid_a(self, b):
        if OPT.get('aplan', 1) == 2:
            return
        if not OPT.get('c0early', 1):
            b.add(a_chunk_items(0, 'f0'))
        b.add(a_chunk_items(1, 'f1'))

    def mid_b(self, b):
        pass

    def g_pass(self, b, R0=R0, hooks3=None):
        ga = V_T0 + 4
        b.wait_vm('gw')
        with b.atomic():
            b(f'v_lshrrev_b32 {v(ga)}, 5, {v(V_LANE)}')
            b(f'v_lshlrev_b32 {v(ga)}, 4, {v(ga)}')
            b(f's_lshl_b32 {s(S_T0)}, {s(S_W)}, 10')
            b(f's_add_u32 {s(S_T0)}, {s(S_T0)}, {R0}')
            b(f'v_add_u32 {v(ga)}, {s(S_T0)}, {v(ga)}')
        acc = V_ACC1
        sv = b.period
        b.period = 0
        hooks = hooks3 if hooks3 is not None else self.slab3_hooks()
        for K in range(32):
            wf = V_WF + 4 * (K & 3)
            if K == 0:
                for k2 in range(3):
                    b(f'ds_read_b128 {v(V_WF + 4 * k2, 4)}, {v(ga)} offset:{32 * k2}')
            if K + 3 < 32:
                b(f'ds_read_b128 {v(V_WF + 4 * ((K + 3) & 3), 4)}, {v(ga)} offset:{32 * (K + 3)}')
            b(f'v_mfma_f32_32x32x16_bf16 {v(acc, 16)}, {v(wf, 4)}, {a(A_X + 4 * K, 4)}, {"0" if K == 0 else v(acc, 16)}')
            for fn in hooks.get(K, []):
                fn(b, 1 if K + 3 < 32 else 0)
            b.pop(1)
        b.period = sv
        t = V_TMP
        b(f'v_mul_f32 {v(t)}, {hex(f2u(-LOG2E))}, {v(acc)}')
        b(f'v_exp_f32 {v(t)}, {v(t)}')
        b(f'v_add_f32 {v(t)}, 1.0, {v(t)}')
        b(f'v_rcp_f32 {v(t)}, {v(t)}')
        with b.atomic():
            b(f'v_and_b32 {v(t + 1)}, 31, {v(V_LANE)}')
            b(f'v_lshlrev_b32 {v(t + 1)}, 2, {v(t + 1)}')
            b(f's_lshl_b32 {s(S_T0)}, {s(S_TB)}, 7')
            b(f's_add_u32 {s(S_T0)}, {s(S_T0)}, {WS_GATE}')
            b(f'buffer_store_dword {v(t)}, {v(t + 1)}, {s(SRD_WS, 4)}, {s(S_T0)} offen sc1', tag='p1')

    def pre_epi3(self, b):
        if OPT.get('aplan', 1) == 2:
            b.add(a_chunk_items(1, 'f1'))
            b.add(a_chunk_items(2, 'f2'))

    def a_tail(self, b):
        b.flush()
        self.flag_store(b, WS_FP1, 'p1')

    def role_AB(self, role):
        b = St(self, 'ROLE' + role)
        b.label('L_role' + role)
        b.add(self.post_l1(b, role))
        orient = 'N' if role == 'A' else 'T'
        if OPT.get('w3z', 0):
            b.period = 9
            self.z2_epilogue(b, mid=lambda: self.w3_items(b))
            self.pre_slab(b, 'w2')
            self.set_wr(b, R2)
            stamp(b, 16)
            self.main_loop(b, orient, pop_every=1)
        else:
            b.period = 14
            self.z2_epilogue(b)
            self.pre_slab(b, 'w2')
            self.set_wr(b, R2)
            stamp(b, 16)
            self.w3_items(b)
            self.s3flag = (OPT.get('s3st') == 2)
            self.main_loop(b, orient, pop_every=1)
            self.s3flag = False
        stamp(b, 17)
        b.flush()
        b('s_barrier')
        self.stats_issue(b)
        b.period = 12
        if role == 'A':
            self.k_epilogue(b)
        else:
            self.set_out_addr(b, 'q', [f's_sub_u32 {s(S_T4)}, {s(S_CG)}, 8'])
            self.t_epilogue(b, 'phi', V_ACC1)
        stamp(b, 18)
        if OPT.get('aearly', 0):
            b.period = 7
            self.z2_norm(b, after_check=lambda: self.mid_a(b))
        else:
            self.z2_norm(b)
            self.mid_a(b)
        if OPT.get('aplan', 1) != 2:
            b.add(a_chunk_items(2, 'f2'))
        self.mid_b(b)
        self.pre_slab(b, 'w3')
        self.set_wr(b, R0)
        stamp(b, 20)
        hooks = self.slab3_hooks({OPT.get('kz', 12): lambda bb, y: self.flag_store(bb, WS_FZ2, 'z2n')})
        self.s3flag = (OPT.get('s3st') == 3)
        self.main_loop(b, orient, hooks)
        self.s3flag = False
        stamp(b, 21)
        b.period = 8
        late = OPT.get('s1late', 1)
        if not late:
            s1_issue(self, b)
        self.pre_epi3(b)
        if role == 'A':
            self.v_epilogue(b)
            if late:
                s1_issue(self, b)
            self.kv_finish(b)
        else:
            self.set_out_addr(b, 'z1', [f's_sub_u32 {s(S_T4)}, {s(S_CG)}, 8'])
            self.t_epilogue(b, 'gelu', V_ACC1, mid=(lambda: s1_issue(self, b)) if late else None, midg=2)
        stamp(b, 23)
        self.a_tail(b)
        b('s_branch L_p1_done')
        return b.b

    def p3_slab2_hooks(self):
        h = {}

        def add(K, fn):
            h.setdefault(K, []).append(fn)
        add(0, lambda b, y: (b.add(a_chunk_items(1, 'g1')), b.add(a_chunk_items(2, 'g2'))))
        k0, k1, k2 = OPT.get('m0', 12), OPT.get('m1', 26), OPT.get('m2', 99)
        add(k0, lambda b, y: self.mv_chunk(b, 0, 'f0'))
        add(k0 + 1, lambda b, y: (b(f's_waitcnt lgkmcnt({y})'), b.add(a_chunk_items(3, 'f0'))))
        if k1 < 32:
            add(k1, lambda b, y: self.mv_chunk(b, 1, 'g1'))
        if k2 < 32:
            add(k2, lambda b, y: self.mv_chunk(b, 2, 'g2'))
        return h

    def p3_late_moves(self, b):
        if OPT.get('m1', 26) >= 32:
            self.mv_chunk(b, 1, 'g1')
        if OPT.get('m2', 99) >= 32:
            self.mv_chunk(b, 2, 'g2')

    def p3_slab3_hooks(self, extra=None):
        h = {}

        def add(K, fn):
            h.setdefault(K, []).append(fn)
        add(14, lambda b, y: self.mv_chunk(b, 4, 'f0'))
        add(15, lambda b, y: (b(f's_waitcnt lgkmcnt({y})'), b.add(a_chunk_items(7, 'f0'))))
        add(22, lambda b, y: self.mv_chunk(b, 5, 'g1'))
        add(30, lambda b, y: self.mv_chunk(b, 6, 'g2'))
        for K, fn in (extra or {}).items():
            add(K, fn)
        return h

    def p3_mid(self, b):
        self.mv_chunk(b, 3, 'f0')
        b.wait_lds()
        b.add(a_chunk_items(4, 'f0'))
        b.add(a_chunk_items(5, 'g1'))
        b.add(a_chunk_items(6, 'g2'))

    def p3_tail(self, b):
        b.flush()
        self.flag_store(b, WS_FP1, 'p1')
        self.mv_chunk(b, 7, 'f0')
        b.wait_lds()

    def role3(self, role):
        b = St(self, 'ROLE' + role)
        b.label('L_role' + role)
        z2 = role in 'AB'
        orient = 'N' if role == 'A' else 'T'
        b.add(self.post_l1(b, role))
        if z2:
            b.period = 14
            self.z2_epilogue(b)
        else:
            b.period = 8
            self.set_out_addr(b, 'q', [f's_sub_u32 {s(S_T4)}, {s(S_CG)}, 8'])
            self.t_epilogue(b, 'phi', V_ACC0)
        self.pre_slab(b, 'w2')
        self.set_wr(b, R2)
        b.flush()
        stamp(b, 16)
        self.main_loop(b, orient, self.p3_slab2_hooks())
        stamp(b, 17)
        b.flush()
        b('s_barrier')
        if z2:
            self.stats_issue(b)
        if role != 'D':
            self.w3_items(b, R2)
        else:
            srd(b, SRD_T, P_GW, 1024)
            b(f's_lshl_b32 {s(S_T0)}, {s(S_W)}, 10')
            b(f's_add_u32 m0, {s(S_T0)}, {R2}')
            b(f's_lshl_b32 {s(S_T0)}, {s(S_ROT)}, 7')
            b(f'v_add_u32 {v(V_T0)}, {s(S_T0)}, {v(V_L16)}')
            b(f'v_and_b32 {v(V_T0)}, 1023, {v(V_T0)}')
            b(f'buffer_load_dwordx4 {v(V_T0)}, {s(SRD_T, 4)}, 0 offen lds', tag='gw')
        b.period = OPT.get('p3p', 12)
        if role == 'A':
            self.k_epilogue(b)
        elif role == 'B':
            self.set_out_addr(b, 'q', [f's_sub_u32 {s(S_T4)}, {s(S_CG)}, 8'])
            self.t_epilogue(b, 'phi', V_ACC1)
        elif role == 'C':
            self.set_out_addr(b, 'z1', [f's_lshl_b32 {s(S_T4)}, {s(S_CG)}, 1', f's_sub_u32 {s(S_T4)}, {s(S_T4)}, 19'])
            self.t_epilogue(b, 'gelu', V_ACC1)
        else:
            self.set_out_addr(b, 'z1', [f's_sub_u32 {s(S_T4)}, {s(S_CG)}, 5'])
            self.t_epilogue(b, 'gelu', V_ACC1)
        stamp(b, 18)
        self.p3_late_moves(b)
        if z2:
            self.z2_norm(b)
        self.p3_mid(b)
        if role != 'D':
            self.pre_slab(b, 'w3')
            stamp(b, 20)
            extra = {OPT.get('kz', 12): lambda bb, y: self.flag_store(bb, WS_FZ2, 'z2n')} if z2 else None
            self.main_loop(b, orient, self.p3_slab3_hooks(extra))
            stamp(b, 21)
            b.period = 8
            if role == 'A':
                self.v_epilogue(b)
                s1_issue(self, b)
                self.kv_finish(b, R2)
            elif role == 'B':
                self.set_out_addr(b, 'z1', [f's_sub_u32 {s(S_T4)}, {s(S_CG)}, 8'])
                self.t_epilogue(b, 'gelu', V_ACC1, mid=lambda: s1_issue(self, b), midg=2)
            else:
                self.set_out_addr(b, 'z1', [f's_lshl_b32 {s(S_T4)}, {s(S_CG)}, 1', f's_sub_u32 {s(S_T4)}, {s(S_T4)}, 18'])
                self.t_epilogue(b, 'gelu', V_ACC1, mid=lambda: s1_issue(self, b), midg=2)
        else:
            self.g_pass(b, R2, self.p3_slab3_hooks())
            s1_issue(self, b)
        stamp(b, 23)
        self.p3_tail(b)
        b('s_branch L_p1_done')
        return b.b

    def role_CD(self, role):
        b = St(self, 'ROLE' + role)
        b.label('L_role' + role)
        b.add(self.post_l1(b, role))
        b.period = 8
        self.set_out_addr(b, 'q', [f's_sub_u32 {s(S_T4)}, {s(S_CG)}, 8'])
        self.t_epilogue(b, 'phi', V_ACC0)
        self.pre_slab(b, 'w2')
        self.set_wr(b, R2)
        if role == 'C':
            self.w3_items(b)
        else:
            b.flush()
            srd(b, SRD_T, P_GW, 1024)
            b(f's_lshl_b32 {s(S_T0)}, {s(S_W)}, 10')
            b(f's_add_u32 m0, {s(S_T0)}, {R0}')
            b(f's_lshl_b32 {s(S_T0)}, {s(S_ROT)}, 7')
            b(f'v_add_u32 {v(V_T0)}, {s(S_T0)}, {v(V_L16)}')
            b(f'v_and_b32 {v(V_T0)}, 1023, {v(V_T0)}')
            b(f'buffer_load_dwordx4 {v(V_T0)}, {s(SRD_T, 4)}, 0 offen lds', tag='gw')
            if OPT.get('c0early', 1) == 2:
                b.add(a_chunk_items(0, 'f0'))
        self.main_loop(b, 'T', pop_every=1)
        b.flush()
        b('s_barrier')
        self.mid_a(b)
        if OPT.get('aplan', 1) != 2:
            b.add(a_chunk_items(2, 'f2'))
        b.period = 12
        if role == 'C':
            self.set_out_addr(b, 'z1', [f's_lshl_b32 {s(S_T4)}, {s(S_CG)}, 1', f's_sub_u32 {s(S_T4)}, {s(S_T4)}, 19'])
            self.t_epilogue(b, 'gelu', V_ACC1)
            self.mid_b(b)
            self.pre_slab(b, 'w3')
            self.set_wr(b, R0)
            self.main_loop(b, 'T', self.slab3_hooks())
            b.period = 8
            late = OPT.get('s1late', 1)
            if not late:
                s1_issue(self, b)
            self.pre_epi3(b)
            self.set_out_addr(b, 'z1', [f's_lshl_b32 {s(S_T4)}, {s(S_CG)}, 1', f's_sub_u32 {s(S_T4)}, {s(S_T4)}, 18'])
            self.t_epilogue(b, 'gelu', V_ACC1, mid=(lambda: s1_issue(self, b)) if late else None, midg=2)
        else:
            self.set_out_addr(b, 'z1', [f's_sub_u32 {s(S_T4)}, {s(S_CG)}, 5'])
            self.t_epilogue(b, 'gelu', V_ACC1)
            self.mid_b(b)
            self.g_pass(b)
            s1_issue(self, b)
            self.pre_epi3(b)
        self.a_tail(b)
        b('s_branch L_p1_done')
        return b.b

    def build(self):
        P = self.prologue()
        LL = self.slab1(True)
        LP = self.slab1(False) if not OPT.get('sym', 1) else None
        if OPT.get('aplan', 1) == 3:
            A, B, C, D = [self.role3(r) for r in 'ABCD']
        else:
            A = self.role_AB('A')
            B = self.role_AB('B')
            C = self.role_CD('C')
            D = self.role_CD('D')
        E1 = St(self, 'E1')
        E1.label('L_p1_done')
        stamp(E1, 4)
        dstamp(E1, 4)
        from phase23 import emit_phase23
        P2, PH, PL, P3b = emit_phase23(self)
        END = self.blk('END')
        END.label('L_END')
        END('s_endpgm')
        P3 = Block('PRO_w3')
        P3.ins = [i for i in P.ins if not i.meta.get('loader')]
        rests = [[P2, PH, P3b], [P2, PL, P3b]]
        paths = [[P, LL, R, E1.b] + rest + [END] for R in (A, B, C, D) for rest in rests]
        if LP is not None:
            paths += [[P3, LP, R, E1.b] + rest + [END] for R in (A, B, C, D) for rest in rests]
        finalize(self.blocks, paths)

    def text(self):
        out = []
        for b in self.blocks:
            out.append(f'; ---- {b.name}')
            out.append(render(b))
        return '\n'.join(out) + '\n' + '\n'.join(self.slow) + '\n'


HEADER = '''; Fused gated-mix kernel: linear attention + gMLP, single persistent launch (256 workgroups x 256 threads)
; @launch grid=(256,1,1) block=(256,1,1) lds=163840
.amdgcn_target "amdgcn-amd-amdhsa--gfx950"
.text
.globl {k}
.p2align 8
.type {k},@function
{k}:
'''
FOOTER = '''
L_code_end:
    s_endpgm
.section .rodata,"a"
.p2align 6
.amdhsa_kernel {k}
  .amdhsa_next_free_vgpr 512
  .amdhsa_next_free_sgpr 102
  .amdhsa_accum_offset 256
  .amdhsa_group_segment_fixed_size 0
  .amdhsa_kernarg_size 96
  .amdhsa_user_sgpr_count 2
  .amdhsa_user_sgpr_kernarg_segment_ptr 1
  .amdhsa_system_sgpr_workgroup_id_x 1
  .amdhsa_float_denorm_mode_32 3
.end_amdhsa_kernel
'''


def generate(**opt):
    OPT.update(opt)
    g = Gen()
    g.build()
    return HEADER.format(k=KNAME) + g.text() + FOOTER.format(k=KNAME)


if __name__ == '__main__':
    opt = {}
    for arg in sys.argv[2:]:
        k, val = arg.split('=')
        opt[k] = int(val) if val.lstrip('-').isdigit() else val
    import gen as _g
    txt = _g.generate(**opt)
    open(sys.argv[1], 'w').write(txt)
```

```python
import sys, struct, math
from collections import deque
from asmlib import *

KNAME = 'gated_mix__linear_attn_block__mixer_gmlp__prompt_kernel'
OPT = dict(stamps=0, rot=1, touch=0, late=0, map=0, cpf=0)


def v(a, n=1):
    return f'v{a}' if n == 1 else f'v[{a}:{a + n - 1}]'


def a(x, n=1):
    return f'a{x}' if n == 1 else f'a[{x}:{x + n - 1}]'


def s(x, n=1):
    return f's{x}' if n == 1 else f's[{x}:{x + n - 1}]'


WS_EPOCH = 0
WS_FZ2 = 0x10000
WS_FP1 = 0x20000
WS_FY = 0x30000
WS_FKV = 0x40000
WS_GATE = 0x50000
WS_KVF = 0x60000
WS_STATS = 0x80000
WS_KVP = 0x100000
WS_Z2N = 0x200000
WS_Z1F = 0x500000
WS_PQ = 0x800000
WS_Y = 0xB00000
WS_DBG = 0x1000000
WS_SIZE = 0x10000000
NONCE_K = 0x9E3779B1
OOB = 0x40000000
SPIN_MAX = 20000

R0 = 0
R1 = 65536
R2 = 98304
LDS_BYTES = 163840

S_WG = 2
SRD_A = 4
SRD_U = 8
S_Q0, S_Q1 = 12, 13
S_AS = 14
S_ROT = 15
S_ROT2 = 3
P_X, P_WQKV, P_WO, P_BX, P_WIN, P_WSP, P_BSP, P_WOUT = 16, 18, 20, 22, 24, 26, 28, 30
P_GW, P_OUT, P_DBG, P_WS = 32, 34, 36, 38
SRD_X = 40
SRD_W = 44
SRD_WS = 48
SRD_T = 52
S_W = 56
S_RB, S_CG, S_I, S_J = 57, 58, 59, 60
S_N = 61
S_T0, S_T1, S_T2, S_T3, S_T4, S_T5 = 64, 65, 66, 67, 68, 69
S_XL, S_XS, S_WL, S_WSO = 70, 71, 72, 73
S_RS, S_COL, S_MASK = 74, 75, 76
S_O0, S_O1 = 77, 78
S_TB = 79
S_RS64 = 80
S_LOG2E, S_EPS = 82, 83
S_CNT = 86
S_PKB, S_PK1, S_PKL = 62, 84, 100
S_XG, S_XLW, S_WGB = 84, 85, 87
S_KC = 91
S_D2COL, S_D2MASK, S_D2SEL = 88, 89, 90
S_D3COL, S_D3MASK, S_D3SEL = 92, 93, 94
S_T6, S_T7 = 96, 97
S_VCC2 = 98

V_LANE = 0
V_T0 = 1
V_DUM = 7
V_XD = 8
V_WD = 12
V_XRO = 14
V_XRT = 18
V_WR = 22
V_L16 = 24
V_L8 = 25
V_GA = 26
V_NON = 27
V_ST = 28
V_POLL = 30
V_AR = 32
V_E = 36
V_GA2 = 38
V_AD = 40
V_TCH = 44
V_BSP = 45
V_TW1, V_TW2 = 46, 47
V_ACC0 = 64
V_ACC1 = 96
V_WF = 128
V_TMP = 160
V_PK = 192
V_PV = 208
V_STAT = 224
V_KV = 64
V_KZ = 224
A_X = 128


def NT(k):
    return ' nt' if OPT.get('nt', 0) & k else ''


def f2u(x):
    return struct.unpack('<I', struct.pack('<f', x))[0]


LOG2E = 1.4426950408889634
GELU_A_F = -2.0 * LOG2E * math.sqrt(2.0 / math.pi)
GELU_A = f2u(GELU_A_F)
GELU_B = f2u(GELU_A_F * 0.044715)


class St:
    def __init__(self, g, name):
        self.g = g
        self.b = g.blk(name)
        self.q = deque()
        self.period = 0
        self.cnt = 0
        self.lock = 0

    def __call__(self, text, tag=None, **meta):
        r = self.b(text, tag=tag, **meta)
        if self.period and not self.lock and self.q:
            self.cnt += 1
            if self.cnt >= self.period:
                self.pop()
        return r

    def pop(self, n=1):
        for _ in range(n):
            if not self.q:
                return
            item = self.q.popleft()
            for x in item:
                if isinstance(x, tuple):
                    self.b(x[1], tag=x[0], **(x[2] if len(x) > 2 else {}))
                else:
                    self.b(x)
        self.cnt = 0

    def add(self, items):
        self.q.extend(items)

    def flush(self):
        self.pop(len(self.q))

    def ensure(self, tag):
        def has(item):
            return any(isinstance(x, tuple) and x[0] == tag for x in item)
        while any(has(i) for i in self.q):
            self.pop(1)

    def label(self, n):
        self.b.label(n)

    def mark(self):
        return len(self.b.ins)

    def weave_from(self, n0, G=5, adv=2):
        if OPT.get('weave', 1):
            self.b.ins[n0:] = weave(self.b.ins[n0:], G, adv)

    def wait_vm(self, t):
        self.b.wait_vm(t)

    def wait_lds(self):
        self.b.wait_lds()

    class _L:
        def __init__(self, st):
            self.st = st

        def __enter__(self):
            self.st.lock += 1

        def __exit__(self, *a):
            self.st.lock -= 1

    def atomic(self):
        return St._L(self)


def gelu_group(b, xs, tmp):
    n = len(xs)
    if OPT.get('pk', 1):
        x0 = xs[0]
        for k in range(0, n, 2):
            b(f'v_pk_mul_f32 {v(tmp + k, 2)}, {v(x0 + k, 2)}, {v(x0 + k, 2)}')
        for k in range(0, n, 2):
            b(f'v_pk_fma_f32 {v(tmp + k, 2)}, {v(tmp + k, 2)}, {s(S_PKB, 2)}, {v(V_GA2, 2)}')
        for k in range(0, n, 2):
            b(f'v_pk_mul_f32 {v(tmp + k, 2)}, {v(tmp + k, 2)}, {v(x0 + k, 2)}')
        for k in range(n):
            b(f'v_exp_f32 {v(tmp + k)}, {v(tmp + k)}')
        for k in range(0, n, 2):
            b(f'v_pk_add_f32 {v(tmp + k, 2)}, {v(tmp + k, 2)}, {s(S_PK1, 2)}')
        for k in range(n):
            b(f'v_rcp_f32 {v(tmp + k)}, {v(tmp + k)}')
        for k in range(0, n, 2):
            b(f'v_pk_mul_f32 {v(x0 + k, 2)}, {v(x0 + k, 2)}, {v(tmp + k, 2)}')
        return
    for k in range(n):
        b(f'v_mul_f32 {v(tmp + k)}, {v(xs[k])}, {v(xs[k])}')
    for k in range(n):
        b(f'v_fmamk_f32 {v(tmp + k)}, {v(tmp + k)}, {hex(GELU_B)}, {v(V_GA)}')
    for k in range(n):
        b(f'v_mul_f32 {v(tmp + k)}, {v(tmp + k)}, {v(xs[k])}')
    for k in range(n):
        b(f'v_exp_f32 {v(tmp + k)}, {v(tmp + k)}')
    for k in range(n):
        b(f'v_add_f32 {v(tmp + k)}, 1.0, {v(tmp + k)}')
    for k in range(n):
        b(f'v_rcp_f32 {v(tmp + k)}, {v(tmp + k)}')
    for k in range(n):
        b(f'v_mul_f32 {v(xs[k])}, {v(xs[k])}, {v(tmp + k)}')


def phi_group(b, xs, tmp):
    n = len(xs)
    if OPT.get('pk', 1):
        x0 = xs[0]
        for k in range(0, n, 2):
            b(f'v_pk_mul_f32 {v(tmp + k, 2)}, {v(x0 + k, 2)}, {s(S_PKL, 2)}')
        for k in range(n):
            b(f'v_exp_f32_e64 {v(tmp + k)}, {v(tmp + k)} clamp')
        for k in range(n):
            b(f'v_max_f32 {v(xs[k])}, {s(S_EPS)}, {v(xs[k])}')
        for k in range(0, n, 2):
            b(f'v_pk_add_f32 {v(x0 + k, 2)}, {v(x0 + k, 2)}, {v(tmp + k, 2)}')
        return
    for k in range(n):
        b(f'v_mul_f32 {v(tmp + k)}, {s(S_LOG2E)}, {v(xs[k])}')
    for k in range(n):
        b(f'v_exp_f32_e64 {v(tmp + k)}, {v(tmp + k)} clamp')
    for k in range(n):
        b(f'v_max_f32 {v(xs[k])}, {s(S_EPS)}, {v(xs[k])}')
    for k in range(n):
        b(f'v_add_f32 {v(xs[k])}, {v(xs[k])}, {v(tmp + k)}')


def srd(b, base, ptr, nrec):
    b(f's_mov_b32 {s(base)}, {s(ptr)}')
    b(f's_mov_b32 {s(base + 1)}, {s(ptr + 1)}')
    b(f's_mov_b32 {s(base + 2)}, {hex(nrec)}')
    b(f's_mov_b32 {s(base + 3)}, 0x20000')


def dma4_voffsets(b, dst, RS):
    t0, t1, t2 = V_T0, V_T0 + 1, V_T0 + 2
    b(f'v_lshrrev_b32 {v(t0)}, 3, {v(V_LANE)}')
    b(f'v_and_b32 {v(t1)}, 7, {v(V_LANE)}')
    b(f'v_lshrrev_b32 {v(t2)}, 4, {v(V_LANE)}')
    b(f'v_xor_b32 {v(t1)}, {v(t1)}, {v(t2)}')
    b(f'v_lshlrev_b32 {v(t1)}, 4, {v(t1)}')
    b(f'v_mul_u32_u24 {v(t0)}, {RS}, {v(t0)}')
    b(f'v_add_u32 {v(dst)}, {v(t0)}, {v(t1)}')
    b(f'v_xor_b32 {v(t1)}, 64, {v(t1)}')
    b(f'v_add_u32 {v(t0)}, {v(t0)}, {v(t1)}')
    b(f'v_add_u32 {v(dst + 1)}, {8 * RS - 1024}, {v(t0)}')
    b(f'v_add_u32 {v(dst + 2)}, {16 * RS - 2048}, {v(dst)}')
    b(f'v_add_u32 {v(dst + 3)}, {24 * RS - 3072}, {v(t0)}')


def frag_read_addrs(b, dst):
    t0, t1, t2 = V_T0, V_T0 + 1, V_T0 + 2
    b(f'v_and_b32 {v(t0)}, 31, {v(V_LANE)}')
    b(f'v_lshrrev_b32 {v(t1)}, 5, {v(V_LANE)}')
    b(f'v_bfe_u32 {v(t2)}, {v(V_LANE)}, 1, 3')
    b(f'v_xor_b32 {v(t1)}, {v(t1)}, {v(t2)}')
    b(f'v_lshlrev_b32 {v(t1)}, 4, {v(t1)}')
    b(f'v_lshl_add_u32 {v(dst)}, {v(t0)}, 7, {v(t1)}')
    for kk in range(1, 4):
        b(f'v_xor_b32 {v(dst + kk)}, {32 * kk}, {v(dst)}')


def tr_addr(b, dst, pi):
    t0, t1 = V_T0, V_T0 + 1
    b(f'v_bfe_u32 {v(t0)}, {v(V_LANE)}, 2, 2')
    b(f'v_lshrrev_b32 {v(t1)}, 5, {v(V_LANE)}')
    b(f'v_lshl_add_u32 {v(t1)}, {v(t1)}, {2 if pi else 3}, {v(t0)}')
    b(f'v_lshlrev_b32 {v(t1)}, 7, {v(t1)}')
    b(f'v_lshrrev_b32 {v(t0)}, 1, {v(t0)}')
    b(f'v_lshl_add_u32 {v(t1)}, {v(t0)}, 6, {v(t1)}')
    b(f'v_bfe_u32 {v(t0)}, {v(V_LANE)}, 4, 1')
    b(f'v_lshl_add_u32 {v(t1)}, {v(t0)}, 5, {v(t1)}')
    b(f'v_and_b32 {v(t0)}, 3, {v(V_LANE)}')
    b(f'v_lshl_add_u32 {v(dst)}, {v(t0)}, 3, {v(t1)}')


def wd_voffsets(b):
    t0, t1, t2 = V_T0, V_T0 + 1, V_T0 + 2
    b(f'v_bfe_u32 {v(t0)}, {v(V_LANE)}, 2, 1')
    b(f'v_bfe_u32 {v(t1)}, {v(V_LANE)}, 4, 1')
    b(f'v_xor_b32 {v(t0)}, {v(t0)}, {v(t1)}')
    b(f'v_and_b32 {v(t1)}, 3, {v(V_LANE)}')
    b(f'v_lshlrev_b32 {v(t1)}, 4, {v(t1)}')
    b(f'v_lshl_add_u32 {v(t0)}, {v(t0)}, 6, {v(t1)}')
    b(f'v_lshrrev_b32 {v(t1)}, 3, {v(V_LANE)}')
    b(f'v_mul_lo_u32 {v(t1)}, {v(t1)}, {s(S_RS)}')
    b(f'v_add_u32 {v(t1)}, {v(t1)}, {v(t0)}')
    b(f'v_add_u32 {v(V_WD)}, {s(S_COL)}, {v(t1)}')
    b(f's_lshl_b32 {s(S_T0)}, {s(S_RS)}, 3')
    b(f's_sub_u32 {s(S_T0)}, {s(S_T0)}, 1024')
    b(f'v_add_u32 {v(V_WD + 1)}, {s(S_T0)}, {v(V_WD)}')
    b(f'v_mov_b32 {v(t2)}, {hex(OOB)}')
    b(f'v_cmp_gt_u32 vcc, {s(S_MASK)}, {v(t0)}')
    b(f'v_cndmask_b32 {v(V_WD)}, {v(V_WD)}, {v(t2)}, vcc')
    b(f'v_cndmask_b32 {v(V_WD + 1)}, {v(V_WD + 1)}, {v(t2)}, vcc')
    b(f's_lshl_b32 {s(S_RS64)}, {s(S_RS)}, 6')
    b(f's_lshl_b32 {s(S_T0)}, {s(S_RS)}, 4')
    b(f's_mul_i32 {s(S_WSO)}, {s(S_T0)}, {s(S_W)}')


def set_w_srd(b, sel):
    b(f's_cmp_eq_u32 {s(sel)}, 0')
    b(f's_cselect_b32 {s(SRD_W)}, {s(P_WQKV)}, {s(P_WIN)}')
    b(f's_cselect_b32 {s(SRD_W + 1)}, {s(P_WQKV + 1)}, {s(P_WIN + 1)}')
    b(f's_mov_b32 {s(SRD_W + 2)}, {hex(512 * 2752)}')
    b(f's_cmov_b32 {s(SRD_W + 2)}, {hex(512 * 3072)}')
    b(f's_mov_b32 {s(SRD_W + 3)}, 0x20000')


def w_piece_items(p, region, tag):
    return [
        [f's_add_u32 {s(S_Q0)}, {s(S_ROT)}, {p}',
         f's_and_b32 {s(S_Q0)}, {s(S_Q0)}, 7',
         f's_mul_i32 {s(S_Q0)}, {s(S_Q0)}, {s(S_RS64)}',
         f's_add_u32 {s(S_Q0)}, {s(S_Q0)}, {s(S_WSO)}',
         f's_add_u32 m0, {s(S_WL)}, {region + 8192 * p}',
         (tag, f'buffer_load_dwordx4 {v(V_WD)}, {s(SRD_W, 4)}, {s(S_Q0)} offen{NT(2)} lds')],
        [(tag, f'buffer_load_dwordx4 {v(V_WD + 1)}, {s(SRD_W, 4)}, {s(S_Q0)} offen offset:1024{NT(2)} lds')],
    ]


def x_chunk_items(c, tag):
    it = []
    for i in range(4):
        l = []
        if i == 0:
            l = [f's_add_u32 {s(S_Q0)}, {s(S_ROT)}, {c}',
                 f's_and_b32 {s(S_Q0)}, {s(S_Q0)}, 7',
                 f's_lshl_b32 {s(S_Q0)}, {s(S_Q0)}, 7',
                 f's_add_u32 {s(S_Q0)}, {s(S_Q0)}, {s(S_XS)}',
                 f's_add_u32 m0, {s(S_XL)}, {16384 * (c % 4)}']
        l.append((tag, f'buffer_load_dwordx4 {v(V_XD + i)}, {s(SRD_X, 4)}, {s(S_Q0)} offen offset:{1024 * i}{NT(4)} lds'))
        it.append(l)
    return it


def l1_items(c):
    tag = f'x{c}'
    slot = R1 + 16384 * (c % 3)
    it = []
    for m in range(4):
        l = []
        if m == 0:
            l = [f's_add_u32 {s(S_KC)}, {s(S_ROT)}, {c}',
                 f's_and_b32 {s(S_KC)}, {s(S_KC)}, 7',
                 f's_lshl_b32 {s(S_Q0)}, {s(S_KC)}, 7',
                 f's_add_u32 {s(S_Q0)}, {s(S_Q0)}, {s(S_XG)}',
                 f's_add_u32 m0, {s(S_XLW)}, {slot}']
        else:
            l = [f's_add_u32 {s(S_Q0)}, {s(S_Q0)}, 7168']
        l.append((tag, f'buffer_load_dwordx4 {v(V_XD + (m & 1))}, {s(SRD_X, 4)}, {s(S_Q0)} offen offset:{1024 * m} lds'))
        it.append(l)
    it.append([f's_add_u32 {s(S_Q0)}, {s(S_Q0)}, {7168 + 4096}',
               f's_add_u32 m0, {s(S_XLW)}, {slot + 4096}',
               (tag, f'buffer_load_dwordx4 {v(V_XD)}, {s(SRD_X, 4)}, {s(S_Q0)} offen lds')])
    return it


def l1_item5(g, b, c):
    tag = f'x{c}'
    l0, l1 = g.lab('M5'), g.lab('M5')
    b.b(f's_cmp_eq_u32 {s(S_W)}, 0')
    b.b(f's_cbranch_scc0 {l0}')
    b.b(f's_add_u32 {s(S_Q0)}, {s(S_Q0)}, 7168')
    b.b(f'buffer_load_dwordx4 {v(V_XD + 1)}, {s(SRD_X, 4)}, {s(S_Q0)} offen offset:1024 lds', nocount=True)
    b.b(f's_branch {l1}')
    b.b.label(l0)
    b.b(f's_mul_i32 {s(S_Q1)}, {s(S_KC)}, {s(S_RS64)}')
    b.b(f's_sub_u32 {s(S_Q0)}, {s(S_WGB)}, 1')
    b.b(f's_lshl_b32 {s(S_T0)}, {s(S_Q0)}, 10')
    b.b(f's_add_u32 m0, {s(S_T0)}, {R0 + 8192 * c}')
    b.b(f's_lshl_b32 {s(S_T0)}, {s(S_RS)}, 3')
    b.b(f's_mul_i32 {s(S_Q0)}, {s(S_Q0)}, {s(S_T0)}')
    b.b(f's_add_u32 {s(S_Q0)}, {s(S_Q0)}, {s(S_Q1)}')
    b.b(f'buffer_load_dwordx4 {v(V_WD)}, {s(SRD_W, 4)}, {s(S_Q0)} offen lds', tag=tag)
    b.b.label(l1)


def l1_w_items(c):
    tag = f'x{c}'
    return [[f's_mul_i32 {s(S_Q1)}, {s(S_KC)}, {s(S_RS64)}',
             f's_lshl_b32 {s(S_Q0)}, {s(S_WGB)}, 10',
             f's_add_u32 m0, {s(S_Q0)}, {R0 + 8192 * c}',
             f's_lshl_b32 {s(S_Q0)}, {s(S_RS)}, 3',
             f's_mul_i32 {s(S_Q0)}, {s(S_Q0)}, {s(S_WGB)}',
             f's_add_u32 {s(S_Q0)}, {s(S_Q0)}, {s(S_Q1)}',
             (tag, f'buffer_load_dwordx4 {v(V_WD)}, {s(SRD_W, 4)}, {s(S_Q0)} offen lds')],
            [(tag, f'buffer_load_dwordx4 {v(V_WD + 1)}, {s(SRD_W, 4)}, {s(S_Q0)} offen offset:1024 lds')]]


def a_slot(kind):
    return {'h0': (13, R1), 'h1': (13, R1 + 4096), 'f0': (13, R1), 'f1': (14, R2), 'f2': (14, R2 + 8192),
            'g1': (14, R0), 'g2': (14, R0 + 8192)}[kind]


def a_piece_items(c, tb, slot, off=0):
    sh, base = a_slot(slot)
    it = []
    for i in range(4):
        l = []
        if i == 0:
            l = [f's_add_u32 {s(S_Q0)}, {s(S_ROT2)}, {c}',
                 f's_and_b32 {s(S_Q0)}, {s(S_Q0)}, 7',
                 f's_lshl_b32 {s(S_Q0)}, {s(S_Q0)}, 7',
                 f's_add_u32 {s(S_Q0)}, {s(S_Q0)}, {s(S_AS)}']
            if tb:
                l.append(f's_add_u32 {s(S_Q0)}, {s(S_Q0)}, {32 * 4096}')
            l += [f's_lshl_b32 {s(S_Q1)}, {s(S_W)}, {sh}',
                  f's_add_u32 m0, {s(S_Q1)}, {base + off}']
        l.append((f'a{c}_{tb}', f'buffer_load_dwordx4 {v(V_AD + i)}, {s(SRD_A, 4)}, {s(S_Q0)} offen offset:{1024 * i}{NT(1)} lds'))
        it.append(l)
    return it


def a_piece_read(b, c, tb, slot, off=0):
    sh, base = a_slot(slot)
    with b.atomic():
        b(f's_lshl_b32 {s(S_T0)}, {s(S_W)}, {sh}')
        b(f's_add_u32 {s(S_T0)}, {s(S_T0)}, {base + off}')
        for kk in range(4):
            b(f'v_add_u32 {v(V_T0 + kk)}, {s(S_T0)}, {v(V_AR + kk)}')
        for kk in range(4):
            r = 8 * (4 * c + kk) + 4 * tb
            b(f'ds_read_b128 {a(r, 4)}, {v(V_T0 + kk)}')


def a_chunk_items(c, slot):
    return a_piece_items(c, 0, slot) + a_piece_items(c, 1, slot, 4096)


def a_chunk_read(b, c, slot):
    sh, base = a_slot(slot)
    with b.atomic():
        b(f's_lshl_b32 {s(S_T0)}, {s(S_W)}, {sh}')
        b(f's_add_u32 {s(S_T0)}, {s(S_T0)}, {base}')
        for kk in range(4):
            b(f'v_add_u32 {v(V_T0 + kk)}, {s(S_T0)}, {v(V_AR + kk)}')
        for kk in range(4):
            for tb in range(2):
                r = 8 * (4 * c + kk) + 4 * tb
                b(f'ds_read_b128 {a(r, 4)}, {v(V_T0 + kk)} offset:{4096 * tb}')


def stamp(b, idx):
    if not OPT['stamps']:
        return
    if OPT['stamps'] == 3 and idx not in (0, 12):
        return
    lock = b.atomic() if hasattr(b, 'atomic') else None
    if lock:
        lock.__enter__()
    b(f's_memrealtime {s(S_VCC2, 2)}' if OPT['stamps'] in (1, 3) else f's_memtime {s(S_VCC2, 2)}')
    b('s_waitcnt lgkmcnt(0)')
    b(f's_lshl_b32 {s(S_T6)}, {s(S_WG)}, 2')
    b(f's_add_u32 {s(S_T6)}, {s(S_T6)}, {s(S_W)}')
    b(f's_lshl_b32 {s(S_T6)}, {s(S_T6)}, 7')
    b(f's_add_u32 {s(S_T6)}, {s(S_T6)}, {WS_DBG + 4 * idx}')
    b(f'v_mov_b32 {v(V_POLL + 1)}, {s(S_VCC2)}')
    b(f'buffer_store_dword {v(V_POLL + 1)}, off, {s(SRD_WS, 4)}, {s(S_T6)}')
    if lock:
        lock.__exit__()


def s1_issue(g, b):
    from phase23 import s1_issue as f
    f(g, b)


def dstamp(b, k):
    if OPT.get('clk') != 2:
        return
    lock = b.atomic() if hasattr(b, 'atomic') else None
    if lock:
        lock.__enter__()
    b('s_memtime s[98:99]')
    b('s_waitcnt lgkmcnt(0)')
    b('s_sub_u32 s98, s98, s62')
    b(f's_mov_b32 {s(SRD_T)}, {s(P_DBG)}')
    b(f's_mov_b32 {s(SRD_T + 1)}, {s(P_DBG + 1)}')
    b(f's_cmp_eq_u32 {s(S_WG)}, 100')
    b(f's_cselect_b32 s99, 32, 0')
    b(f's_cselect_b32 s97, 0, {s(S_WG)}')
    b(f's_or_b32 s97, s97, {s(S_W)}')
    b(f's_cmp_eq_u32 s97, 0')
    b(f's_cselect_b32 {s(SRD_T + 2)}, 256, 0')
    b(f's_mov_b32 {s(SRD_T + 3)}, 0x20000')
    b(f's_add_u32 s99, s99, {4 * k}')
    b(f'v_mov_b32 {v(V_POLL + 1)}, s98')
    b(f'buffer_store_dword {v(V_POLL + 1)}, off, {s(SRD_T, 4)}, s99')
    if lock:
        lock.__exit__()


def slow_mark(idx):
    if not OPT['stamps'] or OPT.get('s3st') or OPT['stamps'] == 3:
        return ''
    return f'''    s_lshl_b32 {s(S_T6)}, {s(S_WG)}, 2
    s_add_u32 {s(S_T6)}, {s(S_T6)}, {s(S_W)}
    s_lshl_b32 {s(S_T6)}, {s(S_T6)}, 7
    s_add_u32 {s(S_T6)}, {s(S_T6)}, {WS_DBG + 4 * idx}
    s_sub_u32 {s(S_VCC2)}, {SPIN_MAX + 1}, {s(S_CNT)}
    v_mov_b32 {v(V_POLL + 1)}, {s(S_VCC2)}
    buffer_store_dword {v(V_POLL + 1)}, off, {s(SRD_WS, 4)}, {s(S_T6)}
'''


class Gen:
    def __init__(self):
        self.blocks = []
        self.s3flag = False
        self.slow = []
        self.nlab = 0

    def blk(self, name):
        b = Block(name)
        self.blocks.append(b)
        return b

    def lab(self, p='L'):
        self.nlab += 1
        return f'{p}_{self.nlab}'

    def poll(self, b, vaddr, soff, vtmp, first_issued=False, skip_if_zero=None, mark=31):
        cont = self.lab('PC')
        slow = self.lab('PS')
        lock = b.atomic() if hasattr(b, 'atomic') else None
        if lock:
            lock.__enter__()
        if not first_issued:
            b(f'buffer_load_dword {v(vtmp)}, {v(vaddr)}, {s(SRD_WS, 4)}, {soff} offen sc1')
        b(f'v_cmp_ne_u32 vcc, {s(S_N)}, {v(vtmp)}')
        if skip_if_zero is not None:
            b(f's_cmp_eq_u32 {s(skip_if_zero)}, 0')
            b(f's_cbranch_scc1 {cont}')
        b(f's_cbranch_vccnz {slow}')
        b.label(cont)
        if lock:
            lock.__exit__()
        self.slow.append(f'''{slow}:
    s_mov_b32 {s(S_CNT)}, {SPIN_MAX}
{slow}_l:
    s_sleep 1
    buffer_load_dword {v(vtmp)}, {v(vaddr)}, {s(SRD_WS, 4)}, {soff} offen sc1
    s_waitcnt vmcnt(0)
{slow_mark(mark)}    v_cmp_ne_u32 vcc, {s(S_N)}, {v(vtmp)}
    s_cbranch_vccz {cont}
    s_sub_u32 {s(S_CNT)}, {s(S_CNT)}, 1
    s_cmp_lg_u32 {s(S_CNT)}, 0
    s_cbranch_scc1 {slow}_l
    s_branch {cont}''')

    def prologue(self):
        b = St(self, 'PRO')
        b(f's_cmp_ge_u32 {s(S_WG)}, 256')
        b('s_cbranch_scc1 L_END')
        if OPT.get('clk'):
            b('s_memtime s[62:63]')
            if OPT.get('clk') == 1:
                b('s_memrealtime s[100:101]')
        b('s_load_dwordx16 s[16:31], s[0:1], 0x0')
        b('s_load_dwordx8 s[32:39], s[0:1], 0x40')
        b(f'v_lshrrev_b32 {v(V_T0)}, 6, {v(0)}')
        b(f'v_and_b32 {v(V_LANE)}, 63, {v(0)}')
        b(f's_and_b32 {s(S_T0)}, {s(S_WG)}, 7')
        b(f'v_readfirstlane_b32 {s(S_W)}, {v(V_T0)}')
        b(f's_lshr_b32 {s(S_T1)}, {s(S_WG)}, 3')
        b(f's_lshr_b32 {s(S_T2)}, {s(S_T1)}, 2')
        b(f's_and_b32 {s(S_T1)}, {s(S_T1)}, 3')
        b(f's_and_b32 {s(S_T3)}, {s(S_T0)}, 1')
        b(f's_lshr_b32 {s(S_T0)}, {s(S_T0)}, 1')
        b(f's_lshl3_add_u32 {s(S_RB)}, {s(S_T3)}, {s(S_T2)}')
        b(f's_lshl2_add_u32 {s(S_CG)}, {s(S_T0)}, {s(S_T1)}')
        b(f's_lshl3_add_u32 {s(S_I)}, {s(S_T0)}, {s(S_T2)}')
        b(f's_lshl2_add_u32 {s(S_J)}, {s(S_T3)}, {s(S_T1)}')
        b(f's_lshl1_add_u32 {s(S_ROT)}, {s(S_T1)}, {s(S_T2)}')
        b(f's_and_b32 {s(S_ROT)}, {s(S_ROT)}, 7')
        if OPT.get('map', 0):
            b(f's_and_b32 {s(S_T4)}, {s(S_WG)}, 7')
            b(f's_lshr_b32 {s(S_T5)}, {s(S_WG)}, 6')
            b(f's_lshl2_add_u32 {s(S_I)}, {s(S_T4)}, {s(S_T5)}')
            b(f's_bfe_u32 {s(S_J)}, {s(S_WG)}, 0x30003')
            b(f's_lshl1_add_u32 {s(S_ROT2)}, {s(S_T5)}, {s(S_J)}')
            b(f's_and_b32 {s(S_ROT2)}, {s(S_ROT2)}, 7')
        else:
            b(f's_mov_b32 {s(S_ROT2)}, {s(S_ROT)}')
        if not OPT['rot']:
            b(f's_mov_b32 {s(S_ROT)}, 0')
        b(f'v_lshrrev_b32 {v(V_T0)}, 3, {v(V_LANE)}')
        b(f'v_and_b32 {v(V_T0 + 1)}, 7, {v(V_LANE)}')
        b(f'v_lshrrev_b32 {v(V_T0 + 2)}, 4, {v(V_LANE)}')
        b(f'v_xor_b32 {v(V_T0 + 1)}, {v(V_T0 + 1)}, {v(V_T0 + 2)}')
        b(f'v_lshlrev_b32 {v(V_T0 + 1)}, 4, {v(V_T0 + 1)}')
        b(f's_cmp_eq_u32 {s(S_W)}, 2')
        b(f's_cselect_b32 {s(S_T0)}, 64, 0')
        b(f'v_xor_b32 {v(V_T0 + 1)}, {s(S_T0)}, {v(V_T0 + 1)}')
        b(f'v_lshl_add_u32 {v(V_XD)}, {v(V_T0)}, 10, {v(V_T0 + 1)}')
        b(f'v_xor_b32 {v(V_XD + 1)}, 64, {v(V_XD)}')
        b(f's_mul_i32 {s(S_XLW)}, {s(S_W)}, 6')
        b(f's_cmp_eq_u32 {s(S_W)}, 2')
        b(f's_cselect_b32 {s(S_XLW)}, 11, {s(S_XLW)}')
        b(f's_lshl_b32 {s(S_XG)}, {s(S_XLW)}, 13')
        b(f's_lshl_b32 {s(S_T0)}, {s(S_RB)}, 17')
        b(f's_add_u32 {s(S_XG)}, {s(S_XG)}, {s(S_T0)}')
        b(f's_lshl_b32 {s(S_XLW)}, {s(S_XLW)}, 10')
        b(f's_mul_i32 {s(S_WGB)}, {s(S_W)}, 3')
        b(f's_lshl_b32 {s(S_T0)}, {s(S_CG)}, 7')
        b(f's_add_u32 {s(S_T1)}, {s(S_T0)}, 1344')
        b(f's_sub_u32 {s(S_T2)}, {s(S_T0)}, 1024')
        b(f's_cmp_le_u32 {s(S_CG)}, 10')
        b(f's_cselect_b32 {s(S_COL)}, {s(S_T1)}, {s(S_T2)}')
        b(f's_mov_b32 {s(S_RS)}, 3072')
        b(f's_cmov_b32 {s(S_RS)}, 2752')
        b(f's_cselect_b32 {s(S_T3)}, 1, 0')
        b(f's_cmp_eq_u32 {s(S_CG)}, 0')
        b(f's_cselect_b32 {s(S_MASK)}, 32, 0')
        wd_voffsets(b)
        b(f's_lshl_b32 {s(S_WL)}, {s(S_W)}, 11')
        b(f's_lshl2_add_u32 {s(S_TB)}, {s(S_RB)}, {s(S_W)}')
        if OPT.get('cpf', 0):
            b(f's_getpc_b64 {s(62, 2)}')
            b.label('L_pc0')
            b(f's_lshr_b32 {s(S_T0)}, {s(S_WG)}, 3')
            b(f's_lshl2_add_u32 {s(S_T0)}, {s(S_T0)}, {s(S_W)}')
            b(f's_lshl_b32 {s(S_T0)}, {s(S_T0)}, 9')
            b(f's_min_u32 {s(S_T0)}, {s(S_T0)}, L_code_end-L_pc0-512')
            b(f'v_lshlrev_b32 {v(V_T0 + 3)}, 3, {v(V_LANE)}')
            b(f'v_add_u32 {v(V_T0 + 3)}, {s(S_T0)}, {v(V_T0 + 3)}')
            b(f'global_load_dwordx2 {v(250, 2)}, {v(V_T0 + 3)}, {s(62, 2)}', nodst=True)
        b('s_waitcnt lgkmcnt(0)')
        dstamp(b, 0)
        srd(b, SRD_X, P_X, 2048 * 1024)
        set_w_srd(b, S_T3)
        if OPT.get('sym', 1):
            dma4_voffsets(b, V_XD, 1024)
            b(f's_lshl_b32 {s(S_XL)}, {s(S_W)}, 12')
            b(f's_add_u32 {s(S_XL)}, {s(S_XL)}, {R1}')
            b(f's_lshl_b32 {s(S_XS)}, {s(S_TB)}, 15')
            for c in range(2 if OPT.get('pro2', 1) else 3):
                b.add(x_chunk_items(c, f'x{c}'))
                b.add(w_piece_items(c, R0, f'x{c}'))
            b.flush()
        else:
            b(f's_cmp_eq_u32 {s(S_W)}, 3')
            b('s_cbranch_scc1 L_noload0')
            n0 = len(b.b.ins)
            for c in range(2):
                b.add(l1_items(c))
                b.flush()
                l1_item5(self, b, c)
                b.add(l1_w_items(c))
                b.flush()
            for i in b.b.ins[n0:]:
                i.meta['loader'] = True
            b.label('L_noload0')
        if OPT.get('wsoff', 0):
            off = OPT['wsoff'] << 20
            b(f's_add_u32 {s(P_WS)}, {s(P_WS)}, {hex(off)}')
            b(f's_addc_u32 {s(P_WS + 1)}, {s(P_WS + 1)}, 0')
        srd(b, SRD_WS, P_WS, WS_SIZE - (OPT.get('wsoff', 0) << 20))
        b(f'buffer_load_dword {v(V_E)}, off, {s(SRD_WS, 4)}, 0 sc1', tag='epoch')
        stamp(b, 0)
        dstamp(b, 1)
        b(f's_mov_b32 {s(S_LOG2E)}, {hex(f2u(LOG2E))}')
        b(f's_mov_b32 {s(S_EPS)}, {hex(f2u(1e-6))}')
        b(f'v_mov_b32 {v(V_GA)}, {hex(GELU_A)}')
        b(f'v_mov_b32 {v(V_GA2)}, {hex(GELU_A)}')
        b(f'v_mov_b32 {v(V_GA2 + 1)}, {hex(GELU_A)}')
        b(f's_mov_b32 {s(S_PKB)}, {hex(GELU_B)}')
        b(f's_mov_b32 {s(S_PKB + 1)}, {hex(GELU_B)}')
        b(f's_mov_b32 {s(S_PK1)}, 1.0')
        b(f's_mov_b32 {s(S_PK1 + 1)}, 1.0')
        b(f's_mov_b32 {s(S_PKL)}, {hex(f2u(LOG2E))}')
        b(f's_mov_b32 {s(S_PKL + 1)}, {hex(f2u(LOG2E))}')
        b(f'v_lshlrev_b32 {v(V_L16)}, 4, {v(V_LANE)}')
        b(f'v_lshlrev_b32 {v(V_L8)}, 3, {v(V_LANE)}')
        frag_read_addrs(b, V_AR)
        b(f's_lshl_b32 {s(S_T0)}, {s(S_W)}, 12')
        b(f's_add_u32 {s(S_T1)}, {s(S_T0)}, {R1}')
        for kk in range(4):
            b(f'v_add_u32 {v(V_XRO + kk)}, {s(S_T1)}, {v(V_AR + kk)}')
        tr_addr(b, V_WR, False)
        b(f'v_xor_b32 {v(V_WR + 1)}, 64, {v(V_WR)}')
        srd(b, SRD_A, P_WSP, 2048 * 4096)
        dma4_voffsets(b, V_AD, 4096)
        b(f'v_lshlrev_b32 {v(V_TCH)}, 7, {v(V_LANE)}')
        b(f's_lshl_b32 {s(S_AS)}, {s(S_I)}, 18')
        b(f's_lshl_b32 {s(S_T0)}, {s(S_W)}, 10')
        b(f's_add_u32 {s(S_AS)}, {s(S_AS)}, {s(S_T0)}')
        if OPT.get('tlb', 0):
            b(f'v_lshlrev_b32 {v(V_T0)}, 21, {v(V_LANE)}')
            b(f'buffer_load_dword {v(V_DUM)}, {v(V_T0)}, {s(SRD_A, 4)}, 0 offen', tag='t', nodst=True)
            b(f'v_mov_b32 {v(V_T0 + 1)}, {hex(OOB)}')
            b(f'v_cmp_gt_u32 vcc, 8, {v(V_LANE)}')
            b(f'v_cndmask_b32 {v(V_T0)}, {v(V_T0 + 1)}, {v(V_T0)}, vcc')
            b(f'buffer_load_dword {v(V_DUM)}, {v(V_T0)}, {s(SRD_WS, 4)}, 0 offen', tag='t', nodst=True)
            for ptr, n in ((P_WO, 512 * 1024), (P_WOUT, 688 * 1024), (P_OUT, 2048 * 1024), (P_GW, 1024), (P_WQKV, 512 * 3072), (P_WIN, 512 * 2752)):
                srd(b, SRD_U, ptr, n)
                b(f'buffer_load_dword {v(V_DUM)}, off, {s(SRD_U, 4)}, 0', tag='t', nodst=True)
        srd(b, SRD_T, P_BSP, 4096)
        b(f's_and_b32 {s(S_T0)}, {s(S_W)}, 1')
        b(f's_lshl_b32 {s(S_T0)}, {s(S_T0)}, 6')
        b(f's_lshl_b32 {s(S_T1)}, {s(S_I)}, 7')
        b(f's_add_u32 {s(S_T0)}, {s(S_T0)}, {s(S_T1)}')
        b(f'v_and_b32 {v(V_T0)}, 31, {v(V_LANE)}')
        b(f'v_lshlrev_b32 {v(V_T0)}, 1, {v(V_T0)}')
        b(f'buffer_load_ushort {v(V_BSP)}, {v(V_T0)}, {s(SRD_T, 4)}, {s(S_T0)} offen')
        b(f's_lshl_b32 {s(S_T0)}, {s(S_CG)}, 7')
        b(f's_add_u32 {s(S_D2COL)}, {s(S_T0)}, 1024')
        b(f's_add_u32 {s(S_D3COL)}, {s(S_T0)}, 2048')
        b(f's_mov_b32 {s(S_D2SEL)}, 0')
        b(f's_mov_b32 {s(S_D3SEL)}, 0')
        b(f's_mov_b32 {s(S_D2MASK)}, 0')
        b(f's_mov_b32 {s(S_D3MASK)}, 0')
        b(f's_cmp_lt_u32 {s(S_CG)}, 8')
        b('s_cbranch_scc1 L_desc_done')
        b(f's_cmp_lt_u32 {s(S_CG)}, 11')
        b('s_cbranch_scc0 L_desc_cd')
        b(f's_sub_u32 {s(S_D2COL)}, {s(S_T0)}, 1024')
        b(f's_sub_u32 {s(S_D3COL)}, {s(S_T0)}, 1056')
        b(f's_mov_b32 {s(S_D3SEL)}, 1')
        b(f's_cmp_eq_u32 {s(S_CG)}, 8')
        b(f's_cselect_b32 {s(S_D3MASK)}, 32, 0')
        b('s_branch L_desc_done')
        b.label('L_desc_cd')
        b(f's_lshl_b32 {s(S_T1)}, {s(S_T0)}, 1')
        b(f's_sub_u32 {s(S_T1)}, {s(S_T1)}, 2464')
        b(f's_sub_u32 {s(S_T2)}, {s(S_T0)}, 672')
        b(f's_cmp_lt_u32 {s(S_CG)}, 14')
        b(f's_cselect_b32 {s(S_D2COL)}, {s(S_T1)}, {s(S_T2)}')
        b(f's_add_u32 {s(S_D3COL)}, {s(S_D2COL)}, 128')
        b(f's_mov_b32 {s(S_D2SEL)}, 1')
        b(f's_mov_b32 {s(S_D3SEL)}, 1')
        b.label('L_desc_done')
        for r in range(32):
            b(f'v_mov_b32 {v(V_ACC0 + r)}, 0')
        if OPT.get('sym', 1) and OPT.get('pro2', 1):
            b.add(x_chunk_items(2, 'x2'))
            b.add(w_piece_items(2, R0, 'x2'))
            b.flush()
        if not OPT.get('sym', 1):
            b(f's_cmp_eq_u32 {s(S_W)}, 3')
            b('s_cbranch_scc1 L_L1P')
        return b.b

    def prefetch_items(self):
        def touch(srdreg, mul, off=0):
            return [f's_mul_i32 {s(S_Q0)}, {s(S_WG)}, {mul}',
                    ('t', f'buffer_load_dword {v(V_DUM)}, {v(V_TCH)}, {s(srdreg, 4)}, {s(S_Q0)} offen offset:{off}', dict(nodst=True))]
        it = []
        pre = lambda ptr, n: [f's_mov_b32 {s(SRD_U)}, {s(ptr)}', f's_mov_b32 {s(SRD_U + 1)}, {s(ptr + 1)}',
                              f's_mov_b32 {s(SRD_U + 2)}, {hex(n)}', f's_mov_b32 {s(SRD_U + 3)}, 0x20000']
        it.append(pre(P_WQKV, 512 * 3072) + touch(SRD_U, 6144))
        it.append(pre(P_WIN, 512 * 2752) + touch(SRD_U, 5504))
        for k in range(4):
            it.append([f's_mul_i32 {s(S_Q0)}, {s(S_WG)}, 32768', f's_add_u32 {s(S_Q0)}, {s(S_Q0)}, {8192 * k}',
                       ('t', f'buffer_load_dword {v(V_DUM)}, {v(V_TCH)}, {s(SRD_A, 4)}, {s(S_Q0)} offen', dict(nodst=True))])
        it.append(pre(P_WOUT, 688 * 1024) + touch(SRD_U, 2752))
        it.append(pre(P_WO, 512 * 1024) + touch(SRD_U, 2048))
        return it

    def slab1(self, loader):
        b = St(self, 'L1L' if loader else 'L1P')
        if not loader:
            b.label('L_L1P')
            pf = self.prefetch_items() if OPT.get('pf', 1) else []
        n0 = b.mark()
        for c in range(8):
            if loader:
                b.wait_vm(f'x{c}')
            if c == 4:
                b(f'v_add_u32 {v(V_NON)}, {hex(NONCE_K)}, {v(V_E)}')
                b(f'v_readfirstlane_b32 {s(S_N)}, {v(V_NON)}')
            b.wait_lds()
            b('s_barrier')
            if c == 0:
                dstamp(b, 2)
            if OPT.get('l1st') and c in (0, 1, 2, 4, 6):
                stamp(b, {0: 13, 1: 14, 2: 15, 4: 19, 6: 22}[c])
            m5 = None
            if c <= 4:
                if OPT.get('sym', 1):
                    b.add(x_chunk_items(c + 3, f'x{c + 3}'))
                    b.add(w_piece_items(c + 3, R0, f'x{c + 3}'))
                elif loader:
                    b.add(l1_items(c + 2))
                    m5 = c + 2
                else:
                    b.add(pf[:2])
                    pf = pf[2:]
            else:
                if c == 5:
                    self.switch_slab(b, S_D2SEL, S_D2COL, S_D2MASK)
                for p in {5: (4, 5), 6: (6, 7), 7: ()}[c]:
                    b.add(w_piece_items(p, R2, 'w2'))
                if c == 7 and OPT.get('tch', 0) & 4:
                    self.w3_touch(b)
            b.pop(1)
            b.period = OPT.get('l1p', 6) if loader else 8
            for kk in range(4):
                K = 4 * c + kk
                b(f'ds_read_b128 {a(A_X + 4 * K, 4)}, {v(V_XRO + kk)}')
                wf = V_WF + 8 * (K & 3)
                for ch in range(2):
                    for t in range(2):
                        b(f'ds_read_b64_tr_b16 {v(wf + 4 * ch + 2 * t, 2)}, {v(V_WR + ch)} offset:{2048 * K + 512 * t}')
                if K >= 2:
                    self.mfma_pair_R(b, K - 2)
                if kk == 2 and m5 is not None:
                    b.flush()
                    l1_item5(self, b, m5)
                    b.add(l1_w_items(m5))
            b.flush()
            b.period = 0
            if c < 7:
                d = 16384 if (c + 1) % 4 != 0 else -49152
                for kk in range(4):
                    if d > 0:
                        b(f'v_add_u32 {v(V_XRO + kk)}, {d}, {v(V_XRO + kk)}')
                    else:
                        b(f'v_subrev_u32 {v(V_XRO + kk)}, {-d}, {v(V_XRO + kk)}')
        self.mfma_pair_R(b, 30)
        self.mfma_pair_R(b, 31)
        b.weave_from(n0, G=6)
        b.wait_lds()
        b('s_barrier')
        stamp(b, 1)
        dstamp(b, 3)
        b(f's_cmp_lt_u32 {s(S_CG)}, 8')
        b('s_cbranch_scc1 L_roleA')
        b(f's_cmp_lt_u32 {s(S_CG)}, 11')
        b('s_cbranch_scc1 L_roleB')
        b(f's_cmp_lt_u32 {s(S_CG)}, 14')
        b('s_cbranch_scc1 L_roleC')
        b('s_branch L_roleD')
        return b.b

    def switch_slab(self, b, sel, col, mask):
        with b.atomic():
            b(f's_cmp_eq_u32 {s(sel)}, 0')
            b(f's_mov_b32 {s(S_RS)}, 2752')
            b(f's_cmov_b32 {s(S_RS)}, 3072')
            b(f's_mov_b32 {s(S_COL)}, {s(col)}')
            b(f's_mov_b32 {s(S_MASK)}, {s(mask)}')
            set_w_srd(b, sel)
            wd_voffsets(b)

    def mfma_pair_R(self, b, K):
        wf = V_WF + 8 * (K & 3)
        for ch in range(2):
            acc = V_ACC0 + 16 * ch
            b(f'v_mfma_f32_32x32x16_bf16 {v(acc, 16)}, {v(wf + 4 * ch, 4)}, {a(A_X + 4 * K, 4)}, {v(acc, 16)}')

    def touch_setup(self, b):
        b(f'v_lshrrev_b32 {v(V_T0)}, 3, {v(V_LANE)}')
        b(f'v_lshlrev_b32 {v(V_T0)}, 12, {v(V_T0)}')
        b(f'v_and_b32 {v(V_T0 + 1)}, 7, {v(V_LANE)}')
        b(f'v_lshl_add_u32 {v(V_TCH)}, {v(V_T0 + 1)}, 7, {v(V_T0)}')
        b(f'v_lshlrev_b32 {v(V_TW1)}, 10, {v(V_LANE)}')
        b(f'v_mov_b32 {v(V_TW2)}, {v(V_TW1)}')
        b(f'v_mov_b32 {v(V_T0)}, {hex(OOB)}')
        b(f'v_cmp_lt_u32 vcc, 21, {v(V_LANE)}')
        b(f'v_cndmask_b32 {v(V_TW1)}, {v(V_TW1)}, {v(V_T0)}, vcc')
        b(f'v_cmp_lt_u32 vcc, 15, {v(V_LANE)}')
        b(f'v_cndmask_b32 {v(V_TW2)}, {v(V_TW2)}, {v(V_T0)}, vcc')
        srd(b, SRD_U, P_WOUT, 688 * 1024)
        srd(b, SRD_X, P_WO, 512 * 1024)

    def touch_items(self):
        T = OPT.get('tch', 0)
        it = []
        if T & 1:
            for k in range(2):
                it.append([f's_and_b32 {s(S_Q0)}, {s(S_J)}, 3',
                           f's_lshl_b32 {s(S_Q0)}, {s(S_Q0)}, 16',
                           f's_add_u32 {s(S_Q0)}, {s(S_Q0)}, {s(S_AS)}'] +
                          ([f's_add_u32 {s(S_Q0)}, {s(S_Q0)}, {8 * 4096}'] if k else []) +
                          [('t', f'buffer_load_dword {v(V_DUM)}, {v(V_TCH)}, {s(SRD_A, 4)}, {s(S_Q0)} offen', dict(nodst=True))])
        if T & 8:
            it.append([f's_lshl2_add_u32 {s(S_Q0)}, {s(S_WG)}, {s(S_W)}',
                       f's_lshl_b32 {s(S_Q0)}, {s(S_Q0)}, 13',
                       f'v_lshlrev_b32 {v(V_T0)}, 7, {v(V_LANE)}',
                       ('t', f'buffer_load_dword {v(V_DUM)}, {v(V_T0)}, {s(SRD_A, 4)}, {s(S_Q0)} offen', dict(nodst=True))])
        if T & 2:
            it.append([f's_lshr_b32 {s(S_Q0)}, {s(S_WG)}, 5',
                       f's_mul_i32 {s(S_Q1)}, {s(S_Q0)}, 86',
                       f's_mul_i32 {s(S_Q0)}, {s(S_W)}, 22',
                       f's_add_u32 {s(S_Q0)}, {s(S_Q0)}, {s(S_Q1)}',
                       f's_lshl_b32 {s(S_Q0)}, {s(S_Q0)}, 10',
                       f's_lshl_b32 {s(S_Q1)}, {s(S_J)}, 7',
                       f's_add_u32 {s(S_Q0)}, {s(S_Q0)}, {s(S_Q1)}',
                       ('t', f'buffer_load_dword {v(V_DUM)}, {v(V_TW1)}, {s(SRD_U, 4)}, {s(S_Q0)} offen', dict(nodst=True))])
            it.append([f's_lshr_b32 {s(S_Q0)}, {s(S_WG)}, 5',
                       f's_lshl_b32 {s(S_Q0)}, {s(S_Q0)}, 2',
                       f's_add_u32 {s(S_Q0)}, {s(S_Q0)}, {s(S_W)}',
                       f's_lshl_b32 {s(S_Q0)}, {s(S_Q0)}, 14',
                       f's_lshl_b32 {s(S_Q1)}, {s(S_J)}, 7',
                       f's_add_u32 {s(S_Q0)}, {s(S_Q0)}, {s(S_Q1)}',
                       ('t', f'buffer_load_dword {v(V_DUM)}, {v(V_TW2)}, {s(SRD_X, 4)}, {s(S_Q0)} offen', dict(nodst=True))])
        return it

    def w3_touch(self, b):
        with b.atomic():
            b(f's_cmp_eq_u32 {s(S_D3SEL)}, 0')
            b(f's_cselect_b32 {s(SRD_U)}, {s(P_WQKV)}, {s(P_WIN)}')
            b(f's_cselect_b32 {s(SRD_U + 1)}, {s(P_WQKV + 1)}, {s(P_WIN + 1)}')
            b(f's_mov_b32 {s(SRD_U + 2)}, {hex(512 * 2752)}')
            b(f's_cmov_b32 {s(SRD_U + 2)}, {hex(512 * 3072)}')
            b(f's_mov_b32 {s(SRD_U + 3)}, 0x20000')
            b(f's_mov_b32 {s(S_T0)}, 2752')
            b(f's_cmov_b32 {s(S_T0)}, 3072')
            b(f'v_and_b32 {v(V_T0)}, 15, {v(V_LANE)}')
            b(f'v_mul_lo_u32 {v(V_T0)}, {v(V_T0)}, {s(S_T0)}')
            b(f'v_bfe_u32 {v(V_T0 + 1)}, {v(V_LANE)}, 4, 1')
            b(f'v_mul_u32_u24 {v(V_T0 + 1)}, 124, {v(V_T0 + 1)}')
            b(f'v_add_u32 {v(V_T0)}, {v(V_T0)}, {v(V_T0 + 1)}')
            b(f's_max_i32 {s(S_T1)}, {s(S_D3COL)}, 0')
            b(f'v_add_u32 {v(V_T0)}, {s(S_T1)}, {v(V_T0)}')
            b(f'v_mov_b32 {v(V_T0 + 1)}, {hex(OOB)}')
            b(f'v_cmp_lt_u32 vcc, 31, {v(V_LANE)}')
            b(f'v_cndmask_b32 {v(V_T0)}, {v(V_T0)}, {v(V_T0 + 1)}, vcc')
            b(f's_lshr_b32 {s(S_T1)}, {s(S_WG)}, 5')
            b(f's_lshl2_add_u32 {s(S_T1)}, {s(S_T1)}, {s(S_W)}')
            b(f's_lshl_b32 {s(S_T1)}, {s(S_T1)}, 4')
            b(f's_mul_i32 {s(S_T1)}, {s(S_T1)}, {s(S_T0)}')
            b(f'buffer_load_dword {v(V_DUM)}, {v(V_T0)}, {s(SRD_U, 4)}, {s(S_T1)} offen', tag='t', nodst=True)

    def post_l1(self, b, role):
        it = []
        self.touch_setup(b)
        for p in (0, 1, 2, 3):
            it += w_piece_items(p, R2, 'w2')
        it += self.touch_items()
        if OPT.get('c0early', 1) == 1:
            it += a_chunk_items(0, 'f0')
        return it

    def w3_items(self, b, region=R0):
        b.flush()
        self.switch_slab(b, S_D3SEL, S_D3COL, S_D3MASK)
        for p in range(8):
            b.add(w_piece_items(p, region, 'w3'))
        if OPT.get('c0early', 1) == 2:
            b.add(a_chunk_items(0, 'f0'))

    def set_wr(self, b, region):
        with b.atomic():
            tr_addr(b, V_WR, False)
            if region:
                b(f'v_add_u32 {v(V_WR)}, {region}, {v(V_WR)}')
            b(f'v_xor_b32 {v(V_WR + 1)}, 64, {v(V_WR)}')

    def main_loop(self, b, orient, hooks=None, pop_every=1):
        hooks = hooks or {}
        D = 2

        def rd(K):
            wf = V_WF + 8 * (K & 3)
            for ch in range(2):
                for t in range(2):
                    b(f'ds_read_b64_tr_b16 {v(wf + 4 * ch + 2 * t, 2)}, {v(V_WR + ch)} offset:{2048 * K + 512 * t}')
        sv = b.period
        b.period = 0
        n0 = b.mark()
        for K in range(D):
            rd(K)
        for K in range(32):
            if K + D < 32:
                rd(K + D)
            wf = V_WF + 8 * (K & 3)
            x = a(A_X + 4 * K, 4)
            for ch in range(2):
                acc = V_ACC1 + 16 * ch
                c = '0' if K == 0 else v(acc, 16)
                if orient == 'T':
                    b(f'v_mfma_f32_32x32x16_bf16 {v(acc, 16)}, {v(wf + 4 * ch, 4)}, {x}, {c}')
                else:
                    b(f'v_mfma_f32_32x32x16_bf16 {v(acc, 16)}, {x}, {v(wf + 4 * ch, 4)}, {c}')
            for fn in hooks.get(K, []):
                fn(b, 4 if K + D < 32 else 0)
            if OPT.get('s3st') and self.s3flag and K in (7, 15, 19, 23, 27):
                stamp(b, {7: 11, 15: 13, 19: 15, 23: 19, 27: 22}[K])
            if K % pop_every == pop_every - 1:
                b.pop(1)
        b.weave_from(n0, G=5)
        b.period = sv

    def apipe_hooks(self, first_K, step):
        hooks = {}

        def mk_issue(p):
            return lambda b, younger: b.add(a_piece_items(p >> 1, p & 1, f'h{p & 1}'))

        def mk_move(p):
            def f(b, younger):
                b.ensure(f'a{p >> 1}_{p & 1}')
                b.wait_vm(f'a{p >> 1}_{p & 1}')
                a_piece_read(b, p >> 1, p & 1, f'h{p & 1}')
            return f

        def mk_refill(p):
            def f(b, younger):
                b(f's_waitcnt lgkmcnt({younger})')
                b.add(a_piece_items(p >> 1, p & 1, f'h{p & 1}'))
            return f
        return hooks, mk_issue, mk_move, mk_refill

    def z2_epilogue(self, b, mid=None):
        for g in range(4):
            gelu_group(b, [V_ACC0 + 8 * g + k for k in range(8)], V_TMP)
            if g == 0 and mid:
                mid()
        s1, s2 = V_ST, V_ST + 1
        t = V_TMP
        if OPT.get('pk', 1):
            p, q = t + 2, t + 4
            b(f'v_pk_add_f32 {v(p, 2)}, {v(V_ACC0, 2)}, {v(V_ACC0 + 2, 2)}')
            b(f'v_pk_mul_f32 {v(q, 2)}, {v(V_ACC0, 2)}, {v(V_ACC0, 2)}')
            for k in range(4, 32, 2):
                b(f'v_pk_add_f32 {v(p, 2)}, {v(p, 2)}, {v(V_ACC0 + k, 2)}')
            for k in range(2, 32, 2):
                b(f'v_pk_fma_f32 {v(q, 2)}, {v(V_ACC0 + k, 2)}, {v(V_ACC0 + k, 2)}, {v(q, 2)}')
            b(f'v_mov_b32 {v(s1)}, {v(p)}')
            b(f'v_mov_b32 {v(t)}, {v(p + 1)}')
            b(f'v_mov_b32 {v(s2)}, {v(q)}')
            b(f'v_mov_b32 {v(t + 1)}, {v(q + 1)}')
        else:
            b(f'v_add_f32 {v(s1)}, {v(V_ACC0)}, {v(V_ACC0 + 1)}')
            b(f'v_mul_f32 {v(s2)}, {v(V_ACC0)}, {v(V_ACC0)}')
            b(f'v_add_f32 {v(t)}, {v(V_ACC0 + 2)}, {v(V_ACC0 + 3)}')
            b(f'v_mul_f32 {v(t + 1)}, {v(V_ACC0 + 1)}, {v(V_ACC0 + 1)}')
            for k in range(4, 32, 2):
                b(f'v_add_f32 {v(s1)}, {v(s1)}, {v(V_ACC0 + k)}')
                b(f'v_add_f32 {v(t)}, {v(t)}, {v(V_ACC0 + k + 1)}')
            for k in range(2, 32, 2):
                b(f'v_fmac_f32 {v(s2)}, {v(V_ACC0 + k)}, {v(V_ACC0 + k)}')
                b(f'v_fmac_f32 {v(t + 1)}, {v(V_ACC0 + k + 1)}, {v(V_ACC0 + k + 1)}')
        with b.atomic():
            b(f'v_add_f32 {v(s1)}, {v(s1)}, {v(t)}')
            b(f'v_add_f32 {v(s2)}, {v(s2)}, {v(t + 1)}')
            b(f'v_permlane32_swap_b32 {v(s1)}, {v(s2)}')
            b(f'v_add_f32 {v(s1)}, {v(s1)}, {v(s2)}')
            b(f'v_mov_b32 {v(s2)}, {s(S_N)}')
            b(f's_mul_i32 {s(S_T0)}, {s(S_TB)}, 5632')
            b(f's_lshl_b32 {s(S_T1)}, {s(S_CG)}, 9')
            b(f's_add_u32 {s(S_T0)}, {s(S_T0)}, {s(S_T1)}')
            b(f's_add_u32 {s(S_T0)}, {s(S_T0)}, {WS_STATS}')
            b(f'buffer_store_dwordx2 {v(s1, 2)}, {v(V_L8)}, {s(SRD_WS, 4)}, {s(S_T0)} offen sc1', tag='st')
        stamp(b, 2)

    def stats_issue(self, b):
        with b.atomic():
            b(f's_mul_i32 {s(S_T5)}, {s(S_TB)}, 5632')
            b(f's_add_u32 {s(S_T5)}, {s(S_T5)}, {WS_STATS}')
            b(f's_add_u32 {s(S_T4)}, {s(S_T5)}, 4096')
            for js in range(11):
                so = S_T5 if js < 8 else S_T4
                off = 512 * js if js < 8 else 512 * js - 4096
                b(f'buffer_load_dwordx2 {v(V_STAT + 2 * js, 2)}, {v(V_L8)}, {s(SRD_WS, 4)}, {s(so)} offen offset:{off} sc1')

    def stats_check_code(self, b):
        t = V_TMP
        b(f'v_min3_u32 {v(t)}, {v(V_STAT + 1)}, {v(V_STAT + 3)}, {v(V_STAT + 5)}')
        b(f'v_max3_u32 {v(t + 1)}, {v(V_STAT + 1)}, {v(V_STAT + 3)}, {v(V_STAT + 5)}')
        for js in range(3, 11, 2):
            b(f'v_min3_u32 {v(t)}, {v(t)}, {v(V_STAT + 2 * js + 1)}, {v(V_STAT + 2 * js + 3)}')
            b(f'v_max3_u32 {v(t + 1)}, {v(t + 1)}, {v(V_STAT + 2 * js + 1)}, {v(V_STAT + 2 * js + 3)}')
        b(f'v_xor_b32 {v(t)}, {s(S_N)}, {v(t)}')
        b(f'v_xor_b32 {v(t + 1)}, {s(S_N)}, {v(t + 1)}')
        b(f'v_or_b32 {v(t)}, {v(t)}, {v(t + 1)}')
        b(f'v_cmp_ne_u32 vcc, 0, {v(t)}')

    def z2_norm(self, b, after_check=None):
        cont, slow = self.lab('ZC'), self.lab('ZS')
        with b.atomic():
            self.stats_check_code(b)
            b(f's_cbranch_vccnz {slow}')
            b.label(cont)
        if after_check:
            after_check()
        sb = Block('tmp')
        sb(f's_sleep 1')
        sb(f's_mul_i32 {s(S_T5)}, {s(S_TB)}, 5632')
        sb(f's_add_u32 {s(S_T5)}, {s(S_T5)}, {WS_STATS}')
        sb(f's_add_u32 {s(S_T4)}, {s(S_T5)}, 4096')
        for js in range(11):
            so = S_T5 if js < 8 else S_T4
            off = 512 * js if js < 8 else 512 * js - 4096
            sb(f'buffer_load_dwordx2 {v(V_STAT + 2 * js, 2)}, {v(V_L8)}, {s(SRD_WS, 4)}, {s(so)} offen offset:{off} sc1')
        sb('s_waitcnt vmcnt(0)')
        self.stats_check_code(sb)
        txt = '\n'.join('    ' + i.text for i in sb.ins)
        self.slow.append(f'''{slow}:
    s_mov_b32 {s(S_CNT)}, {SPIN_MAX}
{slow}_l:
{txt}
{slow_mark(30)}    s_cbranch_vccz {cont}
    s_sub_u32 {s(S_CNT)}, {s(S_CNT)}, 1
    s_cmp_lg_u32 {s(S_CNT)}, 0
    s_cbranch_scc1 {slow}_l
    s_branch {cont}''')
        t = V_TMP
        b(f'v_add_f32 {v(t)}, {v(V_STAT)}, {v(V_STAT + 2)}')
        b(f'v_add_f32 {v(t + 1)}, {v(V_STAT + 4)}, {v(V_STAT + 6)}')
        for js in range(4, 11, 2):
            b(f'v_add_f32 {v(t)}, {v(t)}, {v(V_STAT + 2 * js)}')
            if js + 1 < 11:
                b(f'v_add_f32 {v(t + 1)}, {v(t + 1)}, {v(V_STAT + 2 * js + 2)}')
        b(f'v_add_f32 {v(t)}, {v(t)}, {v(t + 1)}')
        b(f'v_mov_b32 {v(t + 1)}, {v(t)}')
        b(f'v_permlane32_swap_b32 {v(t)}, {v(t + 1)}')
        b(f'v_mul_f32 {v(t)}, {hex(f2u(1.0 / 688))}, {v(t)}')
        b(f'v_mul_f32 {v(t + 1)}, {hex(f2u(1.0 / 688))}, {v(t + 1)}')
        b(f'v_fma_f32 {v(t + 1)}, -{v(t)}, {v(t)}, {v(t + 1)}')
        b(f'v_max_f32 {v(t + 1)}, 0, {v(t + 1)}')
        b(f'v_add_f32 {v(t + 1)}, {hex(f2u(1e-5))}, {v(t + 1)}')
        b(f'v_rsq_f32 {v(t + 1)}, {v(t + 1)}')
        b(f'v_mul_f32 {v(t)}, {v(t)}, {v(t + 1)}')
        b(f'v_sub_f32 {v(t)}, 0, {v(t)}')
        w0 = t + 2
        r0 = t + 6
        with b.atomic():
            b(f's_lshl_b32 {s(S_T0)}, {s(S_W)}, 14')
            b(f's_add_u32 {s(S_T0)}, {s(S_T0)}, {(R0 + 8192) if OPT.get("aplan", 1) == 3 else (R2 + 8192)}')
            b(f'v_and_b32 {v(w0)}, 31, {v(V_LANE)}')
            b(f'v_lshrrev_b32 {v(w0 + 1)}, 5, {v(V_LANE)}')
            b(f'v_and_b32 {v(w0 + 2)}, 15, {v(V_LANE)}')
            b(f'v_xor_b32 {v(w0 + 1)}, {v(w0 + 1)}, {v(w0 + 2)}')
            b(f'v_lshlrev_b32 {v(w0 + 1)}, 3, {v(w0 + 1)}')
            b(f'v_lshl_add_u32 {v(w0)}, {v(w0)}, 7, {v(w0 + 1)}')
            b(f'v_add_u32 {v(w0)}, {s(S_T0)}, {v(w0)}')
            b(f'v_bfe_u32 {v(r0)}, {v(V_LANE)}, 2, 2')
            b(f'v_lshrrev_b32 {v(r0 + 1)}, 5, {v(V_LANE)}')
            b(f'v_lshl_add_u32 {v(r0)}, {v(r0 + 1)}, 3, {v(r0)}')
            b(f'v_bfe_u32 {v(r0 + 1)}, {v(V_LANE)}, 4, 1')
            b(f'v_and_b32 {v(r0 + 2)}, 3, {v(V_LANE)}')
            b(f'v_lshl_add_u32 {v(r0 + 1)}, {v(r0 + 1)}, 2, {v(r0 + 2)}')
            b(f'v_xor_b32 {v(r0 + 1)}, {v(r0 + 1)}, {v(r0)}')
            b(f'v_lshlrev_b32 {v(r0 + 1)}, 3, {v(r0 + 1)}')
            b(f'v_lshl_add_u32 {v(r0)}, {v(r0)}, 7, {v(r0 + 1)}')
            b(f'v_add_u32 {v(r0)}, {s(S_T0)}, {v(r0)}')
        ra = r0 + 1
        for bb in range(2):
            for tt in range(2):
                b(f'v_xor_b32 {v(ra + 2 * bb + tt)}, {8 * ((8 * bb) ^ (4 * tt))}, {v(r0)}')
        pk = V_PV
        for bb in range(2):
            for j in range(4):
                r = V_ACC0 + 16 * bb + 4 * j
                for k in range(4):
                    b(f'v_fma_f32 {v(r + k)}, {v(r + k)}, {v(t + 1)}, {v(t)}')
                b(f'v_cvt_pk_bf16_f32 {v(pk + 8 * bb + 2 * j)}, {v(r)}, {v(r + 1)}')
                b(f'v_cvt_pk_bf16_f32 {v(pk + 8 * bb + 2 * j + 1)}, {v(r + 2)}, {v(r + 3)}')
                K = 8 * bb + 2 * j
                if K:
                    b(f'v_xor_b32 {v(w0 + 1)}, {8 * K}, {v(w0)}')
                    ad = w0 + 1
                else:
                    ad = w0
                b(f'ds_write_b64 {v(ad)}, {v(pk + 8 * bb + 2 * j, 2)}')
        b.wait_lds()
        fr = V_TMP + 16
        for bb in range(2):
            for kq in range(2):
                for tt in range(2):
                    b(f'ds_read_b64_tr_b16 {v(fr + 8 * bb + 4 * kq + 2 * tt, 2)}, {v(ra + 2 * bb + tt)} offset:{512 * tt + 2048 * kq}')
        with b.atomic():
            b(f's_lshl_b32 {s(S_T0)}, {s(S_CG)}, 18')
            b(f's_lshl_b32 {s(S_T1)}, {s(S_TB)}, 11')
            b(f's_add_u32 {s(S_T0)}, {s(S_T0)}, {s(S_T1)}')
            b(f's_add_u32 {s(S_T0)}, {s(S_T0)}, {WS_Z2N}')
            b(f's_add_u32 {s(S_T1)}, {s(S_T0)}, {128 * 1024}')
            for bb in range(2):
                for kq in range(2):
                    so = S_T0 if bb == 0 else S_T1
                    b(f'buffer_store_dwordx4 {v(fr + 8 * bb + 4 * kq, 4)}, {v(V_L16)}, {s(SRD_WS, 4)}, {s(so)} offen offset:{1024 * kq} sc1', tag='z2n')
        stamp(b, 3)

    def flag_store(self, b, base, tagwait):
        b.wait_vm(tagwait)
        with b.atomic():
            b(f's_lshl4_add_u32 {s(S_T0)}, {s(S_RB)}, {s(S_CG)}')
            b(f's_lshl4_add_u32 {s(S_T0)}, {s(S_T0)}, {s(S_W)}')
            b(f's_lshl_b32 {s(S_T0)}, {s(S_T0)}, 2')
            b(f's_add_u32 {s(S_T0)}, {s(S_T0)}, {base}')
            b(f'v_mov_b32 {v(V_POLL)}, {s(S_N)}')
            b(f'buffer_store_dword {v(V_POLL)}, off, {s(SRD_WS, 4)}, {s(S_T0)} sc1', tag='flag')

    def t_epilogue(self, b, kind, acc, mid=None, midg=1):
        out = V_PV
        for g in range(4):
            if g == midg and mid:
                mid()
            xs = [acc + 8 * g + k for k in range(8)]
            if kind == 'gelu':
                gelu_group(b, xs, V_TMP)
            else:
                phi_group(b, xs, V_TMP)
            for k in range(4):
                b(f'v_cvt_pk_bf16_f32 {v(out + 4 * g + k)}, {v(xs[2 * k])}, {v(xs[2 * k + 1])}')
            so = S_O0 if g < 2 else S_O1
            b(f'buffer_store_dwordx4 {v(out + 4 * g, 4)}, {v(V_L16)}, {s(SRD_WS, 4)}, {s(so)} offen offset:{1024 * (g & 1)} sc1', tag='p1')

    def set_out_addr(self, b, kind, slab_code):
        with b.atomic():
            for l in slab_code:
                b(l)
            base, stride = (WS_PQ, 32768) if kind == 'q' else (WS_Z1F, 45056)
            b(f's_lshl_b32 {s(S_T4)}, {s(S_T4)}, 12')
            b(f's_add_u32 {s(S_T4)}, {s(S_T4)}, {base}')
            b(f's_mul_i32 {s(S_O0)}, {s(S_TB)}, {stride}')
            b(f's_add_u32 {s(S_O0)}, {s(S_O0)}, {s(S_T4)}')
            b(f's_add_u32 {s(S_O1)}, {s(S_O0)}, 2048')

    def k_epilogue(self, b):
        for g in range(4):
            xs = [V_ACC1 + 8 * g + k for k in range(8)]
            phi_group(b, xs, V_TMP)
            for k in range(4):
                b(f'v_cvt_pk_bf16_f32 {v(V_PK + 4 * g + k)}, {v(xs[2 * k])}, {v(xs[2 * k + 1])}')

    def v_epilogue(self, b):
        for k in range(16):
            b(f'v_cvt_pk_bf16_f32 {v(V_PV + k)}, {v(V_ACC1 + 2 * k)}, {v(V_ACC1 + 2 * k + 1)}')
        ones = V_TMP
        for k in range(4):
            b(f'v_mov_b32 {v(ones + k)}, 0x3f803f80')
        for par in range(2):
            for ch in range(2):
                g = 2 * ch + par
                kv, zz = V_KV + 16 * ch, V_KZ + 16 * ch
                c0 = '0' if par == 0 else v(kv, 16)
                c1 = '0' if par == 0 else v(zz, 16)
                b(f'v_mfma_f32_32x32x16_bf16 {v(kv, 16)}, {v(V_PK + 4 * g, 4)}, {v(V_PV + 4 * g, 4)}, {c0}')
                b(f'v_mfma_f32_32x32x16_bf16 {v(zz, 16)}, {v(V_PK + 4 * g, 4)}, {v(ones, 4)}, {c1}')

    def kv_finish(self, b, R0=R0):
        with b.atomic():
            b(f'v_and_b32 {v(V_T0)}, 31, {v(V_LANE)}')
            b(f'v_cmp_gt_u32 vcc, 16, {v(V_T0)}')
            for ch in range(2):
                kv, zz = V_KV + 16 * ch, V_KZ + 16 * ch
                for k in range(8):
                    b(f'v_cndmask_b32 {v(kv + k)}, {v(zz + k)}, {v(kv + k)}, vcc')
                for k in range(8, 16):
                    b(f'v_cndmask_b32 {v(kv + k)}, {v(kv + k)}, {v(zz + k)}, vcc')
            b('s_barrier')
            b(f's_lshl_b32 {s(S_T0)}, {s(S_W)}, 11')
            b(f's_add_u32 {s(S_T0)}, {s(S_T0)}, {R0}')
            b(f'v_add_u32 {v(V_T0)}, {s(S_T0)}, {v(V_L16)}')
            for d in range(4):
                for q in range(2):
                    b(f'ds_write_b128 {v(V_T0)}, {v(V_KV + 8 * d + 4 * q, 4)} offset:{8192 * d + 1024 * q}')
            b(f's_lshl_b32 {s(S_T0)}, {s(S_W)}, 13')
            b(f's_add_u32 {s(S_T0)}, {s(S_T0)}, {R0}')
            b(f'v_add_u32 {v(V_T0)}, {s(S_T0)}, {v(V_L16)}')
            b.wait_lds()
            b('s_barrier')
            X = V_KZ
            for src in range(4):
                for q in range(2):
                    b(f'ds_read_b128 {v(X + 8 * src + 4 * q, 4)}, {v(V_T0)} offset:{2048 * src + 1024 * q}')
            for k in range(8):
                b(f'v_add_f32 {v(X + k)}, {v(X + k)}, {v(X + 8 + k)}')
                b(f'v_add_f32 {v(X + 16 + k)}, {v(X + 16 + k)}, {v(X + 24 + k)}')
            for k in range(8):
                b(f'v_add_f32 {v(X + k)}, {v(X + k)}, {v(X + 16 + k)}')
            b(f's_lshl2_add_u32 {s(S_T0)}, {s(S_CG)}, {s(S_W)}')
            b(f's_lshl_b32 {s(S_T0)}, {s(S_T0)}, 15')
            b(f's_lshl_b32 {s(S_T1)}, {s(S_RB)}, 10')
            b(f's_add_u32 {s(S_T0)}, {s(S_T0)}, {s(S_T1)}')
            b(f's_add_u32 {s(S_T0)}, {s(S_T0)}, {WS_KVP}')
            for q in range(2):
                if q:
                    b(f's_add_u32 {s(S_T0)}, {s(S_T0)}, 16384')
                b(f'buffer_store_dwordx4 {v(X + 4 * q, 4)}, {v(V_L16)}, {s(SRD_WS, 4)}, {s(S_T0)} offen sc1', tag='p1')

    def pre_slab(self, b, tag):
        b.ensure(tag)
        b.wait_vm(tag)
        b('s_barrier')

    def mv_piece(self, b, p):
        b.ensure(f'a{p >> 1}_{p & 1}')
        b.wait_vm(f'a{p >> 1}_{p & 1}')
        a_piece_read(b, p >> 1, p & 1, f'h{p & 1}')

    def fetch_piece(self, b, p):
        b.add(a_piece_items(p >> 1, p & 1, f'h{p & 1}'))

    def mv_chunk(self, b, c, slot):
        b.ensure(f'a{c}_0')
        b.ensure(f'a{c}_1')
        b.wait_vm([f'a{c}_0', f'a{c}_1'])
        a_chunk_read(b, c, slot)

    def slab3_hooks(self, extra=None):
        h = {}

        def add(K, fn):
            h.setdefault(K, []).append(fn)
        K0 = OPT.get('k0', 20)
        if OPT.get('aplan', 1) == 2:
            for K, fn in (extra or {}).items():
                add(K, fn)
            return h
        add(K0, lambda b, y: self.mv_chunk(b, 0, 'f0'))
        add(K0 + 1, lambda b, y: (b(f's_waitcnt lgkmcnt({y})'), b.add(a_chunk_items(3, 'f0'))))
        add(K0 + 4, lambda b, y: self.mv_chunk(b, 1, 'f1'))
        add(K0 + 5, lambda b, y: (b(f's_waitcnt lgkmcnt({y})'), b.add(a_chunk_items(4, 'f1'))))
        add(K0 + 8, lambda b, y: self.mv_chunk(b, 2, 'f2'))
        add(K0 + 9, lambda b, y: (b(f's_waitcnt lgkmcnt({y})'), b.add(a_chunk_items(5, 'f2'))))
        for K, fn in (extra or {}).items():
            add(K, fn)
        return h

    def mid_a(self, b):
        if OPT.get('aplan', 1) == 2:
            return
        if not OPT.get('c0early', 1):
            b.add(a_chunk_items(0, 'f0'))
        b.add(a_chunk_items(1, 'f1'))

    def mid_b(self, b):
        pass

    def g_pass(self, b, R0=R0, hooks3=None):
        ga = V_T0 + 4
        b.wait_vm('gw')
        with b.atomic():
            b(f'v_lshrrev_b32 {v(ga)}, 5, {v(V_LANE)}')
            b(f'v_lshlrev_b32 {v(ga)}, 4, {v(ga)}')
            b(f's_lshl_b32 {s(S_T0)}, {s(S_W)}, 10')
            b(f's_add_u32 {s(S_T0)}, {s(S_T0)}, {R0}')
            b(f'v_add_u32 {v(ga)}, {s(S_T0)}, {v(ga)}')
        acc = V_ACC1
        sv = b.period
        b.period = 0
        hooks = hooks3 if hooks3 is not None else self.slab3_hooks()
        for K in range(32):
            wf = V_WF + 4 * (K & 3)
            if K == 0:
                for k2 in range(3):
                    b(f'ds_read_b128 {v(V_WF + 4 * k2, 4)}, {v(ga)} offset:{32 * k2}')
            if K + 3 < 32:
                b(f'ds_read_b128 {v(V_WF + 4 * ((K + 3) & 3), 4)}, {v(ga)} offset:{32 * (K + 3)}')
            b(f'v_mfma_f32_32x32x16_bf16 {v(acc, 16)}, {v(wf, 4)}, {a(A_X + 4 * K, 4)}, {"0" if K == 0 else v(acc, 16)}')
            for fn in hooks.get(K, []):
                fn(b, 1 if K + 3 < 32 else 0)
            b.pop(1)
        b.period = sv
        t = V_TMP
        b(f'v_mul_f32 {v(t)}, {hex(f2u(-LOG2E))}, {v(acc)}')
        b(f'v_exp_f32 {v(t)}, {v(t)}')
        b(f'v_add_f32 {v(t)}, 1.0, {v(t)}')
        b(f'v_rcp_f32 {v(t)}, {v(t)}')
        with b.atomic():
            b(f'v_and_b32 {v(t + 1)}, 31, {v(V_LANE)}')
            b(f'v_lshlrev_b32 {v(t + 1)}, 2, {v(t + 1)}')
            b(f's_lshl_b32 {s(S_T0)}, {s(S_TB)}, 7')
            b(f's_add_u32 {s(S_T0)}, {s(S_T0)}, {WS_GATE}')
            b(f'buffer_store_dword {v(t)}, {v(t + 1)}, {s(SRD_WS, 4)}, {s(S_T0)} offen sc1', tag='p1')

    def pre_epi3(self, b):
        if OPT.get('aplan', 1) == 2:
            b.add(a_chunk_items(1, 'f1'))
            b.add(a_chunk_items(2, 'f2'))

    def a_tail(self, b):
        b.flush()
        if OPT.get('s1late', 1) == 2:
            s1_issue(self, b)
        self.flag_store(b, WS_FP1, 'p1')

    def role_AB(self, role):
        b = St(self, 'ROLE' + role)
        b.label('L_role' + role)
        b.add(self.post_l1(b, role))
        orient = 'N' if role == 'A' else 'T'
        if OPT.get('w3z', 0):
            b.period = 9
            self.z2_epilogue(b, mid=lambda: self.w3_items(b))
            self.pre_slab(b, 'w2')
            self.set_wr(b, R2)
            stamp(b, 16)
            self.main_loop(b, orient, pop_every=1)
        else:
            b.period = 14
            self.z2_epilogue(b)
            self.pre_slab(b, 'w2')
            self.set_wr(b, R2)
            stamp(b, 16)
            self.w3_items(b)
            self.s3flag = (OPT.get('s3st') == 2)
            self.main_loop(b, orient, pop_every=1)
            self.s3flag = False
        stamp(b, 17)
        b.flush()
        b('s_barrier')
        self.stats_issue(b)
        b.period = 12
        if role == 'A':
            self.k_epilogue(b)
        else:
            self.set_out_addr(b, 'q', [f's_sub_u32 {s(S_T4)}, {s(S_CG)}, 8'])
            self.t_epilogue(b, 'phi', V_ACC1)
        stamp(b, 18)
        if OPT.get('aearly', 0):
            b.period = 7
            self.z2_norm(b, after_check=lambda: self.mid_a(b))
        else:
            self.z2_norm(b)
            self.mid_a(b)
        if OPT.get('aplan', 1) != 2:
            b.add(a_chunk_items(2, 'f2'))
        self.mid_b(b)
        self.pre_slab(b, 'w3')
        self.set_wr(b, R0)
        stamp(b, 20)
        hooks = self.slab3_hooks({OPT.get('kz', 12): lambda bb, y: self.flag_store(bb, WS_FZ2, 'z2n')})
        self.s3flag = (OPT.get('s3st') == 3)
        self.main_loop(b, orient, hooks)
        self.s3flag = False
        stamp(b, 21)
        b.period = 8
        late = OPT.get('s1late', 1)
        if not late:
            s1_issue(self, b)
        self.pre_epi3(b)
        if role == 'A':
            self.v_epilogue(b)
            if late == 1:
                s1_issue(self, b)
            self.kv_finish(b)
        else:
            self.set_out_addr(b, 'z1', [f's_sub_u32 {s(S_T4)}, {s(S_CG)}, 8'])
            self.t_epilogue(b, 'gelu', V_ACC1, mid=(lambda: s1_issue(self, b)) if late == 1 else None, midg=2)
        stamp(b, 23)
        self.a_tail(b)
        b('s_branch L_p1_done')
        return b.b

    def p3_slab2_hooks(self):
        h = {}

        def add(K, fn):
            h.setdefault(K, []).append(fn)
        add(0, lambda b, y: (b.add(a_chunk_items(1, 'g1')), b.add(a_chunk_items(2, 'g2'))))
        k0, k1, k2 = OPT.get('m0', 12), OPT.get('m1', 26), OPT.get('m2', 99)
        add(k0, lambda b, y: self.mv_chunk(b, 0, 'f0'))
        add(k0 + 1, lambda b, y: (b(f's_waitcnt lgkmcnt({y})'), b.add(a_chunk_items(3, 'f0'))))
        if k1 < 32:
            add(k1, lambda b, y: self.mv_chunk(b, 1, 'g1'))
        if k2 < 32:
            add(k2, lambda b, y: self.mv_chunk(b, 2, 'g2'))
        return h

    def p3_late_moves(self, b):
        if OPT.get('m1', 26) >= 32:
            self.mv_chunk(b, 1, 'g1')
        if OPT.get('m2', 99) >= 32:
            self.mv_chunk(b, 2, 'g2')

    def p3_slab3_hooks(self, extra=None):
        h = {}

        def add(K, fn):
            h.setdefault(K, []).append(fn)
        add(14, lambda b, y: self.mv_chunk(b, 4, 'f0'))
        add(15, lambda b, y: (b(f's_waitcnt lgkmcnt({y})'), b.add(a_chunk_items(7, 'f0'))))
        add(22, lambda b, y: self.mv_chunk(b, 5, 'g1'))
        add(30, lambda b, y: self.mv_chunk(b, 6, 'g2'))
        for K, fn in (extra or {}).items():
            add(K, fn)
        return h

    def p3_mid(self, b):
        self.mv_chunk(b, 3, 'f0')
        b.wait_lds()
        b.add(a_chunk_items(4, 'f0'))
        b.add(a_chunk_items(5, 'g1'))
        b.add(a_chunk_items(6, 'g2'))

    def p3_tail(self, b):
        b.flush()
        self.flag_store(b, WS_FP1, 'p1')
        self.mv_chunk(b, 7, 'f0')
        b.wait_lds()

    def role3(self, role):
        b = St(self, 'ROLE' + role)
        b.label('L_role' + role)
        z2 = role in 'AB'
        orient = 'N' if role == 'A' else 'T'
        b.add(self.post_l1(b, role))
        if z2:
            b.period = 14
            self.z2_epilogue(b)
        else:
            b.period = 8
            self.set_out_addr(b, 'q', [f's_sub_u32 {s(S_T4)}, {s(S_CG)}, 8'])
            self.t_epilogue(b, 'phi', V_ACC0)
        self.pre_slab(b, 'w2')
        self.set_wr(b, R2)
        b.flush()
        stamp(b, 16)
        self.main_loop(b, orient, self.p3_slab2_hooks())
        stamp(b, 17)
        b.flush()
        b('s_barrier')
        if z2:
            self.stats_issue(b)
        if role != 'D':
            self.w3_items(b, R2)
        else:
            srd(b, SRD_T, P_GW, 1024)
            b(f's_lshl_b32 {s(S_T0)}, {s(S_W)}, 10')
            b(f's_add_u32 m0, {s(S_T0)}, {R2}')
            b(f's_lshl_b32 {s(S_T0)}, {s(S_ROT)}, 7')
            b(f'v_add_u32 {v(V_T0)}, {s(S_T0)}, {v(V_L16)}')
            b(f'v_and_b32 {v(V_T0)}, 1023, {v(V_T0)}')
            b(f'buffer_load_dwordx4 {v(V_T0)}, {s(SRD_T, 4)}, 0 offen lds', tag='gw')
        b.period = OPT.get('p3p', 12)
        if role == 'A':
            self.k_epilogue(b)
        elif role == 'B':
            self.set_out_addr(b, 'q', [f's_sub_u32 {s(S_T4)}, {s(S_CG)}, 8'])
            self.t_epilogue(b, 'phi', V_ACC1)
        elif role == 'C':
            self.set_out_addr(b, 'z1', [f's_lshl_b32 {s(S_T4)}, {s(S_CG)}, 1', f's_sub_u32 {s(S_T4)}, {s(S_T4)}, 19'])
            self.t_epilogue(b, 'gelu', V_ACC1)
        else:
            self.set_out_addr(b, 'z1', [f's_sub_u32 {s(S_T4)}, {s(S_CG)}, 5'])
            self.t_epilogue(b, 'gelu', V_ACC1)
        stamp(b, 18)
        self.p3_late_moves(b)
        if z2:
            self.z2_norm(b)
        self.p3_mid(b)
        if role != 'D':
            self.pre_slab(b, 'w3')
            stamp(b, 20)
            extra = {OPT.get('kz', 12): lambda bb, y: self.flag_store(bb, WS_FZ2, 'z2n')} if z2 else None
            self.main_loop(b, orient, self.p3_slab3_hooks(extra))
            stamp(b, 21)
            b.period = 8
            if role == 'A':
                self.v_epilogue(b)
                s1_issue(self, b)
                self.kv_finish(b, R2)
            elif role == 'B':
                self.set_out_addr(b, 'z1', [f's_sub_u32 {s(S_T4)}, {s(S_CG)}, 8'])
                self.t_epilogue(b, 'gelu', V_ACC1, mid=lambda: s1_issue(self, b), midg=2)
            else:
                self.set_out_addr(b, 'z1', [f's_lshl_b32 {s(S_T4)}, {s(S_CG)}, 1', f's_sub_u32 {s(S_T4)}, {s(S_T4)}, 18'])
                self.t_epilogue(b, 'gelu', V_ACC1, mid=lambda: s1_issue(self, b), midg=2)
        else:
            self.g_pass(b, R2, self.p3_slab3_hooks())
            s1_issue(self, b)
        stamp(b, 23)
        self.p3_tail(b)
        b('s_branch L_p1_done')
        return b.b

    def role_CD(self, role):
        b = St(self, 'ROLE' + role)
        b.label('L_role' + role)
        b.add(self.post_l1(b, role))
        b.period = 8
        self.set_out_addr(b, 'q', [f's_sub_u32 {s(S_T4)}, {s(S_CG)}, 8'])
        self.t_epilogue(b, 'phi', V_ACC0)
        self.pre_slab(b, 'w2')
        self.set_wr(b, R2)
        if role == 'C':
            self.w3_items(b)
        else:
            b.flush()
            srd(b, SRD_T, P_GW, 1024)
            b(f's_lshl_b32 {s(S_T0)}, {s(S_W)}, 10')
            b(f's_add_u32 m0, {s(S_T0)}, {R0}')
            b(f's_lshl_b32 {s(S_T0)}, {s(S_ROT)}, 7')
            b(f'v_add_u32 {v(V_T0)}, {s(S_T0)}, {v(V_L16)}')
            b(f'v_and_b32 {v(V_T0)}, 1023, {v(V_T0)}')
            b(f'buffer_load_dwordx4 {v(V_T0)}, {s(SRD_T, 4)}, 0 offen lds', tag='gw')
            if OPT.get('c0early', 1) == 2:
                b.add(a_chunk_items(0, 'f0'))
        self.main_loop(b, 'T', pop_every=1)
        b.flush()
        b('s_barrier')
        self.mid_a(b)
        if OPT.get('aplan', 1) != 2:
            b.add(a_chunk_items(2, 'f2'))
        b.period = 12
        if role == 'C':
            self.set_out_addr(b, 'z1', [f's_lshl_b32 {s(S_T4)}, {s(S_CG)}, 1', f's_sub_u32 {s(S_T4)}, {s(S_T4)}, 19'])
            self.t_epilogue(b, 'gelu', V_ACC1)
            self.mid_b(b)
            self.pre_slab(b, 'w3')
            self.set_wr(b, R0)
            self.main_loop(b, 'T', self.slab3_hooks())
            b.period = 8
            late = OPT.get('s1late', 1)
            if not late:
                s1_issue(self, b)
            self.pre_epi3(b)
            self.set_out_addr(b, 'z1', [f's_lshl_b32 {s(S_T4)}, {s(S_CG)}, 1', f's_sub_u32 {s(S_T4)}, {s(S_T4)}, 18'])
            self.t_epilogue(b, 'gelu', V_ACC1, mid=(lambda: s1_issue(self, b)) if late == 1 else None, midg=2)
        else:
            self.set_out_addr(b, 'z1', [f's_sub_u32 {s(S_T4)}, {s(S_CG)}, 5'])
            self.t_epilogue(b, 'gelu', V_ACC1)
            self.mid_b(b)
            self.g_pass(b)
            if OPT.get('s1late', 1) != 2:
                s1_issue(self, b)
            self.pre_epi3(b)
        self.a_tail(b)
        b('s_branch L_p1_done')
        return b.b

    def build(self):
        P = self.prologue()
        LL = self.slab1(True)
        LP = self.slab1(False) if not OPT.get('sym', 1) else None
        if OPT.get('aplan', 1) == 3:
            A, B, C, D = [self.role3(r) for r in 'ABCD']
        else:
            A = self.role_AB('A')
            B = self.role_AB('B')
            C = self.role_CD('C')
            D = self.role_CD('D')
        E1 = St(self, 'E1')
        E1.label('L_p1_done')
        stamp(E1, 4)
        dstamp(E1, 4)
        from phase23 import emit_phase23
        P2, PH, PL, P3b = emit_phase23(self)
        END = self.blk('END')
        END.label('L_END')
        END('s_endpgm')
        P3 = Block('PRO_w3')
        P3.ins = [i for i in P.ins if not i.meta.get('loader')]
        rests = [[P2, PH, P3b], [P2, PL, P3b]]
        paths = [[P, LL, R, E1.b] + rest + [END] for R in (A, B, C, D) for rest in rests]
        if LP is not None:
            paths += [[P3, LP, R, E1.b] + rest + [END] for R in (A, B, C, D) for rest in rests]
        finalize(self.blocks, paths)

    def text(self):
        out = []
        for b in self.blocks:
            out.append(f'; ---- {b.name}')
            out.append(render(b))
        return '\n'.join(out) + '\n' + '\n'.join(self.slow) + '\n'


HEADER = '''; Fused gated-mix kernel: linear attention + gMLP, single persistent launch (256 workgroups x 256 threads)
; @launch grid=(256,1,1) block=(256,1,1) lds=163840
.amdgcn_target "amdgcn-amd-amdhsa--gfx950"
.text
.globl {k}
.p2align 8
.type {k},@function
{k}:
'''
FOOTER = '''
L_code_end:
    s_endpgm
.section .rodata,"a"
.p2align 6
.amdhsa_kernel {k}
  .amdhsa_next_free_vgpr 512
  .amdhsa_next_free_sgpr 102
  .amdhsa_accum_offset 256
  .amdhsa_group_segment_fixed_size 0
  .amdhsa_kernarg_size 96
  .amdhsa_user_sgpr_count 2
  .amdhsa_user_sgpr_kernarg_segment_ptr 1
  .amdhsa_system_sgpr_workgroup_id_x 1
  .amdhsa_float_denorm_mode_32 3
.end_amdhsa_kernel
'''


def generate(**opt):
    OPT.update(opt)
    g = Gen()
    g.build()
    return HEADER.format(k=KNAME) + g.text() + FOOTER.format(k=KNAME)


if __name__ == '__main__':
    opt = {}
    for arg in sys.argv[2:]:
        k, val = arg.split('=')
        opt[k] = int(val) if val.lstrip('-').isdigit() else val
    import gen as _g
    txt = _g.generate(**opt)
    open(sys.argv[1], 'w').write(txt)
```

```python
from asmlib import *
import gen as G
from gen import (v, a, s, f2u, LOG2E, OOB, stamp, srd, tr_addr, St,
                 WS_FZ2, WS_FP1, WS_FY, WS_FKV, WS_GATE, WS_KVF, WS_KVP, WS_Z2N, WS_Z1F, WS_PQ, WS_Y, WS_SIZE, WS_EPOCH,
                 SRD_X, SRD_W, SRD_WS, SRD_T, SRD_U, S_W, S_WG, S_I, S_J, S_N, S_T0, S_T1, S_T2, S_T3, S_T4, S_T5, S_T6, S_T7,
                 S_ROT, S_RB, S_CG, S_Q0, S_Q1,
                 P_BSP, P_WO, P_WOUT, P_OUT, V_LANE, V_L16, V_L8, V_T0, V_POLL)

S_FB0, S_NBLK = 70, 71
S_BO = 72
S_PART = 73
S_U = 74
S_YO, S_ZO = 75, 76
S_WOB = 77
S_KVO = 78
S_BB = 80
S_FBN = 88
SRD_KV = 44

V_PA = 8
V_PR = 14
V_XW = 16
V_XR = 20
V_BS = 21
V_G0 = 22
V_NG = 26
V_BNG = 27
V_KL = 32
ACC = [64, 96]
RING = 128
D = 12
V_GS = 176
V_X = 192
V_Z1 = 224
V_KS = 236
V_WO = 240
A_PQ, A_KV, A_Y = 0, 64, 96
KVSCR = 38912
PRIV = 40960
XOFF = 22528


def flag_addr(b, dst, n, tmp):
    b(f'v_and_b32 {v(tmp)}, 3, {v(n)}')
    b(f'v_lshrrev_b32 {v(n)}, 2, {v(n)}')
    b(f'v_lshlrev_b32 {v(n)}, 4, {v(n)}')
    b(f'v_add_lshl_u32 {v(dst)}, {v(n)}, {v(tmp)}, 2')


def s1_issue(g, b):
    t0, t1 = V_T0, V_T0 + 1
    with b.atomic():
        b(f's_mul_i32 {s(S_FB0)}, {s(S_J)}, 3')
        b(f's_min_u32 {s(S_FB0)}, {s(S_FB0)}, 20')
        b(f's_cmp_lt_u32 {s(S_J)}, 6')
        b(f's_cselect_b32 {s(S_NBLK)}, 3, 2')
        b(f's_add_u32 {s(S_T2)}, {s(S_FB0)}, {s(S_NBLK)}')
        b(f's_sub_u32 {s(S_T3)}, {s(S_T2)}, 1')
        if G.OPT.get('nbrot', 0):
            b(f's_lshr_b32 {s(S_T0)}, {s(S_WG)}, {6 if G.OPT.get("map", 0) else 5}')
            b(f's_mul_i32 {s(S_T1)}, {s(S_T0)}, 11')
            b(f's_lshr_b32 {s(S_T1)}, {s(S_T1)}, 5')
            b(f's_mul_i32 {s(S_T1)}, {s(S_T1)}, 3')
            b(f's_sub_u32 {s(S_T1)}, {s(S_T0)}, {s(S_T1)}')
            b(f's_and_b32 {s(S_T0)}, {s(S_T0)}, 1')
            b(f's_cmp_eq_u32 {s(S_NBLK)}, 3')
            b(f's_cselect_b32 {s(S_T0)}, {s(S_T1)}, {s(S_T0)}')
        else:
            b(f's_mov_b32 {s(S_T0)}, 0')
        for nb in range(3):
            b(f's_add_u32 {s(S_FBN + nb)}, {s(S_FB0)}, {s(S_T0)}')
            if nb:
                b(f's_add_u32 {s(S_FBN + nb)}, {s(S_FBN + nb)}, {nb}')
            b(f's_cmp_ge_u32 {s(S_FBN + nb)}, {s(S_T2)}')
            b(f's_cselect_b32 {s(S_T1)}, {s(S_NBLK)}, 0')
            b(f's_sub_u32 {s(S_FBN + nb)}, {s(S_FBN + nb)}, {s(S_T1)}')
        b(f's_lshr_b32 {s(S_T0)}, {s(S_FB0)}, 1')
        b(f's_lshr_b32 {s(S_T1)}, {s(S_T3)}, 1')
        b(f's_sub_u32 {s(S_T1)}, {s(S_T1)}, {s(S_T0)}')
        b(f'v_bfe_u32 {v(t0)}, {v(V_LANE)}, 3, 2')
        b(f'v_bfe_u32 {v(t1)}, {v(V_LANE)}, 2, 1')
        b(f'v_mul_u32_u24 {v(t1)}, {s(S_T1)}, {v(t1)}')
        b(f'v_lshl_add_u32 {v(t0)}, {v(t0)}, 4, {v(t1)}')
        b(f's_lshl_b32 {s(S_T2)}, {s(S_W)}, 6')
        b(f's_add_u32 {s(S_T2)}, {s(S_T2)}, {s(S_T0)}')
        b(f'v_add_u32 {v(t0)}, {s(S_T2)}, {v(t0)}')
        b(f'v_and_b32 {v(t1)}, 3, {v(V_LANE)}')
        b(f'v_lshl_add_u32 {v(t0)}, {v(t0)}, 2, {v(t1)}')
        flag_addr(b, V_PA, t0, t1)
        b(f's_mov_b32 {s(S_T7)}, {WS_FZ2}')
        b(f'buffer_load_dword {v(V_PR)}, {v(V_PA)}, {s(SRD_WS, 4)}, {s(S_T7)} offen sc1')


def bload(b, gi):
    nb, n = gi >> 5, gi & 31
    if n % 4 == 0:
        b(f's_add_u32 {s(S_BO)}, {s(G.S_ROT2)}, {n // 4}')
        b(f's_and_b32 {s(S_BO)}, {s(S_BO)}, 7')
        b(f's_lshl_b32 {s(S_BO)}, {s(S_BO)}, 12')
        b(f's_add_u32 {s(S_BO)}, {s(S_BO)}, {s(S_BB)}')
        b(f's_lshl_b32 {s(S_Q1)}, {s(S_FBN + nb)}, 17')
        b(f's_add_u32 {s(S_BO)}, {s(S_BO)}, {s(S_Q1)}')
    b(f'buffer_load_dwordx4 {v(RING + 4 * (gi % D), 4)}, {v(V_L16)}, {s(SRD_WS, 4)}, {s(S_BO)} offen offset:{1024 * (n & 3)} sc1')


NPRIME = 8


def early_prime(g, b):
    b.flush() if G.OPT.get('epf', 0) else None
    with b.atomic():
        b(f's_mov_b32 {s(S_T7)}, {WS_FZ2}')
        g.poll(b, V_PA, s(S_T7), V_PR, first_issued=True, mark=11)
        b(f's_lshl_b32 {s(S_T0)}, {s(S_W)}, 15')
        b(f's_add_u32 {s(S_BB)}, {s(S_T0)}, {WS_Z2N}')
        for gi in range(NPRIME):
            bload(b, gi)


def emit_phase23(g):
    t0, t1, t2 = V_T0, V_T0 + 1, V_T0 + 2
    b = St(g, 'P2')
    early = G.OPT.get('early', 0)
    if not early:
        b(f's_mov_b32 {s(S_T7)}, {WS_FZ2}')
        if not G.OPT.get('x_nos1'):
            g.poll(b, V_PA, s(S_T7), V_PR, first_issued=True, mark=11)
        b(f's_lshl_b32 {s(S_T0)}, {s(S_W)}, 15')
        b(f's_add_u32 {s(S_BB)}, {s(S_T0)}, {WS_Z2N}')
    stamp(b, 5)

    if G.OPT.get('aplan', 1) == 2:
        g.mv_chunk(b, 0, 'f0')
        b.wait_lds()
        b.add(G.a_chunk_items(3, 'f0'))
    for gi in range(NPRIME if early else 0, D):
        bload(b, gi)
        if gi % 2 == 1:
            b.pop(2)
    b.flush()
    b(f'v_lshlrev_b32 {v(V_BS)}, 16, {v(G.V_BSP)}')
    b(f's_lshr_b32 {s(S_T0)}, {s(S_I)}, 1')
    b(f's_lshl_b32 {s(S_T0)}, {s(S_T0)}, 6')
    b(f'v_add_u32 {v(t0)}, {s(S_T0)}, {v(V_LANE)}')
    flag_addr(b, V_PA + 1, t0, t1)
    b(f's_lshl_b32 {s(S_T0)}, {s(S_W)}, 11')
    b(f'v_add_u32 {v(t0)}, {s(S_T0)}, {v(V_L16)}')
    for d in range(4):
        b(f'v_add_u32 {v(V_XW + d)}, {PRIV * d + XOFF}, {v(t0)}')
    b(f's_mul_i32 {s(S_T0)}, {s(S_W)}, {PRIV}')
    b(f's_add_u32 {s(S_T0)}, {s(S_T0)}, {XOFF}')
    b(f'v_add_u32 {v(V_XR)}, {s(S_T0)}, {v(V_L16)}')
    b(f'v_and_b32 {v(t0)}, 31, {v(V_LANE)}')
    b(f'v_lshlrev_b32 {v(V_PA + 5)}, 2, {v(t0)}')
    b(f's_and_b32 {s(S_T0)}, {s(S_W)}, 1')
    b(f's_lshl1_add_u32 {s(S_T0)}, {s(S_I)}, {s(S_T0)}')
    b(f's_mul_i32 {s(S_T0)}, {s(S_T0)}, 45056')
    b(f's_lshr_b32 {s(S_T1)}, {s(S_W)}, 1')
    b(f's_lshl_b32 {s(S_T1)}, {s(S_T1)}, 10')
    b(f's_add_u32 {s(S_T0)}, {s(S_T0)}, {s(S_T1)}')
    b(f's_add_u32 {s(S_ZO)}, {s(S_T0)}, {WS_Z1F}')
    b(f's_add_u32 {s(S_YO)}, {s(S_T0)}, {WS_Y}')
    b(f's_cmp_ge_u32 {s(S_J)}, 6')
    b('s_cbranch_scc1 L_P2L')
    P2 = b.b

    def xw(nb, k):
        d, q = k >> 1, k & 1
        r = ACC[nb & 1] + 16 * (d & 1) + 8 * (d >> 1)
        return f'ds_write_b128 {v(V_XW + d)}, {v(r + 4 * q, 4)} offset:{8192 * (nb & 1) + 1024 * q}'

    def xr(nb, k):
        src, q = k >> 1, k & 1
        return f'ds_read_b128 {v(V_X + 8 * src + 4 * q, 4)}, {v(V_XR)} offset:{8192 * (nb & 1) + 2048 * src + 1024 * q}'

    def xsum(dst, pk=False):
        o = []
        if pk:
            for k in range(0, 8, 2):
                o.append(f'v_pk_add_f32 {v(V_X + k, 2)}, {v(V_X + k, 2)}, {v(V_X + 8 + k, 2)}')
            for k in range(0, 8, 2):
                o.append(f'v_pk_add_f32 {v(V_X + 16 + k, 2)}, {v(V_X + 16 + k, 2)}, {v(V_X + 24 + k, 2)}')
            for k in range(0, 8, 2):
                o.append(f'v_pk_add_f32 {v(dst + k, 2)}, {v(V_X + k, 2)}, {v(V_X + 16 + k, 2)}')
            return o
        for k in range(8):
            o.append(f'v_add_f32 {v(V_X + k)}, {v(V_X + k)}, {v(V_X + 8 + k)}')
        for k in range(8):
            o.append(f'v_add_f32 {v(V_X + 16 + k)}, {v(V_X + 16 + k)}, {v(V_X + 24 + k)}')
        for k in range(8):
            o.append(f'v_add_f32 {v(dst + k)}, {v(V_X + k)}, {v(V_X + 16 + k)}')
        return o

    def ymath(nb, gs):
        o = []
        z = V_Z1 + 4 * nb
        tmp = RING
        pk = G.OPT.get('pk', 1)
        if pk:
            for k in range(0, 8, 2):
                o.append(f'v_pk_fma_f32 {v(gs + k, 2)}, {v(gs + k, 2)}, {v(RING + 8, 2)}, {v(RING + 10, 2)}')
        else:
            for k in range(8):
                o.append(f'v_fma_f32 {v(gs + k)}, {v(gs + k)}, {v(V_NG)}, {v(V_BNG)}')
        for k in range(4):
            o.append(f'v_lshlrev_b32 {v(tmp + 2 * k)}, 16, {v(z + k)}')
            o.append(f'v_and_b32 {v(tmp + 2 * k + 1)}, 0xffff0000, {v(z + k)}')
        if pk:
            for k in range(0, 8, 2):
                o.append(f'v_pk_mul_f32 {v(gs + k, 2)}, {v(gs + k, 2)}, {v(tmp + k, 2)}')
        else:
            for k in range(8):
                o.append(f'v_mul_f32 {v(gs + k)}, {v(gs + k)}, {v(tmp + k)}')
        for k in range(4):
            o.append(f'v_cvt_pk_bf16_f32 {v(z + k)}, {v(gs + 2 * k)}, {v(gs + 2 * k + 1)}')
        return o

    def ystore(b, nb):
        b(f's_lshl_b32 {s(S_T0)}, {s(S_FBN + nb)}, 11')
        b(f's_add_u32 {s(S_T0)}, {s(S_T0)}, {s(S_YO)}')
        b(f'buffer_store_dwordx4 {v(V_Z1 + 4 * nb, 4)}, {v(V_L16)}, {s(SRD_WS, 4)}, {s(S_T0)} offen sc1', tag='y')

    def tail_loads(nblk):
        it = []
        for z in range(nblk):
            it.append([f's_lshl_b32 {s(S_T0)}, {s(S_FBN + z)}, 11',
                       f's_add_u32 {s(S_T0)}, {s(S_T0)}, {s(S_ZO)}',
                       f'buffer_load_dwordx4 {v(V_Z1 + 4 * z, 4)}, {v(V_L16)}, {s(SRD_WS, 4)}, {s(S_T0)} offen sc1'])
        it.append([f's_lshl_b32 {s(S_T0)}, {s(S_I)}, 8',
                   f's_add_u32 {s(S_T0)}, {s(S_T0)}, {WS_GATE}',
                   f'buffer_load_dword {v(V_G0)}, {v(V_PA + 5)}, {s(SRD_WS, 4)}, {s(S_T0)} offen sc1',
                   f'buffer_load_dword {v(V_G0 + 1)}, {v(V_PA + 5)}, {s(SRD_WS, 4)}, {s(S_T0)} offen offset:128 sc1'])
        for hd in range(8):
            for tb in range(2):
                l = []
                if hd % 4 == 0:
                    l = [f's_lshl1_add_u32 {s(S_Q0 + tb)}, {s(S_I)}, {tb}',
                         f's_lshl_b32 {s(S_Q0 + tb)}, {s(S_Q0 + tb)}, 15',
                         f's_lshl_b32 {s(S_T1)}, {s(S_W)}, 13',
                         f's_add_u32 {s(S_Q0 + tb)}, {s(S_Q0 + tb)}, {s(S_T1)}',
                         f's_add_u32 {s(S_Q0 + tb)}, {s(S_Q0 + tb)}, {WS_PQ + 1024 * hd}']
                l.append(f'buffer_load_dwordx4 {a(A_PQ + 4 * (2 * hd + tb), 4)}, {v(V_L16)}, {s(SRD_WS, 4)}, {s(S_Q0 + tb)} offen offset:{1024 * (hd & 3)} sc1')
                it.append(l)
        return it

    def gate_setup():
        return [[f's_and_b32 {s(S_T0)}, {s(S_W)}, 1',
                 f's_cmp_eq_u32 {s(S_T0)}, 0',
                 f's_cselect_b64 vcc, -1, 0',
                 f'v_cndmask_b32 {v(V_NG)}, {v(V_G0 + 1)}, {v(V_G0)}, vcc'],
                f'v_sub_f32 {v(V_NG)}, 1.0, {v(V_NG)}',
                f'v_mul_f32 {v(V_BNG)}, {v(V_BS)}, {v(V_NG)}',
                f'v_mov_b32 {v(RING + 8)}, {v(V_NG)}', f'v_mov_b32 {v(RING + 9)}, {v(V_NG)}',
                f'v_mov_b32 {v(RING + 10)}, {v(V_BNG)}', f'v_mov_b32 {v(RING + 11)}, {v(V_BNG)}']

    def emit1(b, x):
        if isinstance(x, list):
            for y in x:
                emit1(b, y)
        elif isinstance(x, tuple):
            b(x[1], tag=x[0])
        else:
            b(x)

    def main_stream(light):
        b = St(g, 'P2L' if light else 'P2H')
        nblk = 2 if light else 3
        NG = 32 * nblk
        if light:
            b.label('L_P2L')
            b(f's_lshl_b32 {s(S_U)}, {s(S_I)}, 1')
            b(f's_and_b32 {s(S_T0)}, {s(S_J)}, 1')
            b(f's_add_u32 {s(S_U)}, {s(S_U)}, {s(S_T0)}')
            b(f's_lshr_b32 {s(S_T0)}, {s(S_U)}, 3')
            b(f'v_lshrrev_b32 {v(t0)}, 2, {v(V_LANE)}')
            b(f'v_lshlrev_b32 {v(t0)}, 4, {v(t0)}')
            b(f'v_add_u32 {v(t0)}, {s(S_T0)}, {v(t0)}')
            b(f'v_and_b32 {v(t1)}, 3, {v(V_LANE)}')
            b(f'v_lshl_add_u32 {v(t0)}, {v(t0)}, 2, {v(t1)}')
            flag_addr(b, V_PA + 2, t0, t1)
            b(f's_mov_b32 {s(SRD_KV)}, {s(SRD_WS)}')
            b(f's_mov_b32 {s(SRD_KV + 1)}, {s(SRD_WS + 1)}')
            b(f's_cmp_lt_u32 {s(S_W)}, 2')
            b(f's_cselect_b32 {s(SRD_KV + 2)}, {hex(WS_SIZE - (G.OPT.get('wsoff', 0) << 20))}, 0')
            b(f's_mov_b32 {s(SRD_KV + 3)}, 0x20000')
            b(f's_lshl_b32 {s(S_KVO)}, {s(S_U)}, 14')
            b(f's_and_b32 {s(S_T0)}, {s(S_W)}, 1')
            b(f's_lshl_b32 {s(S_T0)}, {s(S_T0)}, 13')
            b(f's_add_u32 {s(S_KVO)}, {s(S_KVO)}, {s(S_T0)}')
            b(f's_add_u32 {s(S_KVO)}, {s(S_KVO)}, {WS_KVP}')
        fill = []
        items = []

        def drain(n):
            k = 0
            while fill and k < n:
                x = fill.pop(0)
                emit1(b, x)
                k += len(x) if isinstance(x, list) else 1

        if G.OPT.get('kvf2', 1):
            KV_ISSUE, KV_CHECK, KV_SUM, KV_WR, KV_RD, KV_FLAG, KV_OWNBAR = 10, 22, 38, 43, 45, 61, False
        else:
            KV_ISSUE, KV_CHECK, KV_SUM, KV_WR, KV_RD, KV_FLAG, KV_OWNBAR = 20, 34, 52, 58, 58, 999, True

        KLQ = [176, 180, 184, 188, 240, 244, 248, 252] if G.OPT.get('kvf2', 1) else [V_KL + 4 * r for r in range(8)]

        def kv_flag(b):
            b.wait_vm('kvf')
            b(f's_lshl_b32 {s(S_T0)}, {s(S_U)}, 4')
            b(f's_add_u32 {s(S_T0)}, {s(S_T0)}, {WS_FKV}')
            b(f'v_mov_b32 {v(V_POLL)}, {s(S_N)}')
            b(f'buffer_store_dword {v(V_POLL)}, off, {s(SRD_KV, 4)}, {s(S_T0)} sc1', tag='flag')
        n0 = b.mark()
        GP = NG - 36
        GT = NG - D
        for gi in range(NG):
            nb, n = gi >> 5, gi & 31
            acc = ACC[nb & 1]
            for tb in range(2):
                c = '0' if n == 0 else v(acc + 16 * tb, 16)
                b(f'v_mfma_f32_32x32x16_bf16 {v(acc + 16 * tb, 16)}, {v(RING + 4 * (gi % D), 4)}, {a(8 * n + 4 * tb, 4)}, {c}')
            if gi + D < NG:
                bload(b, gi + D)
            if G.OPT.get('aplan', 1) == 2:
                mv = {1: 1, 2: 5, 3: 9, 4: 13, 5: 17, 6: 21, 7: 25}
                for c, st in mv.items():
                    if gi == st:
                        g.mv_chunk(b, c, f'f{c % 3}')
                    if gi == st + 1 and c + 3 < 8:
                        b.wait_lds()
                        b.add(G.a_chunk_items(c + 3, f'f{c % 3}'))
            elif G.OPT.get('aplan', 1) == 1:
                if gi == 4:
                    g.mv_chunk(b, 3, 'f0')
                if gi == 5:
                    b.wait_lds()
                    b.add(G.a_chunk_items(6, 'f0'))
                if gi == 10:
                    g.mv_chunk(b, 4, 'f1')
                if gi == 11:
                    b.wait_lds()
                    b.add(G.a_chunk_items(7, 'f1'))
                if gi == 16:
                    g.mv_chunk(b, 5, 'f2')
                if gi == 22:
                    g.mv_chunk(b, 6, 'f0')
                if gi == 26:
                    g.mv_chunk(b, 7, 'f1')
            if gi == NG - 6 and G.OPT.get('kvearly', 0):
                b(f'v_and_b32 {v(t0)}, 15, {v(V_LANE)}')
                b(f's_lshl_b32 {s(S_T0)}, {s(S_W)}, 4')
                b(f'v_add_u32 {v(t0)}, {s(S_T0)}, {v(t0)}')
                b(f'v_lshlrev_b32 {v(V_PA + 3)}, 4, {v(t0)}')
                b(f's_mov_b32 {s(S_T7)}, {WS_FKV}')
                b(f'buffer_load_dword {v(V_PR + 1)}, {v(V_PA + 3)}, {s(SRD_WS, 4)}, {s(S_T7)} offen sc1')
            if gi == 14 and early:
                g.flag_store(b, WS_FP1, 'p1')
            if gi == 31:
                b.wait_lds()
                b('s_barrier')
            if b.q:
                b.pop(2)
            if gi == GP:
                b(f's_mov_b32 {s(S_T7)}, {WS_FP1}')
                b(f'buffer_load_dword {v(V_PR)}, {v(V_PA + 1)}, {s(SRD_WS, 4)}, {s(S_T7)} offen sc1')
            if light and gi == KV_ISSUE:
                b(f's_mov_b32 {s(S_T7)}, {WS_FP1}')
                b(f'buffer_load_dword {v(V_PR + 1)}, {v(V_PA + 2)}, {s(SRD_WS, 4)}, {s(S_T7)} offen sc1')
            if light and gi == KV_CHECK:
                b(f's_mov_b32 {s(S_T7)}, {WS_FP1}')
                g.poll(b, V_PA + 2, s(S_T7), V_PR + 1, first_issued=True, mark=13)
                for r in range(8):
                    l = []
                    if r % 4 == 0:
                        l = [f's_add_u32 {s(S_Q0)}, {s(S_KVO)}, {1024 * r}']
                    l.append(f'buffer_load_dwordx4 {v(KLQ[r], 4)}, {v(V_L16)}, {s(SRD_KV, 4)}, {s(S_Q0)} offen offset:{1024 * (r & 3)} sc1')
                    items.append(l)
            if nb > 0:
                if 2 <= n < 10:
                    b(xw(nb - 1, n - 2))
                if n == 12:
                    b.wait_lds()
                    b('s_barrier')
                if 12 <= n < 20:
                    b(xr(nb - 1, n - 12))
                if n == 21:
                    fill.extend(xsum(V_GS + 8 * (nb - 1)))
            if gi == GT:
                drain(len(fill))
                b(f's_mov_b32 {s(S_T7)}, {WS_FP1}')
                g.poll(b, V_PA + 1, s(S_T7), V_PR, first_issued=True, mark=15)
                items.extend(tail_loads(nblk))
            if light and gi == KV_SUM:
                for r in range(0, 8, 2):
                    for k in range(4):
                        fill.append(f'v_add_f32 {v(KLQ[r] + k)}, {v(KLQ[r] + k)}, {v(KLQ[r + 1] + k)}')
                for k in range(4):
                    fill.append(f'v_add_f32 {v(KLQ[0] + k)}, {v(KLQ[0] + k)}, {v(KLQ[2] + k)}')
                    fill.append(f'v_add_f32 {v(KLQ[4] + k)}, {v(KLQ[4] + k)}, {v(KLQ[6] + k)}')
                for k in range(4):
                    fill.append(f'v_add_f32 {v(V_KS + k)}, {v(KLQ[0] + k)}, {v(KLQ[4] + k)}')
            if light and gi == KV_WR:
                drain(len(fill))
                b(f's_mul_i32 {s(S_T0)}, {s(S_W)}, {PRIV}')
                b(f's_add_u32 {s(S_T0)}, {s(S_T0)}, {KVSCR}')
                b(f'v_add_u32 {v(t0)}, {s(S_T0)}, {v(V_L16)}')
                b(f'ds_write_b128 {v(t0)}, {v(V_KS, 4)}')
                if KV_OWNBAR:
                    b.wait_lds()
                    b('s_barrier')
            if light and gi == KV_RD:
                b(f'v_add_u32 {v(t0)}, {PRIV + KVSCR}, {v(V_L16)}')
                b(f'ds_read_b128 {v(KLQ[4], 4)}, {v(t0)}')
                for k in range(4):
                    b(f'v_add_f32 {v(V_KS + k)}, {v(V_KS + k)}, {v(KLQ[4] + k)}')
                b(f'v_cvt_pk_bf16_f32 {v(V_KS)}, {v(V_KS)}, {v(V_KS + 1)}')
                b(f'v_cvt_pk_bf16_f32 {v(V_KS + 1)}, {v(V_KS + 2)}, {v(V_KS + 3)}')
                b(f's_cmp_eq_u32 {s(S_W)}, 0')
                b(f's_cselect_b32 {s(SRD_KV + 2)}, {hex(ws_rec())}, 0')
                b(f's_lshr_b32 {s(S_T0)}, {s(S_U)}, 1')
                b(f's_lshl_b32 {s(S_T0)}, {s(S_T0)}, 10')
                b(f's_and_b32 {s(S_T1)}, {s(S_U)}, 1')
                b(f's_lshl_b32 {s(S_T1)}, {s(S_T1)}, 3')
                b(f's_add_u32 {s(S_T0)}, {s(S_T0)}, {s(S_T1)}')
                b(f's_add_u32 {s(S_T0)}, {s(S_T0)}, {WS_KVF}')
                b(f'buffer_store_dwordx2 {v(V_KS, 2)}, {v(V_L16)}, {s(SRD_KV, 4)}, {s(S_T0)} offen sc1', tag='kvf')
            if light and gi == KV_FLAG:
                kv_flag(b)
            for _ in range(2 if gi >= GT else 1):
                if items:
                    emit1(b, items.pop(0))
            drain(6)
            if gi in (7, 23, 31, 47, 63, 79):
                stamp(b, 24 + (7, 23, 31, 47, 63, 79).index(gi))
        while items:
            emit1(b, items.pop(0))
        drain(len(fill))
        b.weave_from(n0, G=5)
        stamp(b, 6)
        G.dstamp(b, 5)
        if light and KV_FLAG > NG:
            kv_flag(b)
        last = nblk - 1
        for k in range(8):
            b(xw(last, k))
        for x in gate_setup():
            emit1(b, x)
        b.wait_lds()
        b('s_barrier')
        for k in range(8):
            b(xr(last, k))
        for nb in range(last):
            for x in ymath(nb, V_GS + 8 * nb):
                emit1(b, x)
            ystore(b, nb)
        for x in xsum(V_GS, G.OPT.get('pk', 1)) + ymath(last, V_GS):
            emit1(b, x)
        ystore(b, last)
        stamp(b, 7)
        if light:
            ep = g.lab('EP')
            b(f's_lshl_b32 {s(S_T0)}, {s(S_I)}, 5')
            b(f's_lshl2_add_u32 {s(S_T0)}, {s(S_J)}, {s(S_T0)}')
            b(f's_add_u32 {s(S_T0)}, {s(S_T0)}, {s(S_W)}')
            b(f's_cmp_lg_u32 {s(S_T0)}, {6 * 4 + 3}')
            b(f's_cbranch_scc1 {ep}_end')
            txt = [f'    v_and_b32 {v(t1)}, 3, {v(V_LANE)}', f'    v_lshrrev_b32 {v(t0)}, 2, {v(V_LANE)}',
                   f'    v_lshlrev_b32 {v(t0)}, 4, {v(t0)}', f'    v_add_lshl_u32 {v(t0)}, {v(t0)}, {v(t1)}, 2']
            for k in range(16):
                txt.append(f'    s_mov_b32 {s(S_T3)}, {WS_FP1 + 1024 * k}')
                txt.append(f'    buffer_load_dword {v(32 + k)}, {v(t0)}, {s(SRD_WS, 4)}, {s(S_T3)} offen sc1')
            txt = [f'    s_mov_b32 {s(G.S_CNT)}, {G.SPIN_MAX}', f'{ep}:'] + txt + ['    s_waitcnt vmcnt(0)']
            for k in range(16):
                txt.append(f'    v_xor_b32 {v(32 + k)}, {s(S_N)}, {v(32 + k)}')
            for k in range(1, 16, 2):
                hi = 32 + k + 1 if k + 1 < 16 else 32 + k
                txt.append(f'    v_or3_b32 {v(32)}, {v(32)}, {v(32 + k)}, {v(hi)}')
            txt += [f'    v_cmp_ne_u32 vcc, 0, {v(32)}', f'    s_cbranch_vccz {ep}_ok',
                    f'    s_sub_u32 {s(G.S_CNT)}, {s(G.S_CNT)}, 1', f'    s_cmp_lg_u32 {s(G.S_CNT)}, 0', f'    s_cbranch_scc1 {ep}',
                    f'{ep}_ok:', f'    v_mov_b32 {v(V_POLL)}, {s(S_N)}',
                    f'    buffer_store_dword {v(V_POLL)}, off, {s(SRD_WS, 4)}, 0 sc1', f'{ep}_end:']
            b.b.raw('\n'.join(txt))
        else:
            b('s_branch L_P3')
        return b.b

    PH = main_stream(False)
    PL = main_stream(True)

    b = St(g, 'P3')
    b.label('L_P3')
    ACC3 = 64
    T = [224, 240]
    b(f'v_bfe_u32 {v(t0)}, {v(V_LANE)}, 2, 1')
    b(f'v_bfe_u32 {v(t1)}, {v(V_LANE)}, 4, 1')
    b(f'v_xor_b32 {v(t0)}, {v(t0)}, {v(t1)}')
    b(f'v_and_b32 {v(t1)}, 3, {v(V_LANE)}')
    b(f'v_lshlrev_b32 {v(t1)}, 4, {v(t1)}')
    b(f'v_lshl_add_u32 {v(t0)}, {v(t0)}, 6, {v(t1)}')
    b(f'v_lshrrev_b32 {v(t1)}, 3, {v(V_LANE)}')
    b(f'v_lshl_add_u32 {v(t0)}, {v(t1)}, 10, {v(t0)}')
    b(f's_lshl_b32 {s(S_T0)}, {s(S_J)}, 7')
    VW = 28
    b(f'v_add_u32 {v(VW)}, {s(S_T0)}, {v(t0)}')
    b(f'v_add_u32 {v(VW + 1)}, 7168, {v(VW)}')
    b(f's_cmp_eq_u32 {s(S_W)}, 0')
    b(f's_cselect_b32 {s(S_T0)}, {hex(OOB)}, 0')
    b(f'v_add_u32 {v(32)}, {s(S_T0)}, {v(VW)}')
    b(f's_mul_i32 {s(S_WOB)}, {s(S_W)}, {176 * 1024}')
    b(f's_sub_u32 {s(S_WOB)}, {s(S_WOB)}, 16384')
    b(f's_mul_i32 {s(S_PART)}, {s(S_W)}, {PRIV}')
    srd(b, SRD_X, P_WO, 512 * 1024)
    srd(b, SRD_U, P_WOUT, 688 * 1024)

    def wo_items(hd):
        return [[f's_add_u32 m0, {s(S_PART)}, {XOFF + 2048 * hd}',
                 f's_lshl_b32 {s(S_Q0)}, {s(S_W)}, 17',
                 f's_add_u32 {s(S_Q0)}, {s(S_Q0)}, {16384 * hd}',
                 (f'wo{hd}', f'buffer_load_dwordx4 {v(VW)}, {s(SRD_X, 4)}, {s(S_Q0)} offen{G.NT(8)} lds')],
                [(f'wo{hd}', f'buffer_load_dwordx4 {v(VW + 1)}, {s(SRD_X, 4)}, {s(S_Q0)} offen offset:1024{G.NT(8)} lds')]]

    def wout_items():
        it = []
        for i in range(22):
            vo = 32 if i < 2 else VW
            it.append([f's_add_u32 m0, {s(S_PART)}, {1024 * i}',
                       f's_add_u32 {s(S_Q0)}, {s(S_WOB)}, {8192 * i}',
                       f's_max_i32 {s(S_Q0)}, {s(S_Q0)}, 0',
                       ('wout', f'buffer_load_dwordx4 {v(vo)}, {s(SRD_U, 4)}, {s(S_Q0)} offen{G.NT(8)} lds')])
        return it

    def kvf_loads():
        b(f's_lshl_b32 {s(S_T0)}, {s(S_W)}, 13')
        b(f's_add_u32 {s(S_T0)}, {s(S_T0)}, {WS_KVF}')
        for hd in range(8):
            if hd == 4:
                b(f's_add_u32 {s(S_T0)}, {s(S_T0)}, 4096')
            b(f'buffer_load_dwordx4 {a(A_KV + 4 * hd, 4)}, {v(V_L16)}, {s(SRD_WS, 4)}, {s(S_T0)} offen offset:{1024 * (hd & 3)} sc1')

    def y_flag():
        b.wait_vm('y')
        b(f's_lshl3_add_u32 {s(S_T0)}, {s(S_I)}, {s(S_J)}')
        b(f's_lshl4_add_u32 {s(S_T0)}, {s(S_T0)}, {s(S_W)}')
        b(f's_lshl_b32 {s(S_T0)}, {s(S_T0)}, 2')
        b(f's_add_u32 {s(S_T0)}, {s(S_T0)}, {WS_FY}')
        b(f'v_mov_b32 {v(V_POLL)}, {s(S_N)}')
        b(f'buffer_store_dword {v(V_POLL)}, off, {s(SRD_WS, 4)}, {s(S_T0)} sc1', tag='flag')

    V_TW = 26
    if G.OPT.get('kvearly', 0):
        b(f's_mov_b32 {s(S_T7)}, {WS_FKV}')
        g.poll(b, V_PA + 3, s(S_T7), V_PR + 1, first_issued=True, mark=19)
        stamp(b, 14)
        kvf_loads()
        for hd in range(4):
            b.add(wo_items(hd))
        b.flush()
        tr_addr(b, V_TW, True)
        b(f'v_add_u32 {v(V_TW)}, {s(S_PART)}, {v(V_TW)}')
        b(f'v_xor_b32 {v(V_TW + 1)}, 64, {v(V_TW)}')
        y_flag()
        stamp(b, 8)
    else:
        b(f'v_and_b32 {v(t0)}, 15, {v(V_LANE)}')
        b(f's_lshl_b32 {s(S_T0)}, {s(S_W)}, 4')
        b(f'v_add_u32 {v(t0)}, {s(S_T0)}, {v(t0)}')
        b(f'v_lshlrev_b32 {v(V_PA + 3)}, 4, {v(t0)}')
        b(f's_mov_b32 {s(S_T7)}, {WS_FKV}')
        b(f'buffer_load_dword {v(V_PR)}, {v(V_PA + 3)}, {s(SRD_WS, 4)}, {s(S_T7)} offen sc1')
        for hd in range(4):
            b.add(wo_items(hd))
        b.flush()
        tr_addr(b, V_TW, True)
        b(f'v_add_u32 {v(V_TW)}, {s(S_PART)}, {v(V_TW)}')
        b(f'v_xor_b32 {v(V_TW + 1)}, 64, {v(V_TW)}')
        y_flag()
        stamp(b, 8)
        g.poll(b, V_PA + 3, s(S_T7), V_PR, first_issued=True, mark=19)
        stamp(b, 14)
        kvf_loads()
    for hd in range(4, 8):
        b.add(wo_items(hd))
    b.add(wout_items())
    WFR = 48
    OF = [[8, 12], [16, 4]]
    eps = hex(f2u(1e-6))

    def num(hd):
        for tb in range(2):
            b(f'v_mfma_f32_32x32x16_bf16 {v(T[tb], 16)}, {a(A_KV + 4 * hd, 4)}, {a(A_PQ + 4 * (2 * hd + tb), 4)}, 0')

    def wread(hd):
        st = hd & 1
        b.ensure(f'wo{hd}')
        b.wait_vm(f'wo{hd}')
        for db in range(2):
            for t in range(2):
                b(f'ds_read_b64_tr_b16 {v(WFR + 8 * st + 4 * db + 2 * t, 2)}, {v(V_TW + db)} offset:{XOFF + 2048 * hd + 1024 * t}')

    def post(hd, tb):
        n0, dn = (T[tb], T[tb] + 8) if hd % 2 == 0 else (T[tb] + 8, T[tb])
        b(f'v_add_f32 {v(dn)}, {eps}, {v(dn)}')
        b(f'v_rcp_f32 {v(dn)}, {v(dn)}')
        b(f'v_mul_f32 {v(dn)}, {v(dn)}, {v(V_G0 + tb)}')
        for k in range(8):
            b(f'v_mul_f32 {v(n0 + k)}, {v(n0 + k)}, {v(dn)}')
        of = OF[hd & 1][tb]
        for k in range(4):
            b(f'v_cvt_pk_bf16_f32 {v(of + k)}, {v(n0 + 2 * k)}, {v(n0 + 2 * k + 1)}')

    def outm(hd):
        st = hd & 1
        for tb in range(2):
            for db in range(2):
                acc = ACC3 + 16 * (2 * tb + db)
                c = '0' if hd == 0 else v(acc, 16)
                b(f'v_mfma_f32_32x32x16_bf16 {v(acc, 16)}, {v(WFR + 8 * st + 4 * db, 4)}, {v(OF[st][tb], 4)}, {c}')

    S_Y0, S_Y1 = S_KVO, S_WOB + 4

    def y_items():
        it = []
        for n in range(11):
            for tb in range(2):
                l = []
                sy = (S_KVO, 81)[tb]
                if n % 4 == 0:
                    l = [f's_lshl1_add_u32 {s(sy)}, {s(S_I)}, {tb}',
                         f's_mul_i32 {s(sy)}, {s(sy)}, 45056',
                         f's_mul_i32 {s(S_Q1)}, {s(S_W)}, {11 * 1024}',
                         f's_add_u32 {s(sy)}, {s(sy)}, {s(S_Q1)}',
                         f's_add_u32 {s(sy)}, {s(sy)}, {WS_Y + 1024 * n}']
                l.append(f'buffer_load_dwordx4 {a(A_Y + 8 * n + 4 * tb, 4)}, {v(V_L16)}, {s(SRD_WS, 4)}, {s(sy)} offen offset:{1024 * (n & 3)} sc1')
                it.append(l)
        return it

    b.period = G.OPT.get('abp', 8)
    n0 = b.mark()
    for hd in range(8):
        num(hd)
        wread(hd)
        if hd > 0:
            outm(hd - 1)
        post(hd, 0)
        post(hd, 1)
        if hd == G.OPT.get('s3i', 2):
            with b.atomic():
                b(f'v_and_b32 {v(t1)}, 31, {v(V_LANE)}')
                b(f's_lshl_b32 {s(S_T0)}, {s(S_I)}, 5')
                b(f'v_add_u32 {v(t1)}, {s(S_T0)}, {v(t1)}')
                flag_addr(b, 20, t1, t0)
                b(f's_mov_b32 {s(S_T7)}, {WS_FY}')
                b(f'buffer_load_dword {v(21)}, {v(20)}, {s(SRD_WS, 4)}, {s(S_T7)} offen sc1')
        if hd == G.OPT.get('s3c', 5):
            g.poll(b, 20, s(S_T7), 21, first_issued=True, mark=22)
            stamp(b, 10)
            b.add(y_items())
    outm(7)
    b.flush()
    b.weave_from(n0, G=6)
    b.period = 0
    stamp(b, 9)
    G.dstamp(b, 6)
    b.wait_vm('wout')

    def woutread(n):
        st = n & 1
        for db in range(2):
            for t in range(2):
                b(f'ds_read_b64_tr_b16 {v(WFR + 8 * st + 4 * db + 2 * t, 2)}, {v(V_TW + db)} offset:{2048 * n + 1024 * t}')
    n0 = b.mark()
    woutread(0)
    for n in range(11):
        if n + 1 < 11:
            woutread(n + 1)
        st = n & 1
        for tb in range(2):
            for db in range(2):
                acc = ACC3 + 16 * (2 * tb + db)
                b(f'v_mfma_f32_32x32x16_bf16 {v(acc, 16)}, {v(WFR + 8 * st + 4 * db, 4)}, {a(A_Y + 8 * n + 4 * tb, 4)}, {v(acc, 16)}')
    b(f'v_add_u32 {v(t0)}, {s(S_PART)}, {v(V_L16)}')
    for blk in range(4):
        for j in range(4):
            b(f'ds_write_b128 {v(t0)}, {v(ACC3 + 16 * blk + 4 * j, 4)} offset:{XOFF + 4096 * blk + 1024 * j}')
    b.weave_from(n0, G=5)
    srd(b, SRD_T, P_OUT, 2048 * 1024)
    b(f'v_and_b32 {v(t0 + 3)}, 31, {v(V_LANE)}')
    b(f'v_lshlrev_b32 {v(t0 + 3)}, 10, {v(t0 + 3)}')
    b(f'v_lshrrev_b32 {v(t1)}, 5, {v(V_LANE)}')
    b(f'v_lshl_add_u32 {v(t0 + 3)}, {v(t1)}, 4, {v(t0 + 3)}')
    b(f's_lshl_b32 {s(S_T0)}, {s(S_I)}, 16')
    b(f's_lshr_b32 {s(S_T1)}, {s(S_W)}, 1')
    b(f's_lshl_b32 {s(S_T1)}, {s(S_T1)}, 15')
    b(f's_add_u32 {s(S_T0)}, {s(S_T0)}, {s(S_T1)}')
    b(f's_lshl_b32 {s(S_T1)}, {s(S_J)}, 7')
    b(f's_add_u32 {s(S_T0)}, {s(S_T0)}, {s(S_T1)}')
    b(f's_and_b32 {s(S_T1)}, {s(S_W)}, 1')
    b(f's_lshl_b32 {s(S_T1)}, {s(S_T1)}, 6')
    b(f's_add_u32 {s(S_T4)}, {s(S_T0)}, {s(S_T1)}')
    b.wait_lds()
    b('s_barrier')
    b(f's_lshl_b32 {s(S_T0)}, {s(S_W)}, 12')
    b(f's_add_u32 {s(S_T0)}, {s(S_T0)}, {XOFF}')
    b(f'v_add_u32 {v(t0)}, {s(S_T0)}, {v(V_L16)}')
    b(f'v_add_u32 {v(t1)}, {2 * PRIV}, {v(t0)}')
    RB_ = 128
    for src in range(4):
        for j in range(4):
            b(f'ds_read_b128 {v(RB_ + 16 * src + 4 * j, 4)}, {v(t0 if src < 2 else t1)} offset:{PRIV * (src & 1) + 1024 * j}')
    if G.OPT.get('pk', 1):
        for k in range(0, 16, 2):
            b(f'v_pk_add_f32 {v(RB_ + k, 2)}, {v(RB_ + k, 2)}, {v(RB_ + 16 + k, 2)}')
            b(f'v_pk_add_f32 {v(RB_ + 32 + k, 2)}, {v(RB_ + 32 + k, 2)}, {v(RB_ + 48 + k, 2)}')
        for k in range(0, 16, 2):
            b(f'v_pk_add_f32 {v(RB_ + k, 2)}, {v(RB_ + k, 2)}, {v(RB_ + 32 + k, 2)}')
    else:
        for k in range(16):
            b(f'v_add_f32 {v(RB_ + k)}, {v(RB_ + k)}, {v(RB_ + 16 + k)}')
            b(f'v_add_f32 {v(RB_ + 32 + k)}, {v(RB_ + 32 + k)}, {v(RB_ + 48 + k)}')
        for k in range(16):
            b(f'v_add_f32 {v(RB_ + k)}, {v(RB_ + k)}, {v(RB_ + 32 + k)}')
    O = 192
    for k in range(8):
        b(f'v_cvt_pk_bf16_f32 {v(O + k)}, {v(RB_ + 2 * k)}, {v(RB_ + 2 * k + 1)}')
    for jj in range(2):
        b(f'v_permlane32_swap_b32 {v(O + 4 * jj)}, {v(O + 4 * jj + 2)}')
        b(f'v_permlane32_swap_b32 {v(O + 4 * jj + 1)}, {v(O + 4 * jj + 3)}')
    for jj in range(2):
        b(f'buffer_store_dwordx4 {v(O + 4 * jj, 4)}, {v(t0 + 3)}, {s(SRD_T, 4)}, {s(S_T4)} offen offset:{32 * jj}')
    stamp(b, 12)
    G.dstamp(b, 7)
    if G.OPT.get('clk') == 1:
        b('s_memtime s[64:65]')
        b('s_memrealtime s[66:67]')
        b('s_waitcnt lgkmcnt(0)')
        b('s_sub_u32 s64, s64, s62')
        b('s_sub_u32 s66, s66, s100')
        b(f's_mov_b32 {s(SRD_T)}, {s(G.P_DBG)}')
        b(f's_mov_b32 {s(SRD_T + 1)}, {s(G.P_DBG + 1)}')
        b(f's_lshr_b32 {s(S_T4)}, {s(S_WG)}, 5')
        b(f's_and_b32 {s(S_T5)}, {s(S_WG)}, 31')
        b(f's_or_b32 {s(S_T5)}, {s(S_T5)}, {s(S_W)}')
        b(f's_cmp_eq_u32 {s(S_T5)}, 0')
        b(f's_cselect_b32 {s(SRD_T + 2)}, 256, 0')
        b(f's_mov_b32 {s(SRD_T + 3)}, 0x20000')
        b(f's_lshl_b32 {s(S_T4)}, {s(S_T4)}, 3')
        b(f'v_mov_b32 {v(2)}, s64')
        b(f'v_mov_b32 {v(3)}, s66')
        b(f'buffer_store_dwordx2 {v(2, 2)}, off, {s(SRD_T, 4)}, {s(S_T4)}')
    return P2, PH, PL, b.b
```

```python
import sys, struct, math
from collections import deque
from asmlib import *

KNAME = 'gated_mix__linear_attn_block__mixer_gmlp__prompt_kernel'
OPT = dict(stamps=0, rot=1, touch=0, late=0, map=0, cpf=0)


def v(a, n=1):
    return f'v{a}' if n == 1 else f'v[{a}:{a + n - 1}]'


def a(x, n=1):
    return f'a{x}' if n == 1 else f'a[{x}:{x + n - 1}]'


def s(x, n=1):
    return f's{x}' if n == 1 else f's[{x}:{x + n - 1}]'


WS_EPOCH = 0
WS_FZ2 = 0x10000
WS_FP1 = 0x20000
WS_FY = 0x30000
WS_FKV = 0x40000
WS_GATE = 0x50000
WS_KVF = 0x60000
WS_STATS = 0x80000
WS_KVP = 0x100000
WS_Z2N = 0x200000
WS_Z1F = 0x500000
WS_PQ = 0x800000
WS_Y = 0xB00000
WS_DBG = 0x1000000
WS_SIZE = 0x10000000
NONCE_K = 0x9E3779B1
OOB = 0x40000000
SPIN_MAX = 20000

R0 = 0
R1 = 65536
R2 = 98304
LDS_BYTES = 163840

S_WG = 2
SRD_A = 4
SRD_U = 8
S_Q0, S_Q1 = 12, 13
S_AS = 14
S_ROT = 15
S_ROT2 = 3
P_X, P_WQKV, P_WO, P_BX, P_WIN, P_WSP, P_BSP, P_WOUT = 16, 18, 20, 22, 24, 26, 28, 30
P_GW, P_OUT, P_DBG, P_WS = 32, 34, 36, 38
SRD_X = 40
SRD_W = 44
SRD_WS = 48
SRD_T = 52
S_W = 56
S_RB, S_CG, S_I, S_J = 57, 58, 59, 60
S_N = 61
S_T0, S_T1, S_T2, S_T3, S_T4, S_T5 = 64, 65, 66, 67, 68, 69
S_XL, S_XS, S_WL, S_WSO = 70, 71, 72, 73
S_RS, S_COL, S_MASK = 74, 75, 76
S_O0, S_O1 = 77, 78
S_TB = 79
S_RS64 = 80
S_LOG2E, S_EPS = 82, 83
S_CNT = 86
S_PKB, S_PK1, S_PKL = 62, 84, 100
S_XG, S_XLW, S_WGB = 84, 85, 87
S_KC = 91
S_D2COL, S_D2MASK, S_D2SEL = 88, 89, 90
S_D3COL, S_D3MASK, S_D3SEL = 92, 93, 94
S_T6, S_T7 = 96, 97
S_VCC2 = 98

V_LANE = 0
V_T0 = 1
V_DUM = 7
V_XD = 8
V_WD = 12
V_XRO = 14
V_XRT = 18
V_WR = 22
V_L16 = 24
V_L8 = 25
V_GA = 26
V_NON = 27
V_ST = 28
V_POLL = 30
V_AR = 32
V_E = 36
V_GA2 = 38
V_AD = 40
V_TCH = 44
V_BSP = 45
V_TW1, V_TW2 = 46, 47
V_ACC0 = 64
V_ACC1 = 96
V_WF = 128
V_TMP = 160
V_PK = 192
V_PV = 208
V_STAT = 224
V_KV = 64
V_KZ = 224
A_X = 128


def NT(k):
    return ' nt' if OPT.get('nt', 0) & k else ''


def f2u(x):
    return struct.unpack('<I', struct.pack('<f', x))[0]


LOG2E = 1.4426950408889634
GELU_A_F = -2.0 * LOG2E * math.sqrt(2.0 / math.pi)
GELU_A = f2u(GELU_A_F)
GELU_B = f2u(GELU_A_F * 0.044715)


class St:
    def __init__(self, g, name):
        self.g = g
        self.b = g.blk(name)
        self.q = deque()
        self.period = 0
        self.cnt = 0
        self.lock = 0

    def __call__(self, text, tag=None, **meta):
        r = self.b(text, tag=tag, **meta)
        if self.period and not self.lock and self.q:
            self.cnt += 1
            if self.cnt >= self.period:
                self.pop()
        return r

    def pop(self, n=1):
        for _ in range(n):
            if not self.q:
                return
            item = self.q.popleft()
            for x in item:
                if isinstance(x, tuple):
                    self.b(x[1], tag=x[0], **(x[2] if len(x) > 2 else {}))
                else:
                    self.b(x)
        self.cnt = 0

    def add(self, items):
        self.q.extend(items)

    def flush(self):
        self.pop(len(self.q))

    def ensure(self, tag):
        def has(item):
            return any(isinstance(x, tuple) and x[0] == tag for x in item)
        while any(has(i) for i in self.q):
            self.pop(1)

    def label(self, n):
        self.b.label(n)

    def mark(self):
        return len(self.b.ins)

    def weave_from(self, n0, G=5, adv=2):
        if OPT.get('weave', 1):
            self.b.ins[n0:] = weave(self.b.ins[n0:], G, adv)

    def wait_vm(self, t):
        self.b.wait_vm(t)

    def wait_lds(self):
        self.b.wait_lds()

    class _L:
        def __init__(self, st):
            self.st = st

        def __enter__(self):
            self.st.lock += 1

        def __exit__(self, *a):
            self.st.lock -= 1

    def atomic(self):
        return St._L(self)


class Rec:
    def __init__(self):
        self.units = []
        self.lock = 0
        self.period = 0

    def __call__(self, text, tag=None, **meta):
        if self.lock and self.open:
            self.units[-1].append((text, tag, meta))
        else:
            self.units.append([(text, tag, meta)])
            self.open = bool(self.lock)

    open = False

    class _L:
        def __init__(self, r):
            self.r = r

        def __enter__(self):
            if self.r.lock == 0:
                self.r.open = False
            self.r.lock += 1

        def __exit__(self, *a):
            self.r.lock -= 1
            if self.r.lock == 0:
                self.r.open = False

    def atomic(self):
        return Rec._L(self)


NOPK = [False]


def gelu_group(b, xs, tmp):
    n = len(xs)
    if OPT.get('pk', 1) and not NOPK[0]:
        x0 = xs[0]
        for k in range(0, n, 2):
            b(f'v_pk_mul_f32 {v(tmp + k, 2)}, {v(x0 + k, 2)}, {v(x0 + k, 2)}')
        for k in range(0, n, 2):
            b(f'v_pk_fma_f32 {v(tmp + k, 2)}, {v(tmp + k, 2)}, {s(S_PKB, 2)}, {v(V_GA2, 2)}')
        for k in range(0, n, 2):
            b(f'v_pk_mul_f32 {v(tmp + k, 2)}, {v(tmp + k, 2)}, {v(x0 + k, 2)}')
        for k in range(n):
            b(f'v_exp_f32 {v(tmp + k)}, {v(tmp + k)}')
        for k in range(0, n, 2):
            b(f'v_pk_add_f32 {v(tmp + k, 2)}, {v(tmp + k, 2)}, {s(S_PK1, 2)}')
        for k in range(n):
            b(f'v_rcp_f32 {v(tmp + k)}, {v(tmp + k)}')
        for k in range(0, n, 2):
            b(f'v_pk_mul_f32 {v(x0 + k, 2)}, {v(x0 + k, 2)}, {v(tmp + k, 2)}')
        return
    for k in range(n):
        b(f'v_mul_f32 {v(tmp + k)}, {v(xs[k])}, {v(xs[k])}')
    for k in range(n):
        b(f'v_fmamk_f32 {v(tmp + k)}, {v(tmp + k)}, {hex(GELU_B)}, {v(V_GA)}')
    for k in range(n):
        b(f'v_mul_f32 {v(tmp + k)}, {v(tmp + k)}, {v(xs[k])}')
    for k in range(n):
        b(f'v_exp_f32 {v(tmp + k)}, {v(tmp + k)}')
    for k in range(n):
        b(f'v_add_f32 {v(tmp + k)}, 1.0, {v(tmp + k)}')
    for k in range(n):
        b(f'v_rcp_f32 {v(tmp + k)}, {v(tmp + k)}')
    for k in range(n):
        b(f'v_mul_f32 {v(xs[k])}, {v(xs[k])}, {v(tmp + k)}')


def phi_group(b, xs, tmp):
    n = len(xs)
    if OPT.get('pk', 1) and not NOPK[0]:
        x0 = xs[0]
        for k in range(0, n, 2):
            b(f'v_pk_mul_f32 {v(tmp + k, 2)}, {v(x0 + k, 2)}, {s(S_PKL, 2)}')
        for k in range(n):
            b(f'v_exp_f32_e64 {v(tmp + k)}, {v(tmp + k)} clamp')
        for k in range(n):
            b(f'v_max_f32 {v(xs[k])}, {s(S_EPS)}, {v(xs[k])}')
        for k in range(0, n, 2):
            b(f'v_pk_add_f32 {v(x0 + k, 2)}, {v(x0 + k, 2)}, {v(tmp + k, 2)}')
        return
    for k in range(n):
        b(f'v_mul_f32 {v(tmp + k)}, {s(S_LOG2E)}, {v(xs[k])}')
    for k in range(n):
        b(f'v_exp_f32_e64 {v(tmp + k)}, {v(tmp + k)} clamp')
    for k in range(n):
        b(f'v_max_f32 {v(xs[k])}, {s(S_EPS)}, {v(xs[k])}')
    for k in range(n):
        b(f'v_add_f32 {v(xs[k])}, {v(xs[k])}, {v(tmp + k)}')


def srd(b, base, ptr, nrec):
    b(f's_mov_b32 {s(base)}, {s(ptr)}')
    b(f's_mov_b32 {s(base + 1)}, {s(ptr + 1)}')
    b(f's_mov_b32 {s(base + 2)}, {hex(nrec)}')
    b(f's_mov_b32 {s(base + 3)}, 0x20000')


def dma4_voffsets(b, dst, RS):
    t0, t1, t2 = V_T0, V_T0 + 1, V_T0 + 2
    b(f'v_lshrrev_b32 {v(t0)}, 3, {v(V_LANE)}')
    b(f'v_and_b32 {v(t1)}, 7, {v(V_LANE)}')
    b(f'v_lshrrev_b32 {v(t2)}, 4, {v(V_LANE)}')
    b(f'v_xor_b32 {v(t1)}, {v(t1)}, {v(t2)}')
    b(f'v_lshlrev_b32 {v(t1)}, 4, {v(t1)}')
    b(f'v_mul_u32_u24 {v(t0)}, {RS}, {v(t0)}')
    b(f'v_add_u32 {v(dst)}, {v(t0)}, {v(t1)}')
    b(f'v_xor_b32 {v(t1)}, 64, {v(t1)}')
    b(f'v_add_u32 {v(t0)}, {v(t0)}, {v(t1)}')
    b(f'v_add_u32 {v(dst + 1)}, {8 * RS - 1024}, {v(t0)}')
    b(f'v_add_u32 {v(dst + 2)}, {16 * RS - 2048}, {v(dst)}')
    b(f'v_add_u32 {v(dst + 3)}, {24 * RS - 3072}, {v(t0)}')


def frag_read_addrs(b, dst):
    t0, t1, t2 = V_T0, V_T0 + 1, V_T0 + 2
    b(f'v_and_b32 {v(t0)}, 31, {v(V_LANE)}')
    b(f'v_lshrrev_b32 {v(t1)}, 5, {v(V_LANE)}')
    b(f'v_bfe_u32 {v(t2)}, {v(V_LANE)}, 1, 3')
    b(f'v_xor_b32 {v(t1)}, {v(t1)}, {v(t2)}')
    b(f'v_lshlrev_b32 {v(t1)}, 4, {v(t1)}')
    b(f'v_lshl_add_u32 {v(dst)}, {v(t0)}, 7, {v(t1)}')
    for kk in range(1, 4):
        b(f'v_xor_b32 {v(dst + kk)}, {32 * kk}, {v(dst)}')


def tr_addr(b, dst, pi):
    t0, t1 = V_T0, V_T0 + 1
    b(f'v_bfe_u32 {v(t0)}, {v(V_LANE)}, 2, 2')
    b(f'v_lshrrev_b32 {v(t1)}, 5, {v(V_LANE)}')
    b(f'v_lshl_add_u32 {v(t1)}, {v(t1)}, {2 if pi else 3}, {v(t0)}')
    b(f'v_lshlrev_b32 {v(t1)}, 7, {v(t1)}')
    b(f'v_lshrrev_b32 {v(t0)}, 1, {v(t0)}')
    b(f'v_lshl_add_u32 {v(t1)}, {v(t0)}, 6, {v(t1)}')
    b(f'v_bfe_u32 {v(t0)}, {v(V_LANE)}, 4, 1')
    b(f'v_lshl_add_u32 {v(t1)}, {v(t0)}, 5, {v(t1)}')
    b(f'v_and_b32 {v(t0)}, 3, {v(V_LANE)}')
    b(f'v_lshl_add_u32 {v(dst)}, {v(t0)}, 3, {v(t1)}')


def wd_voffsets(b):
    t0, t1, t2 = V_T0, V_T0 + 1, V_T0 + 2
    b(f'v_bfe_u32 {v(t0)}, {v(V_LANE)}, 2, 1')
    b(f'v_bfe_u32 {v(t1)}, {v(V_LANE)}, 4, 1')
    b(f'v_xor_b32 {v(t0)}, {v(t0)}, {v(t1)}')
    b(f'v_and_b32 {v(t1)}, 3, {v(V_LANE)}')
    b(f'v_lshlrev_b32 {v(t1)}, 4, {v(t1)}')
    b(f'v_lshl_add_u32 {v(t0)}, {v(t0)}, 6, {v(t1)}')
    b(f'v_lshrrev_b32 {v(t1)}, 3, {v(V_LANE)}')
    b(f'v_mul_lo_u32 {v(t1)}, {v(t1)}, {s(S_RS)}')
    b(f'v_add_u32 {v(t1)}, {v(t1)}, {v(t0)}')
    b(f'v_add_u32 {v(V_WD)}, {s(S_COL)}, {v(t1)}')
    b(f's_lshl_b32 {s(S_T0)}, {s(S_RS)}, 3')
    b(f's_sub_u32 {s(S_T0)}, {s(S_T0)}, 1024')
    b(f'v_add_u32 {v(V_WD + 1)}, {s(S_T0)}, {v(V_WD)}')
    b(f'v_mov_b32 {v(t2)}, {hex(OOB)}')
    b(f'v_cmp_gt_u32 vcc, {s(S_MASK)}, {v(t0)}')
    b(f'v_cndmask_b32 {v(V_WD)}, {v(V_WD)}, {v(t2)}, vcc')
    b(f'v_cndmask_b32 {v(V_WD + 1)}, {v(V_WD + 1)}, {v(t2)}, vcc')
    b(f's_lshl_b32 {s(S_RS64)}, {s(S_RS)}, 6')
    b(f's_lshl_b32 {s(S_T0)}, {s(S_RS)}, 4')
    b(f's_mul_i32 {s(S_WSO)}, {s(S_T0)}, {s(S_W)}')


def set_w_srd(b, sel):
    b(f's_cmp_eq_u32 {s(sel)}, 0')
    b(f's_cselect_b32 {s(SRD_W)}, {s(P_WQKV)}, {s(P_WIN)}')
    b(f's_cselect_b32 {s(SRD_W + 1)}, {s(P_WQKV + 1)}, {s(P_WIN + 1)}')
    b(f's_mov_b32 {s(SRD_W + 2)}, {hex(512 * 2752)}')
    b(f's_cmov_b32 {s(SRD_W + 2)}, {hex(512 * 3072)}')
    b(f's_mov_b32 {s(SRD_W + 3)}, 0x20000')


def w_piece_items(p, region, tag):
    return [
        [f's_add_u32 {s(S_Q0)}, {s(S_ROT)}, {p}',
         f's_and_b32 {s(S_Q0)}, {s(S_Q0)}, 7',
         f's_mul_i32 {s(S_Q0)}, {s(S_Q0)}, {s(S_RS64)}',
         f's_add_u32 {s(S_Q0)}, {s(S_Q0)}, {s(S_WSO)}',
         f's_add_u32 m0, {s(S_WL)}, {region + 8192 * p}',
         (tag, f'buffer_load_dwordx4 {v(V_WD)}, {s(SRD_W, 4)}, {s(S_Q0)} offen{NT(2)} lds')],
        [(tag, f'buffer_load_dwordx4 {v(V_WD + 1)}, {s(SRD_W, 4)}, {s(S_Q0)} offen offset:1024{NT(2)} lds')],
    ]


def x_chunk_items(c, tag):
    it = []
    for i in range(4):
        l = []
        if i == 0:
            l = [f's_add_u32 {s(S_Q0)}, {s(S_ROT)}, {c}',
                 f's_and_b32 {s(S_Q0)}, {s(S_Q0)}, 7',
                 f's_lshl_b32 {s(S_Q0)}, {s(S_Q0)}, 7',
                 f's_add_u32 {s(S_Q0)}, {s(S_Q0)}, {s(S_XS)}',
                 f's_add_u32 m0, {s(S_XL)}, {16384 * (c % 4)}']
        l.append((tag, f'buffer_load_dwordx4 {v(V_XD + i)}, {s(SRD_X, 4)}, {s(S_Q0)} offen offset:{1024 * i}{NT(4)} lds'))
        it.append(l)
    return it


def l1_items(c):
    tag = f'x{c}'
    slot = R1 + 16384 * (c % 3)
    it = []
    for m in range(4):
        l = []
        if m == 0:
            l = [f's_add_u32 {s(S_KC)}, {s(S_ROT)}, {c}',
                 f's_and_b32 {s(S_KC)}, {s(S_KC)}, 7',
                 f's_lshl_b32 {s(S_Q0)}, {s(S_KC)}, 7',
                 f's_add_u32 {s(S_Q0)}, {s(S_Q0)}, {s(S_XG)}',
                 f's_add_u32 m0, {s(S_XLW)}, {slot}']
        else:
            l = [f's_add_u32 {s(S_Q0)}, {s(S_Q0)}, 7168']
        l.append((tag, f'buffer_load_dwordx4 {v(V_XD + (m & 1))}, {s(SRD_X, 4)}, {s(S_Q0)} offen offset:{1024 * m} lds'))
        it.append(l)
    it.append([f's_add_u32 {s(S_Q0)}, {s(S_Q0)}, {7168 + 4096}',
               f's_add_u32 m0, {s(S_XLW)}, {slot + 4096}',
               (tag, f'buffer_load_dwordx4 {v(V_XD)}, {s(SRD_X, 4)}, {s(S_Q0)} offen lds')])
    return it


def l1_item5(g, b, c):
    tag = f'x{c}'
    l0, l1 = g.lab('M5'), g.lab('M5')
    b.b(f's_cmp_eq_u32 {s(S_W)}, 0')
    b.b(f's_cbranch_scc0 {l0}')
    b.b(f's_add_u32 {s(S_Q0)}, {s(S_Q0)}, 7168')
    b.b(f'buffer_load_dwordx4 {v(V_XD + 1)}, {s(SRD_X, 4)}, {s(S_Q0)} offen offset:1024 lds', nocount=True)
    b.b(f's_branch {l1}')
    b.b.label(l0)
    b.b(f's_mul_i32 {s(S_Q1)}, {s(S_KC)}, {s(S_RS64)}')
    b.b(f's_sub_u32 {s(S_Q0)}, {s(S_WGB)}, 1')
    b.b(f's_lshl_b32 {s(S_T0)}, {s(S_Q0)}, 10')
    b.b(f's_add_u32 m0, {s(S_T0)}, {R0 + 8192 * c}')
    b.b(f's_lshl_b32 {s(S_T0)}, {s(S_RS)}, 3')
    b.b(f's_mul_i32 {s(S_Q0)}, {s(S_Q0)}, {s(S_T0)}')
    b.b(f's_add_u32 {s(S_Q0)}, {s(S_Q0)}, {s(S_Q1)}')
    b.b(f'buffer_load_dwordx4 {v(V_WD)}, {s(SRD_W, 4)}, {s(S_Q0)} offen lds', tag=tag)
    b.b.label(l1)


def l1_w_items(c):
    tag = f'x{c}'
    return [[f's_mul_i32 {s(S_Q1)}, {s(S_KC)}, {s(S_RS64)}',
             f's_lshl_b32 {s(S_Q0)}, {s(S_WGB)}, 10',
             f's_add_u32 m0, {s(S_Q0)}, {R0 + 8192 * c}',
             f's_lshl_b32 {s(S_Q0)}, {s(S_RS)}, 3',
             f's_mul_i32 {s(S_Q0)}, {s(S_Q0)}, {s(S_WGB)}',
             f's_add_u32 {s(S_Q0)}, {s(S_Q0)}, {s(S_Q1)}',
             (tag, f'buffer_load_dwordx4 {v(V_WD)}, {s(SRD_W, 4)}, {s(S_Q0)} offen lds')],
            [(tag, f'buffer_load_dwordx4 {v(V_WD + 1)}, {s(SRD_W, 4)}, {s(S_Q0)} offen offset:1024 lds')]]


def a_slot(kind):
    return {'h0': (13, R1), 'h1': (13, R1 + 4096), 'f0': (13, R1), 'f1': (14, R2), 'f2': (14, R2 + 8192),
            'g1': (14, R0), 'g2': (14, R0 + 8192)}[kind]


def a_piece_items(c, tb, slot, off=0):
    sh, base = a_slot(slot)
    it = []
    for i in range(4):
        l = []
        if i == 0:
            l = [f's_add_u32 {s(S_Q0)}, {s(S_ROT2)}, {c}',
                 f's_and_b32 {s(S_Q0)}, {s(S_Q0)}, 7',
                 f's_lshl_b32 {s(S_Q0)}, {s(S_Q0)}, 7',
                 f's_add_u32 {s(S_Q0)}, {s(S_Q0)}, {s(S_AS)}']
            if tb:
                l.append(f's_add_u32 {s(S_Q0)}, {s(S_Q0)}, {32 * 4096}')
            l += [f's_lshl_b32 {s(S_Q1)}, {s(S_W)}, {sh}',
                  f's_add_u32 m0, {s(S_Q1)}, {base + off}']
        l.append((f'a{c}_{tb}', f'buffer_load_dwordx4 {v(V_AD + i)}, {s(SRD_A, 4)}, {s(S_Q0)} offen offset:{1024 * i}{NT(1)} lds'))
        it.append(l)
    return it


def a_piece_read(b, c, tb, slot, off=0):
    sh, base = a_slot(slot)
    with b.atomic():
        b(f's_lshl_b32 {s(S_T0)}, {s(S_W)}, {sh}')
        b(f's_add_u32 {s(S_T0)}, {s(S_T0)}, {base + off}')
        for kk in range(4):
            b(f'v_add_u32 {v(V_T0 + kk)}, {s(S_T0)}, {v(V_AR + kk)}')
        for kk in range(4):
            r = 8 * (4 * c + kk) + 4 * tb
            b(f'ds_read_b128 {a(r, 4)}, {v(V_T0 + kk)}')


def a_chunk_items(c, slot):
    return a_piece_items(c, 0, slot) + a_piece_items(c, 1, slot, 4096)


def a_chunk_read(b, c, slot):
    sh, base = a_slot(slot)
    with b.atomic():
        b(f's_lshl_b32 {s(S_T0)}, {s(S_W)}, {sh}')
        b(f's_add_u32 {s(S_T0)}, {s(S_T0)}, {base}')
        for kk in range(4):
            b(f'v_add_u32 {v(V_T0 + kk)}, {s(S_T0)}, {v(V_AR + kk)}')
        for kk in range(4):
            for tb in range(2):
                r = 8 * (4 * c + kk) + 4 * tb
                b(f'ds_read_b128 {a(r, 4)}, {v(V_T0 + kk)} offset:{4096 * tb}')


def stamp(b, idx):
    if not OPT['stamps']:
        return
    if OPT['stamps'] == 3 and idx not in (0, 12):
        return
    lock = b.atomic() if hasattr(b, 'atomic') else None
    if lock:
        lock.__enter__()
    b(f's_memrealtime {s(S_VCC2, 2)}' if OPT['stamps'] in (1, 3) else f's_memtime {s(S_VCC2, 2)}')
    b('s_waitcnt lgkmcnt(0)')
    b(f's_lshl_b32 {s(S_T6)}, {s(S_WG)}, 2')
    b(f's_add_u32 {s(S_T6)}, {s(S_T6)}, {s(S_W)}')
    b(f's_lshl_b32 {s(S_T6)}, {s(S_T6)}, 7')
    b(f's_add_u32 {s(S_T6)}, {s(S_T6)}, {WS_DBG + 4 * idx}')
    b(f'v_mov_b32 {v(V_POLL + 1)}, {s(S_VCC2)}')
    b(f'buffer_store_dword {v(V_POLL + 1)}, off, {s(SRD_WS, 4)}, {s(S_T6)}')
    if lock:
        lock.__exit__()


def s1_issue(g, b):
    from phase23 import s1_issue as f
    f(g, b)


def early_prime(g, b):
    from phase23 import early_prime as f
    f(g, b)


def dstamp(b, k):
    if OPT.get('clk') != 2:
        return
    lock = b.atomic() if hasattr(b, 'atomic') else None
    if lock:
        lock.__enter__()
    b('s_memtime s[98:99]')
    b('s_waitcnt lgkmcnt(0)')
    b('s_sub_u32 s98, s98, s62')
    b(f's_mov_b32 {s(SRD_T)}, {s(P_DBG)}')
    b(f's_mov_b32 {s(SRD_T + 1)}, {s(P_DBG + 1)}')
    b(f's_cmp_eq_u32 {s(S_WG)}, 100')
    b(f's_cselect_b32 s99, 32, 0')
    b(f's_cselect_b32 s97, 0, {s(S_WG)}')
    b(f's_or_b32 s97, s97, {s(S_W)}')
    b(f's_cmp_eq_u32 s97, 0')
    b(f's_cselect_b32 {s(SRD_T + 2)}, 256, 0')
    b(f's_mov_b32 {s(SRD_T + 3)}, 0x20000')
    b(f's_add_u32 s99, s99, {4 * k}')
    b(f'v_mov_b32 {v(V_POLL + 1)}, s98')
    b(f'buffer_store_dword {v(V_POLL + 1)}, off, {s(SRD_T, 4)}, s99')
    if lock:
        lock.__exit__()


def slow_mark(idx):
    if not OPT['stamps'] or OPT.get('s3st') or OPT['stamps'] == 3:
        return ''
    return f'''    s_lshl_b32 {s(S_T6)}, {s(S_WG)}, 2
    s_add_u32 {s(S_T6)}, {s(S_T6)}, {s(S_W)}
    s_lshl_b32 {s(S_T6)}, {s(S_T6)}, 7
    s_add_u32 {s(S_T6)}, {s(S_T6)}, {WS_DBG + 4 * idx}
    s_sub_u32 {s(S_VCC2)}, {SPIN_MAX + 1}, {s(S_CNT)}
    v_mov_b32 {v(V_POLL + 1)}, {s(S_VCC2)}
    buffer_store_dword {v(V_POLL + 1)}, off, {s(SRD_WS, 4)}, {s(S_T6)}
'''


class Gen:
    def __init__(self):
        self.blocks = []
        self.s3flag = False
        self.slow = []
        self.nlab = 0

    def blk(self, name):
        b = Block(name)
        self.blocks.append(b)
        return b

    def lab(self, p='L'):
        self.nlab += 1
        return f'{p}_{self.nlab}'

    def poll(self, b, vaddr, soff, vtmp, first_issued=False, skip_if_zero=None, mark=31):
        cont = self.lab('PC')
        slow = self.lab('PS')
        lock = b.atomic() if hasattr(b, 'atomic') else None
        if lock:
            lock.__enter__()
        if not first_issued:
            b(f'buffer_load_dword {v(vtmp)}, {v(vaddr)}, {s(SRD_WS, 4)}, {soff} offen sc1')
        b(f'v_cmp_ne_u32 vcc, {s(S_N)}, {v(vtmp)}')
        if skip_if_zero is not None:
            b(f's_cmp_eq_u32 {s(skip_if_zero)}, 0')
            b(f's_cbranch_scc1 {cont}')
        b(f's_cbranch_vccnz {slow}')
        b.label(cont)
        if lock:
            lock.__exit__()
        self.slow.append(f'''{slow}:
    s_mov_b32 {s(S_CNT)}, {SPIN_MAX}
{slow}_l:
    s_sleep 1
    buffer_load_dword {v(vtmp)}, {v(vaddr)}, {s(SRD_WS, 4)}, {soff} offen sc1
    s_waitcnt vmcnt(0)
{slow_mark(mark)}    v_cmp_ne_u32 vcc, {s(S_N)}, {v(vtmp)}
    s_cbranch_vccz {cont}
    s_sub_u32 {s(S_CNT)}, {s(S_CNT)}, 1
    s_cmp_lg_u32 {s(S_CNT)}, 0
    s_cbranch_scc1 {slow}_l
    s_branch {cont}''')

    def prologue(self):
        b = St(self, 'PRO')
        b(f's_cmp_ge_u32 {s(S_WG)}, 256')
        b('s_cbranch_scc1 L_END')
        if OPT.get('clk'):
            b('s_memtime s[62:63]')
            if OPT.get('clk') == 1:
                b('s_memrealtime s[100:101]')
        b('s_load_dwordx16 s[16:31], s[0:1], 0x0')
        b('s_load_dwordx8 s[32:39], s[0:1], 0x40')
        b(f'v_lshrrev_b32 {v(V_T0)}, 6, {v(0)}')
        b(f'v_and_b32 {v(V_LANE)}, 63, {v(0)}')
        b(f's_and_b32 {s(S_T0)}, {s(S_WG)}, 7')
        b(f'v_readfirstlane_b32 {s(S_W)}, {v(V_T0)}')
        b(f's_lshr_b32 {s(S_T1)}, {s(S_WG)}, 3')
        b(f's_lshr_b32 {s(S_T2)}, {s(S_T1)}, 2')
        b(f's_and_b32 {s(S_T1)}, {s(S_T1)}, 3')
        b(f's_and_b32 {s(S_T3)}, {s(S_T0)}, 1')
        b(f's_lshr_b32 {s(S_T0)}, {s(S_T0)}, 1')
        b(f's_lshl3_add_u32 {s(S_RB)}, {s(S_T3)}, {s(S_T2)}')
        b(f's_lshl2_add_u32 {s(S_CG)}, {s(S_T0)}, {s(S_T1)}')
        b(f's_lshl3_add_u32 {s(S_I)}, {s(S_T0)}, {s(S_T2)}')
        b(f's_lshl2_add_u32 {s(S_J)}, {s(S_T3)}, {s(S_T1)}')
        b(f's_lshl1_add_u32 {s(S_ROT)}, {s(S_T1)}, {s(S_T2)}')
        b(f's_and_b32 {s(S_ROT)}, {s(S_ROT)}, 7')
        if OPT.get('map', 0):
            b(f's_and_b32 {s(S_T4)}, {s(S_WG)}, 7')
            b(f's_lshr_b32 {s(S_T5)}, {s(S_WG)}, 6')
            b(f's_lshl2_add_u32 {s(S_I)}, {s(S_T4)}, {s(S_T5)}')
            b(f's_bfe_u32 {s(S_J)}, {s(S_WG)}, 0x30003')
            b(f's_lshl1_add_u32 {s(S_ROT2)}, {s(S_T5)}, {s(S_J)}')
            b(f's_and_b32 {s(S_ROT2)}, {s(S_ROT2)}, 7')
        else:
            b(f's_mov_b32 {s(S_ROT2)}, {s(S_ROT)}')
        if not OPT['rot']:
            b(f's_mov_b32 {s(S_ROT)}, 0')
        b(f'v_lshrrev_b32 {v(V_T0)}, 3, {v(V_LANE)}')
        b(f'v_and_b32 {v(V_T0 + 1)}, 7, {v(V_LANE)}')
        b(f'v_lshrrev_b32 {v(V_T0 + 2)}, 4, {v(V_LANE)}')
        b(f'v_xor_b32 {v(V_T0 + 1)}, {v(V_T0 + 1)}, {v(V_T0 + 2)}')
        b(f'v_lshlrev_b32 {v(V_T0 + 1)}, 4, {v(V_T0 + 1)}')
        b(f's_cmp_eq_u32 {s(S_W)}, 2')
        b(f's_cselect_b32 {s(S_T0)}, 64, 0')
        b(f'v_xor_b32 {v(V_T0 + 1)}, {s(S_T0)}, {v(V_T0 + 1)}')
        b(f'v_lshl_add_u32 {v(V_XD)}, {v(V_T0)}, 10, {v(V_T0 + 1)}')
        b(f'v_xor_b32 {v(V_XD + 1)}, 64, {v(V_XD)}')
        b(f's_mul_i32 {s(S_XLW)}, {s(S_W)}, 6')
        b(f's_cmp_eq_u32 {s(S_W)}, 2')
        b(f's_cselect_b32 {s(S_XLW)}, 11, {s(S_XLW)}')
        b(f's_lshl_b32 {s(S_XG)}, {s(S_XLW)}, 13')
        b(f's_lshl_b32 {s(S_T0)}, {s(S_RB)}, 17')
        b(f's_add_u32 {s(S_XG)}, {s(S_XG)}, {s(S_T0)}')
        b(f's_lshl_b32 {s(S_XLW)}, {s(S_XLW)}, 10')
        b(f's_mul_i32 {s(S_WGB)}, {s(S_W)}, 3')
        b(f's_lshl_b32 {s(S_T0)}, {s(S_CG)}, 7')
        b(f's_add_u32 {s(S_T1)}, {s(S_T0)}, 1344')
        b(f's_sub_u32 {s(S_T2)}, {s(S_T0)}, 1024')
        b(f's_cmp_le_u32 {s(S_CG)}, 10')
        b(f's_cselect_b32 {s(S_COL)}, {s(S_T1)}, {s(S_T2)}')
        b(f's_mov_b32 {s(S_RS)}, 3072')
        b(f's_cmov_b32 {s(S_RS)}, 2752')
        b(f's_cselect_b32 {s(S_T3)}, 1, 0')
        b(f's_cmp_eq_u32 {s(S_CG)}, 0')
        b(f's_cselect_b32 {s(S_MASK)}, 32, 0')
        wd_voffsets(b)
        b(f's_lshl_b32 {s(S_WL)}, {s(S_W)}, 11')
        b(f's_lshl2_add_u32 {s(S_TB)}, {s(S_RB)}, {s(S_W)}')
        if OPT.get('cpf', 0):
            b(f's_getpc_b64 {s(62, 2)}')
            b.label('L_pc0')
            b(f's_lshr_b32 {s(S_T0)}, {s(S_WG)}, 3')
            b(f's_lshl2_add_u32 {s(S_T0)}, {s(S_T0)}, {s(S_W)}')
            b(f's_lshl_b32 {s(S_T0)}, {s(S_T0)}, 9')
            b(f's_min_u32 {s(S_T0)}, {s(S_T0)}, L_code_end-L_pc0-512')
            b(f'v_lshlrev_b32 {v(V_T0 + 3)}, 3, {v(V_LANE)}')
            b(f'v_add_u32 {v(V_T0 + 3)}, {s(S_T0)}, {v(V_T0 + 3)}')
            b(f'global_load_dwordx2 {v(250, 2)}, {v(V_T0 + 3)}, {s(62, 2)}', nodst=True)
        b('s_waitcnt lgkmcnt(0)')
        dstamp(b, 0)
        srd(b, SRD_X, P_X, 2048 * 1024)
        set_w_srd(b, S_T3)
        if OPT.get('sym', 1):
            dma4_voffsets(b, V_XD, 1024)
            b(f's_lshl_b32 {s(S_XL)}, {s(S_W)}, 12')
            b(f's_add_u32 {s(S_XL)}, {s(S_XL)}, {R1}')
            b(f's_lshl_b32 {s(S_XS)}, {s(S_TB)}, 15')
            for c in range(2 if OPT.get('pro2', 1) else 3):
                b.add(x_chunk_items(c, f'x{c}'))
                b.add(w_piece_items(c, R0, f'x{c}'))
            b.flush()
        else:
            b(f's_cmp_eq_u32 {s(S_W)}, 3')
            b('s_cbranch_scc1 L_noload0')
            n0 = len(b.b.ins)
            for c in range(2):
                b.add(l1_items(c))
                b.flush()
                l1_item5(self, b, c)
                b.add(l1_w_items(c))
                b.flush()
            for i in b.b.ins[n0:]:
                i.meta['loader'] = True
            b.label('L_noload0')
        if OPT.get('wsoff', 0):
            off = OPT['wsoff'] << 20
            b(f's_add_u32 {s(P_WS)}, {s(P_WS)}, {hex(off)}')
            b(f's_addc_u32 {s(P_WS + 1)}, {s(P_WS + 1)}, 0')
        srd(b, SRD_WS, P_WS, WS_SIZE - (OPT.get('wsoff', 0) << 20))
        b(f'buffer_load_dword {v(V_E)}, off, {s(SRD_WS, 4)}, 0 sc1', tag='epoch')
        stamp(b, 0)
        dstamp(b, 1)
        b(f's_mov_b32 {s(S_LOG2E)}, {hex(f2u(LOG2E))}')
        b(f's_mov_b32 {s(S_EPS)}, {hex(f2u(1e-6))}')
        b(f'v_mov_b32 {v(V_GA)}, {hex(GELU_A)}')
        b(f'v_mov_b32 {v(V_GA2)}, {hex(GELU_A)}')
        b(f'v_mov_b32 {v(V_GA2 + 1)}, {hex(GELU_A)}')
        b(f's_mov_b32 {s(S_PKB)}, {hex(GELU_B)}')
        b(f's_mov_b32 {s(S_PKB + 1)}, {hex(GELU_B)}')
        b(f's_mov_b32 {s(S_PK1)}, 1.0')
        b(f's_mov_b32 {s(S_PK1 + 1)}, 1.0')
        b(f's_mov_b32 {s(S_PKL)}, {hex(f2u(LOG2E))}')
        b(f's_mov_b32 {s(S_PKL + 1)}, {hex(f2u(LOG2E))}')
        b(f'v_lshlrev_b32 {v(V_L16)}, 4, {v(V_LANE)}')
        b(f'v_lshlrev_b32 {v(V_L8)}, 3, {v(V_LANE)}')
        frag_read_addrs(b, V_AR)
        b(f's_lshl_b32 {s(S_T0)}, {s(S_W)}, 12')
        b(f's_add_u32 {s(S_T1)}, {s(S_T0)}, {R1}')
        for kk in range(4):
            b(f'v_add_u32 {v(V_XRO + kk)}, {s(S_T1)}, {v(V_AR + kk)}')
        tr_addr(b, V_WR, False)
        b(f'v_xor_b32 {v(V_WR + 1)}, 64, {v(V_WR)}')
        srd(b, SRD_A, P_WSP, 2048 * 4096)
        dma4_voffsets(b, V_AD, 4096)
        b(f'v_lshlrev_b32 {v(V_TCH)}, 7, {v(V_LANE)}')
        b(f's_lshl_b32 {s(S_AS)}, {s(S_I)}, 18')
        b(f's_lshl_b32 {s(S_T0)}, {s(S_W)}, 10')
        b(f's_add_u32 {s(S_AS)}, {s(S_AS)}, {s(S_T0)}')
        if OPT.get('tlb', 0):
            b(f'v_lshlrev_b32 {v(V_T0)}, 21, {v(V_LANE)}')
            b(f'buffer_load_dword {v(V_DUM)}, {v(V_T0)}, {s(SRD_A, 4)}, 0 offen', tag='t', nodst=True)
            b(f'v_mov_b32 {v(V_T0 + 1)}, {hex(OOB)}')
            b(f'v_cmp_gt_u32 vcc, 8, {v(V_LANE)}')
            b(f'v_cndmask_b32 {v(V_T0)}, {v(V_T0 + 1)}, {v(V_T0)}, vcc')
            b(f'buffer_load_dword {v(V_DUM)}, {v(V_T0)}, {s(SRD_WS, 4)}, 0 offen', tag='t', nodst=True)
            for ptr, n in ((P_WO, 512 * 1024), (P_WOUT, 688 * 1024), (P_OUT, 2048 * 1024), (P_GW, 1024), (P_WQKV, 512 * 3072), (P_WIN, 512 * 2752)):
                srd(b, SRD_U, ptr, n)
                b(f'buffer_load_dword {v(V_DUM)}, off, {s(SRD_U, 4)}, 0', tag='t', nodst=True)
        srd(b, SRD_T, P_BSP, 4096)
        b(f's_and_b32 {s(S_T0)}, {s(S_W)}, 1')
        b(f's_lshl_b32 {s(S_T0)}, {s(S_T0)}, 6')
        b(f's_lshl_b32 {s(S_T1)}, {s(S_I)}, 7')
        b(f's_add_u32 {s(S_T0)}, {s(S_T0)}, {s(S_T1)}')
        b(f'v_and_b32 {v(V_T0)}, 31, {v(V_LANE)}')
        b(f'v_lshlrev_b32 {v(V_T0)}, 1, {v(V_T0)}')
        b(f'buffer_load_ushort {v(V_BSP)}, {v(V_T0)}, {s(SRD_T, 4)}, {s(S_T0)} offen')
        b(f's_lshl_b32 {s(S_T0)}, {s(S_CG)}, 7')
        b(f's_add_u32 {s(S_D2COL)}, {s(S_T0)}, 1024')
        b(f's_add_u32 {s(S_D3COL)}, {s(S_T0)}, 2048')
        b(f's_mov_b32 {s(S_D2SEL)}, 0')
        b(f's_mov_b32 {s(S_D3SEL)}, 0')
        b(f's_mov_b32 {s(S_D2MASK)}, 0')
        b(f's_mov_b32 {s(S_D3MASK)}, 0')
        b(f's_cmp_lt_u32 {s(S_CG)}, 8')
        b('s_cbranch_scc1 L_desc_done')
        b(f's_cmp_lt_u32 {s(S_CG)}, 11')
        b('s_cbranch_scc0 L_desc_cd')
        b(f's_sub_u32 {s(S_D2COL)}, {s(S_T0)}, 1024')
        b(f's_sub_u32 {s(S_D3COL)}, {s(S_T0)}, 1056')
        b(f's_mov_b32 {s(S_D3SEL)}, 1')
        b(f's_cmp_eq_u32 {s(S_CG)}, 8')
        b(f's_cselect_b32 {s(S_D3MASK)}, 32, 0')
        b('s_branch L_desc_done')
        b.label('L_desc_cd')
        b(f's_lshl_b32 {s(S_T1)}, {s(S_T0)}, 1')
        b(f's_sub_u32 {s(S_T1)}, {s(S_T1)}, 2464')
        b(f's_sub_u32 {s(S_T2)}, {s(S_T0)}, 672')
        b(f's_cmp_lt_u32 {s(S_CG)}, 14')
        b(f's_cselect_b32 {s(S_D2COL)}, {s(S_T1)}, {s(S_T2)}')
        b(f's_add_u32 {s(S_D3COL)}, {s(S_D2COL)}, 128')
        b(f's_mov_b32 {s(S_D2SEL)}, 1')
        b(f's_mov_b32 {s(S_D3SEL)}, 1')
        b.label('L_desc_done')
        for r in range(32):
            b(f'v_mov_b32 {v(V_ACC0 + r)}, 0')
        if OPT.get('sym', 1) and OPT.get('pro2', 1):
            b.add(x_chunk_items(2, 'x2'))
            b.add(w_piece_items(2, R0, 'x2'))
            b.flush()
        if not OPT.get('sym', 1):
            b(f's_cmp_eq_u32 {s(S_W)}, 3')
            b('s_cbranch_scc1 L_L1P')
        return b.b

    def prefetch_items(self):
        def touch(srdreg, mul, off=0):
            return [f's_mul_i32 {s(S_Q0)}, {s(S_WG)}, {mul}',
                    ('t', f'buffer_load_dword {v(V_DUM)}, {v(V_TCH)}, {s(srdreg, 4)}, {s(S_Q0)} offen offset:{off}', dict(nodst=True))]
        it = []
        pre = lambda ptr, n: [f's_mov_b32 {s(SRD_U)}, {s(ptr)}', f's_mov_b32 {s(SRD_U + 1)}, {s(ptr + 1)}',
                              f's_mov_b32 {s(SRD_U + 2)}, {hex(n)}', f's_mov_b32 {s(SRD_U + 3)}, 0x20000']
        it.append(pre(P_WQKV, 512 * 3072) + touch(SRD_U, 6144))
        it.append(pre(P_WIN, 512 * 2752) + touch(SRD_U, 5504))
        for k in range(4):
            it.append([f's_mul_i32 {s(S_Q0)}, {s(S_WG)}, 32768', f's_add_u32 {s(S_Q0)}, {s(S_Q0)}, {8192 * k}',
                       ('t', f'buffer_load_dword {v(V_DUM)}, {v(V_TCH)}, {s(SRD_A, 4)}, {s(S_Q0)} offen', dict(nodst=True))])
        it.append(pre(P_WOUT, 688 * 1024) + touch(SRD_U, 2752))
        it.append(pre(P_WO, 512 * 1024) + touch(SRD_U, 2048))
        return it

    def slab1(self, loader):
        b = St(self, 'L1L' if loader else 'L1P')
        if not loader:
            b.label('L_L1P')
            pf = self.prefetch_items() if OPT.get('pf', 1) else []
        n0 = b.mark()
        for c in range(8):
            if loader:
                b.wait_vm(f'x{c}')
            if c == 4:
                b(f'v_add_u32 {v(V_NON)}, {hex(NONCE_K)}, {v(V_E)}')
                b(f'v_readfirstlane_b32 {s(S_N)}, {v(V_NON)}')
            b.wait_lds()
            b('s_barrier')
            if c == 0:
                dstamp(b, 2)
            if OPT.get('l1st') and c in (0, 1, 2, 4, 6):
                stamp(b, {0: 13, 1: 14, 2: 15, 4: 19, 6: 22}[c])
            m5 = None
            if c <= 4:
                if OPT.get('sym', 1):
                    b.add(x_chunk_items(c + 3, f'x{c + 3}'))
                    b.add(w_piece_items(c + 3, R0, f'x{c + 3}'))
                elif loader:
                    b.add(l1_items(c + 2))
                    m5 = c + 2
                else:
                    b.add(pf[:2])
                    pf = pf[2:]
            else:
                if c == 5:
                    self.switch_slab(b, S_D2SEL, S_D2COL, S_D2MASK)
                for p in {5: (4, 5), 6: (6, 7), 7: ()}[c]:
                    b.add(w_piece_items(p, R2, 'w2a' if OPT.get('ilv', 0) else 'w2'))
                if c == 7 and OPT.get('tch', 0) & 4:
                    self.w3_touch(b)
            if OPT.get('l1late', 1):
                b.period = 0
            else:
                b.pop(1)
                b.period = OPT.get('l1p', 6) if loader else 8
            for kk in range(4):
                K = 4 * c + kk
                b(f'ds_read_b128 {a(A_X + 4 * K, 4)}, {v(V_XRO + kk)}')
                wf = V_WF + 8 * (K & 3)
                for ch in range(2):
                    for t in range(2):
                        b(f'ds_read_b64_tr_b16 {v(wf + 4 * ch + 2 * t, 2)}, {v(V_WR + ch)} offset:{2048 * K + 512 * t}')
                if K >= OPT.get('l1lag', 2):
                    self.mfma_pair_R(b, K - OPT.get('l1lag', 2))
                if kk == 2 and m5 is not None:
                    b.flush()
                    l1_item5(self, b, m5)
                    b.add(l1_w_items(m5))
            b.flush()
            b.period = 0
            if c < 7:
                d = 16384 if (c + 1) % 4 != 0 else -49152
                for kk in range(4):
                    if d > 0:
                        b(f'v_add_u32 {v(V_XRO + kk)}, {d}, {v(V_XRO + kk)}')
                    else:
                        b(f'v_subrev_u32 {v(V_XRO + kk)}, {-d}, {v(V_XRO + kk)}')
        for K in range(32 - OPT.get('l1lag', 2), 32):
            self.mfma_pair_R(b, K)
        b.weave_from(n0, G=OPT.get('l1g', 6), adv=OPT.get('l1adv', 2))
        if OPT.get('ilv', 0):
            b.wait_vm('w2a')
        b.wait_lds()
        b('s_barrier')
        stamp(b, 1)
        dstamp(b, 3)
        b(f's_cmp_lt_u32 {s(S_CG)}, 8')
        b('s_cbranch_scc1 L_roleA')
        b(f's_cmp_lt_u32 {s(S_CG)}, 11')
        b('s_cbranch_scc1 L_roleB')
        b(f's_cmp_lt_u32 {s(S_CG)}, 14')
        b('s_cbranch_scc1 L_roleC')
        b('s_branch L_roleD')
        return b.b

    def switch_slab(self, b, sel, col, mask):
        with b.atomic():
            b(f's_cmp_eq_u32 {s(sel)}, 0')
            b(f's_mov_b32 {s(S_RS)}, 2752')
            b(f's_cmov_b32 {s(S_RS)}, 3072')
            b(f's_mov_b32 {s(S_COL)}, {s(col)}')
            b(f's_mov_b32 {s(S_MASK)}, {s(mask)}')
            set_w_srd(b, sel)
            wd_voffsets(b)

    def mfma_pair_R(self, b, K):
        wf = V_WF + 8 * (K & 3)
        for ch in range(2):
            acc = V_ACC0 + 16 * ch
            b(f'v_mfma_f32_32x32x16_bf16 {v(acc, 16)}, {v(wf + 4 * ch, 4)}, {a(A_X + 4 * K, 4)}, {v(acc, 16)}')

    def touch_setup(self, b):
        b(f'v_lshrrev_b32 {v(V_T0)}, 3, {v(V_LANE)}')
        b(f'v_lshlrev_b32 {v(V_T0)}, 12, {v(V_T0)}')
        b(f'v_and_b32 {v(V_T0 + 1)}, 7, {v(V_LANE)}')
        b(f'v_lshl_add_u32 {v(V_TCH)}, {v(V_T0 + 1)}, 7, {v(V_T0)}')
        b(f'v_lshlrev_b32 {v(V_TW1)}, 10, {v(V_LANE)}')
        b(f'v_mov_b32 {v(V_TW2)}, {v(V_TW1)}')
        b(f'v_mov_b32 {v(V_T0)}, {hex(OOB)}')
        b(f'v_cmp_lt_u32 vcc, 21, {v(V_LANE)}')
        b(f'v_cndmask_b32 {v(V_TW1)}, {v(V_TW1)}, {v(V_T0)}, vcc')
        b(f'v_cmp_lt_u32 vcc, 15, {v(V_LANE)}')
        b(f'v_cndmask_b32 {v(V_TW2)}, {v(V_TW2)}, {v(V_T0)}, vcc')
        srd(b, SRD_U, P_WOUT, 688 * 1024)
        srd(b, SRD_X, P_WO, 512 * 1024)

    def touch_items(self):
        T = OPT.get('tch', 0)
        it = []
        if T & 1:
            for k in range(2):
                it.append([f's_and_b32 {s(S_Q0)}, {s(S_J)}, 3',
                           f's_lshl_b32 {s(S_Q0)}, {s(S_Q0)}, 16',
                           f's_add_u32 {s(S_Q0)}, {s(S_Q0)}, {s(S_AS)}'] +
                          ([f's_add_u32 {s(S_Q0)}, {s(S_Q0)}, {8 * 4096}'] if k else []) +
                          [('t', f'buffer_load_dword {v(V_DUM)}, {v(V_TCH)}, {s(SRD_A, 4)}, {s(S_Q0)} offen', dict(nodst=True))])
        if T & 8:
            it.append([f's_lshl2_add_u32 {s(S_Q0)}, {s(S_WG)}, {s(S_W)}',
                       f's_lshl_b32 {s(S_Q0)}, {s(S_Q0)}, 13',
                       f'v_lshlrev_b32 {v(V_T0)}, 7, {v(V_LANE)}',
                       ('t', f'buffer_load_dword {v(V_DUM)}, {v(V_T0)}, {s(SRD_A, 4)}, {s(S_Q0)} offen', dict(nodst=True))])
        if T & 2:
            it.append([f's_lshr_b32 {s(S_Q0)}, {s(S_WG)}, 5',
                       f's_mul_i32 {s(S_Q1)}, {s(S_Q0)}, 86',
                       f's_mul_i32 {s(S_Q0)}, {s(S_W)}, 22',
                       f's_add_u32 {s(S_Q0)}, {s(S_Q0)}, {s(S_Q1)}',
                       f's_lshl_b32 {s(S_Q0)}, {s(S_Q0)}, 10',
                       f's_lshl_b32 {s(S_Q1)}, {s(S_J)}, 7',
                       f's_add_u32 {s(S_Q0)}, {s(S_Q0)}, {s(S_Q1)}',
                       ('t', f'buffer_load_dword {v(V_DUM)}, {v(V_TW1)}, {s(SRD_U, 4)}, {s(S_Q0)} offen', dict(nodst=True))])
            it.append([f's_lshr_b32 {s(S_Q0)}, {s(S_WG)}, 5',
                       f's_lshl_b32 {s(S_Q0)}, {s(S_Q0)}, 2',
                       f's_add_u32 {s(S_Q0)}, {s(S_Q0)}, {s(S_W)}',
                       f's_lshl_b32 {s(S_Q0)}, {s(S_Q0)}, 14',
                       f's_lshl_b32 {s(S_Q1)}, {s(S_J)}, 7',
                       f's_add_u32 {s(S_Q0)}, {s(S_Q0)}, {s(S_Q1)}',
                       ('t', f'buffer_load_dword {v(V_DUM)}, {v(V_TW2)}, {s(SRD_X, 4)}, {s(S_Q0)} offen', dict(nodst=True))])
        return it

    def w3_touch(self, b):
        with b.atomic():
            b(f's_cmp_eq_u32 {s(S_D3SEL)}, 0')
            b(f's_cselect_b32 {s(SRD_U)}, {s(P_WQKV)}, {s(P_WIN)}')
            b(f's_cselect_b32 {s(SRD_U + 1)}, {s(P_WQKV + 1)}, {s(P_WIN + 1)}')
            b(f's_mov_b32 {s(SRD_U + 2)}, {hex(512 * 2752)}')
            b(f's_cmov_b32 {s(SRD_U + 2)}, {hex(512 * 3072)}')
            b(f's_mov_b32 {s(SRD_U + 3)}, 0x20000')
            b(f's_mov_b32 {s(S_T0)}, 2752')
            b(f's_cmov_b32 {s(S_T0)}, 3072')
            b(f'v_and_b32 {v(V_T0)}, 15, {v(V_LANE)}')
            b(f'v_mul_lo_u32 {v(V_T0)}, {v(V_T0)}, {s(S_T0)}')
            b(f'v_bfe_u32 {v(V_T0 + 1)}, {v(V_LANE)}, 4, 1')
            b(f'v_mul_u32_u24 {v(V_T0 + 1)}, 124, {v(V_T0 + 1)}')
            b(f'v_add_u32 {v(V_T0)}, {v(V_T0)}, {v(V_T0 + 1)}')
            b(f's_max_i32 {s(S_T1)}, {s(S_D3COL)}, 0')
            b(f'v_add_u32 {v(V_T0)}, {s(S_T1)}, {v(V_T0)}')
            b(f'v_mov_b32 {v(V_T0 + 1)}, {hex(OOB)}')
            b(f'v_cmp_lt_u32 vcc, 31, {v(V_LANE)}')
            b(f'v_cndmask_b32 {v(V_T0)}, {v(V_T0)}, {v(V_T0 + 1)}, vcc')
            b(f's_lshr_b32 {s(S_T1)}, {s(S_WG)}, 5')
            b(f's_lshl2_add_u32 {s(S_T1)}, {s(S_T1)}, {s(S_W)}')
            b(f's_lshl_b32 {s(S_T1)}, {s(S_T1)}, 4')
            b(f's_mul_i32 {s(S_T1)}, {s(S_T1)}, {s(S_T0)}')
            b(f'buffer_load_dword {v(V_DUM)}, {v(V_T0)}, {s(SRD_U, 4)}, {s(S_T1)} offen', tag='t', nodst=True)

    def post_l1(self, b, role):
        it = []
        self.touch_setup(b)
        for p in (0, 1, 2, 3):
            it += w_piece_items(p, R2, 'w2')
        it += self.touch_items()
        if OPT.get('c0early', 1) == 1 and not OPT.get('ilv', 0):
            it += a_chunk_items(0, 'f0')
        return it

    def w3_items(self, b, region=R0):
        b.flush()
        self.switch_slab(b, S_D3SEL, S_D3COL, S_D3MASK)
        for p in range(8):
            b.add(w_piece_items(p, region, 'w3'))
        if OPT.get('c0early', 1) == 2:
            b.add(a_chunk_items(0, 'f0'))

    def set_wr(self, b, region):
        with b.atomic():
            tr_addr(b, V_WR, False)
            if region:
                b(f'v_add_u32 {v(V_WR)}, {region}, {v(V_WR)}')
            b(f'v_xor_b32 {v(V_WR + 1)}, 64, {v(V_WR)}')

    def main_loop(self, b, orient, hooks=None, pop_every=1, order=None, co=None, acc0=V_ACC1, pop2=0, co_end=27):
        hooks = hooks or {}
        order = order or list(range(32))
        D = 2
        units = list(co.units) if co else []

        def rd(P):
            K = order[P]
            wf = V_WF + 8 * (P & 3)
            for ch in range(2):
                for t in range(2):
                    b(f'ds_read_b64_tr_b16 {v(wf + 4 * ch + 2 * t, 2)}, {v(V_WR + ch)} offset:{2048 * K + 512 * t}')
        sv = b.period
        b.period = 0
        n0 = b.mark()
        for P in range(D):
            rd(P)
        for P in range(32):
            for fn in hooks.get(('pre', P), []):
                fn(b)
            if P + D < 32:
                rd(P + D)
            K = order[P]
            wf = V_WF + 8 * (P & 3)
            x = a(A_X + 4 * K, 4)
            for ch in range(2):
                acc = acc0 + 16 * ch
                c = '0' if P == 0 else v(acc, 16)
                if orient == 'T':
                    b(f'v_mfma_f32_32x32x16_bf16 {v(acc, 16)}, {v(wf + 4 * ch, 4)}, {x}, {c}')
                else:
                    b(f'v_mfma_f32_32x32x16_bf16 {v(acc, 16)}, {x}, {v(wf + 4 * ch, 4)}, {c}')
            for fn in hooks.get(P, []):
                fn(b, 4 if P + D < 32 else 0)
            if OPT.get('s3st') and self.s3flag and P in (7, 15, 19, 23, 27):
                stamp(b, {7: 11, 15: 13, 19: 15, 23: 19, 27: 22}[P])
            if units:
                left = max(co_end - P, 1)
                ninstr = sum(len(u) for u in units)
                take = -(-ninstr // left)
                k = 0
                while units and k < take:
                    u = units.pop(0)
                    for (text, tag, meta) in u:
                        b.b(text, tag=tag, **meta)
                    k += len(u)
            if P % pop_every == pop_every - 1:
                b.pop(2 if P < pop2 else 1)
        assert not units
        b.weave_from(n0, G=(7 if co else OPT.get('mlg', 5)), adv=OPT.get('mladv', 2))
        b.period = sv

    def apipe_hooks(self, first_K, step):
        hooks = {}

        def mk_issue(p):
            return lambda b, younger: b.add(a_piece_items(p >> 1, p & 1, f'h{p & 1}'))

        def mk_move(p):
            def f(b, younger):
                b.ensure(f'a{p >> 1}_{p & 1}')
                b.wait_vm(f'a{p >> 1}_{p & 1}')
                a_piece_read(b, p >> 1, p & 1, f'h{p & 1}')
            return f

        def mk_refill(p):
            def f(b, younger):
                b(f's_waitcnt lgkmcnt({younger})')
                b.add(a_piece_items(p >> 1, p & 1, f'h{p & 1}'))
            return f
        return hooks, mk_issue, mk_move, mk_refill

    def z2_epilogue(self, b, mid=None):
        for g in range(4):
            gelu_group(b, [V_ACC0 + 8 * g + k for k in range(8)], V_TMP)
            if g == 0 and mid:
                mid()
        s1, s2 = V_ST, V_ST + 1
        t = V_TMP
        if OPT.get('pk', 1) and not NOPK[0]:
            p, q = t + 2, t + 4
            b(f'v_pk_add_f32 {v(p, 2)}, {v(V_ACC0, 2)}, {v(V_ACC0 + 2, 2)}')
            b(f'v_pk_mul_f32 {v(q, 2)}, {v(V_ACC0, 2)}, {v(V_ACC0, 2)}')
            for k in range(4, 32, 2):
                b(f'v_pk_add_f32 {v(p, 2)}, {v(p, 2)}, {v(V_ACC0 + k, 2)}')
            for k in range(2, 32, 2):
                b(f'v_pk_fma_f32 {v(q, 2)}, {v(V_ACC0 + k, 2)}, {v(V_ACC0 + k, 2)}, {v(q, 2)}')
            b(f'v_mov_b32 {v(s1)}, {v(p)}')
            b(f'v_mov_b32 {v(t)}, {v(p + 1)}')
            b(f'v_mov_b32 {v(s2)}, {v(q)}')
            b(f'v_mov_b32 {v(t + 1)}, {v(q + 1)}')
        else:
            b(f'v_add_f32 {v(s1)}, {v(V_ACC0)}, {v(V_ACC0 + 1)}')
            b(f'v_mul_f32 {v(s2)}, {v(V_ACC0)}, {v(V_ACC0)}')
            b(f'v_add_f32 {v(t)}, {v(V_ACC0 + 2)}, {v(V_ACC0 + 3)}')
            b(f'v_mul_f32 {v(t + 1)}, {v(V_ACC0 + 1)}, {v(V_ACC0 + 1)}')
            for k in range(4, 32, 2):
                b(f'v_add_f32 {v(s1)}, {v(s1)}, {v(V_ACC0 + k)}')
                b(f'v_add_f32 {v(t)}, {v(t)}, {v(V_ACC0 + k + 1)}')
            for k in range(2, 32, 2):
                b(f'v_fmac_f32 {v(s2)}, {v(V_ACC0 + k)}, {v(V_ACC0 + k)}')
                b(f'v_fmac_f32 {v(t + 1)}, {v(V_ACC0 + k + 1)}, {v(V_ACC0 + k + 1)}')
        with b.atomic():
            b(f'v_add_f32 {v(s1)}, {v(s1)}, {v(t)}')
            b(f'v_add_f32 {v(s2)}, {v(s2)}, {v(t + 1)}')
            b(f'v_permlane32_swap_b32 {v(s1)}, {v(s2)}')
            b(f'v_add_f32 {v(s1)}, {v(s1)}, {v(s2)}')
            b(f'v_mov_b32 {v(s2)}, {s(S_N)}')
            b(f's_mul_i32 {s(S_T0)}, {s(S_TB)}, 5632')
            b(f's_lshl_b32 {s(S_T1)}, {s(S_CG)}, 9')
            b(f's_add_u32 {s(S_T0)}, {s(S_T0)}, {s(S_T1)}')
            b(f's_add_u32 {s(S_T0)}, {s(S_T0)}, {WS_STATS}')
            b(f'buffer_store_dwordx2 {v(s1, 2)}, {v(V_L8)}, {s(SRD_WS, 4)}, {s(S_T0)} offen sc1', tag='st')
        stamp(b, 2)

    def stats_issue(self, b):
        with b.atomic():
            b(f's_mul_i32 {s(S_T5)}, {s(S_TB)}, 5632')
            b(f's_add_u32 {s(S_T5)}, {s(S_T5)}, {WS_STATS}')
            b(f's_add_u32 {s(S_T4)}, {s(S_T5)}, 4096')
            for js in range(11):
                so = S_T5 if js < 8 else S_T4
                off = 512 * js if js < 8 else 512 * js - 4096
                b(f'buffer_load_dwordx2 {v(V_STAT + 2 * js, 2)}, {v(V_L8)}, {s(SRD_WS, 4)}, {s(so)} offen offset:{off} sc1')

    def stats_check_code(self, b):
        t = V_TMP
        b(f'v_min3_u32 {v(t)}, {v(V_STAT + 1)}, {v(V_STAT + 3)}, {v(V_STAT + 5)}')
        b(f'v_max3_u32 {v(t + 1)}, {v(V_STAT + 1)}, {v(V_STAT + 3)}, {v(V_STAT + 5)}')
        for js in range(3, 11, 2):
            b(f'v_min3_u32 {v(t)}, {v(t)}, {v(V_STAT + 2 * js + 1)}, {v(V_STAT + 2 * js + 3)}')
            b(f'v_max3_u32 {v(t + 1)}, {v(t + 1)}, {v(V_STAT + 2 * js + 1)}, {v(V_STAT + 2 * js + 3)}')
        b(f'v_xor_b32 {v(t)}, {s(S_N)}, {v(t)}')
        b(f'v_xor_b32 {v(t + 1)}, {s(S_N)}, {v(t + 1)}')
        b(f'v_or_b32 {v(t)}, {v(t)}, {v(t + 1)}')
        b(f'v_cmp_ne_u32 vcc, 0, {v(t)}')

    def z2_norm(self, b, after_check=None):
        cont, slow = self.lab('ZC'), self.lab('ZS')
        with b.atomic():
            self.stats_check_code(b)
            b(f's_cbranch_vccnz {slow}')
            b.label(cont)
        if after_check:
            after_check()
        sb = Block('tmp')
        sb(f's_sleep 1')
        sb(f's_mul_i32 {s(S_T5)}, {s(S_TB)}, 5632')
        sb(f's_add_u32 {s(S_T5)}, {s(S_T5)}, {WS_STATS}')
        sb(f's_add_u32 {s(S_T4)}, {s(S_T5)}, 4096')
        for js in range(11):
            so = S_T5 if js < 8 else S_T4
            off = 512 * js if js < 8 else 512 * js - 4096
            sb(f'buffer_load_dwordx2 {v(V_STAT + 2 * js, 2)}, {v(V_L8)}, {s(SRD_WS, 4)}, {s(so)} offen offset:{off} sc1')
        sb('s_waitcnt vmcnt(0)')
        self.stats_check_code(sb)
        txt = '\n'.join('    ' + i.text for i in sb.ins)
        self.slow.append(f'''{slow}:
    s_mov_b32 {s(S_CNT)}, {SPIN_MAX}
{slow}_l:
{txt}
{slow_mark(30)}    s_cbranch_vccz {cont}
    s_sub_u32 {s(S_CNT)}, {s(S_CNT)}, 1
    s_cmp_lg_u32 {s(S_CNT)}, 0
    s_cbranch_scc1 {slow}_l
    s_branch {cont}''')
        t = V_TMP
        b(f'v_add_f32 {v(t)}, {v(V_STAT)}, {v(V_STAT + 2)}')
        b(f'v_add_f32 {v(t + 1)}, {v(V_STAT + 4)}, {v(V_STAT + 6)}')
        for js in range(4, 11, 2):
            b(f'v_add_f32 {v(t)}, {v(t)}, {v(V_STAT + 2 * js)}')
            if js + 1 < 11:
                b(f'v_add_f32 {v(t + 1)}, {v(t + 1)}, {v(V_STAT + 2 * js + 2)}')
        b(f'v_add_f32 {v(t)}, {v(t)}, {v(t + 1)}')
        b(f'v_mov_b32 {v(t + 1)}, {v(t)}')
        b(f'v_permlane32_swap_b32 {v(t)}, {v(t + 1)}')
        b(f'v_mul_f32 {v(t)}, {hex(f2u(1.0 / 688))}, {v(t)}')
        b(f'v_mul_f32 {v(t + 1)}, {hex(f2u(1.0 / 688))}, {v(t + 1)}')
        b(f'v_fma_f32 {v(t + 1)}, -{v(t)}, {v(t)}, {v(t + 1)}')
        b(f'v_max_f32 {v(t + 1)}, 0, {v(t + 1)}')
        b(f'v_add_f32 {v(t + 1)}, {hex(f2u(1e-5))}, {v(t + 1)}')
        b(f'v_rsq_f32 {v(t + 1)}, {v(t + 1)}')
        b(f'v_mul_f32 {v(t)}, {v(t)}, {v(t + 1)}')
        b(f'v_sub_f32 {v(t)}, 0, {v(t)}')
        w0 = t + 2
        r0 = t + 6
        with b.atomic():
            b(f's_lshl_b32 {s(S_T0)}, {s(S_W)}, 14')
            b(f's_add_u32 {s(S_T0)}, {s(S_T0)}, {(R0 + 8192) if OPT.get("aplan", 1) == 3 else (R2 + 8192)}')
            b(f'v_and_b32 {v(w0)}, 31, {v(V_LANE)}')
            b(f'v_lshrrev_b32 {v(w0 + 1)}, 5, {v(V_LANE)}')
            b(f'v_and_b32 {v(w0 + 2)}, 15, {v(V_LANE)}')
            b(f'v_xor_b32 {v(w0 + 1)}, {v(w0 + 1)}, {v(w0 + 2)}')
            b(f'v_lshlrev_b32 {v(w0 + 1)}, 3, {v(w0 + 1)}')
            b(f'v_lshl_add_u32 {v(w0)}, {v(w0)}, 7, {v(w0 + 1)}')
            b(f'v_add_u32 {v(w0)}, {s(S_T0)}, {v(w0)}')
            b(f'v_bfe_u32 {v(r0)}, {v(V_LANE)}, 2, 2')
            b(f'v_lshrrev_b32 {v(r0 + 1)}, 5, {v(V_LANE)}')
            b(f'v_lshl_add_u32 {v(r0)}, {v(r0 + 1)}, 3, {v(r0)}')
            b(f'v_bfe_u32 {v(r0 + 1)}, {v(V_LANE)}, 4, 1')
            b(f'v_and_b32 {v(r0 + 2)}, 3, {v(V_LANE)}')
            b(f'v_lshl_add_u32 {v(r0 + 1)}, {v(r0 + 1)}, 2, {v(r0 + 2)}')
            b(f'v_xor_b32 {v(r0 + 1)}, {v(r0 + 1)}, {v(r0)}')
            b(f'v_lshlrev_b32 {v(r0 + 1)}, 3, {v(r0 + 1)}')
            b(f'v_lshl_add_u32 {v(r0)}, {v(r0)}, 7, {v(r0 + 1)}')
            b(f'v_add_u32 {v(r0)}, {s(S_T0)}, {v(r0)}')
        ra = r0 + 1
        for bb in range(2):
            for tt in range(2):
                b(f'v_xor_b32 {v(ra + 2 * bb + tt)}, {8 * ((8 * bb) ^ (4 * tt))}, {v(r0)}')
        pk = V_PV
        for bb in range(2):
            for j in range(4):
                r = V_ACC0 + 16 * bb + 4 * j
                for k in range(4):
                    b(f'v_fma_f32 {v(r + k)}, {v(r + k)}, {v(t + 1)}, {v(t)}')
                b(f'v_cvt_pk_bf16_f32 {v(pk + 8 * bb + 2 * j)}, {v(r)}, {v(r + 1)}')
                b(f'v_cvt_pk_bf16_f32 {v(pk + 8 * bb + 2 * j + 1)}, {v(r + 2)}, {v(r + 3)}')
                K = 8 * bb + 2 * j
                if K:
                    b(f'v_xor_b32 {v(w0 + 1)}, {8 * K}, {v(w0)}')
                    ad = w0 + 1
                else:
                    ad = w0
                b(f'ds_write_b64 {v(ad)}, {v(pk + 8 * bb + 2 * j, 2)}')
        b.wait_lds()
        fr = V_TMP + 16
        for bb in range(2):
            for kq in range(2):
                for tt in range(2):
                    b(f'ds_read_b64_tr_b16 {v(fr + 8 * bb + 4 * kq + 2 * tt, 2)}, {v(ra + 2 * bb + tt)} offset:{512 * tt + 2048 * kq}')
        with b.atomic():
            b(f's_lshl_b32 {s(S_T0)}, {s(S_CG)}, 18')
            b(f's_lshl_b32 {s(S_T1)}, {s(S_TB)}, 11')
            b(f's_add_u32 {s(S_T0)}, {s(S_T0)}, {s(S_T1)}')
            b(f's_add_u32 {s(S_T0)}, {s(S_T0)}, {WS_Z2N}')
            b(f's_add_u32 {s(S_T1)}, {s(S_T0)}, {128 * 1024}')
            for bb in range(2):
                for kq in range(2):
                    so = S_T0 if bb == 0 else S_T1
                    b(f'buffer_store_dwordx4 {v(fr + 8 * bb + 4 * kq, 4)}, {v(V_L16)}, {s(SRD_WS, 4)}, {s(so)} offen offset:{1024 * kq} sc1', tag='z2n')
        stamp(b, 3)

    def flag_store(self, b, base, tagwait):
        b.wait_vm(tagwait)
        with b.atomic():
            b(f's_lshl4_add_u32 {s(S_T0)}, {s(S_RB)}, {s(S_CG)}')
            b(f's_lshl4_add_u32 {s(S_T0)}, {s(S_T0)}, {s(S_W)}')
            b(f's_lshl_b32 {s(S_T0)}, {s(S_T0)}, 2')
            b(f's_add_u32 {s(S_T0)}, {s(S_T0)}, {base}')
            b(f'v_mov_b32 {v(V_POLL)}, {s(S_N)}')
            b(f'buffer_store_dword {v(V_POLL)}, off, {s(SRD_WS, 4)}, {s(S_T0)} sc1', tag='flag')

    def t_epilogue(self, b, kind, acc, mid=None, midg=1):
        out = V_PV
        for g in range(4):
            if g == midg and mid:
                mid()
            xs = [acc + 8 * g + k for k in range(8)]
            if kind == 'gelu':
                gelu_group(b, xs, V_TMP)
            else:
                phi_group(b, xs, V_TMP)
            for k in range(4):
                b(f'v_cvt_pk_bf16_f32 {v(out + 4 * g + k)}, {v(xs[2 * k])}, {v(xs[2 * k + 1])}')
            so = S_O0 if g < 2 else S_O1
            b(f'buffer_store_dwordx4 {v(out + 4 * g, 4)}, {v(V_L16)}, {s(SRD_WS, 4)}, {s(so)} offen offset:{1024 * (g & 1)} sc1', tag='p1')

    def set_out_addr(self, b, kind, slab_code):
        with b.atomic():
            for l in slab_code:
                b(l)
            base, stride = (WS_PQ, 32768) if kind == 'q' else (WS_Z1F, 45056)
            b(f's_lshl_b32 {s(S_T4)}, {s(S_T4)}, 12')
            b(f's_add_u32 {s(S_T4)}, {s(S_T4)}, {base}')
            b(f's_mul_i32 {s(S_O0)}, {s(S_TB)}, {stride}')
            b(f's_add_u32 {s(S_O0)}, {s(S_O0)}, {s(S_T4)}')
            b(f's_add_u32 {s(S_O1)}, {s(S_O0)}, 2048')

    def k_epilogue(self, b):
        for g in range(4):
            xs = [V_ACC1 + 8 * g + k for k in range(8)]
            phi_group(b, xs, V_TMP)
            for k in range(4):
                b(f'v_cvt_pk_bf16_f32 {v(V_PK + 4 * g + k)}, {v(xs[2 * k])}, {v(xs[2 * k + 1])}')

    def v_epilogue(self, b):
        for k in range(16):
            b(f'v_cvt_pk_bf16_f32 {v(V_PV + k)}, {v(V_ACC1 + 2 * k)}, {v(V_ACC1 + 2 * k + 1)}')
        ones = V_TMP
        for k in range(4):
            b(f'v_mov_b32 {v(ones + k)}, 0x3f803f80')
        for par in range(2):
            for ch in range(2):
                g = 2 * ch + par
                kv, zz = V_KV + 16 * ch, V_KZ + 16 * ch
                c0 = '0' if par == 0 else v(kv, 16)
                c1 = '0' if par == 0 else v(zz, 16)
                b(f'v_mfma_f32_32x32x16_bf16 {v(kv, 16)}, {v(V_PK + 4 * g, 4)}, {v(V_PV + 4 * g, 4)}, {c0}')
                b(f'v_mfma_f32_32x32x16_bf16 {v(zz, 16)}, {v(V_PK + 4 * g, 4)}, {v(ones, 4)}, {c1}')

    def kv_finish(self, b, R0=R0):
        with b.atomic():
            b(f'v_and_b32 {v(V_T0)}, 31, {v(V_LANE)}')
            b(f'v_cmp_gt_u32 vcc, 16, {v(V_T0)}')
            for ch in range(2):
                kv, zz = V_KV + 16 * ch, V_KZ + 16 * ch
                for k in range(8):
                    b(f'v_cndmask_b32 {v(kv + k)}, {v(zz + k)}, {v(kv + k)}, vcc')
                for k in range(8, 16):
                    b(f'v_cndmask_b32 {v(kv + k)}, {v(kv + k)}, {v(zz + k)}, vcc')
            b('s_barrier')
            b(f's_lshl_b32 {s(S_T0)}, {s(S_W)}, 11')
            b(f's_add_u32 {s(S_T0)}, {s(S_T0)}, {R0}')
            b(f'v_add_u32 {v(V_T0)}, {s(S_T0)}, {v(V_L16)}')
            for d in range(4):
                for q in range(2):
                    b(f'ds_write_b128 {v(V_T0)}, {v(V_KV + 8 * d + 4 * q, 4)} offset:{8192 * d + 1024 * q}')
            b(f's_lshl_b32 {s(S_T0)}, {s(S_W)}, 13')
            b(f's_add_u32 {s(S_T0)}, {s(S_T0)}, {R0}')
            b(f'v_add_u32 {v(V_T0)}, {s(S_T0)}, {v(V_L16)}')
            b.wait_lds()
            b('s_barrier')
            X = V_KZ
            for src in range(4):
                for q in range(2):
                    b(f'ds_read_b128 {v(X + 8 * src + 4 * q, 4)}, {v(V_T0)} offset:{2048 * src + 1024 * q}')
            for k in range(8):
                b(f'v_add_f32 {v(X + k)}, {v(X + k)}, {v(X + 8 + k)}')
                b(f'v_add_f32 {v(X + 16 + k)}, {v(X + 16 + k)}, {v(X + 24 + k)}')
            for k in range(8):
                b(f'v_add_f32 {v(X + k)}, {v(X + k)}, {v(X + 16 + k)}')
            b(f's_lshl2_add_u32 {s(S_T0)}, {s(S_CG)}, {s(S_W)}')
            b(f's_lshl_b32 {s(S_T0)}, {s(S_T0)}, 15')
            b(f's_lshl_b32 {s(S_T1)}, {s(S_RB)}, 10')
            b(f's_add_u32 {s(S_T0)}, {s(S_T0)}, {s(S_T1)}')
            b(f's_add_u32 {s(S_T0)}, {s(S_T0)}, {WS_KVP}')
            for q in range(2):
                if q:
                    b(f's_add_u32 {s(S_T0)}, {s(S_T0)}, 16384')
                b(f'buffer_store_dwordx4 {v(X + 4 * q, 4)}, {v(V_L16)}, {s(SRD_WS, 4)}, {s(S_T0)} offen sc1', tag='p1')

    def pre_slab(self, b, tag):
        b.ensure(tag)
        b.wait_vm(tag)
        b('s_barrier')

    def mv_piece(self, b, p):
        b.ensure(f'a{p >> 1}_{p & 1}')
        b.wait_vm(f'a{p >> 1}_{p & 1}')
        a_piece_read(b, p >> 1, p & 1, f'h{p & 1}')

    def fetch_piece(self, b, p):
        b.add(a_piece_items(p >> 1, p & 1, f'h{p & 1}'))

    def mv_chunk(self, b, c, slot):
        b.ensure(f'a{c}_0')
        b.ensure(f'a{c}_1')
        b.wait_vm([f'a{c}_0', f'a{c}_1'])
        a_chunk_read(b, c, slot)

    def slab3_hooks(self, extra=None):
        h = {}

        def add(K, fn):
            h.setdefault(K, []).append(fn)
        K0 = OPT.get('k0', 20)
        if OPT.get('aplan', 1) == 2:
            for K, fn in (extra or {}).items():
                add(K, fn)
            return h
        add(K0, lambda b, y: self.mv_chunk(b, 0, 'f0'))
        add(K0 + 1, lambda b, y: (b(f's_waitcnt lgkmcnt({y})'), b.add(a_chunk_items(3, 'f0'))))
        add(K0 + 4, lambda b, y: self.mv_chunk(b, 1, 'f1'))
        add(K0 + 5, lambda b, y: (b(f's_waitcnt lgkmcnt({y})'), b.add(a_chunk_items(4, 'f1'))))
        add(K0 + 8, lambda b, y: self.mv_chunk(b, 2, 'f2'))
        add(K0 + 9, lambda b, y: (b(f's_waitcnt lgkmcnt({y})'), b.add(a_chunk_items(5, 'f2'))))
        for K, fn in (extra or {}).items():
            add(K, fn)
        return h

    def mid_a(self, b):
        if OPT.get('aplan', 1) == 2:
            return
        if not OPT.get('c0early', 1):
            b.add(a_chunk_items(0, 'f0'))
        b.add(a_chunk_items(1, 'f1'))

    def mid_b(self, b):
        pass

    def g_pass(self, b, R0=R0, hooks3=None):
        ga = V_T0 + 4
        b.wait_vm('gw')
        with b.atomic():
            b(f'v_lshrrev_b32 {v(ga)}, 5, {v(V_LANE)}')
            b(f'v_lshlrev_b32 {v(ga)}, 4, {v(ga)}')
            b(f's_lshl_b32 {s(S_T0)}, {s(S_W)}, 10')
            b(f's_add_u32 {s(S_T0)}, {s(S_T0)}, {R0}')
            b(f'v_add_u32 {v(ga)}, {s(S_T0)}, {v(ga)}')
        acc = V_ACC1
        sv = b.period
        b.period = 0
        hooks = hooks3 if hooks3 is not None else self.slab3_hooks()
        for K in range(32):
            wf = V_WF + 4 * (K & 3)
            if K == 0:
                for k2 in range(3):
                    b(f'ds_read_b128 {v(V_WF + 4 * k2, 4)}, {v(ga)} offset:{32 * k2}')
            if K + 3 < 32:
                b(f'ds_read_b128 {v(V_WF + 4 * ((K + 3) & 3), 4)}, {v(ga)} offset:{32 * (K + 3)}')
            b(f'v_mfma_f32_32x32x16_bf16 {v(acc, 16)}, {v(wf, 4)}, {a(A_X + 4 * K, 4)}, {"0" if K == 0 else v(acc, 16)}')
            for fn in hooks.get(K, []):
                fn(b, 1 if K + 3 < 32 else 0)
            b.pop(1)
        b.period = sv
        t = V_TMP
        b(f'v_mul_f32 {v(t)}, {hex(f2u(-LOG2E))}, {v(acc)}')
        b(f'v_exp_f32 {v(t)}, {v(t)}')
        b(f'v_add_f32 {v(t)}, 1.0, {v(t)}')
        b(f'v_rcp_f32 {v(t)}, {v(t)}')
        with b.atomic():
            b(f'v_and_b32 {v(t + 1)}, 31, {v(V_LANE)}')
            b(f'v_lshlrev_b32 {v(t + 1)}, 2, {v(t + 1)}')
            b(f's_lshl_b32 {s(S_T0)}, {s(S_TB)}, 7')
            b(f's_add_u32 {s(S_T0)}, {s(S_T0)}, {WS_GATE}')
            b(f's_cmp_eq_u32 {s(S_CG)}, 14')
            b(f's_cselect_b32 {s(S_T0)}, {s(S_T0)}, {hex(OOB)}')
            b(f'buffer_store_dword {v(t)}, {v(t + 1)}, {s(SRD_WS, 4)}, {s(S_T0)} offen sc1', tag='p1')

    def pre_epi3(self, b):
        if OPT.get('aplan', 1) == 2:
            b.add(a_chunk_items(1, 'f1'))
            b.add(a_chunk_items(2, 'f2'))

    def a_tail(self, b):
        b.flush()
        if OPT.get('early', 0):
            return
        if OPT.get('s1late', 1) == 2:
            s1_issue(self, b)
        self.flag_store(b, WS_FP1, 'p1')

    def slab2_ilv(self, b, orient, rec, has_w3):
        self.set_wr(b, R2)
        hooks = {('pre', 14): [lambda bb: (bb.ensure('w2'), bb.wait_vm('w2'), bb('s_barrier'))]}
        if has_w3:
            hooks[5] = [lambda bb, y: (self.w3_items(bb), bb.add(a_chunk_items(0, 'f0')) if OPT.get('c0early', 1) == 1 else None)]
        elif OPT.get('c0early', 1) == 1:
            hooks[5] = [lambda bb, y: bb.add(a_chunk_items(0, 'f0'))]
        order = list(range(16, 32)) + list(range(16))
        self.main_loop(b, orient, hooks, order=order, co=rec, pop2=4)

    def role_AB(self, role):
        b = St(self, 'ROLE' + role)
        b.label('L_role' + role)
        b.add(self.post_l1(b, role))
        orient = 'N' if role == 'A' else 'T'
        if OPT.get('ilv', 0):
            rec = Rec()
            NOPK[0] = True
            self.z2_epilogue(rec)
            NOPK[0] = False
            self.slab2_ilv(b, orient, rec, True)
        elif OPT.get('w3z', 0):
            b.period = 9
            self.z2_epilogue(b, mid=lambda: self.w3_items(b))
            self.pre_slab(b, 'w2')
            self.set_wr(b, R2)
            stamp(b, 16)
            self.main_loop(b, orient, pop_every=1)
        else:
            b.period = 14
            self.z2_epilogue(b)
            self.pre_slab(b, 'w2')
            self.set_wr(b, R2)
            stamp(b, 16)
            self.w3_items(b)
            self.s3flag = (OPT.get('s3st') == 2)
            self.main_loop(b, orient, pop_every=1)
            self.s3flag = False
        stamp(b, 17)
        b.flush()
        b('s_barrier')
        self.stats_issue(b)
        b.period = 12
        if role == 'A':
            self.k_epilogue(b)
        else:
            self.set_out_addr(b, 'q', [f's_sub_u32 {s(S_T4)}, {s(S_CG)}, 8'])
            self.t_epilogue(b, 'phi', V_ACC1)
        stamp(b, 18)
        if OPT.get('aearly', 0):
            b.period = 7
            self.z2_norm(b, after_check=lambda: self.mid_a(b))
        else:
            self.z2_norm(b)
            self.mid_a(b)
        if OPT.get('aplan', 1) != 2:
            b.add(a_chunk_items(2, 'f2'))
        self.mid_b(b)
        self.pre_slab(b, 'w3')
        self.set_wr(b, R0)
        stamp(b, 20)
        hooks = self.slab3_hooks({OPT.get('kz', 12): lambda bb, y: self.flag_store(bb, WS_FZ2, 'z2n')})
        self.s3flag = (OPT.get('s3st') == 3)
        self.main_loop(b, orient, hooks)
        self.s3flag = False
        stamp(b, 21)
        b.period = 8
        late = OPT.get('s1late', 1)
        early = OPT.get('early', 0)
        if early:
            late = 0
        if not late:
            s1_issue(self, b)
        self.pre_epi3(b)
        if role == 'A':
            self.v_epilogue(b)
            if late == 1:
                s1_issue(self, b)
            if early:
                early_prime(self, b)
            self.kv_finish(b)
        else:
            self.set_out_addr(b, 'z1', [f's_sub_u32 {s(S_T4)}, {s(S_CG)}, 8'])
            mid = (lambda: early_prime(self, b)) if early else ((lambda: s1_issue(self, b)) if late == 1 else None)
            self.t_epilogue(b, 'gelu', V_ACC1, mid=mid, midg=2)
        stamp(b, 23)
        self.a_tail(b)
        b('s_branch L_p1_done')
        return b.b

    def p3_slab2_hooks(self):
        h = {}

        def add(K, fn):
            h.setdefault(K, []).append(fn)
        add(0, lambda b, y: (b.add(a_chunk_items(1, 'g1')), b.add(a_chunk_items(2, 'g2'))))
        k0, k1, k2 = OPT.get('m0', 12), OPT.get('m1', 26), OPT.get('m2', 99)
        add(k0, lambda b, y: self.mv_chunk(b, 0, 'f0'))
        add(k0 + 1, lambda b, y: (b(f's_waitcnt lgkmcnt({y})'), b.add(a_chunk_items(3, 'f0'))))
        if k1 < 32:
            add(k1, lambda b, y: self.mv_chunk(b, 1, 'g1'))
        if k2 < 32:
            add(k2, lambda b, y: self.mv_chunk(b, 2, 'g2'))
        return h

    def p3_late_moves(self, b):
        if OPT.get('m1', 26) >= 32:
            self.mv_chunk(b, 1, 'g1')
        if OPT.get('m2', 99) >= 32:
            self.mv_chunk(b, 2, 'g2')

    def p3_slab3_hooks(self, extra=None):
        h = {}

        def add(K, fn):
            h.setdefault(K, []).append(fn)
        add(14, lambda b, y: self.mv_chunk(b, 4, 'f0'))
        add(15, lambda b, y: (b(f's_waitcnt lgkmcnt({y})'), b.add(a_chunk_items(7, 'f0'))))
        add(22, lambda b, y: self.mv_chunk(b, 5, 'g1'))
        add(30, lambda b, y: self.mv_chunk(b, 6, 'g2'))
        for K, fn in (extra or {}).items():
            add(K, fn)
        return h

    def p3_mid(self, b):
        self.mv_chunk(b, 3, 'f0')
        b.wait_lds()
        b.add(a_chunk_items(4, 'f0'))
        b.add(a_chunk_items(5, 'g1'))
        b.add(a_chunk_items(6, 'g2'))

    def p3_tail(self, b):
        b.flush()
        self.flag_store(b, WS_FP1, 'p1')
        self.mv_chunk(b, 7, 'f0')
        b.wait_lds()

    def role3(self, role):
        b = St(self, 'ROLE' + role)
        b.label('L_role' + role)
        z2 = role in 'AB'
        orient = 'N' if role == 'A' else 'T'
        b.add(self.post_l1(b, role))
        if z2:
            b.period = 14
            self.z2_epilogue(b)
        else:
            b.period = 8
            self.set_out_addr(b, 'q', [f's_sub_u32 {s(S_T4)}, {s(S_CG)}, 8'])
            self.t_epilogue(b, 'phi', V_ACC0)
        self.pre_slab(b, 'w2')
        self.set_wr(b, R2)
        b.flush()
        stamp(b, 16)
        self.main_loop(b, orient, self.p3_slab2_hooks())
        stamp(b, 17)
        b.flush()
        b('s_barrier')
        if z2:
            self.stats_issue(b)
        if role != 'D':
            self.w3_items(b, R2)
        else:
            srd(b, SRD_T, P_GW, 1024)
            b(f's_lshl_b32 {s(S_T0)}, {s(S_W)}, 10')
            b(f's_add_u32 m0, {s(S_T0)}, {R2}')
            b(f's_lshl_b32 {s(S_T0)}, {s(S_ROT)}, 7')
            b(f'v_add_u32 {v(V_T0)}, {s(S_T0)}, {v(V_L16)}')
            b(f'v_and_b32 {v(V_T0)}, 1023, {v(V_T0)}')
            b(f'buffer_load_dwordx4 {v(V_T0)}, {s(SRD_T, 4)}, 0 offen lds', tag='gw')
        b.period = OPT.get('p3p', 12)
        if role == 'A':
            self.k_epilogue(b)
        elif role == 'B':
            self.set_out_addr(b, 'q', [f's_sub_u32 {s(S_T4)}, {s(S_CG)}, 8'])
            self.t_epilogue(b, 'phi', V_ACC1)
        elif role == 'C':
            self.set_out_addr(b, 'z1', [f's_lshl_b32 {s(S_T4)}, {s(S_CG)}, 1', f's_sub_u32 {s(S_T4)}, {s(S_T4)}, 19'])
            self.t_epilogue(b, 'gelu', V_ACC1)
        else:
            self.set_out_addr(b, 'z1', [f's_sub_u32 {s(S_T4)}, {s(S_CG)}, 5'])
            self.t_epilogue(b, 'gelu', V_ACC1)
        stamp(b, 18)
        self.p3_late_moves(b)
        if z2:
            self.z2_norm(b)
        self.p3_mid(b)
        if role != 'D':
            self.pre_slab(b, 'w3')
            stamp(b, 20)
            extra = {OPT.get('kz', 12): lambda bb, y: self.flag_store(bb, WS_FZ2, 'z2n')} if z2 else None
            self.main_loop(b, orient, self.p3_slab3_hooks(extra))
            stamp(b, 21)
            b.period = 8
            if role == 'A':
                self.v_epilogue(b)
                s1_issue(self, b)
                self.kv_finish(b, R2)
            elif role == 'B':
                self.set_out_addr(b, 'z1', [f's_sub_u32 {s(S_T4)}, {s(S_CG)}, 8'])
                self.t_epilogue(b, 'gelu', V_ACC1, mid=lambda: s1_issue(self, b), midg=2)
            else:
                self.set_out_addr(b, 'z1', [f's_lshl_b32 {s(S_T4)}, {s(S_CG)}, 1', f's_sub_u32 {s(S_T4)}, {s(S_T4)}, 18'])
                self.t_epilogue(b, 'gelu', V_ACC1, mid=lambda: s1_issue(self, b), midg=2)
        else:
            self.g_pass(b, R2, self.p3_slab3_hooks())
            s1_issue(self, b)
        stamp(b, 23)
        self.p3_tail(b)
        b('s_branch L_p1_done')
        return b.b

    def role_CD(self, role):
        b = St(self, 'ROLE' + role)
        b.label('L_role' + role)
        ilv = OPT.get('ilv', 0)

        def gate_dma():
            srd(b, SRD_T, P_GW, 1024)
            b(f's_lshl_b32 {s(S_T0)}, {s(S_W)}, 10')
            b(f's_add_u32 m0, {s(S_T0)}, {R0}')
            b(f's_lshl_b32 {s(S_T0)}, {s(S_ROT)}, 7')
            b(f'v_add_u32 {v(V_T0)}, {s(S_T0)}, {v(V_L16)}')
            b(f'v_and_b32 {v(V_T0)}, 1023, {v(V_T0)}')
            b(f'buffer_load_dwordx4 {v(V_T0)}, {s(SRD_T, 4)}, 0 offen lds', tag='gw')
        if ilv:
            if role == 'D':
                gate_dma()
            b.add(self.post_l1(b, role))
            rec = Rec()
            NOPK[0] = True
            self.set_out_addr(rec, 'q', [f's_sub_u32 {s(S_T4)}, {s(S_CG)}, 8'])
            self.t_epilogue(rec, 'phi', V_ACC0)
            NOPK[0] = False
            self.slab2_ilv(b, 'T', rec, role == 'C')
        else:
            b.add(self.post_l1(b, role))
            b.period = 8
            self.set_out_addr(b, 'q', [f's_sub_u32 {s(S_T4)}, {s(S_CG)}, 8'])
            self.t_epilogue(b, 'phi', V_ACC0)
            self.pre_slab(b, 'w2')
            self.set_wr(b, R2)
            if role == 'C':
                self.w3_items(b)
            else:
                b.flush()
                gate_dma()
                if OPT.get('c0early', 1) == 2:
                    b.add(a_chunk_items(0, 'f0'))
            self.main_loop(b, 'T', pop_every=1)
        b.flush()
        b('s_barrier')
        self.mid_a(b)
        if OPT.get('aplan', 1) != 2:
            b.add(a_chunk_items(2, 'f2'))
        b.period = 12
        if role == 'C':
            acc3 = V_ACC1
            if ilv and OPT.get('ilvc', 1):
                rec = Rec()
                NOPK[0] = True
                self.set_out_addr(rec, 'z1', [f's_lshl_b32 {s(S_T4)}, {s(S_CG)}, 1', f's_sub_u32 {s(S_T4)}, {s(S_T4)}, 19'])
                self.t_epilogue(rec, 'gelu', V_ACC1)
                NOPK[0] = False
                self.pre_slab(b, 'w3')
                self.set_wr(b, R0)
                acc3 = V_ACC0
                self.main_loop(b, 'T', self.slab3_hooks(), co=rec, acc0=V_ACC0)
            else:
                self.set_out_addr(b, 'z1', [f's_lshl_b32 {s(S_T4)}, {s(S_CG)}, 1', f's_sub_u32 {s(S_T4)}, {s(S_T4)}, 19'])
                self.t_epilogue(b, 'gelu', V_ACC1)
                self.mid_b(b)
                self.pre_slab(b, 'w3')
                self.set_wr(b, R0)
                self.main_loop(b, 'T', self.slab3_hooks())
            b.period = 8
            late = OPT.get('s1late', 1)
            early = OPT.get('early', 0)
            if early:
                late = 0
            if not late:
                s1_issue(self, b)
            self.pre_epi3(b)
            self.set_out_addr(b, 'z1', [f's_lshl_b32 {s(S_T4)}, {s(S_CG)}, 1', f's_sub_u32 {s(S_T4)}, {s(S_T4)}, 18'])
            mid = (lambda: early_prime(self, b)) if early else ((lambda: s1_issue(self, b)) if late == 1 else None)
            self.t_epilogue(b, 'gelu', acc3, mid=mid, midg=2)
        else:
            self.set_out_addr(b, 'z1', [f's_sub_u32 {s(S_T4)}, {s(S_CG)}, 5'])
            self.t_epilogue(b, 'gelu', V_ACC1)
            self.mid_b(b)
            self.g_pass(b)
            if OPT.get('s1late', 1) != 2 or OPT.get('early', 0):
                s1_issue(self, b)
            self.pre_epi3(b)
            if OPT.get('early', 0):
                early_prime(self, b)
        self.a_tail(b)
        b('s_branch L_p1_done')
        return b.b

    def build(self):
        P = self.prologue()
        LL = self.slab1(True)
        LP = self.slab1(False) if not OPT.get('sym', 1) else None
        if OPT.get('aplan', 1) == 3:
            A, B, C, D = [self.role3(r) for r in 'ABCD']
        else:
            A = self.role_AB('A')
            B = self.role_AB('B')
            C = self.role_CD('C')
            D = self.role_CD('D')
        E1 = St(self, 'E1')
        E1.label('L_p1_done')
        stamp(E1, 4)
        dstamp(E1, 4)
        from phase23 import emit_phase23
        P2, PH, PL, P3b = emit_phase23(self)
        END = self.blk('END')
        END.label('L_END')
        END('s_endpgm')
        P3 = Block('PRO_w3')
        P3.ins = [i for i in P.ins if not i.meta.get('loader')]
        rests = [[P2, PH, P3b], [P2, PL, P3b]]
        paths = [[P, LL, R, E1.b] + rest + [END] for R in (A, B, C, D) for rest in rests]
        if LP is not None:
            paths += [[P3, LP, R, E1.b] + rest + [END] for R in (A, B, C, D) for rest in rests]
        finalize(self.blocks, paths)

    def text(self):
        out = []
        for b in self.blocks:
            out.append(f'; ---- {b.name}')
            out.append(render(b))
        return '\n'.join(out) + '\n' + '\n'.join(self.slow) + '\n'


HEADER = '''; Fused gated-mix kernel: linear attention + gMLP, single persistent launch (256 workgroups x 256 threads)
; @launch grid=(256,1,1) block=(256,1,1) lds=163840
.amdgcn_target "amdgcn-amd-amdhsa--gfx950"
.text
.globl {k}
.p2align 8
.type {k},@function
{k}:
'''
FOOTER = '''
L_code_end:
    s_endpgm
.section .rodata,"a"
.p2align 6
.amdhsa_kernel {k}
  .amdhsa_next_free_vgpr 512
  .amdhsa_next_free_sgpr 102
  .amdhsa_accum_offset 256
  .amdhsa_group_segment_fixed_size 0
  .amdhsa_kernarg_size 96
  .amdhsa_user_sgpr_count 2
  .amdhsa_user_sgpr_kernarg_segment_ptr 1
  .amdhsa_system_sgpr_workgroup_id_x 1
  .amdhsa_float_denorm_mode_32 3
.end_amdhsa_kernel
'''


def generate(**opt):
    OPT.update(opt)
    g = Gen()
    g.build()
    txt = g.text()
    if OPT.get('x_plainst'):
        txt = '\n'.join(l.replace(' sc1', '') if 'buffer_store' in l else l for l in txt.split('\n'))
    if OPT.get('x_noload'):
        m = OPT['x_noload']
        out = []
        for l in txt.split('\n'):
            t = l.strip()
            if t.startswith('buffer_load'):
                isA = 's[4:7]' in t
                isB = 'v[1' in t.split(',')[0] and 'sc1' in t and 'dwordx4' in t and ' lds' not in t
                isdma = t.endswith('lds')
                if (m & 1 and isA) or (m & 2 and isB) or (m & 4 and isdma and not isA) or (m & 8):
                    out.append('    s_nop 0')
                    continue
            if m & 16 and t.startswith('buffer_store') and 'v31' not in t:
                out.append('    s_nop 0')
                continue
            out.append(l)
        txt = '\n'.join(out)
    if OPT.get('x_nopolls'):
        txt = '\n'.join(('    s_nop 0' if (l.strip().startswith('s_cbranch_vccnz PS_') or l.strip().startswith('s_cbranch_vccnz ZS_')) else l) for l in txt.split('\n'))
    return HEADER.format(k=KNAME) + txt + FOOTER.format(k=KNAME)


if __name__ == '__main__':
    opt = {}
    for arg in sys.argv[2:]:
        k, val = arg.split('=')
        opt[k] = int(val) if val.lstrip('-').isdigit() else val
    import gen as _g
    txt = _g.generate(**opt)
    open(sys.argv[1], 'w').write(txt)
```

```python
from asmlib import *
import gen as G
from gen import (v, a, s, f2u, LOG2E, OOB, stamp, srd, tr_addr, St,
                 WS_FZ2, WS_FP1, WS_FY, WS_FKV, WS_GATE, WS_KVF, WS_KVP, WS_Z2N, WS_Z1F, WS_PQ, WS_Y, WS_SIZE, WS_EPOCH,
                 SRD_X, SRD_W, SRD_WS, SRD_T, SRD_U, S_W, S_WG, S_I, S_J, S_N, S_T0, S_T1, S_T2, S_T3, S_T4, S_T5, S_T6, S_T7,
                 S_ROT, S_RB, S_CG, S_Q0, S_Q1,
                 P_BSP, P_WO, P_WOUT, P_OUT, V_LANE, V_L16, V_L8, V_T0, V_POLL)

S_FB0, S_NBLK = 70, 71
S_BO = 72
S_PART = 73
S_U = 74
S_YO, S_ZO = 75, 76
S_WOB = 77
S_KVO = 78
S_BB = 80
S_KVD = 91
S_FBN = 88
SRD_KV = 44

V_PA = 8
V_PR = 14
V_XW = 16
V_XR = 20
V_BS = 21
V_G0 = 22
V_NG = 26
V_BNG = 27
V_KL = 32
ACC = [64, 96]
RING = 128
D = 12
V_GS = 176
V_X = 192
V_Z1 = 224
V_KS = 236
V_WO = 240
A_PQ, A_KV, A_Y = 0, 64, 96
KVSCR = 38912
PRIV = 40960
XOFF = 22528


def flag_addr(b, dst, n, tmp):
    b(f'v_and_b32 {v(tmp)}, 3, {v(n)}')
    b(f'v_lshrrev_b32 {v(n)}, 2, {v(n)}')
    b(f'v_lshlrev_b32 {v(n)}, 4, {v(n)}')
    b(f'v_add_lshl_u32 {v(dst)}, {v(n)}, {v(tmp)}, 2')


def s1_issue(g, b):
    t0, t1 = V_T0, V_T0 + 1
    with b.atomic():
        b(f's_mul_i32 {s(S_FB0)}, {s(S_J)}, 3')
        b(f's_min_u32 {s(S_FB0)}, {s(S_FB0)}, 20')
        b(f's_cmp_lt_u32 {s(S_J)}, 6')
        b(f's_cselect_b32 {s(S_NBLK)}, 3, 2')
        b(f's_add_u32 {s(S_T2)}, {s(S_FB0)}, {s(S_NBLK)}')
        b(f's_sub_u32 {s(S_T3)}, {s(S_T2)}, 1')
        if G.OPT.get('nbrot', 0):
            b(f's_lshr_b32 {s(S_T0)}, {s(S_WG)}, {6 if G.OPT.get("map", 0) else 5}')
            b(f's_mul_i32 {s(S_T1)}, {s(S_T0)}, 11')
            b(f's_lshr_b32 {s(S_T1)}, {s(S_T1)}, 5')
            b(f's_mul_i32 {s(S_T1)}, {s(S_T1)}, 3')
            b(f's_sub_u32 {s(S_T1)}, {s(S_T0)}, {s(S_T1)}')
            b(f's_and_b32 {s(S_T0)}, {s(S_T0)}, 1')
            b(f's_cmp_eq_u32 {s(S_NBLK)}, 3')
            b(f's_cselect_b32 {s(S_T0)}, {s(S_T1)}, {s(S_T0)}')
        else:
            b(f's_mov_b32 {s(S_T0)}, 0')
        for nb in range(3):
            b(f's_add_u32 {s(S_FBN + nb)}, {s(S_FB0)}, {s(S_T0)}')
            if nb:
                b(f's_add_u32 {s(S_FBN + nb)}, {s(S_FBN + nb)}, {nb}')
            b(f's_cmp_ge_u32 {s(S_FBN + nb)}, {s(S_T2)}')
            b(f's_cselect_b32 {s(S_T1)}, {s(S_NBLK)}, 0')
            b(f's_sub_u32 {s(S_FBN + nb)}, {s(S_FBN + nb)}, {s(S_T1)}')
        b(f's_lshr_b32 {s(S_T0)}, {s(S_FB0)}, 1')
        b(f's_lshr_b32 {s(S_T1)}, {s(S_T3)}, 1')
        b(f's_sub_u32 {s(S_T1)}, {s(S_T1)}, {s(S_T0)}')
        b(f'v_bfe_u32 {v(t0)}, {v(V_LANE)}, 3, 2')
        b(f'v_bfe_u32 {v(t1)}, {v(V_LANE)}, 2, 1')
        b(f'v_mul_u32_u24 {v(t1)}, {s(S_T1)}, {v(t1)}')
        b(f'v_lshl_add_u32 {v(t0)}, {v(t0)}, 4, {v(t1)}')
        b(f's_lshl_b32 {s(S_T2)}, {s(S_W)}, 6')
        b(f's_add_u32 {s(S_T2)}, {s(S_T2)}, {s(S_T0)}')
        b(f'v_add_u32 {v(t0)}, {s(S_T2)}, {v(t0)}')
        b(f'v_and_b32 {v(t1)}, 3, {v(V_LANE)}')
        b(f'v_lshl_add_u32 {v(t0)}, {v(t0)}, 2, {v(t1)}')
        flag_addr(b, V_PA, t0, t1)
        b(f's_mov_b32 {s(S_T7)}, {WS_FZ2}')
        b(f'buffer_load_dword {v(V_PR)}, {v(V_PA)}, {s(SRD_WS, 4)}, {s(S_T7)} offen sc1')


def bload(b, gi):
    nb, n = gi >> 5, gi & 31
    if n % 4 == 0:
        b(f's_add_u32 {s(S_BO)}, {s(G.S_ROT2)}, {n // 4}')
        b(f's_and_b32 {s(S_BO)}, {s(S_BO)}, 7')
        b(f's_lshl_b32 {s(S_BO)}, {s(S_BO)}, 12')
        b(f's_add_u32 {s(S_BO)}, {s(S_BO)}, {s(S_BB)}')
        b(f's_lshl_b32 {s(S_Q1)}, {s(S_FBN + nb)}, 17')
        b(f's_add_u32 {s(S_BO)}, {s(S_BO)}, {s(S_Q1)}')
    b(f'buffer_load_dwordx4 {v(RING + 4 * (gi % D), 4)}, {v(V_L16)}, {s(SRD_WS, 4)}, {s(S_BO)} offen offset:{1024 * (n & 3)} sc1')


NPRIME = 8


def early_prime(g, b):
    b.flush() if G.OPT.get('epf', 0) else None
    with b.atomic():
        b(f's_mov_b32 {s(S_T7)}, {WS_FZ2}')
        g.poll(b, V_PA, s(S_T7), V_PR, first_issued=True, mark=11)
        b(f's_lshl_b32 {s(S_T0)}, {s(S_W)}, 15')
        b(f's_add_u32 {s(S_BB)}, {s(S_T0)}, {WS_Z2N}')
        for gi in range(NPRIME):
            bload(b, gi)


def emit_phase23(g):
    t0, t1, t2 = V_T0, V_T0 + 1, V_T0 + 2
    b = St(g, 'P2')
    early = G.OPT.get('early', 0)
    if not early:
        b(f's_mov_b32 {s(S_T7)}, {WS_FZ2}')
        if not G.OPT.get('x_nos1'):
            g.poll(b, V_PA, s(S_T7), V_PR, first_issued=True, mark=11)
        b(f's_lshl_b32 {s(S_T0)}, {s(S_W)}, 15')
        b(f's_add_u32 {s(S_BB)}, {s(S_T0)}, {WS_Z2N}')
    stamp(b, 5)

    if G.OPT.get('aplan', 1) == 2:
        g.mv_chunk(b, 0, 'f0')
        b.wait_lds()
        b.add(G.a_chunk_items(3, 'f0'))
    for gi in range(NPRIME if early else 0, D):
        bload(b, gi)
        if gi % 2 == 1:
            b.pop(2)
    b.flush()
    b(f'v_lshlrev_b32 {v(V_BS)}, 16, {v(G.V_BSP)}')
    b(f's_lshr_b32 {s(S_T0)}, {s(S_I)}, 1')
    b(f's_lshl_b32 {s(S_T0)}, {s(S_T0)}, 6')
    b(f'v_add_u32 {v(t0)}, {s(S_T0)}, {v(V_LANE)}')
    flag_addr(b, V_PA + 1, t0, t1)
    b(f's_lshl_b32 {s(S_T0)}, {s(S_W)}, 11')
    b(f'v_add_u32 {v(t0)}, {s(S_T0)}, {v(V_L16)}')
    for d in range(4):
        b(f'v_add_u32 {v(V_XW + d)}, {PRIV * d + XOFF}, {v(t0)}')
    b(f's_mul_i32 {s(S_T0)}, {s(S_W)}, {PRIV}')
    b(f's_add_u32 {s(S_T0)}, {s(S_T0)}, {XOFF}')
    b(f'v_add_u32 {v(V_XR)}, {s(S_T0)}, {v(V_L16)}')
    b(f'v_and_b32 {v(t0)}, 31, {v(V_LANE)}')
    b(f'v_lshlrev_b32 {v(V_PA + 5)}, 2, {v(t0)}')
    b(f's_and_b32 {s(S_T0)}, {s(S_W)}, 1')
    b(f's_lshl1_add_u32 {s(S_T0)}, {s(S_I)}, {s(S_T0)}')
    b(f's_mul_i32 {s(S_T0)}, {s(S_T0)}, 45056')
    b(f's_lshr_b32 {s(S_T1)}, {s(S_W)}, 1')
    b(f's_lshl_b32 {s(S_T1)}, {s(S_T1)}, 10')
    b(f's_add_u32 {s(S_T0)}, {s(S_T0)}, {s(S_T1)}')
    b(f's_add_u32 {s(S_ZO)}, {s(S_T0)}, {WS_Z1F}')
    b(f's_add_u32 {s(S_YO)}, {s(S_T0)}, {WS_Y}')
    b(f's_cmp_ge_u32 {s(S_J)}, 6')
    b('s_cbranch_scc1 L_P2L')
    P2 = b.b

    def xw(nb, k):
        d, q = k >> 1, k & 1
        r = ACC[nb & 1] + 16 * (d & 1) + 8 * (d >> 1)
        return f'ds_write_b128 {v(V_XW + d)}, {v(r + 4 * q, 4)} offset:{8192 * (nb & 1) + 1024 * q}'

    def xr(nb, k):
        src, q = k >> 1, k & 1
        return f'ds_read_b128 {v(V_X + 8 * src + 4 * q, 4)}, {v(V_XR)} offset:{8192 * (nb & 1) + 2048 * src + 1024 * q}'

    def xsum(dst, pk=False):
        o = []
        if pk:
            for k in range(0, 8, 2):
                o.append(f'v_pk_add_f32 {v(V_X + k, 2)}, {v(V_X + k, 2)}, {v(V_X + 8 + k, 2)}')
            for k in range(0, 8, 2):
                o.append(f'v_pk_add_f32 {v(V_X + 16 + k, 2)}, {v(V_X + 16 + k, 2)}, {v(V_X + 24 + k, 2)}')
            for k in range(0, 8, 2):
                o.append(f'v_pk_add_f32 {v(dst + k, 2)}, {v(V_X + k, 2)}, {v(V_X + 16 + k, 2)}')
            return o
        for k in range(8):
            o.append(f'v_add_f32 {v(V_X + k)}, {v(V_X + k)}, {v(V_X + 8 + k)}')
        for k in range(8):
            o.append(f'v_add_f32 {v(V_X + 16 + k)}, {v(V_X + 16 + k)}, {v(V_X + 24 + k)}')
        for k in range(8):
            o.append(f'v_add_f32 {v(dst + k)}, {v(V_X + k)}, {v(V_X + 16 + k)}')
        return o

    def ymath(nb, gs):
        o = []
        z = V_Z1 + 4 * nb
        tmp = RING
        pk = G.OPT.get('pk', 1)
        if pk:
            for k in range(0, 8, 2):
                o.append(f'v_pk_fma_f32 {v(gs + k, 2)}, {v(gs + k, 2)}, {v(RING + 8, 2)}, {v(RING + 10, 2)}')
        else:
            for k in range(8):
                o.append(f'v_fma_f32 {v(gs + k)}, {v(gs + k)}, {v(V_NG)}, {v(V_BNG)}')
        for k in range(4):
            o.append(f'v_lshlrev_b32 {v(tmp + 2 * k)}, 16, {v(z + k)}')
            o.append(f'v_and_b32 {v(tmp + 2 * k + 1)}, 0xffff0000, {v(z + k)}')
        if pk:
            for k in range(0, 8, 2):
                o.append(f'v_pk_mul_f32 {v(gs + k, 2)}, {v(gs + k, 2)}, {v(tmp + k, 2)}')
        else:
            for k in range(8):
                o.append(f'v_mul_f32 {v(gs + k)}, {v(gs + k)}, {v(tmp + k)}')
        for k in range(4):
            o.append(f'v_cvt_pk_bf16_f32 {v(z + k)}, {v(gs + 2 * k)}, {v(gs + 2 * k + 1)}')
        return o

    def ystore(b, nb):
        b(f's_lshl_b32 {s(S_T0)}, {s(S_FBN + nb)}, 11')
        b(f's_add_u32 {s(S_T0)}, {s(S_T0)}, {s(S_YO)}')
        b(f'buffer_store_dwordx4 {v(V_Z1 + 4 * nb, 4)}, {v(V_L16)}, {s(SRD_WS, 4)}, {s(S_T0)} offen sc1', tag='y')

    def tail_loads(nblk):
        it = []
        for z in range(nblk):
            it.append([f's_lshl_b32 {s(S_T0)}, {s(S_FBN + z)}, 11',
                       f's_add_u32 {s(S_T0)}, {s(S_T0)}, {s(S_ZO)}',
                       f'buffer_load_dwordx4 {v(V_Z1 + 4 * z, 4)}, {v(V_L16)}, {s(SRD_WS, 4)}, {s(S_T0)} offen sc1'])
        it.append([f's_lshl_b32 {s(S_T0)}, {s(S_I)}, 8',
                   f's_add_u32 {s(S_T0)}, {s(S_T0)}, {WS_GATE}',
                   f'buffer_load_dword {v(V_G0)}, {v(V_PA + 5)}, {s(SRD_WS, 4)}, {s(S_T0)} offen sc1',
                   f'buffer_load_dword {v(V_G0 + 1)}, {v(V_PA + 5)}, {s(SRD_WS, 4)}, {s(S_T0)} offen offset:128 sc1'])
        for hd in range(8):
            for tb in range(2):
                l = []
                if hd % 4 == 0:
                    l = [f's_lshl1_add_u32 {s(S_Q0 + tb)}, {s(S_I)}, {tb}',
                         f's_lshl_b32 {s(S_Q0 + tb)}, {s(S_Q0 + tb)}, 15',
                         f's_lshl_b32 {s(S_T1)}, {s(S_W)}, 13',
                         f's_add_u32 {s(S_Q0 + tb)}, {s(S_Q0 + tb)}, {s(S_T1)}',
                         f's_add_u32 {s(S_Q0 + tb)}, {s(S_Q0 + tb)}, {WS_PQ + 1024 * hd}']
                l.append(f'buffer_load_dwordx4 {a(A_PQ + 4 * (2 * hd + tb), 4)}, {v(V_L16)}, {s(SRD_WS, 4)}, {s(S_Q0 + tb)} offen offset:{1024 * (hd & 3)} sc1')
                it.append(l)
        return it

    def gate_setup():
        return [[f's_and_b32 {s(S_T0)}, {s(S_W)}, 1',
                 f's_cmp_eq_u32 {s(S_T0)}, 0',
                 f's_cselect_b64 vcc, -1, 0',
                 f'v_cndmask_b32 {v(V_NG)}, {v(V_G0 + 1)}, {v(V_G0)}, vcc'],
                f'v_sub_f32 {v(V_NG)}, 1.0, {v(V_NG)}',
                f'v_mul_f32 {v(V_BNG)}, {v(V_BS)}, {v(V_NG)}',
                f'v_mov_b32 {v(RING + 8)}, {v(V_NG)}', f'v_mov_b32 {v(RING + 9)}, {v(V_NG)}',
                f'v_mov_b32 {v(RING + 10)}, {v(V_BNG)}', f'v_mov_b32 {v(RING + 11)}, {v(V_BNG)}']

    def emit1(b, x):
        if isinstance(x, list):
            for y in x:
                emit1(b, y)
        elif isinstance(x, tuple):
            b(x[1], tag=x[0])
        else:
            b(x)

    def main_stream(light):
        b = St(g, 'P2L' if light else 'P2H')
        nblk = 2 if light else 3
        NG = 32 * nblk
        if light:
            b.label('L_P2L')
            b(f's_lshl_b32 {s(S_U)}, {s(S_I)}, 1')
            b(f's_and_b32 {s(S_T0)}, {s(S_J)}, 1')
            b(f's_add_u32 {s(S_U)}, {s(S_U)}, {s(S_T0)}')
            b(f's_lshr_b32 {s(S_T0)}, {s(S_U)}, 3')
            b(f'v_lshrrev_b32 {v(t0)}, 2, {v(V_LANE)}')
            b(f'v_lshlrev_b32 {v(t0)}, 4, {v(t0)}')
            b(f'v_add_u32 {v(t0)}, {s(S_T0)}, {v(t0)}')
            b(f'v_and_b32 {v(t1)}, 3, {v(V_LANE)}')
            b(f'v_lshl_add_u32 {v(t0)}, {v(t0)}, 2, {v(t1)}')
            flag_addr(b, V_PA + 2, t0, t1)
            b(f's_mov_b32 {s(SRD_KV)}, {s(SRD_WS)}')
            b(f's_mov_b32 {s(SRD_KV + 1)}, {s(SRD_WS + 1)}')
            b(f's_cmp_lt_u32 {s(S_W)}, 2')
            b(f's_cselect_b32 {s(SRD_KV + 2)}, {hex(WS_SIZE - (G.OPT.get('wsoff', 0) << 20))}, 0')
            b(f's_mov_b32 {s(SRD_KV + 3)}, 0x20000')
            b(f's_lshl_b32 {s(S_KVO)}, {s(S_U)}, 14')
            b(f's_and_b32 {s(S_T0)}, {s(S_W)}, 1')
            b(f's_lshl_b32 {s(S_T0)}, {s(S_T0)}, 13')
            b(f's_add_u32 {s(S_KVO)}, {s(S_KVO)}, {s(S_T0)}')
            b(f's_add_u32 {s(S_KVO)}, {s(S_KVO)}, {WS_KVP}')
        fill = []
        items = []

        def drain(n):
            k = 0
            while fill and k < n:
                x = fill.pop(0)
                emit1(b, x)
                k += len(x) if isinstance(x, list) else 1

        if G.OPT.get('kvf2', 1):
            o = G.OPT.get('kvo', 1)
            KV_ISSUE, KV_CHECK, KV_SUM, KV_WR, KV_RD, KV_FLAG, KV_OWNBAR = [(10, 22, 38, 43, 45, 61, False), (4, 14, 30, 35, 35, 52, True), (10, 22, 38, 43, 45, 56, False), (14, 26, 40, 43, 45, 61, False)][o]
        else:
            KV_ISSUE, KV_CHECK, KV_SUM, KV_WR, KV_RD, KV_FLAG, KV_OWNBAR = 20, 34, 52, 58, 58, 999, True

        KLQ = [176, 180, 184, 188, 240, 244, 248, 252] if G.OPT.get('kvf2', 1) else [V_KL + 4 * r for r in range(8)]

        def kv_flag(b):
            b.wait_vm('kvf')
            b(f's_lshl_b32 {s(S_T0)}, {s(S_U)}, 4')
            b(f's_add_u32 {s(S_T0)}, {s(S_T0)}, {WS_FKV}')
            b(f'v_mov_b32 {v(V_POLL)}, {s(S_N)}')
            b(f'buffer_store_dword {v(V_POLL)}, off, {s(SRD_KV, 4)}, {s(S_T0)} sc1', tag='flag')
        n0 = b.mark()
        GP = NG - 36
        GT = NG - D
        for gi in range(NG):
            nb, n = gi >> 5, gi & 31
            acc = ACC[nb & 1]
            for tb in range(2):
                c = '0' if n == 0 else v(acc + 16 * tb, 16)
                b(f'v_mfma_f32_32x32x16_bf16 {v(acc + 16 * tb, 16)}, {v(RING + 4 * (gi % D), 4)}, {a(8 * n + 4 * tb, 4)}, {c}')
            if gi + D < NG:
                bload(b, gi + D)
            if G.OPT.get('aplan', 1) == 2:
                mv = {1: 1, 2: 5, 3: 9, 4: 13, 5: 17, 6: 21, 7: 25}
                for c, st in mv.items():
                    if gi == st:
                        g.mv_chunk(b, c, f'f{c % 3}')
                    if gi == st + 1 and c + 3 < 8:
                        b.wait_lds()
                        b.add(G.a_chunk_items(c + 3, f'f{c % 3}'))
            elif G.OPT.get('aplan', 1) == 1:
                if gi == 4:
                    g.mv_chunk(b, 3, 'f0')
                if gi == 5:
                    b.wait_lds()
                    b.add(G.a_chunk_items(6, 'f0'))
                if gi == 10:
                    g.mv_chunk(b, 4, 'f1')
                if gi == 11:
                    b.wait_lds()
                    b.add(G.a_chunk_items(7, 'f1'))
                if gi == 16:
                    g.mv_chunk(b, 5, 'f2')
                if gi == 22:
                    g.mv_chunk(b, 6, 'f0')
                if gi == 26:
                    g.mv_chunk(b, 7, 'f1')
            if gi == NG - G.OPT.get('kvg', 6) and G.OPT.get('kvearly', 0):
                b(f'v_and_b32 {v(t0)}, 15, {v(V_LANE)}')
                b(f's_lshl_b32 {s(S_T0)}, {s(S_W)}, 4')
                b(f'v_add_u32 {v(t0)}, {s(S_T0)}, {v(t0)}')
                b(f'v_lshlrev_b32 {v(V_PA + 3)}, 4, {v(t0)}')
                b(f's_mov_b32 {s(S_T7)}, {WS_FKV}')
                b(f'buffer_load_dword {v(V_PR + 1)}, {v(V_PA + 3)}, {s(SRD_WS, 4)}, {s(S_T7)} offen sc1')
            if gi == 14 and early:
                g.flag_store(b, WS_FP1, 'p1')
            if gi == 31:
                b.wait_lds()
                b('s_barrier')
            if b.q:
                b.pop(2)
            if gi == GP:
                b(f's_mov_b32 {s(S_T7)}, {WS_FP1}')
                b(f'buffer_load_dword {v(V_PR)}, {v(V_PA + 1)}, {s(SRD_WS, 4)}, {s(S_T7)} offen sc1')
            if light and gi == KV_ISSUE:
                b(f's_mov_b32 {s(S_T7)}, {WS_FP1}')
                b(f'buffer_load_dword {v(V_PR + 1)}, {v(V_PA + 2)}, {s(SRD_WS, 4)}, {s(S_T7)} offen sc1')
            if light and gi == KV_CHECK:
                b(f's_mov_b32 {s(S_T7)}, {WS_FP1}')
                g.poll(b, V_PA + 2, s(S_T7), V_PR + 1, first_issued=True, mark=13)
                for r in range(8):
                    l = []
                    if r % 4 == 0:
                        l = [f's_add_u32 {s(S_Q0)}, {s(S_KVO)}, {1024 * r}']
                    l.append(f'buffer_load_dwordx4 {v(KLQ[r], 4)}, {v(V_L16)}, {s(SRD_KV, 4)}, {s(S_Q0)} offen offset:{1024 * (r & 3)} sc1')
                    items.append(l)
            if nb > 0:
                if 2 <= n < 10:
                    b(xw(nb - 1, n - 2))
                if n == 12:
                    b.wait_lds()
                    b('s_barrier')
                if 12 <= n < 20:
                    b(xr(nb - 1, n - 12))
                if n == 21:
                    fill.extend(xsum(V_GS + 8 * (nb - 1)))
            if gi == GT:
                drain(len(fill))
                b(f's_mov_b32 {s(S_T7)}, {WS_FP1}')
                g.poll(b, V_PA + 1, s(S_T7), V_PR, first_issued=True, mark=15)
                items.extend(tail_loads(nblk))
            if light and gi == KV_SUM:
                for r in range(0, 8, 2):
                    for k in range(4):
                        fill.append(f'v_add_f32 {v(KLQ[r] + k)}, {v(KLQ[r] + k)}, {v(KLQ[r + 1] + k)}')
                for k in range(4):
                    fill.append(f'v_add_f32 {v(KLQ[0] + k)}, {v(KLQ[0] + k)}, {v(KLQ[2] + k)}')
                    fill.append(f'v_add_f32 {v(KLQ[4] + k)}, {v(KLQ[4] + k)}, {v(KLQ[6] + k)}')
                for k in range(4):
                    fill.append(f'v_add_f32 {v(V_KS + k)}, {v(KLQ[0] + k)}, {v(KLQ[4] + k)}')
            if light and gi == KV_WR:
                drain(len(fill))
                b(f's_mul_i32 {s(S_T0)}, {s(S_W)}, {PRIV}')
                b(f's_add_u32 {s(S_T0)}, {s(S_T0)}, {KVSCR}')
                b(f'v_add_u32 {v(t0)}, {s(S_T0)}, {v(V_L16)}')
                b(f'ds_write_b128 {v(t0)}, {v(V_KS, 4)}')
                if KV_OWNBAR:
                    b.wait_lds()
                    b('s_barrier')
            if light and gi == KV_RD:
                b(f'v_add_u32 {v(t0)}, {PRIV + KVSCR}, {v(V_L16)}')
                b(f'ds_read_b128 {v(KLQ[4], 4)}, {v(t0)}')
                for k in range(4):
                    b(f'v_add_f32 {v(V_KS + k)}, {v(V_KS + k)}, {v(KLQ[4] + k)}')
                b(f'v_cvt_pk_bf16_f32 {v(V_KS)}, {v(V_KS)}, {v(V_KS + 1)}')
                b(f'v_cvt_pk_bf16_f32 {v(V_KS + 1)}, {v(V_KS + 2)}, {v(V_KS + 3)}')
                b(f's_cmp_eq_u32 {s(S_W)}, 0')
                b(f's_cselect_b32 {s(SRD_KV + 2)}, {hex(ws_rec())}, 0')
                b(f's_lshr_b32 {s(S_T0)}, {s(S_U)}, 1')
                b(f's_lshl_b32 {s(S_T0)}, {s(S_T0)}, 10')
                b(f's_and_b32 {s(S_T1)}, {s(S_U)}, 1')
                b(f's_lshl_b32 {s(S_T1)}, {s(S_T1)}, 3')
                b(f's_add_u32 {s(S_T0)}, {s(S_T0)}, {s(S_T1)}')
                b(f's_add_u32 {s(S_T0)}, {s(S_T0)}, {WS_KVF}')
                b(f'buffer_store_dwordx2 {v(V_KS, 2)}, {v(V_L16)}, {s(SRD_KV, 4)}, {s(S_T0)} offen sc1', tag='kvf')
            if light and gi == KV_FLAG:
                kv_flag(b)
            for _ in range(2 if gi >= GT else 1):
                if items:
                    emit1(b, items.pop(0))
            drain(6)
            if gi in (7, 23, 31, 47, 63, 79):
                stamp(b, 24 + (7, 23, 31, 47, 63, 79).index(gi))
        while items:
            emit1(b, items.pop(0))
        drain(len(fill))
        b.weave_from(n0, G=5)
        stamp(b, 6)
        G.dstamp(b, 5)
        if light and KV_FLAG > NG:
            kv_flag(b)
        if G.OPT.get('kvearly', 0) == 2:
            skip = g.lab('KE')
            b(f'v_cmp_ne_u32 vcc, {s(S_N)}, {v(V_PR + 1)}')
            b(f's_mov_b32 {s(S_KVD)}, 0')
            b(f's_cbranch_vccnz {skip}')
            b(f's_lshl_b32 {s(S_T0)}, {s(S_W)}, 13')
            b(f's_add_u32 {s(S_T0)}, {s(S_T0)}, {WS_KVF}')
            for hd in range(8):
                if hd == 4:
                    b(f's_add_u32 {s(S_T0)}, {s(S_T0)}, 4096')
                b(f'buffer_load_dwordx4 {a(A_KV + 4 * hd, 4)}, {v(V_L16)}, {s(SRD_WS, 4)}, {s(S_T0)} offen offset:{1024 * (hd & 3)} sc1', nocount=True, nodst=True)
            b(f's_mov_b32 {s(S_KVD)}, 1')
            b.label(skip)
        last = nblk - 1
        for k in range(8):
            b(xw(last, k))
        for x in gate_setup():
            emit1(b, x)
        b.wait_lds()
        b('s_barrier')
        for k in range(8):
            b(xr(last, k))
        for nb in range(last):
            for x in ymath(nb, V_GS + 8 * nb):
                emit1(b, x)
            ystore(b, nb)
        for x in xsum(V_GS, G.OPT.get('pk', 1)) + ymath(last, V_GS):
            emit1(b, x)
        ystore(b, last)
        stamp(b, 7)
        if light:
            ep = g.lab('EP')
            b(f's_lshl_b32 {s(S_T0)}, {s(S_I)}, 5')
            b(f's_lshl2_add_u32 {s(S_T0)}, {s(S_J)}, {s(S_T0)}')
            b(f's_add_u32 {s(S_T0)}, {s(S_T0)}, {s(S_W)}')
            b(f's_cmp_lg_u32 {s(S_T0)}, {6 * 4 + 3}')
            b(f's_cbranch_scc1 {ep}_end')
            txt = [f'    v_and_b32 {v(t1)}, 3, {v(V_LANE)}', f'    v_lshrrev_b32 {v(t0)}, 2, {v(V_LANE)}',
                   f'    v_lshlrev_b32 {v(t0)}, 4, {v(t0)}', f'    v_add_lshl_u32 {v(t0)}, {v(t0)}, {v(t1)}, 2']
            for k in range(16):
                txt.append(f'    s_mov_b32 {s(S_T3)}, {WS_FP1 + 1024 * k}')
                txt.append(f'    buffer_load_dword {v(32 + k)}, {v(t0)}, {s(SRD_WS, 4)}, {s(S_T3)} offen sc1')
            txt = [f'    s_mov_b32 {s(G.S_CNT)}, {G.SPIN_MAX}', f'{ep}:'] + txt + ['    s_waitcnt vmcnt(0)']
            for k in range(16):
                txt.append(f'    v_xor_b32 {v(32 + k)}, {s(S_N)}, {v(32 + k)}')
            for k in range(1, 16, 2):
                hi = 32 + k + 1 if k + 1 < 16 else 32 + k
                txt.append(f'    v_or3_b32 {v(32)}, {v(32)}, {v(32 + k)}, {v(hi)}')
            txt += [f'    v_cmp_ne_u32 vcc, 0, {v(32)}', f'    s_cbranch_vccz {ep}_ok',
                    f'    s_sub_u32 {s(G.S_CNT)}, {s(G.S_CNT)}, 1', f'    s_cmp_lg_u32 {s(G.S_CNT)}, 0', f'    s_cbranch_scc1 {ep}',
                    f'{ep}_ok:', f'    v_mov_b32 {v(V_POLL)}, {s(S_N)}',
                    f'    buffer_store_dword {v(V_POLL)}, off, {s(SRD_WS, 4)}, 0 sc1', f'{ep}_end:']
            b.b.raw('\n'.join(txt))
        else:
            b('s_branch L_P3')
        return b.b

    PH = main_stream(False)
    PL = main_stream(True)

    b = St(g, 'P3')
    b.label('L_P3')
    ACC3 = 64
    T = [224, 240]
    b(f'v_bfe_u32 {v(t0)}, {v(V_LANE)}, 2, 1')
    b(f'v_bfe_u32 {v(t1)}, {v(V_LANE)}, 4, 1')
    b(f'v_xor_b32 {v(t0)}, {v(t0)}, {v(t1)}')
    b(f'v_and_b32 {v(t1)}, 3, {v(V_LANE)}')
    b(f'v_lshlrev_b32 {v(t1)}, 4, {v(t1)}')
    b(f'v_lshl_add_u32 {v(t0)}, {v(t0)}, 6, {v(t1)}')
    b(f'v_lshrrev_b32 {v(t1)}, 3, {v(V_LANE)}')
    b(f'v_lshl_add_u32 {v(t0)}, {v(t1)}, 10, {v(t0)}')
    b(f's_lshl_b32 {s(S_T0)}, {s(S_J)}, 7')
    VW = 28
    b(f'v_add_u32 {v(VW)}, {s(S_T0)}, {v(t0)}')
    b(f'v_add_u32 {v(VW + 1)}, 7168, {v(VW)}')
    b(f's_cmp_eq_u32 {s(S_W)}, 0')
    b(f's_cselect_b32 {s(S_T0)}, {hex(OOB)}, 0')
    b(f'v_add_u32 {v(32)}, {s(S_T0)}, {v(VW)}')
    b(f's_mul_i32 {s(S_WOB)}, {s(S_W)}, {176 * 1024}')
    b(f's_sub_u32 {s(S_WOB)}, {s(S_WOB)}, 16384')
    b(f's_mul_i32 {s(S_PART)}, {s(S_W)}, {PRIV}')
    srd(b, SRD_X, P_WO, 512 * 1024)
    srd(b, SRD_U, P_WOUT, 688 * 1024)

    def wo_items(hd):
        return [[f's_add_u32 m0, {s(S_PART)}, {XOFF + 2048 * hd}',
                 f's_lshl_b32 {s(S_Q0)}, {s(S_W)}, 17',
                 f's_add_u32 {s(S_Q0)}, {s(S_Q0)}, {16384 * hd}',
                 (f'wo{hd}', f'buffer_load_dwordx4 {v(VW)}, {s(SRD_X, 4)}, {s(S_Q0)} offen{G.NT(8)} lds')],
                [(f'wo{hd}', f'buffer_load_dwordx4 {v(VW + 1)}, {s(SRD_X, 4)}, {s(S_Q0)} offen offset:1024{G.NT(8)} lds')]]

    def wout_items():
        it = []
        for i in range(22):
            vo = 32 if i < 2 else VW
            it.append([f's_add_u32 m0, {s(S_PART)}, {1024 * i}',
                       f's_add_u32 {s(S_Q0)}, {s(S_WOB)}, {8192 * i}',
                       f's_max_i32 {s(S_Q0)}, {s(S_Q0)}, 0',
                       ('wout', f'buffer_load_dwordx4 {v(vo)}, {s(SRD_U, 4)}, {s(S_Q0)} offen{G.NT(8)} lds')])
        return it

    def kvf_loads():
        b(f's_lshl_b32 {s(S_T0)}, {s(S_W)}, 13')
        b(f's_add_u32 {s(S_T0)}, {s(S_T0)}, {WS_KVF}')
        for hd in range(8):
            if hd == 4:
                b(f's_add_u32 {s(S_T0)}, {s(S_T0)}, 4096')
            b(f'buffer_load_dwordx4 {a(A_KV + 4 * hd, 4)}, {v(V_L16)}, {s(SRD_WS, 4)}, {s(S_T0)} offen offset:{1024 * (hd & 3)} sc1')

    def y_flag():
        b.wait_vm('y')
        b(f's_lshl3_add_u32 {s(S_T0)}, {s(S_I)}, {s(S_J)}')
        b(f's_lshl4_add_u32 {s(S_T0)}, {s(S_T0)}, {s(S_W)}')
        b(f's_lshl_b32 {s(S_T0)}, {s(S_T0)}, 2')
        b(f's_add_u32 {s(S_T0)}, {s(S_T0)}, {WS_FY}')
        b(f'v_mov_b32 {v(V_POLL)}, {s(S_N)}')
        b(f'buffer_store_dword {v(V_POLL)}, off, {s(SRD_WS, 4)}, {s(S_T0)} sc1', tag='flag')

    V_TW = 26
    if G.OPT.get('kvearly', 0) == 2:
        for hd in range(4):
            b.add(wo_items(hd))
        b.flush()
        tr_addr(b, V_TW, True)
        b(f'v_add_u32 {v(V_TW)}, {s(S_PART)}, {v(V_TW)}')
        b(f'v_xor_b32 {v(V_TW + 1)}, 64, {v(V_TW)}')
        y_flag()
        stamp(b, 8)
        ok = g.lab('KO')
        b(f's_cmp_lg_u32 {s(S_KVD)}, 0')
        b(f's_cbranch_scc1 {ok}')
        txt = [f'    s_mov_b32 {s(S_T7)}, {WS_FKV}', f'    s_mov_b32 {s(G.S_CNT)}, {G.SPIN_MAX}', f'{ok}_l:',
               f'    buffer_load_dword {v(V_PR)}, {v(V_PA + 3)}, {s(SRD_WS, 4)}, {s(S_T7)} offen sc1',
               '    s_waitcnt vmcnt(0)',
               f'    v_cmp_ne_u32 vcc, {s(S_N)}, {v(V_PR)}',
               f'    s_cbranch_vccz {ok}_g',
               f'    s_sub_u32 {s(G.S_CNT)}, {s(G.S_CNT)}, 1',
               f'    s_cmp_lg_u32 {s(G.S_CNT)}, 0',
               f'    s_cbranch_scc1 {ok}_l',
               f'{ok}_g:',
               f'    s_lshl_b32 {s(S_T0)}, {s(S_W)}, 13',
               f'    s_add_u32 {s(S_T0)}, {s(S_T0)}, {WS_KVF}']
        for hd in range(8):
            if hd == 4:
                txt.append(f'    s_add_u32 {s(S_T0)}, {s(S_T0)}, 4096')
            txt.append(f'    buffer_load_dwordx4 {a(A_KV + 4 * hd, 4)}, {v(V_L16)}, {s(SRD_WS, 4)}, {s(S_T0)} offen offset:{1024 * (hd & 3)} sc1')
        txt.append('    s_waitcnt vmcnt(0)')
        b.b.raw('\n'.join(txt))
        b.label(ok)
        stamp(b, 14)
    elif G.OPT.get('kvearly', 0):
        b(f's_mov_b32 {s(S_T7)}, {WS_FKV}')
        g.poll(b, V_PA + 3, s(S_T7), V_PR + 1, first_issued=True, mark=19)
        stamp(b, 14)
        kvf_loads()
        for hd in range(4):
            b.add(wo_items(hd))
        b.flush()
        tr_addr(b, V_TW, True)
        b(f'v_add_u32 {v(V_TW)}, {s(S_PART)}, {v(V_TW)}')
        b(f'v_xor_b32 {v(V_TW + 1)}, 64, {v(V_TW)}')
        y_flag()
        stamp(b, 8)
    else:
        b(f'v_and_b32 {v(t0)}, 15, {v(V_LANE)}')
        b(f's_lshl_b32 {s(S_T0)}, {s(S_W)}, 4')
        b(f'v_add_u32 {v(t0)}, {s(S_T0)}, {v(t0)}')
        b(f'v_lshlrev_b32 {v(V_PA + 3)}, 4, {v(t0)}')
        b(f's_mov_b32 {s(S_T7)}, {WS_FKV}')
        b(f'buffer_load_dword {v(V_PR)}, {v(V_PA + 3)}, {s(SRD_WS, 4)}, {s(S_T7)} offen sc1')
        for hd in range(4):
            b.add(wo_items(hd))
        b.flush()
        tr_addr(b, V_TW, True)
        b(f'v_add_u32 {v(V_TW)}, {s(S_PART)}, {v(V_TW)}')
        b(f'v_xor_b32 {v(V_TW + 1)}, 64, {v(V_TW)}')
        y_flag()
        stamp(b, 8)
        g.poll(b, V_PA + 3, s(S_T7), V_PR, first_issued=True, mark=19)
        stamp(b, 14)
        kvf_loads()
    for hd in range(4, 8):
        b.add(wo_items(hd))
    b.add(wout_items())
    WFR = 48
    OF = [[8, 12], [16, 4]]
    eps = hex(f2u(1e-6))

    def num(hd):
        for tb in range(2):
            b(f'v_mfma_f32_32x32x16_bf16 {v(T[tb], 16)}, {a(A_KV + 4 * hd, 4)}, {a(A_PQ + 4 * (2 * hd + tb), 4)}, 0')

    def wread(hd):
        st = hd & 1
        b.ensure(f'wo{hd}')
        b.wait_vm(f'wo{hd}')
        for db in range(2):
            for t in range(2):
                b(f'ds_read_b64_tr_b16 {v(WFR + 8 * st + 4 * db + 2 * t, 2)}, {v(V_TW + db)} offset:{XOFF + 2048 * hd + 1024 * t}')

    def post(hd, tb):
        n0, dn = (T[tb], T[tb] + 8) if hd % 2 == 0 else (T[tb] + 8, T[tb])
        b(f'v_add_f32 {v(dn)}, {eps}, {v(dn)}')
        b(f'v_rcp_f32 {v(dn)}, {v(dn)}')
        b(f'v_mul_f32 {v(dn)}, {v(dn)}, {v(V_G0 + tb)}')
        for k in range(8):
            b(f'v_mul_f32 {v(n0 + k)}, {v(n0 + k)}, {v(dn)}')
        of = OF[hd & 1][tb]
        for k in range(4):
            b(f'v_cvt_pk_bf16_f32 {v(of + k)}, {v(n0 + 2 * k)}, {v(n0 + 2 * k + 1)}')

    def outm(hd):
        st = hd & 1
        for tb in range(2):
            for db in range(2):
                acc = ACC3 + 16 * (2 * tb + db)
                c = '0' if hd == 0 else v(acc, 16)
                b(f'v_mfma_f32_32x32x16_bf16 {v(acc, 16)}, {v(WFR + 8 * st + 4 * db, 4)}, {v(OF[st][tb], 4)}, {c}')

    S_Y0, S_Y1 = S_KVO, S_WOB + 4

    def y_items():
        it = []
        for n in range(11):
            for tb in range(2):
                l = []
                sy = (S_KVO, 81)[tb]
                if n % 4 == 0:
                    l = [f's_lshl1_add_u32 {s(sy)}, {s(S_I)}, {tb}',
                         f's_mul_i32 {s(sy)}, {s(sy)}, 45056',
                         f's_mul_i32 {s(S_Q1)}, {s(S_W)}, {11 * 1024}',
                         f's_add_u32 {s(sy)}, {s(sy)}, {s(S_Q1)}',
                         f's_add_u32 {s(sy)}, {s(sy)}, {WS_Y + 1024 * n}']
                l.append(f'buffer_load_dwordx4 {a(A_Y + 8 * n + 4 * tb, 4)}, {v(V_L16)}, {s(SRD_WS, 4)}, {s(sy)} offen offset:{1024 * (n & 3)} sc1')
                it.append(l)
        return it

    b.period = G.OPT.get('abp', 8)
    n0 = b.mark()
    for hd in range(8):
        num(hd)
        wread(hd)
        if hd > 0:
            outm(hd - 1)
        post(hd, 0)
        post(hd, 1)
        if hd == G.OPT.get('s3i', 2):
            with b.atomic():
                b(f'v_and_b32 {v(t1)}, 31, {v(V_LANE)}')
                b(f's_lshl_b32 {s(S_T0)}, {s(S_I)}, 5')
                b(f'v_add_u32 {v(t1)}, {s(S_T0)}, {v(t1)}')
                flag_addr(b, 20, t1, t0)
                b(f's_mov_b32 {s(S_T7)}, {WS_FY}')
                b(f'buffer_load_dword {v(21)}, {v(20)}, {s(SRD_WS, 4)}, {s(S_T7)} offen sc1')
        if hd == G.OPT.get('s3c', 5):
            g.poll(b, 20, s(S_T7), 21, first_issued=True, mark=22)
            stamp(b, 10)
            b.add(y_items())
    outm(7)
    b.flush()
    b.weave_from(n0, G=6)
    b.period = 0
    stamp(b, 9)
    G.dstamp(b, 6)
    b.wait_vm('wout')

    def woutread(n):
        st = n & 1
        for db in range(2):
            for t in range(2):
                b(f'ds_read_b64_tr_b16 {v(WFR + 8 * st + 4 * db + 2 * t, 2)}, {v(V_TW + db)} offset:{2048 * n + 1024 * t}')
    n0 = b.mark()
    woutread(0)
    for n in range(11):
        if n + 1 < 11:
            woutread(n + 1)
        st = n & 1
        for tb in range(2):
            for db in range(2):
                acc = ACC3 + 16 * (2 * tb + db)
                b(f'v_mfma_f32_32x32x16_bf16 {v(acc, 16)}, {v(WFR + 8 * st + 4 * db, 4)}, {a(A_Y + 8 * n + 4 * tb, 4)}, {v(acc, 16)}')
    b(f'v_add_u32 {v(t0)}, {s(S_PART)}, {v(V_L16)}')
    for blk in range(4):
        for j in range(4):
            b(f'ds_write_b128 {v(t0)}, {v(ACC3 + 16 * blk + 4 * j, 4)} offset:{XOFF + 4096 * blk + 1024 * j}')
    b.weave_from(n0, G=5)
    srd(b, SRD_T, P_OUT, 2048 * 1024)
    b(f'v_and_b32 {v(t0 + 3)}, 31, {v(V_LANE)}')
    b(f'v_lshlrev_b32 {v(t0 + 3)}, 10, {v(t0 + 3)}')
    b(f'v_lshrrev_b32 {v(t1)}, 5, {v(V_LANE)}')
    b(f'v_lshl_add_u32 {v(t0 + 3)}, {v(t1)}, 4, {v(t0 + 3)}')
    b(f's_lshl_b32 {s(S_T0)}, {s(S_I)}, 16')
    b(f's_lshr_b32 {s(S_T1)}, {s(S_W)}, 1')
    b(f's_lshl_b32 {s(S_T1)}, {s(S_T1)}, 15')
    b(f's_add_u32 {s(S_T0)}, {s(S_T0)}, {s(S_T1)}')
    b(f's_lshl_b32 {s(S_T1)}, {s(S_J)}, 7')
    b(f's_add_u32 {s(S_T0)}, {s(S_T0)}, {s(S_T1)}')
    b(f's_and_b32 {s(S_T1)}, {s(S_W)}, 1')
    b(f's_lshl_b32 {s(S_T1)}, {s(S_T1)}, 6')
    b(f's_add_u32 {s(S_T4)}, {s(S_T0)}, {s(S_T1)}')
    b.wait_lds()
    b('s_barrier')
    b(f's_lshl_b32 {s(S_T0)}, {s(S_W)}, 12')
    b(f's_add_u32 {s(S_T0)}, {s(S_T0)}, {XOFF}')
    b(f'v_add_u32 {v(t0)}, {s(S_T0)}, {v(V_L16)}')
    b(f'v_add_u32 {v(t1)}, {2 * PRIV}, {v(t0)}')
    RB_ = 128
    for src in range(4):
        for j in range(4):
            b(f'ds_read_b128 {v(RB_ + 16 * src + 4 * j, 4)}, {v(t0 if src < 2 else t1)} offset:{PRIV * (src & 1) + 1024 * j}')
    if G.OPT.get('pk', 1):
        for k in range(0, 16, 2):
            b(f'v_pk_add_f32 {v(RB_ + k, 2)}, {v(RB_ + k, 2)}, {v(RB_ + 16 + k, 2)}')
            b(f'v_pk_add_f32 {v(RB_ + 32 + k, 2)}, {v(RB_ + 32 + k, 2)}, {v(RB_ + 48 + k, 2)}')
        for k in range(0, 16, 2):
            b(f'v_pk_add_f32 {v(RB_ + k, 2)}, {v(RB_ + k, 2)}, {v(RB_ + 32 + k, 2)}')
    else:
        for k in range(16):
            b(f'v_add_f32 {v(RB_ + k)}, {v(RB_ + k)}, {v(RB_ + 16 + k)}')
            b(f'v_add_f32 {v(RB_ + 32 + k)}, {v(RB_ + 32 + k)}, {v(RB_ + 48 + k)}')
        for k in range(16):
            b(f'v_add_f32 {v(RB_ + k)}, {v(RB_ + k)}, {v(RB_ + 32 + k)}')
    O = 192
    for k in range(8):
        b(f'v_cvt_pk_bf16_f32 {v(O + k)}, {v(RB_ + 2 * k)}, {v(RB_ + 2 * k + 1)}')
    for jj in range(2):
        b(f'v_permlane32_swap_b32 {v(O + 4 * jj)}, {v(O + 4 * jj + 2)}')
        b(f'v_permlane32_swap_b32 {v(O + 4 * jj + 1)}, {v(O + 4 * jj + 3)}')
    for jj in range(2):
        b(f'buffer_store_dwordx4 {v(O + 4 * jj, 4)}, {v(t0 + 3)}, {s(SRD_T, 4)}, {s(S_T4)} offen offset:{32 * jj}{["", " sc1", " nt", " sc0 sc1"][G.OPT.get("ost", 0)]}')
    stamp(b, 12)
    G.dstamp(b, 7)
    if G.OPT.get('clk') == 1:
        b('s_memtime s[64:65]')
        b('s_memrealtime s[66:67]')
        b('s_waitcnt lgkmcnt(0)')
        b('s_sub_u32 s64, s64, s62')
        b('s_sub_u32 s66, s66, s100')
        b(f's_mov_b32 {s(SRD_T)}, {s(G.P_DBG)}')
        b(f's_mov_b32 {s(SRD_T + 1)}, {s(G.P_DBG + 1)}')
        b(f's_lshr_b32 {s(S_T4)}, {s(S_WG)}, 5')
        b(f's_and_b32 {s(S_T5)}, {s(S_WG)}, 31')
        b(f's_or_b32 {s(S_T5)}, {s(S_T5)}, {s(S_W)}')
        b(f's_cmp_eq_u32 {s(S_T5)}, 0')
        b(f's_cselect_b32 {s(SRD_T + 2)}, 256, 0')
        b(f's_mov_b32 {s(SRD_T + 3)}, 0x20000')
        b(f's_lshl_b32 {s(S_T4)}, {s(S_T4)}, 3')
        b(f'v_mov_b32 {v(2)}, s64')
        b(f'v_mov_b32 {v(3)}, s66')
        b(f'buffer_store_dwordx2 {v(2, 2)}, off, {s(SRD_T, 4)}, {s(S_T4)}')
    return P2, PH, PL, b.b
```

```python
import sys, struct, math
from collections import deque
from asmlib import *

KNAME = 'gated_mix__linear_attn_block__mixer_gmlp__prompt_kernel'
OPT = dict(stamps=0, rot=1, touch=0, late=0, map=0, cpf=0)


def v(a, n=1):
    return f'v{a}' if n == 1 else f'v[{a}:{a + n - 1}]'


def a(x, n=1):
    return f'a{x}' if n == 1 else f'a[{x}:{x + n - 1}]'


def s(x, n=1):
    return f's{x}' if n == 1 else f's[{x}:{x + n - 1}]'


WS_EPOCH = 0
WS_FZ2 = 0x10000
WS_FP1 = 0x20000
WS_FY = 0x30000
WS_FKV = 0x40000
WS_GATE = 0x50000
WS_KVF = 0x60000
WS_STATS = 0x80000
WS_KVP = 0x100000
WS_Z2N = 0x200000
WS_Z1F = 0x500000
WS_PQ = 0x800000
WS_Y = 0xB00000
WS_DBG = 0x1000000
WS_SIZE = 0x10000000
NONCE_K = 0x9E3779B1
OOB = 0x40000000
SPIN_MAX = 20000

R0 = 0
R1 = 65536
R2 = 98304
LDS_BYTES = 163840

S_WG = 2
SRD_A = 4
SRD_U = 8
S_Q0, S_Q1 = 12, 13
S_AS = 14
S_ROT = 15
S_ROT2 = 3
P_X, P_WQKV, P_WO, P_BX, P_WIN, P_WSP, P_BSP, P_WOUT = 16, 18, 20, 22, 24, 26, 28, 30
P_GW, P_OUT, P_DBG, P_WS = 32, 34, 36, 38
SRD_X = 40
SRD_W = 44
SRD_WS = 48
SRD_T = 52
S_W = 56
S_RB, S_CG, S_I, S_J = 57, 58, 59, 60
S_N = 61
S_T0, S_T1, S_T2, S_T3, S_T4, S_T5 = 64, 65, 66, 67, 68, 69
S_XL, S_XS, S_WL, S_WSO = 70, 71, 72, 73
S_RS, S_COL, S_MASK = 74, 75, 76
S_O0, S_O1 = 77, 78
S_TB = 79
S_RS64 = 80
S_LOG2E, S_EPS = 82, 83
S_CNT = 86
S_PKB, S_PK1, S_PKL = 62, 84, 100
S_XG, S_XLW, S_WGB = 84, 85, 87
S_KC = 91
S_D2COL, S_D2MASK, S_D2SEL = 88, 89, 90
S_D3COL, S_D3MASK, S_D3SEL = 92, 93, 94
S_T6, S_T7 = 96, 97
S_VCC2 = 98

V_LANE = 0
V_T0 = 1
V_DUM = 7
V_XD = 8
V_WD = 12
V_XRO = 14
V_XRT = 18
V_WR = 22
V_L16 = 24
V_L8 = 25
V_GA = 26
V_NON = 27
V_ST = 28
V_POLL = 30
V_AR = 32
V_E = 36
V_GA2 = 38
V_AD = 40
V_TCH = 44
V_BSP = 45
V_TW1, V_TW2 = 46, 47
V_ACC0 = 64
V_ACC1 = 96
V_WF = 128
V_TMP = 160
V_PK = 192
V_PV = 208
V_STAT = 224
V_KV = 64
V_KZ = 224
A_X = 128


def NT(k):
    return ' nt' if OPT.get('nt', 0) & k else ''


def f2u(x):
    return struct.unpack('<I', struct.pack('<f', x))[0]


LOG2E = 1.4426950408889634
GELU_A_F = -2.0 * LOG2E * math.sqrt(2.0 / math.pi)
GELU_A = f2u(GELU_A_F)
GELU_B = f2u(GELU_A_F * 0.044715)


class St:
    def __init__(self, g, name):
        self.g = g
        self.b = g.blk(name)
        self.q = deque()
        self.period = 0
        self.cnt = 0
        self.lock = 0

    def __call__(self, text, tag=None, **meta):
        r = self.b(text, tag=tag, **meta)
        if self.period and not self.lock and self.q:
            self.cnt += 1
            if self.cnt >= self.period:
                self.pop()
        return r

    def pop(self, n=1):
        for _ in range(n):
            if not self.q:
                return
            item = self.q.popleft()
            for x in item:
                if isinstance(x, tuple):
                    self.b(x[1], tag=x[0], **(x[2] if len(x) > 2 else {}))
                else:
                    self.b(x)
        self.cnt = 0

    def add(self, items):
        self.q.extend(items)

    def flush(self):
        self.pop(len(self.q))

    def ensure(self, tag):
        def has(item):
            return any(isinstance(x, tuple) and x[0] == tag for x in item)
        while any(has(i) for i in self.q):
            self.pop(1)

    def label(self, n):
        self.b.label(n)

    def mark(self):
        return len(self.b.ins)

    def weave_from(self, n0, G=5, adv=2):
        if OPT.get('weave', 1):
            self.b.ins[n0:] = weave(self.b.ins[n0:], G, adv)

    def wait_vm(self, t):
        self.b.wait_vm(t)

    def wait_lds(self):
        self.b.wait_lds()

    class _L:
        def __init__(self, st):
            self.st = st

        def __enter__(self):
            self.st.lock += 1

        def __exit__(self, *a):
            self.st.lock -= 1

    def atomic(self):
        return St._L(self)


class Rec:
    def __init__(self):
        self.units = []
        self.lock = 0
        self.period = 0

    def __call__(self, text, tag=None, **meta):
        if self.lock and self.open:
            self.units[-1].append((text, tag, meta))
        else:
            self.units.append([(text, tag, meta)])
            self.open = bool(self.lock)

    open = False

    class _L:
        def __init__(self, r):
            self.r = r

        def __enter__(self):
            if self.r.lock == 0:
                self.r.open = False
            self.r.lock += 1

        def __exit__(self, *a):
            self.r.lock -= 1
            if self.r.lock == 0:
                self.r.open = False

    def atomic(self):
        return Rec._L(self)


NOPK = [False]


def gelu_group(b, xs, tmp):
    n = len(xs)
    if OPT.get('pk', 1) and not NOPK[0]:
        x0 = xs[0]
        for k in range(0, n, 2):
            b(f'v_pk_mul_f32 {v(tmp + k, 2)}, {v(x0 + k, 2)}, {v(x0 + k, 2)}')
        for k in range(0, n, 2):
            b(f'v_pk_fma_f32 {v(tmp + k, 2)}, {v(tmp + k, 2)}, {s(S_PKB, 2)}, {v(V_GA2, 2)}')
        for k in range(0, n, 2):
            b(f'v_pk_mul_f32 {v(tmp + k, 2)}, {v(tmp + k, 2)}, {v(x0 + k, 2)}')
        for k in range(n):
            b(f'v_exp_f32 {v(tmp + k)}, {v(tmp + k)}')
        for k in range(0, n, 2):
            b(f'v_pk_add_f32 {v(tmp + k, 2)}, {v(tmp + k, 2)}, {s(S_PK1, 2)}')
        for k in range(n):
            b(f'v_rcp_f32 {v(tmp + k)}, {v(tmp + k)}')
        for k in range(0, n, 2):
            b(f'v_pk_mul_f32 {v(x0 + k, 2)}, {v(x0 + k, 2)}, {v(tmp + k, 2)}')
        return
    for k in range(n):
        b(f'v_mul_f32 {v(tmp + k)}, {v(xs[k])}, {v(xs[k])}')
    for k in range(n):
        b(f'v_fmamk_f32 {v(tmp + k)}, {v(tmp + k)}, {hex(GELU_B)}, {v(V_GA)}')
    for k in range(n):
        b(f'v_mul_f32 {v(tmp + k)}, {v(tmp + k)}, {v(xs[k])}')
    for k in range(n):
        b(f'v_exp_f32 {v(tmp + k)}, {v(tmp + k)}')
    for k in range(n):
        b(f'v_add_f32 {v(tmp + k)}, 1.0, {v(tmp + k)}')
    for k in range(n):
        b(f'v_rcp_f32 {v(tmp + k)}, {v(tmp + k)}')
    for k in range(n):
        b(f'v_mul_f32 {v(xs[k])}, {v(xs[k])}, {v(tmp + k)}')


def phi_group(b, xs, tmp):
    n = len(xs)
    if OPT.get('pk', 1) and not NOPK[0]:
        x0 = xs[0]
        for k in range(0, n, 2):
            b(f'v_pk_mul_f32 {v(tmp + k, 2)}, {v(x0 + k, 2)}, {s(S_PKL, 2)}')
        for k in range(n):
            b(f'v_exp_f32_e64 {v(tmp + k)}, {v(tmp + k)} clamp')
        for k in range(n):
            b(f'v_max_f32 {v(xs[k])}, {s(S_EPS)}, {v(xs[k])}')
        for k in range(0, n, 2):
            b(f'v_pk_add_f32 {v(x0 + k, 2)}, {v(x0 + k, 2)}, {v(tmp + k, 2)}')
        return
    for k in range(n):
        b(f'v_mul_f32 {v(tmp + k)}, {s(S_LOG2E)}, {v(xs[k])}')
    for k in range(n):
        b(f'v_exp_f32_e64 {v(tmp + k)}, {v(tmp + k)} clamp')
    for k in range(n):
        b(f'v_max_f32 {v(xs[k])}, {s(S_EPS)}, {v(xs[k])}')
    for k in range(n):
        b(f'v_add_f32 {v(xs[k])}, {v(xs[k])}, {v(tmp + k)}')


def srd(b, base, ptr, nrec):
    b(f's_mov_b32 {s(base)}, {s(ptr)}')
    b(f's_mov_b32 {s(base + 1)}, {s(ptr + 1)}')
    b(f's_mov_b32 {s(base + 2)}, {hex(nrec)}')
    b(f's_mov_b32 {s(base + 3)}, 0x20000')


def dma4_voffsets(b, dst, RS):
    t0, t1, t2 = V_T0, V_T0 + 1, V_T0 + 2
    b(f'v_lshrrev_b32 {v(t0)}, 3, {v(V_LANE)}')
    b(f'v_and_b32 {v(t1)}, 7, {v(V_LANE)}')
    b(f'v_lshrrev_b32 {v(t2)}, 4, {v(V_LANE)}')
    b(f'v_xor_b32 {v(t1)}, {v(t1)}, {v(t2)}')
    b(f'v_lshlrev_b32 {v(t1)}, 4, {v(t1)}')
    b(f'v_mul_u32_u24 {v(t0)}, {RS}, {v(t0)}')
    b(f'v_add_u32 {v(dst)}, {v(t0)}, {v(t1)}')
    b(f'v_xor_b32 {v(t1)}, 64, {v(t1)}')
    b(f'v_add_u32 {v(t0)}, {v(t0)}, {v(t1)}')
    b(f'v_add_u32 {v(dst + 1)}, {8 * RS - 1024}, {v(t0)}')
    b(f'v_add_u32 {v(dst + 2)}, {16 * RS - 2048}, {v(dst)}')
    b(f'v_add_u32 {v(dst + 3)}, {24 * RS - 3072}, {v(t0)}')


def frag_read_addrs(b, dst):
    t0, t1, t2 = V_T0, V_T0 + 1, V_T0 + 2
    b(f'v_and_b32 {v(t0)}, 31, {v(V_LANE)}')
    b(f'v_lshrrev_b32 {v(t1)}, 5, {v(V_LANE)}')
    b(f'v_bfe_u32 {v(t2)}, {v(V_LANE)}, 1, 3')
    b(f'v_xor_b32 {v(t1)}, {v(t1)}, {v(t2)}')
    b(f'v_lshlrev_b32 {v(t1)}, 4, {v(t1)}')
    b(f'v_lshl_add_u32 {v(dst)}, {v(t0)}, 7, {v(t1)}')
    for kk in range(1, 4):
        b(f'v_xor_b32 {v(dst + kk)}, {32 * kk}, {v(dst)}')


def tr_addr(b, dst, pi):
    t0, t1 = V_T0, V_T0 + 1
    b(f'v_bfe_u32 {v(t0)}, {v(V_LANE)}, 2, 2')
    b(f'v_lshrrev_b32 {v(t1)}, 5, {v(V_LANE)}')
    b(f'v_lshl_add_u32 {v(t1)}, {v(t1)}, {2 if pi else 3}, {v(t0)}')
    b(f'v_lshlrev_b32 {v(t1)}, 7, {v(t1)}')
    b(f'v_lshrrev_b32 {v(t0)}, 1, {v(t0)}')
    b(f'v_lshl_add_u32 {v(t1)}, {v(t0)}, 6, {v(t1)}')
    b(f'v_bfe_u32 {v(t0)}, {v(V_LANE)}, 4, 1')
    b(f'v_lshl_add_u32 {v(t1)}, {v(t0)}, 5, {v(t1)}')
    b(f'v_and_b32 {v(t0)}, 3, {v(V_LANE)}')
    b(f'v_lshl_add_u32 {v(dst)}, {v(t0)}, 3, {v(t1)}')


def wd_voffsets(b):
    t0, t1, t2 = V_T0, V_T0 + 1, V_T0 + 2
    b(f'v_bfe_u32 {v(t0)}, {v(V_LANE)}, 2, 1')
    b(f'v_bfe_u32 {v(t1)}, {v(V_LANE)}, 4, 1')
    b(f'v_xor_b32 {v(t0)}, {v(t0)}, {v(t1)}')
    b(f'v_and_b32 {v(t1)}, 3, {v(V_LANE)}')
    b(f'v_lshlrev_b32 {v(t1)}, 4, {v(t1)}')
    b(f'v_lshl_add_u32 {v(t0)}, {v(t0)}, 6, {v(t1)}')
    b(f'v_lshrrev_b32 {v(t1)}, 3, {v(V_LANE)}')
    b(f'v_mul_lo_u32 {v(t1)}, {v(t1)}, {s(S_RS)}')
    b(f'v_add_u32 {v(t1)}, {v(t1)}, {v(t0)}')
    b(f'v_add_u32 {v(V_WD)}, {s(S_COL)}, {v(t1)}')
    b(f's_lshl_b32 {s(S_T0)}, {s(S_RS)}, 3')
    b(f's_sub_u32 {s(S_T0)}, {s(S_T0)}, 1024')
    b(f'v_add_u32 {v(V_WD + 1)}, {s(S_T0)}, {v(V_WD)}')
    b(f'v_mov_b32 {v(t2)}, {hex(OOB)}')
    b(f'v_cmp_gt_u32 vcc, {s(S_MASK)}, {v(t0)}')
    b(f'v_cndmask_b32 {v(V_WD)}, {v(V_WD)}, {v(t2)}, vcc')
    b(f'v_cndmask_b32 {v(V_WD + 1)}, {v(V_WD + 1)}, {v(t2)}, vcc')
    b(f's_lshl_b32 {s(S_RS64)}, {s(S_RS)}, 6')
    b(f's_lshl_b32 {s(S_T0)}, {s(S_RS)}, 4')
    b(f's_mul_i32 {s(S_WSO)}, {s(S_T0)}, {s(S_W)}')


def set_w_srd(b, sel):
    b(f's_cmp_eq_u32 {s(sel)}, 0')
    b(f's_cselect_b32 {s(SRD_W)}, {s(P_WQKV)}, {s(P_WIN)}')
    b(f's_cselect_b32 {s(SRD_W + 1)}, {s(P_WQKV + 1)}, {s(P_WIN + 1)}')
    b(f's_mov_b32 {s(SRD_W + 2)}, {hex(512 * 2752)}')
    b(f's_cmov_b32 {s(SRD_W + 2)}, {hex(512 * 3072)}')
    b(f's_mov_b32 {s(SRD_W + 3)}, 0x20000')


def w_piece_items(p, region, tag):
    return [
        [f's_add_u32 {s(S_Q0)}, {s(S_ROT)}, {p}',
         f's_and_b32 {s(S_Q0)}, {s(S_Q0)}, 7',
         f's_mul_i32 {s(S_Q0)}, {s(S_Q0)}, {s(S_RS64)}',
         f's_add_u32 {s(S_Q0)}, {s(S_Q0)}, {s(S_WSO)}',
         f's_add_u32 m0, {s(S_WL)}, {region + 8192 * p}',
         (tag, f'buffer_load_dwordx4 {v(V_WD)}, {s(SRD_W, 4)}, {s(S_Q0)} offen{NT(2)} lds')],
        [(tag, f'buffer_load_dwordx4 {v(V_WD + 1)}, {s(SRD_W, 4)}, {s(S_Q0)} offen offset:1024{NT(2)} lds')],
    ]


def x_chunk_items(c, tag):
    it = []
    for i in range(4):
        l = []
        if i == 0:
            l = [f's_add_u32 {s(S_Q0)}, {s(S_ROT)}, {c}',
                 f's_and_b32 {s(S_Q0)}, {s(S_Q0)}, 7',
                 f's_lshl_b32 {s(S_Q0)}, {s(S_Q0)}, 7',
                 f's_add_u32 {s(S_Q0)}, {s(S_Q0)}, {s(S_XS)}',
                 f's_add_u32 m0, {s(S_XL)}, {16384 * (c % 4)}']
        l.append((tag, f'buffer_load_dwordx4 {v(V_XD + i)}, {s(SRD_X, 4)}, {s(S_Q0)} offen offset:{1024 * i}{NT(4)} lds'))
        it.append(l)
    return it


def l1_items(c):
    tag = f'x{c}'
    slot = R1 + 16384 * (c % 3)
    it = []
    for m in range(4):
        l = []
        if m == 0:
            l = [f's_add_u32 {s(S_KC)}, {s(S_ROT)}, {c}',
                 f's_and_b32 {s(S_KC)}, {s(S_KC)}, 7',
                 f's_lshl_b32 {s(S_Q0)}, {s(S_KC)}, 7',
                 f's_add_u32 {s(S_Q0)}, {s(S_Q0)}, {s(S_XG)}',
                 f's_add_u32 m0, {s(S_XLW)}, {slot}']
        else:
            l = [f's_add_u32 {s(S_Q0)}, {s(S_Q0)}, 7168']
        l.append((tag, f'buffer_load_dwordx4 {v(V_XD + (m & 1))}, {s(SRD_X, 4)}, {s(S_Q0)} offen offset:{1024 * m} lds'))
        it.append(l)
    it.append([f's_add_u32 {s(S_Q0)}, {s(S_Q0)}, {7168 + 4096}',
               f's_add_u32 m0, {s(S_XLW)}, {slot + 4096}',
               (tag, f'buffer_load_dwordx4 {v(V_XD)}, {s(SRD_X, 4)}, {s(S_Q0)} offen lds')])
    return it


def l1_item5(g, b, c):
    tag = f'x{c}'
    l0, l1 = g.lab('M5'), g.lab('M5')
    b.b(f's_cmp_eq_u32 {s(S_W)}, 0')
    b.b(f's_cbranch_scc0 {l0}')
    b.b(f's_add_u32 {s(S_Q0)}, {s(S_Q0)}, 7168')
    b.b(f'buffer_load_dwordx4 {v(V_XD + 1)}, {s(SRD_X, 4)}, {s(S_Q0)} offen offset:1024 lds', nocount=True)
    b.b(f's_branch {l1}')
    b.b.label(l0)
    b.b(f's_mul_i32 {s(S_Q1)}, {s(S_KC)}, {s(S_RS64)}')
    b.b(f's_sub_u32 {s(S_Q0)}, {s(S_WGB)}, 1')
    b.b(f's_lshl_b32 {s(S_T0)}, {s(S_Q0)}, 10')
    b.b(f's_add_u32 m0, {s(S_T0)}, {R0 + 8192 * c}')
    b.b(f's_lshl_b32 {s(S_T0)}, {s(S_RS)}, 3')
    b.b(f's_mul_i32 {s(S_Q0)}, {s(S_Q0)}, {s(S_T0)}')
    b.b(f's_add_u32 {s(S_Q0)}, {s(S_Q0)}, {s(S_Q1)}')
    b.b(f'buffer_load_dwordx4 {v(V_WD)}, {s(SRD_W, 4)}, {s(S_Q0)} offen lds', tag=tag)
    b.b.label(l1)


def l1_w_items(c):
    tag = f'x{c}'
    return [[f's_mul_i32 {s(S_Q1)}, {s(S_KC)}, {s(S_RS64)}',
             f's_lshl_b32 {s(S_Q0)}, {s(S_WGB)}, 10',
             f's_add_u32 m0, {s(S_Q0)}, {R0 + 8192 * c}',
             f's_lshl_b32 {s(S_Q0)}, {s(S_RS)}, 3',
             f's_mul_i32 {s(S_Q0)}, {s(S_Q0)}, {s(S_WGB)}',
             f's_add_u32 {s(S_Q0)}, {s(S_Q0)}, {s(S_Q1)}',
             (tag, f'buffer_load_dwordx4 {v(V_WD)}, {s(SRD_W, 4)}, {s(S_Q0)} offen lds')],
            [(tag, f'buffer_load_dwordx4 {v(V_WD + 1)}, {s(SRD_W, 4)}, {s(S_Q0)} offen offset:1024 lds')]]


def a_slot(kind):
    return {'h0': (13, R1), 'h1': (13, R1 + 4096), 'f0': (13, R1), 'f1': (14, R2), 'f2': (14, R2 + 8192),
            'g1': (14, R0), 'g2': (14, R0 + 8192)}[kind]


def a_piece_items(c, tb, slot, off=0):
    sh, base = a_slot(slot)
    it = []
    for i in range(4):
        l = []
        if i == 0:
            l = [f's_add_u32 {s(S_Q0)}, {s(S_ROT2)}, {c}',
                 f's_and_b32 {s(S_Q0)}, {s(S_Q0)}, 7',
                 f's_lshl_b32 {s(S_Q0)}, {s(S_Q0)}, 7',
                 f's_add_u32 {s(S_Q0)}, {s(S_Q0)}, {s(S_AS)}']
            if tb:
                l.append(f's_add_u32 {s(S_Q0)}, {s(S_Q0)}, {32 * 4096}')
            l += [f's_lshl_b32 {s(S_Q1)}, {s(S_W)}, {sh}',
                  f's_add_u32 m0, {s(S_Q1)}, {base + off}']
        l.append((f'a{c}_{tb}', f'buffer_load_dwordx4 {v(V_AD + i)}, {s(SRD_A, 4)}, {s(S_Q0)} offen offset:{1024 * i}{NT(1)} lds'))
        it.append(l)
    return it


def a_piece_read(b, c, tb, slot, off=0):
    sh, base = a_slot(slot)
    with b.atomic():
        b(f's_lshl_b32 {s(S_T0)}, {s(S_W)}, {sh}')
        b(f's_add_u32 {s(S_T0)}, {s(S_T0)}, {base + off}')
        for kk in range(4):
            b(f'v_add_u32 {v(V_T0 + kk)}, {s(S_T0)}, {v(V_AR + kk)}')
        for kk in range(4):
            r = 8 * (4 * c + kk) + 4 * tb
            b(f'ds_read_b128 {a(r, 4)}, {v(V_T0 + kk)}')


def a_chunk_items(c, slot):
    return a_piece_items(c, 0, slot) + a_piece_items(c, 1, slot, 4096)


def a_chunk_read(b, c, slot):
    sh, base = a_slot(slot)
    with b.atomic():
        b(f's_lshl_b32 {s(S_T0)}, {s(S_W)}, {sh}')
        b(f's_add_u32 {s(S_T0)}, {s(S_T0)}, {base}')
        for kk in range(4):
            b(f'v_add_u32 {v(V_T0 + kk)}, {s(S_T0)}, {v(V_AR + kk)}')
        for kk in range(4):
            for tb in range(2):
                r = 8 * (4 * c + kk) + 4 * tb
                b(f'ds_read_b128 {a(r, 4)}, {v(V_T0 + kk)} offset:{4096 * tb}')


def stamp(b, idx):
    if not OPT['stamps']:
        return
    if OPT['stamps'] == 3 and idx not in (0, 12):
        return
    lock = b.atomic() if hasattr(b, 'atomic') else None
    if lock:
        lock.__enter__()
    b(f's_memrealtime {s(S_VCC2, 2)}' if OPT['stamps'] in (1, 3) else f's_memtime {s(S_VCC2, 2)}')
    b('s_waitcnt lgkmcnt(0)')
    b(f's_lshl_b32 {s(S_T6)}, {s(S_WG)}, 2')
    b(f's_add_u32 {s(S_T6)}, {s(S_T6)}, {s(S_W)}')
    b(f's_lshl_b32 {s(S_T6)}, {s(S_T6)}, 7')
    b(f's_add_u32 {s(S_T6)}, {s(S_T6)}, {WS_DBG + 4 * idx}')
    b(f'v_mov_b32 {v(V_POLL + 1)}, {s(S_VCC2)}')
    b(f'buffer_store_dword {v(V_POLL + 1)}, off, {s(SRD_WS, 4)}, {s(S_T6)}')
    if lock:
        lock.__exit__()


def s1_issue(g, b):
    from phase23 import s1_issue as f
    f(g, b)


def early_prime(g, b):
    from phase23 import early_prime as f
    f(g, b)


def dstamp(b, k):
    if OPT.get('clk') != 2:
        return
    lock = b.atomic() if hasattr(b, 'atomic') else None
    if lock:
        lock.__enter__()
    b('s_memtime s[98:99]')
    b('s_waitcnt lgkmcnt(0)')
    b('s_sub_u32 s98, s98, s62')
    b(f's_mov_b32 {s(SRD_T)}, {s(P_DBG)}')
    b(f's_mov_b32 {s(SRD_T + 1)}, {s(P_DBG + 1)}')
    b(f's_cmp_eq_u32 {s(S_WG)}, 100')
    b(f's_cselect_b32 s99, 32, 0')
    b(f's_cselect_b32 s97, 0, {s(S_WG)}')
    b(f's_or_b32 s97, s97, {s(S_W)}')
    b(f's_cmp_eq_u32 s97, 0')
    b(f's_cselect_b32 {s(SRD_T + 2)}, 256, 0')
    b(f's_mov_b32 {s(SRD_T + 3)}, 0x20000')
    b(f's_add_u32 s99, s99, {4 * k}')
    b(f'v_mov_b32 {v(V_POLL + 1)}, s98')
    b(f'buffer_store_dword {v(V_POLL + 1)}, off, {s(SRD_T, 4)}, s99')
    if lock:
        lock.__exit__()


def slow_mark(idx):
    if not OPT['stamps'] or OPT.get('s3st') or OPT['stamps'] == 3:
        return ''
    return f'''    s_lshl_b32 {s(S_T6)}, {s(S_WG)}, 2
    s_add_u32 {s(S_T6)}, {s(S_T6)}, {s(S_W)}
    s_lshl_b32 {s(S_T6)}, {s(S_T6)}, 7
    s_add_u32 {s(S_T6)}, {s(S_T6)}, {WS_DBG + 4 * idx}
    s_sub_u32 {s(S_VCC2)}, {SPIN_MAX + 1}, {s(S_CNT)}
    v_mov_b32 {v(V_POLL + 1)}, {s(S_VCC2)}
    buffer_store_dword {v(V_POLL + 1)}, off, {s(SRD_WS, 4)}, {s(S_T6)}
'''


class Gen:
    def __init__(self):
        self.blocks = []
        self.s3flag = False
        self.slow = []
        self.nlab = 0

    def blk(self, name):
        b = Block(name)
        self.blocks.append(b)
        return b

    def lab(self, p='L'):
        self.nlab += 1
        return f'{p}_{self.nlab}'

    def poll(self, b, vaddr, soff, vtmp, first_issued=False, skip_if_zero=None, mark=31):
        cont = self.lab('PC')
        slow = self.lab('PS')
        lock = b.atomic() if hasattr(b, 'atomic') else None
        if lock:
            lock.__enter__()
        if not first_issued:
            b(f'buffer_load_dword {v(vtmp)}, {v(vaddr)}, {s(SRD_WS, 4)}, {soff} offen sc1')
        b(f'v_cmp_ne_u32 vcc, {s(S_N)}, {v(vtmp)}')
        if skip_if_zero is not None:
            b(f's_cmp_eq_u32 {s(skip_if_zero)}, 0')
            b(f's_cbranch_scc1 {cont}')
        b(f's_cbranch_vccnz {slow}')
        b.label(cont)
        if lock:
            lock.__exit__()
        self.slow.append(f'''{slow}:
    s_mov_b32 {s(S_CNT)}, {SPIN_MAX}
{slow}_l:
    s_sleep 1
    buffer_load_dword {v(vtmp)}, {v(vaddr)}, {s(SRD_WS, 4)}, {soff} offen sc1
    s_waitcnt vmcnt(0)
{slow_mark(mark)}    v_cmp_ne_u32 vcc, {s(S_N)}, {v(vtmp)}
    s_cbranch_vccz {cont}
    s_sub_u32 {s(S_CNT)}, {s(S_CNT)}, 1
    s_cmp_lg_u32 {s(S_CNT)}, 0
    s_cbranch_scc1 {slow}_l
    s_branch {cont}''')

    def prologue(self):
        b = St(self, 'PRO')
        b(f's_cmp_ge_u32 {s(S_WG)}, 256')
        b('s_cbranch_scc1 L_END')
        if OPT.get('clk'):
            b('s_memtime s[62:63]')
            if OPT.get('clk') == 1:
                b('s_memrealtime s[100:101]')
        b('s_load_dwordx16 s[16:31], s[0:1], 0x0')
        b('s_load_dwordx8 s[32:39], s[0:1], 0x40')
        b(f'v_lshrrev_b32 {v(V_T0)}, 6, {v(0)}')
        b(f'v_and_b32 {v(V_LANE)}, 63, {v(0)}')
        b(f's_and_b32 {s(S_T0)}, {s(S_WG)}, 7')
        b(f'v_readfirstlane_b32 {s(S_W)}, {v(V_T0)}')
        b(f's_lshr_b32 {s(S_T1)}, {s(S_WG)}, 3')
        b(f's_lshr_b32 {s(S_T2)}, {s(S_T1)}, 2')
        b(f's_and_b32 {s(S_T1)}, {s(S_T1)}, 3')
        b(f's_and_b32 {s(S_T3)}, {s(S_T0)}, 1')
        b(f's_lshr_b32 {s(S_T0)}, {s(S_T0)}, 1')
        b(f's_lshl3_add_u32 {s(S_RB)}, {s(S_T3)}, {s(S_T2)}')
        b(f's_lshl2_add_u32 {s(S_CG)}, {s(S_T0)}, {s(S_T1)}')
        b(f's_lshl3_add_u32 {s(S_I)}, {s(S_T0)}, {s(S_T2)}')
        b(f's_lshl2_add_u32 {s(S_J)}, {s(S_T3)}, {s(S_T1)}')
        b(f's_lshl1_add_u32 {s(S_ROT)}, {s(S_T1)}, {s(S_T2)}')
        b(f's_and_b32 {s(S_ROT)}, {s(S_ROT)}, 7')
        if OPT.get('map', 0):
            b(f's_and_b32 {s(S_T4)}, {s(S_WG)}, 7')
            b(f's_lshr_b32 {s(S_T5)}, {s(S_WG)}, 6')
            b(f's_lshl2_add_u32 {s(S_I)}, {s(S_T4)}, {s(S_T5)}')
            b(f's_bfe_u32 {s(S_J)}, {s(S_WG)}, 0x30003')
            b(f's_lshl1_add_u32 {s(S_ROT2)}, {s(S_T5)}, {s(S_J)}')
            b(f's_and_b32 {s(S_ROT2)}, {s(S_ROT2)}, 7')
        else:
            b(f's_mov_b32 {s(S_ROT2)}, {s(S_ROT)}')
        if not OPT['rot']:
            b(f's_mov_b32 {s(S_ROT)}, 0')
        b(f'v_lshrrev_b32 {v(V_T0)}, 3, {v(V_LANE)}')
        b(f'v_and_b32 {v(V_T0 + 1)}, 7, {v(V_LANE)}')
        b(f'v_lshrrev_b32 {v(V_T0 + 2)}, 4, {v(V_LANE)}')
        b(f'v_xor_b32 {v(V_T0 + 1)}, {v(V_T0 + 1)}, {v(V_T0 + 2)}')
        b(f'v_lshlrev_b32 {v(V_T0 + 1)}, 4, {v(V_T0 + 1)}')
        b(f's_cmp_eq_u32 {s(S_W)}, 2')
        b(f's_cselect_b32 {s(S_T0)}, 64, 0')
        b(f'v_xor_b32 {v(V_T0 + 1)}, {s(S_T0)}, {v(V_T0 + 1)}')
        b(f'v_lshl_add_u32 {v(V_XD)}, {v(V_T0)}, 10, {v(V_T0 + 1)}')
        b(f'v_xor_b32 {v(V_XD + 1)}, 64, {v(V_XD)}')
        b(f's_mul_i32 {s(S_XLW)}, {s(S_W)}, 6')
        b(f's_cmp_eq_u32 {s(S_W)}, 2')
        b(f's_cselect_b32 {s(S_XLW)}, 11, {s(S_XLW)}')
        b(f's_lshl_b32 {s(S_XG)}, {s(S_XLW)}, 13')
        b(f's_lshl_b32 {s(S_T0)}, {s(S_RB)}, 17')
        b(f's_add_u32 {s(S_XG)}, {s(S_XG)}, {s(S_T0)}')
        b(f's_lshl_b32 {s(S_XLW)}, {s(S_XLW)}, 10')
        b(f's_mul_i32 {s(S_WGB)}, {s(S_W)}, 3')
        b(f's_lshl_b32 {s(S_T0)}, {s(S_CG)}, 7')
        b(f's_add_u32 {s(S_T1)}, {s(S_T0)}, 1344')
        b(f's_sub_u32 {s(S_T2)}, {s(S_T0)}, 1024')
        b(f's_cmp_le_u32 {s(S_CG)}, 10')
        b(f's_cselect_b32 {s(S_COL)}, {s(S_T1)}, {s(S_T2)}')
        b(f's_mov_b32 {s(S_RS)}, 3072')
        b(f's_cmov_b32 {s(S_RS)}, 2752')
        b(f's_cselect_b32 {s(S_T3)}, 1, 0')
        b(f's_cmp_eq_u32 {s(S_CG)}, 0')
        b(f's_cselect_b32 {s(S_MASK)}, 32, 0')
        wd_voffsets(b)
        b(f's_lshl_b32 {s(S_WL)}, {s(S_W)}, 11')
        b(f's_lshl2_add_u32 {s(S_TB)}, {s(S_RB)}, {s(S_W)}')
        if OPT.get('cpf', 0):
            b(f's_getpc_b64 {s(62, 2)}')
            b.label('L_pc0')
            b(f's_lshr_b32 {s(S_T0)}, {s(S_WG)}, 3')
            b(f's_lshl2_add_u32 {s(S_T0)}, {s(S_T0)}, {s(S_W)}')
            b(f's_lshl_b32 {s(S_T0)}, {s(S_T0)}, 9')
            b(f's_min_u32 {s(S_T0)}, {s(S_T0)}, L_code_end-L_pc0-512')
            b(f'v_lshlrev_b32 {v(V_T0 + 3)}, 3, {v(V_LANE)}')
            b(f'v_add_u32 {v(V_T0 + 3)}, {s(S_T0)}, {v(V_T0 + 3)}')
            b(f'global_load_dwordx2 {v(250, 2)}, {v(V_T0 + 3)}, {s(62, 2)}', nodst=True)
        b('s_waitcnt lgkmcnt(0)')
        dstamp(b, 0)
        srd(b, SRD_X, P_X, 2048 * 1024)
        set_w_srd(b, S_T3)
        if OPT.get('sym', 1):
            dma4_voffsets(b, V_XD, 1024)
            b(f's_lshl_b32 {s(S_XL)}, {s(S_W)}, 12')
            b(f's_add_u32 {s(S_XL)}, {s(S_XL)}, {R1}')
            b(f's_lshl_b32 {s(S_XS)}, {s(S_TB)}, 15')
            for c in range(2 if OPT.get('pro2', 1) else 3):
                b.add(x_chunk_items(c, f'x{c}'))
                b.add(w_piece_items(c, R0, f'x{c}'))
            b.flush()
        else:
            b(f's_cmp_eq_u32 {s(S_W)}, 3')
            b('s_cbranch_scc1 L_noload0')
            n0 = len(b.b.ins)
            for c in range(2):
                b.add(l1_items(c))
                b.flush()
                l1_item5(self, b, c)
                b.add(l1_w_items(c))
                b.flush()
            for i in b.b.ins[n0:]:
                i.meta['loader'] = True
            b.label('L_noload0')
        if OPT.get('wsoff', 0):
            off = OPT['wsoff'] << 20
            b(f's_add_u32 {s(P_WS)}, {s(P_WS)}, {hex(off)}')
            b(f's_addc_u32 {s(P_WS + 1)}, {s(P_WS + 1)}, 0')
        srd(b, SRD_WS, P_WS, WS_SIZE - (OPT.get('wsoff', 0) << 20))
        b(f'buffer_load_dword {v(V_E)}, off, {s(SRD_WS, 4)}, 0 sc1', tag='epoch')
        stamp(b, 0)
        dstamp(b, 1)
        b(f's_mov_b32 {s(S_LOG2E)}, {hex(f2u(LOG2E))}')
        b(f's_mov_b32 {s(S_EPS)}, {hex(f2u(1e-6))}')
        b(f'v_mov_b32 {v(V_GA)}, {hex(GELU_A)}')
        b(f'v_mov_b32 {v(V_GA2)}, {hex(GELU_A)}')
        b(f'v_mov_b32 {v(V_GA2 + 1)}, {hex(GELU_A)}')
        b(f's_mov_b32 {s(S_PKB)}, {hex(GELU_B)}')
        b(f's_mov_b32 {s(S_PKB + 1)}, {hex(GELU_B)}')
        b(f's_mov_b32 {s(S_PK1)}, 1.0')
        b(f's_mov_b32 {s(S_PK1 + 1)}, 1.0')
        b(f's_mov_b32 {s(S_PKL)}, {hex(f2u(LOG2E))}')
        b(f's_mov_b32 {s(S_PKL + 1)}, {hex(f2u(LOG2E))}')
        b(f'v_lshlrev_b32 {v(V_L16)}, 4, {v(V_LANE)}')
        b(f'v_lshlrev_b32 {v(V_L8)}, 3, {v(V_LANE)}')
        frag_read_addrs(b, V_AR)
        b(f's_lshl_b32 {s(S_T0)}, {s(S_W)}, 12')
        b(f's_add_u32 {s(S_T1)}, {s(S_T0)}, {R1}')
        for kk in range(4):
            b(f'v_add_u32 {v(V_XRO + kk)}, {s(S_T1)}, {v(V_AR + kk)}')
        tr_addr(b, V_WR, False)
        b(f'v_xor_b32 {v(V_WR + 1)}, 64, {v(V_WR)}')
        srd(b, SRD_A, P_WSP, 2048 * 4096)
        dma4_voffsets(b, V_AD, 4096)
        b(f'v_lshlrev_b32 {v(V_TCH)}, 7, {v(V_LANE)}')
        b(f's_lshl_b32 {s(S_AS)}, {s(S_I)}, 18')
        b(f's_lshl_b32 {s(S_T0)}, {s(S_W)}, 10')
        b(f's_add_u32 {s(S_AS)}, {s(S_AS)}, {s(S_T0)}')
        if OPT.get('tlb', 0):
            b(f'v_lshlrev_b32 {v(V_T0)}, 21, {v(V_LANE)}')
            b(f'buffer_load_dword {v(V_DUM)}, {v(V_T0)}, {s(SRD_A, 4)}, 0 offen', tag='t', nodst=True)
            b(f'v_mov_b32 {v(V_T0 + 1)}, {hex(OOB)}')
            b(f'v_cmp_gt_u32 vcc, 8, {v(V_LANE)}')
            b(f'v_cndmask_b32 {v(V_T0)}, {v(V_T0 + 1)}, {v(V_T0)}, vcc')
            b(f'buffer_load_dword {v(V_DUM)}, {v(V_T0)}, {s(SRD_WS, 4)}, 0 offen', tag='t', nodst=True)
            for ptr, n in ((P_WO, 512 * 1024), (P_WOUT, 688 * 1024), (P_OUT, 2048 * 1024), (P_GW, 1024), (P_WQKV, 512 * 3072), (P_WIN, 512 * 2752)):
                srd(b, SRD_U, ptr, n)
                b(f'buffer_load_dword {v(V_DUM)}, off, {s(SRD_U, 4)}, 0', tag='t', nodst=True)
        srd(b, SRD_T, P_BSP, 4096)
        b(f's_and_b32 {s(S_T0)}, {s(S_W)}, 1')
        b(f's_lshl_b32 {s(S_T0)}, {s(S_T0)}, 6')
        b(f's_lshl_b32 {s(S_T1)}, {s(S_I)}, 7')
        b(f's_add_u32 {s(S_T0)}, {s(S_T0)}, {s(S_T1)}')
        b(f'v_and_b32 {v(V_T0)}, 31, {v(V_LANE)}')
        b(f'v_lshlrev_b32 {v(V_T0)}, 1, {v(V_T0)}')
        b(f'buffer_load_ushort {v(V_BSP)}, {v(V_T0)}, {s(SRD_T, 4)}, {s(S_T0)} offen')
        b(f's_lshl_b32 {s(S_T0)}, {s(S_CG)}, 7')
        b(f's_add_u32 {s(S_D2COL)}, {s(S_T0)}, 1024')
        b(f's_add_u32 {s(S_D3COL)}, {s(S_T0)}, 2048')
        b(f's_mov_b32 {s(S_D2SEL)}, 0')
        b(f's_mov_b32 {s(S_D3SEL)}, 0')
        b(f's_mov_b32 {s(S_D2MASK)}, 0')
        b(f's_mov_b32 {s(S_D3MASK)}, 0')
        b(f's_cmp_lt_u32 {s(S_CG)}, 8')
        b('s_cbranch_scc1 L_desc_done')
        b(f's_cmp_lt_u32 {s(S_CG)}, 11')
        b('s_cbranch_scc0 L_desc_cd')
        b(f's_sub_u32 {s(S_D2COL)}, {s(S_T0)}, 1024')
        b(f's_sub_u32 {s(S_D3COL)}, {s(S_T0)}, 1056')
        b(f's_mov_b32 {s(S_D3SEL)}, 1')
        b(f's_cmp_eq_u32 {s(S_CG)}, 8')
        b(f's_cselect_b32 {s(S_D3MASK)}, 32, 0')
        b('s_branch L_desc_done')
        b.label('L_desc_cd')
        b(f's_lshl_b32 {s(S_T1)}, {s(S_T0)}, 1')
        b(f's_sub_u32 {s(S_T1)}, {s(S_T1)}, 2464')
        b(f's_sub_u32 {s(S_T2)}, {s(S_T0)}, 672')
        b(f's_cmp_lt_u32 {s(S_CG)}, 14')
        b(f's_cselect_b32 {s(S_D2COL)}, {s(S_T1)}, {s(S_T2)}')
        b(f's_add_u32 {s(S_D3COL)}, {s(S_D2COL)}, 128')
        b(f's_mov_b32 {s(S_D2SEL)}, 1')
        b(f's_mov_b32 {s(S_D3SEL)}, 1')
        b.label('L_desc_done')
        for r in range(32):
            b(f'v_mov_b32 {v(V_ACC0 + r)}, 0')
        if OPT.get('sym', 1) and OPT.get('pro2', 1):
            b.add(x_chunk_items(2, 'x2'))
            b.add(w_piece_items(2, R0, 'x2'))
            b.flush()
        if not OPT.get('sym', 1):
            b(f's_cmp_eq_u32 {s(S_W)}, 3')
            b('s_cbranch_scc1 L_L1P')
        return b.b

    def prefetch_items(self):
        def touch(srdreg, mul, off=0):
            return [f's_mul_i32 {s(S_Q0)}, {s(S_WG)}, {mul}',
                    ('t', f'buffer_load_dword {v(V_DUM)}, {v(V_TCH)}, {s(srdreg, 4)}, {s(S_Q0)} offen offset:{off}', dict(nodst=True))]
        it = []
        pre = lambda ptr, n: [f's_mov_b32 {s(SRD_U)}, {s(ptr)}', f's_mov_b32 {s(SRD_U + 1)}, {s(ptr + 1)}',
                              f's_mov_b32 {s(SRD_U + 2)}, {hex(n)}', f's_mov_b32 {s(SRD_U + 3)}, 0x20000']
        it.append(pre(P_WQKV, 512 * 3072) + touch(SRD_U, 6144))
        it.append(pre(P_WIN, 512 * 2752) + touch(SRD_U, 5504))
        for k in range(4):
            it.append([f's_mul_i32 {s(S_Q0)}, {s(S_WG)}, 32768', f's_add_u32 {s(S_Q0)}, {s(S_Q0)}, {8192 * k}',
                       ('t', f'buffer_load_dword {v(V_DUM)}, {v(V_TCH)}, {s(SRD_A, 4)}, {s(S_Q0)} offen', dict(nodst=True))])
        it.append(pre(P_WOUT, 688 * 1024) + touch(SRD_U, 2752))
        it.append(pre(P_WO, 512 * 1024) + touch(SRD_U, 2048))
        return it

    def slab1(self, loader):
        b = St(self, 'L1L' if loader else 'L1P')
        if not loader:
            b.label('L_L1P')
            pf = self.prefetch_items() if OPT.get('pf', 1) else []
        n0 = b.mark()
        for c in range(8):
            if loader:
                b.wait_vm(f'x{c}')
            if c == 4:
                b(f'v_add_u32 {v(V_NON)}, {hex(NONCE_K)}, {v(V_E)}')
                b(f'v_readfirstlane_b32 {s(S_N)}, {v(V_NON)}')
            b.wait_lds()
            b('s_barrier')
            if c == 0:
                dstamp(b, 2)
            if OPT.get('l1st') and c in (0, 1, 2, 4, 6):
                stamp(b, {0: 13, 1: 14, 2: 15, 4: 19, 6: 22}[c])
            m5 = None
            if c <= 4:
                if OPT.get('sym', 1):
                    b.add(x_chunk_items(c + 3, f'x{c + 3}'))
                    b.add(w_piece_items(c + 3, R0, f'x{c + 3}'))
                elif loader:
                    b.add(l1_items(c + 2))
                    m5 = c + 2
                else:
                    b.add(pf[:2])
                    pf = pf[2:]
            else:
                if c == 5:
                    self.switch_slab(b, S_D2SEL, S_D2COL, S_D2MASK)
                for p in {5: (4, 5), 6: (6, 7), 7: ()}[c]:
                    b.add(w_piece_items(p, R2, 'w2a' if OPT.get('ilv', 0) else 'w2'))
                if c == 7 and OPT.get('tch', 0) & 4:
                    self.w3_touch(b)
            if OPT.get('l1late', 1):
                b.period = 0
            else:
                b.pop(1)
                b.period = OPT.get('l1p', 6) if loader else 8
            for kk in range(4):
                K = 4 * c + kk
                b(f'ds_read_b128 {a(A_X + 4 * K, 4)}, {v(V_XRO + kk)}')
                wf = V_WF + 8 * (K & 3)
                for ch in range(2):
                    for t in range(2):
                        b(f'ds_read_b64_tr_b16 {v(wf + 4 * ch + 2 * t, 2)}, {v(V_WR + ch)} offset:{2048 * K + 512 * t}')
                if K >= OPT.get('l1lag', 2):
                    self.mfma_pair_R(b, K - OPT.get('l1lag', 2))
                if kk == 2 and m5 is not None:
                    b.flush()
                    l1_item5(self, b, m5)
                    b.add(l1_w_items(m5))
            b.flush()
            b.period = 0
            if c < 7:
                d = 16384 if (c + 1) % 4 != 0 else -49152
                for kk in range(4):
                    if d > 0:
                        b(f'v_add_u32 {v(V_XRO + kk)}, {d}, {v(V_XRO + kk)}')
                    else:
                        b(f'v_subrev_u32 {v(V_XRO + kk)}, {-d}, {v(V_XRO + kk)}')
        for K in range(32 - OPT.get('l1lag', 2), 32):
            self.mfma_pair_R(b, K)
        b.weave_from(n0, G=OPT.get('l1g', 6), adv=OPT.get('l1adv', 2))
        if OPT.get('ilv', 0):
            b.wait_vm('w2a')
        b.wait_lds()
        b('s_barrier')
        stamp(b, 1)
        dstamp(b, 3)
        b(f's_cmp_lt_u32 {s(S_CG)}, 8')
        b('s_cbranch_scc1 L_roleA')
        b(f's_cmp_lt_u32 {s(S_CG)}, 11')
        b('s_cbranch_scc1 L_roleB')
        b(f's_cmp_lt_u32 {s(S_CG)}, 14')
        b('s_cbranch_scc1 L_roleC')
        b('s_branch L_roleD')
        return b.b

    def switch_slab(self, b, sel, col, mask):
        with b.atomic():
            b(f's_cmp_eq_u32 {s(sel)}, 0')
            b(f's_mov_b32 {s(S_RS)}, 2752')
            b(f's_cmov_b32 {s(S_RS)}, 3072')
            b(f's_mov_b32 {s(S_COL)}, {s(col)}')
            b(f's_mov_b32 {s(S_MASK)}, {s(mask)}')
            set_w_srd(b, sel)
            wd_voffsets(b)

    def mfma_pair_R(self, b, K):
        wf = V_WF + 8 * (K & 3)
        for ch in range(2):
            acc = V_ACC0 + 16 * ch
            b(f'v_mfma_f32_32x32x16_bf16 {v(acc, 16)}, {v(wf + 4 * ch, 4)}, {a(A_X + 4 * K, 4)}, {v(acc, 16)}')

    def touch_setup(self, b):
        b(f'v_lshrrev_b32 {v(V_T0)}, 3, {v(V_LANE)}')
        b(f'v_lshlrev_b32 {v(V_T0)}, 12, {v(V_T0)}')
        b(f'v_and_b32 {v(V_T0 + 1)}, 7, {v(V_LANE)}')
        b(f'v_lshl_add_u32 {v(V_TCH)}, {v(V_T0 + 1)}, 7, {v(V_T0)}')
        b(f'v_lshlrev_b32 {v(V_TW1)}, 10, {v(V_LANE)}')
        b(f'v_mov_b32 {v(V_TW2)}, {v(V_TW1)}')
        b(f'v_mov_b32 {v(V_T0)}, {hex(OOB)}')
        b(f'v_cmp_lt_u32 vcc, 21, {v(V_LANE)}')
        b(f'v_cndmask_b32 {v(V_TW1)}, {v(V_TW1)}, {v(V_T0)}, vcc')
        b(f'v_cmp_lt_u32 vcc, 15, {v(V_LANE)}')
        b(f'v_cndmask_b32 {v(V_TW2)}, {v(V_TW2)}, {v(V_T0)}, vcc')
        srd(b, SRD_U, P_WOUT, 688 * 1024)
        srd(b, SRD_X, P_WO, 512 * 1024)

    def touch_items(self):
        T = OPT.get('tch', 0)
        it = []
        if T & 1:
            for k in range(2):
                it.append([f's_and_b32 {s(S_Q0)}, {s(S_J)}, 3',
                           f's_lshl_b32 {s(S_Q0)}, {s(S_Q0)}, 16',
                           f's_add_u32 {s(S_Q0)}, {s(S_Q0)}, {s(S_AS)}'] +
                          ([f's_add_u32 {s(S_Q0)}, {s(S_Q0)}, {8 * 4096}'] if k else []) +
                          [('t', f'buffer_load_dword {v(V_DUM)}, {v(V_TCH)}, {s(SRD_A, 4)}, {s(S_Q0)} offen', dict(nodst=True))])
        if T & 8:
            it.append([f's_lshl2_add_u32 {s(S_Q0)}, {s(S_WG)}, {s(S_W)}',
                       f's_lshl_b32 {s(S_Q0)}, {s(S_Q0)}, 13',
                       f'v_lshlrev_b32 {v(V_T0)}, 7, {v(V_LANE)}',
                       ('t', f'buffer_load_dword {v(V_DUM)}, {v(V_T0)}, {s(SRD_A, 4)}, {s(S_Q0)} offen', dict(nodst=True))])
        if T & 2:
            it.append([f's_lshr_b32 {s(S_Q0)}, {s(S_WG)}, 5',
                       f's_mul_i32 {s(S_Q1)}, {s(S_Q0)}, 86',
                       f's_mul_i32 {s(S_Q0)}, {s(S_W)}, 22',
                       f's_add_u32 {s(S_Q0)}, {s(S_Q0)}, {s(S_Q1)}',
                       f's_lshl_b32 {s(S_Q0)}, {s(S_Q0)}, 10',
                       f's_lshl_b32 {s(S_Q1)}, {s(S_J)}, 7',
                       f's_add_u32 {s(S_Q0)}, {s(S_Q0)}, {s(S_Q1)}',
                       ('t', f'buffer_load_dword {v(V_DUM)}, {v(V_TW1)}, {s(SRD_U, 4)}, {s(S_Q0)} offen', dict(nodst=True))])
            it.append([f's_lshr_b32 {s(S_Q0)}, {s(S_WG)}, 5',
                       f's_lshl_b32 {s(S_Q0)}, {s(S_Q0)}, 2',
                       f's_add_u32 {s(S_Q0)}, {s(S_Q0)}, {s(S_W)}',
                       f's_lshl_b32 {s(S_Q0)}, {s(S_Q0)}, 14',
                       f's_lshl_b32 {s(S_Q1)}, {s(S_J)}, 7',
                       f's_add_u32 {s(S_Q0)}, {s(S_Q0)}, {s(S_Q1)}',
                       ('t', f'buffer_load_dword {v(V_DUM)}, {v(V_TW2)}, {s(SRD_X, 4)}, {s(S_Q0)} offen', dict(nodst=True))])
        return it

    def w3_touch(self, b):
        with b.atomic():
            b(f's_cmp_eq_u32 {s(S_D3SEL)}, 0')
            b(f's_cselect_b32 {s(SRD_U)}, {s(P_WQKV)}, {s(P_WIN)}')
            b(f's_cselect_b32 {s(SRD_U + 1)}, {s(P_WQKV + 1)}, {s(P_WIN + 1)}')
            b(f's_mov_b32 {s(SRD_U + 2)}, {hex(512 * 2752)}')
            b(f's_cmov_b32 {s(SRD_U + 2)}, {hex(512 * 3072)}')
            b(f's_mov_b32 {s(SRD_U + 3)}, 0x20000')
            b(f's_mov_b32 {s(S_T0)}, 2752')
            b(f's_cmov_b32 {s(S_T0)}, 3072')
            b(f'v_and_b32 {v(V_T0)}, 15, {v(V_LANE)}')
            b(f'v_mul_lo_u32 {v(V_T0)}, {v(V_T0)}, {s(S_T0)}')
            b(f'v_bfe_u32 {v(V_T0 + 1)}, {v(V_LANE)}, 4, 1')
            b(f'v_mul_u32_u24 {v(V_T0 + 1)}, 124, {v(V_T0 + 1)}')
            b(f'v_add_u32 {v(V_T0)}, {v(V_T0)}, {v(V_T0 + 1)}')
            b(f's_max_i32 {s(S_T1)}, {s(S_D3COL)}, 0')
            b(f'v_add_u32 {v(V_T0)}, {s(S_T1)}, {v(V_T0)}')
            b(f'v_mov_b32 {v(V_T0 + 1)}, {hex(OOB)}')
            b(f'v_cmp_lt_u32 vcc, 31, {v(V_LANE)}')
            b(f'v_cndmask_b32 {v(V_T0)}, {v(V_T0)}, {v(V_T0 + 1)}, vcc')
            b(f's_lshr_b32 {s(S_T1)}, {s(S_WG)}, 5')
            b(f's_lshl2_add_u32 {s(S_T1)}, {s(S_T1)}, {s(S_W)}')
            b(f's_lshl_b32 {s(S_T1)}, {s(S_T1)}, 4')
            b(f's_mul_i32 {s(S_T1)}, {s(S_T1)}, {s(S_T0)}')
            b(f'buffer_load_dword {v(V_DUM)}, {v(V_T0)}, {s(SRD_U, 4)}, {s(S_T1)} offen', tag='t', nodst=True)

    def post_l1(self, b, role):
        it = []
        self.touch_setup(b)
        for p in (0, 1, 2, 3):
            it += w_piece_items(p, R2, 'w2')
        it += self.touch_items()
        if OPT.get('c0early', 1) == 1 and not OPT.get('ilv', 0):
            it += a_chunk_items(0, 'f0')
        return it

    def w3_items(self, b, region=R0):
        b.flush()
        self.switch_slab(b, S_D3SEL, S_D3COL, S_D3MASK)
        for p in range(8):
            b.add(w_piece_items(p, region, 'w3'))
        if OPT.get('c0early', 1) == 2:
            b.add(a_chunk_items(0, 'f0'))

    def set_wr(self, b, region):
        with b.atomic():
            tr_addr(b, V_WR, False)
            if region:
                b(f'v_add_u32 {v(V_WR)}, {region}, {v(V_WR)}')
            b(f'v_xor_b32 {v(V_WR + 1)}, 64, {v(V_WR)}')

    def main_loop(self, b, orient, hooks=None, pop_every=1, order=None, co=None, acc0=V_ACC1, pop2=0, co_end=27):
        hooks = hooks or {}
        order = order or list(range(32))
        D = 2
        units = list(co.units) if co else []

        def rd(P):
            K = order[P]
            wf = V_WF + 8 * (P & 3)
            for ch in range(2):
                for t in range(2):
                    b(f'ds_read_b64_tr_b16 {v(wf + 4 * ch + 2 * t, 2)}, {v(V_WR + ch)} offset:{2048 * K + 512 * t}')
        sv = b.period
        b.period = 0
        n0 = b.mark()
        for P in range(D):
            rd(P)
        for P in range(32):
            for fn in hooks.get(('pre', P), []):
                fn(b)
            if P + D < 32:
                rd(P + D)
            K = order[P]
            wf = V_WF + 8 * (P & 3)
            x = a(A_X + 4 * K, 4)
            for ch in range(2):
                acc = acc0 + 16 * ch
                c = '0' if P == 0 else v(acc, 16)
                if orient == 'T':
                    b(f'v_mfma_f32_32x32x16_bf16 {v(acc, 16)}, {v(wf + 4 * ch, 4)}, {x}, {c}')
                else:
                    b(f'v_mfma_f32_32x32x16_bf16 {v(acc, 16)}, {x}, {v(wf + 4 * ch, 4)}, {c}')
            for fn in hooks.get(P, []):
                fn(b, 4 if P + D < 32 else 0)
            if OPT.get('s3st') and self.s3flag and P in (7, 15, 19, 23, 27):
                stamp(b, {7: 11, 15: 13, 19: 15, 23: 19, 27: 22}[P])
            if units:
                left = max(co_end - P, 1)
                ninstr = sum(len(u) for u in units)
                take = -(-ninstr // left)
                k = 0
                while units and k < take:
                    u = units.pop(0)
                    for (text, tag, meta) in u:
                        b.b(text, tag=tag, **meta)
                    k += len(u)
            if P % pop_every == pop_every - 1:
                b.pop(2 if P < pop2 else 1)
        assert not units
        b.weave_from(n0, G=(7 if co else OPT.get('mlg', 5)), adv=OPT.get('mladv', 2))
        b.period = sv

    def apipe_hooks(self, first_K, step):
        hooks = {}

        def mk_issue(p):
            return lambda b, younger: b.add(a_piece_items(p >> 1, p & 1, f'h{p & 1}'))

        def mk_move(p):
            def f(b, younger):
                b.ensure(f'a{p >> 1}_{p & 1}')
                b.wait_vm(f'a{p >> 1}_{p & 1}')
                a_piece_read(b, p >> 1, p & 1, f'h{p & 1}')
            return f

        def mk_refill(p):
            def f(b, younger):
                b(f's_waitcnt lgkmcnt({younger})')
                b.add(a_piece_items(p >> 1, p & 1, f'h{p & 1}'))
            return f
        return hooks, mk_issue, mk_move, mk_refill

    def z2_epilogue(self, b, mid=None):
        for g in range(4):
            gelu_group(b, [V_ACC0 + 8 * g + k for k in range(8)], V_TMP)
            if g == 0 and mid:
                mid()
        s1, s2 = V_ST, V_ST + 1
        t = V_TMP
        if OPT.get('pk', 1) and not NOPK[0]:
            p, q = t + 2, t + 4
            b(f'v_pk_add_f32 {v(p, 2)}, {v(V_ACC0, 2)}, {v(V_ACC0 + 2, 2)}')
            b(f'v_pk_mul_f32 {v(q, 2)}, {v(V_ACC0, 2)}, {v(V_ACC0, 2)}')
            for k in range(4, 32, 2):
                b(f'v_pk_add_f32 {v(p, 2)}, {v(p, 2)}, {v(V_ACC0 + k, 2)}')
            for k in range(2, 32, 2):
                b(f'v_pk_fma_f32 {v(q, 2)}, {v(V_ACC0 + k, 2)}, {v(V_ACC0 + k, 2)}, {v(q, 2)}')
            b(f'v_mov_b32 {v(s1)}, {v(p)}')
            b(f'v_mov_b32 {v(t)}, {v(p + 1)}')
            b(f'v_mov_b32 {v(s2)}, {v(q)}')
            b(f'v_mov_b32 {v(t + 1)}, {v(q + 1)}')
        else:
            b(f'v_add_f32 {v(s1)}, {v(V_ACC0)}, {v(V_ACC0 + 1)}')
            b(f'v_mul_f32 {v(s2)}, {v(V_ACC0)}, {v(V_ACC0)}')
            b(f'v_add_f32 {v(t)}, {v(V_ACC0 + 2)}, {v(V_ACC0 + 3)}')
            b(f'v_mul_f32 {v(t + 1)}, {v(V_ACC0 + 1)}, {v(V_ACC0 + 1)}')
            for k in range(4, 32, 2):
                b(f'v_add_f32 {v(s1)}, {v(s1)}, {v(V_ACC0 + k)}')
                b(f'v_add_f32 {v(t)}, {v(t)}, {v(V_ACC0 + k + 1)}')
            for k in range(2, 32, 2):
                b(f'v_fmac_f32 {v(s2)}, {v(V_ACC0 + k)}, {v(V_ACC0 + k)}')
                b(f'v_fmac_f32 {v(t + 1)}, {v(V_ACC0 + k + 1)}, {v(V_ACC0 + k + 1)}')
        with b.atomic():
            b(f'v_add_f32 {v(s1)}, {v(s1)}, {v(t)}')
            b(f'v_add_f32 {v(s2)}, {v(s2)}, {v(t + 1)}')
            b(f'v_permlane32_swap_b32 {v(s1)}, {v(s2)}')
            b(f'v_add_f32 {v(s1)}, {v(s1)}, {v(s2)}')
            b(f'v_mov_b32 {v(s2)}, {s(S_N)}')
            b(f's_mul_i32 {s(S_T0)}, {s(S_TB)}, 5632')
            b(f's_lshl_b32 {s(S_T1)}, {s(S_CG)}, 9')
            b(f's_add_u32 {s(S_T0)}, {s(S_T0)}, {s(S_T1)}')
            b(f's_add_u32 {s(S_T0)}, {s(S_T0)}, {WS_STATS}')
            b(f'buffer_store_dwordx2 {v(s1, 2)}, {v(V_L8)}, {s(SRD_WS, 4)}, {s(S_T0)} offen sc1', tag='st')
        stamp(b, 2)

    def stats_issue(self, b):
        with b.atomic():
            b(f's_mul_i32 {s(S_T5)}, {s(S_TB)}, 5632')
            b(f's_add_u32 {s(S_T5)}, {s(S_T5)}, {WS_STATS}')
            b(f's_add_u32 {s(S_T4)}, {s(S_T5)}, 4096')
            for js in range(11):
                so = S_T5 if js < 8 else S_T4
                off = 512 * js if js < 8 else 512 * js - 4096
                b(f'buffer_load_dwordx2 {v(V_STAT + 2 * js, 2)}, {v(V_L8)}, {s(SRD_WS, 4)}, {s(so)} offen offset:{off} sc1')

    def stats_check_code(self, b):
        t = V_TMP
        b(f'v_min3_u32 {v(t)}, {v(V_STAT + 1)}, {v(V_STAT + 3)}, {v(V_STAT + 5)}')
        b(f'v_max3_u32 {v(t + 1)}, {v(V_STAT + 1)}, {v(V_STAT + 3)}, {v(V_STAT + 5)}')
        for js in range(3, 11, 2):
            b(f'v_min3_u32 {v(t)}, {v(t)}, {v(V_STAT + 2 * js + 1)}, {v(V_STAT + 2 * js + 3)}')
            b(f'v_max3_u32 {v(t + 1)}, {v(t + 1)}, {v(V_STAT + 2 * js + 1)}, {v(V_STAT + 2 * js + 3)}')
        b(f'v_xor_b32 {v(t)}, {s(S_N)}, {v(t)}')
        b(f'v_xor_b32 {v(t + 1)}, {s(S_N)}, {v(t + 1)}')
        b(f'v_or_b32 {v(t)}, {v(t)}, {v(t + 1)}')
        b(f'v_cmp_ne_u32 vcc, 0, {v(t)}')

    def z2_norm(self, b, after_check=None):
        cont, slow = self.lab('ZC'), self.lab('ZS')
        with b.atomic():
            self.stats_check_code(b)
            b(f's_cbranch_vccnz {slow}')
            b.label(cont)
        if after_check:
            after_check()
        sb = Block('tmp')
        sb(f's_sleep 1')
        sb(f's_mul_i32 {s(S_T5)}, {s(S_TB)}, 5632')
        sb(f's_add_u32 {s(S_T5)}, {s(S_T5)}, {WS_STATS}')
        sb(f's_add_u32 {s(S_T4)}, {s(S_T5)}, 4096')
        for js in range(11):
            so = S_T5 if js < 8 else S_T4
            off = 512 * js if js < 8 else 512 * js - 4096
            sb(f'buffer_load_dwordx2 {v(V_STAT + 2 * js, 2)}, {v(V_L8)}, {s(SRD_WS, 4)}, {s(so)} offen offset:{off} sc1')
        sb('s_waitcnt vmcnt(0)')
        self.stats_check_code(sb)
        txt = '\n'.join('    ' + i.text for i in sb.ins)
        self.slow.append(f'''{slow}:
    s_mov_b32 {s(S_CNT)}, {SPIN_MAX}
{slow}_l:
{txt}
{slow_mark(30)}    s_cbranch_vccz {cont}
    s_sub_u32 {s(S_CNT)}, {s(S_CNT)}, 1
    s_cmp_lg_u32 {s(S_CNT)}, 0
    s_cbranch_scc1 {slow}_l
    s_branch {cont}''')
        t = V_TMP
        b(f'v_add_f32 {v(t)}, {v(V_STAT)}, {v(V_STAT + 2)}')
        b(f'v_add_f32 {v(t + 1)}, {v(V_STAT + 4)}, {v(V_STAT + 6)}')
        for js in range(4, 11, 2):
            b(f'v_add_f32 {v(t)}, {v(t)}, {v(V_STAT + 2 * js)}')
            if js + 1 < 11:
                b(f'v_add_f32 {v(t + 1)}, {v(t + 1)}, {v(V_STAT + 2 * js + 2)}')
        b(f'v_add_f32 {v(t)}, {v(t)}, {v(t + 1)}')
        b(f'v_mov_b32 {v(t + 1)}, {v(t)}')
        b(f'v_permlane32_swap_b32 {v(t)}, {v(t + 1)}')
        b(f'v_mul_f32 {v(t)}, {hex(f2u(1.0 / 688))}, {v(t)}')
        b(f'v_mul_f32 {v(t + 1)}, {hex(f2u(1.0 / 688))}, {v(t + 1)}')
        b(f'v_fma_f32 {v(t + 1)}, -{v(t)}, {v(t)}, {v(t + 1)}')
        b(f'v_max_f32 {v(t + 1)}, 0, {v(t + 1)}')
        b(f'v_add_f32 {v(t + 1)}, {hex(f2u(1e-5))}, {v(t + 1)}')
        b(f'v_rsq_f32 {v(t + 1)}, {v(t + 1)}')
        b(f'v_mul_f32 {v(t)}, {v(t)}, {v(t + 1)}')
        b(f'v_sub_f32 {v(t)}, 0, {v(t)}')
        w0 = t + 2
        r0 = t + 6
        with b.atomic():
            b(f's_lshl_b32 {s(S_T0)}, {s(S_W)}, 14')
            b(f's_add_u32 {s(S_T0)}, {s(S_T0)}, {(R0 + 8192) if OPT.get("aplan", 1) == 3 else (R2 + 8192)}')
            b(f'v_and_b32 {v(w0)}, 31, {v(V_LANE)}')
            b(f'v_lshrrev_b32 {v(w0 + 1)}, 5, {v(V_LANE)}')
            b(f'v_and_b32 {v(w0 + 2)}, 15, {v(V_LANE)}')
            b(f'v_xor_b32 {v(w0 + 1)}, {v(w0 + 1)}, {v(w0 + 2)}')
            b(f'v_lshlrev_b32 {v(w0 + 1)}, 3, {v(w0 + 1)}')
            b(f'v_lshl_add_u32 {v(w0)}, {v(w0)}, 7, {v(w0 + 1)}')
            b(f'v_add_u32 {v(w0)}, {s(S_T0)}, {v(w0)}')
            b(f'v_bfe_u32 {v(r0)}, {v(V_LANE)}, 2, 2')
            b(f'v_lshrrev_b32 {v(r0 + 1)}, 5, {v(V_LANE)}')
            b(f'v_lshl_add_u32 {v(r0)}, {v(r0 + 1)}, 3, {v(r0)}')
            b(f'v_bfe_u32 {v(r0 + 1)}, {v(V_LANE)}, 4, 1')
            b(f'v_and_b32 {v(r0 + 2)}, 3, {v(V_LANE)}')
            b(f'v_lshl_add_u32 {v(r0 + 1)}, {v(r0 + 1)}, 2, {v(r0 + 2)}')
            b(f'v_xor_b32 {v(r0 + 1)}, {v(r0 + 1)}, {v(r0)}')
            b(f'v_lshlrev_b32 {v(r0 + 1)}, 3, {v(r0 + 1)}')
            b(f'v_lshl_add_u32 {v(r0)}, {v(r0)}, 7, {v(r0 + 1)}')
            b(f'v_add_u32 {v(r0)}, {s(S_T0)}, {v(r0)}')
        ra = r0 + 1
        for bb in range(2):
            for tt in range(2):
                b(f'v_xor_b32 {v(ra + 2 * bb + tt)}, {8 * ((8 * bb) ^ (4 * tt))}, {v(r0)}')
        pk = V_PV
        for bb in range(2):
            for j in range(4):
                r = V_ACC0 + 16 * bb + 4 * j
                for k in range(4):
                    b(f'v_fma_f32 {v(r + k)}, {v(r + k)}, {v(t + 1)}, {v(t)}')
                b(f'v_cvt_pk_bf16_f32 {v(pk + 8 * bb + 2 * j)}, {v(r)}, {v(r + 1)}')
                b(f'v_cvt_pk_bf16_f32 {v(pk + 8 * bb + 2 * j + 1)}, {v(r + 2)}, {v(r + 3)}')
                K = 8 * bb + 2 * j
                if K:
                    b(f'v_xor_b32 {v(w0 + 1)}, {8 * K}, {v(w0)}')
                    ad = w0 + 1
                else:
                    ad = w0
                b(f'ds_write_b64 {v(ad)}, {v(pk + 8 * bb + 2 * j, 2)}')
        b.wait_lds()
        fr = V_TMP + 16
        for bb in range(2):
            for kq in range(2):
                for tt in range(2):
                    b(f'ds_read_b64_tr_b16 {v(fr + 8 * bb + 4 * kq + 2 * tt, 2)}, {v(ra + 2 * bb + tt)} offset:{512 * tt + 2048 * kq}')
        with b.atomic():
            b(f's_lshl_b32 {s(S_T0)}, {s(S_CG)}, 18')
            b(f's_lshl_b32 {s(S_T1)}, {s(S_TB)}, 11')
            b(f's_add_u32 {s(S_T0)}, {s(S_T0)}, {s(S_T1)}')
            b(f's_add_u32 {s(S_T0)}, {s(S_T0)}, {WS_Z2N}')
            b(f's_add_u32 {s(S_T1)}, {s(S_T0)}, {128 * 1024}')
            for bb in range(2):
                for kq in range(2):
                    so = S_T0 if bb == 0 else S_T1
                    b(f'buffer_store_dwordx4 {v(fr + 8 * bb + 4 * kq, 4)}, {v(V_L16)}, {s(SRD_WS, 4)}, {s(so)} offen offset:{1024 * kq} sc1', tag='z2n')
        stamp(b, 3)

    def flag_store(self, b, base, tagwait):
        b.wait_vm(tagwait)
        with b.atomic():
            b(f's_lshl4_add_u32 {s(S_T0)}, {s(S_RB)}, {s(S_CG)}')
            b(f's_lshl4_add_u32 {s(S_T0)}, {s(S_T0)}, {s(S_W)}')
            b(f's_lshl_b32 {s(S_T0)}, {s(S_T0)}, 2')
            b(f's_add_u32 {s(S_T0)}, {s(S_T0)}, {base}')
            b(f'v_mov_b32 {v(V_POLL)}, {s(S_N)}')
            b(f'buffer_store_dword {v(V_POLL)}, off, {s(SRD_WS, 4)}, {s(S_T0)} sc1', tag='flag')

    def t_epilogue(self, b, kind, acc, mid=None, midg=1):
        out = V_PV
        for g in range(4):
            if g == midg and mid:
                mid()
            xs = [acc + 8 * g + k for k in range(8)]
            if kind == 'gelu':
                gelu_group(b, xs, V_TMP)
            else:
                phi_group(b, xs, V_TMP)
            for k in range(4):
                b(f'v_cvt_pk_bf16_f32 {v(out + 4 * g + k)}, {v(xs[2 * k])}, {v(xs[2 * k + 1])}')
            so = S_O0 if g < 2 else S_O1
            b(f'buffer_store_dwordx4 {v(out + 4 * g, 4)}, {v(V_L16)}, {s(SRD_WS, 4)}, {s(so)} offen offset:{1024 * (g & 1)} sc1', tag='p1')

    def set_out_addr(self, b, kind, slab_code):
        with b.atomic():
            for l in slab_code:
                b(l)
            base, stride = (WS_PQ, 32768) if kind == 'q' else (WS_Z1F, 45056)
            b(f's_lshl_b32 {s(S_T4)}, {s(S_T4)}, 12')
            b(f's_add_u32 {s(S_T4)}, {s(S_T4)}, {base}')
            b(f's_mul_i32 {s(S_O0)}, {s(S_TB)}, {stride}')
            b(f's_add_u32 {s(S_O0)}, {s(S_O0)}, {s(S_T4)}')
            b(f's_add_u32 {s(S_O1)}, {s(S_O0)}, 2048')

    def k_epilogue(self, b):
        for g in range(4):
            xs = [V_ACC1 + 8 * g + k for k in range(8)]
            phi_group(b, xs, V_TMP)
            for k in range(4):
                b(f'v_cvt_pk_bf16_f32 {v(V_PK + 4 * g + k)}, {v(xs[2 * k])}, {v(xs[2 * k + 1])}')

    def v_epilogue(self, b):
        for k in range(16):
            b(f'v_cvt_pk_bf16_f32 {v(V_PV + k)}, {v(V_ACC1 + 2 * k)}, {v(V_ACC1 + 2 * k + 1)}')
        ones = V_TMP
        for k in range(4):
            b(f'v_mov_b32 {v(ones + k)}, 0x3f803f80')
        for par in range(2):
            for ch in range(2):
                g = 2 * ch + par
                kv, zz = V_KV + 16 * ch, V_KZ + 16 * ch
                c0 = '0' if par == 0 else v(kv, 16)
                c1 = '0' if par == 0 else v(zz, 16)
                b(f'v_mfma_f32_32x32x16_bf16 {v(kv, 16)}, {v(V_PK + 4 * g, 4)}, {v(V_PV + 4 * g, 4)}, {c0}')
                b(f'v_mfma_f32_32x32x16_bf16 {v(zz, 16)}, {v(V_PK + 4 * g, 4)}, {v(ones, 4)}, {c1}')

    def kv_finish(self, b, R0=R0):
        with b.atomic():
            b(f'v_and_b32 {v(V_T0)}, 31, {v(V_LANE)}')
            b(f'v_cmp_gt_u32 vcc, 16, {v(V_T0)}')
            for ch in range(2):
                kv, zz = V_KV + 16 * ch, V_KZ + 16 * ch
                for k in range(8):
                    b(f'v_cndmask_b32 {v(kv + k)}, {v(zz + k)}, {v(kv + k)}, vcc')
                for k in range(8, 16):
                    b(f'v_cndmask_b32 {v(kv + k)}, {v(kv + k)}, {v(zz + k)}, vcc')
            b('s_barrier')
            b(f's_lshl_b32 {s(S_T0)}, {s(S_W)}, 11')
            b(f's_add_u32 {s(S_T0)}, {s(S_T0)}, {R0}')
            b(f'v_add_u32 {v(V_T0)}, {s(S_T0)}, {v(V_L16)}')
            for d in range(4):
                for q in range(2):
                    b(f'ds_write_b128 {v(V_T0)}, {v(V_KV + 8 * d + 4 * q, 4)} offset:{8192 * d + 1024 * q}')
            b(f's_lshl_b32 {s(S_T0)}, {s(S_W)}, 13')
            b(f's_add_u32 {s(S_T0)}, {s(S_T0)}, {R0}')
            b(f'v_add_u32 {v(V_T0)}, {s(S_T0)}, {v(V_L16)}')
            b.wait_lds()
            b('s_barrier')
            X = V_KZ
            for src in range(4):
                for q in range(2):
                    b(f'ds_read_b128 {v(X + 8 * src + 4 * q, 4)}, {v(V_T0)} offset:{2048 * src + 1024 * q}')
            for k in range(8):
                b(f'v_add_f32 {v(X + k)}, {v(X + k)}, {v(X + 8 + k)}')
                b(f'v_add_f32 {v(X + 16 + k)}, {v(X + 16 + k)}, {v(X + 24 + k)}')
            for k in range(8):
                b(f'v_add_f32 {v(X + k)}, {v(X + k)}, {v(X + 16 + k)}')
            b(f's_lshl2_add_u32 {s(S_T0)}, {s(S_CG)}, {s(S_W)}')
            b(f's_lshl_b32 {s(S_T0)}, {s(S_T0)}, 15')
            b(f's_lshl_b32 {s(S_T1)}, {s(S_RB)}, 10')
            b(f's_add_u32 {s(S_T0)}, {s(S_T0)}, {s(S_T1)}')
            b(f's_add_u32 {s(S_T0)}, {s(S_T0)}, {WS_KVP}')
            for q in range(2):
                if q:
                    b(f's_add_u32 {s(S_T0)}, {s(S_T0)}, 16384')
                b(f'buffer_store_dwordx4 {v(X + 4 * q, 4)}, {v(V_L16)}, {s(SRD_WS, 4)}, {s(S_T0)} offen sc1', tag='p1')

    def pre_slab(self, b, tag):
        b.ensure(tag)
        b.wait_vm(tag)
        b('s_barrier')

    def mv_piece(self, b, p):
        b.ensure(f'a{p >> 1}_{p & 1}')
        b.wait_vm(f'a{p >> 1}_{p & 1}')
        a_piece_read(b, p >> 1, p & 1, f'h{p & 1}')

    def fetch_piece(self, b, p):
        b.add(a_piece_items(p >> 1, p & 1, f'h{p & 1}'))

    def mv_chunk(self, b, c, slot):
        b.ensure(f'a{c}_0')
        b.ensure(f'a{c}_1')
        b.wait_vm([f'a{c}_0', f'a{c}_1'])
        a_chunk_read(b, c, slot)

    def slab3_hooks(self, extra=None):
        h = {}

        def add(K, fn):
            h.setdefault(K, []).append(fn)
        K0 = OPT.get('k0', 20)
        if OPT.get('aplan', 1) == 2:
            for K, fn in (extra or {}).items():
                add(K, fn)
            return h
        add(K0, lambda b, y: self.mv_chunk(b, 0, 'f0'))
        add(K0 + 1, lambda b, y: (b(f's_waitcnt lgkmcnt({y})'), b.add(a_chunk_items(3, 'f0'))))
        add(K0 + 4, lambda b, y: self.mv_chunk(b, 1, 'f1'))
        add(K0 + 5, lambda b, y: (b(f's_waitcnt lgkmcnt({y})'), b.add(a_chunk_items(4, 'f1'))))
        add(K0 + 8, lambda b, y: self.mv_chunk(b, 2, 'f2'))
        add(K0 + 9, lambda b, y: (b(f's_waitcnt lgkmcnt({y})'), b.add(a_chunk_items(5, 'f2'))))
        for K, fn in (extra or {}).items():
            add(K, fn)
        return h

    def mid_a(self, b):
        if OPT.get('aplan', 1) == 2:
            return
        if not OPT.get('c0early', 1):
            b.add(a_chunk_items(0, 'f0'))
        b.add(a_chunk_items(1, 'f1'))

    def mid_b(self, b):
        pass

    def g_pass(self, b, R0=R0, hooks3=None):
        ga = V_T0 + 4
        b.wait_vm('gw')
        with b.atomic():
            b(f'v_lshrrev_b32 {v(ga)}, 5, {v(V_LANE)}')
            b(f'v_lshlrev_b32 {v(ga)}, 4, {v(ga)}')
            b(f's_lshl_b32 {s(S_T0)}, {s(S_W)}, 10')
            b(f's_add_u32 {s(S_T0)}, {s(S_T0)}, {R0}')
            b(f'v_add_u32 {v(ga)}, {s(S_T0)}, {v(ga)}')
        acc = V_ACC1
        sv = b.period
        b.period = 0
        hooks = hooks3 if hooks3 is not None else self.slab3_hooks()
        for K in range(32):
            wf = V_WF + 4 * (K & 3)
            if K == 0:
                for k2 in range(3):
                    b(f'ds_read_b128 {v(V_WF + 4 * k2, 4)}, {v(ga)} offset:{32 * k2}')
            if K + 3 < 32:
                b(f'ds_read_b128 {v(V_WF + 4 * ((K + 3) & 3), 4)}, {v(ga)} offset:{32 * (K + 3)}')
            b(f'v_mfma_f32_32x32x16_bf16 {v(acc, 16)}, {v(wf, 4)}, {a(A_X + 4 * K, 4)}, {"0" if K == 0 else v(acc, 16)}')
            for fn in hooks.get(K, []):
                fn(b, 1 if K + 3 < 32 else 0)
            b.pop(1)
        b.period = sv
        t = V_TMP
        b(f'v_mul_f32 {v(t)}, {hex(f2u(-LOG2E))}, {v(acc)}')
        b(f'v_exp_f32 {v(t)}, {v(t)}')
        b(f'v_add_f32 {v(t)}, 1.0, {v(t)}')
        b(f'v_rcp_f32 {v(t)}, {v(t)}')
        with b.atomic():
            b(f'v_and_b32 {v(t + 1)}, 31, {v(V_LANE)}')
            b(f'v_lshlrev_b32 {v(t + 1)}, 2, {v(t + 1)}')
            b(f's_lshl_b32 {s(S_T0)}, {s(S_TB)}, 7')
            b(f's_add_u32 {s(S_T0)}, {s(S_T0)}, {WS_GATE}')
            b(f's_cmp_eq_u32 {s(S_CG)}, 14')
            b(f's_cselect_b32 {s(S_T0)}, {s(S_T0)}, {hex(OOB)}')
            b(f'buffer_store_dword {v(t)}, {v(t + 1)}, {s(SRD_WS, 4)}, {s(S_T0)} offen sc1', tag='p1')

    def pre_epi3(self, b):
        if OPT.get('aplan', 1) == 2:
            b.add(a_chunk_items(1, 'f1'))
            b.add(a_chunk_items(2, 'f2'))

    def a_tail(self, b):
        b.flush()
        if OPT.get('early', 0):
            return
        if OPT.get('s1late', 1) == 2:
            s1_issue(self, b)
        self.flag_store(b, WS_FP1, 'p1')

    def slab2_ilv(self, b, orient, rec, has_w3):
        self.set_wr(b, R2)
        hooks = {('pre', 14): [lambda bb: (bb.ensure('w2'), bb.wait_vm('w2'), bb('s_barrier'))]}
        if has_w3:
            hooks[5] = [lambda bb, y: (self.w3_items(bb), bb.add(a_chunk_items(0, 'f0')) if OPT.get('c0early', 1) == 1 else None)]
        elif OPT.get('c0early', 1) == 1:
            hooks[5] = [lambda bb, y: bb.add(a_chunk_items(0, 'f0'))]
        order = list(range(16, 32)) + list(range(16))
        self.main_loop(b, orient, hooks, order=order, co=rec, pop2=4)

    def role_AB(self, role):
        b = St(self, 'ROLE' + role)
        b.label('L_role' + role)
        b.add(self.post_l1(b, role))
        orient = 'N' if role == 'A' else 'T'
        if OPT.get('ilv', 0):
            rec = Rec()
            NOPK[0] = True
            self.z2_epilogue(rec)
            NOPK[0] = False
            self.slab2_ilv(b, orient, rec, True)
        elif OPT.get('w3z', 0):
            b.period = 9
            self.z2_epilogue(b, mid=lambda: self.w3_items(b))
            self.pre_slab(b, 'w2')
            self.set_wr(b, R2)
            stamp(b, 16)
            self.main_loop(b, orient, pop_every=1)
        else:
            b.period = 14
            self.z2_epilogue(b)
            self.pre_slab(b, 'w2')
            self.set_wr(b, R2)
            stamp(b, 16)
            self.w3_items(b)
            self.s3flag = (OPT.get('s3st') == 2)
            self.main_loop(b, orient, pop_every=1)
            self.s3flag = False
        stamp(b, 17)
        b.flush()
        b('s_barrier')
        self.stats_issue(b)
        b.period = 12
        if role == 'A':
            self.k_epilogue(b)
        else:
            self.set_out_addr(b, 'q', [f's_sub_u32 {s(S_T4)}, {s(S_CG)}, 8'])
            self.t_epilogue(b, 'phi', V_ACC1)
        stamp(b, 18)
        if OPT.get('aearly', 0):
            b.period = 7
            self.z2_norm(b, after_check=lambda: self.mid_a(b))
        else:
            self.z2_norm(b)
            self.mid_a(b)
        if OPT.get('aplan', 1) != 2:
            b.add(a_chunk_items(2, 'f2'))
        self.mid_b(b)
        self.pre_slab(b, 'w3')
        self.set_wr(b, R0)
        stamp(b, 20)
        hooks = self.slab3_hooks({OPT.get('kz', 12): lambda bb, y: self.flag_store(bb, WS_FZ2, 'z2n')})
        self.s3flag = (OPT.get('s3st') == 3)
        self.main_loop(b, orient, hooks)
        self.s3flag = False
        stamp(b, 21)
        b.period = 8
        late = OPT.get('s1late', 1)
        early = OPT.get('early', 0)
        if early:
            late = 0
        if not late:
            s1_issue(self, b)
        self.pre_epi3(b)
        if role == 'A':
            self.v_epilogue(b)
            if late == 1:
                s1_issue(self, b)
            if early:
                early_prime(self, b)
            self.kv_finish(b)
        else:
            self.set_out_addr(b, 'z1', [f's_sub_u32 {s(S_T4)}, {s(S_CG)}, 8'])
            mid = (lambda: early_prime(self, b)) if early else ((lambda: s1_issue(self, b)) if late == 1 else None)
            self.t_epilogue(b, 'gelu', V_ACC1, mid=mid, midg=2)
        stamp(b, 23)
        self.a_tail(b)
        b('s_branch L_p1_done')
        return b.b

    def p3_slab2_hooks(self):
        h = {}

        def add(K, fn):
            h.setdefault(K, []).append(fn)
        add(0, lambda b, y: (b.add(a_chunk_items(1, 'g1')), b.add(a_chunk_items(2, 'g2'))))
        k0, k1, k2 = OPT.get('m0', 12), OPT.get('m1', 26), OPT.get('m2', 99)
        add(k0, lambda b, y: self.mv_chunk(b, 0, 'f0'))
        add(k0 + 1, lambda b, y: (b(f's_waitcnt lgkmcnt({y})'), b.add(a_chunk_items(3, 'f0'))))
        if k1 < 32:
            add(k1, lambda b, y: self.mv_chunk(b, 1, 'g1'))
        if k2 < 32:
            add(k2, lambda b, y: self.mv_chunk(b, 2, 'g2'))
        return h

    def p3_late_moves(self, b):
        if OPT.get('m1', 26) >= 32:
            self.mv_chunk(b, 1, 'g1')
        if OPT.get('m2', 99) >= 32:
            self.mv_chunk(b, 2, 'g2')

    def p3_slab3_hooks(self, extra=None):
        h = {}

        def add(K, fn):
            h.setdefault(K, []).append(fn)
        add(14, lambda b, y: self.mv_chunk(b, 4, 'f0'))
        add(15, lambda b, y: (b(f's_waitcnt lgkmcnt({y})'), b.add(a_chunk_items(7, 'f0'))))
        add(22, lambda b, y: self.mv_chunk(b, 5, 'g1'))
        add(30, lambda b, y: self.mv_chunk(b, 6, 'g2'))
        for K, fn in (extra or {}).items():
            add(K, fn)
        return h

    def p3_mid(self, b):
        self.mv_chunk(b, 3, 'f0')
        b.wait_lds()
        b.add(a_chunk_items(4, 'f0'))
        b.add(a_chunk_items(5, 'g1'))
        b.add(a_chunk_items(6, 'g2'))

    def p3_tail(self, b):
        b.flush()
        self.flag_store(b, WS_FP1, 'p1')
        self.mv_chunk(b, 7, 'f0')
        b.wait_lds()

    def role3(self, role):
        b = St(self, 'ROLE' + role)
        b.label('L_role' + role)
        z2 = role in 'AB'
        orient = 'N' if role == 'A' else 'T'
        b.add(self.post_l1(b, role))
        if z2:
            b.period = 14
            self.z2_epilogue(b)
        else:
            b.period = 8
            self.set_out_addr(b, 'q', [f's_sub_u32 {s(S_T4)}, {s(S_CG)}, 8'])
            self.t_epilogue(b, 'phi', V_ACC0)
        self.pre_slab(b, 'w2')
        self.set_wr(b, R2)
        b.flush()
        stamp(b, 16)
        self.main_loop(b, orient, self.p3_slab2_hooks())
        stamp(b, 17)
        b.flush()
        b('s_barrier')
        if z2:
            self.stats_issue(b)
        if role != 'D':
            self.w3_items(b, R2)
        else:
            srd(b, SRD_T, P_GW, 1024)
            b(f's_lshl_b32 {s(S_T0)}, {s(S_W)}, 10')
            b(f's_add_u32 m0, {s(S_T0)}, {R2}')
            b(f's_lshl_b32 {s(S_T0)}, {s(S_ROT)}, 7')
            b(f'v_add_u32 {v(V_T0)}, {s(S_T0)}, {v(V_L16)}')
            b(f'v_and_b32 {v(V_T0)}, 1023, {v(V_T0)}')
            b(f'buffer_load_dwordx4 {v(V_T0)}, {s(SRD_T, 4)}, 0 offen lds', tag='gw')
        b.period = OPT.get('p3p', 12)
        if role == 'A':
            self.k_epilogue(b)
        elif role == 'B':
            self.set_out_addr(b, 'q', [f's_sub_u32 {s(S_T4)}, {s(S_CG)}, 8'])
            self.t_epilogue(b, 'phi', V_ACC1)
        elif role == 'C':
            self.set_out_addr(b, 'z1', [f's_lshl_b32 {s(S_T4)}, {s(S_CG)}, 1', f's_sub_u32 {s(S_T4)}, {s(S_T4)}, 19'])
            self.t_epilogue(b, 'gelu', V_ACC1)
        else:
            self.set_out_addr(b, 'z1', [f's_sub_u32 {s(S_T4)}, {s(S_CG)}, 5'])
            self.t_epilogue(b, 'gelu', V_ACC1)
        stamp(b, 18)
        self.p3_late_moves(b)
        if z2:
            self.z2_norm(b)
        self.p3_mid(b)
        if role != 'D':
            self.pre_slab(b, 'w3')
            stamp(b, 20)
            extra = {OPT.get('kz', 12): lambda bb, y: self.flag_store(bb, WS_FZ2, 'z2n')} if z2 else None
            self.main_loop(b, orient, self.p3_slab3_hooks(extra))
            stamp(b, 21)
            b.period = 8
            if role == 'A':
                self.v_epilogue(b)
                s1_issue(self, b)
                self.kv_finish(b, R2)
            elif role == 'B':
                self.set_out_addr(b, 'z1', [f's_sub_u32 {s(S_T4)}, {s(S_CG)}, 8'])
                self.t_epilogue(b, 'gelu', V_ACC1, mid=lambda: s1_issue(self, b), midg=2)
            else:
                self.set_out_addr(b, 'z1', [f's_lshl_b32 {s(S_T4)}, {s(S_CG)}, 1', f's_sub_u32 {s(S_T4)}, {s(S_T4)}, 18'])
                self.t_epilogue(b, 'gelu', V_ACC1, mid=lambda: s1_issue(self, b), midg=2)
        else:
            self.g_pass(b, R2, self.p3_slab3_hooks())
            s1_issue(self, b)
        stamp(b, 23)
        self.p3_tail(b)
        b('s_branch L_p1_done')
        return b.b

    def role_CD(self, role):
        b = St(self, 'ROLE' + role)
        b.label('L_role' + role)
        ilv = OPT.get('ilv', 0)

        def gate_dma():
            srd(b, SRD_T, P_GW, 1024)
            b(f's_lshl_b32 {s(S_T0)}, {s(S_W)}, 10')
            b(f's_add_u32 m0, {s(S_T0)}, {R0}')
            b(f's_lshl_b32 {s(S_T0)}, {s(S_ROT)}, 7')
            b(f'v_add_u32 {v(V_T0)}, {s(S_T0)}, {v(V_L16)}')
            b(f'v_and_b32 {v(V_T0)}, 1023, {v(V_T0)}')
            b(f'buffer_load_dwordx4 {v(V_T0)}, {s(SRD_T, 4)}, 0 offen lds', tag='gw')
        if ilv:
            if role == 'D':
                gate_dma()
            b.add(self.post_l1(b, role))
            rec = Rec()
            NOPK[0] = True
            self.set_out_addr(rec, 'q', [f's_sub_u32 {s(S_T4)}, {s(S_CG)}, 8'])
            self.t_epilogue(rec, 'phi', V_ACC0)
            NOPK[0] = False
            self.slab2_ilv(b, 'T', rec, role == 'C')
        else:
            b.add(self.post_l1(b, role))
            b.period = 8
            self.set_out_addr(b, 'q', [f's_sub_u32 {s(S_T4)}, {s(S_CG)}, 8'])
            self.t_epilogue(b, 'phi', V_ACC0)
            self.pre_slab(b, 'w2')
            self.set_wr(b, R2)
            if role == 'C':
                self.w3_items(b)
            else:
                b.flush()
                gate_dma()
                if OPT.get('c0early', 1) == 2:
                    b.add(a_chunk_items(0, 'f0'))
            self.main_loop(b, 'T', pop_every=1)
        b.flush()
        b('s_barrier')
        self.mid_a(b)
        if OPT.get('aplan', 1) != 2:
            b.add(a_chunk_items(2, 'f2'))
        b.period = 12
        if role == 'C':
            acc3 = V_ACC1
            if ilv and OPT.get('ilvc', 1):
                rec = Rec()
                NOPK[0] = True
                self.set_out_addr(rec, 'z1', [f's_lshl_b32 {s(S_T4)}, {s(S_CG)}, 1', f's_sub_u32 {s(S_T4)}, {s(S_T4)}, 19'])
                self.t_epilogue(rec, 'gelu', V_ACC1)
                NOPK[0] = False
                self.pre_slab(b, 'w3')
                self.set_wr(b, R0)
                acc3 = V_ACC0
                self.main_loop(b, 'T', self.slab3_hooks(), co=rec, acc0=V_ACC0)
            else:
                self.set_out_addr(b, 'z1', [f's_lshl_b32 {s(S_T4)}, {s(S_CG)}, 1', f's_sub_u32 {s(S_T4)}, {s(S_T4)}, 19'])
                self.t_epilogue(b, 'gelu', V_ACC1)
                self.mid_b(b)
                self.pre_slab(b, 'w3')
                self.set_wr(b, R0)
                self.main_loop(b, 'T', self.slab3_hooks())
            b.period = 8
            late = OPT.get('s1late', 1)
            early = OPT.get('early', 0)
            if early:
                late = 0
            if not late:
                s1_issue(self, b)
            self.pre_epi3(b)
            self.set_out_addr(b, 'z1', [f's_lshl_b32 {s(S_T4)}, {s(S_CG)}, 1', f's_sub_u32 {s(S_T4)}, {s(S_T4)}, 18'])
            mid = (lambda: early_prime(self, b)) if early else ((lambda: s1_issue(self, b)) if late == 1 else None)
            self.t_epilogue(b, 'gelu', acc3, mid=mid, midg=2)
        else:
            self.set_out_addr(b, 'z1', [f's_sub_u32 {s(S_T4)}, {s(S_CG)}, 5'])
            self.t_epilogue(b, 'gelu', V_ACC1)
            self.mid_b(b)
            self.g_pass(b)
            if OPT.get('s1late', 1) != 2 or OPT.get('early', 0):
                s1_issue(self, b)
            self.pre_epi3(b)
            if OPT.get('early', 0):
                early_prime(self, b)
        self.a_tail(b)
        b('s_branch L_p1_done')
        return b.b

    def build(self):
        P = self.prologue()
        LL = self.slab1(True)
        LP = self.slab1(False) if not OPT.get('sym', 1) else None
        if OPT.get('aplan', 1) == 3:
            A, B, C, D = [self.role3(r) for r in 'ABCD']
        else:
            A = self.role_AB('A')
            B = self.role_AB('B')
            C = self.role_CD('C')
            D = self.role_CD('D')
        E1 = St(self, 'E1')
        E1.label('L_p1_done')
        stamp(E1, 4)
        dstamp(E1, 4)
        from phase23 import emit_phase23
        P2, PH, PL, P3b = emit_phase23(self)
        END = self.blk('END')
        END.label('L_END')
        END('s_endpgm')
        P3 = Block('PRO_w3')
        P3.ins = [i for i in P.ins if not i.meta.get('loader')]
        rests = [[P2, PH, P3b], [P2, PL, P3b]]
        paths = [[P, LL, R, E1.b] + rest + [END] for R in (A, B, C, D) for rest in rests]
        if LP is not None:
            paths += [[P3, LP, R, E1.b] + rest + [END] for R in (A, B, C, D) for rest in rests]
        finalize(self.blocks, paths)

    def text(self):
        out = []
        for b in self.blocks:
            out.append(f'; ---- {b.name}')
            out.append(render(b))
        return '\n'.join(out) + '\n' + '\n'.join(self.slow) + '\n'


HEADER = '''; Fused gated-mix kernel (linear attention branch + gMLP branch + gate) for gfx950, one persistent launch.
;
;          gelu / phi epilogues, LayerNorm row statistics exchanged as tagged 8-byte granules, partial kv per row block
; Hand-offs between workgroups: sc1 (write-through) stores, drained, then a flag word = launch nonce; consumers poll
; with sc1 loads (bounded spins).  The nonce is (epoch word found in d_ws) + constant; one wave writes it back at the end.
; @launch grid=(256,1,1) block=(256,1,1) lds=163840
.amdgcn_target "amdgcn-amd-amdhsa--gfx950"
.text
.globl {k}
.p2align 8
.type {k},@function
{k}:
'''
FOOTER = '''
L_code_end:
    s_endpgm
.section .rodata,"a"
.p2align 6
.amdhsa_kernel {k}
  .amdhsa_next_free_vgpr 512
  .amdhsa_next_free_sgpr 102
  .amdhsa_accum_offset 256
  .amdhsa_group_segment_fixed_size 0
  .amdhsa_kernarg_size 96
  .amdhsa_user_sgpr_count 2
  .amdhsa_user_sgpr_kernarg_segment_ptr 1
  .amdhsa_system_sgpr_workgroup_id_x 1
  .amdhsa_float_denorm_mode_32 3
.end_amdhsa_kernel
'''


def generate(**opt):
    OPT.update(opt)
    g = Gen()
    g.build()
    txt = g.text()
    if OPT.get('x_plainst'):
        txt = '\n'.join(l.replace(' sc1', '') if 'buffer_store' in l else l for l in txt.split('\n'))
    if OPT.get('x_noload'):
        m = OPT['x_noload']
        out = []
        for l in txt.split('\n'):
            t = l.strip()
            if t.startswith('buffer_load'):
                isA = 's[4:7]' in t
                isB = 'v[1' in t.split(',')[0] and 'sc1' in t and 'dwordx4' in t and ' lds' not in t
                isdma = t.endswith('lds')
                if (m & 1 and isA) or (m & 2 and isB) or (m & 4 and isdma and not isA) or (m & 8):
                    out.append('    s_nop 0')
                    continue
            if m & 16 and t.startswith('buffer_store') and 'v31' not in t:
                out.append('    s_nop 0')
                continue
            out.append(l)
        txt = '\n'.join(out)
    if OPT.get('x_nopolls'):
        txt = '\n'.join(('    s_nop 0' if (l.strip().startswith('s_cbranch_vccnz PS_') or l.strip().startswith('s_cbranch_vccnz ZS_')) else l) for l in txt.split('\n'))
    return HEADER.format(k=KNAME) + txt + FOOTER.format(k=KNAME)


if __name__ == '__main__':
    opt = {}
    for arg in sys.argv[2:]:
        k, val = arg.split('=')
        opt[k] = int(val) if val.lstrip('-').isdigit() else val
    import gen as _g
    txt = _g.generate(**opt)
    open(sys.argv[1], 'w').write(txt)
```

```python
from asmlib import *
import gen as G
from gen import (v, a, s, f2u, LOG2E, OOB, stamp, srd, tr_addr, St,
                 WS_FZ2, WS_FP1, WS_FY, WS_FKV, WS_GATE, WS_KVF, WS_KVP, WS_Z2N, WS_Z1F, WS_PQ, WS_Y, WS_SIZE, WS_EPOCH,
                 SRD_X, SRD_W, SRD_WS, SRD_T, SRD_U, S_W, S_WG, S_I, S_J, S_N, S_T0, S_T1, S_T2, S_T3, S_T4, S_T5, S_T6, S_T7,
                 S_ROT, S_RB, S_CG, S_Q0, S_Q1,
                 P_BSP, P_WO, P_WOUT, P_OUT, V_LANE, V_L16, V_L8, V_T0, V_POLL)

S_FB0, S_NBLK = 70, 71
S_BO = 72
S_PART = 73
S_U = 74
S_YO, S_ZO = 75, 76
S_WOB = 77
S_KVO = 78
S_BB = 80
S_KVD = 91
S_FBN = 88
SRD_KV = 44

V_PA = 8
V_PR = 14
V_XW = 16
V_XR = 20
V_BS = 21
V_G0 = 22
V_NG = 26
V_BNG = 27
V_KL = 32
ACC = [64, 96]
RING = 128
D = 12
V_GS = 176
V_X = 192
V_Z1 = 224
V_KS = 236
V_WO = 240
A_PQ, A_KV, A_Y = 0, 64, 96
KVSCR = 38912
PRIV = 40960
XOFF = 22528


def flag_addr(b, dst, n, tmp):
    b(f'v_and_b32 {v(tmp)}, 3, {v(n)}')
    b(f'v_lshrrev_b32 {v(n)}, 2, {v(n)}')
    b(f'v_lshlrev_b32 {v(n)}, 4, {v(n)}')
    b(f'v_add_lshl_u32 {v(dst)}, {v(n)}, {v(tmp)}, 2')


def s1_issue(g, b):
    t0, t1 = V_T0, V_T0 + 1
    with b.atomic():
        b(f's_mul_i32 {s(S_FB0)}, {s(S_J)}, 3')
        b(f's_min_u32 {s(S_FB0)}, {s(S_FB0)}, 20')
        b(f's_cmp_lt_u32 {s(S_J)}, 6')
        b(f's_cselect_b32 {s(S_NBLK)}, 3, 2')
        b(f's_add_u32 {s(S_T2)}, {s(S_FB0)}, {s(S_NBLK)}')
        b(f's_sub_u32 {s(S_T3)}, {s(S_T2)}, 1')
        if G.OPT.get('nbrot', 0):
            b(f's_lshr_b32 {s(S_T0)}, {s(S_WG)}, {6 if G.OPT.get("map", 0) else 5}')
            b(f's_mul_i32 {s(S_T1)}, {s(S_T0)}, 11')
            b(f's_lshr_b32 {s(S_T1)}, {s(S_T1)}, 5')
            b(f's_mul_i32 {s(S_T1)}, {s(S_T1)}, 3')
            b(f's_sub_u32 {s(S_T1)}, {s(S_T0)}, {s(S_T1)}')
            b(f's_and_b32 {s(S_T0)}, {s(S_T0)}, 1')
            b(f's_cmp_eq_u32 {s(S_NBLK)}, 3')
            b(f's_cselect_b32 {s(S_T0)}, {s(S_T1)}, {s(S_T0)}')
        else:
            b(f's_mov_b32 {s(S_T0)}, 0')
        for nb in range(3):
            b(f's_add_u32 {s(S_FBN + nb)}, {s(S_FB0)}, {s(S_T0)}')
            if nb:
                b(f's_add_u32 {s(S_FBN + nb)}, {s(S_FBN + nb)}, {nb}')
            b(f's_cmp_ge_u32 {s(S_FBN + nb)}, {s(S_T2)}')
            b(f's_cselect_b32 {s(S_T1)}, {s(S_NBLK)}, 0')
            b(f's_sub_u32 {s(S_FBN + nb)}, {s(S_FBN + nb)}, {s(S_T1)}')
        b(f's_lshr_b32 {s(S_T0)}, {s(S_FB0)}, 1')
        b(f's_lshr_b32 {s(S_T1)}, {s(S_T3)}, 1')
        b(f's_sub_u32 {s(S_T1)}, {s(S_T1)}, {s(S_T0)}')
        b(f'v_bfe_u32 {v(t0)}, {v(V_LANE)}, 3, 2')
        b(f'v_bfe_u32 {v(t1)}, {v(V_LANE)}, 2, 1')
        b(f'v_mul_u32_u24 {v(t1)}, {s(S_T1)}, {v(t1)}')
        b(f'v_lshl_add_u32 {v(t0)}, {v(t0)}, 4, {v(t1)}')
        b(f's_lshl_b32 {s(S_T2)}, {s(S_W)}, 6')
        b(f's_add_u32 {s(S_T2)}, {s(S_T2)}, {s(S_T0)}')
        b(f'v_add_u32 {v(t0)}, {s(S_T2)}, {v(t0)}')
        b(f'v_and_b32 {v(t1)}, 3, {v(V_LANE)}')
        b(f'v_lshl_add_u32 {v(t0)}, {v(t0)}, 2, {v(t1)}')
        flag_addr(b, V_PA, t0, t1)
        b(f's_mov_b32 {s(S_T7)}, {WS_FZ2}')
        b(f'buffer_load_dword {v(V_PR)}, {v(V_PA)}, {s(SRD_WS, 4)}, {s(S_T7)} offen sc1')


def bload(b, gi):
    nb, n = gi >> 5, gi & 31
    if n % 4 == 0:
        b(f's_add_u32 {s(S_BO)}, {s(G.S_ROT2)}, {n // 4}')
        b(f's_and_b32 {s(S_BO)}, {s(S_BO)}, 7')
        b(f's_lshl_b32 {s(S_BO)}, {s(S_BO)}, 12')
        b(f's_add_u32 {s(S_BO)}, {s(S_BO)}, {s(S_BB)}')
        b(f's_lshl_b32 {s(S_Q1)}, {s(S_FBN + nb)}, 17')
        b(f's_add_u32 {s(S_BO)}, {s(S_BO)}, {s(S_Q1)}')
    b(f'buffer_load_dwordx4 {v(RING + 4 * (gi % D), 4)}, {v(V_L16)}, {s(SRD_WS, 4)}, {s(S_BO)} offen offset:{1024 * (n & 3)} sc1')


NPRIME = 8


def early_prime(g, b):
    b.flush() if G.OPT.get('epf', 0) else None
    with b.atomic():
        b(f's_mov_b32 {s(S_T7)}, {WS_FZ2}')
        g.poll(b, V_PA, s(S_T7), V_PR, first_issued=True, mark=11)
        b(f's_lshl_b32 {s(S_T0)}, {s(S_W)}, 15')
        b(f's_add_u32 {s(S_BB)}, {s(S_T0)}, {WS_Z2N}')
        for gi in range(NPRIME):
            bload(b, gi)


def emit_phase23(g):
    t0, t1, t2 = V_T0, V_T0 + 1, V_T0 + 2
    b = St(g, 'P2')
    early = G.OPT.get('early', 0)
    if not early:
        b(f's_mov_b32 {s(S_T7)}, {WS_FZ2}')
        if not G.OPT.get('x_nos1'):
            g.poll(b, V_PA, s(S_T7), V_PR, first_issued=True, mark=11)
        b(f's_lshl_b32 {s(S_T0)}, {s(S_W)}, 15')
        b(f's_add_u32 {s(S_BB)}, {s(S_T0)}, {WS_Z2N}')
    stamp(b, 5)

    if G.OPT.get('aplan', 1) == 2:
        g.mv_chunk(b, 0, 'f0')
        b.wait_lds()
        b.add(G.a_chunk_items(3, 'f0'))
    for gi in range(NPRIME if early else 0, D):
        bload(b, gi)
        if gi % 2 == 1:
            b.pop(2)
    b.flush()
    b(f'v_lshlrev_b32 {v(V_BS)}, 16, {v(G.V_BSP)}')
    b(f's_lshr_b32 {s(S_T0)}, {s(S_I)}, 1')
    b(f's_lshl_b32 {s(S_T0)}, {s(S_T0)}, 6')
    b(f'v_add_u32 {v(t0)}, {s(S_T0)}, {v(V_LANE)}')
    flag_addr(b, V_PA + 1, t0, t1)
    b(f's_lshl_b32 {s(S_T0)}, {s(S_W)}, 11')
    b(f'v_add_u32 {v(t0)}, {s(S_T0)}, {v(V_L16)}')
    for d in range(4):
        b(f'v_add_u32 {v(V_XW + d)}, {PRIV * d + XOFF}, {v(t0)}')
    b(f's_mul_i32 {s(S_T0)}, {s(S_W)}, {PRIV}')
    b(f's_add_u32 {s(S_T0)}, {s(S_T0)}, {XOFF}')
    b(f'v_add_u32 {v(V_XR)}, {s(S_T0)}, {v(V_L16)}')
    b(f'v_and_b32 {v(t0)}, 31, {v(V_LANE)}')
    b(f'v_lshlrev_b32 {v(V_PA + 5)}, 2, {v(t0)}')
    b(f's_and_b32 {s(S_T0)}, {s(S_W)}, 1')
    b(f's_lshl1_add_u32 {s(S_T0)}, {s(S_I)}, {s(S_T0)}')
    b(f's_mul_i32 {s(S_T0)}, {s(S_T0)}, 45056')
    b(f's_lshr_b32 {s(S_T1)}, {s(S_W)}, 1')
    b(f's_lshl_b32 {s(S_T1)}, {s(S_T1)}, 10')
    b(f's_add_u32 {s(S_T0)}, {s(S_T0)}, {s(S_T1)}')
    b(f's_add_u32 {s(S_ZO)}, {s(S_T0)}, {WS_Z1F}')
    b(f's_add_u32 {s(S_YO)}, {s(S_T0)}, {WS_Y}')
    b(f's_cmp_ge_u32 {s(S_J)}, 6')
    b('s_cbranch_scc1 L_P2L')
    P2 = b.b

    def xw(nb, k):
        d, q = k >> 1, k & 1
        r = ACC[nb & 1] + 16 * (d & 1) + 8 * (d >> 1)
        return f'ds_write_b128 {v(V_XW + d)}, {v(r + 4 * q, 4)} offset:{8192 * (nb & 1) + 1024 * q}'

    def xr(nb, k):
        src, q = k >> 1, k & 1
        return f'ds_read_b128 {v(V_X + 8 * src + 4 * q, 4)}, {v(V_XR)} offset:{8192 * (nb & 1) + 2048 * src + 1024 * q}'

    def xsum(dst, pk=False):
        o = []
        if pk:
            for k in range(0, 8, 2):
                o.append(f'v_pk_add_f32 {v(V_X + k, 2)}, {v(V_X + k, 2)}, {v(V_X + 8 + k, 2)}')
            for k in range(0, 8, 2):
                o.append(f'v_pk_add_f32 {v(V_X + 16 + k, 2)}, {v(V_X + 16 + k, 2)}, {v(V_X + 24 + k, 2)}')
            for k in range(0, 8, 2):
                o.append(f'v_pk_add_f32 {v(dst + k, 2)}, {v(V_X + k, 2)}, {v(V_X + 16 + k, 2)}')
            return o
        for k in range(8):
            o.append(f'v_add_f32 {v(V_X + k)}, {v(V_X + k)}, {v(V_X + 8 + k)}')
        for k in range(8):
            o.append(f'v_add_f32 {v(V_X + 16 + k)}, {v(V_X + 16 + k)}, {v(V_X + 24 + k)}')
        for k in range(8):
            o.append(f'v_add_f32 {v(dst + k)}, {v(V_X + k)}, {v(V_X + 16 + k)}')
        return o

    def ymath(nb, gs):
        o = []
        z = V_Z1 + 4 * nb
        tmp = RING
        pk = G.OPT.get('pk', 1)
        if pk:
            for k in range(0, 8, 2):
                o.append(f'v_pk_fma_f32 {v(gs + k, 2)}, {v(gs + k, 2)}, {v(RING + 8, 2)}, {v(RING + 10, 2)}')
        else:
            for k in range(8):
                o.append(f'v_fma_f32 {v(gs + k)}, {v(gs + k)}, {v(V_NG)}, {v(V_BNG)}')
        for k in range(4):
            o.append(f'v_lshlrev_b32 {v(tmp + 2 * k)}, 16, {v(z + k)}')
            o.append(f'v_and_b32 {v(tmp + 2 * k + 1)}, 0xffff0000, {v(z + k)}')
        if pk:
            for k in range(0, 8, 2):
                o.append(f'v_pk_mul_f32 {v(gs + k, 2)}, {v(gs + k, 2)}, {v(tmp + k, 2)}')
        else:
            for k in range(8):
                o.append(f'v_mul_f32 {v(gs + k)}, {v(gs + k)}, {v(tmp + k)}')
        for k in range(4):
            o.append(f'v_cvt_pk_bf16_f32 {v(z + k)}, {v(gs + 2 * k)}, {v(gs + 2 * k + 1)}')
        return o

    def ystore(b, nb):
        b(f's_lshl_b32 {s(S_T0)}, {s(S_FBN + nb)}, 11')
        b(f's_add_u32 {s(S_T0)}, {s(S_T0)}, {s(S_YO)}')
        b(f'buffer_store_dwordx4 {v(V_Z1 + 4 * nb, 4)}, {v(V_L16)}, {s(SRD_WS, 4)}, {s(S_T0)} offen sc1', tag='y')

    def tail_loads(nblk):
        it = []
        for z in range(nblk):
            it.append([f's_lshl_b32 {s(S_T0)}, {s(S_FBN + z)}, 11',
                       f's_add_u32 {s(S_T0)}, {s(S_T0)}, {s(S_ZO)}',
                       f'buffer_load_dwordx4 {v(V_Z1 + 4 * z, 4)}, {v(V_L16)}, {s(SRD_WS, 4)}, {s(S_T0)} offen sc1'])
        it.append([f's_lshl_b32 {s(S_T0)}, {s(S_I)}, 8',
                   f's_add_u32 {s(S_T0)}, {s(S_T0)}, {WS_GATE}',
                   f'buffer_load_dword {v(V_G0)}, {v(V_PA + 5)}, {s(SRD_WS, 4)}, {s(S_T0)} offen sc1',
                   f'buffer_load_dword {v(V_G0 + 1)}, {v(V_PA + 5)}, {s(SRD_WS, 4)}, {s(S_T0)} offen offset:128 sc1'])
        for hd in range(8):
            for tb in range(2):
                l = []
                if hd % 4 == 0:
                    l = [f's_lshl1_add_u32 {s(S_Q0 + tb)}, {s(S_I)}, {tb}',
                         f's_lshl_b32 {s(S_Q0 + tb)}, {s(S_Q0 + tb)}, 15',
                         f's_lshl_b32 {s(S_T1)}, {s(S_W)}, 13',
                         f's_add_u32 {s(S_Q0 + tb)}, {s(S_Q0 + tb)}, {s(S_T1)}',
                         f's_add_u32 {s(S_Q0 + tb)}, {s(S_Q0 + tb)}, {WS_PQ + 1024 * hd}']
                l.append(f'buffer_load_dwordx4 {a(A_PQ + 4 * (2 * hd + tb), 4)}, {v(V_L16)}, {s(SRD_WS, 4)}, {s(S_Q0 + tb)} offen offset:{1024 * (hd & 3)} sc1')
                it.append(l)
        return it

    def gate_setup():
        return [[f's_and_b32 {s(S_T0)}, {s(S_W)}, 1',
                 f's_cmp_eq_u32 {s(S_T0)}, 0',
                 f's_cselect_b64 vcc, -1, 0',
                 f'v_cndmask_b32 {v(V_NG)}, {v(V_G0 + 1)}, {v(V_G0)}, vcc'],
                f'v_sub_f32 {v(V_NG)}, 1.0, {v(V_NG)}',
                f'v_mul_f32 {v(V_BNG)}, {v(V_BS)}, {v(V_NG)}',
                f'v_mov_b32 {v(RING + 8)}, {v(V_NG)}', f'v_mov_b32 {v(RING + 9)}, {v(V_NG)}',
                f'v_mov_b32 {v(RING + 10)}, {v(V_BNG)}', f'v_mov_b32 {v(RING + 11)}, {v(V_BNG)}']

    def emit1(b, x):
        if isinstance(x, list):
            for y in x:
                emit1(b, y)
        elif isinstance(x, tuple):
            b(x[1], tag=x[0])
        else:
            b(x)

    def main_stream(light):
        b = St(g, 'P2L' if light else 'P2H')
        nblk = 2 if light else 3
        NG = 32 * nblk
        if light:
            b.label('L_P2L')
            b(f's_lshl_b32 {s(S_U)}, {s(S_I)}, 1')
            b(f's_and_b32 {s(S_T0)}, {s(S_J)}, 1')
            b(f's_add_u32 {s(S_U)}, {s(S_U)}, {s(S_T0)}')
            b(f's_lshr_b32 {s(S_T0)}, {s(S_U)}, 3')
            b(f'v_lshrrev_b32 {v(t0)}, 2, {v(V_LANE)}')
            b(f'v_lshlrev_b32 {v(t0)}, 4, {v(t0)}')
            b(f'v_add_u32 {v(t0)}, {s(S_T0)}, {v(t0)}')
            b(f'v_and_b32 {v(t1)}, 3, {v(V_LANE)}')
            b(f'v_lshl_add_u32 {v(t0)}, {v(t0)}, 2, {v(t1)}')
            flag_addr(b, V_PA + 2, t0, t1)
            b(f's_mov_b32 {s(SRD_KV)}, {s(SRD_WS)}')
            b(f's_mov_b32 {s(SRD_KV + 1)}, {s(SRD_WS + 1)}')
            b(f's_cmp_lt_u32 {s(S_W)}, 2')
            b(f's_cselect_b32 {s(SRD_KV + 2)}, {hex(WS_SIZE - (G.OPT.get('wsoff', 0) << 20))}, 0')
            b(f's_mov_b32 {s(SRD_KV + 3)}, 0x20000')
            b(f's_lshl_b32 {s(S_KVO)}, {s(S_U)}, 14')
            b(f's_and_b32 {s(S_T0)}, {s(S_W)}, 1')
            b(f's_lshl_b32 {s(S_T0)}, {s(S_T0)}, 13')
            b(f's_add_u32 {s(S_KVO)}, {s(S_KVO)}, {s(S_T0)}')
            b(f's_add_u32 {s(S_KVO)}, {s(S_KVO)}, {WS_KVP}')
        fill = []
        items = []

        def drain(n):
            k = 0
            while fill and k < n:
                x = fill.pop(0)
                emit1(b, x)
                k += len(x) if isinstance(x, list) else 1

        if G.OPT.get('kvf2', 1):
            o = G.OPT.get('kvo', 1)
            KV_ISSUE, KV_CHECK, KV_SUM, KV_WR, KV_RD, KV_FLAG, KV_OWNBAR = [(10, 22, 38, 43, 45, 61, False), (4, 14, 30, 35, 35, 52, True), (10, 22, 38, 43, 45, 56, False), (14, 26, 40, 43, 45, 61, False)][o]
        else:
            KV_ISSUE, KV_CHECK, KV_SUM, KV_WR, KV_RD, KV_FLAG, KV_OWNBAR = 20, 34, 52, 58, 58, 999, True

        KLQ = [176, 180, 184, 188, 240, 244, 248, 252] if G.OPT.get('kvf2', 1) else [V_KL + 4 * r for r in range(8)]

        def kv_flag(b):
            b.wait_vm('kvf')
            b(f's_lshl_b32 {s(S_T0)}, {s(S_U)}, 4')
            b(f's_add_u32 {s(S_T0)}, {s(S_T0)}, {WS_FKV}')
            b(f'v_mov_b32 {v(V_POLL)}, {s(S_N)}')
            b(f'buffer_store_dword {v(V_POLL)}, off, {s(SRD_KV, 4)}, {s(S_T0)} sc1', tag='flag')
        n0 = b.mark()
        GP = NG - 36
        GT = NG - D
        for gi in range(NG):
            nb, n = gi >> 5, gi & 31
            acc = ACC[nb & 1]
            for tb in range(2):
                c = '0' if n == 0 else v(acc + 16 * tb, 16)
                b(f'v_mfma_f32_32x32x16_bf16 {v(acc + 16 * tb, 16)}, {v(RING + 4 * (gi % D), 4)}, {a(8 * n + 4 * tb, 4)}, {c}')
            if gi + D < NG:
                bload(b, gi + D)
            if G.OPT.get('aplan', 1) == 2:
                mv = {1: 1, 2: 5, 3: 9, 4: 13, 5: 17, 6: 21, 7: 25}
                for c, st in mv.items():
                    if gi == st:
                        g.mv_chunk(b, c, f'f{c % 3}')
                    if gi == st + 1 and c + 3 < 8:
                        b.wait_lds()
                        b.add(G.a_chunk_items(c + 3, f'f{c % 3}'))
            elif G.OPT.get('aplan', 1) == 1:
                if gi == 4:
                    g.mv_chunk(b, 3, 'f0')
                if gi == 5:
                    b.wait_lds()
                    b.add(G.a_chunk_items(6, 'f0'))
                if gi == 10:
                    g.mv_chunk(b, 4, 'f1')
                if gi == 11:
                    b.wait_lds()
                    b.add(G.a_chunk_items(7, 'f1'))
                if gi == 16:
                    g.mv_chunk(b, 5, 'f2')
                if gi == 22:
                    g.mv_chunk(b, 6, 'f0')
                if gi == 26:
                    g.mv_chunk(b, 7, 'f1')
            if gi == NG - G.OPT.get('kvg', 6) and G.OPT.get('kvearly', 0):
                b(f'v_and_b32 {v(t0)}, 15, {v(V_LANE)}')
                b(f's_lshl_b32 {s(S_T0)}, {s(S_W)}, 4')
                b(f'v_add_u32 {v(t0)}, {s(S_T0)}, {v(t0)}')
                b(f'v_lshlrev_b32 {v(V_PA + 3)}, 4, {v(t0)}')
                b(f's_mov_b32 {s(S_T7)}, {WS_FKV}')
                b(f'buffer_load_dword {v(V_PR + 1)}, {v(V_PA + 3)}, {s(SRD_WS, 4)}, {s(S_T7)} offen sc1')
            if gi == 14 and early:
                g.flag_store(b, WS_FP1, 'p1')
            if gi == 31:
                b.wait_lds()
                b('s_barrier')
            if b.q:
                b.pop(2)
            if gi == GP:
                b(f's_mov_b32 {s(S_T7)}, {WS_FP1}')
                b(f'buffer_load_dword {v(V_PR)}, {v(V_PA + 1)}, {s(SRD_WS, 4)}, {s(S_T7)} offen sc1')
            if light and gi == KV_ISSUE:
                b(f's_mov_b32 {s(S_T7)}, {WS_FP1}')
                b(f'buffer_load_dword {v(V_PR + 1)}, {v(V_PA + 2)}, {s(SRD_WS, 4)}, {s(S_T7)} offen sc1')
            if light and gi == KV_CHECK:
                b(f's_mov_b32 {s(S_T7)}, {WS_FP1}')
                g.poll(b, V_PA + 2, s(S_T7), V_PR + 1, first_issued=True, mark=13)
                for r in range(8):
                    l = []
                    if r % 4 == 0:
                        l = [f's_add_u32 {s(S_Q0)}, {s(S_KVO)}, {1024 * r}']
                    l.append(f'buffer_load_dwordx4 {v(KLQ[r], 4)}, {v(V_L16)}, {s(SRD_KV, 4)}, {s(S_Q0)} offen offset:{1024 * (r & 3)} sc1')
                    items.append(l)
            if nb > 0:
                if 2 <= n < 10:
                    b(xw(nb - 1, n - 2))
                if n == 12:
                    b.wait_lds()
                    b('s_barrier')
                if 12 <= n < 20:
                    b(xr(nb - 1, n - 12))
                if n == 21:
                    fill.extend(xsum(V_GS + 8 * (nb - 1)))
            if gi == GT:
                drain(len(fill))
                b(f's_mov_b32 {s(S_T7)}, {WS_FP1}')
                g.poll(b, V_PA + 1, s(S_T7), V_PR, first_issued=True, mark=15)
                items.extend(tail_loads(nblk))
            if light and gi == KV_SUM:
                for r in range(0, 8, 2):
                    for k in range(4):
                        fill.append(f'v_add_f32 {v(KLQ[r] + k)}, {v(KLQ[r] + k)}, {v(KLQ[r + 1] + k)}')
                for k in range(4):
                    fill.append(f'v_add_f32 {v(KLQ[0] + k)}, {v(KLQ[0] + k)}, {v(KLQ[2] + k)}')
                    fill.append(f'v_add_f32 {v(KLQ[4] + k)}, {v(KLQ[4] + k)}, {v(KLQ[6] + k)}')
                for k in range(4):
                    fill.append(f'v_add_f32 {v(V_KS + k)}, {v(KLQ[0] + k)}, {v(KLQ[4] + k)}')
            if light and gi == KV_WR:
                drain(len(fill))
                b(f's_mul_i32 {s(S_T0)}, {s(S_W)}, {PRIV}')
                b(f's_add_u32 {s(S_T0)}, {s(S_T0)}, {KVSCR}')
                b(f'v_add_u32 {v(t0)}, {s(S_T0)}, {v(V_L16)}')
                b(f'ds_write_b128 {v(t0)}, {v(V_KS, 4)}')
                if KV_OWNBAR:
                    b.wait_lds()
                    b('s_barrier')
            if light and gi == KV_RD:
                b(f'v_add_u32 {v(t0)}, {PRIV + KVSCR}, {v(V_L16)}')
                b(f'ds_read_b128 {v(KLQ[4], 4)}, {v(t0)}')
                for k in range(4):
                    b(f'v_add_f32 {v(V_KS + k)}, {v(V_KS + k)}, {v(KLQ[4] + k)}')
                b(f'v_cvt_pk_bf16_f32 {v(V_KS)}, {v(V_KS)}, {v(V_KS + 1)}')
                b(f'v_cvt_pk_bf16_f32 {v(V_KS + 1)}, {v(V_KS + 2)}, {v(V_KS + 3)}')
                b(f's_cmp_eq_u32 {s(S_W)}, 0')
                b(f's_cselect_b32 {s(SRD_KV + 2)}, {hex(ws_rec())}, 0')
                b(f's_lshr_b32 {s(S_T0)}, {s(S_U)}, 1')
                b(f's_lshl_b32 {s(S_T0)}, {s(S_T0)}, 10')
                b(f's_and_b32 {s(S_T1)}, {s(S_U)}, 1')
                b(f's_lshl_b32 {s(S_T1)}, {s(S_T1)}, 3')
                b(f's_add_u32 {s(S_T0)}, {s(S_T0)}, {s(S_T1)}')
                b(f's_add_u32 {s(S_T0)}, {s(S_T0)}, {WS_KVF}')
                b(f'buffer_store_dwordx2 {v(V_KS, 2)}, {v(V_L16)}, {s(SRD_KV, 4)}, {s(S_T0)} offen sc1', tag='kvf')
            if light and gi == KV_FLAG:
                kv_flag(b)
            for _ in range(2 if gi >= GT else 1):
                if items:
                    emit1(b, items.pop(0))
            drain(6)
            if gi in (7, 23, 31, 47, 63, 79):
                stamp(b, 24 + (7, 23, 31, 47, 63, 79).index(gi))
        while items:
            emit1(b, items.pop(0))
        drain(len(fill))
        b.weave_from(n0, G=5)
        stamp(b, 6)
        G.dstamp(b, 5)
        if light and KV_FLAG > NG:
            kv_flag(b)
        if G.OPT.get('kvearly', 0) == 2:
            skip = g.lab('KE')
            b(f'v_cmp_ne_u32 vcc, {s(S_N)}, {v(V_PR + 1)}')
            b(f's_mov_b32 {s(S_KVD)}, 0')
            b(f's_cbranch_vccnz {skip}')
            b(f's_lshl_b32 {s(S_T0)}, {s(S_W)}, 13')
            b(f's_add_u32 {s(S_T0)}, {s(S_T0)}, {WS_KVF}')
            for hd in range(8):
                if hd == 4:
                    b(f's_add_u32 {s(S_T0)}, {s(S_T0)}, 4096')
                b(f'buffer_load_dwordx4 {a(A_KV + 4 * hd, 4)}, {v(V_L16)}, {s(SRD_WS, 4)}, {s(S_T0)} offen offset:{1024 * (hd & 3)} sc1', nocount=True, nodst=True)
            b(f's_mov_b32 {s(S_KVD)}, 1')
            b.label(skip)
        last = nblk - 1
        for k in range(8):
            b(xw(last, k))
        for x in gate_setup():
            emit1(b, x)
        b.wait_lds()
        b('s_barrier')
        for k in range(8):
            b(xr(last, k))
        for nb in range(last):
            for x in ymath(nb, V_GS + 8 * nb):
                emit1(b, x)
            ystore(b, nb)
        for x in xsum(V_GS, G.OPT.get('pk', 1)) + ymath(last, V_GS):
            emit1(b, x)
        ystore(b, last)
        stamp(b, 7)
        if light:
            ep = g.lab('EP')
            b(f's_lshl_b32 {s(S_T0)}, {s(S_I)}, 5')
            b(f's_lshl2_add_u32 {s(S_T0)}, {s(S_J)}, {s(S_T0)}')
            b(f's_add_u32 {s(S_T0)}, {s(S_T0)}, {s(S_W)}')
            b(f's_cmp_lg_u32 {s(S_T0)}, {6 * 4 + 3}')
            b(f's_cbranch_scc1 {ep}_end')
            txt = [f'    v_and_b32 {v(t1)}, 3, {v(V_LANE)}', f'    v_lshrrev_b32 {v(t0)}, 2, {v(V_LANE)}',
                   f'    v_lshlrev_b32 {v(t0)}, 4, {v(t0)}', f'    v_add_lshl_u32 {v(t0)}, {v(t0)}, {v(t1)}, 2']
            for k in range(16):
                txt.append(f'    s_mov_b32 {s(S_T3)}, {WS_FP1 + 1024 * k}')
                txt.append(f'    buffer_load_dword {v(32 + k)}, {v(t0)}, {s(SRD_WS, 4)}, {s(S_T3)} offen sc1')
            txt = [f'    s_mov_b32 {s(G.S_CNT)}, {G.SPIN_MAX}', f'{ep}:'] + txt + ['    s_waitcnt vmcnt(0)']
            for k in range(16):
                txt.append(f'    v_xor_b32 {v(32 + k)}, {s(S_N)}, {v(32 + k)}')
            for k in range(1, 16, 2):
                hi = 32 + k + 1 if k + 1 < 16 else 32 + k
                txt.append(f'    v_or3_b32 {v(32)}, {v(32)}, {v(32 + k)}, {v(hi)}')
            txt += [f'    v_cmp_ne_u32 vcc, 0, {v(32)}', f'    s_cbranch_vccz {ep}_ok',
                    f'    s_sub_u32 {s(G.S_CNT)}, {s(G.S_CNT)}, 1', f'    s_cmp_lg_u32 {s(G.S_CNT)}, 0', f'    s_cbranch_scc1 {ep}',
                    f'{ep}_ok:', f'    v_mov_b32 {v(V_POLL)}, {s(S_N)}',
                    f'    buffer_store_dword {v(V_POLL)}, off, {s(SRD_WS, 4)}, 0 sc1', f'{ep}_end:']
            b.b.raw('\n'.join(txt))
        else:
            b('s_branch L_P3')
        return b.b

    PH = main_stream(False)
    PL = main_stream(True)

    b = St(g, 'P3')
    b.label('L_P3')
    ACC3 = 64
    T = [224, 240]
    b(f'v_bfe_u32 {v(t0)}, {v(V_LANE)}, 2, 1')
    b(f'v_bfe_u32 {v(t1)}, {v(V_LANE)}, 4, 1')
    b(f'v_xor_b32 {v(t0)}, {v(t0)}, {v(t1)}')
    b(f'v_and_b32 {v(t1)}, 3, {v(V_LANE)}')
    b(f'v_lshlrev_b32 {v(t1)}, 4, {v(t1)}')
    b(f'v_lshl_add_u32 {v(t0)}, {v(t0)}, 6, {v(t1)}')
    b(f'v_lshrrev_b32 {v(t1)}, 3, {v(V_LANE)}')
    b(f'v_lshl_add_u32 {v(t0)}, {v(t1)}, 10, {v(t0)}')
    b(f's_lshl_b32 {s(S_T0)}, {s(S_J)}, 7')
    VW = 28
    b(f'v_add_u32 {v(VW)}, {s(S_T0)}, {v(t0)}')
    b(f'v_add_u32 {v(VW + 1)}, 7168, {v(VW)}')
    b(f's_cmp_eq_u32 {s(S_W)}, 0')
    b(f's_cselect_b32 {s(S_T0)}, {hex(OOB)}, 0')
    b(f'v_add_u32 {v(32)}, {s(S_T0)}, {v(VW)}')
    b(f's_mul_i32 {s(S_WOB)}, {s(S_W)}, {176 * 1024}')
    b(f's_sub_u32 {s(S_WOB)}, {s(S_WOB)}, 16384')
    b(f's_mul_i32 {s(S_PART)}, {s(S_W)}, {PRIV}')
    srd(b, SRD_X, P_WO, 512 * 1024)
    srd(b, SRD_U, P_WOUT, 688 * 1024)

    def wo_items(hd):
        return [[f's_add_u32 m0, {s(S_PART)}, {XOFF + 2048 * hd}',
                 f's_lshl_b32 {s(S_Q0)}, {s(S_W)}, 17',
                 f's_add_u32 {s(S_Q0)}, {s(S_Q0)}, {16384 * hd}',
                 (f'wo{hd}', f'buffer_load_dwordx4 {v(VW)}, {s(SRD_X, 4)}, {s(S_Q0)} offen{G.NT(8)} lds')],
                [(f'wo{hd}', f'buffer_load_dwordx4 {v(VW + 1)}, {s(SRD_X, 4)}, {s(S_Q0)} offen offset:1024{G.NT(8)} lds')]]

    def wout_items():
        it = []
        for i in range(22):
            vo = 32 if i < 2 else VW
            it.append([f's_add_u32 m0, {s(S_PART)}, {1024 * i}',
                       f's_add_u32 {s(S_Q0)}, {s(S_WOB)}, {8192 * i}',
                       f's_max_i32 {s(S_Q0)}, {s(S_Q0)}, 0',
                       ('wout', f'buffer_load_dwordx4 {v(vo)}, {s(SRD_U, 4)}, {s(S_Q0)} offen{G.NT(8)} lds')])
        return it

    def kvf_loads():
        b(f's_lshl_b32 {s(S_T0)}, {s(S_W)}, 13')
        b(f's_add_u32 {s(S_T0)}, {s(S_T0)}, {WS_KVF}')
        for hd in range(8):
            if hd == 4:
                b(f's_add_u32 {s(S_T0)}, {s(S_T0)}, 4096')
            b(f'buffer_load_dwordx4 {a(A_KV + 4 * hd, 4)}, {v(V_L16)}, {s(SRD_WS, 4)}, {s(S_T0)} offen offset:{1024 * (hd & 3)} sc1')

    def y_flag():
        b.wait_vm('y')
        b(f's_lshl3_add_u32 {s(S_T0)}, {s(S_I)}, {s(S_J)}')
        b(f's_lshl4_add_u32 {s(S_T0)}, {s(S_T0)}, {s(S_W)}')
        b(f's_lshl_b32 {s(S_T0)}, {s(S_T0)}, 2')
        b(f's_add_u32 {s(S_T0)}, {s(S_T0)}, {WS_FY}')
        b(f'v_mov_b32 {v(V_POLL)}, {s(S_N)}')
        b(f'buffer_store_dword {v(V_POLL)}, off, {s(SRD_WS, 4)}, {s(S_T0)} sc1', tag='flag')

    V_TW = 26
    if G.OPT.get('kvearly', 0) == 2:
        for hd in range(4):
            b.add(wo_items(hd))
        b.flush()
        tr_addr(b, V_TW, True)
        b(f'v_add_u32 {v(V_TW)}, {s(S_PART)}, {v(V_TW)}')
        b(f'v_xor_b32 {v(V_TW + 1)}, 64, {v(V_TW)}')
        y_flag()
        stamp(b, 8)
        ok = g.lab('KO')
        b(f's_cmp_lg_u32 {s(S_KVD)}, 0')
        b(f's_cbranch_scc1 {ok}')
        txt = [f'    s_mov_b32 {s(S_T7)}, {WS_FKV}', f'    s_mov_b32 {s(G.S_CNT)}, {G.SPIN_MAX}', f'{ok}_l:',
               f'    buffer_load_dword {v(V_PR)}, {v(V_PA + 3)}, {s(SRD_WS, 4)}, {s(S_T7)} offen sc1',
               '    s_waitcnt vmcnt(0)',
               f'    v_cmp_ne_u32 vcc, {s(S_N)}, {v(V_PR)}',
               f'    s_cbranch_vccz {ok}_g',
               f'    s_sub_u32 {s(G.S_CNT)}, {s(G.S_CNT)}, 1',
               f'    s_cmp_lg_u32 {s(G.S_CNT)}, 0',
               f'    s_cbranch_scc1 {ok}_l',
               f'{ok}_g:',
               f'    s_lshl_b32 {s(S_T0)}, {s(S_W)}, 13',
               f'    s_add_u32 {s(S_T0)}, {s(S_T0)}, {WS_KVF}']
        for hd in range(8):
            if hd == 4:
                txt.append(f'    s_add_u32 {s(S_T0)}, {s(S_T0)}, 4096')
            txt.append(f'    buffer_load_dwordx4 {a(A_KV + 4 * hd, 4)}, {v(V_L16)}, {s(SRD_WS, 4)}, {s(S_T0)} offen offset:{1024 * (hd & 3)} sc1')
        txt.append('    s_waitcnt vmcnt(0)')
        b.b.raw('\n'.join(txt))
        b.label(ok)
        stamp(b, 14)
    elif G.OPT.get('kvearly', 0):
        b(f's_mov_b32 {s(S_T7)}, {WS_FKV}')
        g.poll(b, V_PA + 3, s(S_T7), V_PR + 1, first_issued=True, mark=19)
        stamp(b, 14)
        kvf_loads()
        for hd in range(4):
            b.add(wo_items(hd))
        b.flush()
        tr_addr(b, V_TW, True)
        b(f'v_add_u32 {v(V_TW)}, {s(S_PART)}, {v(V_TW)}')
        b(f'v_xor_b32 {v(V_TW + 1)}, 64, {v(V_TW)}')
        y_flag()
        stamp(b, 8)
    else:
        b(f'v_and_b32 {v(t0)}, 15, {v(V_LANE)}')
        b(f's_lshl_b32 {s(S_T0)}, {s(S_W)}, 4')
        b(f'v_add_u32 {v(t0)}, {s(S_T0)}, {v(t0)}')
        b(f'v_lshlrev_b32 {v(V_PA + 3)}, 4, {v(t0)}')
        b(f's_mov_b32 {s(S_T7)}, {WS_FKV}')
        b(f'buffer_load_dword {v(V_PR)}, {v(V_PA + 3)}, {s(SRD_WS, 4)}, {s(S_T7)} offen sc1')
        for hd in range(4):
            b.add(wo_items(hd))
        b.flush()
        tr_addr(b, V_TW, True)
        b(f'v_add_u32 {v(V_TW)}, {s(S_PART)}, {v(V_TW)}')
        b(f'v_xor_b32 {v(V_TW + 1)}, 64, {v(V_TW)}')
        y_flag()
        stamp(b, 8)
        g.poll(b, V_PA + 3, s(S_T7), V_PR, first_issued=True, mark=19)
        stamp(b, 14)
        kvf_loads()
    for hd in range(4, 8):
        b.add(wo_items(hd))
    b.add(wout_items())
    WFR = 48
    OF = [[8, 12], [16, 4]]
    eps = hex(f2u(1e-6))

    def num(hd):
        for tb in range(2):
            b(f'v_mfma_f32_32x32x16_bf16 {v(T[tb], 16)}, {a(A_KV + 4 * hd, 4)}, {a(A_PQ + 4 * (2 * hd + tb), 4)}, 0')

    def wread(hd):
        st = hd & 1
        b.ensure(f'wo{hd}')
        b.wait_vm(f'wo{hd}')
        for db in range(2):
            for t in range(2):
                b(f'ds_read_b64_tr_b16 {v(WFR + 8 * st + 4 * db + 2 * t, 2)}, {v(V_TW + db)} offset:{XOFF + 2048 * hd + 1024 * t}')

    def post(hd, tb):
        n0, dn = (T[tb], T[tb] + 8) if hd % 2 == 0 else (T[tb] + 8, T[tb])
        b(f'v_add_f32 {v(dn)}, {eps}, {v(dn)}')
        b(f'v_rcp_f32 {v(dn)}, {v(dn)}')
        b(f'v_mul_f32 {v(dn)}, {v(dn)}, {v(V_G0 + tb)}')
        for k in range(8):
            b(f'v_mul_f32 {v(n0 + k)}, {v(n0 + k)}, {v(dn)}')
        of = OF[hd & 1][tb]
        for k in range(4):
            b(f'v_cvt_pk_bf16_f32 {v(of + k)}, {v(n0 + 2 * k)}, {v(n0 + 2 * k + 1)}')

    def outm(hd):
        st = hd & 1
        for tb in range(2):
            for db in range(2):
                acc = ACC3 + 16 * (2 * tb + db)
                c = '0' if hd == 0 else v(acc, 16)
                b(f'v_mfma_f32_32x32x16_bf16 {v(acc, 16)}, {v(WFR + 8 * st + 4 * db, 4)}, {v(OF[st][tb], 4)}, {c}')

    S_Y0, S_Y1 = S_KVO, S_WOB + 4

    def y_items():
        it = []
        order = [(n, tb) for tb in range(2) for n in range(11)] if G.OPT.get('blkmajor', 1) else [(n, tb) for n in range(11) for tb in range(2)]
        for n, tb in order:
            if True:
                l = []
                sy = (S_KVO, 81)[tb]
                if n % 4 == 0:
                    l = [f's_lshl1_add_u32 {s(sy)}, {s(S_I)}, {tb}',
                         f's_mul_i32 {s(sy)}, {s(sy)}, 45056',
                         f's_mul_i32 {s(S_Q1)}, {s(S_W)}, {11 * 1024}',
                         f's_add_u32 {s(sy)}, {s(sy)}, {s(S_Q1)}',
                         f's_add_u32 {s(sy)}, {s(sy)}, {WS_Y + 1024 * n}']
                l.append(f'buffer_load_dwordx4 {a(A_Y + 8 * n + 4 * tb, 4)}, {v(V_L16)}, {s(SRD_WS, 4)}, {s(sy)} offen offset:{1024 * (n & 3)} sc1')
                it.append(l)
        return it

    b.period = G.OPT.get('abp', 8)
    n0 = b.mark()
    for hd in range(8):
        num(hd)
        wread(hd)
        if hd > 0:
            outm(hd - 1)
        post(hd, 0)
        post(hd, 1)
        if hd == G.OPT.get('s3i', 2):
            with b.atomic():
                b(f'v_and_b32 {v(t1)}, 31, {v(V_LANE)}')
                b(f's_lshl_b32 {s(S_T0)}, {s(S_I)}, 5')
                b(f'v_add_u32 {v(t1)}, {s(S_T0)}, {v(t1)}')
                flag_addr(b, 20, t1, t0)
                b(f's_mov_b32 {s(S_T7)}, {WS_FY}')
                b(f'buffer_load_dword {v(21)}, {v(20)}, {s(SRD_WS, 4)}, {s(S_T7)} offen sc1')
        if hd == G.OPT.get('s3c', 5):
            g.poll(b, 20, s(S_T7), 21, first_issued=True, mark=22)
            stamp(b, 10)
            b.add(y_items())
    outm(7)
    b.flush()
    b.weave_from(n0, G=6)
    b.period = 0
    stamp(b, 9)
    G.dstamp(b, 6)
    b.wait_vm('wout')

    def woutread(n):
        st = n & 1
        for db in range(2):
            for t in range(2):
                b(f'ds_read_b64_tr_b16 {v(WFR + 8 * st + 4 * db + 2 * t, 2)}, {v(V_TW + db)} offset:{2048 * n + 1024 * t}')
    n0 = b.mark()
    if G.OPT.get('blkmajor', 1):
        WB = [128, 172]
        pend = []
        b(f'v_add_u32 {v(t0)}, {s(S_PART)}, {v(V_L16)}')
        for db in range(2):
            for n in range(11):
                for t in range(2):
                    b(f'ds_read_b64_tr_b16 {v(WB[db] + 4 * n + 2 * t, 2)}, {v(V_TW + db)} offset:{2048 * n + 1024 * t}')
            for tb in range(2):
                blk = 2 * tb + db
                acc = ACC3 + 16 * blk
                for n in range(11):
                    b(f'v_mfma_f32_32x32x16_bf16 {v(acc, 16)}, {v(WB[db] + 4 * n, 4)}, {a(A_Y + 8 * n + 4 * tb, 4)}, {v(acc, 16)}')
                    if pend and n >= 2 and n % 2 == 0:
                        b(pend.pop(0))
                while pend:
                    b(pend.pop(0))
                pend = [f'ds_write_b128 {v(t0)}, {v(acc + 4 * j, 4)} offset:{XOFF + 4096 * blk + 1024 * j}' for j in range(4)]
        for x in pend:
            b(x)
    else:
        woutread(0)
        for n in range(11):
            if n + 1 < 11:
                woutread(n + 1)
            st = n & 1
            for tb in range(2):
                for db in range(2):
                    acc = ACC3 + 16 * (2 * tb + db)
                    b(f'v_mfma_f32_32x32x16_bf16 {v(acc, 16)}, {v(WFR + 8 * st + 4 * db, 4)}, {a(A_Y + 8 * n + 4 * tb, 4)}, {v(acc, 16)}')
        b(f'v_add_u32 {v(t0)}, {s(S_PART)}, {v(V_L16)}')
        for blk in range(4):
            for j in range(4):
                b(f'ds_write_b128 {v(t0)}, {v(ACC3 + 16 * blk + 4 * j, 4)} offset:{XOFF + 4096 * blk + 1024 * j}')
    b.weave_from(n0, G=5, adv=(0 if G.OPT.get('blkmajor', 1) else 2))
    srd(b, SRD_T, P_OUT, 2048 * 1024)
    b(f'v_and_b32 {v(t0 + 3)}, 31, {v(V_LANE)}')
    b(f'v_lshlrev_b32 {v(t0 + 3)}, 10, {v(t0 + 3)}')
    b(f'v_lshrrev_b32 {v(t1)}, 5, {v(V_LANE)}')
    b(f'v_lshl_add_u32 {v(t0 + 3)}, {v(t1)}, 4, {v(t0 + 3)}')
    b(f's_lshl_b32 {s(S_T0)}, {s(S_I)}, 16')
    b(f's_lshr_b32 {s(S_T1)}, {s(S_W)}, 1')
    b(f's_lshl_b32 {s(S_T1)}, {s(S_T1)}, 15')
    b(f's_add_u32 {s(S_T0)}, {s(S_T0)}, {s(S_T1)}')
    b(f's_lshl_b32 {s(S_T1)}, {s(S_J)}, 7')
    b(f's_add_u32 {s(S_T0)}, {s(S_T0)}, {s(S_T1)}')
    b(f's_and_b32 {s(S_T1)}, {s(S_W)}, 1')
    b(f's_lshl_b32 {s(S_T1)}, {s(S_T1)}, 6')
    b(f's_add_u32 {s(S_T4)}, {s(S_T0)}, {s(S_T1)}')
    b.wait_lds()
    b('s_barrier')
    b(f's_lshl_b32 {s(S_T0)}, {s(S_W)}, 12')
    b(f's_add_u32 {s(S_T0)}, {s(S_T0)}, {XOFF}')
    b(f'v_add_u32 {v(t0)}, {s(S_T0)}, {v(V_L16)}')
    b(f'v_add_u32 {v(t1)}, {2 * PRIV}, {v(t0)}')
    RB_ = 128
    for src in range(4):
        for j in range(4):
            b(f'ds_read_b128 {v(RB_ + 16 * src + 4 * j, 4)}, {v(t0 if src < 2 else t1)} offset:{PRIV * (src & 1) + 1024 * j}')
    if G.OPT.get('pk', 1):
        for k in range(0, 16, 2):
            b(f'v_pk_add_f32 {v(RB_ + k, 2)}, {v(RB_ + k, 2)}, {v(RB_ + 16 + k, 2)}')
            b(f'v_pk_add_f32 {v(RB_ + 32 + k, 2)}, {v(RB_ + 32 + k, 2)}, {v(RB_ + 48 + k, 2)}')
        for k in range(0, 16, 2):
            b(f'v_pk_add_f32 {v(RB_ + k, 2)}, {v(RB_ + k, 2)}, {v(RB_ + 32 + k, 2)}')
    else:
        for k in range(16):
            b(f'v_add_f32 {v(RB_ + k)}, {v(RB_ + k)}, {v(RB_ + 16 + k)}')
            b(f'v_add_f32 {v(RB_ + 32 + k)}, {v(RB_ + 32 + k)}, {v(RB_ + 48 + k)}')
        for k in range(16):
            b(f'v_add_f32 {v(RB_ + k)}, {v(RB_ + k)}, {v(RB_ + 32 + k)}')
    O = 192
    for k in range(8):
        b(f'v_cvt_pk_bf16_f32 {v(O + k)}, {v(RB_ + 2 * k)}, {v(RB_ + 2 * k + 1)}')
    for jj in range(2):
        b(f'v_permlane32_swap_b32 {v(O + 4 * jj)}, {v(O + 4 * jj + 2)}')
        b(f'v_permlane32_swap_b32 {v(O + 4 * jj + 1)}, {v(O + 4 * jj + 3)}')
    for jj in range(2):
        b(f'buffer_store_dwordx4 {v(O + 4 * jj, 4)}, {v(t0 + 3)}, {s(SRD_T, 4)}, {s(S_T4)} offen offset:{32 * jj}{["", " sc1", " nt", " sc0 sc1"][G.OPT.get("ost", 0)]}')
    stamp(b, 12)
    G.dstamp(b, 7)
    if G.OPT.get('clk') == 1:
        b('s_memtime s[64:65]')
        b('s_memrealtime s[66:67]')
        b('s_waitcnt lgkmcnt(0)')
        b('s_sub_u32 s64, s64, s62')
        b('s_sub_u32 s66, s66, s100')
        b(f's_mov_b32 {s(SRD_T)}, {s(G.P_DBG)}')
        b(f's_mov_b32 {s(SRD_T + 1)}, {s(G.P_DBG + 1)}')
        b(f's_lshr_b32 {s(S_T4)}, {s(S_WG)}, 5')
        b(f's_and_b32 {s(S_T5)}, {s(S_WG)}, 31')
        b(f's_or_b32 {s(S_T5)}, {s(S_T5)}, {s(S_W)}')
        b(f's_cmp_eq_u32 {s(S_T5)}, 0')
        b(f's_cselect_b32 {s(SRD_T + 2)}, 256, 0')
        b(f's_mov_b32 {s(SRD_T + 3)}, 0x20000')
        b(f's_lshl_b32 {s(S_T4)}, {s(S_T4)}, 3')
        b(f'v_mov_b32 {v(2)}, s64')
        b(f'v_mov_b32 {v(3)}, s66')
        b(f'buffer_store_dwordx2 {v(2, 2)}, off, {s(SRD_T, 4)}, {s(S_T4)}')
    return P2, PH, PL, b.b
```
